```python
import torch

def _softmax(x, axis=-1):
    return torch.softmax(x, dim=axis)
def _gelu(x):
    return torch.nn.functional.gelu(x, approximate="tanh")
def _silu(x):
    return torch.nn.functional.silu(x)
def _sigmoid(x):
    return torch.sigmoid(x)
def _layernorm(x, axis=-1, eps=1e-5):
    m = x.mean(dim=axis, keepdim=True)
    v = x.var(dim=axis, keepdim=True, unbiased=False)
    return (x - m) / torch.sqrt(v + eps)
def _scatter_add(tgt, idx, src, axis=0):
    return tgt.clone().index_add_(axis, idx, src)
def _segment_sum(src, seg, n):
    out = torch.zeros((n,) + src.shape[1:], dtype=src.dtype)
    return out.index_add_(0, seg, src)
def _pad(x, pw):
    flat = tuple(v for pair in reversed(pw) for v in pair)
    return torch.nn.functional.pad(x, flat)

kernel_name = 'standalone__gqa_block_cached__near_ridge'

def setup_inputs():

    _w = (lambda a: (lambda t: t.to(torch.bfloat16) if t.is_floating_point() else t)(torch.as_tensor(a)))
    B, Sq, D = 8, 96, 640
    Hq, Hkv, Sk, Dh = 32, 32, 96, 192
    assert Hq % Hkv == 0, (Hq, Hkv)
    return {
        "x": _w((lambda *s: torch.randn(*s, dtype=torch.bfloat16) * 0.8)(B, Sq, D)),
        "k_cache": _w((lambda *s: torch.randn(*s, dtype=torch.bfloat16) * 0.8)(B, Hkv, Sk, Dh)),
        "v_cache": _w((lambda *s: torch.randn(*s, dtype=torch.bfloat16) * 0.05)(B, Hkv, Sk, Dh)),
        "wq": _w((lambda *s: torch.randn(*s, dtype=torch.bfloat16) * 0.8)(D, Hq * Dh) * (D ** -0.5)),
        "wo": _w((lambda *s: torch.randn(*s, dtype=torch.bfloat16) * 0.05)(Hq * Dh, D) * ((Hq * Dh) ** -0.5)),
    }

def reference(x, k_cache, v_cache, wq, wo):
    B, Sq, D = x.shape
    Hq, Dh = 32, 192
    Hkv = k_cache.shape[1]
    rep = Hq // Hkv
    q = (lambda x, *d: x.permute(*d))((x @ wq).reshape(B, Sq, Hq, Dh), 0, 2, 1, 3)
    k = (lambda x, n, axis: torch.repeat_interleave(x, n, dim=axis))(k_cache, rep, axis=1)
    v = (lambda x, n, axis: torch.repeat_interleave(x, n, dim=axis))(v_cache, rep, axis=1)
    scores = torch.einsum("bhqd,bhkd->bhqk", q, k) * (Dh ** -0.5)
    p = _softmax(scores, axis=-1)
    o = torch.einsum("bhqk,bhkd->bhqd", p, v)
    return (lambda x, *d: x.permute(*d))(o, 0, 2, 1, 3).reshape(B, Sq, Hq * Dh) @ wo
```

```python
class Asm:
    def __init__(self):
        self.lines = []
        self._uid = 0

    def __call__(self, s):
        for ln in s.split("\n"):
            ln = ln.strip()
            if ln:
                if ln.endswith(":") or ln.startswith("."):
                    self.lines.append(ln)
                else:
                    self.lines.append("    " + ln)

    def c(self, s):
        self.lines.append("    ; " + s)

    def label(self, name):
        self.lines.append(name + ":")

    def uid(self, p="L"):
        self._uid += 1
        return f"{p}_{self._uid}"

    def text(self):
        return "\n".join(self.lines) + "\n"


def v(i, n=1):
    return f"v{i}" if n == 1 else f"v[{i}:{i + n - 1}]"


def s(i, n=1):
    return f"s{i}" if n == 1 else f"s[{i}:{i + n - 1}]"


def kernel_header(name):
    return (
        f".globl {name}\n.p2align 8\n.type {name},@function\n{name}:\n"
    )


def kernel_desc(name, vgpr=256, sgpr=102, accum=256):
    return f""".amdhsa_kernel {name}
  .amdhsa_next_free_vgpr {vgpr}
  .amdhsa_next_free_sgpr {sgpr}
  .amdhsa_accum_offset {accum}
  .amdhsa_group_segment_fixed_size 0
  .amdhsa_kernarg_size 64
  .amdhsa_user_sgpr_count 2
  .amdhsa_user_sgpr_kernarg_segment_ptr 1
  .amdhsa_system_sgpr_workgroup_id_x 1
  .amdhsa_float_denorm_mode_32 3
.end_amdhsa_kernel
"""


def interleave(main, fill, pattern=None):
    out = []
    n = len(main)
    fi = 0
    if pattern is None:
        pattern = []
        acc = 0
        for i in range(n):
            want = ((i + 1) * len(fill) + n - 1) // n
            pattern.append(want - acc)
            acc = want
    for i, m in enumerate(main):
        out.append(m)
        k = pattern[i] if i < len(pattern) else 0
        for _ in range(k):
            if fi < len(fill):
                out.append(fill[fi])
                fi += 1
    out.extend(fill[fi:])
    return out
```

```python
import sys
from asmlib import Asm, v, s, kernel_header, kernel_desc, interleave

OFF_O = 0
OFF_P = 16 << 20
OFF_T = 64 << 20
SLOT1 = 36864
SPARE = 4 * SLOT1
SLOT2 = 32768
CEXP = 0.07216878364870322 * 1.4426950408889634

import struct


def f32bits(x):
    return struct.unpack("<I", struct.pack("<f", x))[0]


class Cfg:
    diag = False
    nocompute = False
    prefetch = 0
    prio = 0


S_X, S_K, S_V, S_WQ, S_WO, S_OUT, S_DBG, S_WS = 32, 34, 36, 38, 40, 42, 44, 46
S_B, S_H, S_WAVE, S_G8, S_HH = 28, 29, 30, 31, 48
S_T = 64


class Stamps:
    def __init__(self, a, cfg, kidx):
        self.a, self.on, self.n, self.kidx = a, cfg.diag, 0, kidx

    def real(self):
        if self.on:
            self.a(f"s_memrealtime {s(S_T + 2 * self.n, 2)}")
            self.a("s_waitcnt lgkmcnt(0)")
            self.n += 1

    def cyc(self):
        if self.on:
            self.a(f"s_memtime {s(S_T + 2 * self.n, 2)}")
            self.a("s_waitcnt lgkmcnt(0)")
            self.n += 1

    def flush(self, vt=200):
        if not self.on:
            return
        a = self.a
        assert self.n <= 16
        a(f"s_lshl_b32 s3, s2, 3")
        a(f"s_add_u32 s3, s3, {s(S_WAVE)}")
        a(f"s_lshl_b32 s3, s3, 7")
        a(f"s_add_u32 s3, s3, {OFF_T + self.kidx * (1 << 20)}")
        a(f"s_add_u32 s4, {s(S_WS)}, s3")
        a(f"s_addc_u32 s5, {s(S_WS + 1)}, 0")
        a("s_mov_b64 exec, 1")
        a(f"v_mov_b32 {v(vt + 2)}, 0")
        for i in range(self.n):
            a(f"v_mov_b32 {v(vt)}, {s(S_T + 2 * i)}")
            a(f"v_mov_b32 {v(vt + 1)}, {s(S_T + 2 * i + 1)}")
            a(f"global_store_dwordx2 {v(vt + 2)}, {v(vt, 2)}, s[4:5] offset:{8 * i}")
            a("s_waitcnt vmcnt(0)")


def srd(a, d, base, off_sgpr, size):
    if off_sgpr is None:
        a(f"s_mov_b32 {s(d)}, {s(base)}")
        a(f"s_mov_b32 {s(d + 1)}, {s(base + 1)}")
    else:
        a(f"s_add_u32 {s(d)}, {s(base)}, {off_sgpr}")
        a(f"s_addc_u32 {s(d + 1)}, {s(base + 1)}, 0")
    a(f"s_mov_b32 {s(d + 2)}, {size}")
    a(f"s_mov_b32 {s(d + 3)}, 0x20000")


def common_setup(a, st, exit_label):
    a(f"s_cmp_ge_u32 s2, 256")
    a(f"s_cbranch_scc1 {exit_label}")
    a(f"s_load_dwordx16 s[32:47], s[0:1], 0")
    st.real()
    st.cyc()
    a("v_lshrrev_b32 v1, 6, v0")
    a("v_and_b32 v0, 63, v0")
    a(f"v_readfirstlane_b32 {s(S_WAVE)}, v1")
    a(f"s_and_b32 {s(S_G8)}, s2, 7")
    a("s_lshr_b32 s4, s2, 3")
    a(f"s_lshr_b32 {s(S_B)}, s4, 2")
    a(f"s_and_b32 {s(S_HH)}, s4, 3")
    a(f"s_lshl_b32 s3, {s(S_G8)}, 2")
    a(f"s_add_u32 {s(S_H)}, s3, {s(S_HH)}")
    a("s_waitcnt lgkmcnt(0)")


def dma(a, voff, srd_, soff, ldsaddr_expr):
    if isinstance(ldsaddr_expr, tuple):
        a(f"s_add_u32 m0, {ldsaddr_expr[0]}, {ldsaddr_expr[1]}")
    else:
        a(f"s_mov_b32 m0, {ldsaddr_expr}")
    a("s_nop 0")
    a(f"buffer_load_dwordx4 {v(voff)}, {s(srd_, 4)}, {soff} offen lds")


def mfma(d, a_, b_, c=None):
    cs = v(d, 4) if c is None else str(c)
    return f"v_mfma_f32_16x16x32_bf16 {v(d, 4)}, {v(a_, 4)}, {v(b_, 4)}, {cs}"


def trread(d, addr, off):
    assert 0 <= off < 65536
    return f"ds_read_b64_tr_b16 {v(d, 2)}, {v(addr)} offset:{off}"


def rd128(d, addr, off):
    assert 0 <= off < 65536
    return f"ds_read_b128 {v(d, 4)}, {v(addr)} offset:{off}"


def rd64(d, addr, off):
    assert 0 <= off < 65536
    return f"ds_read_b64 {v(d, 2)}, {v(addr)} offset:{off}"


def emit(a, lst):
    for x in lst:
        a(x)


def gen_k1(a, cfg, name):
    st = Stamps(a, cfg, 0)
    R_X, R_WQ, R_K, R_V, R_O = 8, 12, 16, 20, 24
    a(kernel_header(name))
    end = name + "_end"
    common_setup(a, st, end)
    a(f"s_mul_i32 s3, {s(S_B)}, 122880")
    srd(a, R_X, S_X, "s3", 122880)
    a(f"s_mul_i32 s3, {s(S_H)}, 384")
    a("s_sub_u32 s4, 7864320, s3")
    srd(a, R_WQ, S_WQ, "s3", "s4")
    a(f"s_lshl_b32 s3, {s(S_B)}, 5")
    a(f"s_add_u32 s3, s3, {s(S_H)}")
    a("s_mul_i32 s3, s3, 36864")
    srd(a, R_K, S_K, "s3", 36864)
    srd(a, R_V, S_V, "s3", 36864)
    if OFF_O:
        a(f"s_add_u32 s3, s3, {OFF_O}")
    srd(a, R_O, S_WS, "s3", 36864)
    a(f"s_cmp_ge_u32 {s(S_WAVE)}, 4")
    a(f"s_cbranch_scc1 {name}_loader")

    ACC = 16
    FR = 88
    QP = 160
    LS = 196
    ONES = 208
    AX = 212
    AY = 216
    AZ = 218
    AVo, AVp = 230, 234
    AQW, AQR, AMW, AMR, APW, APR, APW2, APR2, AO = 238, 239, 240, 241, 242, 243, 244, 245, 246
    VM, VG, VF, T0, T1, T2 = 1, 2, 3, 4, 5, 6
    MX = 8
    S_I, S_J, S_C, S_D, S_CNT, S_SLOT = 50, 51, 52, 53, 54, 55

    if cfg.prio:
        a(f"s_setprio {cfg.prio}")
    a(f"s_lshr_b32 {s(S_I)}, {s(S_WAVE)}, 1")
    a(f"s_and_b32 {s(S_J)}, {s(S_WAVE)}, 1")
    a(f"s_mov_b32 {s(S_C)}, {f32bits(CEXP):#x}")
    a(f"v_and_b32 {v(VM)}, 15, v0")
    a(f"v_lshrrev_b32 {v(VG)}, 4, v0")
    if cfg.prefetch:
        k1_prefetch(a, cfg)
    a(f"v_lshrrev_b32 {v(T0)}, 2, {v(VM)}")
    a(f"v_lshl_add_u32 {v(T1)}, {v(VG)}, 3, {v(T0)}")
    a(f"v_mul_u32_u24 {v(T1)}, 384, {v(T1)}")
    a(f"v_and_b32 {v(T2)}, 3, {v(VM)}")
    a(f"v_lshl_add_u32 {v(T1)}, {v(T2)}, 3, {v(T1)}")
    a(f"v_and_b32 {v(T2)}, 1, {v(VG)}")
    a(f"v_lshrrev_b32 {v(VF)}, 3, {v(VM)}")
    a(f"v_lshl_or_b32 {v(VF)}, {v(T2)}, 1, {v(VF)}")
    a(f"s_mul_i32 s3, {s(S_I)}, 6")
    for c in range(4):
        a(f"s_add_u32 s4, s3, {c}")
        a("s_and_b32 s5, s4, 3")
        a("s_lshr_b32 s4, s4, 2")
        a("s_lshl_b32 s4, s4, 7")
        a(f"v_xor_b32 {v(T2)}, s5, {v(VF)}")
        a(f"v_lshl_add_u32 {v(T2)}, {v(T2)}, 5, {v(T1)}")
        a(f"v_add_u32 {v(AX + c)}, s4, {v(T2)}")
    a(f"v_lshl_add_u32 {v(T1)}, {v(VG)}, 2, {v(T0)}")
    a(f"v_lshrrev_b32 {v(VF)}, 1, {v(T1)}")
    a(f"v_and_b32 {v(VF)}, 3, {v(VF)}")
    a(f"v_mul_u32_u24 {v(T1)}, 384, {v(T1)}")
    a(f"v_and_b32 {v(T2)}, 3, {v(VM)}")
    a(f"v_lshl_add_u32 {v(T1)}, {v(T2)}, 3, {v(T1)}")
    a(f"s_mul_i32 s6, {s(S_I)}, 18432")
    a(f"s_add_u32 s7, s6, {3 * SLOT1}")
    a(f"s_sub_u32 s6, {3 * SLOT1 + 18432}, s6")
    for c in range(4):
        a(f"s_add_u32 s4, s3, {c}")
        a("s_and_b32 s5, s4, 3")
        a("s_lshr_b32 s4, s4, 2")
        a("s_lshl_b32 s4, s4, 7")
        a(f"v_xor_b32 {v(T2)}, s5, {v(VF)}")
        a(f"v_lshl_add_u32 {v(T2)}, {v(T2)}, 5, {v(T1)}")
        a(f"v_add_u32 {v(T2)}, s4, {v(T2)}")
        a(f"v_add_u32 {v(AVo + c)}, s7, {v(T2)}")
        a(f"v_add_u32 {v(AVp + c)}, s6, {v(T2)}")
    a(f"s_mul_i32 s3, {s(S_J)}, 48")
    a(f"v_add_u32 {v(T1)}, s3, {v(VM)}")
    a(f"v_lshlrev_b32 {v(T1)}, 7, {v(T1)}")
    a(f"v_add_u32 {v(T1)}, 24576, {v(T1)}")
    a(f"v_lshrrev_b32 {v(VF)}, 1, {v(VM)}")
    for ks in range(2):
        a(f"v_add_u32 {v(T2)}, {4 * ks}, {v(VG)}")
        a(f"v_xor_b32 {v(T2)}, {v(T2)}, {v(VF)}")
        a(f"v_lshl_add_u32 {v(AY + ks)}, {v(T2)}, 4, {v(T1)}")
    a(f"s_mul_i32 s3, {s(S_I)}, 48")
    a(f"v_add_u32 {v(T1)}, s3, {v(VM)}")
    a(f"v_mul_u32_u24 {v(T1)}, 384, {v(T1)}")
    a(f"v_and_b32 {v(T2)}, 1, {v(VG)}")
    a(f"v_lshl_add_u32 {v(T1)}, {v(T2)}, 3, {v(T1)}")
    a(f"v_add_u32 {v(T1)}, {2 * SLOT1}, {v(T1)}")
    a(f"v_lshrrev_b32 {v(T0)}, 1, {v(VG)}")
    a(f"s_mul_i32 s3, {s(S_I)}, 3")
    for ls in range(6):
        a(f"s_add_u32 s4, s3, {ls}")
        a("s_sub_u32 s5, s4, 6")
        a("s_cmp_ge_u32 s4, 6")
        a("s_cselect_b32 s4, s5, s4")
        a("s_and_b32 s5, s4, 1")
        a("s_lshl_b32 s5, s5, 2")
        a("s_lshr_b32 s4, s4, 1")
        a("s_lshl_b32 s4, s4, 7")
        for hh in range(2):
            a(f"s_add_u32 s6, s5, {2 * hh}")
            a(f"v_or_b32 {v(T2)}, s6, {v(T0)}")
            a(f"v_xor_b32 {v(T2)}, {v(T2)}, {v(VF)}")
            a(f"v_lshl_add_u32 {v(T2)}, {v(T2)}, 4, {v(T1)}")
            a(f"v_add_u32 {v(AZ + 2 * ls + hh)}, s4, {v(T2)}")
    a(f"s_xor_b32 s5, {s(S_WAVE)}, 2")
    a(f"v_lshlrev_b32 {v(T1)}, 4, v0")
    a(f"s_mul_i32 s3, {s(S_WAVE)}, 9216")
    a(f"v_add_u32 {v(AQW)}, s3, {v(T1)}")
    a(f"s_mul_i32 s3, s5, 9216")
    a(f"v_add_u32 {v(AQR)}, s3, {v(T1)}")
    a(f"s_mul_i32 s3, {s(S_WAVE)}, 4608")
    a(f"s_add_u32 s3, s3, {SLOT1}")
    a(f"v_add_u32 {v(APW)}, s3, {v(T1)}")
    a(f"v_lshl_add_u32 {v(APW2)}, v0, 3, s3")
    a(f"s_mul_i32 s3, s5, 4608")
    a(f"s_add_u32 s3, s3, {SLOT1}")
    a(f"v_add_u32 {v(APR)}, s3, {v(T1)}")
    a(f"v_lshl_add_u32 {v(APR2)}, v0, 3, s3")
    a(f"s_mul_i32 s3, {s(S_WAVE)}, 192")
    a(f"s_add_u32 s3, s3, {SPARE}")
    a(f"v_lshl_add_u32 {v(AMW)}, {v(VM)}, 2, s3")
    a(f"s_mul_i32 s3, s5, 192")
    a(f"s_add_u32 s3, s3, {SPARE}")
    a(f"v_lshl_add_u32 {v(AMR)}, {v(VM)}, 2, s3")
    a(f"s_mul_i32 s3, {s(S_I)}, 18")
    a(f"s_mul_i32 s4, {s(S_J)}, 3")
    a("s_add_u32 s3, s3, s4")
    a("s_lshl_b32 s3, s3, 10")
    a(f"v_add_u32 {v(AO)}, s3, {v(T1)}")
    for i in range(4):
        a(f"v_mov_b32 {v(ONES + i)}, 0x3f803f80")
    for i in range(72):
        a(f"v_mov_b32 {v(ACC + i)}, 0")

    def fa(setn, dt):
        return FR + 36 * setn + 4 * dt

    def fb(setn, qt):
        return FR + 36 * setn + 24 + 4 * qt

    def p1_reads(setn, ks):
        def A(dt):
            return [trread(fa(setn, dt) + 2 * hh, AX + dt % 4, 384 * (32 * ks + 4 * hh) + 128 * (dt // 4)) for hh in range(2)]

        def Bq(qt):
            return [rd128(fb(setn, qt), AY + ks, 2048 * qt)]
        r = Bq(0) + A(0) + Bq(1) + Bq(2)
        for dt in range(1, 6):
            r += A(dt)
        return r

    def p1_mfmas(setn):
        return [mfma(ACC + 4 * (3 * dt + qt), fa(setn, dt), fb(setn, qt)) for dt in range(6) for qt in range(3)]

    adv = [f"v_add_u32 {v(AX + c)}, {s(S_D)}, {v(AX + c)}" for c in range(4)] + \
          [f"v_add_u32 {v(AY + c)}, {s(S_D)}, {v(AY + c)}" for c in range(2)]
    pat2 = [2] * 8 + [0] * 10

    a(f"s_mov_b32 {s(S_SLOT)}, 0")
    a(f"s_mov_b32 {s(S_CNT)}, 0")
    a(f"s_mov_b32 s57, {(-3 * SLOT1) & 0xffffffff:#x}")
    a(f"s_mov_b32 s58, {SLOT1}")
    st.cyc()
    a("s_barrier")
    st.cyc()
    if not cfg.nocompute:
        emit(a, p1_reads(0, 0))
        a("s_waitcnt lgkmcnt(0)")
    a.label(f"{name}_p1")
    a(f"s_add_u32 {s(S_SLOT)}, {s(S_SLOT)}, 1")
    a(f"s_and_b32 {s(S_SLOT)}, {s(S_SLOT)}, 3")
    a(f"s_cmp_eq_u32 {s(S_SLOT)}, 0")
    a(f"s_cselect_b32 {s(S_D)}, s57, s58")
    if not cfg.nocompute:
        emit(a, interleave(p1_mfmas(0), p1_reads(1, 1) + adv, [2] * 8 + [1] * 5 + [0] * 5))
        a("s_waitcnt lgkmcnt(0)")
    a("s_barrier")
    if not cfg.nocompute:
        emit(a, interleave(p1_mfmas(1), p1_reads(0, 0), pat2))
        a("s_waitcnt lgkmcnt(0)")
    a(f"s_add_u32 {s(S_CNT)}, {s(S_CNT)}, 1")
    a(f"s_cmp_lt_u32 {s(S_CNT)}, 9")
    a(f"s_cbranch_scc1 {name}_p1")
    if not cfg.nocompute:
        emit(a, interleave(p1_mfmas(0), p1_reads(1, 1), pat2))
        a("s_waitcnt lgkmcnt(0)")
    a("s_barrier")
    st.cyc()

    def kf(buf, a_):
        return FR + 12 * buf + 4 * a_

    def k_reads(ls, buf):
        return [rd64(kf(buf, a_) + 2 * hh, AZ + 2 * ls + hh, 6144 * a_) for a_ in range(3) for hh in range(2)]

    emit(a, interleave(p1_mfmas(1), k_reads(0, 0) + k_reads(1, 1), [1] * 12 + [0] * 6))
    for dt in range(6):
        for qt in range(3):
            t = ACC + 4 * (3 * dt + qt)
            d = QP + 4 * (3 * (dt // 2) + qt) + 2 * (dt % 2)
            a(f"v_cvt_pk_bf16_f32 {v(d)}, {v(t)}, {v(t + 1)}")
            a(f"v_cvt_pk_bf16_f32 {v(d + 1)}, {v(t + 2)}, {v(t + 3)}")
    a("s_waitcnt lgkmcnt(0)")
    emit(a, k_reads(2, 2))
    for f in range(9):
        a(f"ds_write_b128 {v(AQW)}, {v(QP + 4 * f, 4)} offset:{1024 * f}")
    SA = ACC

    def s_mfmas(qbase, ls3, buf, first=False):
        return [mfma(SA + 4 * (3 * a_ + qt), kf(buf, a_), qbase + 4 * (3 * ls3 + qt), 0 if first else None)
                for a_ in range(3) for qt in range(3)]
    emit(a, s_mfmas(QP, 0, 0, True))
    emit(a, s_mfmas(QP, 1, 1))
    a("s_waitcnt lgkmcnt(0)")
    a("s_barrier")
    st.cyc()
    QR = FR + 36
    rds = [rd128(QR + 4 * f, AQR, 1024 * f) for f in range(9)]
    emit(a, interleave(s_mfmas(QP, 2, 2), rds[:3] + k_reads(3, 0) + rds[3:6], [2] * 6 + [0] * 3))
    a("s_waitcnt lgkmcnt(0)")
    emit(a, interleave(s_mfmas(QR, 0, 0), k_reads(4, 1) + rds[6:9] + k_reads(5, 2), [2] * 8 + [0]))
    a("s_waitcnt lgkmcnt(0)")
    emit(a, s_mfmas(QR, 1, 1))
    emit(a, s_mfmas(QR, 2, 2))
    VB0, VB1 = QP, FR + 36

    def v_reads(step, buf):
        r = []
        for dt in range(6):
            for hh in range(2):
                if step == 0:
                    ad, tile = AVo, hh
                elif step == 1:
                    ad, tile = (AVo, 2) if hh == 0 else (AVp, 2)
                else:
                    ad, tile = AVp, hh
                r.append(trread(buf + 4 * dt + 2 * hh, ad + dt % 4, 6144 * tile + 128 * (dt // 4)))
        return r
    a("s_nop 7")
    for qt in range(3):
        xs = [SA + 4 * (3 * a_ + qt) + r for a_ in range(3) for r in range(4)]
        a(f"v_max3_f32 {v(MX + qt)}, {v(xs[0])}, {v(xs[1])}, {v(xs[2])}")
        for k in range(3, 11, 2):
            a(f"v_max3_f32 {v(MX + qt)}, {v(MX + qt)}, {v(xs[k])}, {v(xs[k + 1])}")
        a(f"v_max_f32 {v(MX + qt)}, {v(MX + qt)}, {v(xs[11])}")
    for op in ("v_permlane16_swap_b32", "v_permlane32_swap_b32"):
        for qt in range(3):
            a(f"v_mov_b32 {v(MX + 3 + qt)}, {v(MX + qt)}")
        a("s_nop 1")
        for qt in range(3):
            a(f"{op} {v(MX + 3 + qt)}, {v(MX + qt)}")
        a("s_nop 1")
        for qt in range(3):
            a(f"v_max_f32 {v(MX + qt)}, {v(MX + qt)}, {v(MX + 3 + qt)}")
    for qt in range(3):
        a(f"ds_write_b32 {v(AMW)}, {v(MX + qt)} offset:{64 * qt}")
    a("s_waitcnt lgkmcnt(0)")
    a("s_barrier")
    for qt in range(3):
        a(f"ds_read_b32 {v(MX + 3 + qt)}, {v(AMR)} offset:{64 * qt}")
    emit(a, v_reads(0, VB0))
    a("s_waitcnt lgkmcnt(12)")
    for qt in range(3):
        a(f"v_max_f32 {v(MX + qt)}, {v(MX + qt)}, {v(MX + 3 + qt)}")
    for qt in range(3):
        a(f"v_mul_f32 {v(MX + qt)}, {s(S_C)}, {v(MX + qt)}")
    PP = FR
    PC = FR + 24
    for qt in range(3):
        xs = [SA + 4 * (3 * a_ + qt) + r for a_ in range(3) for r in range(4)]
        for x in xs:
            a(f"v_fma_f32 {v(x)}, {v(x)}, {s(S_C)}, -{v(MX + qt)}")
        for x in xs:
            a(f"v_exp_f32 {v(x)}, {v(x)}")
        a("s_nop 0")
        for k in range(6):
            a(f"v_cvt_pk_bf16_f32 {v(PP + 8 * qt + k)}, {v(xs[2 * k])}, {v(xs[2 * k + 1])}")
        a(f"ds_write_b128 {v(APW)}, {v(PP + 8 * qt, 4)} offset:{1536 * qt}")
        a(f"ds_write_b64 {v(APW2)}, {v(PP + 8 * qt + 4, 2)} offset:{1536 * qt + 1024}")
    st.cyc()

    def pv_mfmas(vbuf, pfr, first=False):
        r = []
        for dt in range(6):
            for qt in range(3):
                r.append(mfma(ACC + 4 * (3 * dt + qt), vbuf + 4 * dt, pfr(qt), 0 if first else None))
        for qt in range(3):
            r.append(mfma(LS + 4 * qt, ONES, pfr(qt), 0 if first else None))
        return r
    a("s_waitcnt lgkmcnt(0)")
    a("s_barrier")
    prd = []
    for qt in range(3):
        prd.append(rd64(PP + 8 * qt + 6, APR2, 1536 * qt + 1024))
    for qt in range(3):
        prd.append(rd128(PC + 4 * qt, APR, 1536 * qt))
    emit(a, interleave(pv_mfmas(VB0, lambda qt: PP + 8 * qt, True), prd[:3] + v_reads(1, VB1), [2] * 8 + [0] * 13))
    a("s_waitcnt lgkmcnt(0)")
    emit(a, interleave(pv_mfmas(VB1, lambda qt: PP + 8 * qt + 4), prd[3:] + v_reads(2, VB0), [2] * 8 + [0] * 13))
    a("s_waitcnt lgkmcnt(0)")
    m3 = pv_mfmas(VB0, lambda qt: PC + 4 * qt)
    emit(a, m3[18:] + m3[:18])
    for qt in range(3):
        a(f"v_rcp_f32 {v(MX + qt)}, {v(LS + 4 * qt)}")
    OP = FR + 36
    for dt in range(6):
        for qt in range(3):
            t = ACC + 4 * (3 * dt + qt)
            d = OP + 4 * (3 * (dt // 2) + qt) + 2 * (dt % 2)
            for r in range(4):
                a(f"v_mul_f32 {v(t + r)}, {v(MX + qt)}, {v(t + r)}")
            a(f"v_cvt_pk_bf16_f32 {v(d)}, {v(t)}, {v(t + 1)}")
            a(f"v_cvt_pk_bf16_f32 {v(d + 1)}, {v(t + 2)}, {v(t + 3)}")
        if dt % 2 == 1:
            ls = dt // 2
            for qt in range(3):
                off = (ls * 6 + qt) * 1024
                a(f"s_mov_b32 s3, {off}")
                a(f"buffer_store_dwordx4 {v(OP + 4 * (3 * ls + qt), 4)}, {v(AO)}, {s(R_O, 4)}, s3 offen")
    st.cyc()
    a("s_waitcnt vmcnt(0)")
    st.cyc()
    st.real()
    st.flush()
    a("s_endpgm")

    a.label(f"{name}_loader")
    stl = Stamps(a, cfg, 0)
    stl.n = 2
    S_LW, S_SW, S_SX, S_LDS, S_N = 50, 51, 52, 53, 54
    OW, OX, OK_ = 16, 22, 26
    T0, T1, T2, RR, UU = 4, 5, 6, 7, 8
    a(f"s_sub_u32 {s(S_LW)}, {s(S_WAVE)}, 4")
    RRc, UUc = 40, 44
    for c in range(3):
        a(f"v_add_u32 {v(T0)}, {64 * c}, v0")
        a(f"v_mul_u32_u24 {v(T1)}, 2731, {v(T0)}")
        a(f"v_lshrrev_b32 {v(RRc + c)}, 16, {v(T1)}")
        a(f"v_mul_u32_u24 {v(T1)}, 24, {v(RRc + c)}")
        a(f"v_sub_u32 {v(UUc + c)}, {v(T0)}, {v(T1)}")
    a(f"s_lshl_b32 s3, {s(S_LW)}, 4")
    a("s_mov_b32 s5, 12288")
    for aa in range(2):
        for c in range(3):
            a(f"v_bfe_u32 {v(T0)}, {v(RRc + c)}, 1, 1")
            a(f"v_or_b32 {v(T0)}, {2 * aa}, {v(T0)}")
            a(f"v_lshlrev_b32 {v(T0)}, 1, {v(T0)}")
            a(f"v_xor_b32 {v(T0)}, {v(T0)}, {v(UUc + c)}")
            a(f"s_add_u32 s4, s3, {8 * aa}")
            a(f"v_add_u32 {v(T1)}, s4, {v(RRc + c)}")
            a(f"v_mul_lo_u32 {v(T1)}, {v(T1)}, s5")
            a(f"v_lshl_add_u32 {v(OW + 3 * aa + c)}, {v(T0)}, 4, {v(T1)}")
    a(f"s_mul_i32 s3, {s(S_LW)}, 3")
    for c in range(3):
        a(f"s_add_u32 s4, s3, {c}")
        a("s_lshl_b32 s6, s4, 3")
        a("s_and_b32 s4, s4, 1")
        a("s_lshl_b32 s4, s4, 2")
        a(f"v_lshrrev_b32 {v(T0)}, 4, v0")
        a(f"v_or_b32 {v(T0)}, s4, {v(T0)}")
        a(f"v_and_b32 {v(T1)}, 7, v0")
        a(f"v_xor_b32 {v(T0)}, {v(T0)}, {v(T1)}")
        a(f"v_lshrrev_b32 {v(T1)}, 3, v0")
        a(f"v_add_u32 {v(T1)}, s6, {v(T1)}")
        a(f"v_mul_u32_u24 {v(T1)}, 1280, {v(T1)}")
        a(f"v_lshl_add_u32 {v(OX + c)}, {v(T0)}, 4, {v(T1)}")
    S_MW, S_MX = 55, 56
    a(f"s_mul_i32 {s(S_MW)}, {s(S_LW)}, 6144")
    a(f"s_mul_i32 {s(S_MX)}, {s(S_LW)}, 3072")
    a(f"s_add_u32 {s(S_MX)}, {s(S_MX)}, 24576")
    a(f"s_mov_b32 {s(S_SW)}, 0")
    a(f"s_mov_b32 {s(S_SX)}, 0")
    a(f"s_mov_b32 {s(S_LDS)}, 0")

    def stage():
        a(f"s_add_u32 s3, {s(S_LDS)}, {s(S_MW)}")
        a(f"s_add_u32 s4, {s(S_LDS)}, {s(S_MX)}")
        for c in range(3):
            dma(a, OX + c, R_X, s(S_SX), ("s4", 1024 * c))
        for p in range(6):
            dma(a, OW + p, R_WQ, s(S_SW), ("s3", 1024 * p))
        a(f"s_add_u32 {s(S_SW)}, {s(S_SW)}, {64 * 12288}")
        a(f"s_add_u32 {s(S_SX)}, {s(S_SX)}, 128")
        a(f"s_add_u32 {s(S_LDS)}, {s(S_LDS)}, {SLOT1}")
        a(f"s_cmp_eq_u32 {s(S_LDS)}, {4 * SLOT1}")
        a(f"s_cselect_b32 {s(S_LDS)}, 0, {s(S_LDS)}")

    a(f"s_mov_b32 {s(S_N)}, 0")
    a.label(f"{name}_lpro")
    stage()
    a(f"s_add_u32 {s(S_N)}, {s(S_N)}, 1")
    a(f"s_cmp_lt_u32 {s(S_N)}, 4")
    a(f"s_cbranch_scc1 {name}_lpro")
    stl.cyc()
    OV = 48
    a(f"s_mul_i32 s3, {s(S_LW)}, 24")
    for a2 in range(3):
        a(f"s_mul_i32 s4, {s(S_LW)}, 3")
        a(f"s_add_u32 s4, s4, {a2}")
        a("s_and_b32 s4, s4, 1")
        a("s_lshl_b32 s4, s4, 2")
        a(f"s_add_u32 s6, s3, {8 * a2}")
        for c in range(3):
            a(f"v_lshrrev_b32 {v(T0)}, 1, {v(RRc + c)}")
            a(f"v_add_u32 {v(T1)}, s6, {v(RRc + c)}")
            a(f"v_mul_u32_u24 {v(T1)}, 384, {v(T1)}")
            a(f"v_or_b32 {v(T2)}, s4, {v(T0)}")
            a(f"v_xor_b32 {v(T2)}, {v(T2)}, {v(UUc + c)}")
            a(f"v_lshl_add_u32 {v(OK_ + 3 * a2 + c)}, {v(T2)}, 4, {v(T1)}")
            a(f"v_lshlrev_b32 {v(T2)}, 1, {v(T0)}")
            a(f"v_xor_b32 {v(T2)}, {v(T2)}, {v(UUc + c)}")
            a(f"v_lshl_add_u32 {v(OV + 3 * a2 + c)}, {v(T2)}, 4, {v(T1)}")
    a("s_waitcnt vmcnt(27)")
    stl.cyc()
    a("s_barrier")
    a("s_waitcnt vmcnt(18)")
    a("s_barrier")
    a(f"s_mov_b32 {s(S_N)}, 0")
    a.label(f"{name}_lloop")
    stage()
    a("s_waitcnt vmcnt(18)")
    a("s_barrier")
    a(f"s_add_u32 {s(S_N)}, {s(S_N)}, 1")
    a(f"s_cmp_lt_u32 {s(S_N)}, 6")
    a(f"s_cbranch_scc1 {name}_lloop")
    a(f"s_mul_i32 s3, {s(S_LW)}, 9216")
    a(f"s_add_u32 s3, s3, {2 * SLOT1}")
    for p in range(9):
        dma(a, OK_ + p, R_K, "0", ("s3", 1024 * p))
    a("s_waitcnt vmcnt(18)")
    a("s_barrier")
    a(f"s_add_u32 s3, s3, {SLOT1}")
    for p in range(9):
        dma(a, OV + p, R_V, "0", ("s3", 1024 * p))
    a("s_waitcnt vmcnt(18)")
    a("s_barrier")
    a("s_waitcnt vmcnt(9)")
    stl.cyc()
    a("s_barrier")
    a("s_waitcnt vmcnt(0)")
    stl.cyc()
    a("s_barrier")
    stl.real()
    stl.flush()
    a.label(end)
    a("s_endpgm")


def k1_prefetch(a, cfg):
    T0, T1 = 4, 5
    PF = 250
    a("s_lshr_b32 s3, s2, 3")
    a("s_lshl_b32 s3, s3, 2")
    a(f"s_add_u32 s3, s3, {s(S_WAVE)}")
    mode = cfg.prefetch
    if mode & 1:
        a(f"s_mul_i32 s4, {s(S_G8)}, 1536")
        a("s_sub_u32 s5, 7864320, s4")
        srd(a, 56, S_WQ, "s4", "s5")
        a("s_mul_i32 s4, s3, 5")
        a(f"v_mul_u32_u24 {v(T0)}, 5462, v0")
        a(f"v_lshrrev_b32 {v(T0)}, 16, {v(T0)}")
        a(f"v_mul_u32_u24 {v(T1)}, 12, {v(T0)}")
        a(f"v_sub_u32 {v(T1)}, v0, {v(T1)}")
        a(f"v_min_u32 {v(T0)}, 4, {v(T0)}")
        a(f"v_add_u32 {v(T0)}, s4, {v(T0)}")
        a(f"v_mul_u32_u24 {v(T0)}, 12288, {v(T0)}")
        a(f"v_lshl_add_u32 {v(T0)}, {v(T1)}, 7, {v(T0)}")
        a(f"buffer_load_dword {v(PF)}, {v(T0)}, s[56:59], 0 offen")
        srd(a, 60, S_X, None, 983040)
        a("s_mul_i32 s4, s3, 7680")
        a(f"v_min_u32 {v(T0)}, 59, v0")
        a(f"v_lshl_add_u32 {v(T0)}, {v(T0)}, 7, s4")
        a(f"buffer_load_dword {v(PF + 1)}, {v(T0)}, s[60:63], 0 offen")
    if mode & 2:
        a(f"s_mul_i32 s4, {s(S_WAVE)}, 9216")
        a(f"v_lshl_add_u32 {v(T0)}, v0, 7, s4")
        a(f"buffer_load_dword {v(PF + 2)}, {v(T0)}, s[16:19], 0 offen")
        a(f"v_min_u32 {v(T1)}, 7, v0")
        a(f"v_lshl_add_u32 {v(T1)}, {v(T1)}, 7, s4")
        a(f"v_add_u32 {v(T1)}, 8192, {v(T1)}")
        a(f"buffer_load_dword {v(PF + 3)}, {v(T1)}, s[16:19], 0 offen")
        a(f"buffer_load_dword {v(PF + 4)}, {v(T0)}, s[20:23], 0 offen")
        a(f"buffer_load_dword {v(PF + 5)}, {v(T1)}, s[20:23], 0 offen")


def gen_k2(a, cfg, name):
    st = Stamps(a, cfg, 1)
    R_WO, R_OI, R_P = 8, 12, 16
    a(kernel_header(name))
    end = name + "_end"
    common_setup(a, st, end)
    a(f"s_mul_i32 s3, {s(S_G8)}, {768 * 1280}")
    a(f"s_mul_i32 s4, {s(S_HH)}, 320")
    a("s_add_u32 s3, s3, s4")
    a("s_sub_u32 s4, 7864320, s3")
    srd(a, R_WO, S_WO, "s3", "s4")
    a(f"s_lshl_b32 s3, {s(S_B)}, 3")
    a(f"s_add_u32 s3, s3, {s(S_G8)}")
    a(f"s_mul_i32 s3, s3, {4 * 36864}")
    if OFF_O:
        a(f"s_add_u32 s3, s3, {OFF_O}")
    srd(a, R_OI, S_WS, "s3", 4 * 36864)
    a(f"s_lshl_b32 s3, {s(S_B)}, 2")
    a(f"s_add_u32 s3, s3, {s(S_HH)}")
    a("s_lshl_b32 s3, s3, 3")
    a(f"s_add_u32 s3, s3, {s(S_G8)}")
    a("s_mul_i32 s3, s3, 30720")
    a(f"s_add_u32 s3, s3, {OFF_P}")
    srd(a, R_P, S_WS, "s3", 30720)
    a(f"s_cmp_ge_u32 {s(S_WAVE)}, 4")
    a(f"s_cbranch_scc1 {name}_loader")

    ACC = 16
    FR = 80
    PK = 144
    AW, AB, AP, AP2 = 180, 182, 183, 184
    VM, VG, T0, T1, T2 = 1, 2, 4, 5, 6
    S_I, S_J, S_D, S_CNT, S_SLOT = 50, 51, 53, 54, 55
    if cfg.prio:
        a(f"s_setprio {cfg.prio}")
    a(f"s_lshr_b32 {s(S_I)}, {s(S_WAVE)}, 1")
    a(f"s_and_b32 {s(S_J)}, {s(S_WAVE)}, 1")
    a(f"v_and_b32 {v(VM)}, 15, v0")
    a(f"v_lshrrev_b32 {v(VG)}, 4, v0")
    a(f"v_lshrrev_b32 {v(T0)}, 2, {v(VM)}")
    a(f"v_lshl_add_u32 {v(T0)}, {v(VG)}, 2, {v(T0)}")
    a(f"v_mul_u32_u24 {v(T0)}, 320, {v(T0)}")
    a(f"v_and_b32 {v(T1)}, 3, {v(VM)}")
    a(f"v_lshl_add_u32 {v(T0)}, {v(T1)}, 3, {v(T0)}")
    a(f"v_and_b32 {v(T1)}, 1, {v(VG)}")
    a(f"s_mul_i32 s3, {s(S_I)}, 5")
    for par in range(2):
        a(f"s_add_u32 s4, s3, {par}")
        a(f"v_xor_b32 {v(T2)}, s4, {v(T1)}")
        a(f"v_lshl_add_u32 {v(AW + par)}, {v(T2)}, 5, {v(T0)}")
    a(f"s_mul_i32 s3, {s(S_J)}, 3072")
    a("s_add_u32 s3, s3, 20480")
    a(f"v_lshl_add_u32 {v(AB)}, v0, 4, s3")
    a(f"s_mul_i32 s3, {s(S_WAVE)}, 7680")
    a(f"v_lshl_add_u32 {v(AP)}, v0, 4, s3")
    a("s_add_u32 s3, s3, 7168")
    a(f"v_lshl_add_u32 {v(AP2)}, v0, 3, s3")
    for i in range(60):
        a(f"v_mov_b32 {v(ACC + i)}, 0")

    def fa(setn, tt):
        return FR + 32 * setn + 4 * tt

    def fb(setn, qt):
        return FR + 32 * setn + 20 + 4 * qt

    def reads(setn, ks):
        def A(tt):
            return [trread(fa(setn, tt) + 2 * hh, AW + tt % 2, 320 * (32 * ks + 16 * hh) + 64 * (tt // 2)) for hh in range(2)]

        def Bq(qt):
            return [rd128(fb(setn, qt), AB, 6144 * ks + 1024 * qt)]
        r = Bq(0) + A(0) + Bq(1) + Bq(2)
        for tt in range(1, 5):
            r += A(tt)
        return r

    def mfmas(setn):
        return [mfma(ACC + 4 * (3 * tt + qt), fa(setn, tt), fb(setn, qt)) for tt in range(5) for qt in range(3)]
    adv = [f"v_add_u32 {v(AW + c)}, {s(S_D)}, {v(AW + c)}" for c in range(3)]
    a(f"s_mov_b32 {s(S_SLOT)}, 0")
    a(f"s_mov_b32 {s(S_CNT)}, 0")
    a(f"s_mov_b32 s57, {(-4 * SLOT2) & 0xffffffff:#x}")
    a(f"s_mov_b32 s58, {SLOT2}")
    st.cyc()
    a("s_barrier")
    st.cyc()
    if not cfg.nocompute:
        emit(a, reads(0, 0))
        a("s_waitcnt lgkmcnt(0)")
    a.label(f"{name}_loop")
    a(f"s_add_u32 {s(S_SLOT)}, {s(S_SLOT)}, 1")
    a(f"s_cmp_eq_u32 {s(S_SLOT)}, 5")
    a(f"s_cselect_b32 {s(S_D)}, s57, s58")
    a(f"s_cselect_b32 {s(S_SLOT)}, 0, {s(S_SLOT)}")
    if not cfg.nocompute:
        emit(a, interleave(mfmas(0), reads(1, 1) + adv, [2] * 7 + [1] * 2 + [0] * 6))
        a("s_waitcnt lgkmcnt(0)")
    a("s_barrier")
    if not cfg.nocompute:
        emit(a, interleave(mfmas(1), reads(0, 0), [2] * 7 + [0] * 8))
        a("s_waitcnt lgkmcnt(0)")
    a(f"s_add_u32 {s(S_CNT)}, {s(S_CNT)}, 1")
    a(f"s_cmp_lt_u32 {s(S_CNT)}, 11")
    a(f"s_cbranch_scc1 {name}_loop")
    if not cfg.nocompute:
        emit(a, interleave(mfmas(0), reads(1, 1), [2] * 7 + [0] * 8))
        a("s_waitcnt lgkmcnt(0)")
        emit(a, mfmas(1))
    st.cyc()
    a("s_nop 7")

    def tile(tt, qt):
        return ACC + 4 * (3 * tt + qt)

    def pack(d, t):
        a(f"v_cvt_pk_bf16_f32 {v(d)}, {v(t)}, {v(t + 1)}")
        a(f"v_cvt_pk_bf16_f32 {v(d + 1)}, {v(t + 2)}, {v(t + 3)}")
    blocks = [((0, qt), (1, qt)) for qt in range(3)]
    order = []
    for qt in range(3):
        order.append((2 * qt, (0, qt), (1, qt)))
    for qt in range(3):
        order.append((2 * qt + 1, (2, qt), (3, qt)))
    order.append((6, (4, 0), (4, 1)))
    for n, (bi, t0, t1) in enumerate(order):
        d = PK + 4 * n
        pack(d, tile(*t0))
        pack(d + 2, tile(*t1))
        a(f"s_mov_b32 s3, {1024 * bi}")
        a(f"buffer_store_dwordx4 {v(d, 4)}, {v(AP)}, {s(R_P, 4)}, s3 offen")
    pack(PK + 28, tile(4, 2))
    a(f"buffer_store_dwordx2 {v(PK + 28, 2)}, {v(AP2)}, {s(R_P, 4)}, 0 offen")
    st.cyc()
    a("s_waitcnt vmcnt(0)")
    st.cyc()
    st.real()
    st.flush()
    a("s_endpgm")

    a.label(f"{name}_loader")
    stl = Stamps(a, cfg, 1)
    stl.n = 2
    S_LW, S_SW, S_SO, S_LDS, S_N, S_MW, S_MO = 50, 51, 52, 53, 54, 55, 56
    OW, OO = 16, 22
    T0, T1, T2 = 4, 5, 6
    a(f"s_sub_u32 {s(S_LW)}, {s(S_WAVE)}, 4")
    a(f"s_lshl_b32 s3, {s(S_LW)}, 4")
    for c in range(5):
        a(f"v_add_u32 {v(T0)}, {64 * c}, v0")
        a(f"v_mul_u32_u24 {v(T1)}, 3277, {v(T0)}")
        a(f"v_lshrrev_b32 {v(T1)}, 16, {v(T1)}")
        a(f"v_mul_u32_u24 {v(T2)}, 20, {v(T1)}")
        a(f"v_sub_u32 {v(T0)}, {v(T0)}, {v(T2)}")
        a(f"v_bfe_u32 {v(T2)}, {v(T1)}, 2, 1")
        a(f"v_lshlrev_b32 {v(T2)}, 1, {v(T2)}")
        a(f"v_xor_b32 {v(T0)}, {v(T0)}, {v(T2)}")
        a(f"v_add_u32 {v(T1)}, s3, {v(T1)}")
        a(f"v_mul_u32_u24 {v(T1)}, 1280, {v(T1)}")
        a(f"v_lshl_add_u32 {v(OW + c)}, {v(T0)}, 4, {v(T1)}")
    a(f"s_mul_i32 s3, {s(S_LW)}, 3072")
    for c in range(3):
        a(f"s_add_u32 s4, s3, {1024 * c}")
        a(f"v_lshl_add_u32 {v(OO + c)}, v0, 4, s4")
    a(f"s_mul_i32 {s(S_MW)}, {s(S_LW)}, 5120")
    a(f"s_add_u32 {s(S_MO)}, s3, 20480")
    a(f"s_mov_b32 {s(S_SW)}, 0")
    a(f"s_mov_b32 {s(S_SO)}, 0")
    a(f"s_mov_b32 {s(S_LDS)}, 0")

    def stage():
        a(f"s_add_u32 s3, {s(S_LDS)}, {s(S_MW)}")
        a(f"s_add_u32 s4, {s(S_LDS)}, {s(S_MO)}")
        for c in range(3):
            dma(a, OO + c, R_OI, s(S_SO), ("s4", 1024 * c))
        for p in range(5):
            dma(a, OW + p, R_WO, s(S_SW), ("s3", 1024 * p))
        a(f"s_add_u32 {s(S_SW)}, {s(S_SW)}, {64 * 1280}")
        a(f"s_add_u32 {s(S_SO)}, {s(S_SO)}, 12288")
        a(f"s_add_u32 {s(S_LDS)}, {s(S_LDS)}, {SLOT2}")
        a(f"s_cmp_eq_u32 {s(S_LDS)}, {5 * SLOT2}")
        a(f"s_cselect_b32 {s(S_LDS)}, 0, {s(S_LDS)}")
    a(f"s_mov_b32 {s(S_N)}, 0")
    a.label(f"{name}_lpro")
    stage()
    a(f"s_add_u32 {s(S_N)}, {s(S_N)}, 1")
    a(f"s_cmp_lt_u32 {s(S_N)}, 5")
    a(f"s_cbranch_scc1 {name}_lpro")
    stl.cyc()
    a("s_waitcnt vmcnt(32)")
    stl.cyc()
    a("s_barrier")
    a("s_waitcnt vmcnt(24)")
    a("s_barrier")
    a(f"s_mov_b32 {s(S_N)}, 0")
    a.label(f"{name}_lloop")
    stage()
    a("s_waitcnt vmcnt(24)")
    a("s_barrier")
    a(f"s_add_u32 {s(S_N)}, {s(S_N)}, 1")
    a(f"s_cmp_lt_u32 {s(S_N)}, 7")
    a(f"s_cbranch_scc1 {name}_lloop")
    a("s_waitcnt vmcnt(16)")
    a("s_barrier")
    a("s_waitcnt vmcnt(8)")
    a("s_barrier")
    a("s_waitcnt vmcnt(0)")
    stl.cyc()
    a("s_barrier")
    stl.real()
    stl.flush()
    a.label(end)
    a("s_endpgm")


def reduce_addr(a, tid, vtmp, A0, A1, s_g8):
    SG, W, C, X, Y, OFFS = vtmp, vtmp + 1, vtmp + 2, vtmp + 3, vtmp + 4, vtmp + 5
    a(f"s_mul_i32 s3, {s_g8}, 240")
    a(f"v_add_u32 {v(SG)}, s3, {v(tid)}")
    a(f"v_lshlrev_b32 {v(OFFS)}, 4, {v(SG)}")
    a(f"v_mul_u32_u24 {v(W)}, 2185, {v(SG)}")
    a(f"v_lshrrev_b32 {v(W)}, 20, {v(W)}")
    a(f"v_mul_u32_u24 {v(X)}, 480, {v(W)}")
    a(f"v_sub_u32 {v(C)}, {v(SG)}, {v(X)}")
    a(f"v_and_b32 {v(X)}, 1, {v(W)}")
    a(f"v_mul_u32_u24 {v(X)}, {48 * 1280}, {v(X)}")
    a(f"v_lshrrev_b32 {v(W)}, 1, {v(W)}")
    a(f"v_mul_u32_u24 {v(W)}, 160, {v(W)}")
    a(f"v_add_u32 {v(W)}, {v(W)}, {v(X)}")
    a(f"v_lshrrev_b32 {v(SG)}, 6, {v(C)}")
    a(f"v_and_b32 {v(C)}, 63, {v(C)}")
    a(f"v_cmp_eq_u32 vcc, 7, {v(SG)}")
    a(f"v_lshlrev_b32 {v(X)}, 1, {v(C)}")
    a("s_nop 0")
    a(f"v_cndmask_b32 {v(C)}, {v(C)}, {v(X)}, vcc")
    a(f"v_and_b32 {v(X)}, 15, {v(C)}")
    a(f"v_mul_u32_u24 {v(X)}, 1280, {v(X)}")
    a(f"v_lshrrev_b32 {v(C)}, 4, {v(C)}")
    a(f"v_lshl_add_u32 {v(X)}, {v(C)}, 3, {v(X)}")
    a(f"v_add_u32 {v(W)}, {v(W)}, {v(X)}")
    a(f"v_lshrrev_b32 {v(X)}, 1, {v(SG)}")
    a(f"v_mul_u32_u24 {v(X)}, {16 * 1280}, {v(X)}")
    a(f"v_and_b32 {v(Y)}, 1, {v(SG)}")
    a(f"v_lshl_add_u32 {v(X)}, {v(Y)}, 6, {v(X)}")
    a(f"v_mov_b32 {v(Y)}, 32")
    a(f"v_cmp_eq_u32 vcc, 6, {v(SG)}")
    a(f"v_mov_b32 {v(C)}, 128")
    a(f"v_mov_b32 {v(A1)}, {16 * 1280}")
    a(f"v_cndmask_b32 {v(X)}, {v(X)}, {v(C)}, vcc")
    a(f"v_cndmask_b32 {v(Y)}, {v(Y)}, {v(A1)}, vcc")
    a(f"v_cmp_eq_u32 vcc, 7, {v(SG)}")
    a(f"v_mov_b32 {v(C)}, {32 * 1280 + 128}")
    a(f"v_mov_b32 {v(A1)}, 1280")
    a(f"v_cndmask_b32 {v(X)}, {v(X)}, {v(C)}, vcc")
    a(f"v_cndmask_b32 {v(Y)}, {v(Y)}, {v(A1)}, vcc")
    a(f"v_add_u32 {v(A0)}, {v(W)}, {v(X)}")
    a(f"v_add_u32 {v(A1)}, {v(A0)}, {v(Y)}")
    return OFFS


def gen_k3(a, cfg, name):
    st = Stamps(a, cfg, 2)
    R_P, R_OUT = 8, 12
    a(kernel_header(name))
    end = name + "_end"
    a("v_mov_b32 v40, v0")
    common_setup(a, st, end)
    a(f"s_lshl_b32 s3, {s(S_B)}, 2")
    a(f"s_add_u32 s3, s3, {s(S_HH)}")
    a(f"s_mul_i32 s3, s3, {8 * 30720}")
    a(f"s_add_u32 s3, s3, {OFF_P}")
    srd(a, R_P, S_WS, "s3", 8 * 30720)
    a(f"s_mul_i32 s3, {s(S_B)}, 122880")
    a(f"s_mul_i32 s4, {s(S_HH)}, 320")
    a("s_add_u32 s3, s3, s4")
    a("s_sub_u32 s4, 983040, s3")
    srd(a, R_OUT, S_OUT, "s3", "s4")
    a("v_cmp_gt_u32 vcc, 240, v40")
    a("s_and_saveexec_b64 s[6:7], vcc")
    a(f"s_cbranch_execz {end}")
    A0, A1 = 41, 42
    offs = reduce_addr(a, 40, 44, A0, A1, s(S_G8))
    for g in range(8):
        a(f"s_mov_b32 s3, {30720 * g}")
        a(f"buffer_load_dwordx4 {v(4 + 4 * g, 4)}, {v(offs)}, {s(R_P, 4)}, s3 offen")
    AC = 52
    for g in range(8):
        a(f"s_waitcnt vmcnt({7 - g})")
        for r in range(4):
            src = 4 + 4 * g + r
            if g == 0:
                a(f"v_lshlrev_b32 {v(AC + 2 * r)}, 16, {v(src)}")
                a(f"v_and_b32 {v(AC + 2 * r + 1)}, 0xffff0000, {v(src)}")
            else:
                a(f"v_lshlrev_b32 v60, 16, {v(src)}")
                a(f"v_and_b32 v61, 0xffff0000, {v(src)}")
                a(f"v_add_f32 {v(AC + 2 * r)}, {v(AC + 2 * r)}, v60")
                a(f"v_add_f32 {v(AC + 2 * r + 1)}, {v(AC + 2 * r + 1)}, v61")
    for r in range(4):
        a(f"v_cvt_pk_bf16_f32 {v(4 + r)}, {v(AC + 2 * r)}, {v(AC + 2 * r + 1)}")
    a(f"buffer_store_dwordx2 v[4:5], {v(A0)}, {s(R_OUT, 4)}, 0 offen")
    a(f"buffer_store_dwordx2 v[6:7], {v(A1)}, {s(R_OUT, 4)}, 0 offen")
    if cfg.diag:
        a("s_waitcnt vmcnt(0)")
    st.cyc()
    st.real()
    st.flush()
    a.label(end)
    a("s_endpgm")


def generate(cfg, which=(1, 2, 3)):
    a = Asm()
    names = {1: "attn_kernel", 2: "proj_kernel", 3: "reduce_kernel"}
    geo = {1: (512, 163840), 2: (512, 163840), 3: (256, 0)}
    for k in which:
        a.lines.append(f"; @launch kernel={names[k]} grid=(256,1,1) block=({geo[k][0]},1,1) lds={geo[k][1]}")
    a('.amdgcn_target "amdgcn-amd-amdhsa--gfx950"')
    a(".text")
    gens = {1: gen_k1, 2: gen_k2, 3: gen_k3}
    for k in sorted(set(which)):
        gens[k](a, cfg, names[k])
    a('.section .rodata,"a"')
    for k in sorted(set(which)):
        a(".p2align 6")
        a(kernel_desc(names[k], vgpr=256 if k != 3 else 64, accum=256 if k != 3 else 64))
    return a.text()


if __name__ == "__main__":
    cfg = Cfg()
    out = sys.argv[1]
    which = (1, 2, 3)
    for opt in sys.argv[2:]:
        k, val = opt.split("=")
        if k == "which":
            which = tuple(int(c) for c in val)
        else:
            setattr(cfg, k, int(val))
    open(out, "w").write(generate(cfg, which))
```

```python
import sys
from asmlib import Asm, v, s, kernel_header, kernel_desc
from gen1 import srd
KN = "standalone__gqa_block_cached__near_ridge_kernel"
def gen(mode="dma", nw=4, depth=18, region=256*1024, passes=6, share=8, stride_rows=0, flags=""):
    a = Asm()
    a.lines.append(f"; @launch grid=(256,1,1) block=({64*nw},1,1) lds=163840")
    a('.amdgcn_target "amdgcn-amd-amdhsa--gfx950"')
    a(".text")
    a(kernel_header(KN))
    a("s_cmp_ge_u32 s2, 256"); a("s_cbranch_scc1 L_end")
    a("s_load_dwordx16 s[32:47], s[0:1], 0")
    a("v_lshrrev_b32 v1, 6, v0"); a("v_and_b32 v0, 63, v0"); a("v_readfirstlane_b32 s30, v1")
    a("s_waitcnt lgkmcnt(0)")
    if share == 0:
        a(f"s_mul_i32 s3, s2, {region}")
    else:
        a("s_and_b32 s4, s2, 7"); a("s_lshr_b32 s5, s2, 3"); a(f"s_and_b32 s5, s5, {share-1}")
        a(f"s_mul_i32 s4, s4, {share}"); a("s_add_u32 s4, s4, s5"); a(f"s_mul_i32 s3, s4, {region}")
    a(f"s_add_u32 s3, s3, {128<<20}")
    srd(a, 8, 46, "s3", region)
    per = region // nw
    n = per // 1024
    if stride_rows:
        a("v_and_b32 v2, 15, v0"); a(f"v_mul_u32_u24 v2, {stride_rows}, v2"); a("v_lshrrev_b32 v3, 4, v0"); a("v_lshl_add_u32 v2, v3, 4, v2")
    else:
        a("v_lshlrev_b32 v2, 4, v0")
    a(f"s_mul_i32 s6, s30, {per}")
    a("s_mul_i32 s7, s30, 20480")
    a("s_mov_b32 s20, 0")
    a("s_memtime s[50:51]"); a("s_memrealtime s[52:53]"); a("s_waitcnt lgkmcnt(0)")
    a.label("L_pass")
    a("s_cmp_eq_u32 s20, 1"); a("s_cbranch_scc0 L_ns")
    a("s_barrier")
    a("s_memtime s[54:55]"); a("s_memrealtime s[56:57]"); a("s_waitcnt lgkmcnt(0)")
    a.label("L_ns")
    a("s_mov_b32 s21, s6")
    a("s_mov_b32 s22, 0")
    a.label("L_loop")
    U = 16
    for u in range(U):
        if mode == "dma":
            a(f"s_add_u32 m0, s7, {1024*u}"); a("s_nop 0")
            a(f"buffer_load_dwordx4 v2, s[8:11], s21 offen {flags} lds")
        else:
            a(f"buffer_load_dwordx4 v[{8+4*u}:{11+4*u}], v2, s[8:11], s21 offen {flags}")
        if stride_rows:
            a(f"s_add_u32 s21, s21, {64 if (u+1) % (stride_rows//64) else 64 + 15*stride_rows}")
        else:
            a("s_add_u32 s21, s21, 1024")
        a(f"s_waitcnt vmcnt({depth})")
    a(f"s_add_u32 s22, s22, {U}"); a(f"s_cmp_lt_u32 s22, {n}"); a("s_cbranch_scc1 L_loop")
    a("s_add_u32 s20, s20, 1"); a(f"s_cmp_lt_u32 s20, {passes}"); a("s_cbranch_scc1 L_pass")
    a("s_waitcnt vmcnt(0)")
    a("s_barrier")
    a("s_memtime s[58:59]"); a("s_memrealtime s[60:61]"); a("s_waitcnt lgkmcnt(0)")
    a("s_lshl_b32 s3, s2, 3"); a("s_add_u32 s3, s3, s30"); a("s_lshl_b32 s3, s3, 7"); a(f"s_add_u32 s3, s3, {64<<20}")
    a("s_add_u32 s4, s46, s3"); a("s_addc_u32 s5, s47, 0")
    a("s_mov_b64 exec, 1"); a("v_mov_b32 v6, 0")
    for i in range(6):
        a(f"v_mov_b32 v4, s{50+2*i}"); a(f"v_mov_b32 v5, s{51+2*i}")
        a(f"global_store_dwordx2 v6, v[4:5], s[4:5] offset:{8*i}"); a("s_waitcnt vmcnt(0)")
    a.label("L_end"); a("s_endpgm")
    a('.section .rodata,"a"'); a(".p2align 6"); a(kernel_desc(KN))
    return a.text()
if __name__ == "__main__":
    import itertools
    R = 256*1024
    cfgs = {
     "dma_w4_d15": dict(mode="dma", nw=4, depth=15),
     "dma_w4_d40": dict(mode="dma", nw=4, depth=40),
     "dma_w8_d15": dict(mode="dma", nw=8, depth=15),
     "dma_w1_d40": dict(mode="dma", nw=1, depth=40),
     "dma_w2_d40": dict(mode="dma", nw=2, depth=40),
     "reg_w4_d15": dict(mode="reg", nw=4, depth=15),
     "reg_w8_d15": dict(mode="reg", nw=8, depth=15),
     "reg_w4_d7": dict(mode="reg", nw=4, depth=7),
     "reg_w16_d7": dict(mode="reg", nw=16, depth=7),
     "reg_w4_str": dict(mode="reg", nw=4, depth=15, stride_rows=1024),
     "dma_w4_sh1": dict(mode="dma", nw=4, depth=15, share=1),
     "reg_w4_sh1": dict(mode="reg", nw=4, depth=15, share=1),
     "dma_w4_priv": dict(mode="dma", nw=4, depth=15, share=0),
     "reg_w4_priv": dict(mode="reg", nw=4, depth=15, share=0),
    }
    for k, c in cfgs.items():
        t = gen(**c)
        if c.get("nw") == 16:
            t = t.replace("next_free_vgpr 256", "next_free_vgpr 128").replace("accum_offset 256", "accum_offset 128")
        open(f"mb_{k}.s", "w").write(t)
    print(" ".join(f"mb_{k}.s" for k in cfgs))
```

```python
import re
import sys

TRANS = ("v_exp_f32", "v_log_f32", "v_rcp_f32", "v_rsq_f32", "v_sqrt_f32", "v_sin_f32", "v_cos_f32")


def regs(tok):
    tok = tok.strip().lstrip("-")
    tok = tok.replace("abs(", "").replace(")", "").strip("|")
    m = re.fullmatch(r"([vsa])(\d+)", tok)
    if m:
        return {(m.group(1), int(m.group(2)))}
    m = re.fullmatch(r"([vsa])\[(\d+):(\d+)\]", tok)
    if m:
        return {(m.group(1), i) for i in range(int(m.group(2)), int(m.group(3)) + 1)}
    if tok == "vcc":
        return {("s", "vcc")}
    if tok == "m0":
        return {("s", "m0")}
    if tok == "exec":
        return {("s", "exec")}
    return set()


class I:
    def __init__(self, line, no):
        self.line, self.no = line.strip(), no
        t = self.line.split(";")[0].strip()
        p = t.split(None, 1)
        self.mn = p[0]
        rest = p[1] if len(p) > 1 else ""
        self.ops = [o.strip() for o in re.split(r",(?![^\[]*\])", rest)] if rest else []
        if self.ops:
            last = self.ops[-1].split()
            self.mods = last[1:]
            self.ops[-1] = last[0] if last else ""
        else:
            self.mods = []
        mn, ops = self.mn, self.ops
        self.kind = "other"
        self.w, self.r = set(), set()
        self.slots = 1
        R = lambda k: set().union(*[regs(o) for o in k]) if k else set()
        if mn == "s_nop":
            self.slots = int(ops[0]) + 1
        if mn.startswith("v_mfma"):
            self.kind = "mfma"
            self.w = regs(ops[0])
            self.ab = R(ops[1:3])
            self.c = regs(ops[3])
            self.r = self.ab | self.c
            self.passes = 8 if "32x32" in mn else 4
        elif mn.startswith("v_permlane"):
            self.kind = "valu"
            self.w = R(ops[:2])
            self.r = R(ops[:2])
        elif mn.startswith("v_cmp"):
            self.kind = "valu"
            self.w = regs(ops[0])
            self.r = R(ops[1:])
        elif mn.startswith("v_"):
            self.kind = "valu"
            self.w = regs(ops[0])
            self.r = R(ops[1:])
            if mn.startswith(("v_fmac", "v_writelane")):
                self.r |= self.w
            if mn.startswith(("v_add_co", "v_addc_co")):
                self.w |= regs(ops[1])
        elif mn.startswith("ds_read"):
            self.kind = "ds"
            self.w = regs(ops[0])
            self.r = regs(ops[1])
        elif mn.startswith("ds_write"):
            self.kind = "ds"
            self.r = R(ops)
        elif mn.startswith("buffer_load"):
            self.kind = "vmem"
            if "lds" in self.mods:
                self.r = R(ops) | {("s", "m0")}
                self.dma = True
            else:
                self.w = regs(ops[0])
                self.r = R(ops[1:])
        elif mn.startswith("buffer_store"):
            self.kind = "vmem"
            self.r = R(ops)
            self.data = regs(ops[0])
        elif mn.startswith("global_load"):
            self.kind = "vmem"
            self.w = regs(ops[0])
            self.r = R(ops[1:])
        elif mn.startswith("global_store"):
            self.kind = "vmem"
            self.r = R(ops)
            self.data = regs(ops[1])
        elif mn.startswith("s_") and ops and not mn.startswith(("s_cmp", "s_cbranch", "s_branch", "s_waitcnt", "s_nop", "s_setprio", "s_sleep", "s_bitcmp")):
            self.kind = "salu"
            self.w = regs(ops[0])
            self.r = R(ops[1:])


def vg(x):
    return {r for r in x if r[0] in "va"}


def sg(x):
    return {r for r in x if r[0] == "s"}


def need(p, c):
    n = 0
    if p.kind == "valu":
        if c.kind == "mfma" and vg(p.w) & c.r:
            n = max(n, 2)
        if re.sub(r"_e(32|64)$", "", p.mn) in TRANS and c.kind == "valu" and re.sub(r"_e(32|64)$", "", c.mn) not in TRANS and vg(p.w) & c.r:
            n = max(n, 1)
        if c.mn.startswith("v_permlane") and vg(p.w) & c.r:
            n = max(n, 2)
        if c.mn.startswith(("v_readfirstlane", "v_readlane")) and vg(p.w) & c.r:
            n = max(n, 1)
        if sg(p.w) and c.kind == "valu" and sg(p.w) & c.r:
            n = max(n, 2)
        if sg(p.w) and c.kind == "vmem" and sg(p.w) & c.r:
            n = max(n, 5)
        if ("dpp" in c.line or "row_" in c.line) and vg(p.w) & c.r:
            n = max(n, 2)
    if p.kind == "mfma":
        big = {4: 8, 8: 12}[p.passes]
        if c.kind == "mfma":
            if p.w & c.ab:
                n = max(n, big)
            if p.w & c.c and p.w != c.c:
                n = max(n, {4: 6, 8: 10}[p.passes])
            if p.w & c.w and p.w != c.c:
                n = max(n, {4: 6, 8: 10}[p.passes])
        elif c.kind in ("valu", "ds", "vmem"):
            if p.w & (c.r | c.w):
                n = max(n, big)
            if c.kind == "valu" and p.c & c.w:
                n = max(n, {4: 3, 8: 7}[p.passes])
    if p.kind == "vmem" and hasattr(p, "data") and ("x4" in p.mn or "x3" in p.mn):
        if c.kind == "valu" and p.data & c.w:
            n = max(n, 2)
        elif p.data & c.w:
            n = max(n, 1)
    if p.kind == "salu" and ("s", "m0") in p.w and getattr(c, "dma", False):
        n = max(n, 1)
    return n


def check_seq(seq, problems):
    for j, c in enumerate(seq):
        dist = 0
        for i in range(j - 1, max(-1, j - 24), -1):
            p = seq[i]
            k = need(p, c)
            if k > dist:
                problems.add((p.no, c.no, k, dist, p.line, c.line))
            dist += p.slots
            if dist > 20:
                break


def check(text):
    ins, labels = [], {}
    for no, ln in enumerate(text.split("\n"), 1):
        t = ln.split(";")[0].strip()
        if not t or t.startswith("."):
            continue
        if t.endswith(":"):
            labels[t[:-1]] = len(ins)
            continue
        ins.append(I(t, no))
    problems = set()
    seg = []
    for x in ins:
        seg.append(x)
        if x.mn in ("s_endpgm", "s_branch"):
            check_seq(seg, problems)
            seg = []
    check_seq(seg, problems)
    for j, x in enumerate(ins):
        if x.mn.startswith(("s_cbranch", "s_branch")) and x.ops[0] in labels:
            i = labels[x.ops[0]]
            check_seq(ins[max(0, j - 24):j + 1] + ins[i:i + 24], problems)
    return sorted(problems)


if __name__ == "__main__":
    pr = check(open(sys.argv[1]).read())
    for p in pr:
        print(f"line {p[0]} -> {p[1]}: need {p[2]} have {p[3]}\n    {p[4]}\n    {p[5]}")
    print("hazards:", len(pr))
```

```python
import struct
import sys

from asmlib import Asm, v, s, kernel_header, kernel_desc, interleave
import hazard

KN = "standalone__gqa_block_cached__near_ridge_kernel"
OFF_O = 0
OFF_P = 16 << 20
OFF_F = 32 << 20
F1, F2, FX = 0, 65536, 131072
OFF_T = 64 << 20
SLOT = 36864
A_K = 3 * SLOT
A_V = 1 * SLOT
A_Q = 2 * SLOT
A_P = 0
A_M = 163840 - 768
WO0, WOS = 2 * SLOT, 20480
OS = 12288
CEXP = 0.07216878364870322 * 1.4426950408889634
TAGC = (0x9E3779B9, 0x7F4A7C15)
SPIN_MAX = 1 << 21


def f32bits(x):
    return struct.unpack("<I", struct.pack("<f", x))[0]


class Cfg:
    diag = 0
    prio = 0
    rot = 3
    kpos = 8
    ntx = 0
    ra4 = 1
    touch = 1
    nttouch = 1
    ntwo = 1
    osc1 = 1
    stsc1 = 1


S_X, S_K, S_V, S_WQ, S_WO, S_OUT, S_DBG, S_WS = 32, 34, 36, 38, 40, 42, 44, 46
S_B, S_H, S_WAVE, S_G8, S_HH = 28, 29, 30, 31, 48
S_TAG = 60
R_F = 24
S_T = 64


class Stamps:
    def __init__(self, a, cfg):
        self.a, self.on, self.n = a, cfg.diag, 0
        self.fine = cfg.diag > 1
        self.names = []

    def real(self, name):
        if self.on:
            self.a(f"s_memrealtime {s(S_T + 2 * self.n, 2)}")
            self.names.append(name)
            self.n += 1

    def cyc(self, name, fine=False):
        if self.on and (not fine or self.fine):
            self.a(f"s_memtime {s(S_T + 2 * self.n, 2)}")
            self.names.append(name)
            self.n += 1

    def flush(self, role, vt=4):
        if not self.on:
            return
        a = self.a
        assert self.n <= 19, self.n
        a("s_waitcnt lgkmcnt(0) vmcnt(0)")
        a(f"; STAMPS {role} " + " ".join(self.names))
        a("s_lshl_b32 s3, s2, 3")
        a(f"s_add_u32 s3, s3, {s(S_WAVE)}")
        a("s_lshl_b32 s3, s3, 8")
        a(f"s_add_u32 s3, s3, {OFF_T}")
        a(f"s_add_u32 s4, {s(S_WS)}, s3")
        a(f"s_addc_u32 s5, {s(S_WS + 1)}, 0")
        a("s_mov_b64 exec, 1")
        a(f"v_mov_b32 {v(vt + 2)}, 0")
        for i in range(self.n):
            a(f"v_mov_b32 {v(vt)}, {s(S_T + 2 * i)}")
            a(f"v_mov_b32 {v(vt + 1)}, {s(S_T + 2 * i + 1)}")
            a(f"global_store_dwordx2 {v(vt + 2)}, {v(vt, 2)}, s[4:5] offset:{8 * i}")
            a("s_nop 1")
        a("s_waitcnt vmcnt(0)")


def srd(a, d, base, off_sgpr, size):
    if off_sgpr is None:
        a(f"s_mov_b32 {s(d)}, {s(base)}")
        a(f"s_mov_b32 {s(d + 1)}, {s(base + 1)}")
    else:
        a(f"s_add_u32 {s(d)}, {s(base)}, {off_sgpr}")
        a(f"s_addc_u32 {s(d + 1)}, {s(base + 1)}, 0")
    a(f"s_mov_b32 {s(d + 2)}, {size}")
    a(f"s_mov_b32 {s(d + 3)}, 0x20000")


def dma(a, voff, srd_, soff, base, imm, fl=""):
    a(f"s_add_u32 m0, {base}, {imm}")
    a("s_nop 0")
    a(f"buffer_load_dwordx4 {v(voff)}, {s(srd_, 4)}, {soff} offen {fl} lds")


def mfma(d, a_, b_, c=None):
    cs = v(d, 4) if c is None else str(c)
    return f"v_mfma_f32_16x16x32_bf16 {v(d, 4)}, {v(a_, 4)}, {v(b_, 4)}, {cs}"


def trread(d, addr, off):
    assert 0 <= off < 65536
    return f"ds_read_b64_tr_b16 {v(d, 2)}, {v(addr)} offset:{off}"


def rd128(d, addr, off):
    assert 0 <= off < 65536
    return f"ds_read_b128 {v(d, 4)}, {v(addr)} offset:{off}"


def rd64(d, addr, off):
    assert 0 <= off < 65536
    return f"ds_read_b64 {v(d, 2)}, {v(addr)} offset:{off}"


def cvt(d, t):
    return f"v_cvt_pk_bf16_f32 {v(d)}, {v(t)}, {v(t + 1)}"


def emit(a, lst):
    for x in lst:
        a(x)


def place(main, slots):
    out = list(slots.get(-1, []))
    for i, m in enumerate(main):
        out.append(m)
        out.extend(slots.get(i, []))
    return out


def spread(fill, start, per=1, step=1, into=None):
    d = into if into is not None else {}
    i = start
    k = 0
    while k < len(fill):
        d.setdefault(i, []).extend(fill[k:k + per])
        k += per
        i += step
    return d


def epoch_load(a):
    a(f"s_lshl_b32 s3, {s(S_B)}, 7")
    a(f"s_add_u32 s3, s3, {OFF_F + FX}")
    a(f"s_add_u32 s4, {s(S_WS)}, s3")
    a(f"s_addc_u32 s5, {s(S_WS + 1)}, 0")
    a(f"s_load_dwordx2 {s(S_TAG, 2)}, s[4:5], 0")


def epoch_tag(a):
    a(f"s_add_u32 {s(S_TAG)}, {s(S_TAG)}, {TAGC[0]:#x}")
    a(f"s_addc_u32 {s(S_TAG + 1)}, {s(S_TAG + 1)}, {TAGC[1]:#x}")


def poll(a, name, vaddr, vtmp, vtag):
    a(f"s_mov_b32 s3, {SPIN_MAX}")
    a.label(name)
    a(f"buffer_load_dwordx2 {v(vtmp, 2)}, {v(vaddr)}, {s(R_F, 4)}, 0 offen sc1")
    a("s_sub_u32 s3, s3, 1")
    a("s_cmp_eq_u32 s3, 0")
    a(f"s_cbranch_scc1 {name}_out")
    a("s_waitcnt vmcnt(0)")
    a(f"v_cmp_ne_u64 vcc, {v(vtmp, 2)}, {v(vtag, 2)}")
    a("s_nop 1")
    a(f"s_cbranch_vccnz {name}")
    a.label(name + "_out")
    a("s_waitcnt vmcnt(0)")


def gen_compute(a, cfg):
    st = Stamps(a, cfg)
    st.n = 2
    st.names = ["real0", "cyc0"]
    R_O, R_P = 8, 12
    ACC, FR, QP, LS, ONES = 16, 88, 160, 196, 208
    AX, AY, AZ, AVo, AVp = 212, 216, 218, 230, 234
    AQW, AQR, AMW, AMR, APW, APR, APW2, APR2, AO, AOW = range(238, 248)
    AW, AB, AP, AP2, AFL, TG = 248, 250, 251, 252, 253, 254
    VM, VG, VF, T0, T1, T2 = 1, 2, 3, 4, 5, 6
    MX = 8
    S_I, S_J, S_C, S_D, S_CNT, S_SL, S_D2, S_SL2 = 50, 51, 52, 53, 54, 55, 56, 57
    S_K0, S_K1, S_K2, S_K3 = 58, 59, 62, 63

    if cfg.prio:
        a(f"s_setprio {cfg.prio}")
    epoch_load(a)
    a(f"s_lshl_b32 s3, {s(S_B)}, 5")
    a(f"s_add_u32 s3, s3, {s(S_H)}")
    a("s_mul_i32 s3, s3, 36864")
    srd(a, R_O, S_WS, "s3", 36864)
    a(f"s_lshl_b32 s3, {s(S_B)}, 2")
    a(f"s_add_u32 s3, s3, {s(S_HH)}")
    a("s_lshl_b32 s3, s3, 3")
    a(f"s_add_u32 s3, s3, {s(S_G8)}")
    a("s_mul_i32 s3, s3, 30720")
    a(f"s_add_u32 s3, s3, {OFF_P}")
    srd(a, R_P, S_WS, "s3", 30720)
    a(f"s_mov_b32 s3, {OFF_F}")
    srd(a, R_F, S_WS, "s3", 262144)
    a(f"s_lshr_b32 {s(S_I)}, {s(S_WAVE)}, 1")
    a(f"s_and_b32 {s(S_J)}, {s(S_WAVE)}, 1")
    a(f"s_mov_b32 {s(S_C)}, {f32bits(CEXP):#x}")
    a(f"v_and_b32 {v(VM)}, 15, v0")
    a(f"v_lshrrev_b32 {v(VG)}, 4, v0")
    a(f"v_lshrrev_b32 {v(T0)}, 2, {v(VM)}")
    a(f"v_lshl_add_u32 {v(T1)}, {v(VG)}, 3, {v(T0)}")
    a(f"v_mul_u32_u24 {v(T1)}, 384, {v(T1)}")
    a(f"v_and_b32 {v(T2)}, 3, {v(VM)}")
    a(f"v_lshl_add_u32 {v(T1)}, {v(T2)}, 3, {v(T1)}")
    a(f"v_and_b32 {v(T2)}, 1, {v(VG)}")
    a(f"v_lshrrev_b32 {v(VF)}, 3, {v(VM)}")
    a(f"v_lshl_or_b32 {v(VF)}, {v(T2)}, 1, {v(VF)}")
    a(f"s_mul_i32 s3, {s(S_I)}, 6")
    for c in range(4):
        a(f"s_add_u32 s4, s3, {c}")
        a("s_and_b32 s5, s4, 3")
        a("s_lshr_b32 s4, s4, 2")
        a("s_lshl_b32 s4, s4, 7")
        a(f"v_xor_b32 {v(T2)}, s5, {v(VF)}")
        a(f"v_lshl_add_u32 {v(T2)}, {v(T2)}, 5, {v(T1)}")
        a(f"v_add_u32 {v(AX + c)}, s4, {v(T2)}")
    a(f"s_mul_i32 s4, {s(S_J)}, 48")
    a(f"v_add_u32 {v(T1)}, s4, {v(VM)}")
    a(f"v_lshlrev_b32 {v(T1)}, 7, {v(T1)}")
    a(f"v_add_u32 {v(T1)}, 24576, {v(T1)}")
    a(f"v_lshrrev_b32 {v(VF)}, 1, {v(VM)}")
    for ks in range(2):
        a(f"v_add_u32 {v(T2)}, {4 * ks}, {v(VG)}")
        a(f"v_xor_b32 {v(T2)}, {v(T2)}, {v(VF)}")
        a(f"v_lshl_add_u32 {v(AY + ks)}, {v(T2)}, 4, {v(T1)}")
    for i in range(72):
        a(f"v_mov_b32 {v(ACC + i)}, 0")
    a(f"s_mul_i32 s4, {s(S_I)}, 48")
    a(f"v_add_u32 {v(T1)}, s4, {v(VM)}")
    a(f"v_mul_u32_u24 {v(T1)}, 384, {v(T1)}")
    a(f"v_and_b32 {v(T2)}, 1, {v(VG)}")
    a(f"v_lshl_add_u32 {v(T1)}, {v(T2)}, 3, {v(T1)}")
    a(f"v_add_u32 {v(T1)}, {A_K}, {v(T1)}")
    a(f"v_lshrrev_b32 {v(T0)}, 1, {v(VG)}")
    a(f"s_mul_i32 s7, {s(S_I)}, 3")
    for ls in range(6):
        a(f"s_add_u32 s4, s7, {ls}")
        a("s_sub_u32 s5, s4, 6")
        a("s_cmp_ge_u32 s4, 6")
        a("s_cselect_b32 s4, s5, s4")
        a("s_and_b32 s5, s4, 1")
        a("s_lshl_b32 s5, s5, 2")
        a("s_lshr_b32 s4, s4, 1")
        a("s_lshl_b32 s4, s4, 7")
        for hh in range(2):
            a(f"s_add_u32 s6, s5, {2 * hh}")
            a(f"v_or_b32 {v(T2)}, s6, {v(T0)}")
            a(f"v_xor_b32 {v(T2)}, {v(T2)}, {v(VF)}")
            a(f"v_lshl_add_u32 {v(T2)}, {v(T2)}, 4, {v(T1)}")
            a(f"v_add_u32 {v(AZ + 2 * ls + hh)}, s4, {v(T2)}")
    a(f"v_lshrrev_b32 {v(T0)}, 2, {v(VM)}")
    a(f"v_lshl_add_u32 {v(T0)}, {v(VG)}, 2, {v(T0)}")
    a(f"v_lshrrev_b32 {v(VF)}, 1, {v(T0)}")
    a(f"v_and_b32 {v(VF)}, 3, {v(VF)}")
    a(f"v_mul_u32_u24 {v(T1)}, 384, {v(T0)}")
    a(f"v_and_b32 {v(T2)}, 3, {v(VM)}")
    a(f"v_lshl_add_u32 {v(T1)}, {v(T2)}, 3, {v(T1)}")
    a(f"s_mul_i32 s6, {s(S_I)}, 18432")
    a(f"s_add_u32 s7, s6, {A_V}")
    a(f"s_sub_u32 s6, {A_V + 18432}, s6")
    a(f"s_mul_i32 s3, {s(S_I)}, 6")
    for c in range(4):
        a(f"s_add_u32 s4, s3, {c}")
        a("s_and_b32 s5, s4, 3")
        a("s_lshr_b32 s4, s4, 2")
        a("s_lshl_b32 s4, s4, 7")
        a(f"v_xor_b32 {v(T2)}, s5, {v(VF)}")
        a(f"v_lshl_add_u32 {v(T2)}, {v(T2)}, 5, {v(T1)}")
        a(f"v_add_u32 {v(T2)}, s4, {v(T2)}")
        a(f"v_add_u32 {v(AVo + c)}, s7, {v(T2)}")
        a(f"v_add_u32 {v(AVp + c)}, s6, {v(T2)}")
    a(f"v_mul_u32_u24 {v(T0)}, 320, {v(T0)}")
    a(f"v_and_b32 {v(T1)}, 3, {v(VM)}")
    a(f"v_lshl_add_u32 {v(T0)}, {v(T1)}, 3, {v(T0)}")
    a(f"v_add_u32 {v(T0)}, {WO0}, {v(T0)}")
    a(f"v_and_b32 {v(T1)}, 1, {v(VG)}")
    a(f"s_mul_i32 s3, {s(S_I)}, 5")
    for par in range(2):
        a(f"s_add_u32 s4, s3, {par}")
        a(f"v_xor_b32 {v(T2)}, s4, {v(T1)}")
        a(f"v_lshl_add_u32 {v(AW + par)}, {v(T2)}, 5, {v(T0)}")
    a(f"s_xor_b32 s5, {s(S_WAVE)}, 2")
    a(f"v_lshlrev_b32 {v(T1)}, 4, v0")
    a(f"s_mul_i32 s3, {s(S_WAVE)}, 9216")
    a(f"s_add_u32 s3, s3, {A_Q}")
    a(f"v_add_u32 {v(AQW)}, s3, {v(T1)}")
    a(f"s_mul_i32 s3, s5, 9216")
    a(f"s_add_u32 s3, s3, {A_Q}")
    a(f"v_add_u32 {v(AQR)}, s3, {v(T1)}")
    a(f"s_mul_i32 s3, {s(S_WAVE)}, 4608")
    a(f"v_add_u32 {v(APW)}, s3, {v(T1)}")
    a(f"v_lshl_add_u32 {v(APW2)}, v0, 3, s3")
    a(f"s_mul_i32 s3, s5, 4608")
    a(f"v_add_u32 {v(APR)}, s3, {v(T1)}")
    a(f"v_lshl_add_u32 {v(APR2)}, v0, 3, s3")
    a(f"s_mul_i32 s3, {s(S_WAVE)}, 192")
    a(f"s_add_u32 s3, s3, {A_M}")
    a(f"v_lshl_add_u32 {v(AMW)}, {v(VM)}, 2, s3")
    a(f"s_mul_i32 s3, s5, 192")
    a(f"s_add_u32 s3, s3, {A_M}")
    a(f"v_lshl_add_u32 {v(AMR)}, {v(VM)}, 2, s3")
    a(f"s_mul_i32 s3, {s(S_I)}, 18")
    a(f"s_mul_i32 s4, {s(S_J)}, 3")
    a("s_add_u32 s3, s3, s4")
    a("s_lshl_b32 s3, s3, 10")
    a(f"v_add_u32 {v(AO)}, s3, {v(T1)}")
    a(f"s_mul_i32 s3, {s(S_J)}, 3072")
    a(f"v_add_u32 {v(AB)}, s3, {v(T1)}")
    a(f"s_mul_i32 s3, {s(S_WAVE)}, 7680")
    a(f"v_add_u32 {v(AP)}, s3, {v(T1)}")
    a("s_add_u32 s3, s3, 7168")
    a(f"v_lshl_add_u32 {v(AP2)}, v0, 3, s3")
    a(f"s_lshl_b32 s3, {s(S_B)}, 3")
    a(f"s_add_u32 s3, s3, {s(S_G8)}")
    a("s_lshl_b32 s3, s3, 4")
    a(f"s_lshl_b32 s4, {s(S_HH)}, 2")
    a("s_add_u32 s3, s3, s4")
    a(f"s_add_u32 s3, s3, {s(S_WAVE)}")
    a(f"s_lshl_b32 {s(S_K2)}, s3, 3")
    a(f"s_lshl_b32 s3, {s(S_B)}, 2")
    a(f"s_add_u32 s3, s3, {s(S_HH)}")
    a("s_lshl_b32 s3, s3, 2")
    a(f"s_add_u32 s3, s3, {s(S_WAVE)}")
    a("s_lshl_b32 s3, s3, 4")
    a(f"s_add_u32 s3, s3, {s(S_G8)}")
    a("s_lshl_b32 s3, s3, 3")
    a(f"s_add_u32 {s(S_K3)}, s3, {F2}")
    a(f"v_mov_b32 {v(AFL)}, 0")
    for i in range(4):
        a(f"v_mov_b32 {v(ONES + i)}, 0x3f803f80")
    a("s_waitcnt lgkmcnt(0)")
    epoch_tag(a)
    a(f"v_mov_b32 {v(TG)}, {s(S_TAG)}")
    a(f"v_mov_b32 {v(TG + 1)}, {s(S_TAG + 1)}")

    def fa(n, dt):
        return FR + 36 * n + 4 * dt

    def fb(n, qt):
        return FR + 36 * n + 24 + 4 * qt

    def p1_reads(n, ks):
        def A(dt):
            return [trread(fa(n, dt) + 2 * hh, AX + dt % 4, 384 * (32 * ks + 4 * hh) + 128 * (dt // 4)) for hh in range(2)]

        def B(qt):
            return [rd128(fb(n, qt), AY + ks, 2048 * qt)]
        r = B(0) + A(0) + B(1) + B(2)
        for dt in range(1, 6):
            r += A(dt)
        return r

    def qtile(dt, qt):
        return ACC + 4 * (3 * dt + qt)

    def p1_mfmas(n):
        return [mfma(qtile(dt, qt), fa(n, dt), fb(n, qt)) for dt in range(6) for qt in range(3)]

    adv = [f"v_add_u32 {v(AX + c)}, {s(S_D)}, {v(AX + c)}" for c in range(4)] + \
          [f"v_add_u32 {v(AY + c)}, {s(S_D)}, {v(AY + c)}" for c in range(2)]
    a(f"s_mov_b32 {s(S_SL)}, 0")
    a(f"s_mov_b32 {s(S_CNT)}, 0")
    a(f"s_mov_b32 {s(S_K0)}, {(-2 * SLOT) & 0xffffffff:#x}")
    a(f"s_mov_b32 {s(S_K1)}, {SLOT}")
    st.cyc("setup")
    a("s_barrier")
    st.cyc("b0")
    emit(a, p1_reads(0, 0))
    a("s_waitcnt lgkmcnt(0)")
    a.label("L_p1")
    sl = spread(p1_reads(1, 1), 0, 1)
    sl.setdefault(0, []).append(f"s_add_u32 {s(S_SL)}, {s(S_SL)}, 1")
    sl.setdefault(1, []).append(f"s_cmp_eq_u32 {s(S_SL)}, 3")
    sl.setdefault(2, []).append(f"s_cselect_b32 {s(S_D)}, {s(S_K0)}, {s(S_K1)}")
    sl.setdefault(3, []).append(f"s_cselect_b32 {s(S_SL)}, 0, {s(S_SL)}")
    spread(adv, 15, 2, into=sl)
    emit(a, place(p1_mfmas(0), sl))
    a("s_waitcnt lgkmcnt(0)")
    a("s_barrier")
    sl = spread(p1_reads(0, 0), 0, 1)
    sl.setdefault(15, []).append(f"s_add_u32 {s(S_CNT)}, {s(S_CNT)}, 1")
    sl.setdefault(16, []).append(f"s_cmp_lt_u32 {s(S_CNT)}, 9")
    emit(a, place(p1_mfmas(1), sl))
    a("s_waitcnt lgkmcnt(0)")
    a("s_cbranch_scc1 L_p1")
    emit(a, place(p1_mfmas(0), spread(p1_reads(1, 1), 0, 1)))
    a("s_waitcnt lgkmcnt(0)")
    a("s_barrier")
    st.cyc("b10")

    def kf(buf, a_):
        return FR + 12 * buf + 4 * a_

    def k_reads(ls, buf):
        return [rd64(kf(buf, a_) + 2 * hh, AZ + 2 * ls + hh, 6144 * a_) for a_ in range(3) for hh in range(2)]

    def qpack(ls):
        r = []
        for dt in (2 * ls, 2 * ls + 1):
            for qt in range(3):
                d = QP + 4 * (3 * ls + qt) + 2 * (dt % 2)
                r += [cvt(d, qtile(dt, qt)), cvt(d + 1, qtile(dt, qt) + 2)]
        return r

    def qwrite(f):
        return f"ds_write_b128 {v(AQW)}, {v(QP + 4 * f, 4)} offset:{1024 * f}"
    SA = ACC

    def stile(a_, qt):
        return SA + 4 * (3 * a_ + qt)

    def s_mfmas(qbase, ls3, buf, first=False, qmajor=False):
        idx = [(a_, qt) for qt in range(3) for a_ in range(3)] if qmajor else [(a_, qt) for a_ in range(3) for qt in range(3)]
        return [mfma(stile(a_, qt), kf(buf, a_), qbase + 4 * (3 * ls3 + qt), 0 if first else None) for a_, qt in idx]

    sl = spread(k_reads(0, 0) + k_reads(1, 1) + k_reads(2, 2), 0, 1)
    spread(qpack(0), 10, 2, step=1, into=sl)
    emit(a, place(p1_mfmas(1), sl))
    emit(a, [qwrite(0)] + qpack(1)[:6] + [qwrite(1)] + qpack(1)[6:] + [qwrite(2)])
    a("s_waitcnt lgkmcnt(3)")
    sl = {}
    spread(qpack(2), 0, 2, into=sl)
    sl.setdefault(1, []).append(qwrite(3))
    sl.setdefault(4, []).append(qwrite(4))
    sl.setdefault(7, []).append(qwrite(5))
    sl.setdefault(10, []).append(qwrite(6))
    sl.setdefault(13, []).append(qwrite(7))
    sl.setdefault(16, []).append(qwrite(8))
    emit(a, place(s_mfmas(QP, 0, 0, True) + s_mfmas(QP, 1, 1), sl))
    st.cyc("qx", True)
    a("s_waitcnt lgkmcnt(0)")
    a("s_barrier")
    st.cyc("b11")
    QR = FR + 36
    rds = [rd128(QR + 4 * f, AQR, 1024 * f) for f in range(9)]
    emit(a, place(s_mfmas(QP, 2, 2), spread(rds[:3] + k_reads(3, 0), 0, 2, into=None)))
    a("s_waitcnt lgkmcnt(0)")
    emit(a, place(s_mfmas(QR, 0, 0), spread(rds[3:6] + k_reads(4, 1), 0, 1)))
    a("s_waitcnt lgkmcnt(0)")
    emit(a, place(s_mfmas(QR, 1, 1), spread(rds[6:9] + k_reads(5, 2), 0, 1)))
    a("s_waitcnt lgkmcnt(0)")

    def xs(qt):
        return [stile(a_, qt) + r for a_ in range(3) for r in range(4)]

    def maxchain(qt):
        x = xs(qt)
        r = [f"v_max3_f32 {v(MX + qt)}, {v(x[0])}, {v(x[1])}, {v(x[2])}"]
        for k in range(3, 11, 2):
            r.append(f"v_max3_f32 {v(MX + qt)}, {v(MX + qt)}, {v(x[k])}, {v(x[k + 1])}")
        r.append(f"v_max_f32 {v(MX + qt)}, {v(MX + qt)}, {v(x[11])}")
        return r
    emit(a, s_mfmas(QR, 2, 2, qmajor=True))
    st.cyc("sdone", True)
    a("s_nop 1")
    emit(a, maxchain(0) + maxchain(1) + maxchain(2))
    for op in ("v_permlane16_swap_b32", "v_permlane32_swap_b32"):
        for qt in range(3):
            a(f"v_mov_b32 {v(MX + 3 + qt)}, {v(MX + qt)}")
        for qt in range(3):
            a(f"{op} {v(MX + 3 + qt)}, {v(MX + qt)}")
        for qt in range(3):
            a(f"v_max_f32 {v(MX + qt)}, {v(MX + qt)}, {v(MX + 3 + qt)}")
    for qt in range(3):
        a(f"ds_write_b32 {v(AMW)}, {v(MX + qt)} offset:{64 * qt}")
    a("s_waitcnt lgkmcnt(0)")
    a("s_barrier")
    st.cyc("b12")

    VB0, VB1 = QP, FR + 36
    PP, PC = FR, FR + 24

    def v_reads(step, buf):
        r = []
        for dt in range(6):
            for hh in range(2):
                if step == 0:
                    ad, tile = AVo, hh
                elif step == 1:
                    ad, tile = (AVo, 2) if hh == 0 else (AVp, 2)
                else:
                    ad, tile = AVp, hh
                r.append(trread(buf + 4 * dt + 2 * hh, ad + dt % 4, 6144 * tile + 128 * (dt // 4)))
        return r
    for qt in range(3):
        a(f"ds_read_b32 {v(MX + 3 + qt)}, {v(AMR)} offset:{64 * qt}")
    emit(a, v_reads(0, VB0))
    a("s_waitcnt lgkmcnt(12)" if not st.on else "s_waitcnt lgkmcnt(0)")
    for qt in range(3):
        a(f"v_max_f32 {v(MX + qt)}, {v(MX + qt)}, {v(MX + 3 + qt)}")
    for qt in range(3):
        a(f"v_mul_f32 {v(MX + qt)}, {s(S_C)}, {v(MX + qt)}")

    def softmax(qt):
        x = xs(qt)
        f = [f"v_fma_f32 {v(y)}, {v(y)}, {s(S_C)}, -{v(MX + qt)}" for y in x]
        e = [f"v_exp_f32 {v(y)}, {v(y)}" for y in x]
        r = f[:2]
        for k in range(12):
            r.append(e[k])
            if k + 2 < 12:
                r.append(f[k + 2])
        c = [cvt(PP + 8 * qt + k, x[2 * k]) for k in range(6)]
        return r + c

    def pwrite(qt):
        return [f"ds_write_b128 {v(APW)}, {v(PP + 8 * qt, 4)} offset:{1536 * qt}",
                f"ds_write_b64 {v(APW2)}, {v(PP + 8 * qt + 4, 2)} offset:{1536 * qt + 1024}"]
    OT = {}
    free = [ACC + 36 + 4 * k for k in range(9)]
    for qt in range(3):
        own = [stile(a_, qt) for a_ in range(3)]
        regs = free[3 * qt:3 * qt + 3] + own
        for dt in range(6):
            OT[(dt, qt)] = regs[dt]

    def pv(vbuf, pfr, qt, first=False, sum_first=False):
        r = [mfma(OT[(dt, qt)], vbuf + 4 * dt, pfr(qt), 0 if first else None) for dt in range(6)]
        sm = [mfma(LS + 4 * qt, ONES, pfr(qt), 0 if first else None)]
        return sm + r if sum_first else r + sm
    fA = lambda qt: PP + 8 * qt
    fB = lambda qt: PP + 8 * qt + 4
    fC = lambda qt: PC + 4 * qt
    emit(a, softmax(0))
    emit(a, pwrite(0))
    a("s_waitcnt lgkmcnt(2)")
    for qt in (1, 2):
        sm = softmax(qt)
        mm = pv(VB0, fA, qt - 1, True)
        out = []
        per = 4
        for k, m in enumerate(mm):
            out += sm[per * k:per * k + per]
            out.append(m)
        out += sm[per * len(mm):]
        emit(a, out)
        emit(a, pwrite(qt))
    st.cyc("exp", True)
    a("s_waitcnt lgkmcnt(0)")
    a("s_barrier")
    st.cyc("b13")
    prd = [rd64(PP + 8 * qt + 6, APR2, 1536 * qt + 1024) for qt in range(3)]
    prc = [rd128(PC + 4 * qt, APR, 1536 * qt) for qt in range(3)]
    emit(a, place(pv(VB0, fA, 2, True), spread(prd + v_reads(1, VB1), -1, 2)))
    a("s_waitcnt lgkmcnt(0)")
    mB = pv(VB1, fB, 0) + pv(VB1, fB, 1) + pv(VB1, fB, 2)
    emit(a, place(mB, spread(prc + v_reads(2, VB0), 0, 1)))
    a("s_waitcnt lgkmcnt(0)")
    a("s_barrier")
    st.cyc("b14", True)
    OP = FR + 36

    def finish(qt):
        r = [f"v_rcp_f32 {v(MX + 2 * qt)}, {v(LS + 4 * qt)}", "s_nop 0"]
        r.append(f"v_mov_b32 {v(MX + 2 * qt + 1)}, {v(MX + 2 * qt)}")
        for ls in range(3):
            d = OP + 4 * (3 * ls + qt)
            for half in range(2):
                t = OT[(2 * ls + half, qt)]
                r.append(f"v_pk_mul_f32 {v(t, 2)}, {v(t, 2)}, {v(MX + 2 * qt, 2)}")
                r.append(f"v_pk_mul_f32 {v(t + 2, 2)}, {v(t + 2, 2)}, {v(MX + 2 * qt, 2)}")
            for half in range(2):
                t = OT[(2 * ls + half, qt)]
                r += [cvt(d + 2 * half, t), cvt(d + 2 * half + 1, t + 2)]
            off = (ls * 6 + qt) * 1024
            r.append(f"s_mov_b32 s3, {off}")
            r.append(f"buffer_store_dwordx4 {v(d, 4)}, {v(AO)}, {s(R_O, 4)}, s3 offen {'sc1' if cfg.stsc1 else ''}")
            r.append(f"ds_write_b128 {v(AO)}, {v(d, 4)} offset:{off}")
        return r
    emit(a, pv(VB0, fC, 0, sum_first=True))
    m1 = pv(VB0, fC, 1, sum_first=True)
    emit(a, m1)
    m2 = pv(VB0, fC, 2, sum_first=True)
    f0 = finish(0)
    out = []
    for k, m in enumerate(m2):
        out.append(m)
        out += f0[2 * k:2 * k + 2]
    out += f0[2 * len(m2):]
    emit(a, out)
    emit(a, finish(1) + finish(2))
    st.cyc("ostore")
    a("s_waitcnt lgkmcnt(0)")
    a("s_barrier")
    a("s_waitcnt vmcnt(0)")
    a("s_mov_b64 exec, 1")
    a(f"buffer_store_dwordx2 {v(TG, 2)}, {v(AFL)}, {s(R_F, 4)}, {s(S_K2)} offen sc1")
    a("s_mov_b64 exec, -1")
    st.cyc("flag1")

    A4 = ACC

    def ga(n, tt):
        return FR + 32 * n + 4 * tt

    def gb(n, qt):
        return FR + 32 * n + 20 + 4 * qt

    def p4_reads(n, ks):
        def A(tt):
            return [trread(ga(n, tt) + 2 * hh, AW + tt % 2, 320 * (32 * ks + 16 * hh) + 64 * (tt // 2)) for hh in range(2)]

        def B(qt):
            return [rd128(gb(n, qt), AB, 6144 * ks + 1024 * qt)]
        r = B(0) + A(0) + B(1) + B(2)
        for tt in range(1, 5):
            r += A(tt)
        return r

    def p4_mfmas(n, first=False):
        return [mfma(A4 + 4 * (3 * tt + qt), ga(n, tt), gb(n, qt), 0 if first else None) for tt in range(5) for qt in range(3)]
    adv4 = [f"v_add_u32 {v(AW + c)}, {s(S_D)}, {v(AW + c)}" for c in range(2)] + [f"v_add_u32 {v(AB)}, {s(S_D2)}, {v(AB)}"]
    a(f"s_mov_b32 {s(S_K0)}, {(-3 * WOS) & 0xffffffff:#x}")
    a(f"s_mov_b32 {s(S_K1)}, {WOS}")
    a(f"s_mov_b32 s6, {(-5 * OS) & 0xffffffff:#x}")
    a(f"s_mov_b32 s7, {OS}")
    a(f"s_mov_b32 {s(S_SL)}, 0")
    a(f"s_mov_b32 {s(S_SL2)}, 0")
    a(f"s_mov_b32 {s(S_CNT)}, 0")
    a("s_barrier")
    st.cyc("B0")
    emit(a, p4_reads(0, 0))
    a("s_waitcnt lgkmcnt(0)")

    def p4_stage(first):
        sl = spread(p4_reads(1, 1), 0, 1)
        sc = [f"s_add_u32 {s(S_SL)}, {s(S_SL)}, 1", f"s_cmp_eq_u32 {s(S_SL)}, 4",
              f"s_cselect_b32 {s(S_D)}, {s(S_K0)}, {s(S_K1)}", f"s_cselect_b32 {s(S_SL)}, 0, {s(S_SL)}",
              f"s_add_u32 {s(S_SL2)}, {s(S_SL2)}, 1", f"s_cmp_eq_u32 {s(S_SL2)}, 6",
              f"s_cselect_b32 {s(S_D2)}, s6, s7", f"s_cselect_b32 {s(S_SL2)}, 0, {s(S_SL2)}"]
        spread(sc, 0, 1, into=sl)
        spread(adv4, 13, 2, into=sl)
        emit(a, place(p4_mfmas(0, first), sl))
        a("s_waitcnt lgkmcnt(0)")
        a("s_barrier")
        sl = spread(p4_reads(0, 0), 0, 1)
        if not first:
            sl.setdefault(12, []).append(f"s_add_u32 {s(S_CNT)}, {s(S_CNT)}, 1")
            sl.setdefault(13, []).append(f"s_cmp_lt_u32 {s(S_CNT)}, 10")
        emit(a, place(p4_mfmas(1), sl))
        a("s_waitcnt lgkmcnt(0)")
    p4_stage(True)
    a.label("L_p4")
    p4_stage(False)
    a("s_cbranch_scc1 L_p4")
    st.cyc("p4loop")
    emit(a, place(p4_mfmas(0), spread(p4_reads(1, 1), 0, 1)))
    a("s_waitcnt lgkmcnt(0)")
    PK = QP

    def tile(tt, qt):
        return A4 + 4 * (3 * tt + qt)
    order = [(2 * qt, (0, qt), (1, qt)) for qt in range(3)] + [(2 * qt + 1, (2, qt), (3, qt)) for qt in range(3)] + [(6, (4, 0), (4, 1))]
    ep = []
    for n, (bi, t0, t1) in enumerate(order):
        d = PK + 4 * n
        ep.append([cvt(d, tile(*t0)), cvt(d + 1, tile(*t0) + 2), cvt(d + 2, tile(*t1)), cvt(d + 3, tile(*t1) + 2),
                   f"s_mov_b32 s3, {1024 * bi}",
                   f"buffer_store_dwordx4 {v(d, 4)}, {v(AP)}, {s(R_P, 4)}, s3 offen sc1"])
    ep.append([cvt(PK + 28, tile(4, 2)), cvt(PK + 29, tile(4, 2) + 2),
               f"buffer_store_dwordx2 {v(PK + 28, 2)}, {v(AP2)}, {s(R_P, 4)}, 0 offen sc1"])
    flat = sum(ep, [])
    mm = p4_mfmas(1)
    sl = spread(flat[:6], 10, 2)
    emit(a, place(mm, sl))
    emit(a, flat[6:])
    st.cyc("pstore")
    a("s_waitcnt vmcnt(0)")
    a("s_mov_b64 exec, 1")
    a(f"buffer_store_dwordx2 {v(TG, 2)}, {v(AFL)}, {s(R_F, 4)}, {s(S_K3)} offen sc1")
    st.cyc("flag2")
    st.real("real1")
    st.flush("C")
    a("s_endpgm")


def reduce_addr(a, tid, vtmp, A0, A1, s_g8):
    SG, W, C, X, Y, OFFS = vtmp, vtmp + 1, vtmp + 2, vtmp + 3, vtmp + 4, vtmp + 5
    a(f"s_mul_i32 s3, {s_g8}, 240")
    a(f"v_add_u32 {v(SG)}, s3, {v(tid)}")
    a(f"v_lshlrev_b32 {v(OFFS)}, 4, {v(SG)}")
    a(f"v_mul_u32_u24 {v(W)}, 2185, {v(SG)}")
    a(f"v_lshrrev_b32 {v(W)}, 20, {v(W)}")
    a(f"v_mul_u32_u24 {v(X)}, 480, {v(W)}")
    a(f"v_sub_u32 {v(C)}, {v(SG)}, {v(X)}")
    a(f"v_and_b32 {v(X)}, 1, {v(W)}")
    a(f"v_mul_u32_u24 {v(X)}, {48 * 1280}, {v(X)}")
    a(f"v_lshrrev_b32 {v(W)}, 1, {v(W)}")
    a(f"v_mul_u32_u24 {v(W)}, 160, {v(W)}")
    a(f"v_add_u32 {v(W)}, {v(W)}, {v(X)}")
    a(f"v_lshrrev_b32 {v(SG)}, 6, {v(C)}")
    a(f"v_and_b32 {v(C)}, 63, {v(C)}")
    a(f"v_cmp_eq_u32 vcc, 7, {v(SG)}")
    a(f"v_lshlrev_b32 {v(X)}, 1, {v(C)}")
    a("s_nop 0")
    a(f"v_cndmask_b32 {v(C)}, {v(C)}, {v(X)}, vcc")
    a(f"v_and_b32 {v(X)}, 15, {v(C)}")
    a(f"v_mul_u32_u24 {v(X)}, 1280, {v(X)}")
    a(f"v_lshrrev_b32 {v(C)}, 4, {v(C)}")
    a(f"v_lshl_add_u32 {v(X)}, {v(C)}, 3, {v(X)}")
    a(f"v_add_u32 {v(W)}, {v(W)}, {v(X)}")
    a(f"v_lshrrev_b32 {v(X)}, 1, {v(SG)}")
    a(f"v_mul_u32_u24 {v(X)}, {16 * 1280}, {v(X)}")
    a(f"v_and_b32 {v(Y)}, 1, {v(SG)}")
    a(f"v_lshl_add_u32 {v(X)}, {v(Y)}, 6, {v(X)}")
    a(f"v_mov_b32 {v(Y)}, 32")
    a(f"v_cmp_eq_u32 vcc, 6, {v(SG)}")
    a(f"v_mov_b32 {v(C)}, 128")
    a(f"v_mov_b32 {v(A1)}, {16 * 1280}")
    a(f"v_cndmask_b32 {v(X)}, {v(X)}, {v(C)}, vcc")
    a(f"v_cndmask_b32 {v(Y)}, {v(Y)}, {v(A1)}, vcc")
    a(f"v_cmp_eq_u32 vcc, 7, {v(SG)}")
    a(f"v_mov_b32 {v(C)}, {32 * 1280 + 128}")
    a(f"v_mov_b32 {v(A1)}, 1280")
    a(f"v_cndmask_b32 {v(X)}, {v(X)}, {v(C)}, vcc")
    a(f"v_cndmask_b32 {v(Y)}, {v(Y)}, {v(A1)}, vcc")
    a(f"v_add_u32 {v(A0)}, {v(W)}, {v(X)}")
    a(f"v_add_u32 {v(A1)}, {v(A0)}, {v(Y)}")
    return OFFS


def gen_loader(a, cfg):
    st = Stamps(a, cfg)
    st.n = 2
    st.names = ["real0", "cyc0"]
    R_X, R_WQ, R_K, R_V, R_T = 8, 12, 16, 20, 56
    R_WO, R_OI, R_PI, R_OUT = 8, 12, 16, 20
    S_LW, S_SW, S_SX, S_LDS, S_N, S_KK, S_PK = 50, 51, 52, 53, 54, 55, 49
    S_MW, S_MX, S_LDO = 62, 63, 7
    OW, OX, OK_, OV, OWO, OO = 16, 22, 25, 34, 43, 48
    RRc, UUc = 52, 55
    AT, AF1, AF2, TG, PT = 58, 59, 60, 62, 64
    A0, A1, RT = 66, 67, 68
    JK = 74
    T0, T1, T2 = 4, 5, 6
    ntx = "nt" if cfg.ntx else ""

    a(f"s_sub_u32 {s(S_LW)}, {s(S_WAVE)}, 4")
    for c in range(3):
        a(f"v_add_u32 {v(T0)}, {64 * c}, v0")
        a(f"v_mul_u32_u24 {v(T1)}, 2731, {v(T0)}")
        a(f"v_lshrrev_b32 {v(RRc + c)}, 16, {v(T1)}")
        a(f"v_mul_u32_u24 {v(T1)}, 24, {v(RRc + c)}")
        a(f"v_sub_u32 {v(UUc + c)}, {v(T0)}, {v(T1)}")
    a(f"s_mul_i32 s3, {s(S_LW)}, 3")
    a(f"v_lshrrev_b32 {v(T2)}, 4, v0")
    a(f"v_and_b32 v7, 7, v0")
    a(f"v_lshrrev_b32 v8, 3, v0")
    for c in range(3):
        a(f"s_add_u32 s4, s3, {c}")
        a("s_lshl_b32 s6, s4, 3")
        a("s_and_b32 s4, s4, 1")
        a("s_lshl_b32 s4, s4, 2")
        a(f"v_or_b32 {v(T0)}, s4, {v(T2)}")
        a(f"v_xor_b32 {v(T0)}, {v(T0)}, v7")
        a(f"v_add_u32 {v(T1)}, s6, v8")
        a(f"v_mul_u32_u24 {v(T1)}, 1280, {v(T1)}")
        a(f"v_lshl_add_u32 {v(OX + c)}, {v(T0)}, 4, {v(T1)}")
    a(f"s_lshl_b32 s3, {s(S_LW)}, 4")
    for aa in range(2):
        for c in range(3):
            a(f"v_bfe_u32 {v(T0)}, {v(RRc + c)}, 1, 1")
            a(f"v_or_b32 {v(T0)}, {2 * aa}, {v(T0)}")
            a(f"v_lshlrev_b32 {v(T0)}, 1, {v(T0)}")
            a(f"v_xor_b32 {v(T0)}, {v(T0)}, {v(UUc + c)}")
            a(f"s_add_u32 s4, s3, {8 * aa}")
            a(f"v_add_u32 {v(T1)}, s4, {v(RRc + c)}")
            a(f"v_mul_u32_u24 {v(T1)}, 12288, {v(T1)}")
            a(f"v_lshl_add_u32 {v(OW + 3 * aa + c)}, {v(T0)}, 4, {v(T1)}")
    a(f"s_mul_i32 {s(S_MW)}, {s(S_LW)}, 6144")
    a(f"s_mul_i32 {s(S_MX)}, {s(S_LW)}, 3072")
    a(f"s_add_u32 {s(S_MX)}, {s(S_MX)}, 24576")
    if cfg.rot == 0:
        a(f"s_mov_b32 {s(S_KK)}, 0")
    elif cfg.rot in (1, 3):
        a(f"s_mul_i32 s3, {s(S_HH)}, 5")
        a("s_add_u32 s3, s3, 1")
        a("s_lshr_b32 s3, s3, 1")
        a(f"s_add_u32 s3, s3, {s(S_B)}")
        if cfg.rot == 3:
            a(f"s_add_u32 s3, s3, {s(S_G8)}")
        for _ in range(2):
            a("s_sub_u32 s4, s3, 10")
            a("s_cmp_ge_u32 s3, 10")
            a("s_cselect_b32 s3, s4, s3")
        a(f"s_mov_b32 {s(S_KK)}, s3")
    else:
        R = cfg.rot - 2
        a(f"s_add_u32 s3, {s(S_B)}, {s(S_HH)}")
        for _ in range(10 // R + 1):
            a(f"s_sub_u32 s4, s3, {R}")
            a(f"s_cmp_ge_u32 s3, {R}")
            a("s_cselect_b32 s3, s4, s3")
        a("s_mul_i32 s3, s3, 10")
        a(f"s_mul_i32 s3, s3, {(65536 + R - 1) // R}")
        a("s_lshr_b32 s3, s3, 16")
        a(f"s_add_u32 s3, s3, {s(S_G8)}")
        a("s_sub_u32 s4, s3, 10")
        a("s_cmp_ge_u32 s3, 10")
        a("s_cselect_b32 s3, s4, s3")
        a(f"s_mov_b32 {s(S_KK)}, s3")
    a(f"s_mov_b32 {s(S_LDS)}, 0")
    a("s_waitcnt lgkmcnt(0)")
    a(f"s_mul_i32 s3, {s(S_B)}, 122880")
    srd(a, R_X, S_X, "s3", 122880)
    a(f"s_mul_i32 s3, {s(S_H)}, 384")
    a("s_sub_u32 s4, 7864320, s3")
    srd(a, R_WQ, S_WQ, "s3", "s4")

    def stage():
        a(f"s_mul_i32 {s(S_SW)}, {s(S_KK)}, {64 * 12288}")
        a(f"s_lshl_b32 {s(S_SX)}, {s(S_KK)}, 7")
        a(f"s_add_u32 s3, {s(S_LDS)}, {s(S_MW)}")
        a(f"s_add_u32 s4, {s(S_LDS)}, {s(S_MX)}")
        for c in range(3):
            dma(a, OX + c, R_X, s(S_SX), "s4", 1024 * c, ntx)
        for p in range(6):
            dma(a, OW + p, R_WQ, s(S_SW), "s3", 1024 * p, "nt")
        a(f"s_add_u32 {s(S_KK)}, {s(S_KK)}, 1")
        a(f"s_cmp_eq_u32 {s(S_KK)}, 10")
        a(f"s_cselect_b32 {s(S_KK)}, 0, {s(S_KK)}")
        a(f"s_add_u32 {s(S_LDS)}, {s(S_LDS)}, {SLOT}")
        a(f"s_cmp_eq_u32 {s(S_LDS)}, {3 * SLOT}")
        a(f"s_cselect_b32 {s(S_LDS)}, 0, {s(S_LDS)}")

    a(f"s_mov_b32 {s(S_N)}, 0")
    a.label("L_lpro")
    stage()
    a(f"s_add_u32 {s(S_N)}, {s(S_N)}, 1")
    a(f"s_cmp_lt_u32 {s(S_N)}, 2")
    a("s_cbranch_scc1 L_lpro")
    st.cyc("issued")
    epoch_load(a)
    a(f"s_lshl_b32 s3, {s(S_B)}, 5")
    a(f"s_add_u32 s3, s3, {s(S_H)}")
    a("s_mul_i32 s3, s3, 36864")
    srd(a, R_K, S_K, "s3", 36864)
    srd(a, R_V, S_V, "s3", 36864)
    a(f"s_mov_b32 s3, {OFF_F}")
    srd(a, R_F, S_WS, "s3", 262144)
    a(f"s_mul_i32 s3, {s(S_G8)}, 983040")
    srd(a, R_T, S_WO, "s3", 983040)
    a(f"s_mul_i32 s3, {s(S_LW)}, 24")
    for a2 in range(3):
        a(f"s_mul_i32 s4, {s(S_LW)}, 3")
        a(f"s_add_u32 s4, s4, {a2}")
        a("s_and_b32 s4, s4, 1")
        a("s_lshl_b32 s4, s4, 2")
        a(f"s_add_u32 s6, s3, {8 * a2}")
        for c in range(3):
            a(f"v_lshrrev_b32 {v(T0)}, 1, {v(RRc + c)}")
            a(f"v_add_u32 {v(T1)}, s6, {v(RRc + c)}")
            a(f"v_mul_u32_u24 {v(T1)}, 384, {v(T1)}")
            a(f"v_or_b32 {v(T2)}, s4, {v(T0)}")
            a(f"v_xor_b32 {v(T2)}, {v(T2)}, {v(UUc + c)}")
            a(f"v_lshl_add_u32 {v(OK_ + 3 * a2 + c)}, {v(T2)}, 4, {v(T1)}")
            a(f"v_lshlrev_b32 {v(T2)}, 1, {v(T0)}")
            a(f"v_xor_b32 {v(T2)}, {v(T2)}, {v(UUc + c)}")
            a(f"v_lshl_add_u32 {v(OV + 3 * a2 + c)}, {v(T2)}, 4, {v(T1)}")
    a(f"s_lshl_b32 s3, {s(S_LW)}, 4")
    for c in range(5):
        a(f"v_add_u32 {v(T0)}, {64 * c}, v0")
        a(f"v_mul_u32_u24 {v(T1)}, 3277, {v(T0)}")
        a(f"v_lshrrev_b32 {v(T1)}, 16, {v(T1)}")
        a(f"v_mul_u32_u24 {v(T2)}, 20, {v(T1)}")
        a(f"v_sub_u32 {v(T0)}, {v(T0)}, {v(T2)}")
        a(f"v_bfe_u32 {v(T2)}, {v(T1)}, 2, 1")
        a(f"v_lshlrev_b32 {v(T2)}, 1, {v(T2)}")
        a(f"v_xor_b32 {v(T0)}, {v(T0)}, {v(T2)}")
        a(f"v_add_u32 {v(T1)}, s3, {v(T1)}")
        a(f"v_mul_u32_u24 {v(T1)}, 1280, {v(T1)}")
        a(f"v_lshl_add_u32 {v(OWO + c)}, {v(T0)}, 4, {v(T1)}")
    a(f"s_mul_i32 s3, {s(S_LW)}, 3072")
    for c in range(3):
        a(f"s_add_u32 s4, s3, {1024 * c}")
        a(f"v_lshl_add_u32 {v(OO + c)}, v0, 4, s4")
    a("s_lshr_b32 s3, s2, 3")
    a("s_lshl_b32 s3, s3, 2")
    a(f"s_add_u32 s3, s3, {s(S_LW)}")
    a("s_mul_i32 s3, s3, 7680")
    a(f"v_min_u32 {v(T0)}, 59, v0")
    a(f"v_lshl_add_u32 {v(AT)}, {v(T0)}, 7, s3")
    a(f"s_lshl_b32 s3, {s(S_B)}, 3")
    a(f"s_add_u32 s3, s3, {s(S_G8)}")
    a("s_lshl_b32 s3, s3, 7")
    a(f"v_and_b32 {v(T0)}, 15, v0")
    a(f"v_lshl_add_u32 {v(AF1)}, {v(T0)}, 3, s3")
    a(f"s_lshl_b32 s3, {s(S_B)}, 2")
    a(f"s_add_u32 s3, s3, {s(S_HH)}")
    a("s_lshl_b32 s3, s3, 2")
    a(f"s_lshr_b32 s4, {s(S_G8)}, 1")
    a("s_add_u32 s3, s3, s4")
    a("s_lshl_b32 s3, s3, 7")
    a(f"s_add_u32 s3, s3, {F2}")
    a(f"v_and_b32 {v(T0)}, 7, v0")
    a(f"v_lshl_add_u32 {v(AF2)}, {v(T0)}, 3, s3")
    a(f"s_lshl_b32 s4, {s(S_LW)}, 6")
    a(f"v_add_u32 v7, s4, v0")
    a(f"v_min_u32 v7, 239, v7")
    offs = reduce_addr(a, 7, RT, A0, A1, s(S_G8))
    if cfg.kpos == 9:
        a("s_lshr_b32 s3, s2, 3")
        a(f"s_add_u32 s3, s3, {s(S_G8)}")
        a("s_and_b32 s3, s3, 7")
        a(f"s_add_u32 {s(S_PK)}, s3, 1")
    else:
        a(f"s_mov_b32 {s(S_PK)}, {cfg.kpos}")
    a("s_waitcnt lgkmcnt(0)")
    epoch_tag(a)
    a(f"v_mov_b32 {v(TG)}, {s(S_TAG)}")
    a(f"v_mov_b32 {v(TG + 1)}, {s(S_TAG + 1)}")

    def issue_kv(off, srd_, base):
        a(f"s_mul_i32 s3, {s(S_LW)}, 9216")
        a(f"s_add_u32 s3, s3, {base}")
        for p in range(9):
            dma(a, off + p, srd_, "0", "s3", 1024 * p, "nt")
    a("s_waitcnt vmcnt(9)")
    st.cyc("landed0")
    a("s_barrier")
    a(f"s_mov_b32 {s(S_N)}, 0")
    a.label("L_lloop")
    if cfg.kpos != 8:
        a(f"s_cmp_eq_u32 {s(S_N)}, {s(S_PK)}")
        a("s_cbranch_scc0 L_nok")
        issue_kv(OK_, R_K, A_K)
        a.label("L_nok")
    stage()
    a("s_waitcnt vmcnt(9)")
    a("s_barrier")
    a(f"s_add_u32 {s(S_N)}, {s(S_N)}, 1")
    a(f"s_cmp_lt_u32 {s(S_N)}, 8")
    a("s_cbranch_scc1 L_lloop")
    st.cyc("b8")
    a(f"s_cmp_eq_u32 {s(S_PK)}, 8")
    a("s_cbranch_scc0 L_vonly")
    issue_kv(OK_, R_K, A_K)
    a("s_waitcnt vmcnt(9)")
    a("s_barrier")
    issue_kv(OV, R_V, A_V)
    a("s_branch L_kvdone")
    a.label("L_vonly")
    issue_kv(OV, R_V, A_V)
    a("s_waitcnt vmcnt(9)")
    a("s_barrier")
    a.label("L_kvdone")
    ntouch = 0
    if cfg.touch:
        a(f"buffer_load_dword {v(JK)}, {v(AT)}, {s(R_T, 4)}, 0 offen {'nt' if cfg.nttouch else ''}")
        ntouch = 1
    a(f"s_waitcnt vmcnt({9 + ntouch})")
    st.cyc("Kland")
    a("s_barrier")
    a(f"s_mul_i32 s3, {s(S_G8)}, 983040")
    a(f"s_mul_i32 s4, {s(S_HH)}, 320")
    a("s_add_u32 s3, s3, s4")
    a("s_sub_u32 s4, 7864320, s3")
    srd(a, R_WO, S_WO, "s3", "s4")
    a(f"s_lshl_b32 s3, {s(S_B)}, 3")
    a(f"s_add_u32 s3, s3, {s(S_G8)}")
    a(f"s_mul_i32 s3, s3, {4 * 36864}")
    srd(a, R_OI, S_WS, "s3", 4 * 36864)
    a(f"s_lshl_b32 s3, {s(S_B)}, 2")
    a(f"s_add_u32 s3, s3, {s(S_HH)}")
    a(f"s_mul_i32 s3, s3, {8 * 30720}")
    a(f"s_add_u32 s3, s3, {OFF_P}")
    srd(a, R_PI, S_WS, "s3", 8 * 30720)
    a(f"s_mul_i32 {s(S_MW)}, {s(S_LW)}, 5120")
    a(f"s_add_u32 {s(S_MW)}, {s(S_MW)}, {WO0}")
    a(f"s_mul_i32 {s(S_MX)}, {s(S_LW)}, 3072")
    a(f"s_mul_i32 {s(S_KK)}, {s(S_HH)}, 3")
    a(f"s_add_u32 {s(S_PK)}, {s(S_KK)}, 3")
    a(f"s_cmp_eq_u32 {s(S_PK)}, 12")
    a(f"s_cselect_b32 {s(S_PK)}, 0, {s(S_PK)}")
    a(f"s_mov_b32 {s(S_LDS)}, 0")
    a(f"s_mov_b32 {s(S_LDO)}, {3 * OS}")
    a("s_barrier")
    a(f"s_waitcnt vmcnt({ntouch})")
    st.cyc("Vland")
    a("s_barrier")
    a(f"s_mul_i32 s3, {s(S_B)}, 122880")
    a(f"s_mul_i32 s4, {s(S_HH)}, 320")
    a("s_add_u32 s3, s3, s4")
    a("s_sub_u32 s4, 983040, s3")
    srd(a, R_OUT, S_OUT, "s3", "s4")
    a("s_barrier")
    a("s_barrier")
    a("s_barrier")

    def wo_stage():
        a(f"s_mul_i32 {s(S_SW)}, {s(S_KK)}, {64 * 1280}")
        a(f"s_add_u32 s3, {s(S_LDS)}, {s(S_MW)}")
        for p in range(5):
            dma(a, OWO + p, R_WO, s(S_SW), "s3", 1024 * p, "nt" if cfg.ntwo else "")
        a(f"s_add_u32 {s(S_KK)}, {s(S_KK)}, 1")
        a(f"s_cmp_eq_u32 {s(S_KK)}, 12")
        a(f"s_cselect_b32 {s(S_KK)}, 0, {s(S_KK)}")
        a(f"s_add_u32 {s(S_LDS)}, {s(S_LDS)}, {WOS}")
        a(f"s_cmp_eq_u32 {s(S_LDS)}, {4 * WOS}")
        a(f"s_cselect_b32 {s(S_LDS)}, 0, {s(S_LDS)}")

    def o_stage():
        a(f"s_mul_i32 {s(S_SX)}, {s(S_PK)}, {OS}")
        a(f"s_add_u32 s4, {s(S_LDO)}, {s(S_MX)}")
        for c in range(3):
            dma(a, OO + c, R_OI, s(S_SX), "s4", 1024 * c, "sc1" if cfg.osc1 else "")
        a(f"s_add_u32 {s(S_PK)}, {s(S_PK)}, 1")
        a(f"s_cmp_eq_u32 {s(S_PK)}, 12")
        a(f"s_cselect_b32 {s(S_PK)}, 0, {s(S_PK)}")
        a(f"s_add_u32 {s(S_LDO)}, {s(S_LDO)}, {OS}")
        a(f"s_cmp_eq_u32 {s(S_LDO)}, {6 * OS}")
        a(f"s_cselect_b32 {s(S_LDO)}, 0, {s(S_LDO)}")
    wo_stage()
    wo_stage()
    a("s_waitcnt vmcnt(5)")
    st.cyc("wo0")
    a("s_barrier")
    wo_stage()
    wo_stage()
    a("s_waitcnt vmcnt(10)")
    a("s_barrier")
    wo_stage()
    a("s_waitcnt vmcnt(10)")
    a("s_barrier")
    wo_stage()
    st.cyc("poll1")
    poll(a, "L_poll1", AF1, PT, TG)
    st.cyc("seen1")
    o_stage()
    o_stage()
    o_stage()
    a("s_waitcnt vmcnt(6)")
    st.cyc("o3")
    a("s_barrier")
    wo_stage()
    o_stage()
    a("s_waitcnt vmcnt(11)")
    a("s_barrier")
    wo_stage()
    o_stage()
    a("s_waitcnt vmcnt(16)")
    a("s_barrier")
    a(f"s_mov_b32 {s(S_N)}, 0")
    a.label("L_l4")
    wo_stage()
    o_stage()
    a("s_waitcnt vmcnt(16)")
    a("s_barrier")
    a(f"s_add_u32 {s(S_N)}, {s(S_N)}, 1")
    a(f"s_cmp_lt_u32 {s(S_N)}, 4")
    a("s_cbranch_scc1 L_l4")
    a("s_waitcnt vmcnt(8)")
    a("s_barrier")
    a("s_waitcnt vmcnt(0)")
    st.cyc("s11")
    a("s_barrier")
    poll(a, "L_poll2", AF2, PT, TG)
    st.cyc("seen2")
    D0 = 80
    for g in range(8):
        a(f"s_mov_b32 s3, {30720 * g}")
        a(f"buffer_load_dwordx4 {v(D0 + 4 * g, 4)}, {v(offs)}, {s(R_PI, 4)}, s3 offen sc1")
    AC = 120
    for g in range(8):
        a(f"s_waitcnt vmcnt({7 - g})")
        for r in range(4):
            src = D0 + 4 * g + r
            if g == 0:
                a(f"v_lshlrev_b32 {v(AC + 2 * r)}, 16, {v(src)}")
                a(f"v_and_b32 {v(AC + 2 * r + 1)}, 0xffff0000, {v(src)}")
            else:
                a(f"v_lshlrev_b32 v4, 16, {v(src)}")
                a(f"v_and_b32 v5, 0xffff0000, {v(src)}")
                a(f"v_pk_add_f32 {v(AC + 2 * r, 2)}, {v(AC + 2 * r, 2)}, v[4:5]")
    for r in range(4):
        a(cvt(D0 + r, AC + 2 * r))
    st.cyc("summed")
    a(f"buffer_store_dwordx2 {v(D0, 2)}, {v(A0)}, {s(R_OUT, 4)}, 0 offen")
    a(f"buffer_store_dwordx2 {v(D0 + 2, 2)}, {v(A1)}, {s(R_OUT, 4)}, 0 offen")
    a(f"s_or_b32 s3, {s(S_G8)}, {s(S_HH)}")
    a(f"s_or_b32 s3, s3, {s(S_LW)}")
    a("s_cmp_eq_u32 s3, 0")
    a("s_cbranch_scc0 L_noep")
    a(f"s_lshl_b32 s3, {s(S_B)}, 7")
    a(f"s_add_u32 s3, s3, {FX}")
    a("v_mov_b32 v4, 0")
    a("s_mov_b64 exec, 1")
    a(f"buffer_store_dwordx2 {v(TG, 2)}, v4, {s(R_F, 4)}, s3 offen")
    a.label("L_noep")
    if cfg.diag:
        a("s_waitcnt vmcnt(0)")
    st.cyc("end")
    st.real("real1")
    st.flush("L")


def generate(cfg):
    a = Asm()
    a.lines.append("; @launch grid=(256,1,1) block=(512,1,1) lds=163840")
    a('.amdgcn_target "amdgcn-amd-amdhsa--gfx950"')
    a(".text")
    a(kernel_header(KN))
    a("s_cmp_ge_u32 s2, 256")
    a("s_cbranch_scc1 L_end")
    a("s_load_dwordx16 s[32:47], s[0:1], 0")
    if cfg.diag:
        a(f"s_memrealtime {s(S_T, 2)}")
        a(f"s_memtime {s(S_T + 2, 2)}")
    a("v_lshrrev_b32 v1, 6, v0")
    a("v_and_b32 v0, 63, v0")
    a(f"v_readfirstlane_b32 {s(S_WAVE)}, v1")
    a(f"s_and_b32 {s(S_G8)}, s2, 7")
    a("s_lshr_b32 s4, s2, 3")
    a(f"s_lshr_b32 {s(S_B)}, s4, 2")
    a(f"s_and_b32 {s(S_HH)}, s4, 3")
    a(f"s_lshl_b32 s3, {s(S_G8)}, 2")
    a(f"s_add_u32 {s(S_H)}, s3, {s(S_HH)}")
    a(f"s_cmp_lt_u32 {s(S_WAVE)}, 4")
    a("s_cbranch_scc1 L_compute")
    gen_loader(a, cfg)
    a.label("L_end")
    a("s_endpgm")
    a.label("L_compute")
    a("s_waitcnt lgkmcnt(0)")
    gen_compute(a, cfg)
    a('.section .rodata,"a"')
    a(".p2align 6")
    a(kernel_desc(KN))
    return a.text()


if __name__ == "__main__":
    cfg = Cfg()
    out = sys.argv[1]
    for opt in sys.argv[2:]:
        k, val = opt.split("=")
        assert hasattr(cfg, k), k
        setattr(cfg, k, int(val))
    t = generate(cfg)
    pr = hazard.check(t)
    for p in pr:
        print(f"HAZARD line {p[0]} -> {p[1]}: need {p[2]} have {p[3]}\n    {p[4]}\n    {p[5]}")
    open(out, "w").write(t)
    print(out, "hazards:", len(pr), "lines:", t.count("\n"))
```

```python
import struct
import sys

from asmlib import Asm, v, s, kernel_header, kernel_desc, interleave
import hazard

KN = "standalone__gqa_block_cached__near_ridge_kernel"
OFF_O = 0
OFF_P = 16 << 20
OFF_F = 32 << 20
F1, F2, FX = 0, 65536, 131072
OFF_T = 64 << 20
SLOT = 36864
A_K = 3 * SLOT
A_V = 1 * SLOT
A_Q = 2 * SLOT
A_P = 0
A_M = 163840 - 768
WO0, WOS = 2 * SLOT, 20480
OS = 12288
CEXP = 0.07216878364870322 * 1.4426950408889634
TAGC = (0x9E3779B9, 0x7F4A7C15)
SPIN_MAX = 1 << 21


def f32bits(x):
    return struct.unpack("<I", struct.pack("<f", x))[0]


class Cfg:
    diag = 0
    prio = 0
    rot = 3
    kpos = 8
    ntx = 0
    ra4 = 1
    touch = 1
    nttouch = 0
    ntwo = 0
    ntwq = 0
    ntkv = 0
    osc1 = 1
    stsc1 = 1


S_X, S_K, S_V, S_WQ, S_WO, S_OUT, S_DBG, S_WS = 32, 34, 36, 38, 40, 42, 44, 46
S_B, S_H, S_WAVE, S_G8, S_HH = 28, 29, 30, 31, 48
S_TAG = 60
R_F = 24
S_T = 64


class Stamps:
    def __init__(self, a, cfg):
        self.a, self.on, self.n = a, cfg.diag, 0
        self.fine = cfg.diag > 1
        self.names = []

    def real(self, name):
        if self.on:
            self.a(f"s_memrealtime {s(S_T + 2 * self.n, 2)}")
            self.names.append(name)
            self.n += 1

    def cyc(self, name, fine=False):
        if self.on and (not fine or self.fine):
            self.a(f"s_memtime {s(S_T + 2 * self.n, 2)}")
            self.names.append(name)
            self.n += 1

    def flush(self, role, vt=4):
        if not self.on:
            return
        a = self.a
        assert self.n <= 19, self.n
        a("s_waitcnt lgkmcnt(0) vmcnt(0)")
        a(f"; STAMPS {role} " + " ".join(self.names))
        a("s_lshl_b32 s3, s2, 3")
        a(f"s_add_u32 s3, s3, {s(S_WAVE)}")
        a("s_lshl_b32 s3, s3, 8")
        a(f"s_add_u32 s3, s3, {OFF_T}")
        a(f"s_add_u32 s4, {s(S_WS)}, s3")
        a(f"s_addc_u32 s5, {s(S_WS + 1)}, 0")
        a("s_mov_b64 exec, 1")
        a(f"v_mov_b32 {v(vt + 2)}, 0")
        for i in range(self.n):
            a(f"v_mov_b32 {v(vt)}, {s(S_T + 2 * i)}")
            a(f"v_mov_b32 {v(vt + 1)}, {s(S_T + 2 * i + 1)}")
            a(f"global_store_dwordx2 {v(vt + 2)}, {v(vt, 2)}, s[4:5] offset:{8 * i}")
            a("s_nop 1")
        a("s_waitcnt vmcnt(0)")


def srd(a, d, base, off_sgpr, size):
    if off_sgpr is None:
        a(f"s_mov_b32 {s(d)}, {s(base)}")
        a(f"s_mov_b32 {s(d + 1)}, {s(base + 1)}")
    else:
        a(f"s_add_u32 {s(d)}, {s(base)}, {off_sgpr}")
        a(f"s_addc_u32 {s(d + 1)}, {s(base + 1)}, 0")
    a(f"s_mov_b32 {s(d + 2)}, {size}")
    a(f"s_mov_b32 {s(d + 3)}, 0x20000")


def dma(a, voff, srd_, soff, base, imm, fl=""):
    a(f"s_add_u32 m0, {base}, {imm}")
    a("s_nop 0")
    a(f"buffer_load_dwordx4 {v(voff)}, {s(srd_, 4)}, {soff} offen {fl} lds")


def mfma(d, a_, b_, c=None):
    cs = v(d, 4) if c is None else str(c)
    return f"v_mfma_f32_16x16x32_bf16 {v(d, 4)}, {v(a_, 4)}, {v(b_, 4)}, {cs}"


def trread(d, addr, off):
    assert 0 <= off < 65536
    return f"ds_read_b64_tr_b16 {v(d, 2)}, {v(addr)} offset:{off}"


def rd128(d, addr, off):
    assert 0 <= off < 65536
    return f"ds_read_b128 {v(d, 4)}, {v(addr)} offset:{off}"


def rd64(d, addr, off):
    assert 0 <= off < 65536
    return f"ds_read_b64 {v(d, 2)}, {v(addr)} offset:{off}"


def cvt(d, t):
    return f"v_cvt_pk_bf16_f32 {v(d)}, {v(t)}, {v(t + 1)}"


def emit(a, lst):
    for x in lst:
        a(x)


def place(main, slots):
    out = list(slots.get(-1, []))
    for i, m in enumerate(main):
        out.append(m)
        out.extend(slots.get(i, []))
    return out


def spread(fill, start, per=1, step=1, into=None):
    d = into if into is not None else {}
    i = start
    k = 0
    while k < len(fill):
        d.setdefault(i, []).extend(fill[k:k + per])
        k += per
        i += step
    return d


def epoch_load(a):
    a(f"s_lshl_b32 s3, {s(S_B)}, 7")
    a(f"s_add_u32 s3, s3, {OFF_F + FX}")
    a(f"s_add_u32 s4, {s(S_WS)}, s3")
    a(f"s_addc_u32 s5, {s(S_WS + 1)}, 0")
    a(f"s_load_dwordx2 {s(S_TAG, 2)}, s[4:5], 0")


def epoch_tag(a):
    a(f"s_add_u32 {s(S_TAG)}, {s(S_TAG)}, {TAGC[0]:#x}")
    a(f"s_addc_u32 {s(S_TAG + 1)}, {s(S_TAG + 1)}, {TAGC[1]:#x}")


def poll(a, name, vaddr, vtmp, vtag):
    a(f"s_mov_b32 s3, {SPIN_MAX}")
    a.label(name)
    a(f"buffer_load_dwordx2 {v(vtmp, 2)}, {v(vaddr)}, {s(R_F, 4)}, 0 offen sc1")
    a("s_sub_u32 s3, s3, 1")
    a("s_cmp_eq_u32 s3, 0")
    a(f"s_cbranch_scc1 {name}_out")
    a("s_waitcnt vmcnt(0)")
    a(f"v_cmp_ne_u64 vcc, {v(vtmp, 2)}, {v(vtag, 2)}")
    a("s_nop 1")
    a(f"s_cbranch_vccnz {name}")
    a.label(name + "_out")
    a("s_waitcnt vmcnt(0)")


def gen_compute(a, cfg):
    st = Stamps(a, cfg)
    st.n = 2
    st.names = ["real0", "cyc0"]
    R_O, R_P = 8, 12
    ACC, FR, QP, LS, ONES = 16, 88, 160, 196, 208
    AX, AY, AZ, AVo, AVp = 212, 216, 218, 230, 234
    AQW, AQR, AMW, AMR, APW, APR, APW2, APR2, AO, AOW = range(238, 248)
    AW, AB, AP, AP2, AFL, TG = 248, 250, 251, 252, 253, 254
    VM, VG, VF, T0, T1, T2 = 1, 2, 3, 4, 5, 6
    MX = 8
    S_I, S_J, S_C, S_D, S_CNT, S_SL, S_D2, S_SL2 = 50, 51, 52, 53, 54, 55, 56, 57
    S_K0, S_K1, S_K2, S_K3 = 58, 59, 62, 63

    st.cyc("karg", True)
    if cfg.prio:
        a(f"s_setprio {cfg.prio}")
    epoch_load(a)
    a(f"s_lshl_b32 s3, {s(S_B)}, 5")
    a(f"s_add_u32 s3, s3, {s(S_H)}")
    a("s_mul_i32 s3, s3, 36864")
    srd(a, R_O, S_WS, "s3", 36864)
    a(f"s_lshl_b32 s3, {s(S_B)}, 2")
    a(f"s_add_u32 s3, s3, {s(S_HH)}")
    a("s_lshl_b32 s3, s3, 3")
    a(f"s_add_u32 s3, s3, {s(S_G8)}")
    a("s_mul_i32 s3, s3, 30720")
    a(f"s_add_u32 s3, s3, {OFF_P}")
    srd(a, R_P, S_WS, "s3", 30720)
    a(f"s_mov_b32 s3, {OFF_F}")
    srd(a, R_F, S_WS, "s3", 262144)
    a(f"s_lshr_b32 {s(S_I)}, {s(S_WAVE)}, 1")
    a(f"s_and_b32 {s(S_J)}, {s(S_WAVE)}, 1")
    a(f"s_mov_b32 {s(S_C)}, {f32bits(CEXP):#x}")
    a(f"v_and_b32 {v(VM)}, 15, v0")
    a(f"v_lshrrev_b32 {v(VG)}, 4, v0")
    a(f"v_lshrrev_b32 {v(T0)}, 2, {v(VM)}")
    a(f"v_lshl_add_u32 {v(T1)}, {v(VG)}, 3, {v(T0)}")
    a(f"v_mul_u32_u24 {v(T1)}, 384, {v(T1)}")
    a(f"v_and_b32 {v(T2)}, 3, {v(VM)}")
    a(f"v_lshl_add_u32 {v(T1)}, {v(T2)}, 3, {v(T1)}")
    a(f"v_and_b32 {v(T2)}, 1, {v(VG)}")
    a(f"v_lshrrev_b32 {v(VF)}, 3, {v(VM)}")
    a(f"v_lshl_or_b32 {v(VF)}, {v(T2)}, 1, {v(VF)}")
    a(f"s_mul_i32 s3, {s(S_I)}, 6")
    for c in range(4):
        a(f"s_add_u32 s4, s3, {c}")
        a("s_and_b32 s5, s4, 3")
        a("s_lshr_b32 s4, s4, 2")
        a("s_lshl_b32 s4, s4, 7")
        a(f"v_xor_b32 {v(T2)}, s5, {v(VF)}")
        a(f"v_lshl_add_u32 {v(T2)}, {v(T2)}, 5, {v(T1)}")
        a(f"v_add_u32 {v(AX + c)}, s4, {v(T2)}")
    a(f"s_mul_i32 s4, {s(S_J)}, 48")
    a(f"v_add_u32 {v(T1)}, s4, {v(VM)}")
    a(f"v_lshlrev_b32 {v(T1)}, 7, {v(T1)}")
    a(f"v_add_u32 {v(T1)}, 24576, {v(T1)}")
    a(f"v_lshrrev_b32 {v(VF)}, 1, {v(VM)}")
    for ks in range(2):
        a(f"v_add_u32 {v(T2)}, {4 * ks}, {v(VG)}")
        a(f"v_xor_b32 {v(T2)}, {v(T2)}, {v(VF)}")
        a(f"v_lshl_add_u32 {v(AY + ks)}, {v(T2)}, 4, {v(T1)}")
    for i in range(72):
        a(f"v_mov_b32 {v(ACC + i)}, 0")
    a(f"s_mul_i32 s4, {s(S_I)}, 48")
    a(f"v_add_u32 {v(T1)}, s4, {v(VM)}")
    a(f"v_mul_u32_u24 {v(T1)}, 384, {v(T1)}")
    a(f"v_and_b32 {v(T2)}, 1, {v(VG)}")
    a(f"v_lshl_add_u32 {v(T1)}, {v(T2)}, 3, {v(T1)}")
    a(f"v_add_u32 {v(T1)}, {A_K}, {v(T1)}")
    a(f"v_lshrrev_b32 {v(T0)}, 1, {v(VG)}")
    a(f"s_mul_i32 s7, {s(S_I)}, 3")
    for ls in range(6):
        a(f"s_add_u32 s4, s7, {ls}")
        a("s_sub_u32 s5, s4, 6")
        a("s_cmp_ge_u32 s4, 6")
        a("s_cselect_b32 s4, s5, s4")
        a("s_and_b32 s5, s4, 1")
        a("s_lshl_b32 s5, s5, 2")
        a("s_lshr_b32 s4, s4, 1")
        a("s_lshl_b32 s4, s4, 7")
        for hh in range(2):
            a(f"s_add_u32 s6, s5, {2 * hh}")
            a(f"v_or_b32 {v(T2)}, s6, {v(T0)}")
            a(f"v_xor_b32 {v(T2)}, {v(T2)}, {v(VF)}")
            a(f"v_lshl_add_u32 {v(T2)}, {v(T2)}, 4, {v(T1)}")
            a(f"v_add_u32 {v(AZ + 2 * ls + hh)}, s4, {v(T2)}")
    a(f"v_lshrrev_b32 {v(T0)}, 2, {v(VM)}")
    a(f"v_lshl_add_u32 {v(T0)}, {v(VG)}, 2, {v(T0)}")
    a(f"v_lshrrev_b32 {v(VF)}, 1, {v(T0)}")
    a(f"v_and_b32 {v(VF)}, 3, {v(VF)}")
    a(f"v_mul_u32_u24 {v(T1)}, 384, {v(T0)}")
    a(f"v_and_b32 {v(T2)}, 3, {v(VM)}")
    a(f"v_lshl_add_u32 {v(T1)}, {v(T2)}, 3, {v(T1)}")
    a(f"s_mul_i32 s6, {s(S_I)}, 18432")
    a(f"s_add_u32 s7, s6, {A_V}")
    a(f"s_sub_u32 s6, {A_V + 18432}, s6")
    a(f"s_mul_i32 s3, {s(S_I)}, 6")
    for c in range(4):
        a(f"s_add_u32 s4, s3, {c}")
        a("s_and_b32 s5, s4, 3")
        a("s_lshr_b32 s4, s4, 2")
        a("s_lshl_b32 s4, s4, 7")
        a(f"v_xor_b32 {v(T2)}, s5, {v(VF)}")
        a(f"v_lshl_add_u32 {v(T2)}, {v(T2)}, 5, {v(T1)}")
        a(f"v_add_u32 {v(T2)}, s4, {v(T2)}")
        a(f"v_add_u32 {v(AVo + c)}, s7, {v(T2)}")
        a(f"v_add_u32 {v(AVp + c)}, s6, {v(T2)}")
    a(f"v_mul_u32_u24 {v(T0)}, 320, {v(T0)}")
    a(f"v_and_b32 {v(T1)}, 3, {v(VM)}")
    a(f"v_lshl_add_u32 {v(T0)}, {v(T1)}, 3, {v(T0)}")
    a(f"v_add_u32 {v(T0)}, {WO0}, {v(T0)}")
    a(f"v_and_b32 {v(T1)}, 1, {v(VG)}")
    a(f"s_mul_i32 s3, {s(S_I)}, 5")
    for par in range(2):
        a(f"s_add_u32 s4, s3, {par}")
        a(f"v_xor_b32 {v(T2)}, s4, {v(T1)}")
        a(f"v_lshl_add_u32 {v(AW + par)}, {v(T2)}, 5, {v(T0)}")
    a(f"s_xor_b32 s5, {s(S_WAVE)}, 2")
    a(f"v_lshlrev_b32 {v(T1)}, 4, v0")
    a(f"s_mul_i32 s3, {s(S_WAVE)}, 9216")
    a(f"s_add_u32 s3, s3, {A_Q}")
    a(f"v_add_u32 {v(AQW)}, s3, {v(T1)}")
    a(f"s_mul_i32 s3, s5, 9216")
    a(f"s_add_u32 s3, s3, {A_Q}")
    a(f"v_add_u32 {v(AQR)}, s3, {v(T1)}")
    a(f"s_mul_i32 s3, {s(S_WAVE)}, 4608")
    a(f"v_add_u32 {v(APW)}, s3, {v(T1)}")
    a(f"v_lshl_add_u32 {v(APW2)}, v0, 3, s3")
    a(f"s_mul_i32 s3, s5, 4608")
    a(f"v_add_u32 {v(APR)}, s3, {v(T1)}")
    a(f"v_lshl_add_u32 {v(APR2)}, v0, 3, s3")
    a(f"s_mul_i32 s3, {s(S_WAVE)}, 192")
    a(f"s_add_u32 s3, s3, {A_M}")
    a(f"v_lshl_add_u32 {v(AMW)}, {v(VM)}, 2, s3")
    a(f"s_mul_i32 s3, s5, 192")
    a(f"s_add_u32 s3, s3, {A_M}")
    a(f"v_lshl_add_u32 {v(AMR)}, {v(VM)}, 2, s3")
    a(f"s_mul_i32 s3, {s(S_I)}, 18")
    a(f"s_mul_i32 s4, {s(S_J)}, 3")
    a("s_add_u32 s3, s3, s4")
    a("s_lshl_b32 s3, s3, 10")
    a(f"v_add_u32 {v(AO)}, s3, {v(T1)}")
    a(f"s_mul_i32 s3, {s(S_J)}, 3072")
    a(f"v_add_u32 {v(AB)}, s3, {v(T1)}")
    a(f"s_mul_i32 s3, {s(S_WAVE)}, 7680")
    a(f"v_add_u32 {v(AP)}, s3, {v(T1)}")
    a("s_add_u32 s3, s3, 7168")
    a(f"v_lshl_add_u32 {v(AP2)}, v0, 3, s3")
    a(f"s_lshl_b32 s3, {s(S_B)}, 3")
    a(f"s_add_u32 s3, s3, {s(S_G8)}")
    a("s_lshl_b32 s3, s3, 4")
    a(f"s_lshl_b32 s4, {s(S_HH)}, 2")
    a("s_add_u32 s3, s3, s4")
    a(f"s_add_u32 s3, s3, {s(S_WAVE)}")
    a(f"s_lshl_b32 {s(S_K2)}, s3, 3")
    a(f"s_lshl_b32 s3, {s(S_B)}, 2")
    a(f"s_add_u32 s3, s3, {s(S_HH)}")
    a("s_lshl_b32 s3, s3, 2")
    a(f"s_add_u32 s3, s3, {s(S_WAVE)}")
    a("s_lshl_b32 s3, s3, 4")
    a(f"s_add_u32 s3, s3, {s(S_G8)}")
    a("s_lshl_b32 s3, s3, 3")
    a(f"s_add_u32 {s(S_K3)}, s3, {F2}")
    a(f"v_mov_b32 {v(AFL)}, 0")
    for i in range(4):
        a(f"v_mov_b32 {v(ONES + i)}, 0x3f803f80")
    st.cyc("csetup", True)
    a("s_waitcnt lgkmcnt(0)")
    epoch_tag(a)
    a(f"v_mov_b32 {v(TG)}, {s(S_TAG)}")
    a(f"v_mov_b32 {v(TG + 1)}, {s(S_TAG + 1)}")

    def fa(n, dt):
        return FR + 36 * n + 4 * dt

    def fb(n, qt):
        return FR + 36 * n + 24 + 4 * qt

    def p1_reads(n, ks):
        def A(dt):
            return [trread(fa(n, dt) + 2 * hh, AX + dt % 4, 384 * (32 * ks + 4 * hh) + 128 * (dt // 4)) for hh in range(2)]

        def B(qt):
            return [rd128(fb(n, qt), AY + ks, 2048 * qt)]
        r = B(0) + A(0) + B(1) + B(2)
        for dt in range(1, 6):
            r += A(dt)
        return r

    def qtile(dt, qt):
        return ACC + 4 * (3 * dt + qt)

    def p1_mfmas(n):
        return [mfma(qtile(dt, qt), fa(n, dt), fb(n, qt)) for dt in range(6) for qt in range(3)]

    adv = [f"v_add_u32 {v(AX + c)}, {s(S_D)}, {v(AX + c)}" for c in range(4)] + \
          [f"v_add_u32 {v(AY + c)}, {s(S_D)}, {v(AY + c)}" for c in range(2)]
    a(f"s_mov_b32 {s(S_SL)}, 0")
    a(f"s_mov_b32 {s(S_CNT)}, 0")
    a(f"s_mov_b32 {s(S_K0)}, {(-2 * SLOT) & 0xffffffff:#x}")
    a(f"s_mov_b32 {s(S_K1)}, {SLOT}")
    st.cyc("setup")
    a("s_barrier")
    st.cyc("b0")
    emit(a, p1_reads(0, 0))
    a("s_waitcnt lgkmcnt(0)")
    a.label("L_p1")
    sl = spread(p1_reads(1, 1), 0, 1)
    sl.setdefault(0, []).append(f"s_add_u32 {s(S_SL)}, {s(S_SL)}, 1")
    sl.setdefault(1, []).append(f"s_cmp_eq_u32 {s(S_SL)}, 3")
    sl.setdefault(2, []).append(f"s_cselect_b32 {s(S_D)}, {s(S_K0)}, {s(S_K1)}")
    sl.setdefault(3, []).append(f"s_cselect_b32 {s(S_SL)}, 0, {s(S_SL)}")
    spread(adv, 15, 2, into=sl)
    emit(a, place(p1_mfmas(0), sl))
    a("s_waitcnt lgkmcnt(0)")
    a("s_barrier")
    sl = spread(p1_reads(0, 0), 0, 1)
    sl.setdefault(15, []).append(f"s_add_u32 {s(S_CNT)}, {s(S_CNT)}, 1")
    sl.setdefault(16, []).append(f"s_cmp_lt_u32 {s(S_CNT)}, 9")
    emit(a, place(p1_mfmas(1), sl))
    a("s_waitcnt lgkmcnt(0)")
    a("s_cbranch_scc1 L_p1")
    emit(a, place(p1_mfmas(0), spread(p1_reads(1, 1), 0, 1)))
    a("s_waitcnt lgkmcnt(0)")
    a("s_barrier")
    st.cyc("b10")

    def kf(buf, a_):
        return FR + 12 * buf + 4 * a_

    def k_reads(ls, buf):
        return [rd64(kf(buf, a_) + 2 * hh, AZ + 2 * ls + hh, 6144 * a_) for a_ in range(3) for hh in range(2)]

    def qpack(ls):
        r = []
        for dt in (2 * ls, 2 * ls + 1):
            for qt in range(3):
                d = QP + 4 * (3 * ls + qt) + 2 * (dt % 2)
                r += [cvt(d, qtile(dt, qt)), cvt(d + 1, qtile(dt, qt) + 2)]
        return r

    def qwrite(f):
        return f"ds_write_b128 {v(AQW)}, {v(QP + 4 * f, 4)} offset:{1024 * f}"
    SA = ACC

    def stile(a_, qt):
        return SA + 4 * (3 * a_ + qt)

    def s_mfmas(qbase, ls3, buf, first=False, qmajor=False):
        idx = [(a_, qt) for qt in range(3) for a_ in range(3)] if qmajor else [(a_, qt) for a_ in range(3) for qt in range(3)]
        return [mfma(stile(a_, qt), kf(buf, a_), qbase + 4 * (3 * ls3 + qt), 0 if first else None) for a_, qt in idx]

    sl = spread(k_reads(0, 0) + k_reads(1, 1) + k_reads(2, 2), 0, 1)
    spread(qpack(0), 10, 2, step=1, into=sl)
    emit(a, place(p1_mfmas(1), sl))
    emit(a, [qwrite(0)] + qpack(1)[:6] + [qwrite(1)] + qpack(1)[6:] + [qwrite(2)])
    a("s_waitcnt lgkmcnt(3)")
    sl = {}
    spread(qpack(2), 0, 2, into=sl)
    sl.setdefault(1, []).append(qwrite(3))
    sl.setdefault(4, []).append(qwrite(4))
    sl.setdefault(7, []).append(qwrite(5))
    sl.setdefault(10, []).append(qwrite(6))
    sl.setdefault(13, []).append(qwrite(7))
    sl.setdefault(16, []).append(qwrite(8))
    emit(a, place(s_mfmas(QP, 0, 0, True) + s_mfmas(QP, 1, 1), sl))
    a("s_waitcnt lgkmcnt(0)")
    a("s_barrier")
    st.cyc("b11")
    QR = FR + 36
    rds = [rd128(QR + 4 * f, AQR, 1024 * f) for f in range(9)]
    emit(a, place(s_mfmas(QP, 2, 2), spread(rds[:3] + k_reads(3, 0), 0, 2, into=None)))
    a("s_waitcnt lgkmcnt(0)")
    emit(a, place(s_mfmas(QR, 0, 0), spread(rds[3:6] + k_reads(4, 1), 0, 1)))
    a("s_waitcnt lgkmcnt(0)")
    emit(a, place(s_mfmas(QR, 1, 1), spread(rds[6:9] + k_reads(5, 2), 0, 1)))
    a("s_waitcnt lgkmcnt(0)")

    def xs(qt):
        return [stile(a_, qt) + r for a_ in range(3) for r in range(4)]

    def maxchain(qt):
        x = xs(qt)
        r = [f"v_max3_f32 {v(MX + qt)}, {v(x[0])}, {v(x[1])}, {v(x[2])}"]
        for k in range(3, 11, 2):
            r.append(f"v_max3_f32 {v(MX + qt)}, {v(MX + qt)}, {v(x[k])}, {v(x[k + 1])}")
        r.append(f"v_max_f32 {v(MX + qt)}, {v(MX + qt)}, {v(x[11])}")
        return r
    emit(a, s_mfmas(QR, 2, 2, qmajor=True))
    st.cyc("sdone", True)
    a("s_nop 1")
    emit(a, maxchain(0) + maxchain(1) + maxchain(2))
    for op in ("v_permlane16_swap_b32", "v_permlane32_swap_b32"):
        for qt in range(3):
            a(f"v_mov_b32 {v(MX + 3 + qt)}, {v(MX + qt)}")
        for qt in range(3):
            a(f"{op} {v(MX + 3 + qt)}, {v(MX + qt)}")
        for qt in range(3):
            a(f"v_max_f32 {v(MX + qt)}, {v(MX + qt)}, {v(MX + 3 + qt)}")
    for qt in range(3):
        a(f"ds_write_b32 {v(AMW)}, {v(MX + qt)} offset:{64 * qt}")
    a("s_waitcnt lgkmcnt(0)")
    a("s_barrier")
    st.cyc("b12")

    VB0, VB1 = QP, FR + 36
    PP, PC = FR, FR + 24

    def v_reads(step, buf):
        r = []
        for dt in range(6):
            for hh in range(2):
                if step == 0:
                    ad, tile = AVo, hh
                elif step == 1:
                    ad, tile = (AVo, 2) if hh == 0 else (AVp, 2)
                else:
                    ad, tile = AVp, hh
                r.append(trread(buf + 4 * dt + 2 * hh, ad + dt % 4, 6144 * tile + 128 * (dt // 4)))
        return r
    for qt in range(3):
        a(f"ds_read_b32 {v(MX + 3 + qt)}, {v(AMR)} offset:{64 * qt}")
    emit(a, v_reads(0, VB0))
    a("s_waitcnt lgkmcnt(12)" if not st.on else "s_waitcnt lgkmcnt(0)")
    for qt in range(3):
        a(f"v_max_f32 {v(MX + qt)}, {v(MX + qt)}, {v(MX + 3 + qt)}")
    for qt in range(3):
        a(f"v_mul_f32 {v(MX + qt)}, {s(S_C)}, {v(MX + qt)}")

    def softmax(qt):
        x = xs(qt)
        f = [f"v_fma_f32 {v(y)}, {v(y)}, {s(S_C)}, -{v(MX + qt)}" for y in x]
        e = [f"v_exp_f32 {v(y)}, {v(y)}" for y in x]
        r = f[:2]
        for k in range(12):
            r.append(e[k])
            if k + 2 < 12:
                r.append(f[k + 2])
        c = [cvt(PP + 8 * qt + k, x[2 * k]) for k in range(6)]
        return r + c

    def pwrite(qt):
        return [f"ds_write_b128 {v(APW)}, {v(PP + 8 * qt, 4)} offset:{1536 * qt}",
                f"ds_write_b64 {v(APW2)}, {v(PP + 8 * qt + 4, 2)} offset:{1536 * qt + 1024}"]
    OT = {}
    free = [ACC + 36 + 4 * k for k in range(9)]
    for qt in range(3):
        own = [stile(a_, qt) for a_ in range(3)]
        regs = free[3 * qt:3 * qt + 3] + own
        for dt in range(6):
            OT[(dt, qt)] = regs[dt]

    def pv(vbuf, pfr, qt, first=False, sum_first=False):
        r = [mfma(OT[(dt, qt)], vbuf + 4 * dt, pfr(qt), 0 if first else None) for dt in range(6)]
        sm = [mfma(LS + 4 * qt, ONES, pfr(qt), 0 if first else None)]
        return sm + r if sum_first else r + sm
    fA = lambda qt: PP + 8 * qt
    fB = lambda qt: PP + 8 * qt + 4
    fC = lambda qt: PC + 4 * qt
    emit(a, softmax(0))
    emit(a, pwrite(0))
    a("s_waitcnt lgkmcnt(2)")
    for qt in (1, 2):
        sm = softmax(qt)
        mm = pv(VB0, fA, qt - 1, True)
        out = []
        per = 4
        for k, m in enumerate(mm):
            out += sm[per * k:per * k + per]
            out.append(m)
        out += sm[per * len(mm):]
        emit(a, out)
        emit(a, pwrite(qt))
    a("s_waitcnt lgkmcnt(0)")
    a("s_barrier")
    st.cyc("b13")
    prd = [rd64(PP + 8 * qt + 6, APR2, 1536 * qt + 1024) for qt in range(3)]
    prc = [rd128(PC + 4 * qt, APR, 1536 * qt) for qt in range(3)]
    emit(a, place(pv(VB0, fA, 2, True), spread(prd + v_reads(1, VB1), -1, 2)))
    a("s_waitcnt lgkmcnt(0)")
    mB = pv(VB1, fB, 0) + pv(VB1, fB, 1) + pv(VB1, fB, 2)
    emit(a, place(mB, spread(prc + v_reads(2, VB0), 0, 1)))
    a("s_waitcnt lgkmcnt(0)")
    a("s_barrier")
    st.cyc("b14", True)
    OP = FR + 36

    def finish(qt):
        r = [f"v_rcp_f32 {v(MX + 2 * qt)}, {v(LS + 4 * qt)}", "s_nop 0"]
        r.append(f"v_mov_b32 {v(MX + 2 * qt + 1)}, {v(MX + 2 * qt)}")
        for ls in range(3):
            d = OP + 4 * (3 * ls + qt)
            for half in range(2):
                t = OT[(2 * ls + half, qt)]
                r.append(f"v_pk_mul_f32 {v(t, 2)}, {v(t, 2)}, {v(MX + 2 * qt, 2)}")
                r.append(f"v_pk_mul_f32 {v(t + 2, 2)}, {v(t + 2, 2)}, {v(MX + 2 * qt, 2)}")
            for half in range(2):
                t = OT[(2 * ls + half, qt)]
                r += [cvt(d + 2 * half, t), cvt(d + 2 * half + 1, t + 2)]
            off = (ls * 6 + qt) * 1024
            r.append(f"s_mov_b32 s3, {off}")
            r.append(f"buffer_store_dwordx4 {v(d, 4)}, {v(AO)}, {s(R_O, 4)}, s3 offen {'sc1' if cfg.stsc1 else ''}")
            r.append(f"ds_write_b128 {v(AO)}, {v(d, 4)} offset:{off}")
        return r
    emit(a, pv(VB0, fC, 0, sum_first=True))
    m1 = pv(VB0, fC, 1, sum_first=True)
    emit(a, m1)
    m2 = pv(VB0, fC, 2, sum_first=True)
    f0 = finish(0)
    out = []
    for k, m in enumerate(m2):
        out.append(m)
        out += f0[2 * k:2 * k + 2]
    out += f0[2 * len(m2):]
    emit(a, out)
    emit(a, finish(1) + finish(2))
    st.cyc("ostore")
    a("s_waitcnt lgkmcnt(0)")
    a("s_barrier")
    a("s_waitcnt vmcnt(0)")
    a("s_mov_b64 exec, 1")
    a(f"buffer_store_dwordx2 {v(TG, 2)}, {v(AFL)}, {s(R_F, 4)}, {s(S_K2)} offen sc1")
    a("s_mov_b64 exec, -1")
    st.cyc("flag1")

    A4 = ACC

    def ga(n, tt):
        return FR + 32 * n + 4 * tt

    def gb(n, qt):
        return FR + 32 * n + 20 + 4 * qt

    def p4_reads(n, ks):
        def A(tt):
            return [trread(ga(n, tt) + 2 * hh, AW + tt % 2, 320 * (32 * ks + 16 * hh) + 64 * (tt // 2)) for hh in range(2)]

        def B(qt):
            return [rd128(gb(n, qt), AB, 6144 * ks + 1024 * qt)]
        r = B(0) + A(0) + B(1) + B(2)
        for tt in range(1, 5):
            r += A(tt)
        return r

    def p4_mfmas(n, first=False):
        return [mfma(A4 + 4 * (3 * tt + qt), ga(n, tt), gb(n, qt), 0 if first else None) for tt in range(5) for qt in range(3)]
    adv4 = [f"v_add_u32 {v(AW + c)}, {s(S_D)}, {v(AW + c)}" for c in range(2)] + [f"v_add_u32 {v(AB)}, {s(S_D2)}, {v(AB)}"]
    a(f"s_mov_b32 {s(S_K0)}, {(-3 * WOS) & 0xffffffff:#x}")
    a(f"s_mov_b32 {s(S_K1)}, {WOS}")
    a(f"s_mov_b32 s6, {(-5 * OS) & 0xffffffff:#x}")
    a(f"s_mov_b32 s7, {OS}")
    a(f"s_mov_b32 {s(S_SL)}, 0")
    a(f"s_mov_b32 {s(S_SL2)}, 0")
    a(f"s_mov_b32 {s(S_CNT)}, 0")
    a("s_barrier")
    st.cyc("B0")
    emit(a, p4_reads(0, 0))
    a("s_waitcnt lgkmcnt(0)")

    def p4_stage(first):
        sl = spread(p4_reads(1, 1), 0, 1)
        sc = [f"s_add_u32 {s(S_SL)}, {s(S_SL)}, 1", f"s_cmp_eq_u32 {s(S_SL)}, 4",
              f"s_cselect_b32 {s(S_D)}, {s(S_K0)}, {s(S_K1)}", f"s_cselect_b32 {s(S_SL)}, 0, {s(S_SL)}",
              f"s_add_u32 {s(S_SL2)}, {s(S_SL2)}, 1", f"s_cmp_eq_u32 {s(S_SL2)}, 6",
              f"s_cselect_b32 {s(S_D2)}, s6, s7", f"s_cselect_b32 {s(S_SL2)}, 0, {s(S_SL2)}"]
        spread(sc, 0, 1, into=sl)
        spread(adv4, 13, 2, into=sl)
        emit(a, place(p4_mfmas(0, first), sl))
        a("s_waitcnt lgkmcnt(0)")
        a("s_barrier")
        sl = spread(p4_reads(0, 0), 0, 1)
        if not first:
            sl.setdefault(12, []).append(f"s_add_u32 {s(S_CNT)}, {s(S_CNT)}, 1")
            sl.setdefault(13, []).append(f"s_cmp_lt_u32 {s(S_CNT)}, 10")
        emit(a, place(p4_mfmas(1), sl))
        a("s_waitcnt lgkmcnt(0)")
    p4_stage(True)
    a.label("L_p4")
    p4_stage(False)
    a("s_cbranch_scc1 L_p4")
    st.cyc("p4loop")
    emit(a, place(p4_mfmas(0), spread(p4_reads(1, 1), 0, 1)))
    a("s_waitcnt lgkmcnt(0)")
    PK = QP

    def tile(tt, qt):
        return A4 + 4 * (3 * tt + qt)
    order = [(2 * qt, (0, qt), (1, qt)) for qt in range(3)] + [(2 * qt + 1, (2, qt), (3, qt)) for qt in range(3)] + [(6, (4, 0), (4, 1))]
    ep = []
    for n, (bi, t0, t1) in enumerate(order):
        d = PK + 4 * n
        ep.append([cvt(d, tile(*t0)), cvt(d + 1, tile(*t0) + 2), cvt(d + 2, tile(*t1)), cvt(d + 3, tile(*t1) + 2),
                   f"s_mov_b32 s3, {1024 * bi}",
                   f"buffer_store_dwordx4 {v(d, 4)}, {v(AP)}, {s(R_P, 4)}, s3 offen sc1"])
    ep.append([cvt(PK + 28, tile(4, 2)), cvt(PK + 29, tile(4, 2) + 2),
               f"buffer_store_dwordx2 {v(PK + 28, 2)}, {v(AP2)}, {s(R_P, 4)}, 0 offen sc1"])
    flat = sum(ep, [])
    mm = p4_mfmas(1)
    sl = spread(flat[:6], 10, 2)
    emit(a, place(mm, sl))
    emit(a, flat[6:])
    st.cyc("pstore")
    a("s_waitcnt vmcnt(0)")
    a("s_mov_b64 exec, 1")
    a(f"buffer_store_dwordx2 {v(TG, 2)}, {v(AFL)}, {s(R_F, 4)}, {s(S_K3)} offen sc1")
    st.cyc("flag2")
    st.real("real1")
    st.flush("C")
    a("s_endpgm")


def reduce_addr(a, tid, vtmp, A0, A1, s_g8):
    SG, W, C, X, Y, OFFS = vtmp, vtmp + 1, vtmp + 2, vtmp + 3, vtmp + 4, vtmp + 5
    a(f"s_mul_i32 s3, {s_g8}, 240")
    a(f"v_add_u32 {v(SG)}, s3, {v(tid)}")
    a(f"v_lshlrev_b32 {v(OFFS)}, 4, {v(SG)}")
    a(f"v_mul_u32_u24 {v(W)}, 2185, {v(SG)}")
    a(f"v_lshrrev_b32 {v(W)}, 20, {v(W)}")
    a(f"v_mul_u32_u24 {v(X)}, 480, {v(W)}")
    a(f"v_sub_u32 {v(C)}, {v(SG)}, {v(X)}")
    a(f"v_and_b32 {v(X)}, 1, {v(W)}")
    a(f"v_mul_u32_u24 {v(X)}, {48 * 1280}, {v(X)}")
    a(f"v_lshrrev_b32 {v(W)}, 1, {v(W)}")
    a(f"v_mul_u32_u24 {v(W)}, 160, {v(W)}")
    a(f"v_add_u32 {v(W)}, {v(W)}, {v(X)}")
    a(f"v_lshrrev_b32 {v(SG)}, 6, {v(C)}")
    a(f"v_and_b32 {v(C)}, 63, {v(C)}")
    a(f"v_cmp_eq_u32 vcc, 7, {v(SG)}")
    a(f"v_lshlrev_b32 {v(X)}, 1, {v(C)}")
    a("s_nop 0")
    a(f"v_cndmask_b32 {v(C)}, {v(C)}, {v(X)}, vcc")
    a(f"v_and_b32 {v(X)}, 15, {v(C)}")
    a(f"v_mul_u32_u24 {v(X)}, 1280, {v(X)}")
    a(f"v_lshrrev_b32 {v(C)}, 4, {v(C)}")
    a(f"v_lshl_add_u32 {v(X)}, {v(C)}, 3, {v(X)}")
    a(f"v_add_u32 {v(W)}, {v(W)}, {v(X)}")
    a(f"v_lshrrev_b32 {v(X)}, 1, {v(SG)}")
    a(f"v_mul_u32_u24 {v(X)}, {16 * 1280}, {v(X)}")
    a(f"v_and_b32 {v(Y)}, 1, {v(SG)}")
    a(f"v_lshl_add_u32 {v(X)}, {v(Y)}, 6, {v(X)}")
    a(f"v_mov_b32 {v(Y)}, 32")
    a(f"v_cmp_eq_u32 vcc, 6, {v(SG)}")
    a(f"v_mov_b32 {v(C)}, 128")
    a(f"v_mov_b32 {v(A1)}, {16 * 1280}")
    a(f"v_cndmask_b32 {v(X)}, {v(X)}, {v(C)}, vcc")
    a(f"v_cndmask_b32 {v(Y)}, {v(Y)}, {v(A1)}, vcc")
    a(f"v_cmp_eq_u32 vcc, 7, {v(SG)}")
    a(f"v_mov_b32 {v(C)}, {32 * 1280 + 128}")
    a(f"v_mov_b32 {v(A1)}, 1280")
    a(f"v_cndmask_b32 {v(X)}, {v(X)}, {v(C)}, vcc")
    a(f"v_cndmask_b32 {v(Y)}, {v(Y)}, {v(A1)}, vcc")
    a(f"v_add_u32 {v(A0)}, {v(W)}, {v(X)}")
    a(f"v_add_u32 {v(A1)}, {v(A0)}, {v(Y)}")
    return OFFS


def gen_loader(a, cfg):
    st = Stamps(a, cfg)
    st.n = 2
    st.names = ["real0", "cyc0"]
    R_X, R_WQ, R_K, R_V, R_T = 8, 12, 16, 20, 56
    R_WO, R_OI, R_PI, R_OUT = 8, 12, 16, 20
    S_LW, S_SW, S_SX, S_LDS, S_N, S_KK, S_PK = 50, 51, 52, 53, 54, 55, 49
    S_MW, S_MX, S_LDO = 62, 63, 7
    OW, OX, OK_, OV, OWO, OO = 16, 22, 25, 34, 43, 48
    RRc, UUc = 52, 55
    AT, AF1, AF2, TG, PT = 58, 59, 60, 62, 64
    A0, A1, RT = 66, 67, 68
    JK = 74
    T0, T1, T2 = 4, 5, 6
    ntx = "nt" if cfg.ntx else ""

    a(f"s_sub_u32 {s(S_LW)}, {s(S_WAVE)}, 4")
    for c in range(3):
        a(f"v_add_u32 {v(T0)}, {64 * c}, v0")
        a(f"v_mul_u32_u24 {v(T1)}, 2731, {v(T0)}")
        a(f"v_lshrrev_b32 {v(RRc + c)}, 16, {v(T1)}")
        a(f"v_mul_u32_u24 {v(T1)}, 24, {v(RRc + c)}")
        a(f"v_sub_u32 {v(UUc + c)}, {v(T0)}, {v(T1)}")
    a(f"s_mul_i32 s3, {s(S_LW)}, 3")
    a(f"v_lshrrev_b32 {v(T2)}, 4, v0")
    a(f"v_and_b32 v7, 7, v0")
    a(f"v_lshrrev_b32 v8, 3, v0")
    for c in range(3):
        a(f"s_add_u32 s4, s3, {c}")
        a("s_lshl_b32 s6, s4, 3")
        a("s_and_b32 s4, s4, 1")
        a("s_lshl_b32 s4, s4, 2")
        a(f"v_or_b32 {v(T0)}, s4, {v(T2)}")
        a(f"v_xor_b32 {v(T0)}, {v(T0)}, v7")
        a(f"v_add_u32 {v(T1)}, s6, v8")
        a(f"v_mul_u32_u24 {v(T1)}, 1280, {v(T1)}")
        a(f"v_lshl_add_u32 {v(OX + c)}, {v(T0)}, 4, {v(T1)}")
    a(f"s_lshl_b32 s3, {s(S_LW)}, 4")
    for aa in range(2):
        for c in range(3):
            a(f"v_bfe_u32 {v(T0)}, {v(RRc + c)}, 1, 1")
            a(f"v_or_b32 {v(T0)}, {2 * aa}, {v(T0)}")
            a(f"v_lshlrev_b32 {v(T0)}, 1, {v(T0)}")
            a(f"v_xor_b32 {v(T0)}, {v(T0)}, {v(UUc + c)}")
            a(f"s_add_u32 s4, s3, {8 * aa}")
            a(f"v_add_u32 {v(T1)}, s4, {v(RRc + c)}")
            a(f"v_mul_u32_u24 {v(T1)}, 12288, {v(T1)}")
            a(f"v_lshl_add_u32 {v(OW + 3 * aa + c)}, {v(T0)}, 4, {v(T1)}")
    a(f"s_mul_i32 {s(S_MW)}, {s(S_LW)}, 6144")
    a(f"s_mul_i32 {s(S_MX)}, {s(S_LW)}, 3072")
    a(f"s_add_u32 {s(S_MX)}, {s(S_MX)}, 24576")
    if cfg.rot == 0:
        a(f"s_mov_b32 {s(S_KK)}, 0")
    elif cfg.rot in (1, 3):
        a(f"s_mul_i32 s3, {s(S_HH)}, 5")
        a("s_add_u32 s3, s3, 1")
        a("s_lshr_b32 s3, s3, 1")
        a(f"s_add_u32 s3, s3, {s(S_B)}")
        if cfg.rot == 3:
            a(f"s_add_u32 s3, s3, {s(S_G8)}")
        for _ in range(2):
            a("s_sub_u32 s4, s3, 10")
            a("s_cmp_ge_u32 s3, 10")
            a("s_cselect_b32 s3, s4, s3")
        a(f"s_mov_b32 {s(S_KK)}, s3")
    else:
        R = cfg.rot - 2
        a(f"s_add_u32 s3, {s(S_B)}, {s(S_HH)}")
        for _ in range(10 // R + 1):
            a(f"s_sub_u32 s4, s3, {R}")
            a(f"s_cmp_ge_u32 s3, {R}")
            a("s_cselect_b32 s3, s4, s3")
        a("s_mul_i32 s3, s3, 10")
        a(f"s_mul_i32 s3, s3, {(65536 + R - 1) // R}")
        a("s_lshr_b32 s3, s3, 16")
        a(f"s_add_u32 s3, s3, {s(S_G8)}")
        a("s_sub_u32 s4, s3, 10")
        a("s_cmp_ge_u32 s3, 10")
        a("s_cselect_b32 s3, s4, s3")
        a(f"s_mov_b32 {s(S_KK)}, s3")
    a(f"s_mov_b32 {s(S_LDS)}, 0")
    a("s_waitcnt lgkmcnt(0)")
    st.cyc("karg", True)
    a(f"s_mul_i32 s3, {s(S_B)}, 122880")
    srd(a, R_X, S_X, "s3", 122880)
    a(f"s_mul_i32 s3, {s(S_H)}, 384")
    a("s_sub_u32 s4, 7864320, s3")
    srd(a, R_WQ, S_WQ, "s3", "s4")

    def stage():
        a(f"s_mul_i32 {s(S_SW)}, {s(S_KK)}, {64 * 12288}")
        a(f"s_lshl_b32 {s(S_SX)}, {s(S_KK)}, 7")
        a(f"s_add_u32 s3, {s(S_LDS)}, {s(S_MW)}")
        a(f"s_add_u32 s4, {s(S_LDS)}, {s(S_MX)}")
        for c in range(3):
            dma(a, OX + c, R_X, s(S_SX), "s4", 1024 * c, ntx)
        for p in range(6):
            dma(a, OW + p, R_WQ, s(S_SW), "s3", 1024 * p, "nt" if cfg.ntwq else "")
        a(f"s_add_u32 {s(S_KK)}, {s(S_KK)}, 1")
        a(f"s_cmp_eq_u32 {s(S_KK)}, 10")
        a(f"s_cselect_b32 {s(S_KK)}, 0, {s(S_KK)}")
        a(f"s_add_u32 {s(S_LDS)}, {s(S_LDS)}, {SLOT}")
        a(f"s_cmp_eq_u32 {s(S_LDS)}, {3 * SLOT}")
        a(f"s_cselect_b32 {s(S_LDS)}, 0, {s(S_LDS)}")

    a(f"s_mov_b32 {s(S_N)}, 0")
    a.label("L_lpro")
    stage()
    a(f"s_add_u32 {s(S_N)}, {s(S_N)}, 1")
    a(f"s_cmp_lt_u32 {s(S_N)}, 2")
    a("s_cbranch_scc1 L_lpro")
    st.cyc("issued")
    epoch_load(a)
    a(f"s_lshl_b32 s3, {s(S_B)}, 5")
    a(f"s_add_u32 s3, s3, {s(S_H)}")
    a("s_mul_i32 s3, s3, 36864")
    srd(a, R_K, S_K, "s3", 36864)
    srd(a, R_V, S_V, "s3", 36864)
    a(f"s_mov_b32 s3, {OFF_F}")
    srd(a, R_F, S_WS, "s3", 262144)
    a(f"s_mul_i32 s3, {s(S_G8)}, 983040")
    srd(a, R_T, S_WO, "s3", 983040)
    a(f"s_mul_i32 s3, {s(S_LW)}, 24")
    for a2 in range(3):
        a(f"s_mul_i32 s4, {s(S_LW)}, 3")
        a(f"s_add_u32 s4, s4, {a2}")
        a("s_and_b32 s4, s4, 1")
        a("s_lshl_b32 s4, s4, 2")
        a(f"s_add_u32 s6, s3, {8 * a2}")
        for c in range(3):
            a(f"v_lshrrev_b32 {v(T0)}, 1, {v(RRc + c)}")
            a(f"v_add_u32 {v(T1)}, s6, {v(RRc + c)}")
            a(f"v_mul_u32_u24 {v(T1)}, 384, {v(T1)}")
            a(f"v_or_b32 {v(T2)}, s4, {v(T0)}")
            a(f"v_xor_b32 {v(T2)}, {v(T2)}, {v(UUc + c)}")
            a(f"v_lshl_add_u32 {v(OK_ + 3 * a2 + c)}, {v(T2)}, 4, {v(T1)}")
            a(f"v_lshlrev_b32 {v(T2)}, 1, {v(T0)}")
            a(f"v_xor_b32 {v(T2)}, {v(T2)}, {v(UUc + c)}")
            a(f"v_lshl_add_u32 {v(OV + 3 * a2 + c)}, {v(T2)}, 4, {v(T1)}")
    a(f"s_lshl_b32 s3, {s(S_LW)}, 4")
    for c in range(5):
        a(f"v_add_u32 {v(T0)}, {64 * c}, v0")
        a(f"v_mul_u32_u24 {v(T1)}, 3277, {v(T0)}")
        a(f"v_lshrrev_b32 {v(T1)}, 16, {v(T1)}")
        a(f"v_mul_u32_u24 {v(T2)}, 20, {v(T1)}")
        a(f"v_sub_u32 {v(T0)}, {v(T0)}, {v(T2)}")
        a(f"v_bfe_u32 {v(T2)}, {v(T1)}, 2, 1")
        a(f"v_lshlrev_b32 {v(T2)}, 1, {v(T2)}")
        a(f"v_xor_b32 {v(T0)}, {v(T0)}, {v(T2)}")
        a(f"v_add_u32 {v(T1)}, s3, {v(T1)}")
        a(f"v_mul_u32_u24 {v(T1)}, 1280, {v(T1)}")
        a(f"v_lshl_add_u32 {v(OWO + c)}, {v(T0)}, 4, {v(T1)}")
    a(f"s_mul_i32 s3, {s(S_LW)}, 3072")
    for c in range(3):
        a(f"s_add_u32 s4, s3, {1024 * c}")
        a(f"v_lshl_add_u32 {v(OO + c)}, v0, 4, s4")
    a("s_lshr_b32 s3, s2, 3")
    a("s_lshl_b32 s3, s3, 2")
    a(f"s_add_u32 s3, s3, {s(S_LW)}")
    a("s_mul_i32 s3, s3, 7680")
    a(f"v_min_u32 {v(T0)}, 59, v0")
    a(f"v_lshl_add_u32 {v(AT)}, {v(T0)}, 7, s3")
    a(f"s_lshl_b32 s3, {s(S_B)}, 3")
    a(f"s_add_u32 s3, s3, {s(S_G8)}")
    a("s_lshl_b32 s3, s3, 7")
    a(f"v_and_b32 {v(T0)}, 15, v0")
    a(f"v_lshl_add_u32 {v(AF1)}, {v(T0)}, 3, s3")
    a(f"s_lshl_b32 s3, {s(S_B)}, 2")
    a(f"s_add_u32 s3, s3, {s(S_HH)}")
    a("s_lshl_b32 s3, s3, 2")
    a(f"s_lshr_b32 s4, {s(S_G8)}, 1")
    a("s_add_u32 s3, s3, s4")
    a("s_lshl_b32 s3, s3, 7")
    a(f"s_add_u32 s3, s3, {F2}")
    a(f"v_and_b32 {v(T0)}, 7, v0")
    a(f"v_lshl_add_u32 {v(AF2)}, {v(T0)}, 3, s3")
    a(f"s_lshl_b32 s4, {s(S_LW)}, 6")
    a(f"v_add_u32 v7, s4, v0")
    a(f"v_min_u32 v7, 239, v7")
    offs = reduce_addr(a, 7, RT, A0, A1, s(S_G8))
    if cfg.kpos == 9:
        a("s_lshr_b32 s3, s2, 3")
        a(f"s_add_u32 s3, s3, {s(S_G8)}")
        a("s_and_b32 s3, s3, 7")
        a(f"s_add_u32 {s(S_PK)}, s3, 1")
    else:
        a(f"s_mov_b32 {s(S_PK)}, {cfg.kpos}")
    st.cyc("lsetup", True)
    a("s_waitcnt lgkmcnt(0)")
    st.cyc("epoch", True)
    epoch_tag(a)
    a(f"v_mov_b32 {v(TG)}, {s(S_TAG)}")
    a(f"v_mov_b32 {v(TG + 1)}, {s(S_TAG + 1)}")

    def issue_kv(off, srd_, base):
        a(f"s_mul_i32 s3, {s(S_LW)}, 9216")
        a(f"s_add_u32 s3, s3, {base}")
        for p in range(9):
            dma(a, off + p, srd_, "0", "s3", 1024 * p, "nt" if cfg.ntkv else "")
    a("s_waitcnt vmcnt(9)")
    st.cyc("landed0")
    a("s_barrier")
    a(f"s_mov_b32 {s(S_N)}, 0")
    a.label("L_lloop")
    if cfg.kpos != 8:
        a(f"s_cmp_eq_u32 {s(S_N)}, {s(S_PK)}")
        a("s_cbranch_scc0 L_nok")
        issue_kv(OK_, R_K, A_K)
        a.label("L_nok")
    stage()
    a("s_waitcnt vmcnt(9)")
    a("s_barrier")
    a(f"s_add_u32 {s(S_N)}, {s(S_N)}, 1")
    a(f"s_cmp_lt_u32 {s(S_N)}, 8")
    a("s_cbranch_scc1 L_lloop")
    st.cyc("b8")
    a(f"s_cmp_eq_u32 {s(S_PK)}, 8")
    a("s_cbranch_scc0 L_vonly")
    issue_kv(OK_, R_K, A_K)
    a("s_waitcnt vmcnt(9)")
    a("s_barrier")
    issue_kv(OV, R_V, A_V)
    a("s_branch L_kvdone")
    a.label("L_vonly")
    issue_kv(OV, R_V, A_V)
    a("s_waitcnt vmcnt(9)")
    a("s_barrier")
    a.label("L_kvdone")
    ntouch = 0
    if cfg.touch:
        a(f"buffer_load_dword {v(JK)}, {v(AT)}, {s(R_T, 4)}, 0 offen {'nt' if cfg.nttouch else ''}")
        ntouch = 1
    a(f"s_waitcnt vmcnt({9 + ntouch})")
    st.cyc("Kland")
    a("s_barrier")
    a(f"s_mul_i32 s3, {s(S_G8)}, 983040")
    a(f"s_mul_i32 s4, {s(S_HH)}, 320")
    a("s_add_u32 s3, s3, s4")
    a("s_sub_u32 s4, 7864320, s3")
    srd(a, R_WO, S_WO, "s3", "s4")
    a(f"s_lshl_b32 s3, {s(S_B)}, 3")
    a(f"s_add_u32 s3, s3, {s(S_G8)}")
    a(f"s_mul_i32 s3, s3, {4 * 36864}")
    srd(a, R_OI, S_WS, "s3", 4 * 36864)
    a(f"s_lshl_b32 s3, {s(S_B)}, 2")
    a(f"s_add_u32 s3, s3, {s(S_HH)}")
    a(f"s_mul_i32 s3, s3, {8 * 30720}")
    a(f"s_add_u32 s3, s3, {OFF_P}")
    srd(a, R_PI, S_WS, "s3", 8 * 30720)
    a(f"s_mul_i32 {s(S_MW)}, {s(S_LW)}, 5120")
    a(f"s_add_u32 {s(S_MW)}, {s(S_MW)}, {WO0}")
    a(f"s_mul_i32 {s(S_MX)}, {s(S_LW)}, 3072")
    a(f"s_mul_i32 {s(S_KK)}, {s(S_HH)}, 3")
    a(f"s_add_u32 {s(S_PK)}, {s(S_KK)}, 3")
    a(f"s_cmp_eq_u32 {s(S_PK)}, 12")
    a(f"s_cselect_b32 {s(S_PK)}, 0, {s(S_PK)}")
    a(f"s_mov_b32 {s(S_LDS)}, 0")
    a(f"s_mov_b32 {s(S_LDO)}, {3 * OS}")
    a("s_barrier")
    a(f"s_waitcnt vmcnt({ntouch})")
    st.cyc("Vland")
    a("s_barrier")
    a(f"s_mul_i32 s3, {s(S_B)}, 122880")
    a(f"s_mul_i32 s4, {s(S_HH)}, 320")
    a("s_add_u32 s3, s3, s4")
    a("s_sub_u32 s4, 983040, s3")
    srd(a, R_OUT, S_OUT, "s3", "s4")
    a("s_barrier")
    a("s_barrier")
    a("s_barrier")

    def wo_stage():
        a(f"s_mul_i32 {s(S_SW)}, {s(S_KK)}, {64 * 1280}")
        a(f"s_add_u32 s3, {s(S_LDS)}, {s(S_MW)}")
        for p in range(5):
            dma(a, OWO + p, R_WO, s(S_SW), "s3", 1024 * p, "nt" if cfg.ntwo else "")
        a(f"s_add_u32 {s(S_KK)}, {s(S_KK)}, 1")
        a(f"s_cmp_eq_u32 {s(S_KK)}, 12")
        a(f"s_cselect_b32 {s(S_KK)}, 0, {s(S_KK)}")
        a(f"s_add_u32 {s(S_LDS)}, {s(S_LDS)}, {WOS}")
        a(f"s_cmp_eq_u32 {s(S_LDS)}, {4 * WOS}")
        a(f"s_cselect_b32 {s(S_LDS)}, 0, {s(S_LDS)}")

    def o_stage():
        a(f"s_mul_i32 {s(S_SX)}, {s(S_PK)}, {OS}")
        a(f"s_add_u32 s4, {s(S_LDO)}, {s(S_MX)}")
        for c in range(3):
            dma(a, OO + c, R_OI, s(S_SX), "s4", 1024 * c, "sc1" if cfg.osc1 else "")
        a(f"s_add_u32 {s(S_PK)}, {s(S_PK)}, 1")
        a(f"s_cmp_eq_u32 {s(S_PK)}, 12")
        a(f"s_cselect_b32 {s(S_PK)}, 0, {s(S_PK)}")
        a(f"s_add_u32 {s(S_LDO)}, {s(S_LDO)}, {OS}")
        a(f"s_cmp_eq_u32 {s(S_LDO)}, {6 * OS}")
        a(f"s_cselect_b32 {s(S_LDO)}, 0, {s(S_LDO)}")
    wo_stage()
    wo_stage()
    a("s_waitcnt vmcnt(5)")
    st.cyc("wo0")
    a("s_barrier")
    wo_stage()
    wo_stage()
    a("s_waitcnt vmcnt(10)")
    a("s_barrier")
    wo_stage()
    a("s_waitcnt vmcnt(10)")
    a("s_barrier")
    wo_stage()
    st.cyc("poll1")
    poll(a, "L_poll1", AF1, PT, TG)
    st.cyc("seen1")
    o_stage()
    o_stage()
    o_stage()
    a("s_waitcnt vmcnt(6)")
    st.cyc("o3")
    a("s_barrier")
    wo_stage()
    o_stage()
    a("s_waitcnt vmcnt(11)")
    a("s_barrier")
    wo_stage()
    o_stage()
    a("s_waitcnt vmcnt(16)")
    a("s_barrier")
    a(f"s_mov_b32 {s(S_N)}, 0")
    a.label("L_l4")
    wo_stage()
    o_stage()
    a("s_waitcnt vmcnt(16)")
    a("s_barrier")
    a(f"s_add_u32 {s(S_N)}, {s(S_N)}, 1")
    a(f"s_cmp_lt_u32 {s(S_N)}, 4")
    a("s_cbranch_scc1 L_l4")
    a("s_waitcnt vmcnt(8)")
    a("s_barrier")
    a("s_waitcnt vmcnt(0)")
    st.cyc("s11")
    a("s_barrier")
    poll(a, "L_poll2", AF2, PT, TG)
    st.cyc("seen2")
    D0 = 80
    for g in range(8):
        a(f"s_mov_b32 s3, {30720 * g}")
        a(f"buffer_load_dwordx4 {v(D0 + 4 * g, 4)}, {v(offs)}, {s(R_PI, 4)}, s3 offen sc1")
    AC = 120
    for g in range(8):
        a(f"s_waitcnt vmcnt({7 - g})")
        for r in range(4):
            src = D0 + 4 * g + r
            if g == 0:
                a(f"v_lshlrev_b32 {v(AC + 2 * r)}, 16, {v(src)}")
                a(f"v_and_b32 {v(AC + 2 * r + 1)}, 0xffff0000, {v(src)}")
            else:
                a(f"v_lshlrev_b32 v4, 16, {v(src)}")
                a(f"v_and_b32 v5, 0xffff0000, {v(src)}")
                a(f"v_pk_add_f32 {v(AC + 2 * r, 2)}, {v(AC + 2 * r, 2)}, v[4:5]")
    for r in range(4):
        a(cvt(D0 + r, AC + 2 * r))
    a(f"buffer_store_dwordx2 {v(D0, 2)}, {v(A0)}, {s(R_OUT, 4)}, 0 offen")
    a(f"buffer_store_dwordx2 {v(D0 + 2, 2)}, {v(A1)}, {s(R_OUT, 4)}, 0 offen")
    a(f"s_or_b32 s3, {s(S_G8)}, {s(S_HH)}")
    a(f"s_or_b32 s3, s3, {s(S_LW)}")
    a("s_cmp_eq_u32 s3, 0")
    a("s_cbranch_scc0 L_noep")
    a(f"s_lshl_b32 s3, {s(S_B)}, 7")
    a(f"s_add_u32 s3, s3, {FX}")
    a("v_mov_b32 v4, 0")
    a("s_mov_b64 exec, 1")
    a(f"buffer_store_dwordx2 {v(TG, 2)}, v4, {s(R_F, 4)}, s3 offen")
    a.label("L_noep")
    if cfg.diag:
        a("s_waitcnt vmcnt(0)")
    st.cyc("end")
    st.real("real1")
    st.flush("L")


def generate(cfg):
    a = Asm()
    a.lines.append("; @launch grid=(256,1,1) block=(512,1,1) lds=163840")
    a('.amdgcn_target "amdgcn-amd-amdhsa--gfx950"')
    a(".text")
    a(kernel_header(KN))
    a("s_cmp_ge_u32 s2, 256")
    a("s_cbranch_scc1 L_end")
    a("s_load_dwordx16 s[32:47], s[0:1], 0")
    if cfg.diag:
        a(f"s_memrealtime {s(S_T, 2)}")
        a(f"s_memtime {s(S_T + 2, 2)}")
    a("v_lshrrev_b32 v1, 6, v0")
    a("v_and_b32 v0, 63, v0")
    a(f"v_readfirstlane_b32 {s(S_WAVE)}, v1")
    a(f"s_and_b32 {s(S_G8)}, s2, 7")
    a("s_lshr_b32 s4, s2, 3")
    a(f"s_lshr_b32 {s(S_B)}, s4, 2")
    a(f"s_and_b32 {s(S_HH)}, s4, 3")
    a(f"s_lshl_b32 s3, {s(S_G8)}, 2")
    a(f"s_add_u32 {s(S_H)}, s3, {s(S_HH)}")
    a(f"s_cmp_lt_u32 {s(S_WAVE)}, 4")
    a("s_cbranch_scc1 L_compute")
    gen_loader(a, cfg)
    a.label("L_end")
    a("s_endpgm")
    a.label("L_compute")
    a("s_waitcnt lgkmcnt(0)")
    gen_compute(a, cfg)
    a('.section .rodata,"a"')
    a(".p2align 6")
    a(kernel_desc(KN))
    return a.text()


if __name__ == "__main__":
    cfg = Cfg()
    out = sys.argv[1]
    for opt in sys.argv[2:]:
        k, val = opt.split("=")
        assert hasattr(cfg, k), k
        setattr(cfg, k, int(val))
    t = generate(cfg)
    pr = hazard.check(t)
    for p in pr:
        print(f"HAZARD line {p[0]} -> {p[1]}: need {p[2]} have {p[3]}\n    {p[4]}\n    {p[5]}")
    open(out, "w").write(t)
    print(out, "hazards:", len(pr), "lines:", t.count("\n"))
```

```python
import struct
import sys

from asmlib import Asm, v, s, kernel_header, kernel_desc, interleave
import hazard

KN = "standalone__gqa_block_cached__near_ridge_kernel"
OFF_O = 0
OFF_P = 16 << 20
OFF_F = 32 << 20
F1, F2, FX = 0, 65536, 131072
OFF_T = 64 << 20
SLOT = 36864
A_K = 3 * SLOT
A_V = 1 * SLOT
A_Q = 2 * SLOT
A_P = 2 * SLOT
A_M = 163840 - 768
A_TAG = A_M - 8
WO0, WOS = 81920, 20480
OS = 12288
CEXP = 0.07216878364870322 * 1.4426950408889634
TAGC = (0x9E3779B9, 0x7F4A7C15)
SPIN_MAX = 1 << 21


def f32bits(x):
    return struct.unpack("<I", struct.pack("<f", x))[0]


class Cfg:
    diag = 0
    prio = 0
    rot = 0
    t0 = 6
    rao = 1
    f1sc1 = 1
    pre = 2
    dynred = 1
    kpos = 8
    ntx = 0
    ra4 = 1
    touch = 1
    nttouch = 0
    ntwo = 0
    ntwq = 0
    ntkv = 0
    osc1 = 1
    stsc1 = 1


S_X, S_K, S_V, S_WQ, S_WO, S_OUT, S_DBG, S_WS = 32, 34, 36, 38, 40, 42, 44, 46
S_B, S_H, S_WAVE, S_G8, S_HH = 28, 29, 30, 31, 48
S_TAG = 60
R_F = 24
S_T = 64


class Stamps:
    def __init__(self, a, cfg):
        self.a, self.on, self.n = a, cfg.diag, 0
        self.fine = cfg.diag > 1
        self.names = []

    def real(self, name):
        if self.on:
            self.a(f"s_memrealtime {s(S_T + 2 * self.n, 2)}")
            self.names.append(name)
            self.n += 1

    def cyc(self, name, fine=False):
        if self.on and (not fine or self.fine):
            self.a(f"s_memtime {s(S_T + 2 * self.n, 2)}")
            self.names.append(name)
            self.n += 1

    def flush(self, role, vt=4):
        if not self.on:
            return
        a = self.a
        assert self.n <= 19, self.n
        a("s_waitcnt lgkmcnt(0) vmcnt(0)")
        a(f"; STAMPS {role} " + " ".join(self.names))
        a("s_lshl_b32 s3, s2, 3")
        a(f"s_add_u32 s3, s3, {s(S_WAVE)}")
        a("s_lshl_b32 s3, s3, 8")
        a(f"s_add_u32 s3, s3, {OFF_T}")
        a(f"s_add_u32 s4, {s(S_WS)}, s3")
        a(f"s_addc_u32 s5, {s(S_WS + 1)}, 0")
        a("s_mov_b64 exec, 1")
        a(f"v_mov_b32 {v(vt + 2)}, 0")
        for i in range(self.n):
            a(f"v_mov_b32 {v(vt)}, {s(S_T + 2 * i)}")
            a(f"v_mov_b32 {v(vt + 1)}, {s(S_T + 2 * i + 1)}")
            a(f"global_store_dwordx2 {v(vt + 2)}, {v(vt, 2)}, s[4:5] offset:{8 * i}")
            a("s_nop 1")
        a("s_waitcnt vmcnt(0)")


def srd(a, d, base, off_sgpr, size):
    if off_sgpr is None:
        a(f"s_mov_b32 {s(d)}, {s(base)}")
        a(f"s_mov_b32 {s(d + 1)}, {s(base + 1)}")
    else:
        a(f"s_add_u32 {s(d)}, {s(base)}, {off_sgpr}")
        a(f"s_addc_u32 {s(d + 1)}, {s(base + 1)}, 0")
    a(f"s_mov_b32 {s(d + 2)}, {size}")
    a(f"s_mov_b32 {s(d + 3)}, 0x20000")


def dma(a, voff, srd_, soff, base, imm, fl=""):
    a(f"s_add_u32 m0, {base}, {imm}")
    a("s_nop 0")
    a(f"buffer_load_dwordx4 {v(voff)}, {s(srd_, 4)}, {soff} offen {fl} lds")


def mfma(d, a_, b_, c=None):
    cs = v(d, 4) if c is None else str(c)
    return f"v_mfma_f32_16x16x32_bf16 {v(d, 4)}, {v(a_, 4)}, {v(b_, 4)}, {cs}"


def trread(d, addr, off):
    assert 0 <= off < 65536
    return f"ds_read_b64_tr_b16 {v(d, 2)}, {v(addr)} offset:{off}"


def rd128(d, addr, off):
    assert 0 <= off < 65536
    return f"ds_read_b128 {v(d, 4)}, {v(addr)} offset:{off}"


def rd64(d, addr, off):
    assert 0 <= off < 65536
    return f"ds_read_b64 {v(d, 2)}, {v(addr)} offset:{off}"


def cvt(d, t):
    return f"v_cvt_pk_bf16_f32 {v(d)}, {v(t)}, {v(t + 1)}"


def emit(a, lst):
    for x in lst:
        a(x)


def place(main, slots):
    out = list(slots.get(-1, []))
    for i, m in enumerate(main):
        out.append(m)
        out.extend(slots.get(i, []))
    return out


def spread(fill, start, per=1, step=1, into=None):
    d = into if into is not None else {}
    i = start
    k = 0
    while k < len(fill):
        d.setdefault(i, []).extend(fill[k:k + per])
        k += per
        i += step
    return d


def epoch_load(a):
    a(f"s_lshl_b32 s3, {s(S_B)}, 7")
    a(f"s_add_u32 s3, s3, {OFF_F + FX}")
    a(f"s_add_u32 s4, {s(S_WS)}, s3")
    a(f"s_addc_u32 s5, {s(S_WS + 1)}, 0")
    a(f"s_load_dwordx2 {s(S_TAG, 2)}, s[4:5], 0")


def epoch_tag(a):
    a(f"s_add_u32 {s(S_TAG)}, {s(S_TAG)}, {TAGC[0]:#x}")
    a(f"s_addc_u32 {s(S_TAG + 1)}, {s(S_TAG + 1)}, {TAGC[1]:#x}")


def poll(a, name, vaddr, vtmp, vtag):
    a(f"s_mov_b32 s3, {SPIN_MAX}")
    a.label(name)
    a(f"buffer_load_dwordx2 {v(vtmp, 2)}, {v(vaddr)}, {s(R_F, 4)}, 0 offen sc1")
    a("s_sub_u32 s3, s3, 1")
    a("s_cmp_eq_u32 s3, 0")
    a(f"s_cbranch_scc1 {name}_out")
    a("s_waitcnt vmcnt(0)")
    a(f"v_cmp_ne_u64 vcc, {v(vtmp, 2)}, {v(vtag, 2)}")
    a("s_nop 1")
    a(f"s_cbranch_vccnz {name}")
    a.label(name + "_out")
    a("s_waitcnt vmcnt(0)")


def gen_compute(a, cfg):
    st = Stamps(a, cfg)
    st.n = 2
    st.names = ["real0", "cyc0"]
    R_O, R_P = 8, 12
    ACC, FR, QP, LS, ONES = 16, 88, 160, 196, 208
    AX, AY, AZ, AVo, AVp = 212, 216, 218, 230, 234
    AQW, AQR, AMW, AMR, APW, APR, APW2, APR2, AO, AOW = range(238, 248)
    AW, AB, AP, AP2, AFL, TG = 248, 250, 251, 252, 253, 254
    VM, VG, VF, T0, T1, T2 = 1, 2, 3, 4, 5, 6
    MX = 8
    S_I, S_J, S_C, S_D, S_CNT, S_SL, S_D2, S_SL2 = 50, 51, 52, 53, 54, 55, 56, 57
    S_K0, S_K1, S_K2, S_K3 = 58, 59, 62, 63

    if cfg.prio:
        a(f"s_setprio {cfg.prio}")
    a(f"s_lshr_b32 {s(S_I)}, {s(S_WAVE)}, 1")
    a(f"s_and_b32 {s(S_J)}, {s(S_WAVE)}, 1")
    a(f"s_mov_b32 {s(S_C)}, {f32bits(CEXP):#x}")
    a(f"v_and_b32 {v(VM)}, 15, v0")
    a(f"v_lshrrev_b32 {v(VG)}, 4, v0")
    a(f"v_lshrrev_b32 {v(T0)}, 2, {v(VM)}")
    a(f"v_lshl_add_u32 {v(T1)}, {v(VG)}, 3, {v(T0)}")
    a(f"v_mul_u32_u24 {v(T1)}, 384, {v(T1)}")
    a(f"v_and_b32 {v(T2)}, 3, {v(VM)}")
    a(f"v_lshl_add_u32 {v(T1)}, {v(T2)}, 3, {v(T1)}")
    a(f"v_and_b32 {v(T2)}, 1, {v(VG)}")
    a(f"v_lshrrev_b32 {v(VF)}, 3, {v(VM)}")
    a(f"v_lshl_or_b32 {v(VF)}, {v(T2)}, 1, {v(VF)}")
    a(f"s_mul_i32 s3, {s(S_I)}, 6")
    for c in range(4):
        a(f"s_add_u32 s4, s3, {c}")
        a("s_and_b32 s5, s4, 3")
        a("s_lshr_b32 s4, s4, 2")
        a("s_lshl_b32 s4, s4, 7")
        a(f"v_xor_b32 {v(T2)}, s5, {v(VF)}")
        a(f"v_lshl_add_u32 {v(T2)}, {v(T2)}, 5, {v(T1)}")
        a(f"v_add_u32 {v(AX + c)}, s4, {v(T2)}")
    a(f"s_mul_i32 s4, {s(S_J)}, 48")
    a(f"v_add_u32 {v(T1)}, s4, {v(VM)}")
    a(f"v_lshlrev_b32 {v(T1)}, 7, {v(T1)}")
    a(f"v_add_u32 {v(T1)}, 24576, {v(T1)}")
    a(f"v_lshrrev_b32 {v(VF)}, 1, {v(VM)}")
    for ks in range(2):
        a(f"v_add_u32 {v(T2)}, {4 * ks}, {v(VG)}")
        a(f"v_xor_b32 {v(T2)}, {v(T2)}, {v(VF)}")
        a(f"v_lshl_add_u32 {v(AY + ks)}, {v(T2)}, 4, {v(T1)}")
    for i in range(72):
        a(f"v_mov_b32 {v(ACC + i)}, 0")

    def late_setup():
        a("s_waitcnt lgkmcnt(0)")
        a(f"s_lshl_b32 s3, {s(S_B)}, 5")
        a(f"s_add_u32 s3, s3, {s(S_H)}")
        a("s_mul_i32 s3, s3, 36864")
        srd(a, R_O, S_WS, "s3", 36864)
        a(f"s_lshl_b32 s3, {s(S_B)}, 2")
        a(f"s_add_u32 s3, s3, {s(S_HH)}")
        a("s_lshl_b32 s3, s3, 3")
        a(f"s_add_u32 s3, s3, {s(S_G8)}")
        a("s_mul_i32 s3, s3, 30720")
        a(f"s_add_u32 s3, s3, {OFF_P}")
        srd(a, R_P, S_WS, "s3", 30720)
        a(f"s_mov_b32 s3, {OFF_F}")
        srd(a, R_F, S_WS, "s3", 262144)
        a(f"v_lshrrev_b32 {v(VF)}, 1, {v(VM)}")
        a(f"s_mul_i32 s4, {s(S_I)}, 48")
        a(f"v_add_u32 {v(T1)}, s4, {v(VM)}")
        a(f"v_mul_u32_u24 {v(T1)}, 384, {v(T1)}")
        a(f"v_and_b32 {v(T2)}, 1, {v(VG)}")
        a(f"v_lshl_add_u32 {v(T1)}, {v(T2)}, 3, {v(T1)}")
        a(f"v_add_u32 {v(T1)}, {A_K}, {v(T1)}")
        a(f"v_lshrrev_b32 {v(T0)}, 1, {v(VG)}")
        a(f"s_mul_i32 s7, {s(S_I)}, 3")
        for ls in range(6):
            a(f"s_add_u32 s4, s7, {ls}")
            a("s_sub_u32 s5, s4, 6")
            a("s_cmp_ge_u32 s4, 6")
            a("s_cselect_b32 s4, s5, s4")
            a("s_and_b32 s5, s4, 1")
            a("s_lshl_b32 s5, s5, 2")
            a("s_lshr_b32 s4, s4, 1")
            a("s_lshl_b32 s4, s4, 7")
            for hh in range(2):
                a(f"s_add_u32 s6, s5, {2 * hh}")
                a(f"v_or_b32 {v(T2)}, s6, {v(T0)}")
                a(f"v_xor_b32 {v(T2)}, {v(T2)}, {v(VF)}")
                a(f"v_lshl_add_u32 {v(T2)}, {v(T2)}, 4, {v(T1)}")
                a(f"v_add_u32 {v(AZ + 2 * ls + hh)}, s4, {v(T2)}")
        a(f"v_lshrrev_b32 {v(T0)}, 2, {v(VM)}")
        a(f"v_lshl_add_u32 {v(T0)}, {v(VG)}, 2, {v(T0)}")
        a(f"v_lshrrev_b32 {v(VF)}, 1, {v(T0)}")
        a(f"v_and_b32 {v(VF)}, 3, {v(VF)}")
        a(f"v_mul_u32_u24 {v(T1)}, 384, {v(T0)}")
        a(f"v_and_b32 {v(T2)}, 3, {v(VM)}")
        a(f"v_lshl_add_u32 {v(T1)}, {v(T2)}, 3, {v(T1)}")
        a(f"s_mul_i32 s6, {s(S_I)}, 18432")
        a(f"s_add_u32 s7, s6, {A_V}")
        a(f"s_sub_u32 s6, {A_V + 18432}, s6")
        a(f"s_mul_i32 s3, {s(S_I)}, 6")
        for c in range(4):
            a(f"s_add_u32 s4, s3, {c}")
            a("s_and_b32 s5, s4, 3")
            a("s_lshr_b32 s4, s4, 2")
            a("s_lshl_b32 s4, s4, 7")
            a(f"v_xor_b32 {v(T2)}, s5, {v(VF)}")
            a(f"v_lshl_add_u32 {v(T2)}, {v(T2)}, 5, {v(T1)}")
            a(f"v_add_u32 {v(T2)}, s4, {v(T2)}")
            a(f"v_add_u32 {v(AVo + c)}, s7, {v(T2)}")
            a(f"v_add_u32 {v(AVp + c)}, s6, {v(T2)}")
        a(f"v_mul_u32_u24 {v(T0)}, 320, {v(T0)}")
        a(f"v_and_b32 {v(T1)}, 3, {v(VM)}")
        a(f"v_lshl_add_u32 {v(T0)}, {v(T1)}, 3, {v(T0)}")
        a(f"v_add_u32 {v(T0)}, {WO0 + WOS}, {v(T0)}")
        a(f"v_and_b32 {v(T1)}, 1, {v(VG)}")
        a(f"s_mul_i32 s3, {s(S_I)}, 5")
        for par in range(2):
            a(f"s_add_u32 s4, s3, {par}")
            a(f"v_xor_b32 {v(T2)}, s4, {v(T1)}")
            a(f"v_lshl_add_u32 {v(AW + par)}, {v(T2)}, 5, {v(T0)}")
        a(f"s_xor_b32 s5, {s(S_WAVE)}, 2")
        a(f"v_lshlrev_b32 {v(T1)}, 4, v0")
        a(f"s_mul_i32 s3, {s(S_WAVE)}, 9216")
        a(f"s_add_u32 s3, s3, {A_Q}")
        a(f"v_add_u32 {v(AQW)}, s3, {v(T1)}")
        a(f"s_mul_i32 s3, s5, 9216")
        a(f"s_add_u32 s3, s3, {A_Q}")
        a(f"v_add_u32 {v(AQR)}, s3, {v(T1)}")
        a(f"s_mul_i32 s3, {s(S_WAVE)}, 4608")
        a(f"s_add_u32 s3, s3, {A_P}")
        a(f"v_add_u32 {v(APW)}, s3, {v(T1)}")
        a(f"v_lshl_add_u32 {v(APW2)}, v0, 3, s3")
        a(f"s_mul_i32 s3, s5, 4608")
        a(f"s_add_u32 s3, s3, {A_P}")
        a(f"v_add_u32 {v(APR)}, s3, {v(T1)}")
        a(f"v_lshl_add_u32 {v(APR2)}, v0, 3, s3")
        a(f"s_mul_i32 s3, {s(S_WAVE)}, 192")
        a(f"s_add_u32 s3, s3, {A_M}")
        a(f"v_lshl_add_u32 {v(AMW)}, {v(VM)}, 2, s3")
        a(f"s_mul_i32 s3, s5, 192")
        a(f"s_add_u32 s3, s3, {A_M}")
        a(f"v_lshl_add_u32 {v(AMR)}, {v(VM)}, 2, s3")
        a(f"s_mul_i32 s3, {s(S_I)}, 18")
        a(f"s_mul_i32 s4, {s(S_J)}, 3")
        a("s_add_u32 s3, s3, s4")
        a("s_lshl_b32 s3, s3, 10")
        a(f"v_add_u32 {v(AO)}, s3, {v(T1)}")
        a(f"s_mul_i32 s3, {s(S_J)}, 3072")
        a(f"v_add_u32 {v(AB)}, s3, {v(T1)}")
        a(f"s_mul_i32 s3, {s(S_WAVE)}, 7680")
        a(f"v_add_u32 {v(AP)}, s3, {v(T1)}")
        a("s_add_u32 s3, s3, 7168")
        a(f"v_lshl_add_u32 {v(AP2)}, v0, 3, s3")
        a(f"s_lshl_b32 s3, {s(S_B)}, 3")
        a(f"s_add_u32 s3, s3, {s(S_G8)}")
        a("s_lshl_b32 s3, s3, 4")
        a(f"s_lshl_b32 s4, {s(S_HH)}, 2")
        a("s_add_u32 s3, s3, s4")
        a(f"s_add_u32 s3, s3, {s(S_WAVE)}")
        a(f"s_lshl_b32 {s(S_K2)}, s3, 3")
        a(f"s_lshl_b32 s3, {s(S_B)}, 2")
        a(f"s_add_u32 s3, s3, {s(S_HH)}")
        a("s_lshl_b32 s3, s3, 2")
        a(f"s_add_u32 s3, s3, {s(S_WAVE)}")
        a("s_lshl_b32 s3, s3, 4")
        a(f"s_add_u32 s3, s3, {s(S_G8)}")
        a("s_lshl_b32 s3, s3, 3")
        a(f"s_add_u32 {s(S_K3)}, s3, {F2}")
        a(f"v_mov_b32 {v(AFL)}, 0")
        for i in range(4):
            a(f"v_mov_b32 {v(ONES + i)}, 0x3f803f80")
        a(f"v_mov_b32 {v(AOW)}, {A_TAG}")

    def fa(n, dt):
        return FR + 36 * n + 4 * dt

    def fb(n, qt):
        return FR + 36 * n + 24 + 4 * qt

    def p1_reads(n, ks):
        def A(dt):
            return [trread(fa(n, dt) + 2 * hh, AX + dt % 4, 384 * (32 * ks + 4 * hh) + 128 * (dt // 4)) for hh in range(2)]

        def B(qt):
            return [rd128(fb(n, qt), AY + ks, 2048 * qt)]
        r = B(0) + A(0) + B(1) + B(2)
        for dt in range(1, 6):
            r += A(dt)
        return r

    def qtile(dt, qt):
        return ACC + 4 * (3 * dt + qt)

    def p1_mfmas(n):
        return [mfma(qtile(dt, qt), fa(n, dt), fb(n, qt)) for dt in range(6) for qt in range(3)]

    adv = [f"v_add_u32 {v(AX + c)}, {s(S_D)}, {v(AX + c)}" for c in range(4)] + \
          [f"v_add_u32 {v(AY + c)}, {s(S_D)}, {v(AY + c)}" for c in range(2)]
    a(f"s_mov_b32 {s(S_SL)}, 0")
    a(f"s_mov_b32 {s(S_CNT)}, 0")
    a(f"s_mov_b32 {s(S_K0)}, {(-2 * SLOT) & 0xffffffff:#x}")
    a(f"s_mov_b32 {s(S_K1)}, {SLOT}")
    st.cyc("setup")
    a("s_barrier")
    st.cyc("b0")
    emit(a, p1_reads(0, 0))
    a("s_waitcnt lgkmcnt(0)")
    a.label("L_p1")
    sl = spread(p1_reads(1, 1), 0, 1)
    sl.setdefault(0, []).append(f"s_add_u32 {s(S_SL)}, {s(S_SL)}, 1")
    sl.setdefault(1, []).append(f"s_cmp_eq_u32 {s(S_SL)}, 3")
    sl.setdefault(2, []).append(f"s_cselect_b32 {s(S_D)}, {s(S_K0)}, {s(S_K1)}")
    sl.setdefault(3, []).append(f"s_cselect_b32 {s(S_SL)}, 0, {s(S_SL)}")
    spread(adv, 15, 2, into=sl)
    emit(a, place(p1_mfmas(0), sl))
    a("s_waitcnt lgkmcnt(0)")
    a("s_barrier")
    sl = spread(p1_reads(0, 0), 0, 1)
    sl.setdefault(15, []).append(f"s_add_u32 {s(S_CNT)}, {s(S_CNT)}, 1")
    sl.setdefault(16, []).append(f"s_cmp_lt_u32 {s(S_CNT)}, 9")
    emit(a, place(p1_mfmas(1), sl))
    a("s_waitcnt lgkmcnt(0)")
    a("s_cbranch_scc1 L_p1")
    emit(a, place(p1_mfmas(0), spread(p1_reads(1, 1), 0, 1)))
    late_setup()
    a("s_waitcnt lgkmcnt(0)")
    st.cyc("p1end", True)
    a("s_barrier")
    st.cyc("b10")

    def kf(buf, a_):
        return FR + 12 * buf + 4 * a_

    def k_reads(ls, buf):
        return [rd64(kf(buf, a_) + 2 * hh, AZ + 2 * ls + hh, 6144 * a_) for a_ in range(3) for hh in range(2)]

    def qpack(ls):
        r = []
        for dt in (2 * ls, 2 * ls + 1):
            for qt in range(3):
                d = QP + 4 * (3 * ls + qt) + 2 * (dt % 2)
                r += [cvt(d, qtile(dt, qt)), cvt(d + 1, qtile(dt, qt) + 2)]
        return r

    def qwrite(f):
        return f"ds_write_b128 {v(AQW)}, {v(QP + 4 * f, 4)} offset:{1024 * f}"
    SA = ACC

    def stile(a_, qt):
        return SA + 4 * (3 * a_ + qt)

    def s_mfmas(qbase, ls3, buf, first=False, qmajor=False):
        idx = [(a_, qt) for qt in range(3) for a_ in range(3)] if qmajor else [(a_, qt) for a_ in range(3) for qt in range(3)]
        return [mfma(stile(a_, qt), kf(buf, a_), qbase + 4 * (3 * ls3 + qt), 0 if first else None) for a_, qt in idx]

    sl = spread(k_reads(0, 0) + k_reads(1, 1) + k_reads(2, 2), 0, 1)

    spread(qpack(0), 10, 2, step=1, into=sl)
    emit(a, place(p1_mfmas(1), sl))
    emit(a, [qwrite(0)] + qpack(1)[:6] + [qwrite(1)] + qpack(1)[6:] + [qwrite(2)])
    a("s_waitcnt lgkmcnt(3)")
    sl = {}
    spread(qpack(2), 0, 2, into=sl)
    sl.setdefault(1, []).append(qwrite(3))
    sl.setdefault(4, []).append(qwrite(4))
    sl.setdefault(7, []).append(qwrite(5))
    sl.setdefault(10, []).append(qwrite(6))
    sl.setdefault(13, []).append(qwrite(7))
    sl.setdefault(16, []).append(qwrite(8))
    emit(a, place(s_mfmas(QP, 0, 0, True) + s_mfmas(QP, 1, 1), sl))
    a("s_waitcnt lgkmcnt(0)")
    a("s_barrier")
    st.cyc("b11")
    QR = FR + 36
    rds = [rd128(QR + 4 * f, AQR, 1024 * f) for f in range(9)]
    emit(a, place(s_mfmas(QP, 2, 2), spread(rds[:3] + k_reads(3, 0), 0, 2, into=None)))
    a("s_waitcnt lgkmcnt(0)")
    emit(a, place(s_mfmas(QR, 0, 0), spread(rds[3:6] + k_reads(4, 1), 0, 1)))
    a("s_waitcnt lgkmcnt(0)")
    emit(a, place(s_mfmas(QR, 1, 1), spread(rds[6:9] + k_reads(5, 2), 0, 1)))
    a("s_waitcnt lgkmcnt(0)")

    def xs(qt):
        return [stile(a_, qt) + r for a_ in range(3) for r in range(4)]

    def maxchain(qt):
        x = xs(qt)
        r = [f"v_max3_f32 {v(MX + qt)}, {v(x[0])}, {v(x[1])}, {v(x[2])}"]
        for k in range(3, 11, 2):
            r.append(f"v_max3_f32 {v(MX + qt)}, {v(MX + qt)}, {v(x[k])}, {v(x[k + 1])}")
        r.append(f"v_max_f32 {v(MX + qt)}, {v(MX + qt)}, {v(x[11])}")
        return r
    emit(a, s_mfmas(QR, 2, 2, qmajor=True))
    st.cyc("sdone", True)
    a("s_nop 1")
    emit(a, maxchain(0) + maxchain(1) + maxchain(2))
    for op in ("v_permlane16_swap_b32", "v_permlane32_swap_b32"):
        for qt in range(3):
            a(f"v_mov_b32 {v(MX + 3 + qt)}, {v(MX + qt)}")
        for qt in range(3):
            a(f"{op} {v(MX + 3 + qt)}, {v(MX + qt)}")
        for qt in range(3):
            a(f"v_max_f32 {v(MX + qt)}, {v(MX + qt)}, {v(MX + 3 + qt)}")
    for qt in range(3):
        a(f"ds_write_b32 {v(AMW)}, {v(MX + qt)} offset:{64 * qt}")
    a("s_waitcnt lgkmcnt(0)")
    a("s_barrier")
    st.cyc("b12")

    VB0, VB1 = QP, FR + 36
    PP, PC = FR, FR + 24

    def v_reads(step, buf):
        r = []
        for dt in range(6):
            for hh in range(2):
                if step == 0:
                    ad, tile = AVo, hh
                elif step == 1:
                    ad, tile = (AVo, 2) if hh == 0 else (AVp, 2)
                else:
                    ad, tile = AVp, hh
                r.append(trread(buf + 4 * dt + 2 * hh, ad + dt % 4, 6144 * tile + 128 * (dt // 4)))
        return r
    for qt in range(3):
        a(f"ds_read_b32 {v(MX + 3 + qt)}, {v(AMR)} offset:{64 * qt}")
    emit(a, v_reads(0, VB0))
    a("s_waitcnt lgkmcnt(12)" if not st.on else "s_waitcnt lgkmcnt(0)")
    a(f"ds_read_b64 {v(TG, 2)}, {v(AOW)}")
    for qt in range(3):
        a(f"v_max_f32 {v(MX + qt)}, {v(MX + qt)}, {v(MX + 3 + qt)}")
    for qt in range(3):
        a(f"v_mul_f32 {v(MX + qt)}, {s(S_C)}, {v(MX + qt)}")

    def softmax(qt):
        x = xs(qt)
        f = [f"v_fma_f32 {v(y)}, {v(y)}, {s(S_C)}, -{v(MX + qt)}" for y in x]
        e = [f"v_exp_f32 {v(y)}, {v(y)}" for y in x]
        r = f[:2]
        for k in range(12):
            r.append(e[k])
            if k + 2 < 12:
                r.append(f[k + 2])
        c = [cvt(PP + 8 * qt + k, x[2 * k]) for k in range(6)]
        return r + c

    def pwrite(qt):
        return [f"ds_write_b128 {v(APW)}, {v(PP + 8 * qt, 4)} offset:{1536 * qt}",
                f"ds_write_b64 {v(APW2)}, {v(PP + 8 * qt + 4, 2)} offset:{1536 * qt + 1024}"]
    OT = {}
    free = [ACC + 36 + 4 * k for k in range(9)]
    for qt in range(3):
        own = [stile(a_, qt) for a_ in range(3)]
        regs = free[3 * qt:3 * qt + 3] + own
        for dt in range(6):
            OT[(dt, qt)] = regs[dt]

    def pv(vbuf, pfr, qt, first=False, sum_first=False):
        r = [mfma(OT[(dt, qt)], vbuf + 4 * dt, pfr(qt), 0 if first else None) for dt in range(6)]
        sm = [mfma(LS + 4 * qt, ONES, pfr(qt), 0 if first else None)]
        return sm + r if sum_first else r + sm
    fA = lambda qt: PP + 8 * qt
    fB = lambda qt: PP + 8 * qt + 4
    fC = lambda qt: PC + 4 * qt
    emit(a, softmax(0))
    emit(a, pwrite(0))
    a("s_waitcnt lgkmcnt(2)")
    for qt in (1, 2):
        sm = softmax(qt)
        mm = pv(VB0, fA, qt - 1, True)
        out = []
        per = 4
        for k, m in enumerate(mm):
            out += sm[per * k:per * k + per]
            out.append(m)
        out += sm[per * len(mm):]
        emit(a, out)
        emit(a, pwrite(qt))
    a("s_waitcnt lgkmcnt(0)")
    a("s_barrier")
    st.cyc("b13")
    prd = [rd64(PP + 8 * qt + 6, APR2, 1536 * qt + 1024) for qt in range(3)]
    prc = [rd128(PC + 4 * qt, APR, 1536 * qt) for qt in range(3)]
    emit(a, place(pv(VB0, fA, 2, True), spread(prd + v_reads(1, VB1), -1, 2)))
    a("s_waitcnt lgkmcnt(0)")
    mB = pv(VB1, fB, 0) + pv(VB1, fB, 1) + pv(VB1, fB, 2)
    emit(a, place(mB, spread(prc + v_reads(2, VB0), 0, 1)))
    a("s_waitcnt lgkmcnt(0)")
    st.cyc("pvB", True)
    OPQ = [184, 188, 192, 212, 216, 220, 224, 228, 232]

    def finish(qt):
        r = [f"v_rcp_f32 {v(MX + 2 * qt)}, {v(LS + 4 * qt)}", "s_nop 0"]
        r.append(f"v_mov_b32 {v(MX + 2 * qt + 1)}, {v(MX + 2 * qt)}")
        for ls in range(3):
            d = OPQ[3 * ls + qt]
            for half in range(2):
                t = OT[(2 * ls + half, qt)]
                r.append(f"v_pk_mul_f32 {v(t, 2)}, {v(t, 2)}, {v(MX + 2 * qt, 2)}")
                r.append(f"v_pk_mul_f32 {v(t + 2, 2)}, {v(t + 2, 2)}, {v(MX + 2 * qt, 2)}")
            for half in range(2):
                t = OT[(2 * ls + half, qt)]
                r += [cvt(d + 2 * half, t), cvt(d + 2 * half + 1, t + 2)]
            off = (ls * 6 + qt) * 1024
            r.append(f"s_mov_b32 s3, {off}")
            r.append(f"buffer_store_dwordx4 {v(d, 4)}, {v(AO)}, {s(R_O, 4)}, s3 offen {'sc1' if cfg.stsc1 else ''}")
            r.append(f"ds_write_b128 {v(AO)}, {v(d, 4)} offset:{off}")
        return r
    emit(a, pv(VB0, fC, 0, sum_first=True))
    m1 = pv(VB0, fC, 1, sum_first=True)
    emit(a, m1)
    m2 = pv(VB0, fC, 2, sum_first=True)
    f0 = finish(0)
    out = []
    for k, m in enumerate(m2):
        out.append(m)
        out += f0[2 * k:2 * k + 2]
    out += f0[2 * len(m2):]
    emit(a, out)
    emit(a, finish(1) + finish(2))
    st.cyc("ostore")
    a("s_waitcnt lgkmcnt(0)")
    a("s_barrier")
    st.cyc("b15")

    A4 = ACC

    def ga(n, tt):
        return FR + 32 * n + 4 * tt

    def gb(n, qt):
        return FR + 32 * n + 20 + 4 * qt

    def p4_reads(n, ks):
        def A(tt):
            return [trread(ga(n, tt) + 2 * hh, AW + tt % 2, 320 * (32 * ks + 16 * hh) + 64 * (tt // 2)) for hh in range(2)]

        def B(qt):
            return [rd128(gb(n, qt), AB, 6144 * ks + 1024 * qt)]
        r = B(0) + A(0) + B(1) + B(2)
        for tt in range(1, 5):
            r += A(tt)
        return r

    def p4_mfmas(n, first=False):
        return [mfma(A4 + 4 * (3 * tt + qt), ga(n, tt), gb(n, qt), 0 if first else None) for tt in range(5) for qt in range(3)]
    adv4 = [f"v_add_u32 {v(AW + c)}, {s(S_D)}, {v(AW + c)}" for c in range(2)] + [f"v_add_u32 {v(AB)}, {s(S_D2)}, {v(AB)}"]
    a(f"s_mov_b32 {s(S_K0)}, {(-3 * WOS) & 0xffffffff:#x}")
    a(f"s_mov_b32 {s(S_K1)}, {WOS}")
    a(f"s_mov_b32 s6, {(-5 * OS) & 0xffffffff:#x}")
    a(f"s_mov_b32 s7, {OS}")
    a(f"s_mov_b32 {s(S_SL)}, 1")
    a(f"s_mov_b32 {s(S_SL2)}, 0")
    a(f"s_mov_b32 {s(S_CNT)}, 0")
    emit(a, p4_reads(0, 0))
    a("s_waitcnt lgkmcnt(0)")

    def p4_stage(first, mid, count):
        sl = spread(p4_reads(1, 1), 0, 1)
        sc = [f"s_add_u32 {s(S_SL)}, {s(S_SL)}, 1", f"s_cmp_eq_u32 {s(S_SL)}, 4",
              f"s_cselect_b32 {s(S_D)}, {s(S_K0)}, {s(S_K1)}", f"s_cselect_b32 {s(S_SL)}, 0, {s(S_SL)}",
              f"s_add_u32 {s(S_SL2)}, {s(S_SL2)}, 1", f"s_cmp_eq_u32 {s(S_SL2)}, 6",
              f"s_cselect_b32 {s(S_D2)}, s6, s7", f"s_cselect_b32 {s(S_SL2)}, 0, {s(S_SL2)}"]
        spread(sc, 0, 1, into=sl)
        spread(adv4, 13, 2, into=sl)
        emit(a, place(p4_mfmas(0, first), sl))
        a("s_waitcnt lgkmcnt(0)")
        mid()
        sl = spread(p4_reads(0, 0), 0, 1)
        if count:
            sl.setdefault(12, []).append(f"s_add_u32 {s(S_CNT)}, {s(S_CNT)}, 1")
            sl.setdefault(13, []).append(f"s_cmp_lt_u32 {s(S_CNT)}, 10")
        emit(a, place(p4_mfmas(1), sl))
        a("s_waitcnt lgkmcnt(0)")

    def mid_loop():
        a(f"s_cmp_gt_u32 {s(S_CNT)}, 1")
        a("s_cbranch_scc1 L_p4bar")
        a(f"s_cmp_eq_u32 {s(S_CNT)}, 0")
        a("s_cbranch_scc1 L_p4go")
        st.cyc("own")
        a("s_waitcnt vmcnt(0)")
        a("s_mov_b64 exec, 1")
        a(f"buffer_store_dwordx2 {v(TG, 2)}, {v(AFL)}, {s(R_F, 4)}, {s(S_K2)} offen {'sc1' if cfg.f1sc1 else ''}")
        a("s_mov_b64 exec, -1")
        st.cyc("flag1")
        a("s_barrier")
        a.label("L_p4bar")
        a("s_barrier")
        a.label("L_p4go")
    p4_stage(True, lambda: None, False)
    a.label("L_p4")
    p4_stage(False, mid_loop, True)
    a("s_cbranch_scc1 L_p4")
    st.cyc("p4loop")
    emit(a, place(p4_mfmas(0), spread(p4_reads(1, 1), 0, 1)))
    a("s_waitcnt lgkmcnt(0)")
    PK = QP

    def tile(tt, qt):
        return A4 + 4 * (3 * tt + qt)
    order = [(2 * qt, (0, qt), (1, qt)) for qt in range(3)] + [(2 * qt + 1, (2, qt), (3, qt)) for qt in range(3)] + [(6, (4, 0), (4, 1))]
    ep = []
    for n, (bi, t0, t1) in enumerate(order):
        d = PK + 4 * n
        ep.append([cvt(d, tile(*t0)), cvt(d + 1, tile(*t0) + 2), cvt(d + 2, tile(*t1)), cvt(d + 3, tile(*t1) + 2),
                   f"s_mov_b32 s3, {1024 * bi}",
                   f"buffer_store_dwordx4 {v(d, 4)}, {v(AP)}, {s(R_P, 4)}, s3 offen sc1"])
    ep.append([cvt(PK + 28, tile(4, 2)), cvt(PK + 29, tile(4, 2) + 2),
               f"buffer_store_dwordx2 {v(PK + 28, 2)}, {v(AP2)}, {s(R_P, 4)}, 0 offen sc1"])
    flat = sum(ep, [])
    mm = p4_mfmas(1)
    sl = spread(flat[:6], 10, 2)
    emit(a, place(mm, sl))
    emit(a, flat[6:])
    st.cyc("pstore")
    a("s_waitcnt vmcnt(0)")
    a("s_mov_b64 exec, 1")
    a(f"buffer_store_dwordx2 {v(TG, 2)}, {v(AFL)}, {s(R_F, 4)}, {s(S_K3)} offen sc1")
    st.cyc("flag2")
    st.real("real1")
    st.flush("C")
    a("s_endpgm")


def reduce_addr(a, tid, vtmp, A0, A1, s_g8):
    SG, W, C, X, Y, OFFS = vtmp, vtmp + 1, vtmp + 2, vtmp + 3, vtmp + 4, vtmp + 5
    a(f"s_mul_i32 s3, {s_g8}, 240")
    a(f"v_add_u32 {v(SG)}, s3, {v(tid)}")
    a(f"v_lshlrev_b32 {v(OFFS)}, 4, {v(SG)}")
    a(f"v_mul_u32_u24 {v(W)}, 2185, {v(SG)}")
    a(f"v_lshrrev_b32 {v(W)}, 20, {v(W)}")
    a(f"v_mul_u32_u24 {v(X)}, 480, {v(W)}")
    a(f"v_sub_u32 {v(C)}, {v(SG)}, {v(X)}")
    a(f"v_and_b32 {v(X)}, 1, {v(W)}")
    a(f"v_mul_u32_u24 {v(X)}, {48 * 1280}, {v(X)}")
    a(f"v_lshrrev_b32 {v(W)}, 1, {v(W)}")
    a(f"v_mul_u32_u24 {v(W)}, 160, {v(W)}")
    a(f"v_add_u32 {v(W)}, {v(W)}, {v(X)}")
    a(f"v_lshrrev_b32 {v(SG)}, 6, {v(C)}")
    a(f"v_and_b32 {v(C)}, 63, {v(C)}")
    a(f"v_cmp_eq_u32 vcc, 7, {v(SG)}")
    a(f"v_lshlrev_b32 {v(X)}, 1, {v(C)}")
    a("s_nop 0")
    a(f"v_cndmask_b32 {v(C)}, {v(C)}, {v(X)}, vcc")
    a(f"v_and_b32 {v(X)}, 15, {v(C)}")
    a(f"v_mul_u32_u24 {v(X)}, 1280, {v(X)}")
    a(f"v_lshrrev_b32 {v(C)}, 4, {v(C)}")
    a(f"v_lshl_add_u32 {v(X)}, {v(C)}, 3, {v(X)}")
    a(f"v_add_u32 {v(W)}, {v(W)}, {v(X)}")
    a(f"v_lshrrev_b32 {v(X)}, 1, {v(SG)}")
    a(f"v_mul_u32_u24 {v(X)}, {16 * 1280}, {v(X)}")
    a(f"v_and_b32 {v(Y)}, 1, {v(SG)}")
    a(f"v_lshl_add_u32 {v(X)}, {v(Y)}, 6, {v(X)}")
    a(f"v_mov_b32 {v(Y)}, 32")
    a(f"v_cmp_eq_u32 vcc, 6, {v(SG)}")
    a(f"v_mov_b32 {v(C)}, 128")
    a(f"v_mov_b32 {v(A1)}, {16 * 1280}")
    a(f"v_cndmask_b32 {v(X)}, {v(X)}, {v(C)}, vcc")
    a(f"v_cndmask_b32 {v(Y)}, {v(Y)}, {v(A1)}, vcc")
    a(f"v_cmp_eq_u32 vcc, 7, {v(SG)}")
    a(f"v_mov_b32 {v(C)}, {32 * 1280 + 128}")
    a(f"v_mov_b32 {v(A1)}, 1280")
    a(f"v_cndmask_b32 {v(X)}, {v(X)}, {v(C)}, vcc")
    a(f"v_cndmask_b32 {v(Y)}, {v(Y)}, {v(A1)}, vcc")
    a(f"v_add_u32 {v(A0)}, {v(W)}, {v(X)}")
    a(f"v_add_u32 {v(A1)}, {v(A0)}, {v(Y)}")
    return OFFS


def gen_loader(a, cfg):
    st = Stamps(a, cfg)
    st.n = 2
    st.names = ["real0", "cyc0"]
    R_X, R_WQ, R_K, R_V, R_T = 8, 12, 16, 20, 56
    R_WO, R_OI, R_PI, R_OUT = 8, 12, 16, 20
    S_LW, S_SW, S_SX, S_LDS, S_N, S_KK, S_PK = 50, 51, 52, 53, 54, 55, 49
    S_MW, S_MX, S_LDO = 62, 63, 7
    OW, OX, OK_, OV, OWO, OO = 16, 22, 25, 34, 43, 48
    RRc, UUc = 52, 55
    AT, AF1, AF2, TG, PT = 58, 59, 60, 62, 64
    A0, A1, RT = 66, 67, 68
    JK = 74
    T0, T1, T2 = 4, 5, 6
    ntx = "nt" if cfg.ntx else ""

    a(f"s_sub_u32 {s(S_LW)}, {s(S_WAVE)}, 4")
    for c in range(3):
        a(f"v_add_u32 {v(T0)}, {64 * c}, v0")
        a(f"v_mul_u32_u24 {v(T1)}, 2731, {v(T0)}")
        a(f"v_lshrrev_b32 {v(RRc + c)}, 16, {v(T1)}")
        a(f"v_mul_u32_u24 {v(T1)}, 24, {v(RRc + c)}")
        a(f"v_sub_u32 {v(UUc + c)}, {v(T0)}, {v(T1)}")
    a(f"s_mul_i32 s3, {s(S_LW)}, 3")
    a(f"v_lshrrev_b32 {v(T2)}, 4, v0")
    a(f"v_and_b32 v7, 7, v0")
    a(f"v_lshrrev_b32 v8, 3, v0")
    for c in range(3):
        a(f"s_add_u32 s4, s3, {c}")
        a("s_lshl_b32 s6, s4, 3")
        a("s_and_b32 s4, s4, 1")
        a("s_lshl_b32 s4, s4, 2")
        a(f"v_or_b32 {v(T0)}, s4, {v(T2)}")
        a(f"v_xor_b32 {v(T0)}, {v(T0)}, v7")
        a(f"v_add_u32 {v(T1)}, s6, v8")
        a(f"v_mul_u32_u24 {v(T1)}, 1280, {v(T1)}")
        a(f"v_lshl_add_u32 {v(OX + c)}, {v(T0)}, 4, {v(T1)}")
    a(f"s_lshl_b32 s3, {s(S_LW)}, 4")
    for aa in range(2):
        for c in range(3):
            a(f"v_bfe_u32 {v(T0)}, {v(RRc + c)}, 1, 1")
            a(f"v_or_b32 {v(T0)}, {2 * aa}, {v(T0)}")
            a(f"v_lshlrev_b32 {v(T0)}, 1, {v(T0)}")
            a(f"v_xor_b32 {v(T0)}, {v(T0)}, {v(UUc + c)}")
            a(f"s_add_u32 s4, s3, {8 * aa}")
            a(f"v_add_u32 {v(T1)}, s4, {v(RRc + c)}")
            a(f"v_mul_u32_u24 {v(T1)}, 12288, {v(T1)}")
            a(f"v_lshl_add_u32 {v(OW + 3 * aa + c)}, {v(T0)}, 4, {v(T1)}")
    a(f"s_mul_i32 {s(S_MW)}, {s(S_LW)}, 6144")
    a(f"s_mul_i32 {s(S_MX)}, {s(S_LW)}, 3072")
    a(f"s_add_u32 {s(S_MX)}, {s(S_MX)}, 24576")
    if cfg.rot == 0:
        a(f"s_mov_b32 {s(S_KK)}, 0")
    elif cfg.rot in (1, 3):
        a(f"s_mul_i32 s3, {s(S_HH)}, 5")
        a("s_add_u32 s3, s3, 1")
        a("s_lshr_b32 s3, s3, 1")
        a(f"s_add_u32 s3, s3, {s(S_B)}")
        if cfg.rot == 3:
            a(f"s_add_u32 s3, s3, {s(S_G8)}")
        for _ in range(2):
            a("s_sub_u32 s4, s3, 10")
            a("s_cmp_ge_u32 s3, 10")
            a("s_cselect_b32 s3, s4, s3")
        a(f"s_mov_b32 {s(S_KK)}, s3")
    else:
        R = cfg.rot - 2
        a(f"s_add_u32 s3, {s(S_B)}, {s(S_HH)}")
        for _ in range(10 // R + 1):
            a(f"s_sub_u32 s4, s3, {R}")
            a(f"s_cmp_ge_u32 s3, {R}")
            a("s_cselect_b32 s3, s4, s3")
        a("s_mul_i32 s3, s3, 10")
        a(f"s_mul_i32 s3, s3, {(65536 + R - 1) // R}")
        a("s_lshr_b32 s3, s3, 16")
        a(f"s_add_u32 s3, s3, {s(S_G8)}")
        a("s_sub_u32 s4, s3, 10")
        a("s_cmp_ge_u32 s3, 10")
        a("s_cselect_b32 s3, s4, s3")
        a(f"s_mov_b32 {s(S_KK)}, s3")
    a(f"s_mov_b32 {s(S_LDS)}, 0")
    a("s_waitcnt lgkmcnt(0)")
    st.cyc("karg", True)
    a(f"s_mul_i32 s3, {s(S_B)}, 122880")
    srd(a, R_X, S_X, "s3", 122880)
    a(f"s_mul_i32 s3, {s(S_H)}, 384")
    a("s_sub_u32 s4, 7864320, s3")
    srd(a, R_WQ, S_WQ, "s3", "s4")

    def stage():
        a(f"s_mul_i32 {s(S_SW)}, {s(S_KK)}, {64 * 12288}")
        a(f"s_lshl_b32 {s(S_SX)}, {s(S_KK)}, 7")
        a(f"s_add_u32 s3, {s(S_LDS)}, {s(S_MW)}")
        a(f"s_add_u32 s4, {s(S_LDS)}, {s(S_MX)}")
        for c in range(3):
            dma(a, OX + c, R_X, s(S_SX), "s4", 1024 * c, ntx)
        for p in range(6):
            dma(a, OW + p, R_WQ, s(S_SW), "s3", 1024 * p, "nt" if cfg.ntwq else "")
        a(f"s_add_u32 {s(S_KK)}, {s(S_KK)}, 1")
        a(f"s_cmp_eq_u32 {s(S_KK)}, 10")
        a(f"s_cselect_b32 {s(S_KK)}, 0, {s(S_KK)}")
        a(f"s_add_u32 {s(S_LDS)}, {s(S_LDS)}, {SLOT}")
        a(f"s_cmp_eq_u32 {s(S_LDS)}, {3 * SLOT}")
        a(f"s_cselect_b32 {s(S_LDS)}, 0, {s(S_LDS)}")

    stage()
    st.cyc("issued")
    epoch_load(a)
    if cfg.kpos == 9:
        a("s_lshr_b32 s3, s2, 3")
        a(f"s_add_u32 s3, s3, {s(S_G8)}")
        a("s_and_b32 s3, s3, 7")
        a(f"s_add_u32 {s(S_PK)}, s3, 1")
    else:
        a(f"s_mov_b32 {s(S_PK)}, {cfg.kpos}")

    def late_setup_a():
        a(f"s_lshl_b32 s3, {s(S_B)}, 5")
        a(f"s_add_u32 s3, s3, {s(S_H)}")
        a("s_mul_i32 s3, s3, 36864")
        srd(a, R_K, S_K, "s3", 36864)
        srd(a, R_V, S_V, "s3", 36864)
        a(f"s_mov_b32 s3, {OFF_F}")
        srd(a, R_F, S_WS, "s3", 262144)
        a(f"s_mul_i32 s3, {s(S_LW)}, 24")
        for a2 in range(3):
            a(f"s_mul_i32 s4, {s(S_LW)}, 3")
            a(f"s_add_u32 s4, s4, {a2}")
            a("s_and_b32 s4, s4, 1")
            a("s_lshl_b32 s4, s4, 2")
            a(f"s_add_u32 s6, s3, {8 * a2}")
            for c in range(3):
                a(f"v_lshrrev_b32 {v(T0)}, 1, {v(RRc + c)}")
                a(f"v_add_u32 {v(T1)}, s6, {v(RRc + c)}")
                a(f"v_mul_u32_u24 {v(T1)}, 384, {v(T1)}")
                a(f"v_or_b32 {v(T2)}, s4, {v(T0)}")
                a(f"v_xor_b32 {v(T2)}, {v(T2)}, {v(UUc + c)}")
                a(f"v_lshl_add_u32 {v(OK_ + 3 * a2 + c)}, {v(T2)}, 4, {v(T1)}")
                a(f"v_lshlrev_b32 {v(T2)}, 1, {v(T0)}")
                a(f"v_xor_b32 {v(T2)}, {v(T2)}, {v(UUc + c)}")
                a(f"v_lshl_add_u32 {v(OV + 3 * a2 + c)}, {v(T2)}, 4, {v(T1)}")

    def late_setup_b():
        a(f"s_lshl_b32 s3, {s(S_LW)}, 4")
        for c in range(5):
            a(f"v_add_u32 {v(T0)}, {64 * c}, v0")
            a(f"v_mul_u32_u24 {v(T1)}, 3277, {v(T0)}")
            a(f"v_lshrrev_b32 {v(T1)}, 16, {v(T1)}")
            a(f"v_mul_u32_u24 {v(T2)}, 20, {v(T1)}")
            a(f"v_sub_u32 {v(T0)}, {v(T0)}, {v(T2)}")
            a(f"v_bfe_u32 {v(T2)}, {v(T1)}, 2, 1")
            a(f"v_lshlrev_b32 {v(T2)}, 1, {v(T2)}")
            a(f"v_xor_b32 {v(T0)}, {v(T0)}, {v(T2)}")
            a(f"v_add_u32 {v(T1)}, s3, {v(T1)}")
            a(f"v_mul_u32_u24 {v(T1)}, 1280, {v(T1)}")
            a(f"v_lshl_add_u32 {v(OWO + c)}, {v(T0)}, 4, {v(T1)}")
        a(f"s_mul_i32 s3, {s(S_LW)}, 3072")
        for c in range(3):
            a(f"s_add_u32 s4, s3, {1024 * c}")
            a(f"v_lshl_add_u32 {v(OO + c)}, v0, 4, s4")
        if cfg.t0 < 12:
            nrow = (12 - cfg.t0) * 2
            a(f"s_lshl_b32 s3, {s(S_B)}, 2")
            a(f"s_add_u32 s3, s3, {s(S_LW)}")
            a(f"s_mul_i32 s3, s3, {nrow}")
            a(f"s_mul_i32 s4, {s(S_HH)}, 192")
            a("s_add_u32 s3, s3, s4")
            a(f"s_add_u32 s3, s3, {64 * cfg.t0}")
            a(f"v_min_u32 {v(T0)}, {3 * nrow - 1}, v0")
            a(f"v_mul_u32_u24 {v(T1)}, 21846, {v(T0)}")
            a(f"v_lshrrev_b32 {v(T1)}, 16, {v(T1)}")
            a(f"v_mul_u32_u24 {v(T2)}, 3, {v(T1)}")
            a(f"v_sub_u32 {v(T0)}, {v(T0)}, {v(T2)}")
            a(f"v_add_u32 {v(T1)}, s3, {v(T1)}")
            a(f"v_subrev_u32 {v(T2)}, 768, {v(T1)}")
            a(f"v_min_u32 {v(T1)}, {v(T1)}, {v(T2)}")
            a(f"v_mul_u32_u24 {v(T1)}, 1280, {v(T1)}")
            a(f"v_lshl_add_u32 {v(AT)}, {v(T0)}, 7, {v(T1)}")
        a(f"s_lshl_b32 s3, {s(S_B)}, 3")
        a(f"s_add_u32 s3, s3, {s(S_G8)}")
        a("s_lshl_b32 s3, s3, 7")
        a(f"v_and_b32 {v(T0)}, 15, v0")
        a(f"v_lshl_add_u32 {v(AF1)}, {v(T0)}, 3, s3")
        a("s_waitcnt lgkmcnt(0)")
        epoch_tag(a)
        a(f"v_mov_b32 {v(TG)}, {s(S_TAG)}")
        a(f"v_mov_b32 {v(TG + 1)}, {s(S_TAG + 1)}")
        a(f"v_mov_b32 {v(T0)}, {A_TAG}")
        a(f"ds_write_b64 {v(T0)}, {v(TG, 2)}")
        a("s_waitcnt lgkmcnt(0)")

    def issue_kv(off, srd_, base):
        a(f"s_mul_i32 s3, {s(S_LW)}, 9216")
        a(f"s_add_u32 s3, s3, {base}")
        for p in range(9):
            dma(a, off + p, srd_, "0", "s3", 1024 * p, "nt" if cfg.ntkv else "")
    late_setup_a()
    stage()
    a("s_waitcnt vmcnt(9)")
    st.cyc("landed0")
    a("s_barrier")
    a(f"s_mov_b32 {s(S_N)}, 0")
    a.label("L_lloop")
    if cfg.kpos != 8:
        a(f"s_cmp_eq_u32 {s(S_N)}, {s(S_PK)}")
        a("s_cbranch_scc0 L_nok")
        issue_kv(OK_, R_K, A_K)
        a.label("L_nok")
    stage()
    a("s_waitcnt vmcnt(9)")
    a("s_barrier")
    a(f"s_add_u32 {s(S_N)}, {s(S_N)}, 1")
    a(f"s_cmp_lt_u32 {s(S_N)}, 8")
    a("s_cbranch_scc1 L_lloop")
    st.cyc("b8")
    a(f"s_cmp_eq_u32 {s(S_PK)}, 8")
    a("s_cbranch_scc0 L_vonly")
    issue_kv(OK_, R_K, A_K)
    a("s_waitcnt vmcnt(9)")
    a("s_barrier")
    issue_kv(OV, R_V, A_V)
    a("s_branch L_kvdone")
    a.label("L_vonly")
    issue_kv(OV, R_V, A_V)
    a("s_waitcnt vmcnt(9)")
    a("s_barrier")
    a.label("L_kvdone")
    a("s_waitcnt vmcnt(9)")
    st.cyc("Kland")
    a("s_barrier")
    a(f"s_mul_i32 s3, {s(S_G8)}, 983040")
    a(f"s_mul_i32 s4, {s(S_HH)}, 320")
    a("s_add_u32 s3, s3, s4")
    a("s_sub_u32 s4, 7864320, s3")
    srd(a, R_WO, S_WO, "s3", "s4")
    a(f"s_lshl_b32 s3, {s(S_B)}, 3")
    a(f"s_add_u32 s3, s3, {s(S_G8)}")
    a(f"s_mul_i32 s3, s3, {4 * 36864}")
    srd(a, R_OI, S_WS, "s3", 4 * 36864)
    a(f"s_lshl_b32 s3, {s(S_B)}, 2")
    a(f"s_add_u32 s3, s3, {s(S_HH)}")
    a(f"s_mul_i32 s3, s3, {8 * 30720}")
    a(f"s_add_u32 s3, s3, {OFF_P}")
    srd(a, R_PI, S_WS, "s3", 8 * 30720)
    a(f"s_mul_i32 {s(S_MW)}, {s(S_LW)}, 5120")
    a(f"s_add_u32 {s(S_MW)}, {s(S_MW)}, {WO0}")
    a(f"s_mul_i32 {s(S_MX)}, {s(S_LW)}, 3072")
    a(f"s_mul_i32 {s(S_KK)}, {s(S_HH)}, 3")
    a(f"s_add_u32 {s(S_PK)}, {s(S_KK)}, 3")
    a(f"s_cmp_eq_u32 {s(S_PK)}, 12")
    a(f"s_cselect_b32 {s(S_PK)}, 0, {s(S_PK)}")
    a(f"s_mov_b32 {s(S_LDS)}, {WOS}")
    a(f"s_mov_b32 {s(S_LDO)}, {3 * OS}")
    a("s_barrier")
    late_setup_b()
    a("s_waitcnt vmcnt(0)")
    st.cyc("Vland")
    a("s_barrier")
    a(f"s_mul_i32 s3, {s(S_B)}, 122880")
    a(f"s_mul_i32 s4, {s(S_HH)}, 320")
    a("s_add_u32 s3, s3, s4")
    a("s_sub_u32 s4, 983040, s3")
    srd(a, R_OUT, S_OUT, "s3", "s4")

    def wo_stage():
        a(f"s_mul_i32 {s(S_SW)}, {s(S_KK)}, {64 * 1280}")
        a(f"s_add_u32 s3, {s(S_LDS)}, {s(S_MW)}")
        for p in range(5):
            dma(a, OWO + p, R_WO, s(S_SW), "s3", 1024 * p, "nt" if cfg.ntwo else "")
        a(f"s_add_u32 {s(S_KK)}, {s(S_KK)}, 1")
        a(f"s_cmp_eq_u32 {s(S_KK)}, 12")
        a(f"s_cselect_b32 {s(S_KK)}, 0, {s(S_KK)}")
        a(f"s_add_u32 {s(S_LDS)}, {s(S_LDS)}, {WOS}")
        a(f"s_cmp_eq_u32 {s(S_LDS)}, {4 * WOS}")
        a(f"s_cselect_b32 {s(S_LDS)}, 0, {s(S_LDS)}")

    def o_stage():
        a(f"s_mul_i32 {s(S_SX)}, {s(S_PK)}, {OS}")
        a(f"s_add_u32 s4, {s(S_LDO)}, {s(S_MX)}")
        for c in range(3):
            dma(a, OO + c, R_OI, s(S_SX), "s4", 1024 * c, "sc1" if cfg.osc1 else "")
        a(f"s_add_u32 {s(S_PK)}, {s(S_PK)}, 1")
        a(f"s_cmp_eq_u32 {s(S_PK)}, 12")
        a(f"s_cselect_b32 {s(S_PK)}, 0, {s(S_PK)}")
        a(f"s_add_u32 {s(S_LDO)}, {s(S_LDO)}, {OS}")
        a(f"s_cmp_eq_u32 {s(S_LDO)}, {6 * OS}")
        a(f"s_cselect_b32 {s(S_LDO)}, 0, {s(S_LDO)}")
    if cfg.t0 < 12:
        a(f"buffer_load_dword {v(JK)}, {v(AT)}, {s(R_WO, 4)}, 0 offen")
    wo_stage()
    a("s_barrier")
    wo_stage()
    wo_stage()
    a("s_waitcnt vmcnt(0)")
    st.cyc("wo2")
    a("s_barrier")
    wo_stage()
    a("s_barrier")
    for _ in range(cfg.pre):
        wo_stage()
    st.cyc("poll1")
    poll(a, "L_poll1", AF1, PT, TG)
    st.cyc("seen1")
    q = []
    nwo = [4 + cfg.pre]
    no = [3]

    def iw():
        wo_stage()
        q.append((("w", nwo[0]), 5))
        nwo[0] += 1

    def io():
        o_stage()
        q.append((("o", no[0]), 3))
        no[0] += 1

    def wait_for(n):
        last = max([i for i, (k, _) in enumerate(q) if k[1] <= n] + [-1])
        a(f"s_waitcnt vmcnt({sum(c for _, c in q[last + 1:])})")
    io()
    if cfg.ra4 >= 1:
        if nwo[0] <= 4:
            iw()
        io()
    if cfg.ra4 >= 2:
        if nwo[0] <= 5:
            iw()
        io()
    wait_for(3)
    st.cyc("o3")
    a("s_barrier")
    for n in range(4, 12):
        lim = min(11, n + cfg.ra4)
        lim_o = min(11, n + cfg.rao)
        while nwo[0] <= lim or no[0] <= lim_o:
            if no[0] <= lim_o and no[0] <= nwo[0]:
                io()
            elif nwo[0] <= lim:
                iw()
            else:
                io()
        wait_for(n)
        if n == 11:
            st.cyc("s11")
        a("s_barrier")
    a(f"s_lshl_b32 s3, {s(S_B)}, 2")
    a(f"s_add_u32 s3, s3, {s(S_HH)}")
    a("s_lshl_b32 s3, s3, 2")
    a(f"s_lshr_b32 s4, {s(S_G8)}, 1")
    a("s_add_u32 s3, s3, s4")
    a("s_lshl_b32 s3, s3, 7")
    a(f"s_add_u32 s3, s3, {F2}")
    a(f"v_and_b32 {v(T0)}, 7, v0")
    a(f"v_lshl_add_u32 {v(AF2)}, {v(T0)}, 3, s3")
    a(f"s_lshl_b32 s4, {s(S_LW)}, 6")
    a(f"v_add_u32 v7, s4, v0")
    a(f"v_min_u32 v7, 239, v7")
    offs = reduce_addr(a, 7, RT, A0, A1, s(S_G8))
    D0 = 80
    if not cfg.dynred:
        poll(a, "L_poll2", AF2, PT, TG)
        st.cyc("seen2")
        for g in range(8):
            a(f"s_mov_b32 s3, {30720 * g}")
            a(f"buffer_load_dwordx4 {v(D0 + 4 * g, 4)}, {v(offs)}, {s(R_PI, 4)}, s3 offen sc1")
    else:
        a(f"s_mov_b32 s7, {SPIN_MAX}")
        a("s_mov_b32 s6, 0")
        a.label("L_poll2")
        a(f"buffer_load_dwordx2 {v(PT, 2)}, {v(AF2)}, {s(R_F, 4)}, 0 offen sc1")
        a("s_sub_u32 s7, s7, 1")
        a("s_cmp_eq_u32 s7, 0")
        a("s_cbranch_scc1 L_poll2_out")
        a("s_waitcnt vmcnt(0)")
        a(f"v_cmp_eq_u64 vcc, {v(PT, 2)}, {v(TG, 2)}")
        a("s_nop 1")
        a("s_and_b32 s5, vcc_lo, 0xff")
        a("s_andn2_b32 s4, s5, s6")
        a("s_cbranch_scc0 L_poll2")
        a("s_or_b32 s6, s6, s5")
        for g in range(8):
            a(f"s_bitcmp1_b32 s4, {g}")
            a(f"s_cbranch_scc0 L_r{g}")
            a(f"s_mov_b32 s3, {30720 * g}")
            a(f"buffer_load_dwordx4 {v(D0 + 4 * g, 4)}, {v(offs)}, {s(R_PI, 4)}, s3 offen sc1")
            a.label(f"L_r{g}")
        a("s_cmp_eq_u32 s6, 0xff")
        a("s_cbranch_scc0 L_poll2")
        a.label("L_poll2_out")
        st.cyc("seen2")
        a("s_waitcnt vmcnt(0)")
    AC = 120
    for g in range(8):
        if not cfg.dynred:
            a(f"s_waitcnt vmcnt({7 - g})")
        for r in range(4):
            src = D0 + 4 * g + r
            if g == 0:
                a(f"v_lshlrev_b32 {v(AC + 2 * r)}, 16, {v(src)}")
                a(f"v_and_b32 {v(AC + 2 * r + 1)}, 0xffff0000, {v(src)}")
            else:
                a(f"v_lshlrev_b32 v4, 16, {v(src)}")
                a(f"v_and_b32 v5, 0xffff0000, {v(src)}")
                a(f"v_pk_add_f32 {v(AC + 2 * r, 2)}, {v(AC + 2 * r, 2)}, v[4:5]")
    for r in range(4):
        a(cvt(D0 + r, AC + 2 * r))
    a(f"buffer_store_dwordx2 {v(D0, 2)}, {v(A0)}, {s(R_OUT, 4)}, 0 offen")
    a(f"buffer_store_dwordx2 {v(D0 + 2, 2)}, {v(A1)}, {s(R_OUT, 4)}, 0 offen")
    a(f"s_or_b32 s3, {s(S_G8)}, {s(S_HH)}")
    a(f"s_or_b32 s3, s3, {s(S_LW)}")
    a("s_cmp_eq_u32 s3, 0")
    a("s_cbranch_scc0 L_noep")
    a(f"s_lshl_b32 s3, {s(S_B)}, 7")
    a(f"s_add_u32 s3, s3, {FX}")
    a("v_mov_b32 v4, 0")
    a("s_mov_b64 exec, 1")
    a(f"buffer_store_dwordx2 {v(TG, 2)}, v4, {s(R_F, 4)}, s3 offen")
    a.label("L_noep")
    if cfg.diag:
        a("s_waitcnt vmcnt(0)")
    st.cyc("end")
    st.real("real1")
    st.flush("L")


def generate(cfg):
    a = Asm()
    a.lines.append("; @launch grid=(256,1,1) block=(512,1,1) lds=163840")
    a('.amdgcn_target "amdgcn-amd-amdhsa--gfx950"')
    a(".text")
    a(kernel_header(KN))
    a("s_cmp_ge_u32 s2, 256")
    a("s_cbranch_scc1 L_end")
    a("s_load_dwordx16 s[32:47], s[0:1], 0")
    if cfg.diag:
        a(f"s_memrealtime {s(S_T, 2)}")
        a(f"s_memtime {s(S_T + 2, 2)}")
    a("v_lshrrev_b32 v1, 6, v0")
    a("v_and_b32 v0, 63, v0")
    a(f"v_readfirstlane_b32 {s(S_WAVE)}, v1")
    a(f"s_and_b32 {s(S_G8)}, s2, 7")
    a("s_lshr_b32 s4, s2, 3")
    a(f"s_lshr_b32 {s(S_B)}, s4, 2")
    a(f"s_and_b32 {s(S_HH)}, s4, 3")
    a(f"s_lshl_b32 s3, {s(S_G8)}, 2")
    a(f"s_add_u32 {s(S_H)}, s3, {s(S_HH)}")
    a(f"s_cmp_lt_u32 {s(S_WAVE)}, 4")
    a("s_cbranch_scc1 L_compute")
    gen_loader(a, cfg)
    a.label("L_end")
    a("s_endpgm")
    a.label("L_compute")
    gen_compute(a, cfg)
    a('.section .rodata,"a"')
    a(".p2align 6")
    a(kernel_desc(KN))
    return a.text()


if __name__ == "__main__":
    cfg = Cfg()
    out = sys.argv[1]
    for opt in sys.argv[2:]:
        k, val = opt.split("=")
        assert hasattr(cfg, k), k
        setattr(cfg, k, int(val))
    t = generate(cfg)
    pr = hazard.check(t)
    for p in pr:
        print(f"HAZARD line {p[0]} -> {p[1]}: need {p[2]} have {p[3]}\n    {p[4]}\n    {p[5]}")
    open(out, "w").write(t)
    print(out, "hazards:", len(pr), "lines:", t.count("\n"))
```

```python
import struct
import sys

from asmlib import Asm, v, s, kernel_header, kernel_desc, interleave
import hazard

KN = "standalone__gqa_block_cached__near_ridge_kernel"
OFF_O = 0
OFF_P = 16 << 20
OFF_F = 32 << 20
F1, F2, FX = 0, 65536, 131072
OFF_T = 64 << 20
SLOT = 36864
A_K = 3 * SLOT
A_V = 1 * SLOT
A_Q = 2 * SLOT
A_P = 2 * SLOT
A_M = 163840 - 768
A_TAG = A_M - 8
WO0, WOS = 81920, 20480
OS = 12288
CEXP = 0.07216878364870322 * 1.4426950408889634
TAGC = (0x9E3779B9, 0x7F4A7C15)
SPIN_MAX = 1 << 21


def f32bits(x):
    return struct.unpack("<I", struct.pack("<f", x))[0]


class Cfg:
    diag = 0
    only = ""
    prio = 0
    rot = 11
    early = 1
    late = 0
    tpos = 10
    w0pos = 13
    t0 = 0
    rao = 1
    outfl = 0
    schedr = 1
    fpos = 0
    sched = 1
    n13 = 0
    npre = 1
    kgrp = 1
    ipf = 3
    f1sc1 = 1
    pre = 3
    dynred = 1
    kpos = 9
    ntx = 0
    ra4 = 1
    touch = 1
    nttouch = 0
    ntwo = 0
    ntwq = 0
    ntkv = 0
    osc1 = 1
    stsc1 = 1


S_X, S_K, S_V, S_WQ, S_WO, S_OUT, S_DBG, S_WS = 32, 34, 36, 38, 40, 42, 44, 46
S_B, S_H, S_WAVE, S_G8, S_HH = 28, 29, 30, 31, 48
S_TAG = 60
R_F = 24
S_T = 64


class Stamps:
    def __init__(self, a, cfg):
        self.a, self.on, self.n = a, cfg.diag, 0
        self.fine = cfg.diag > 1
        self.names = []
        self.only = cfg.only.split(",") if cfg.only else None

    def real(self, name):
        if self.on:
            self.a(f"s_memrealtime {s(S_T + 2 * self.n, 2)}")
            self.names.append(name)
            self.n += 1

    def cyc(self, name, fine=False):
        if self.only and name not in self.only:
            return
        if self.on and (not fine or self.fine or self.only):
            self.a(f"{'s_memrealtime' if self.on > 2 else 's_memtime'} {s(S_T + 2 * self.n, 2)}")
            self.names.append(name)
            self.n += 1

    def peek(self, k):
        if self.on and not self.only:
            self.a(f"{'s_memrealtime' if self.on > 2 else 's_memtime'} {s(S_T + 2 * (self.n + k), 2)}")

    def flush(self, role, vt=4):
        if not self.on:
            return
        a = self.a
        assert self.n <= 19, self.n
        a("s_waitcnt lgkmcnt(0) vmcnt(0)")
        a(f"; STAMPS {role} " + " ".join(self.names))
        a("s_lshl_b32 s3, s2, 3")
        a(f"s_add_u32 s3, s3, {s(S_WAVE)}")
        a("s_lshl_b32 s3, s3, 8")
        a(f"s_add_u32 s3, s3, {OFF_T}")
        a(f"s_add_u32 s4, {s(S_WS)}, s3")
        a(f"s_addc_u32 s5, {s(S_WS + 1)}, 0")
        a("s_mov_b64 exec, 1")
        a(f"v_mov_b32 {v(vt + 2)}, 0")
        for i in range(self.n):
            a(f"v_mov_b32 {v(vt)}, {s(S_T + 2 * i)}")
            a(f"v_mov_b32 {v(vt + 1)}, {s(S_T + 2 * i + 1)}")
            a(f"global_store_dwordx2 {v(vt + 2)}, {v(vt, 2)}, s[4:5] offset:{8 * i}")
            a("s_nop 1")
        a("s_waitcnt vmcnt(0)")


def srd(a, d, base, off_sgpr, size):
    if off_sgpr is None:
        a(f"s_mov_b32 {s(d)}, {s(base)}")
        a(f"s_mov_b32 {s(d + 1)}, {s(base + 1)}")
    else:
        a(f"s_add_u32 {s(d)}, {s(base)}, {off_sgpr}")
        a(f"s_addc_u32 {s(d + 1)}, {s(base + 1)}, 0")
    a(f"s_mov_b32 {s(d + 2)}, {size}")
    a(f"s_mov_b32 {s(d + 3)}, 0x20000")


def dma(a, voff, srd_, soff, base, imm, fl=""):
    a(f"s_add_u32 m0, {base}, {imm}")
    a("s_nop 0")
    a(f"buffer_load_dwordx4 {v(voff)}, {s(srd_, 4)}, {soff} offen {fl} lds")


def mfma(d, a_, b_, c=None):
    cs = v(d, 4) if c is None else str(c)
    return f"v_mfma_f32_16x16x32_bf16 {v(d, 4)}, {v(a_, 4)}, {v(b_, 4)}, {cs}"


def trread(d, addr, off):
    assert 0 <= off < 65536
    return f"ds_read_b64_tr_b16 {v(d, 2)}, {v(addr)} offset:{off}"


def rd128(d, addr, off):
    assert 0 <= off < 65536
    return f"ds_read_b128 {v(d, 4)}, {v(addr)} offset:{off}"


def rd64(d, addr, off):
    assert 0 <= off < 65536
    return f"ds_read_b64 {v(d, 2)}, {v(addr)} offset:{off}"


def cvt(d, t):
    return f"v_cvt_pk_bf16_f32 {v(d)}, {v(t)}, {v(t + 1)}"


def emit(a, lst):
    for x in lst:
        a(x)


def place(main, slots):
    out = list(slots.get(-1, []))
    for i, m in enumerate(main):
        out.append(m)
        out.extend(slots.get(i, []))
    return out


def spread(fill, start, per=1, step=1, into=None):
    d = into if into is not None else {}
    i = start
    k = 0
    while k < len(fill):
        d.setdefault(i, []).extend(fill[k:k + per])
        k += per
        i += step
    return d


def epoch_load(a):
    a(f"s_lshl_b32 s3, {s(S_B)}, 7")
    a(f"s_add_u32 s3, s3, {OFF_F + FX}")
    a(f"s_add_u32 s4, {s(S_WS)}, s3")
    a(f"s_addc_u32 s5, {s(S_WS + 1)}, 0")
    a(f"s_load_dwordx2 {s(S_TAG, 2)}, s[4:5], 0")


def epoch_tag(a):
    a(f"s_add_u32 {s(S_TAG)}, {s(S_TAG)}, {TAGC[0]:#x}")
    a(f"s_addc_u32 {s(S_TAG + 1)}, {s(S_TAG + 1)}, {TAGC[1]:#x}")


def poll(a, name, vaddr, vtmp, vtag):
    a(f"s_mov_b32 s3, {SPIN_MAX}")
    a.label(name)
    a(f"buffer_load_dwordx2 {v(vtmp, 2)}, {v(vaddr)}, {s(R_F, 4)}, 0 offen sc1")
    a("s_sub_u32 s3, s3, 1")
    a("s_cmp_eq_u32 s3, 0")
    a(f"s_cbranch_scc1 {name}_out")
    a("s_waitcnt vmcnt(0)")
    a(f"v_cmp_ne_u64 vcc, {v(vtmp, 2)}, {v(vtag, 2)}")
    a("s_nop 1")
    a(f"s_cbranch_vccnz {name}")
    a.label(name + "_out")
    a("s_waitcnt vmcnt(0)")


def gen_compute(a, cfg):
    st = Stamps(a, cfg)
    st.n = 2
    st.names = ["real0", "cyc0"]
    R_O, R_P = 8, 12
    ACC, FR, QP, LS, ONES = 16, 88, 160, 196, 208
    AX, AY, AZ, AVo, AVp = 212, 216, 218, 230, 234
    AQW, AQR, AMW, AMR, APW, APR, APW2, APR2, AO, AOW = range(238, 248)
    AW, AB, AP, AP2, AFL, TG = 248, 250, 251, 252, 253, 254
    VM, VG, VF, T0, T1, T2 = 1, 2, 3, 4, 5, 6
    MX = 8
    S_I, S_J, S_C, S_D, S_CNT, S_SL, S_D2, S_SL2 = 50, 51, 52, 53, 54, 55, 56, 57
    S_K0, S_K1, S_K2, S_K3 = 58, 59, 16, 17

    if cfg.prio:
        a(f"s_setprio {cfg.prio}")
    a(f"s_lshr_b32 {s(S_I)}, {s(S_WAVE)}, 1")
    a(f"s_and_b32 {s(S_J)}, {s(S_WAVE)}, 1")
    a(f"s_mov_b32 {s(S_C)}, {f32bits(CEXP):#x}")
    a(f"v_and_b32 {v(VM)}, 15, v0")
    a(f"v_lshrrev_b32 {v(VG)}, 4, v0")
    a(f"v_lshrrev_b32 {v(T0)}, 2, {v(VM)}")
    a(f"v_lshl_add_u32 {v(T1)}, {v(VG)}, 3, {v(T0)}")
    a(f"v_mul_u32_u24 {v(T1)}, 384, {v(T1)}")
    a(f"v_and_b32 {v(T2)}, 3, {v(VM)}")
    a(f"v_lshl_add_u32 {v(T1)}, {v(T2)}, 3, {v(T1)}")
    a(f"v_and_b32 {v(T2)}, 1, {v(VG)}")
    a(f"v_lshrrev_b32 {v(VF)}, 3, {v(VM)}")
    a(f"v_lshl_or_b32 {v(VF)}, {v(T2)}, 1, {v(VF)}")
    a(f"s_mul_i32 s3, {s(S_I)}, 6")
    for c in range(4):
        a(f"s_add_u32 s4, s3, {c}")
        a("s_and_b32 s5, s4, 3")
        a("s_lshr_b32 s4, s4, 2")
        a("s_lshl_b32 s4, s4, 7")
        a(f"v_xor_b32 {v(T2)}, s5, {v(VF)}")
        a(f"v_lshl_add_u32 {v(T2)}, {v(T2)}, 5, {v(T1)}")
        a(f"v_add_u32 {v(AX + c)}, s4, {v(T2)}")
    a(f"s_mul_i32 s4, {s(S_J)}, 48")
    a(f"v_add_u32 {v(T1)}, s4, {v(VM)}")
    a(f"v_lshlrev_b32 {v(T1)}, 7, {v(T1)}")
    a(f"v_add_u32 {v(T1)}, 24576, {v(T1)}")
    a(f"v_lshrrev_b32 {v(VF)}, 1, {v(VM)}")
    for ks in range(2):
        a(f"v_add_u32 {v(T2)}, {4 * ks}, {v(VG)}")
        a(f"v_xor_b32 {v(T2)}, {v(T2)}, {v(VF)}")
        a(f"v_lshl_add_u32 {v(AY + ks)}, {v(T2)}, 4, {v(T1)}")
    for i in range(72):
        a(f"v_mov_b32 {v(ACC + i)}, 0")

    def late_setup():
        a("s_waitcnt lgkmcnt(0)")
        a(f"s_lshl_b32 s3, {s(S_B)}, 5")
        a(f"s_add_u32 s3, s3, {s(S_H)}")
        a("s_mul_i32 s3, s3, 36864")
        srd(a, R_O, S_WS, "s3", 36864)
        a(f"s_lshl_b32 s3, {s(S_B)}, 2")
        a(f"s_add_u32 s3, s3, {s(S_HH)}")
        a("s_lshl_b32 s3, s3, 3")
        a(f"s_add_u32 s3, s3, {s(S_G8)}")
        a("s_mul_i32 s3, s3, 30720")
        a(f"s_add_u32 s3, s3, {OFF_P}")
        srd(a, R_P, S_WS, "s3", 30720)
        a(f"s_mov_b32 s3, {OFF_F}")
        srd(a, R_F, S_WS, "s3", 262144)
        a(f"v_lshrrev_b32 {v(VF)}, 1, {v(VM)}")
        a(f"s_mul_i32 s4, {s(S_I)}, 48")
        a(f"v_add_u32 {v(T1)}, s4, {v(VM)}")
        a(f"v_mul_u32_u24 {v(T1)}, 384, {v(T1)}")
        a(f"v_and_b32 {v(T2)}, 1, {v(VG)}")
        a(f"v_lshl_add_u32 {v(T1)}, {v(T2)}, 3, {v(T1)}")
        a(f"v_add_u32 {v(T1)}, {A_K}, {v(T1)}")
        a(f"v_lshrrev_b32 {v(T0)}, 1, {v(VG)}")
        a(f"s_mul_i32 s7, {s(S_I)}, 3")
        for ls in range(6):
            a(f"s_add_u32 s4, s7, {ls}")
            a("s_sub_u32 s5, s4, 6")
            a("s_cmp_ge_u32 s4, 6")
            a("s_cselect_b32 s4, s5, s4")
            a("s_and_b32 s5, s4, 1")
            a("s_lshl_b32 s5, s5, 2")
            a("s_lshr_b32 s4, s4, 1")
            a("s_lshl_b32 s4, s4, 7")
            for hh in range(2):
                a(f"s_add_u32 s6, s5, {2 * hh}")
                a(f"v_or_b32 {v(T2)}, s6, {v(T0)}")
                a(f"v_xor_b32 {v(T2)}, {v(T2)}, {v(VF)}")
                a(f"v_lshl_add_u32 {v(T2)}, {v(T2)}, 4, {v(T1)}")
                a(f"v_add_u32 {v(AZ + 2 * ls + hh)}, s4, {v(T2)}")
        a(f"v_lshrrev_b32 {v(T0)}, 2, {v(VM)}")
        a(f"v_lshl_add_u32 {v(T0)}, {v(VG)}, 2, {v(T0)}")
        a(f"v_lshrrev_b32 {v(VF)}, 1, {v(T0)}")
        a(f"v_and_b32 {v(VF)}, 3, {v(VF)}")
        a(f"v_mul_u32_u24 {v(T1)}, 384, {v(T0)}")
        a(f"v_and_b32 {v(T2)}, 3, {v(VM)}")
        a(f"v_lshl_add_u32 {v(T1)}, {v(T2)}, 3, {v(T1)}")
        a(f"s_mul_i32 s6, {s(S_I)}, 18432")
        a(f"s_add_u32 s7, s6, {A_V}")
        a(f"s_sub_u32 s6, {A_V + 18432}, s6")
        a(f"s_mul_i32 s3, {s(S_I)}, 6")
        for c in range(4):
            a(f"s_add_u32 s4, s3, {c}")
            a("s_and_b32 s5, s4, 3")
            a("s_lshr_b32 s4, s4, 2")
            a("s_lshl_b32 s4, s4, 7")
            a(f"v_xor_b32 {v(T2)}, s5, {v(VF)}")
            a(f"v_lshl_add_u32 {v(T2)}, {v(T2)}, 5, {v(T1)}")
            a(f"v_add_u32 {v(T2)}, s4, {v(T2)}")
            a(f"v_add_u32 {v(AVo + c)}, s7, {v(T2)}")
            a(f"v_add_u32 {v(AVp + c)}, s6, {v(T2)}")
        a(f"v_mul_u32_u24 {v(T0)}, 320, {v(T0)}")
        a(f"v_and_b32 {v(T1)}, 3, {v(VM)}")
        a(f"v_lshl_add_u32 {v(T0)}, {v(T1)}, 3, {v(T0)}")
        a(f"v_add_u32 {v(T0)}, {WO0 + WOS}, {v(T0)}")
        a(f"v_and_b32 {v(T1)}, 1, {v(VG)}")
        a(f"s_mul_i32 s3, {s(S_I)}, 5")
        for par in range(2):
            a(f"s_add_u32 s4, s3, {par}")
            a(f"v_xor_b32 {v(T2)}, s4, {v(T1)}")
            a(f"v_lshl_add_u32 {v(AW + par)}, {v(T2)}, 5, {v(T0)}")
        a(f"s_xor_b32 s5, {s(S_WAVE)}, 2")
        a(f"v_lshlrev_b32 {v(T1)}, 4, v0")
        a(f"s_mul_i32 s3, {s(S_WAVE)}, 9216")
        a(f"s_add_u32 s3, s3, {A_Q}")
        a(f"v_add_u32 {v(AQW)}, s3, {v(T1)}")
        a(f"s_mul_i32 s3, s5, 9216")
        a(f"s_add_u32 s3, s3, {A_Q}")
        a(f"v_add_u32 {v(AQR)}, s3, {v(T1)}")
        a(f"s_mul_i32 s3, {s(S_WAVE)}, 4608")
        a(f"s_add_u32 s3, s3, {A_P}")
        a(f"v_add_u32 {v(APW)}, s3, {v(T1)}")
        a(f"v_lshl_add_u32 {v(APW2)}, v0, 3, s3")
        a(f"s_mul_i32 s3, s5, 4608")
        a(f"s_add_u32 s3, s3, {A_P}")
        a(f"v_add_u32 {v(APR)}, s3, {v(T1)}")
        a(f"v_lshl_add_u32 {v(APR2)}, v0, 3, s3")
        a(f"s_mul_i32 s3, {s(S_WAVE)}, 192")
        a(f"s_add_u32 s3, s3, {A_M}")
        a(f"v_lshl_add_u32 {v(AMW)}, {v(VM)}, 2, s3")
        a(f"s_mul_i32 s3, s5, 192")
        a(f"s_add_u32 s3, s3, {A_M}")
        a(f"v_lshl_add_u32 {v(AMR)}, {v(VM)}, 2, s3")
        a(f"s_mul_i32 s3, {s(S_I)}, 18")
        a(f"s_mul_i32 s4, {s(S_J)}, 3")
        a("s_add_u32 s3, s3, s4")
        a("s_lshl_b32 s3, s3, 10")
        a(f"v_add_u32 {v(AO)}, s3, {v(T1)}")
        a(f"s_mul_i32 s3, {s(S_J)}, 3072")
        a(f"v_add_u32 {v(AB)}, s3, {v(T1)}")
        a(f"s_mul_i32 s3, {s(S_WAVE)}, 7680")
        a(f"v_add_u32 {v(AP)}, s3, {v(T1)}")
        a("s_add_u32 s3, s3, 7168")
        a(f"v_lshl_add_u32 {v(AP2)}, v0, 3, s3")
        a(f"s_lshl_b32 s3, {s(S_B)}, 3")
        a(f"s_add_u32 s3, s3, {s(S_G8)}")
        a("s_lshl_b32 s3, s3, 4")
        a(f"s_lshl_b32 s4, {s(S_HH)}, 2")
        a("s_add_u32 s3, s3, s4")
        a(f"s_add_u32 s3, s3, {s(S_WAVE)}")
        a(f"s_lshl_b32 {s(S_K2)}, s3, 3")
        a(f"s_lshl_b32 s3, {s(S_B)}, 2")
        a(f"s_add_u32 s3, s3, {s(S_HH)}")
        a("s_lshl_b32 s3, s3, 2")
        a(f"s_add_u32 s3, s3, {s(S_WAVE)}")
        a("s_lshl_b32 s3, s3, 4")
        a(f"s_add_u32 s3, s3, {s(S_G8)}")
        a("s_lshl_b32 s3, s3, 3")
        a(f"s_add_u32 {s(S_K3)}, s3, {F2}")
        a(f"v_mov_b32 {v(AFL)}, 0")
        for i in range(4):
            a(f"v_mov_b32 {v(ONES + i)}, 0x3f803f80")
        a(f"v_mov_b32 {v(AOW)}, {A_TAG}")

    def fa(n, dt):
        return FR + 36 * n + 4 * dt

    def fb(n, qt):
        return FR + 36 * n + 24 + 4 * qt

    def p1_reads(n, ks):
        def A(dt):
            return [trread(fa(n, dt) + 2 * hh, AX + dt % 4, 384 * (32 * ks + 4 * hh) + 128 * (dt // 4)) for hh in range(2)]

        def B(qt):
            return [rd128(fb(n, qt), AY + ks, 2048 * qt)]
        r = B(0) + A(0) + B(1) + B(2)
        for dt in range(1, 6):
            r += A(dt)
        return r

    def qtile(dt, qt):
        return ACC + 4 * (3 * dt + qt)

    def p1_mfmas(n):
        return [mfma(qtile(dt, qt), fa(n, dt), fb(n, qt)) for dt in range(6) for qt in range(3)]

    adv = [f"v_add_u32 {v(AX + c)}, {s(S_D)}, {v(AX + c)}" for c in range(4)] + \
          [f"v_add_u32 {v(AY + c)}, {s(S_D)}, {v(AY + c)}" for c in range(2)]
    a(f"s_mov_b32 {s(S_SL)}, 0")
    a(f"s_mov_b32 {s(S_CNT)}, 0")
    a(f"s_mov_b32 {s(S_K0)}, {(-2 * SLOT) & 0xffffffff:#x}")
    a(f"s_mov_b32 {s(S_K1)}, {SLOT}")
    if not cfg.late:
        late_setup()
    st.cyc("setup")
    a("s_barrier")
    st.cyc("b0")
    emit(a, p1_reads(0, 0))
    a("s_waitcnt lgkmcnt(0)")
    a.label("L_p1")
    sl = spread(p1_reads(1, 1), 0, 1)
    sl.setdefault(0, []).append(f"s_add_u32 {s(S_SL)}, {s(S_SL)}, 1")
    sl.setdefault(1, []).append(f"s_cmp_eq_u32 {s(S_SL)}, 3")
    sl.setdefault(2, []).append(f"s_cselect_b32 {s(S_D)}, {s(S_K0)}, {s(S_K1)}")
    sl.setdefault(3, []).append(f"s_cselect_b32 {s(S_SL)}, 0, {s(S_SL)}")
    spread(adv, 15, 2, into=sl)
    emit(a, place(p1_mfmas(0), sl))
    a("s_waitcnt lgkmcnt(0)")
    a("s_barrier")
    sl = spread(p1_reads(0, 0), 0, 1)
    sl.setdefault(15, []).append(f"s_add_u32 {s(S_CNT)}, {s(S_CNT)}, 1")
    sl.setdefault(16, []).append(f"s_cmp_lt_u32 {s(S_CNT)}, 9")
    emit(a, place(p1_mfmas(1), sl))
    a("s_waitcnt lgkmcnt(0)")
    a("s_cbranch_scc1 L_p1")
    emit(a, place(p1_mfmas(0), spread(p1_reads(1, 1), 0, 1)))
    if cfg.ipf & 2:
        a("global_load_dword v14, v7, s[62:63]")
    if cfg.late:
        late_setup()
    a("s_waitcnt lgkmcnt(0)")
    st.cyc("p1end", True)
    a("s_barrier")
    st.cyc("b10")

    def kf(buf, a_):
        return FR + 12 * buf + 4 * a_

    def k_reads(ls, buf):
        return [rd64(kf(buf, a_) + 2 * hh, AZ + 2 * ls + hh, 6144 * a_) for a_ in range(3) for hh in range(2)]

    def qpack(ls):
        r = []
        for dt in (2 * ls, 2 * ls + 1):
            for qt in range(3):
                d = QP + 4 * (3 * ls + qt) + 2 * (dt % 2)
                r += [cvt(d, qtile(dt, qt)), cvt(d + 1, qtile(dt, qt) + 2)]
        return r

    def qwrite(f):
        return f"ds_write_b128 {v(AQW)}, {v(QP + 4 * f, 4)} offset:{1024 * f}"
    SA = ACC

    def stile(a_, qt):
        return SA + 4 * (3 * a_ + qt)

    def s_mfmas(qbase, ls3, buf, first=False, qmajor=False):
        idx = [(a_, qt) for qt in range(3) for a_ in range(3)] if qmajor else [(a_, qt) for a_ in range(3) for qt in range(3)]
        return [mfma(stile(a_, qt), kf(buf, a_), qbase + 4 * (3 * ls3 + qt), 0 if first else None) for a_, qt in idx]

    sl = spread(k_reads(0, 0) + k_reads(1, 1) + k_reads(2, 2), 0, 1)

    spread(qpack(0), 10, 2, step=1, into=sl)
    emit(a, place(p1_mfmas(1), sl))
    emit(a, [qwrite(0)] + qpack(1)[:6] + [qwrite(1)] + qpack(1)[6:] + [qwrite(2)])
    a("s_waitcnt lgkmcnt(3)")
    sl = {}
    spread(qpack(2), 0, 2, into=sl)
    sl.setdefault(1, []).append(qwrite(3))
    sl.setdefault(4, []).append(qwrite(4))
    sl.setdefault(7, []).append(qwrite(5))
    sl.setdefault(10, []).append(qwrite(6))
    sl.setdefault(13, []).append(qwrite(7))
    sl.setdefault(16, []).append(qwrite(8))
    emit(a, place(s_mfmas(QP, 0, 0, True) + s_mfmas(QP, 1, 1), sl))
    a("s_waitcnt lgkmcnt(0)")
    a("s_barrier")
    st.cyc("b11")
    QR = FR + 36
    rds = [rd128(QR + 4 * f, AQR, 1024 * f) for f in range(9)]
    emit(a, place(s_mfmas(QP, 2, 2), spread(rds[:3] + k_reads(3, 0), 0, 2, into=None)))
    a("s_waitcnt lgkmcnt(0)")
    emit(a, place(s_mfmas(QR, 0, 0), spread(rds[3:6] + k_reads(4, 1), 0, 1)))
    a("s_waitcnt lgkmcnt(0)")
    emit(a, place(s_mfmas(QR, 1, 1), spread(rds[6:9] + k_reads(5, 2), 0, 1)))
    a("s_waitcnt lgkmcnt(0)")

    def xs(qt):
        return [stile(a_, qt) + r for a_ in range(3) for r in range(4)]

    def maxchain(qt):
        x = xs(qt)
        r = [f"v_max3_f32 {v(MX + qt)}, {v(x[0])}, {v(x[1])}, {v(x[2])}"]
        for k in range(3, 11, 2):
            r.append(f"v_max3_f32 {v(MX + qt)}, {v(MX + qt)}, {v(x[k])}, {v(x[k + 1])}")
        r.append(f"v_max_f32 {v(MX + qt)}, {v(MX + qt)}, {v(x[11])}")
        return r
    emit(a, s_mfmas(QR, 2, 2, qmajor=True))
    st.cyc("sdone", True)
    a("s_nop 1")
    emit(a, maxchain(0) + maxchain(1) + maxchain(2))
    for op in ("v_permlane16_swap_b32", "v_permlane32_swap_b32"):
        for qt in range(3):
            a(f"v_mov_b32 {v(MX + 3 + qt)}, {v(MX + qt)}")
        for qt in range(3):
            a(f"{op} {v(MX + 3 + qt)}, {v(MX + qt)}")
        for qt in range(3):
            a(f"v_max_f32 {v(MX + qt)}, {v(MX + qt)}, {v(MX + 3 + qt)}")
    for qt in range(3):
        a(f"ds_write_b32 {v(AMW)}, {v(MX + qt)} offset:{64 * qt}")
    a("s_waitcnt lgkmcnt(0)")
    a("s_barrier")
    st.cyc("b12")

    VB0, VB1 = QP, FR + 36
    PP, PC = FR, FR + 24

    def v_reads(step, buf):
        r = []
        for dt in range(6):
            for hh in range(2):
                if step == 0:
                    ad, tile = AVo, hh
                elif step == 1:
                    ad, tile = (AVo, 2) if hh == 0 else (AVp, 2)
                else:
                    ad, tile = AVp, hh
                r.append(trread(buf + 4 * dt + 2 * hh, ad + dt % 4, 6144 * tile + 128 * (dt // 4)))
        return r
    for qt in range(3):
        a(f"ds_read_b32 {v(MX + 3 + qt)}, {v(AMR)} offset:{64 * qt}")
    emit(a, v_reads(0, VB0))
    a("s_waitcnt lgkmcnt(12)" if not st.on else "s_waitcnt lgkmcnt(0)")
    a(f"ds_read_b64 {v(TG, 2)}, {v(AOW)}")
    for qt in range(3):
        a(f"v_max_f32 {v(MX + qt)}, {v(MX + qt)}, {v(MX + 3 + qt)}")
    for qt in range(3):
        a(f"v_mul_f32 {v(MX + qt)}, {s(S_C)}, {v(MX + qt)}")

    def softmax(qt):
        x = xs(qt)
        f = [f"v_fma_f32 {v(y)}, {v(y)}, {s(S_C)}, -{v(MX + qt)}" for y in x]
        e = [f"v_exp_f32 {v(y)}, {v(y)}" for y in x]
        r = f[:2]
        for k in range(12):
            r.append(e[k])
            if k + 2 < 12:
                r.append(f[k + 2])
        c = [cvt(PP + 8 * qt + k, x[2 * k]) for k in range(6)]
        return r + c

    def pwrite(qt):
        return [f"ds_write_b128 {v(APW)}, {v(PP + 8 * qt, 4)} offset:{1536 * qt}",
                f"ds_write_b64 {v(APW2)}, {v(PP + 8 * qt + 4, 2)} offset:{1536 * qt + 1024}"]
    OT = {}
    free = [ACC + 36 + 4 * k for k in range(9)]
    for qt in range(3):
        own = [stile(a_, qt) for a_ in range(3)]
        regs = free[3 * qt:3 * qt + 3] + own
        for dt in range(6):
            OT[(dt, qt)] = regs[dt]

    def pv(vbuf, pfr, qt, first=False, sum_first=False):
        r = [mfma(OT[(dt, qt)], vbuf + 4 * dt, pfr(qt), 0 if first else None) for dt in range(6)]
        sm = [mfma(LS + 4 * qt, ONES, pfr(qt), 0 if first else None)]
        return sm + r if sum_first else r + sm
    fA = lambda qt: PP + 8 * qt
    fB = lambda qt: PP + 8 * qt + 4
    fC = lambda qt: PC + 4 * qt
    emit(a, softmax(0))
    emit(a, pwrite(0))
    a("s_waitcnt lgkmcnt(2)")
    for qt in (1, 2):
        sm = softmax(qt)
        mm = pv(VB0, fA, qt - 1, True)
        out = []
        per = 4
        for k, m in enumerate(mm):
            out += sm[per * k:per * k + per]
            out.append(m)
        out += sm[per * len(mm):]
        emit(a, out)
        emit(a, pwrite(qt))
    a("s_waitcnt lgkmcnt(0)")
    a("s_barrier")
    st.cyc("b13")
    prd = [rd64(PP + 8 * qt + 6, APR2, 1536 * qt + 1024) for qt in range(3)]
    prc = [rd128(PC + 4 * qt, APR, 1536 * qt) for qt in range(3)]
    emit(a, place(pv(VB0, fA, 2, True), spread(prd + v_reads(1, VB1), -1, 2)))
    a("s_waitcnt lgkmcnt(0)")
    mB = pv(VB1, fB, 0) + pv(VB1, fB, 1) + pv(VB1, fB, 2)
    emit(a, place(mB, spread(prc + v_reads(2, VB0), 0, 1)))
    a("s_waitcnt lgkmcnt(0)")
    st.cyc("pvB", True)
    OPQ = [184, 188, 192, 212, 216, 220, 224, 228, 232]

    def finish(qt):
        r = [f"v_rcp_f32 {v(MX + 2 * qt)}, {v(LS + 4 * qt)}", "s_nop 0"]
        r.append(f"v_mov_b32 {v(MX + 2 * qt + 1)}, {v(MX + 2 * qt)}")
        for ls in range(3):
            d = OPQ[3 * ls + qt]
            for half in range(2):
                t = OT[(2 * ls + half, qt)]
                r.append(f"v_pk_mul_f32 {v(t, 2)}, {v(t, 2)}, {v(MX + 2 * qt, 2)}")
                r.append(f"v_pk_mul_f32 {v(t + 2, 2)}, {v(t + 2, 2)}, {v(MX + 2 * qt, 2)}")
            for half in range(2):
                t = OT[(2 * ls + half, qt)]
                r += [cvt(d + 2 * half, t), cvt(d + 2 * half + 1, t + 2)]
            off = (ls * 6 + qt) * 1024
            r.append(f"s_mov_b32 s3, {off}")
            r.append(f"buffer_store_dwordx4 {v(d, 4)}, {v(AO)}, {s(R_O, 4)}, s3 offen {['', 'sc1', 'nt', 'sc0', 'sc0 sc1'][cfg.stsc1]}")
            r.append(f"ds_write_b128 {v(AO)}, {v(d, 4)} offset:{off}")
        return r
    emit(a, pv(VB0, fC, 0, sum_first=True))
    m1 = pv(VB0, fC, 1, sum_first=True)
    emit(a, m1)
    m2 = pv(VB0, fC, 2, sum_first=True)
    f0 = finish(0)
    out = []
    for k, m in enumerate(m2):
        out.append(m)
        out += f0[2 * k:2 * k + 2]
    out += f0[2 * len(m2):]
    emit(a, out)
    emit(a, finish(1) + finish(2))
    st.cyc("ostore")
    a("s_waitcnt lgkmcnt(0)")
    a("s_barrier")

    def flag1():
        a("s_waitcnt vmcnt(0)")
        a("s_mov_b64 exec, 1")
        a(f"buffer_store_dwordx2 {v(TG, 2)}, {v(AFL)}, {s(R_F, 4)}, {s(S_K2)} offen {'sc1' if cfg.f1sc1 else ''}")
        a("s_mov_b64 exec, -1")
        st.cyc("flag1")
    if cfg.n13 == 0:
        flag1()

    A4 = ACC

    def ga(n, tt):
        return FR + 32 * n + 4 * tt

    def gb(n, qt):
        return FR + 32 * n + 20 + 4 * qt

    def p4_reads(n, ks):
        def A(tt):
            return [trread(ga(n, tt) + 2 * hh, AW + tt % 2, 320 * (32 * ks + 16 * hh) + 64 * (tt // 2)) for hh in range(2)]

        def B(qt):
            return [rd128(gb(n, qt), AB, 6144 * ks + 1024 * qt)]
        r = B(0) + A(0) + B(1) + B(2)
        for tt in range(1, 5):
            r += A(tt)
        return r

    def p4_mfmas(n, first=False):
        return [mfma(A4 + 4 * (3 * tt + qt), ga(n, tt), gb(n, qt), 0 if first else None) for tt in range(5) for qt in range(3)]
    adv4 = [f"v_add_u32 {v(AW + c)}, {s(S_D)}, {v(AW + c)}" for c in range(2)] + [f"v_add_u32 {v(AB)}, {s(S_D2)}, {v(AB)}"]
    a(f"s_mov_b32 {s(S_K0)}, {(-3 * WOS) & 0xffffffff:#x}")
    a(f"s_mov_b32 {s(S_K1)}, {WOS}")
    a(f"s_mov_b32 s6, {(-5 * OS) & 0xffffffff:#x}")
    a(f"s_mov_b32 s7, {OS}")
    a(f"s_mov_b32 {s(S_SL)}, 1")
    a(f"s_mov_b32 {s(S_SL2)}, 0")
    a(f"s_mov_b32 {s(S_CNT)}, 0")
    if cfg.n13 == 0:
        a("s_barrier")
    st.cyc("B0")
    emit(a, p4_reads(0, 0))
    a("s_waitcnt lgkmcnt(0)")

    def p4_stage(first, mid, count):
        sl = spread(p4_reads(1, 1), 0, 1)
        sc = [f"s_add_u32 {s(S_SL)}, {s(S_SL)}, 1", f"s_cmp_eq_u32 {s(S_SL)}, 4",
              f"s_cselect_b32 {s(S_D)}, {s(S_K0)}, {s(S_K1)}", f"s_cselect_b32 {s(S_SL)}, 0, {s(S_SL)}",
              f"s_add_u32 {s(S_SL2)}, {s(S_SL2)}, 1", f"s_cmp_eq_u32 {s(S_SL2)}, 6",
              f"s_cselect_b32 {s(S_D2)}, s6, s7", f"s_cselect_b32 {s(S_SL2)}, 0, {s(S_SL2)}"]
        spread(sc, 0, 1, into=sl)
        spread(adv4, 13, 2, into=sl)
        emit(a, place(p4_mfmas(0, first), sl))
        a("s_waitcnt lgkmcnt(0)")
        mid()
        sl = spread(p4_reads(0, 0), 0, 1)
        if count:
            sl.setdefault(12, []).append(f"s_add_u32 {s(S_CNT)}, {s(S_CNT)}, 1")
            sl.setdefault(13, []).append(f"s_cmp_lt_u32 {s(S_CNT)}, 10")
        emit(a, place(p4_mfmas(1), sl))
        a("s_waitcnt lgkmcnt(0)")

    def mid_loop():
        if cfg.n13 == 2:
            a(f"s_cmp_eq_u32 {s(S_CNT)}, 0")
            a("s_cbranch_scc0 L_p4nf")
            flag1()
            a.label("L_p4nf")
        a(f"s_cmp_eq_u32 {s(S_CNT)}, 1")
        a("s_cbranch_scc0 L_p4bar")
        st.cyc("own")
        a("s_barrier")
        a.label("L_p4bar")
        a("s_barrier")

    def mid0():
        if cfg.n13 == 1:
            flag1()
        if cfg.n13 < 2:
            a("s_barrier")
    p4_stage(True, mid0, False)
    a.label("L_p4")
    p4_stage(False, mid_loop, True)
    a("s_cbranch_scc1 L_p4")
    st.cyc("p4loop")
    emit(a, place(p4_mfmas(0), spread(p4_reads(1, 1), 0, 1)))
    a("s_waitcnt lgkmcnt(0)")
    PK = QP

    def tile(tt, qt):
        return A4 + 4 * (3 * tt + qt)
    order = [(2 * qt, (0, qt), (1, qt)) for qt in range(3)] + [(2 * qt + 1, (2, qt), (3, qt)) for qt in range(3)] + [(6, (4, 0), (4, 1))]
    ep = []
    for n, (bi, t0, t1) in enumerate(order):
        d = PK + 4 * n
        ep.append([cvt(d, tile(*t0)), cvt(d + 1, tile(*t0) + 2), cvt(d + 2, tile(*t1)), cvt(d + 3, tile(*t1) + 2),
                   f"s_mov_b32 s3, {1024 * bi}",
                   f"buffer_store_dwordx4 {v(d, 4)}, {v(AP)}, {s(R_P, 4)}, s3 offen sc1"])
    ep.append([cvt(PK + 28, tile(4, 2)), cvt(PK + 29, tile(4, 2) + 2),
               f"buffer_store_dwordx2 {v(PK + 28, 2)}, {v(AP2)}, {s(R_P, 4)}, 0 offen sc1"])
    flat = sum(ep, [])
    mm = p4_mfmas(1)
    sl = spread(flat[:6], 10, 2)
    emit(a, place(mm, sl))
    emit(a, flat[6:])
    st.cyc("pstore")
    a("s_waitcnt vmcnt(0)")
    a("s_mov_b64 exec, 1")
    a(f"buffer_store_dwordx2 {v(TG, 2)}, {v(AFL)}, {s(R_F, 4)}, {s(S_K3)} offen sc1")
    st.cyc("flag2")
    st.real("real1")
    st.flush("C")
    a.label("L_last")
    a("s_endpgm")


def reduce_addr(a, tid, vtmp, A0, A1, s_g8):
    SG, W, C, X, Y, OFFS = vtmp, vtmp + 1, vtmp + 2, vtmp + 3, vtmp + 4, vtmp + 5
    a(f"s_mul_i32 s3, {s_g8}, 240")
    a(f"v_add_u32 {v(SG)}, s3, {v(tid)}")
    a(f"v_lshlrev_b32 {v(OFFS)}, 4, {v(SG)}")
    a(f"v_mul_u32_u24 {v(W)}, 2185, {v(SG)}")
    a(f"v_lshrrev_b32 {v(W)}, 20, {v(W)}")
    a(f"v_mul_u32_u24 {v(X)}, 480, {v(W)}")
    a(f"v_sub_u32 {v(C)}, {v(SG)}, {v(X)}")
    a(f"v_and_b32 {v(X)}, 1, {v(W)}")
    a(f"v_mul_u32_u24 {v(X)}, {48 * 1280}, {v(X)}")
    a(f"v_lshrrev_b32 {v(W)}, 1, {v(W)}")
    a(f"v_mul_u32_u24 {v(W)}, 160, {v(W)}")
    a(f"v_add_u32 {v(W)}, {v(W)}, {v(X)}")
    a(f"v_lshrrev_b32 {v(SG)}, 6, {v(C)}")
    a(f"v_and_b32 {v(C)}, 63, {v(C)}")
    a(f"v_cmp_eq_u32 vcc, 7, {v(SG)}")
    a(f"v_lshlrev_b32 {v(X)}, 1, {v(C)}")
    a("s_nop 0")
    a(f"v_cndmask_b32 {v(C)}, {v(C)}, {v(X)}, vcc")
    a(f"v_and_b32 {v(X)}, 15, {v(C)}")
    a(f"v_mul_u32_u24 {v(X)}, 1280, {v(X)}")
    a(f"v_lshrrev_b32 {v(C)}, 4, {v(C)}")
    a(f"v_lshl_add_u32 {v(X)}, {v(C)}, 3, {v(X)}")
    a(f"v_add_u32 {v(W)}, {v(W)}, {v(X)}")
    a(f"v_lshrrev_b32 {v(X)}, 1, {v(SG)}")
    a(f"v_mul_u32_u24 {v(X)}, {16 * 1280}, {v(X)}")
    a(f"v_and_b32 {v(Y)}, 1, {v(SG)}")
    a(f"v_lshl_add_u32 {v(X)}, {v(Y)}, 6, {v(X)}")
    a(f"v_mov_b32 {v(Y)}, 32")
    a(f"v_cmp_eq_u32 vcc, 6, {v(SG)}")
    a(f"v_mov_b32 {v(C)}, 128")
    a(f"v_mov_b32 {v(A1)}, {16 * 1280}")
    a(f"v_cndmask_b32 {v(X)}, {v(X)}, {v(C)}, vcc")
    a(f"v_cndmask_b32 {v(Y)}, {v(Y)}, {v(A1)}, vcc")
    a(f"v_cmp_eq_u32 vcc, 7, {v(SG)}")
    a(f"v_mov_b32 {v(C)}, {32 * 1280 + 128}")
    a(f"v_mov_b32 {v(A1)}, 1280")
    a(f"v_cndmask_b32 {v(X)}, {v(X)}, {v(C)}, vcc")
    a(f"v_cndmask_b32 {v(Y)}, {v(Y)}, {v(A1)}, vcc")
    a(f"v_add_u32 {v(A0)}, {v(W)}, {v(X)}")
    a(f"v_add_u32 {v(A1)}, {v(A0)}, {v(Y)}")
    return OFFS


def gen_loader(a, cfg):
    st = Stamps(a, cfg)
    st.n = 2
    st.names = ["real0", "cyc0"]
    R_X, R_WQ, R_K, R_V, R_T = 8, 12, 16, 20, 56
    R_WO, R_OI, R_PI, R_OUT = 8, 12, 16, 20
    S_LW, S_SW, S_SX, S_LDS, S_N, S_KK, S_PK = 50, 51, 52, 53, 54, 55, 49
    S_MW, S_MX, S_LDO = 62, 63, 7
    OW, OX, OK_, OV, OWO, OO = 16, 22, 25, 34, 43, 48
    RRc, UUc = 52, 55
    AT, AF1, AF2, TG, PT = 58, 59, 60, 62, 64
    A0, A1, RT = 66, 67, 68
    JK = 74
    T0, T1, T2 = 4, 5, 6
    ntx = "nt" if cfg.ntx else ""

    a(f"s_sub_u32 {s(S_LW)}, {s(S_WAVE)}, 4")
    for c in range(3):
        a(f"v_add_u32 {v(T0)}, {64 * c}, v0")
        a(f"v_mul_u32_u24 {v(T1)}, 2731, {v(T0)}")
        a(f"v_lshrrev_b32 {v(RRc + c)}, 16, {v(T1)}")
        a(f"v_mul_u32_u24 {v(T1)}, 24, {v(RRc + c)}")
        a(f"v_sub_u32 {v(UUc + c)}, {v(T0)}, {v(T1)}")
    a(f"s_mul_i32 s3, {s(S_LW)}, 3")
    a(f"v_lshrrev_b32 {v(T2)}, 4, v0")
    a(f"v_and_b32 v7, 7, v0")
    a(f"v_lshrrev_b32 v8, 3, v0")
    for c in range(3):
        a(f"s_add_u32 s4, s3, {c}")
        a("s_lshl_b32 s6, s4, 3")
        a("s_and_b32 s4, s4, 1")
        a("s_lshl_b32 s4, s4, 2")
        a(f"v_or_b32 {v(T0)}, s4, {v(T2)}")
        a(f"v_xor_b32 {v(T0)}, {v(T0)}, v7")
        a(f"v_add_u32 {v(T1)}, s6, v8")
        a(f"v_mul_u32_u24 {v(T1)}, 1280, {v(T1)}")
        a(f"v_lshl_add_u32 {v(OX + c)}, {v(T0)}, 4, {v(T1)}")
    a(f"s_lshl_b32 s3, {s(S_LW)}, 4")
    for aa in range(2):
        for c in range(3):
            a(f"v_bfe_u32 {v(T0)}, {v(RRc + c)}, 1, 1")
            a(f"v_or_b32 {v(T0)}, {2 * aa}, {v(T0)}")
            a(f"v_lshlrev_b32 {v(T0)}, 1, {v(T0)}")
            a(f"v_xor_b32 {v(T0)}, {v(T0)}, {v(UUc + c)}")
            a(f"s_add_u32 s4, s3, {8 * aa}")
            a(f"v_add_u32 {v(T1)}, s4, {v(RRc + c)}")
            a(f"v_mul_u32_u24 {v(T1)}, 12288, {v(T1)}")
            a(f"v_lshl_add_u32 {v(OW + 3 * aa + c)}, {v(T0)}, 4, {v(T1)}")
    a(f"s_mul_i32 {s(S_MW)}, {s(S_LW)}, 6144")
    a(f"s_mul_i32 {s(S_MX)}, {s(S_LW)}, 3072")
    a(f"s_add_u32 {s(S_MX)}, {s(S_MX)}, 24576")
    if cfg.rot == 0:
        a(f"s_mov_b32 {s(S_KK)}, 0")
    elif cfg.rot in (1, 3):
        a(f"s_mul_i32 s3, {s(S_HH)}, 5")
        a("s_add_u32 s3, s3, 1")
        a("s_lshr_b32 s3, s3, 1")
        a(f"s_add_u32 s3, s3, {s(S_B)}")
        if cfg.rot == 3:
            a(f"s_add_u32 s3, s3, {s(S_G8)}")
        for _ in range(2):
            a("s_sub_u32 s4, s3, 10")
            a("s_cmp_ge_u32 s3, 10")
            a("s_cselect_b32 s3, s4, s3")
        a(f"s_mov_b32 {s(S_KK)}, s3")
    elif cfg.rot >= 8:
        fb = {8: [0, 2, 4, 6, 8, 0, 2, 4], 9: [0, 5, 0, 5, 0, 5, 0, 5], 10: [0, 3, 5, 8, 0, 3, 5, 8],
              11: [0, 3, 7, 0, 3, 7, 0, 3], 12: [0, 1, 2, 4, 5, 6, 8, 9]}[cfg.rot]
        word = sum(x << (4 * i) for i, x in enumerate(fb))
        a(f"s_lshl_b32 s3, {s(S_B)}, 2")
        a(f"s_lshr_b32 s3, {word:#x}, s3")
        a("s_and_b32 s3, s3, 15")
        a(f"s_lshl_b32 s4, {s(S_HH)}, 2")
        a("s_lshr_b32 s4, 0x8530, s4")
        a("s_and_b32 s4, s4, 15")
        a("s_add_u32 s3, s3, s4")
        a(f"s_add_u32 s3, s3, {s(S_G8)}")
        for _ in range(2):
            a("s_sub_u32 s4, s3, 10")
            a("s_cmp_ge_u32 s3, 10")
            a("s_cselect_b32 s3, s4, s3")
        a(f"s_mov_b32 {s(S_KK)}, s3")
    else:
        R = cfg.rot - 2
        a(f"s_add_u32 s3, {s(S_B)}, {s(S_HH)}")
        for _ in range(10 // R + 1):
            a(f"s_sub_u32 s4, s3, {R}")
            a(f"s_cmp_ge_u32 s3, {R}")
            a("s_cselect_b32 s3, s4, s3")
        a("s_mul_i32 s3, s3, 10")
        a(f"s_mul_i32 s3, s3, {(65536 + R - 1) // R}")
        a("s_lshr_b32 s3, s3, 16")
        a(f"s_add_u32 s3, s3, {s(S_G8)}")
        a("s_sub_u32 s4, s3, 10")
        a("s_cmp_ge_u32 s3, 10")
        a("s_cselect_b32 s3, s4, s3")
        a(f"s_mov_b32 {s(S_KK)}, s3")
    a(f"s_mov_b32 {s(S_LDS)}, 0")
    a("s_waitcnt lgkmcnt(0)")
    st.cyc("karg", True)
    a(f"s_mul_i32 s3, {s(S_B)}, 122880")
    srd(a, R_X, S_X, "s3", 122880)
    a(f"s_mul_i32 s3, {s(S_H)}, 384")
    a("s_sub_u32 s4, 7864320, s3")
    srd(a, R_WQ, S_WQ, "s3", "s4")

    def stage():
        a(f"s_mul_i32 {s(S_SW)}, {s(S_KK)}, {64 * 12288}")
        a(f"s_lshl_b32 {s(S_SX)}, {s(S_KK)}, 7")
        a(f"s_add_u32 s3, {s(S_LDS)}, {s(S_MW)}")
        a(f"s_add_u32 s4, {s(S_LDS)}, {s(S_MX)}")
        for c in range(3):
            dma(a, OX + c, R_X, s(S_SX), "s4", 1024 * c, ntx)
        for p in range(6):
            dma(a, OW + p, R_WQ, s(S_SW), "s3", 1024 * p, "nt" if cfg.ntwq else "")
        a(f"s_add_u32 {s(S_KK)}, {s(S_KK)}, 1")
        a(f"s_cmp_eq_u32 {s(S_KK)}, 10")
        a(f"s_cselect_b32 {s(S_KK)}, 0, {s(S_KK)}")
        a(f"s_add_u32 {s(S_LDS)}, {s(S_LDS)}, {SLOT}")
        a(f"s_cmp_eq_u32 {s(S_LDS)}, {3 * SLOT}")
        a(f"s_cselect_b32 {s(S_LDS)}, 0, {s(S_LDS)}")

    stage()
    st.cyc("issued")
    epoch_load(a)
    if cfg.kpos >= 9:
        table = {9: [1, 2, 3, 4, 5, 6, 7, 8], 10: [8, 8, 8, 8, 7, 6, 5, 4], 11: [8, 8, 7, 7, 6, 6, 5, 5],
                 12: [8, 7, 6, 5, 8, 4, 3, 2], 13: [8, 8, 8, 7, 7, 6, 5, 4]}[cfg.kpos]
        word = sum(x << (4 * i) for i, x in enumerate(table))
        a(f"s_add_u32 s3, {s(S_B)}, {s(S_G8)}")
        a("s_and_b32 s3, s3, 7")
        a("s_lshl_b32 s3, s3, 2")
        a(f"s_lshr_b32 s3, {word:#x}, s3")
        a(f"s_and_b32 {s(S_PK)}, s3, 15")
    else:
        a(f"s_mov_b32 {s(S_PK)}, {cfg.kpos}")

    def late_setup_a():
        a(f"s_lshl_b32 s3, {s(S_B)}, 5")
        a(f"s_add_u32 s3, s3, {s(S_H)}")
        a("s_mul_i32 s3, s3, 36864")
        srd(a, R_K, S_K, "s3", 36864)
        srd(a, R_V, S_V, "s3", 36864)
        a(f"s_mov_b32 s3, {OFF_F}")
        srd(a, R_F, S_WS, "s3", 262144)
        a(f"s_mul_i32 s3, {s(S_LW)}, 24")
        for a2 in range(3):
            a(f"s_mul_i32 s4, {s(S_LW)}, 3")
            a(f"s_add_u32 s4, s4, {a2}")
            a("s_and_b32 s4, s4, 1")
            a("s_lshl_b32 s4, s4, 2")
            a(f"s_add_u32 s6, s3, {8 * a2}")
            for c in range(3):
                a(f"v_lshrrev_b32 {v(T0)}, 1, {v(RRc + c)}")
                a(f"v_add_u32 {v(T1)}, s6, {v(RRc + c)}")
                a(f"v_mul_u32_u24 {v(T1)}, 384, {v(T1)}")
                a(f"v_or_b32 {v(T2)}, s4, {v(T0)}")
                a(f"v_xor_b32 {v(T2)}, {v(T2)}, {v(UUc + c)}")
                a(f"v_lshl_add_u32 {v(OK_ + 3 * a2 + c)}, {v(T2)}, 4, {v(T1)}")
                a(f"v_lshlrev_b32 {v(T2)}, 1, {v(T0)}")
                a(f"v_xor_b32 {v(T2)}, {v(T2)}, {v(UUc + c)}")
                a(f"v_lshl_add_u32 {v(OV + 3 * a2 + c)}, {v(T2)}, 4, {v(T1)}")

    def late_setup_b():
        a(f"s_lshl_b32 s3, {s(S_LW)}, 4")
        for c in range(5):
            a(f"v_add_u32 {v(T0)}, {64 * c}, v0")
            a(f"v_mul_u32_u24 {v(T1)}, 3277, {v(T0)}")
            a(f"v_lshrrev_b32 {v(T1)}, 16, {v(T1)}")
            a(f"v_mul_u32_u24 {v(T2)}, 20, {v(T1)}")
            a(f"v_sub_u32 {v(T0)}, {v(T0)}, {v(T2)}")
            a(f"v_bfe_u32 {v(T2)}, {v(T1)}, 2, 1")
            a(f"v_lshlrev_b32 {v(T2)}, 1, {v(T2)}")
            a(f"v_xor_b32 {v(T0)}, {v(T0)}, {v(T2)}")
            a(f"v_add_u32 {v(T1)}, s3, {v(T1)}")
            a(f"v_mul_u32_u24 {v(T1)}, 1280, {v(T1)}")
            a(f"v_lshl_add_u32 {v(OWO + c)}, {v(T0)}, 4, {v(T1)}")
        a(f"s_mul_i32 s3, {s(S_LW)}, 3072")
        for c in range(3):
            a(f"s_add_u32 s4, s3, {1024 * c}")
            a(f"v_lshl_add_u32 {v(OO + c)}, v0, 4, s4")

    def touch_setup():
        nrow = (12 - cfg.t0) * 2
        a(f"s_lshl_b32 s3, {s(S_B)}, 2")
        a(f"s_add_u32 s3, s3, {s(S_LW)}")
        a(f"s_mul_i32 s3, s3, {nrow}")
        a(f"s_mul_i32 s4, {s(S_HH)}, 192")
        a("s_add_u32 s3, s3, s4")
        a(f"s_add_u32 s3, s3, {64 * cfg.t0}")
        for k in range(-(-3 * nrow // 64)):
            a(f"v_add_u32 {v(T0)}, {64 * k}, v0")
            a(f"v_min_u32 {v(T0)}, {3 * nrow - 1}, {v(T0)}")
            a(f"v_mul_u32_u24 {v(T1)}, 21846, {v(T0)}")
            a(f"v_lshrrev_b32 {v(T1)}, 16, {v(T1)}")
            a(f"v_mul_u32_u24 {v(T2)}, 3, {v(T1)}")
            a(f"v_sub_u32 {v(T0)}, {v(T0)}, {v(T2)}")
            a(f"v_add_u32 {v(T1)}, s3, {v(T1)}")
            a(f"v_subrev_u32 {v(T2)}, 768, {v(T1)}")
            a(f"v_min_u32 {v(T1)}, {v(T1)}, {v(T2)}")
            a(f"v_mul_u32_u24 {v(T1)}, 1280, {v(T1)}")
            a(f"v_lshl_add_u32 {v(AT + 17 * k)}, {v(T0)}, 7, {v(T1)}")
        a(f"s_mul_i32 s3, {s(S_G8)}, 983040")
        a(f"s_mul_i32 s4, {s(S_HH)}, 320")
        a("s_add_u32 s3, s3, s4")
        a("s_sub_u32 s4, 7864320, s3")
        srd(a, R_T, S_WO, "s3", "s4")

    def touch():
        n = -(-3 * (12 - cfg.t0) * 2 // 64) if cfg.t0 < 12 else 0
        for k in range(n):
            a(f"buffer_load_dword {v(JK + 2 * k)}, {v(AT + 17 * k)}, {s(R_T, 4)}, 0 offen")
        return n

    def late_setup_b2():
        a(f"s_lshl_b32 s3, {s(S_B)}, 3")
        a(f"s_add_u32 s3, s3, {s(S_G8)}")
        a("s_lshl_b32 s3, s3, 7")
        a(f"v_and_b32 {v(T0)}, 15, v0")
        a(f"v_lshl_add_u32 {v(AF1)}, {v(T0)}, 3, s3")
        a("s_waitcnt lgkmcnt(0)")
        epoch_tag(a)
        a(f"v_mov_b32 {v(TG)}, {s(S_TAG)}")
        a(f"v_mov_b32 {v(TG + 1)}, {s(S_TAG + 1)}")
        a(f"v_mov_b32 {v(T0)}, {A_TAG}")
        a(f"ds_write_b64 {v(T0)}, {v(TG, 2)}")
        a("s_waitcnt lgkmcnt(0)")

    def issue_kv(off, srd_, base):
        a(f"s_mul_i32 s3, {s(S_LW)}, 9216")
        a(f"s_add_u32 s3, s3, {base}")
        for p in range(9):
            dma(a, off + p, srd_, "0", "s3", 1024 * p, "nt" if cfg.ntkv else "")
    late_setup_a()
    if cfg.t0 < 12:
        touch_setup()
    stage()
    a("s_waitcnt vmcnt(9)")
    st.cyc("landed0")
    a("s_barrier")
    a(f"s_mov_b32 {s(S_N)}, 0")
    a.label("L_lloop")
    if cfg.kpos != 8:
        a(f"s_cmp_eq_u32 {s(S_N)}, {s(S_PK)}")
        a("s_cbranch_scc0 L_nok")
        issue_kv(OK_, R_K, A_K)
        a.label("L_nok")
    stage()
    a("s_waitcnt vmcnt(9)")
    a("s_barrier")
    a(f"s_add_u32 {s(S_N)}, {s(S_N)}, 1")
    a(f"s_cmp_lt_u32 {s(S_N)}, 8")
    a("s_cbranch_scc1 L_lloop")
    st.cyc("b8")
    a(f"s_cmp_eq_u32 {s(S_PK)}, 8")
    a("s_cbranch_scc0 L_vonly")
    issue_kv(OK_, R_K, A_K)
    a("s_waitcnt vmcnt(9)")
    a("s_barrier")
    issue_kv(OV, R_V, A_V)
    a("s_branch L_kvdone")
    a.label("L_vonly")
    issue_kv(OV, R_V, A_V)
    a("s_waitcnt vmcnt(9)")
    a("s_barrier")
    a.label("L_kvdone")
    a("s_waitcnt vmcnt(9)")
    st.cyc("Kland")
    a("s_barrier")
    ntouch = touch() if cfg.tpos == 10 else 0
    a(f"s_mul_i32 s3, {s(S_G8)}, 983040")
    a(f"s_mul_i32 s4, {s(S_HH)}, 320")
    a("s_add_u32 s3, s3, s4")
    a("s_sub_u32 s4, 7864320, s3")
    srd(a, R_WO, S_WO, "s3", "s4")
    a(f"s_lshl_b32 s3, {s(S_B)}, 3")
    a(f"s_add_u32 s3, s3, {s(S_G8)}")
    a(f"s_mul_i32 s3, s3, {4 * 36864}")
    srd(a, R_OI, S_WS, "s3", 4 * 36864)
    a(f"s_lshl_b32 s3, {s(S_B)}, 2")
    a(f"s_add_u32 s3, s3, {s(S_HH)}")
    a(f"s_mul_i32 s3, s3, {8 * 30720}")
    a(f"s_add_u32 s3, s3, {OFF_P}")
    srd(a, R_PI, S_WS, "s3", 8 * 30720)
    a(f"s_mul_i32 {s(S_MW)}, {s(S_LW)}, 5120")
    a(f"s_add_u32 {s(S_MW)}, {s(S_MW)}, {WO0}")
    a(f"s_mul_i32 {s(S_MX)}, {s(S_LW)}, 3072")
    a(f"s_mul_i32 {s(S_KK)}, {s(S_HH)}, 3")
    a(f"s_add_u32 {s(S_PK)}, {s(S_KK)}, 3")
    a(f"s_cmp_eq_u32 {s(S_PK)}, 12")
    a(f"s_cselect_b32 {s(S_PK)}, 0, {s(S_PK)}")
    a(f"s_mov_b32 {s(S_LDS)}, {WOS}")
    a(f"s_mov_b32 {s(S_LDO)}, {3 * OS}")
    a("s_barrier")
    if cfg.tpos == 11:
        ntouch = touch()
    late_setup_b()
    late_setup_b2()
    a(f"s_waitcnt vmcnt({ntouch})")
    st.cyc("Vland")
    a("s_barrier")
    if cfg.tpos == 12:
        touch()
    a(f"s_mul_i32 s3, {s(S_B)}, 122880")
    a(f"s_mul_i32 s4, {s(S_HH)}, 320")
    a("s_add_u32 s3, s3, s4")
    a("s_sub_u32 s4, 983040, s3")
    srd(a, R_OUT, S_OUT, "s3", "s4")

    def wo_stage():
        a("s_call_b64 s[44:45], L_sub_wo")

    def o_stage():
        a("s_call_b64 s[44:45], L_sub_o")

    def wo_body():
        a(f"s_mul_i32 {s(S_SW)}, {s(S_KK)}, {64 * 1280}")
        a(f"s_add_u32 s3, {s(S_LDS)}, {s(S_MW)}")
        for p in range(5):
            dma(a, OWO + p, R_WO, s(S_SW), "s3", 1024 * p, "nt" if cfg.ntwo else "")
        a(f"s_add_u32 {s(S_KK)}, {s(S_KK)}, 1")
        a(f"s_cmp_eq_u32 {s(S_KK)}, 12")
        a(f"s_cselect_b32 {s(S_KK)}, 0, {s(S_KK)}")
        a(f"s_add_u32 {s(S_LDS)}, {s(S_LDS)}, {WOS}")
        a(f"s_cmp_eq_u32 {s(S_LDS)}, {4 * WOS}")
        a(f"s_cselect_b32 {s(S_LDS)}, 0, {s(S_LDS)}")

    def o_body():
        a(f"s_mul_i32 {s(S_SX)}, {s(S_PK)}, {OS}")
        a(f"s_add_u32 s4, {s(S_LDO)}, {s(S_MX)}")
        for c in range(3):
            dma(a, OO + c, R_OI, s(S_SX), "s4", 1024 * c, ["", "sc1", "nt"][cfg.osc1])
        a(f"s_add_u32 {s(S_PK)}, {s(S_PK)}, 1")
        a(f"s_cmp_eq_u32 {s(S_PK)}, 12")
        a(f"s_cselect_b32 {s(S_PK)}, 0, {s(S_PK)}")
        a(f"s_add_u32 {s(S_LDO)}, {s(S_LDO)}, {OS}")
        a(f"s_cmp_eq_u32 {s(S_LDO)}, {6 * OS}")
        a(f"s_cselect_b32 {s(S_LDO)}, 0, {s(S_LDO)}")
    a("s_barrier")
    assert cfg.n13 == 0
    a("s_branch L_second")
    a.label("L_sub_wo")
    wo_body()
    a("s_setpc_b64 s[44:45]")
    a.label("L_sub_o")
    o_body()
    a("s_setpc_b64 s[44:45]")
    a.label("L_second")
    a("s_barrier")
    wo_stage()
    a("s_waitcnt vmcnt(0)")
    st.cyc("wo0")
    a("s_barrier")
    wo_stage()
    wo_stage()
    a("s_waitcnt vmcnt(5)")
    a("s_barrier")
    wo_stage()
    if cfg.early:
        a(f"buffer_load_dwordx2 {v(PT, 2)}, {v(AF1)}, {s(R_F, 4)}, 0 offen sc1")
    a(f"s_waitcnt vmcnt({5 + cfg.early})")
    a("s_barrier")

    def tail(path, nwo0, no0, q0, table):
        q = list(q0)
        nwo, no = [nwo0], [no0]

        def wait_for(n):
            last = max([i for i, (k, _) in enumerate(q) if k[1] <= n] + [-1])
            a(f"s_waitcnt vmcnt({sum(c for _, c in q[last + 1:])})")
        for n in range(3, 12):
            for ch in table.get(n - 1, ""):
                if ch == "w":
                    assert nwo[0] - 4 <= max(n - 2, 2) and nwo[0] >= n + (n > 3), (n, nwo)
                    wo_stage()
                    q.append((("w", nwo[0]), 5))
                    nwo[0] += 1
                else:
                    assert no[0] - 6 <= max(n - 2, 2) and no[0] >= n, (n, no)
                    o_stage()
                    q.append((("o", no[0]), 3))
                    no[0] += 1
            assert nwo[0] > n and no[0] > n
            wait_for(n)
            if n == 3:
                st.cyc("o3") if path == "N" else st.peek(2)
            if n == 11:
                st.cyc("s11") if path == "N" else st.peek(3)
            a("s_barrier")
        assert nwo[0] == 12 and no[0] == 12
    if cfg.early:
        a("s_waitcnt vmcnt(0)")
        a(f"v_cmp_ne_u64 vcc, {v(PT, 2)}, {v(TG, 2)}")
        a("s_nop 1")
        a("s_cbranch_vccnz L_notyet")
        st.peek(0)
        st.peek(1)
        for _ in range(3):
            o_stage()
        a("s_barrier")
        tail("R", 4, 6, [(("o", 3), 3), (("o", 4), 3), (("o", 5), 3)],
             {1: {2: "w", 3: "wo", 4: "wo", 5: "wo", 6: "wo", 7: "wo", 8: "wo", 9: "w"},
              2: {2: "w", 3: "w", 4: "wo", 5: "wo", 6: "wo", 7: "wo", 8: "wo", 9: "wo"}}[cfg.schedr])
        a("s_branch L_final")
        a.label("L_notyet")
    a("s_barrier")
    for _ in range(cfg.pre):
        wo_stage()
    st.cyc("poll1")
    poll(a, "L_poll1", AF1, PT, TG)
    st.cyc("seen1")
    tabs = {3: {1: {2: "ooo", 3: "ooo", 4: "w", 5: "w", 6: "w", 7: "oo", 8: "w", 9: "wo"},
                4: {2: "ooo", 3: "o", 4: "wo", 5: "wo", 6: "wo", 7: "wo", 8: "wo", 9: ""}},
            2: {1: {2: "ooo", 3: "wo", 4: "wo", 5: "wo", 6: "wo", 7: "wo", 8: "wo", 9: ""},
                4: {2: "oo", 3: "woo", 4: "wo", 5: "wo", 6: "wo", 7: "wo", 8: "wo", 9: ""}},
            1: {1: {2: "ooo", 3: "wo", 4: "wo", 5: "wo", 6: "wo", 7: "wo", 8: "wo", 9: "w"},
                4: {2: "oow", 3: "woo", 4: "wo", 5: "wo", 6: "wo", 7: "wo", 8: "wo", 9: ""}}}
    tail("N", 4 + cfg.pre, 3, [], tabs[cfg.pre][cfg.sched])
    a.label("L_final")
    a(f"s_lshl_b32 s3, {s(S_B)}, 2")
    a(f"s_add_u32 s3, s3, {s(S_HH)}")
    a("s_lshl_b32 s3, s3, 2")
    a(f"s_lshr_b32 s4, {s(S_G8)}, 1")
    a("s_add_u32 s3, s3, s4")
    a("s_lshl_b32 s3, s3, 7")
    a(f"s_add_u32 s3, s3, {F2}")
    a(f"v_and_b32 {v(T0)}, 7, v0")
    a(f"v_lshl_add_u32 {v(AF2)}, {v(T0)}, 3, s3")
    a(f"s_lshl_b32 s4, {s(S_LW)}, 6")
    a(f"v_add_u32 v7, s4, v0")
    a(f"v_min_u32 v7, 239, v7")
    offs = reduce_addr(a, 7, RT, A0, A1, s(S_G8))
    D0 = 80
    if not cfg.dynred:
        poll(a, "L_poll2", AF2, PT, TG)
        st.cyc("seen2")
        for g in range(8):
            a(f"s_mov_b32 s3, {30720 * g}")
            a(f"buffer_load_dwordx4 {v(D0 + 4 * g, 4)}, {v(offs)}, {s(R_PI, 4)}, s3 offen sc1")
    else:
        a(f"s_mov_b32 s7, {SPIN_MAX}")
        a("s_mov_b32 s6, 0")
        a.label("L_poll2")
        a(f"buffer_load_dwordx2 {v(PT, 2)}, {v(AF2)}, {s(R_F, 4)}, 0 offen sc1")
        a("s_sub_u32 s7, s7, 1")
        a("s_cmp_eq_u32 s7, 0")
        a("s_cbranch_scc1 L_poll2_out")
        a("s_waitcnt vmcnt(0)")
        a(f"v_cmp_eq_u64 vcc, {v(PT, 2)}, {v(TG, 2)}")
        a("s_nop 1")
        a("s_and_b32 s5, vcc_lo, 0xff")
        a("s_andn2_b32 s4, s5, s6")
        a("s_cbranch_scc0 L_poll2")
        a("s_or_b32 s6, s6, s5")
        for g in range(8):
            a(f"s_bitcmp1_b32 s4, {g}")
            a(f"s_cbranch_scc0 L_r{g}")
            a(f"s_mov_b32 s3, {30720 * g}")
            a(f"buffer_load_dwordx4 {v(D0 + 4 * g, 4)}, {v(offs)}, {s(R_PI, 4)}, s3 offen sc1")
            a.label(f"L_r{g}")
        a("s_cmp_eq_u32 s6, 0xff")
        a("s_cbranch_scc0 L_poll2")
        a.label("L_poll2_out")
        st.cyc("seen2")
        a("s_waitcnt vmcnt(0)")
    AC = 120
    for g in range(8):
        if not cfg.dynred:
            a(f"s_waitcnt vmcnt({7 - g})")
        for r in range(4):
            src = D0 + 4 * g + r
            if g == 0:
                a(f"v_lshlrev_b32 {v(AC + 2 * r)}, 16, {v(src)}")
                a(f"v_and_b32 {v(AC + 2 * r + 1)}, 0xffff0000, {v(src)}")
            else:
                a(f"v_lshlrev_b32 v4, 16, {v(src)}")
                a(f"v_and_b32 v5, 0xffff0000, {v(src)}")
                a(f"v_pk_add_f32 {v(AC + 2 * r, 2)}, {v(AC + 2 * r, 2)}, v[4:5]")
    for r in range(4):
        a(cvt(D0 + r, AC + 2 * r))
    a(f"buffer_store_dwordx2 {v(D0, 2)}, {v(A0)}, {s(R_OUT, 4)}, 0 offen {['', 'sc1', 'nt', 'sc0 sc1'][cfg.outfl]}")
    a(f"buffer_store_dwordx2 {v(D0 + 2, 2)}, {v(A1)}, {s(R_OUT, 4)}, 0 offen {['', 'sc1', 'nt', 'sc0 sc1'][cfg.outfl]}")
    a(f"s_or_b32 s3, {s(S_G8)}, {s(S_HH)}")
    a(f"s_or_b32 s3, s3, {s(S_LW)}")
    a("s_cmp_eq_u32 s3, 0")
    a("s_cbranch_scc0 L_noep")
    a(f"s_lshl_b32 s3, {s(S_B)}, 7")
    a(f"s_add_u32 s3, s3, {FX}")
    a("v_mov_b32 v4, 0")
    a("s_mov_b64 exec, 1")
    a(f"buffer_store_dwordx2 {v(TG, 2)}, v4, {s(R_F, 4)}, s3 offen")
    a.label("L_noep")
    if cfg.diag:
        a("s_waitcnt vmcnt(0)")
    st.cyc("end")
    st.real("real1")
    st.flush("L")


def generate(cfg):
    a = Asm()
    a.lines.append("; @launch grid=(256,1,1) block=(512,1,1) lds=163840")
    a('.amdgcn_target "amdgcn-amd-amdhsa--gfx950"')
    a(".text")
    a(kernel_header(KN))
    a("s_cmp_ge_u32 s2, 256")
    a("s_cbranch_scc1 L_end")
    a("s_load_dwordx16 s[32:47], s[0:1], 0")
    if cfg.diag:
        a(f"s_memrealtime {s(S_T, 2)}")
        a(f"s_memtime {s(S_T + 2, 2)}")
    a("v_lshrrev_b32 v1, 6, v0")
    a("v_and_b32 v0, 63, v0")
    a(f"v_readfirstlane_b32 {s(S_WAVE)}, v1")
    a(f"s_and_b32 {s(S_G8)}, s2, 7")
    a("s_lshr_b32 s4, s2, 3")
    a(f"s_lshr_b32 {s(S_B)}, s4, 2")
    a(f"s_and_b32 {s(S_HH)}, s4, 3")
    a(f"s_lshl_b32 s3, {s(S_G8)}, 2")
    a(f"s_add_u32 {s(S_H)}, s3, {s(S_HH)}")
    a(f"s_cmp_ge_u32 {s(S_WAVE)}, 4")
    a("s_cbranch_scc1 L_loader")
    if cfg.ipf:
        a("s_getpc_b64 s[62:63]")
        a.label("L_pc")
        a(f"s_sub_u32 s62, s62, L_pc-{KN}")
        a("s_subb_u32 s63, s63, 0")
        a(f"s_mul_i32 s3, {s(S_WAVE)}, 40")
        a("v_min_u32 v7, 39, v0")
        a("v_add_u32 v7, s3, v7")
        a("v_lshlrev_b32 v7, 7, v7")
        a(f"v_min_u32 v7, L_last-{KN}, v7")
        if cfg.ipf & 1:
            a("global_load_dword v14, v7, s[62:63]")
    a("s_branch L_compute")
    a.label("L_loader")
    gen_loader(a, cfg)
    a.label("L_end")
    a("s_endpgm")
    a.label("L_compute")
    gen_compute(a, cfg)
    a('.section .rodata,"a"')
    a(".p2align 6")
    a(kernel_desc(KN))
    return a.text()


if __name__ == "__main__":
    cfg = Cfg()
    out = sys.argv[1]
    for opt in sys.argv[2:]:
        k, val = opt.split("=")
        assert hasattr(cfg, k), k
        setattr(cfg, k, val if k == "only" else int(val))
    t = generate(cfg)
    pr = hazard.check(t)
    for p in pr:
        print(f"HAZARD line {p[0]} -> {p[1]}: need {p[2]} have {p[3]}\n    {p[4]}\n    {p[5]}")
    open(out, "w").write(t)
    print(out, "hazards:", len(pr), "lines:", t.count("\n"))
```

```python
import re
import sys

TRANS = ("v_exp_f32", "v_log_f32", "v_rcp_f32", "v_rsq_f32", "v_sqrt_f32", "v_sin_f32", "v_cos_f32")


def regs(tok):
    tok = tok.strip().lstrip("-")
    tok = tok.replace("abs(", "").replace(")", "").strip("|")
    m = re.fullmatch(r"([vsa])(\d+)", tok)
    if m:
        return {(m.group(1), int(m.group(2)))}
    m = re.fullmatch(r"([vsa])\[(\d+):(\d+)\]", tok)
    if m:
        return {(m.group(1), i) for i in range(int(m.group(2)), int(m.group(3)) + 1)}
    if tok == "vcc":
        return {("s", "vcc")}
    if tok == "m0":
        return {("s", "m0")}
    if tok == "exec":
        return {("s", "exec")}
    return set()


class I:
    def __init__(self, line, no):
        self.line, self.no = line.strip(), no
        t = self.line.split(";")[0].strip()
        p = t.split(None, 1)
        self.mn = p[0]
        rest = p[1] if len(p) > 1 else ""
        self.ops = [o.strip() for o in re.split(r",(?![^\[]*\])", rest)] if rest else []
        if self.ops:
            last = self.ops[-1].split()
            self.mods = last[1:]
            self.ops[-1] = last[0] if last else ""
        else:
            self.mods = []
        mn, ops = self.mn, self.ops
        self.kind = "other"
        self.w, self.r = set(), set()
        self.slots = 1
        R = lambda k: set().union(*[regs(o) for o in k]) if k else set()
        if mn == "s_nop":
            self.slots = int(ops[0]) + 1
        if mn.startswith("v_mfma"):
            self.kind = "mfma"
            self.w = regs(ops[0])
            self.ab = R(ops[1:3])
            self.c = regs(ops[3])
            self.r = self.ab | self.c
            self.passes = 8 if "32x32" in mn else 4
        elif mn.startswith("v_permlane"):
            self.kind = "valu"
            self.w = R(ops[:2])
            self.r = R(ops[:2])
        elif mn.startswith("v_cmp"):
            self.kind = "valu"
            self.w = regs(ops[0])
            self.r = R(ops[1:])
        elif mn.startswith("v_"):
            self.kind = "valu"
            self.w = regs(ops[0])
            self.r = R(ops[1:])
            if mn.startswith(("v_fmac", "v_writelane")):
                self.r |= self.w
            if mn.startswith(("v_add_co", "v_addc_co")):
                self.w |= regs(ops[1])
        elif mn.startswith("ds_read"):
            self.kind = "ds"
            self.w = regs(ops[0])
            self.r = regs(ops[1])
        elif mn.startswith("ds_write"):
            self.kind = "ds"
            self.r = R(ops)
        elif mn.startswith("buffer_load"):
            self.kind = "vmem"
            if "lds" in self.mods:
                self.r = R(ops) | {("s", "m0")}
                self.dma = True
            else:
                self.w = regs(ops[0])
                self.r = R(ops[1:])
        elif mn.startswith("buffer_store"):
            self.kind = "vmem"
            self.r = R(ops)
            self.data = regs(ops[0])
        elif mn.startswith("global_load"):
            self.kind = "vmem"
            self.w = regs(ops[0])
            self.r = R(ops[1:])
        elif mn.startswith("global_store"):
            self.kind = "vmem"
            self.r = R(ops)
            self.data = regs(ops[1])
        elif mn.startswith("s_") and ops and not mn.startswith(("s_cmp", "s_cbranch", "s_branch", "s_waitcnt", "s_nop", "s_setprio", "s_sleep", "s_bitcmp")):
            self.kind = "salu"
            self.w = regs(ops[0])
            self.r = R(ops[1:])


def vg(x):
    return {r for r in x if r[0] in "va"}


def sg(x):
    return {r for r in x if r[0] == "s"}


def need(p, c):
    n = 0
    if p.kind == "valu":
        if c.kind == "mfma" and vg(p.w) & c.r:
            n = max(n, 2)
        if re.sub(r"_e(32|64)$", "", p.mn) in TRANS and c.kind == "valu" and re.sub(r"_e(32|64)$", "", c.mn) not in TRANS and vg(p.w) & c.r:
            n = max(n, 1)
        if c.mn.startswith("v_permlane") and vg(p.w) & c.r:
            n = max(n, 2)
        if c.mn.startswith(("v_readfirstlane", "v_readlane")) and vg(p.w) & c.r:
            n = max(n, 1)
        if sg(p.w) and c.kind == "valu" and sg(p.w) & c.r:
            n = max(n, 2)
        if sg(p.w) and c.kind == "vmem" and sg(p.w) & c.r:
            n = max(n, 5)
        if ("dpp" in c.line or "row_" in c.line) and vg(p.w) & c.r:
            n = max(n, 2)
    if p.kind == "mfma":
        big = {4: 8, 8: 12}[p.passes]
        if c.kind == "mfma":
            if p.w & c.ab:
                n = max(n, big)
            if p.w & c.c and p.w != c.c:
                n = max(n, {4: 6, 8: 10}[p.passes])
            if p.w & c.w and p.w != c.c:
                n = max(n, {4: 6, 8: 10}[p.passes])
        elif c.kind in ("valu", "ds", "vmem"):
            if p.w & (c.r | c.w):
                n = max(n, big)
            if c.kind == "valu" and p.c & c.w:
                n = max(n, {4: 3, 8: 7}[p.passes])
    if p.kind == "vmem" and hasattr(p, "data") and ("x4" in p.mn or "x3" in p.mn):
        if c.kind == "valu" and p.data & c.w:
            n = max(n, 2)
        elif p.data & c.w:
            n = max(n, 1)
    if p.kind == "salu" and ("s", "m0") in p.w and getattr(c, "dma", False):
        n = max(n, 1)
    return n


def check_seq(seq, problems):
    for j, c in enumerate(seq):
        dist = 0
        for i in range(j - 1, max(-1, j - 24), -1):
            p = seq[i]
            k = need(p, c)
            if k > dist:
                problems.add((p.no, c.no, k, dist, p.line, c.line))
            dist += p.slots
            if dist > 20:
                break


def check(text):
    ins, labels = [], {}
    for no, ln in enumerate(text.split("\n"), 1):
        t = ln.split(";")[0].strip()
        if not t or t.startswith("."):
            continue
        if t.endswith(":"):
            labels[t[:-1]] = len(ins)
            continue
        ins.append(I(t, no))
    problems = set()
    seg = []
    for x in ins:
        seg.append(x)
        if x.mn in ("s_endpgm", "s_branch"):
            check_seq(seg, problems)
            seg = []
    check_seq(seg, problems)
    for j, x in enumerate(ins):
        if x.mn.startswith(("s_cbranch", "s_branch")) and x.ops[0] in labels:
            i = labels[x.ops[0]]
            check_seq(ins[max(0, j - 24):j + 1] + ins[i:i + 24], problems)
    return sorted(problems)


if __name__ == "__main__":
    pr = check(open(sys.argv[1]).read())
    for p in pr:
        print(f"line {p[0]} -> {p[1]}: need {p[2]} have {p[3]}\n    {p[4]}\n    {p[5]}")
    print("hazards:", len(pr))


def _wait_counts(line):
    r = {}
    for m in re.finditer(r"(vmcnt|lgkmcnt)\((\d+)\)", line):
        r[m.group(1)] = int(m.group(2))
    return r


def check_counters_seq(seq, problems, lg=None, vm=None):
    lg = list(lg or [])
    vm = list(vm or [])
    for x in seq:
        if x.mn == "s_waitcnt":
            w = _wait_counts(x.line)
            if "lgkmcnt" in w:
                n = w["lgkmcnt"]
                lg = lg[len(lg) - n:] if n else []
                if n and any(k == "smem" for k, _, _ in lg):
                    pass
            if "vmcnt" in w:
                n = w["vmcnt"]
                vm = vm[len(vm) - n:] if n else []
            continue
        touched = vg(x.r | x.w)
        for k, regs_, no in lg:
            if regs_ & touched and not (x.kind == "ds" and x.mn.startswith("ds_read") and not (regs_ & vg(x.r))):
                problems.add((no, x.no, "lgkm", 0, "ds result not waited", x.line))
            if k == "write" and regs_ & vg(x.w) and x.kind != "ds":
                pass
        for regs_, no in vm:
            if regs_ & touched:
                problems.add((no, x.no, "vm", 0, "load result not waited", x.line))
        if x.mn == "s_barrier" and lg:
            problems.add((lg[-1][2], x.no, "bar", 0, "LDS op outstanding at barrier", x.line))
        if x.kind == "ds":
            lg.append(("read" if x.mn.startswith("ds_read") else "write", vg(x.w), x.no))
            if len(lg) > 15:
                lg = lg[-15:]
        elif x.kind == "vmem":
            vm.append((vg(x.w), x.no))
    return lg, vm


def check_counters(text):
    ins, labels = [], {}
    for no, ln in enumerate(text.split("\n"), 1):
        t = ln.split(";")[0].strip()
        if not t or t.startswith("."):
            continue
        if t.endswith(":"):
            labels[t[:-1]] = len(ins)
            continue
        ins.append(I(t, no))
    problems = set()
    seg, start = [], 0
    for j, x in enumerate(ins):
        seg.append(x)
        if x.mn.startswith("s_cbranch") and x.ops[0] in labels and start <= labels[x.ops[0]] <= j:
            seg.extend(ins[labels[x.ops[0]]:j + 1])
        if x.mn in ("s_endpgm", "s_branch", "s_setpc_b64"):
            check_counters_seq(seg, problems)
            seg, start = [], j + 1
    check_counters_seq(seg, problems)
    return sorted(problems)
```

```python
import struct
import sys

from asmlib import Asm, v, s, kernel_header, kernel_desc
import hazard

KN = "standalone__gqa_block_cached__near_ridge_kernel"
OFF_O = 0
OFF_P = 16 << 20
OFF_F = 32 << 20
F1, F2, FX = 0, 65536, 131072
OFF_T = 64 << 20
SLOT = 36864
A_K = 3 * SLOT
A_V = 1 * SLOT
A_Q = 2 * SLOT
A_P = 2 * SLOT
A_M = 163840 - 768
A_TAG = A_M - 8
WO0, WOS = 81920, 20480
OS = 12288
PSZ = 30720
CEXP = 0.07216878364870322 * 1.4426950408889634
TAGC = (0x9E3779B9, 0x7F4A7C15)
SPIN_MAX = 1 << 21


def f32bits(x):
    return struct.unpack("<I", struct.pack("<f", x))[0]


class Cfg:
    diag = 0
    only = ""
    rot = 10
    kpos = 9
    dynred = 1
    outfl = 0
    ipf = 3
    tab = 4
    unsafe = 0
    smx = 2
    vbp = 2
    fin = 2
    qv = 6
    sv = 1
    wper = 5
    odef = 1
    fw = 2
    dot2 = 0
    tpos = 10
    pst = 0
    pld = 0


S_X, S_K, S_V, S_WQ, S_WO, S_OUT, S_DBG, S_WS = 32, 34, 36, 38, 40, 42, 44, 46
S_B, S_H, S_WAVE, S_G8, S_HH = 28, 29, 30, 31, 48
S_TAG = 60
R_F = 24
S_T = 64


class Stamps:
    def __init__(self, a, cfg):
        self.a, self.on, self.n = a, cfg.diag, 2
        self.fine = cfg.diag > 1
        self.names = ["real0", "cyc0"]
        self.k = 0
        self.only = cfg.only.split(",") if cfg.only else None

    def real(self, name):
        if self.on:
            self.a(f"s_memrealtime {s(S_T + 2 * self.n, 2)}")
            self.names.append(name)
            self.n += 1

    def cyc(self, name, fine=False):
        if self.only and name not in self.only:
            return
        if not self.only and len(name) <= 3 and name[0] in "afB" and name[1:].isdigit() and name != "B0":
            return
        if self.on and (not fine or self.fine or self.only):
            self.a(f"{'s_memrealtime' if self.on > 2 else 's_memtime'} {s(S_T + 2 * self.n, 2)}")
            self.names.append(name)
            self.n += 1

    def alt(self, name, path, fine=False):
        if path == "N":
            return self.cyc(name, fine)
        if not self.on or (self.only and name not in self.only) or (fine and not self.only):
            return
        self.a(f"{'s_memrealtime' if self.on > 2 else 's_memtime'} {s(S_T + 2 * (self.n + self.k), 2)}")
        self.k += 1

    def flush(self, role, vt=4):
        if not self.on:
            return
        a = self.a
        assert self.n <= 19, self.n
        a("s_waitcnt lgkmcnt(0) vmcnt(0)")
        a(f"; STAMPS {role} " + " ".join(self.names))
        a("s_lshl_b32 s3, s2, 3")
        a(f"s_add_u32 s3, s3, {s(S_WAVE)}")
        a("s_lshl_b32 s3, s3, 8")
        a(f"s_add_u32 s3, s3, {OFF_T}")
        a(f"s_add_u32 s4, {s(S_WS)}, s3")
        a(f"s_addc_u32 s5, {s(S_WS + 1)}, 0")
        a("s_mov_b64 exec, 1")
        a(f"v_mov_b32 {v(vt + 2)}, 0")
        for i in range(self.n):
            a(f"v_mov_b32 {v(vt)}, {s(S_T + 2 * i)}")
            a(f"v_mov_b32 {v(vt + 1)}, {s(S_T + 2 * i + 1)}")
            a(f"global_store_dwordx2 {v(vt + 2)}, {v(vt, 2)}, s[4:5] offset:{8 * i}")
            a("s_nop 1")
        a("s_waitcnt vmcnt(0)")


def srd(a, d, base, off_sgpr, size):
    a(f"s_add_u32 {s(d)}, {s(base)}, {off_sgpr}")
    a(f"s_addc_u32 {s(d + 1)}, {s(base + 1)}, 0")
    a(f"s_mov_b32 {s(d + 2)}, {size}")
    a(f"s_mov_b32 {s(d + 3)}, 0x20000")


def dma(a, voff, srd_, soff, base, imm, fl=""):
    a(f"s_add_u32 m0, {base}, {imm}")
    a("s_nop 0")
    a(f"buffer_load_dwordx4 {v(voff)}, {s(srd_, 4)}, {soff} offen {fl} lds")


def mfma(d, a_, b_, c=None):
    cs = v(d, 4) if c is None else str(c)
    return f"v_mfma_f32_16x16x32_bf16 {v(d, 4)}, {v(a_, 4)}, {v(b_, 4)}, {cs}"


def trread(d, addr, off):
    assert 0 <= off < 65536
    return f"ds_read_b64_tr_b16 {v(d, 2)}, {v(addr)} offset:{off}"


def rd128(d, addr, off):
    assert 0 <= off < 65536
    return f"ds_read_b128 {v(d, 4)}, {v(addr)} offset:{off}"


def rd64(d, addr, off):
    assert 0 <= off < 65536
    return f"ds_read_b64 {v(d, 2)}, {v(addr)} offset:{off}"


def cvt(d, t):
    return f"v_cvt_pk_bf16_f32 {v(d)}, {v(t)}, {v(t + 1)}"


def emit(a, lst):
    for x in lst:
        a(x)


def place(main, slots):
    out = list(slots.get(-1, []))
    for i, m in enumerate(main):
        out.append(m)
        out.extend(slots.get(i, []))
    for k in sorted(slots):
        if k >= len(main):
            out.extend(slots[k])
    return out


def spread(fill, start, per=1, step=1, into=None):
    d = into if into is not None else {}
    i, k = start, 0
    while k < len(fill):
        d.setdefault(i, []).extend(fill[k:k + per])
        k += per
        i += step
    return d


def at(d, i, *x):
    d.setdefault(i, []).extend(x)


def lg(n):
    return f"s_waitcnt lgkmcnt({n})"


def mod_small(a, reg, m, times):
    for _ in range(times):
        a(f"s_sub_u32 s4, {reg}, {m}")
        a(f"s_cmp_ge_u32 {reg}, {m}")
        a(f"s_cselect_b32 {reg}, s4, {reg}")


def tile_addrs(a, dst, first, f, lanepart, tmp, extra=None):
    for c in range(4):
        a(f"s_add_u32 s4, {first}, {c}")
        a("s_and_b32 s5, s4, 3")
        a("s_lshr_b32 s4, s4, 2")
        a("s_lshl_b32 s4, s4, 7")
        a(f"v_xor_b32 {v(tmp)}, s5, {v(f)}")
        a(f"v_lshl_add_u32 {v(tmp)}, {v(tmp)}, 5, {v(lanepart)}")
        a(f"v_add_u32 {v(dst + c)}, s4, {v(tmp)}")


def gen_compute(a, cfg):
    st = Stamps(a, cfg)
    R_O, R_P = 8, 12
    ACC, FR, QP, LS, ONES = 16, 88, 160, 196, 208
    AX, AY, AZ, AVo, AVp = 212, 216, 218, 230, 234
    AQW, AQR, AMW, AMR, APW, APR, APW2, APR2, AO, AOW = range(238, 248)
    AW, AB, AP, AP2, TG, ZERO = 248, 250, 251, 252, 254, 15
    VM, VG, VF, T0, T1, T2 = 1, 2, 3, 4, 5, 6
    MX = 8
    S_I, S_J, S_C, S_D, S_CNT, S_SL, S_D2, S_SL2 = 50, 51, 52, 54, 55, 56, 57, 18
    S_K0, S_K1, S_F1, S_F2 = 58, 59, 16, 17

    a(f"s_lshr_b32 {s(S_I)}, {s(S_WAVE)}, 1")
    a(f"s_and_b32 {s(S_J)}, {s(S_WAVE)}, 1")
    a(f"s_mov_b32 {s(S_C)}, {f32bits(CEXP):#x}")
    a(f"s_mov_b32 {s(S_C + 1)}, {f32bits(CEXP):#x}")
    a(f"v_and_b32 {v(VM)}, 15, v0")
    a(f"v_lshrrev_b32 {v(VG)}, 4, v0")
    a(f"v_lshrrev_b32 {v(T0)}, 2, {v(VM)}")
    a(f"v_lshl_add_u32 {v(T1)}, {v(VG)}, 3, {v(T0)}")
    a(f"v_mul_u32_u24 {v(T1)}, 384, {v(T1)}")
    a(f"v_and_b32 {v(T2)}, 3, {v(VM)}")
    a(f"v_lshlrev_b32 v11, 3, {v(T2)}")
    a(f"v_add_u32 {v(T1)}, v11, {v(T1)}")
    a(f"v_and_b32 {v(T2)}, 1, {v(VG)}")
    a(f"v_lshrrev_b32 {v(VF)}, 3, {v(VM)}")
    a(f"v_lshl_or_b32 {v(VF)}, {v(T2)}, 1, {v(VF)}")
    a(f"s_mul_i32 s3, {s(S_I)}, 6")
    tile_addrs(a, AX, "s3", VF, T1, T2)
    a(f"s_mul_i32 s4, {s(S_J)}, 48")
    a(f"v_add_u32 {v(T1)}, s4, {v(VM)}")
    a(f"v_lshlrev_b32 {v(T1)}, 7, {v(T1)}")
    a(f"v_add_u32 {v(T1)}, 24576, {v(T1)}")
    a(f"v_lshrrev_b32 {v(VF)}, 1, {v(VM)}")
    for ks in range(2):
        a(f"v_add_u32 {v(T2)}, {4 * ks}, {v(VG)}")
        a(f"v_xor_b32 {v(T2)}, {v(T2)}, {v(VF)}")
        a(f"v_lshl_add_u32 {v(AY + ks)}, {v(T2)}, 4, {v(T1)}")
    for i in range(72):
        a(f"v_mov_b32 {v(ACC + i)}, 0")
    a(f"s_mul_i32 s4, {s(S_I)}, 48")
    a(f"v_add_u32 {v(T1)}, s4, {v(VM)}")
    a(f"v_mul_u32_u24 {v(T1)}, 384, {v(T1)}")
    a(f"v_and_b32 {v(T2)}, 1, {v(VG)}")
    a(f"v_lshl_add_u32 {v(T1)}, {v(T2)}, 3, {v(T1)}")
    a(f"v_add_u32 {v(T1)}, {A_K}, {v(T1)}")
    a(f"v_lshrrev_b32 {v(T0)}, 1, {v(VG)}")
    a(f"v_xor_b32 {v(T0)}, {v(T0)}, {v(VF)}")
    a(f"v_lshl_add_u32 {v(T1)}, {v(T0)}, 4, {v(T1)}")
    a(f"s_mul_i32 s7, {s(S_I)}, 3")
    for ls in range(6):
        a(f"s_add_u32 s6, s7, {ls}")
        mod_small(a, "s6", 6, 1)
        a("s_and_b32 s5, s6, 1")
        a("s_lshl_b32 s5, s5, 6")
        a("s_lshr_b32 s6, s6, 1")
        a("s_lshl_b32 s6, s6, 7")
        a(f"v_add_u32 {v(T2)}, s6, {v(T1)}")
        a(f"v_xor_b32 {v(AZ + 2 * ls)}, s5, {v(T2)}")
        a(f"v_xor_b32 {v(AZ + 2 * ls + 1)}, 32, {v(AZ + 2 * ls)}")
    a(f"v_lshrrev_b32 {v(T0)}, 2, {v(VM)}")
    a(f"v_lshl_add_u32 {v(T0)}, {v(VG)}, 2, {v(T0)}")
    a(f"v_bfe_u32 {v(VF)}, {v(T0)}, 1, 2")
    a(f"v_mul_u32_u24 {v(T1)}, 384, {v(T0)}")
    a(f"v_add_u32 {v(T1)}, v11, {v(T1)}")
    a(f"s_mul_i32 s6, {s(S_I)}, 18432")
    a(f"s_add_u32 s7, s6, {A_V}")
    a(f"v_add_u32 {v(T1)}, s7, {v(T1)}")
    a(f"s_mul_i32 s3, {s(S_I)}, 6")
    tile_addrs(a, AVo, "s3", VF, T1, T2)
    a("s_lshl_b32 s6, s6, 1")
    a("s_sub_u32 s6, 18432, s6")
    for c in range(4):
        a(f"v_add_u32 {v(AVp + c)}, s6, {v(AVo + c)}")
    a(f"v_mul_u32_u24 {v(T1)}, 320, {v(T0)}")
    a(f"v_add_u32 {v(T1)}, v11, {v(T1)}")
    a(f"v_add_u32 {v(T1)}, {WO0 + WOS}, {v(T1)}")
    a(f"v_and_b32 {v(T0)}, 1, {v(VG)}")
    a(f"s_mul_i32 s3, {s(S_I)}, 5")
    for par in range(2):
        a(f"s_add_u32 s4, s3, {par}")
        a(f"v_xor_b32 {v(T2)}, s4, {v(T0)}")
        a(f"v_lshl_add_u32 {v(AW + par)}, {v(T2)}, 5, {v(T1)}")
    a(f"s_xor_b32 s5, {s(S_WAVE)}, 2")
    a(f"v_lshlrev_b32 {v(T1)}, 4, v0")
    a(f"v_lshlrev_b32 {v(T0)}, 3, v0")
    a(f"v_lshlrev_b32 {v(T2)}, 2, {v(VM)}")
    for wv, (q_, p_, p2, m_) in ((s(S_WAVE), (AQW, APW, APW2, AMW)), ("s5", (AQR, APR, APR2, AMR))):
        a(f"s_mul_i32 s3, {wv}, 9216")
        a(f"s_add_u32 s3, s3, {A_Q}")
        a(f"v_add_u32 {v(q_)}, s3, {v(T1)}")
        a(f"s_mul_i32 s3, {wv}, 4608")
        a(f"s_add_u32 s3, s3, {A_P}")
        a(f"v_add_u32 {v(p_)}, s3, {v(T1)}")
        a(f"v_add_u32 {v(p2)}, s3, {v(T0)}")
        a(f"s_mul_i32 s3, {wv}, 192")
        a(f"s_add_u32 s3, s3, {A_M}")
        a(f"v_add_u32 {v(m_)}, s3, {v(T2)}")
    a(f"s_mul_i32 s3, {s(S_I)}, 18")
    a(f"s_mul_i32 s4, {s(S_J)}, 3")
    a("s_add_u32 s3, s3, s4")
    a("s_lshl_b32 s3, s3, 10")
    a(f"v_add_u32 {v(AO)}, s3, {v(T1)}")
    a(f"s_mul_i32 s3, {s(S_J)}, 3072")
    a(f"v_add_u32 {v(AB)}, s3, {v(T1)}")
    a(f"s_mul_i32 s3, {s(S_WAVE)}, 7680")
    a(f"v_add_u32 {v(AP)}, s3, {v(T1)}")
    a("s_add_u32 s3, s3, 7168")
    a(f"v_add_u32 {v(AP2)}, s3, {v(T0)}")
    a(f"v_mov_b32 {v(AOW)}, {A_TAG}")
    a(f"v_mov_b32 {v(ZERO)}, 0")
    for i in range(4):
        a(f"v_mov_b32 {v(ONES + i)}, 0x3f803f80")
    a(f"s_lshl_b32 s3, {s(S_B)}, 5")
    a(f"s_add_u32 s3, s3, {s(S_H)}")
    a("s_lshl_b32 s4, s3, 2")
    a(f"s_add_u32 s4, s4, {s(S_WAVE)}")
    a(f"s_lshl_b32 {s(S_F1)}, s4, 3")
    a(f"s_lshl_b32 s4, {s(S_B)}, 2")
    a(f"s_add_u32 s4, s4, {s(S_HH)}")
    a("s_lshl_b32 s6, s4, 2")
    a(f"s_add_u32 s6, s6, {s(S_WAVE)}")
    a("s_lshl_b32 s6, s6, 4")
    a(f"s_add_u32 s6, s6, {s(S_G8)}")
    a("s_lshl_b32 s6, s6, 3")
    a(f"s_add_u32 {s(S_F2)}, s6, {F2}")
    a("s_lshl_b32 s4, s4, 3")
    a(f"s_add_u32 s4, s4, {s(S_G8)}")
    a(f"s_mul_i32 s4, s4, {PSZ}")
    a(f"s_add_u32 s4, s4, {OFF_P}")
    a("s_mul_i32 s3, s3, 36864")
    a("s_waitcnt lgkmcnt(0)")
    srd(a, R_O, S_WS, "s3", 36864)
    srd(a, R_P, S_WS, "s4", PSZ)
    srd(a, R_F, S_WS, f"{OFF_F}", 262144)

    def fa(n, dt):
        return FR + 36 * n + 4 * dt

    def fb(n, qt):
        return FR + 36 * n + 24 + 4 * qt

    def p1_reads(n, ks):
        def A(dt):
            return [trread(fa(n, dt) + 2 * hh, AX + dt % 4, 384 * (32 * ks + 4 * hh) + 128 * (dt // 4)) for hh in range(2)]

        def B(qt):
            return [rd128(fb(n, qt), AY + ks, 2048 * qt)]
        r = B(0) + A(0) + B(1) + B(2)
        for dt in range(1, 6):
            r += A(dt)
        return r

    def qtile(dt, qt):
        return ACC + 4 * (3 * dt + qt)

    def p1_mfmas(n):
        return [mfma(qtile(dt, qt), fa(n, dt), fb(n, qt)) for dt in range(6) for qt in range(3)]

    adv = [f"v_add_u32 {v(AX + c)}, {s(S_D)}, {v(AX + c)}" for c in range(4)] + \
          [f"v_add_u32 {v(AY + c)}, {s(S_D)}, {v(AY + c)}" for c in range(2)]
    a(f"s_mov_b32 {s(S_SL)}, 0")
    a(f"s_mov_b32 {s(S_CNT)}, 0")
    a(f"s_mov_b32 {s(S_K0)}, {(-2 * SLOT) & 0xffffffff:#x}")
    a(f"s_mov_b32 {s(S_K1)}, {SLOT}")
    st.cyc("setup")
    a("s_barrier")
    st.cyc("b0")
    emit(a, p1_reads(0, 0))
    a(lg(0))
    a.label("L_p1")
    sl = spread(p1_reads(1, 1), 0, 1)
    at(sl, 0, f"s_add_u32 {s(S_SL)}, {s(S_SL)}, 1")
    at(sl, 1, f"s_cmp_eq_u32 {s(S_SL)}, 3")
    at(sl, 2, f"s_cselect_b32 {s(S_D)}, {s(S_K0)}, {s(S_K1)}")
    at(sl, 3, f"s_cselect_b32 {s(S_SL)}, 0, {s(S_SL)}")
    spread(adv, 15, 2, into=sl)
    emit(a, place(p1_mfmas(0), sl))
    a(lg(0))
    a("s_barrier")
    sl = spread(p1_reads(0, 0), 0, 1)
    at(sl, 15, f"s_add_u32 {s(S_CNT)}, {s(S_CNT)}, 1")
    at(sl, 16, f"s_cmp_lt_u32 {s(S_CNT)}, 9")
    emit(a, place(p1_mfmas(1), sl))
    a(lg(0))
    a("s_cbranch_scc1 L_p1")
    emit(a, place(p1_mfmas(0), spread(p1_reads(1, 1), 0, 1)))
    if cfg.ipf & 2:
        a("global_load_dword v14, v7, s[62:63]")
    a(lg(0))
    a("s_barrier")
    st.cyc("b10")
    a.c("SEG q")

    def kf(buf, a_):
        return FR + 12 * buf + 4 * a_

    def k_reads(ls, buf):
        return [rd64(kf(buf, a_) + 2 * hh, AZ + 2 * ls + hh, 6144 * a_) for a_ in range(3) for hh in range(2)]

    def qpack(ls):
        r = []
        for qt in range(3):
            for dt in (2 * ls, 2 * ls + 1):
                d = QP + 4 * (3 * ls + qt) + 2 * (dt % 2)
                r += [cvt(d, qtile(dt, qt)), cvt(d + 1, qtile(dt, qt) + 2)]
        return r

    def qwrite(f):
        return f"ds_write_b128 {v(AQW)}, {v(QP + 4 * f, 4)} offset:{1024 * f}"

    def stile(a_, qt):
        return ACC + 4 * (3 * a_ + qt)

    def s_mfmas(qbase, ls3, buf, first=False, qmajor=False):
        idx = [(a_, qt) for qt in range(3) for a_ in range(3)] if qmajor else [(a_, qt) for a_ in range(3) for qt in range(3)]
        return [mfma(stile(a_, qt), kf(buf, a_), qbase + 4 * (3 * ls3 + qt), 0 if first else None) for a_, qt in idx]

    q0, q1, q2 = qpack(0), qpack(1), qpack(2)
    if cfg.qv == 0:
        sl = spread(k_reads(0, 0) + k_reads(1, 1) + k_reads(2, 2), 0, 2, into={})
        spread(q0, 9, 2, into=sl)
        at(sl, 11, qwrite(0))
        at(sl, 14, qwrite(1))
        spread(q1[:4], 15, 2, into=sl)
        at(sl, 17, qwrite(2))
        emit(a, place(p1_mfmas(1), sl))
        emit(a, q1[4:8] + [qwrite(3)] + q1[8:])
        a(lg(4))
        sl = {}
        at(sl, 0, qwrite(4))
        spread(q2, 1, 2, into=sl)
        at(sl, 3, qwrite(5))
        at(sl, 7, qwrite(6))
        at(sl, 10, qwrite(7))
        at(sl, 13, qwrite(8))
        spread(k_reads(3, 0), 14, 2, into=sl)
        emit(a, place(s_mfmas(QP, 0, 0, True) + s_mfmas(QP, 1, 1), sl))
    else:
        order = [(dt, qt) for ls in range(3) for qt in range(3) for dt in (2 * ls, 2 * ls + 1)]
        mm = [mfma(qtile(dt, qt), fa(1, dt), fb(1, qt)) for dt, qt in order]
        mm += s_mfmas(QP, 0, 0, True) + s_mfmas(QP, 1, 1)
        packs = q0 + q1 + q2
        sl = {}
        if cfg.qv == 1:
            spread(k_reads(0, 0)[:5], 0, 1, into=sl)
            for f in range(9):
                g0 = 5 + 2 * f + (f >= 6) * 2
                spread(packs[4 * f:4 * f + 4], g0, 2, into=sl)
            wr = [7, 10, 13, 16, 19, 22, 25, 28, 31]
            for f in range(9):
                at(sl, wr[f], qwrite(f))
            at(sl, 8, k_reads(0, 0)[5])
            for k, g_ in enumerate([9, 11, 12, 14, 15, 17]):
                at(sl, g_, k_reads(1, 1)[k])
            at(sl, 17, lg(7))
            at(sl, 26, lg(3))
            spread(k_reads(2, 2), 27, 1, into=sl)
            spread(k_reads(3, 0), 29, 1, into=sl)
        elif cfg.qv == 2:
            spread(k_reads(0, 0) + k_reads(1, 1)[:4], 0, 2, into=sl)
            for f in range(9):
                g0 = 5 + 2 * f + (f >= 6) * 2
                spread(packs[4 * f:4 * f + 4], g0, 2, into=sl)
            wr = [7, 10, 13, 16, 19, 22, 25, 28, 31]
            for f in range(9):
                at(sl, wr[f], qwrite(f))
            at(sl, 8, k_reads(1, 1)[4])
            at(sl, 9, k_reads(1, 1)[5])
            at(sl, 17, lg(3))
            spread(k_reads(2, 2), 26, 1, into=sl)
            spread(k_reads(3, 0), 29, 1, into=sl)
        elif cfg.qv in (3, 4):
            kr = k_reads(0, 0) + k_reads(1, 1) + k_reads(2, 2)
            spread(kr[:5], 0, 1, into=sl)
            rest = kr[5:]
            for f in range(9):
                g0 = 5 + 3 * f
                c4 = packs[4 * f:4 * f + 4]
                if cfg.qv == 3:
                    at(sl, g0, rest.pop(0), c4[0], c4[1])
                    at(sl, g0 + 1, c4[2], c4[3])
                else:
                    at(sl, g0, rest.pop(0), c4[0])
                    at(sl, g0 + 1, c4[1], c4[2], c4[3])
                at(sl, g0 + 2, qwrite(f))
            spread(rest, 32, 1, into=sl)
            sl[17].append(lg(8))
            sl[26].append(lg(2))
        elif cfg.qv in (5, 6, 7):
            kr = k_reads(0, 0) + k_reads(1, 1) + k_reads(2, 2)
            spread(kr[:4], 0, 1, into=sl)
            rest = kr[4:]
            start = 4 if cfg.qv == 7 else 5
            for f in range(9):
                g0 = start + 3 * f
                c4 = packs[4 * f:4 * f + 4]
                at(sl, g0, *(rest[:1]), c4[0], c4[1])
                at(sl, g0 + 1, *(rest[1:2]), c4[2], c4[3])
                rest = rest[2:]
                if cfg.qv == 6:
                    d = QP + 4 * f
                    at(sl, g0 + 2, f"ds_write_b64 {v(AQW)}, {v(d, 2)} offset:{1024 * f}",
                       f"ds_write_b64 {v(AQW)}, {v(d + 2, 2)} offset:{1024 * f + 8}")
                else:
                    at(sl, g0 + 2, qwrite(f))
            sl[17].append(lg(4))
            sl[26].append(lg(2))
        emit(a, place(mm, sl))
    st.cyc("a3", True)
    a(lg(0))
    a("s_barrier")
    st.cyc("b11")
    a.c("SEG s")
    QR = FR + 36
    rds = [rd128(QR + 4 * f, AQR, 1024 * f) for f in range(9)]
    if cfg.sv == 0:
        sl = spread(rds[:6], -1, 1)
        spread(k_reads(4, 1), 5, 2, into=sl)
        at(sl, 8, lg(9))
        emit(a, place(s_mfmas(QP, 2, 2), sl))
        st.cyc("a4", True)
        sl = spread(rds[6:], 0, 1)
        spread(k_reads(5, 2), 3, 1, into=sl)
        at(sl, 8, lg(9))
        emit(a, place(s_mfmas(QR, 0, 0), sl))
        emit(a, s_mfmas(QR, 1, 1))
        a(lg(0))
    else:
        sl = spread(rds[:3], -1, 1)
        spread(k_reads(3, 0), 2, 2, into=sl)
        spread(rds[3:6], 5, 1, into=sl)
        at(sl, 8, lg(3))
        spread(k_reads(4, 1), 8, 2, into=sl)
        spread(rds[6:], 11, 1, into=sl)
        spread(k_reads(5, 2), 14, 2, into=sl)
        at(sl, 17, lg(9))
        emit(a, place(s_mfmas(QP, 2, 2) + s_mfmas(QR, 0, 0), sl))

    def xs(qt):
        return [stile(a_, qt) + r for a_ in range(3) for r in range(4)]

    def maxchain(qt):
        x = xs(qt)
        r = [f"v_max3_f32 {v(MX + qt)}, {v(x[0])}, {v(x[1])}, {v(x[2])}"]
        for k in range(3, 11, 2):
            r.append(f"v_max3_f32 {v(MX + qt)}, {v(MX + qt)}, {v(x[k])}, {v(x[k + 1])}")
        r.append(f"v_max_f32 {v(MX + qt)}, {v(MX + qt)}, {v(x[11])}")
        return r
    m0, m1, m2 = maxchain(0), maxchain(1), maxchain(2)
    if cfg.sv == 0:
        emit(a, s_mfmas(QR, 2, 2, qmajor=True))
        st.cyc("sdone", True)
        a("s_nop 0")
        emit(a, m0 + m1 + m2)
    else:
        s4, s5 = s_mfmas(QR, 1, 1, qmajor=True), s_mfmas(QR, 2, 2, qmajor=True)
        mm = sum([s4[3 * qt:3 * qt + 3] + s5[3 * qt:3 * qt + 3] for qt in range(3)], [])
        sl = {}
        at(sl, 2, lg(0))
        spread(m0, 11, 2, into=sl)
        spread(m1[:2], 17, 2, into=sl)
        emit(a, place(mm, sl))
        st.cyc("sdone", True)
        emit(a, m1[2:] + ["s_nop 1"] + m2)
    for op in ("v_permlane16_swap_b32", "v_permlane32_swap_b32"):
        for qt in range(3):
            a(f"v_mov_b32 {v(MX + 3 + qt)}, {v(MX + qt)}")
        for qt in range(3):
            a(f"{op} {v(MX + 3 + qt)}, {v(MX + qt)}")
        for qt in range(3):
            a(f"v_max_f32 {v(MX + qt)}, {v(MX + qt)}, {v(MX + 3 + qt)}")
    for qt in range(3):
        a(f"ds_write_b32 {v(AMW)}, {v(MX + qt)} offset:{64 * qt}")
    st.cyc("a6", True)
    a(lg(0))
    a("s_barrier")
    st.cyc("b12")
    a.c("SEG sm")

    PP, PC = FR, FR + 24
    VQ = [[QP + 4 * dt for dt in range(6)], [FR + 36 + 4 * dt for dt in range(6)], [148, 152, 156, 184, 188, 192]]

    def v_reads(step):
        r = []
        for dt in range(6):
            for hh in range(2):
                if step == 0:
                    ad, tile = AVo, hh
                elif step == 1:
                    ad, tile = (AVo, 2) if hh == 0 else (AVp, 2)
                else:
                    ad, tile = AVp, hh
                r.append(trread(VQ[step][dt] + 2 * hh, ad + dt % 4, 6144 * tile + 128 * (dt // 4)))
        return r
    NM = 2
    for qt in range(3):
        a(f"ds_read_b32 {v(MX + 3 + qt)}, {v(AMR)} offset:{64 * qt}")
    emit(a, v_reads(0))
    if cfg.vbp == 2:
        emit(a, v_reads(1))
    a((lg(15) if cfg.vbp == 2 else lg(12)) if not st.on else lg(0))
    a(f"ds_read_b64 {v(TG, 2)}, {v(AOW)}")
    for qt in range(3):
        a(f"v_max_f32 {v(MX + qt)}, {v(MX + qt)}, {v(MX + 3 + qt)}")
    for qt in range(3):
        a(f"v_mul_f32 {v(NM + 2 * qt)}, {s(S_C)}, {v(MX + qt)}")
    for qt in range(3):
        a(f"v_mov_b32 {v(NM + 2 * qt + 1)}, {v(NM + 2 * qt)}")

    def softmax(qt):
        x = xs(qt)
        e = [f"v_exp_f32 {v(y)}, {v(y)}" for y in x]
        c = [cvt(PP + 8 * qt + k, x[2 * k]) for k in range(6)]
        if cfg.smx == 0 or (cfg.smx == 2 and qt == 0):
            f = [[f"v_pk_fma_f32 {v(x[2 * k], 2)}, {v(x[2 * k], 2)}, {s(S_C, 2)}, {v(NM + 2 * qt, 2)} neg_lo:[0,0,1] neg_hi:[0,0,1]"] for k in range(6)]
        else:
            f = [[f"v_fma_f32 {v(y)}, {v(y)}, {s(S_C)}, -{v(NM + 2 * qt)}" for y in x[2 * k:2 * k + 2]] for k in range(6)]
        r = f[0] + f[1]
        for k in range(6):
            nx = f[k + 2] if k + 2 < 6 else []
            r += [e[2 * k]] + nx[:1] + [e[2 * k + 1]] + nx[1:]
            if k >= 1:
                r.append(c[k - 1])
        r += ["s_nop 0", c[5]]
        return r

    def pwrite(qt):
        return [f"ds_write_b128 {v(APW)}, {v(PP + 8 * qt, 4)} offset:{1536 * qt}",
                f"ds_write_b64 {v(APW2)}, {v(PP + 8 * qt + 4, 2)} offset:{1536 * qt + 1024}"]
    OT = {}
    free = [ACC + 36 + 4 * k for k in range(9)]
    for qt in range(3):
        regs = free[3 * qt:3 * qt + 3] + [stile(a_, qt) for a_ in range(3)]
        for dt in range(6):
            OT[(dt, qt)] = regs[dt]
    pf = [lambda qt: PP + 8 * qt, lambda qt: PP + 8 * qt + 4, lambda qt: PC + 4 * qt]

    def pv(step, qt):
        first = step == 0
        r = [mfma(OT[(dt, qt)], VQ[step][dt], pf[step](qt), 0 if first else None) for dt in range(6)]
        sm = [mfma(LS + 4 * qt, ONES, pf[step](qt), 0 if first else None)]
        return sm + r if step == 2 else r + sm

    def weave(vals, mm, first=3, per=3):
        out, k = [], 0
        for i, m in enumerate(mm):
            n = first if i == 0 else per
            out += vals[k:k + n]
            k += n
            out.append(m)
        return out + vals[k:]
    st.cyc("a7", True)
    vb = v_reads(1) if cfg.vbp == 0 else []
    s0 = softmax(0)
    out = []
    for k, x in enumerate(s0):
        out.append(x)
        if k % 2 == 1 and vb:
            out.append(vb.pop(0))
    emit(a, out + vb)
    emit(a, pwrite(0))
    a(lg(14) if cfg.vbp == 0 else lg(2))
    st.cyc("a8", True)
    emit(a, weave(softmax(1), pv(0, 0), per=cfg.wper))
    emit(a, pwrite(1))
    st.cyc("a9", True)
    emit(a, weave(softmax(2), pv(0, 1), per=cfg.wper))
    emit(a, pwrite(2))
    st.cyc("a10", True)
    a(lg(0))
    a("s_barrier")
    st.cyc("b13")
    a.c("SEG pv")
    prd = [rd64(PP + 8 * qt + 6, APR2, 1536 * qt + 1024) for qt in range(3)]
    prc = [rd128(PC + 4 * qt, APR, 1536 * qt) for qt in range(3)]
    vc = v_reads(2)
    if cfg.vbp in (0, 2):
        sl = spread(prd + prc + vc[:2], -1, 1)
        at(sl, 6, lg(5))
        emit(a, place(pv(0, 2), sl))
        sl = spread(vc[2:], 0, 1)
        at(sl, 13, lg(0))
        emit(a, place(pv(1, 0) + pv(1, 1), sl))
    else:
        emit(a, place(pv(0, 2), spread(prd + v_reads(1), -1, 2)))
        a(lg(0))
        sl = spread(prc + vc[:11], 0, 1)
        at(sl, 13, vc[11], lg(0))
        emit(a, place(pv(1, 0) + pv(1, 1), sl))
    st.cyc("pvB", True)
    OPQ = [160, 164, 168, 172, 176, 180, 212, 216, 220]

    def finish(qt):
        r = [f"v_rcp_f32 {v(MX + 2 * qt)}, {v(LS + 4 * qt)}", "s_nop 0",
             f"v_mov_b32 {v(MX + 2 * qt + 1)}, {v(MX + 2 * qt)}"]
        for ls in range(3):
            d = OPQ[3 * ls + qt]
            for half in range(2):
                t = OT[(2 * ls + half, qt)]
                if cfg.fin == 0 or (cfg.fin == 2 and qt == 2):
                    r.append(f"v_pk_mul_f32 {v(t, 2)}, {v(t, 2)}, {v(MX + 2 * qt, 2)}")
                    r.append(f"v_pk_mul_f32 {v(t + 2, 2)}, {v(t + 2, 2)}, {v(MX + 2 * qt, 2)}")
                else:
                    r += [f"v_mul_f32 {v(t + k)}, {v(MX + 2 * qt)}, {v(t + k)}" for k in range(4)]
            for half in range(2):
                t = OT[(2 * ls + half, qt)]
                r += [cvt(d + 2 * half, t), cvt(d + 2 * half + 1, t + 2)]
            off = (ls * 6 + qt) * 1024
            r.append(f"s_mov_b32 s3, {off}")
            r.append(f"buffer_store_dwordx4 {v(d, 4)}, {v(AO)}, {s(R_O, 4)}, s3 offen {'' if cfg.unsafe else 'sc1'}")
            if not cfg.odef:
                r.append(f"ds_write_b128 {v(AO)}, {v(d, 4)} offset:{off}")
        return r

    def gaps(f, per):
        out, cur = [], []
        for x in f:
            if x.startswith("s_mov"):
                if cur:
                    out.append(cur)
                cur = [x]
            elif x.startswith(("buffer_", "ds_")):
                out.append(cur + [x])
                cur = []
            else:
                cur.append(x)
                if len(cur) == per:
                    out.append(cur)
                    cur = []
        return out + ([cur] if cur else [])

    def weave2(mm, f, skip, per):
        g = gaps(f, per)
        out = []
        for i, m in enumerate(mm):
            out.append(m)
            if i >= skip and g:
                out += g.pop(0)
        return out + sum(g, [])
    emit(a, pv(2, 0))
    f0, f1, f2 = finish(0), finish(1), finish(2)
    mm = pv(1, 2) + pv(2, 1)
    if cfg.fw == 0:
        emit(a, [mm[0]] + weave(["s_nop 0"] + f0, mm[1:], first=1, per=2))
    else:
        emit(a, weave2(mm, f0, 1, cfg.fw))
    st.cyc("f0", True)
    mm = pv(2, 2)
    if cfg.fw == 0:
        emit(a, [mm[0], mm[1]] + weave(f1, mm[2:], first=0, per=2))
    else:
        emit(a, weave2(mm, f1, 0, cfg.fw))
    st.cyc("f1", True)
    emit(a, f2)
    a.c("SEG end")
    st.cyc("ostore")
    a(lg(0))
    a("s_barrier")

    A4 = ACC
    if cfg.odef:
        for qt in range(3):
            for ls in range(3):
                a(f"ds_write_b128 {v(AO)}, {v(OPQ[3 * ls + qt], 4)} offset:{(ls * 6 + qt) * 1024}")
    for i in range(60):
        a(f"v_mov_b32 {v(A4 + i)}, 0")
    a(f"s_mov_b32 {s(S_K0)}, {(-3 * WOS) & 0xffffffff:#x}")
    a(f"s_mov_b32 {s(S_K1)}, {WOS}")
    a(f"s_mov_b32 s6, {(-5 * OS) & 0xffffffff:#x}")
    a(f"s_mov_b32 s7, {OS}")
    a(f"s_mov_b32 {s(S_SL)}, 1")
    a(f"s_mov_b32 {s(S_SL2)}, 0")
    a(f"s_mov_b32 {s(S_CNT)}, 0")
    a("s_waitcnt vmcnt(0)")
    a("s_mov_b64 exec, 1")
    a(f"buffer_store_dwordx2 {v(TG, 2)}, {v(ZERO)}, {s(R_F, 4)}, {s(S_F1)} offen {'' if cfg.unsafe else 'sc1'}")
    a("s_mov_b64 exec, -1")
    st.cyc("flag1")

    def ga(n, tt):
        return FR + 32 * n + 4 * tt

    def gb(n, qt):
        return FR + 32 * n + 20 + 4 * qt

    def p4_reads(n, ks):
        def A(tt):
            return [trread(ga(n, tt) + 2 * hh, AW + tt % 2, 320 * (32 * ks + 16 * hh) + 64 * (tt // 2)) for hh in range(2)]

        def B(qt):
            return [rd128(gb(n, qt), AB, 6144 * ks + 1024 * qt)]
        r = B(0) + A(0) + B(1) + B(2)
        for tt in range(1, 5):
            r += A(tt)
        return r

    def p4_mfmas(n):
        return [mfma(A4 + 4 * (3 * tt + qt), ga(n, tt), gb(n, qt)) for tt in range(5) for qt in range(3)]
    adv4 = [f"v_add_u32 {v(AW + c)}, {s(S_D)}, {v(AW + c)}" for c in range(2)] + [f"v_add_u32 {v(AB)}, {s(S_D2)}, {v(AB)}"]
    a(lg(0))
    a("s_barrier")
    st.cyc("B0")
    emit(a, p4_reads(0, 0))
    a(lg(0))
    a.label("L_p4")
    sl = spread(p4_reads(1, 1), 0, 1)
    sc = [f"s_add_u32 {s(S_SL)}, {s(S_SL)}, 1", f"s_cmp_eq_u32 {s(S_SL)}, 4",
          f"s_cselect_b32 {s(S_D)}, {s(S_K0)}, {s(S_K1)}", f"s_cselect_b32 {s(S_SL)}, 0, {s(S_SL)}",
          f"s_add_u32 {s(S_SL2)}, {s(S_SL2)}, 1", f"s_cmp_eq_u32 {s(S_SL2)}, 6",
          f"s_cselect_b32 {s(S_D2)}, s6, s7", f"s_cselect_b32 {s(S_SL2)}, 0, {s(S_SL2)}"]
    spread(sc, 0, 1, into=sl)
    spread(adv4, 13, 2, into=sl)
    at(sl, 12, f"s_cmp_eq_u32 {s(S_CNT)}, 2")
    emit(a, place(p4_mfmas(0), sl))
    a(lg(0))
    a("s_cbranch_scc0 L_p4bar")
    st.cyc("own")
    a("s_barrier")
    a.label("L_p4bar")
    a("s_barrier")
    sl = spread(p4_reads(0, 0), 0, 1)
    at(sl, 12, f"s_add_u32 {s(S_CNT)}, {s(S_CNT)}, 1")
    at(sl, 13, f"s_cmp_lt_u32 {s(S_CNT)}, 11")
    emit(a, place(p4_mfmas(1), sl))
    a(lg(0))
    a("s_cbranch_scc1 L_p4")
    st.cyc("p4loop")
    emit(a, place(p4_mfmas(0), spread(p4_reads(1, 1), 0, 1)))
    a(lg(0))
    PK = QP

    def tile(tt, qt):
        return A4 + 4 * (3 * tt + qt)
    order = [(2 * qt, (0, qt), (1, qt)) for qt in range(3)] + [(2 * qt + 1, (2, qt), (3, qt)) for qt in range(3)] + [(6, (4, 0), (4, 1))]
    ep = []
    for n, (bi, t0, t1) in enumerate(order):
        d = PK + 4 * n
        ep.append([cvt(d, tile(*t0)), cvt(d + 1, tile(*t0) + 2), cvt(d + 2, tile(*t1)), cvt(d + 3, tile(*t1) + 2),
                   f"s_mov_b32 s3, {1024 * bi}",
                   f"buffer_store_dwordx4 {v(d, 4)}, {v(AP)}, {s(R_P, 4)}, s3 offen sc1"])
    ep.append([cvt(PK + 28, tile(4, 2)), cvt(PK + 29, tile(4, 2) + 2),
               f"buffer_store_dwordx2 {v(PK + 28, 2)}, {v(AP2)}, {s(R_P, 4)}, 0 offen sc1"])
    flat = sum(ep, [])
    emit(a, place(p4_mfmas(1), spread(flat[:12], 9, 2)))
    emit(a, flat[12:])
    st.cyc("pstore")
    a("s_waitcnt vmcnt(0)")
    a("s_mov_b64 exec, 1")
    a(f"buffer_store_dwordx2 {v(TG, 2)}, {v(ZERO)}, {s(R_F, 4)}, {s(S_F2)} offen sc1")
    st.cyc("flag2")
    st.real("real1")
    st.flush("C")
    a.label("L_last")
    a("s_endpgm")


def reduce_addr(a, tid, vtmp, A0, A1, s_g8):
    SG, W, C, X, Y, OFFS = vtmp, vtmp + 1, vtmp + 2, vtmp + 3, vtmp + 4, vtmp + 5
    a(f"s_mul_i32 s3, {s_g8}, 240")
    a(f"v_add_u32 {v(SG)}, s3, {v(tid)}")
    a(f"v_lshlrev_b32 {v(OFFS)}, 4, {v(SG)}")
    a(f"v_mul_u32_u24 {v(W)}, 2185, {v(SG)}")
    a(f"v_lshrrev_b32 {v(W)}, 20, {v(W)}")
    a(f"v_mul_u32_u24 {v(X)}, 480, {v(W)}")
    a(f"v_sub_u32 {v(C)}, {v(SG)}, {v(X)}")
    a(f"v_and_b32 {v(X)}, 1, {v(W)}")
    a(f"v_mul_u32_u24 {v(X)}, {48 * 1280}, {v(X)}")
    a(f"v_lshrrev_b32 {v(W)}, 1, {v(W)}")
    a(f"v_mul_u32_u24 {v(W)}, 160, {v(W)}")
    a(f"v_add_u32 {v(W)}, {v(W)}, {v(X)}")
    a(f"v_lshrrev_b32 {v(SG)}, 6, {v(C)}")
    a(f"v_and_b32 {v(C)}, 63, {v(C)}")
    a(f"v_cmp_eq_u32 vcc, 7, {v(SG)}")
    a(f"v_lshlrev_b32 {v(X)}, 1, {v(C)}")
    a("s_nop 0")
    a(f"v_cndmask_b32 {v(C)}, {v(C)}, {v(X)}, vcc")
    a(f"v_and_b32 {v(X)}, 15, {v(C)}")
    a(f"v_mul_u32_u24 {v(X)}, 1280, {v(X)}")
    a(f"v_lshrrev_b32 {v(C)}, 4, {v(C)}")
    a(f"v_lshl_add_u32 {v(X)}, {v(C)}, 3, {v(X)}")
    a(f"v_add_u32 {v(W)}, {v(W)}, {v(X)}")
    a(f"v_lshrrev_b32 {v(X)}, 1, {v(SG)}")
    a(f"v_mul_u32_u24 {v(X)}, {16 * 1280}, {v(X)}")
    a(f"v_and_b32 {v(Y)}, 1, {v(SG)}")
    a(f"v_lshl_add_u32 {v(X)}, {v(Y)}, 6, {v(X)}")
    a(f"v_mov_b32 {v(Y)}, 32")
    a(f"v_cmp_eq_u32 vcc, 6, {v(SG)}")
    a(f"v_mov_b32 {v(C)}, 128")
    a(f"v_mov_b32 {v(A1)}, {16 * 1280}")
    a(f"v_cndmask_b32 {v(X)}, {v(X)}, {v(C)}, vcc")
    a(f"v_cndmask_b32 {v(Y)}, {v(Y)}, {v(A1)}, vcc")
    a(f"v_cmp_eq_u32 vcc, 7, {v(SG)}")
    a(f"v_mov_b32 {v(C)}, {32 * 1280 + 128}")
    a(f"v_mov_b32 {v(A1)}, 1280")
    a(f"v_cndmask_b32 {v(X)}, {v(X)}, {v(C)}, vcc")
    a(f"v_cndmask_b32 {v(Y)}, {v(Y)}, {v(A1)}, vcc")
    a(f"v_add_u32 {v(A0)}, {v(W)}, {v(X)}")
    a(f"v_add_u32 {v(A1)}, {v(A0)}, {v(Y)}")
    return OFFS


def gen_loader(a, cfg):
    st = Stamps(a, cfg)
    R_X, R_WQ, R_K, R_V, R_WO = 8, 12, 16, 20, 56
    R_OI, R_PI, R_OUT = 12, 16, 20
    S_LW, S_SW, S_SX, S_LDS, S_N, S_KK, S_PK = 50, 51, 52, 53, 54, 55, 49
    S_MW, S_MX, S_LDO = 62, 63, 7
    OW, OX, OK_, OV, OWO, OO = 16, 22, 25, 34, 43, 48
    RRc, UUc = 52, 55
    AT, AF1, AF2, TG, PT = 58, 59, 60, 62, 64
    A0, A1, RT, JK, AT2 = 66, 67, 68, 74, 75
    T0, T1, T2 = 4, 5, 6

    a(f"s_sub_u32 {s(S_LW)}, {s(S_WAVE)}, 4")
    for c in range(3):
        a(f"v_add_u32 {v(T0)}, {64 * c}, v0")
        a(f"v_mul_u32_u24 {v(T1)}, 2731, {v(T0)}")
        a(f"v_lshrrev_b32 {v(RRc + c)}, 16, {v(T1)}")
        a(f"v_mul_u32_u24 {v(T1)}, 24, {v(RRc + c)}")
        a(f"v_sub_u32 {v(UUc + c)}, {v(T0)}, {v(T1)}")
    a(f"s_mul_i32 s3, {s(S_LW)}, 3")
    a(f"v_lshrrev_b32 {v(T2)}, 4, v0")
    a("v_and_b32 v7, 7, v0")
    a("v_lshrrev_b32 v8, 3, v0")
    for c in range(3):
        a(f"s_add_u32 s4, s3, {c}")
        a("s_lshl_b32 s6, s4, 3")
        a("s_and_b32 s4, s4, 1")
        a("s_lshl_b32 s4, s4, 2")
        a(f"v_or_b32 {v(T0)}, s4, {v(T2)}")
        a(f"v_xor_b32 {v(T0)}, {v(T0)}, v7")
        a(f"v_add_u32 {v(T1)}, s6, v8")
        a(f"v_mul_u32_u24 {v(T1)}, 1280, {v(T1)}")
        a(f"v_lshl_add_u32 {v(OX + c)}, {v(T0)}, 4, {v(T1)}")
    a(f"s_lshl_b32 s3, {s(S_LW)}, 4")
    for c in range(3):
        a(f"v_bfe_u32 {v(T0)}, {v(RRc + c)}, 1, 1")
        a(f"v_lshlrev_b32 {v(T0)}, 1, {v(T0)}")
        a(f"v_xor_b32 {v(T0)}, {v(T0)}, {v(UUc + c)}")
        a(f"v_add_u32 {v(T1)}, s3, {v(RRc + c)}")
        a(f"v_mul_u32_u24 {v(T1)}, 12288, {v(T1)}")
        a(f"v_lshl_add_u32 {v(OW + c)}, {v(T0)}, 4, {v(T1)}")
        a(f"v_xor_b32 {v(T0)}, 64, {v(OW + c)}")
        a(f"v_add_u32 {v(OW + 3 + c)}, {8 * 12288}, {v(T0)}")
    a(f"s_mul_i32 {s(S_MW)}, {s(S_LW)}, 6144")
    a(f"s_mul_i32 {s(S_MX)}, {s(S_LW)}, 3072")
    a(f"s_add_u32 {s(S_MX)}, {s(S_MX)}, 24576")
    fb = {8: [0, 2, 4, 6, 8, 0, 2, 4], 9: [0, 5, 0, 5, 0, 5, 0, 5], 10: [0, 3, 5, 8, 0, 3, 5, 8],
          11: [0, 3, 7, 0, 3, 7, 0, 3]}[cfg.rot]
    word = sum(x << (4 * i) for i, x in enumerate(fb))
    a(f"s_lshl_b32 s3, {s(S_B)}, 2")
    a(f"s_lshr_b32 s3, {word:#x}, s3")
    a("s_and_b32 s3, s3, 15")
    a(f"s_lshl_b32 s4, {s(S_HH)}, 2")
    a("s_lshr_b32 s4, 0x8530, s4")
    a("s_and_b32 s4, s4, 15")
    a("s_add_u32 s3, s3, s4")
    a(f"s_add_u32 {s(S_KK)}, s3, {s(S_G8)}")
    mod_small(a, s(S_KK), 10, 2)
    a(f"s_mov_b32 {s(S_LDS)}, 0")
    a(f"s_mul_i32 s3, {s(S_B)}, 122880")
    a(f"s_mul_i32 s5, {s(S_H)}, 384")
    a("s_sub_u32 s4, 7864320, s5")
    a("s_waitcnt lgkmcnt(0)")
    st.cyc("karg", True)
    srd(a, R_X, S_X, "s3", 122880)
    srd(a, R_WQ, S_WQ, "s5", "s4")

    def stage_body():
        a(f"s_mul_i32 {s(S_SW)}, {s(S_KK)}, {64 * 12288}")
        a(f"s_lshl_b32 {s(S_SX)}, {s(S_KK)}, 7")
        a(f"s_add_u32 s3, {s(S_LDS)}, {s(S_MW)}")
        a(f"s_add_u32 s4, {s(S_LDS)}, {s(S_MX)}")
        for c in range(3):
            dma(a, OX + c, R_X, s(S_SX), "s4", 1024 * c)
        for p in range(6):
            dma(a, OW + p, R_WQ, s(S_SW), "s3", 1024 * p)
        a(f"s_add_u32 {s(S_KK)}, {s(S_KK)}, 1")
        a(f"s_cmp_eq_u32 {s(S_KK)}, 10")
        a(f"s_cselect_b32 {s(S_KK)}, 0, {s(S_KK)}")
        a(f"s_add_u32 {s(S_LDS)}, {s(S_LDS)}, {SLOT}")
        a(f"s_cmp_eq_u32 {s(S_LDS)}, {3 * SLOT}")
        a(f"s_cselect_b32 {s(S_LDS)}, 0, {s(S_LDS)}")

    def call(lbl):
        a(f"s_call_b64 s[44:45], {lbl}")
    stage_body()
    st.cyc("issued")
    a(f"s_lshl_b32 s3, {s(S_B)}, 7")
    a(f"s_add_u32 s3, s3, {OFF_F + FX}")
    a(f"s_add_u32 s4, {s(S_WS)}, s3")
    a(f"s_addc_u32 s5, {s(S_WS + 1)}, 0")
    a(f"s_load_dwordx2 {s(S_TAG, 2)}, s[4:5], 0")
    if cfg.kpos >= 9:
        table = {9: [1, 2, 3, 4, 5, 6, 7, 8], 11: [8, 8, 7, 7, 6, 6, 5, 5], 12: [8, 7, 6, 5, 8, 4, 3, 2],
                 13: [1, 8, 1, 8, 1, 8, 1, 8], 14: [1, 1, 8, 1, 1, 8, 1, 8],
                 20: [1, 8, 1, 1, 8, 1, 1, 8], 21: [1, 8, 8, 1, 8, 8, 1, 8], 22: [1, 8, 4, 1, 8, 4, 1, 8],
                 23: [1, 2, 1, 1, 2, 1, 1, 2], 24: [1, 8, 5, 3, 8, 6, 1, 8], 25: [0, 8, 1, 0, 8, 1, 0, 8],
                 26: [1, 8, 1, 8, 1, 8, 1, 8], 27: [0, 8, 0, 8, 0, 8, 0, 8]}[cfg.kpos]
        word = sum(x << (4 * i) for i, x in enumerate(table))
        if cfg.kpos < 20:
            a(f"s_add_u32 s3, {s(S_B)}, {s(S_G8)}")
            a("s_and_b32 s3, s3, 7")
            a("s_lshl_b32 s3, s3, 2")
        else:
            a(f"s_lshl_b32 s3, {s(S_B)}, 2")
        a(f"s_lshr_b32 s3, {word:#x}, s3")
        a(f"s_and_b32 {s(S_PK)}, s3, 15")
    else:
        a(f"s_mov_b32 {s(S_PK)}, {cfg.kpos}")
    a(f"s_lshl_b32 s3, {s(S_B)}, 5")
    a(f"s_add_u32 s3, s3, {s(S_H)}")
    a("s_mul_i32 s3, s3, 36864")
    srd(a, R_K, S_K, "s3", 36864)
    srd(a, R_V, S_V, "s3", 36864)
    srd(a, R_F, S_WS, f"{OFF_F}", 262144)
    a(f"s_mul_i32 s3, {s(S_LW)}, 24")
    a(f"s_and_b32 s4, {s(S_LW)}, 1")
    a("s_lshl_b32 s4, s4, 6")
    for c in range(3):
        a(f"v_lshrrev_b32 {v(T0)}, 1, {v(RRc + c)}")
        a(f"v_add_u32 {v(T1)}, s3, {v(RRc + c)}")
        a(f"v_mul_u32_u24 {v(T1)}, 384, {v(T1)}")
        a(f"v_xor_b32 {v(T2)}, {v(T0)}, {v(UUc + c)}")
        a(f"v_lshl_add_u32 {v(T2)}, {v(T2)}, 4, {v(T1)}")
        a(f"v_xor_b32 {v(OK_ + c)}, s4, {v(T2)}")
        a(f"v_xor_b32 {v(T2)}, 64, {v(OK_ + c)}")
        a(f"v_add_u32 {v(OK_ + 3 + c)}, 3072, {v(T2)}")
        a(f"v_add_u32 {v(OK_ + 6 + c)}, 6144, {v(OK_ + c)}")
        a(f"v_lshlrev_b32 {v(T2)}, 1, {v(T0)}")
        a(f"v_xor_b32 {v(T2)}, {v(T2)}, {v(UUc + c)}")
        a(f"v_lshl_add_u32 {v(OV + c)}, {v(T2)}, 4, {v(T1)}")
        a(f"v_add_u32 {v(OV + 3 + c)}, 3072, {v(OV + c)}")
        a(f"v_add_u32 {v(OV + 6 + c)}, 6144, {v(OV + c)}")
    a(f"s_mul_i32 s3, {s(S_G8)}, 983040")
    a(f"s_mul_i32 s4, {s(S_HH)}, 320")
    a("s_add_u32 s3, s3, s4")
    a("s_sub_u32 s4, 7864320, s3")
    srd(a, R_WO, S_WO, "s3", "s4")
    a(f"s_lshl_b32 s3, {s(S_B)}, 2")
    a(f"s_add_u32 s3, s3, {s(S_LW)}")
    a("s_mul_i32 s3, s3, 24")
    a(f"v_mul_u32_u24 {v(T1)}, 21846, v0")
    a(f"v_lshrrev_b32 {v(T1)}, 16, {v(T1)}")
    a(f"v_mul_u32_u24 {v(T2)}, 3, {v(T1)}")
    a(f"v_sub_u32 {v(T0)}, v0, {v(T2)}")
    a(f"v_add_u32 {v(T1)}, s3, {v(T1)}")
    a(f"v_mul_u32_u24 {v(T1)}, 1280, {v(T1)}")
    a(f"v_lshl_add_u32 {v(AT)}, {v(T0)}, 7, {v(T1)}")
    a(f"v_min_u32 {v(T0)}, 7, v0")
    a(f"v_add_u32 {v(T0)}, 64, {v(T0)}")
    a(f"v_mul_u32_u24 {v(T1)}, 21846, {v(T0)}")
    a(f"v_lshrrev_b32 {v(T1)}, 16, {v(T1)}")
    a(f"v_mul_u32_u24 {v(T2)}, 3, {v(T1)}")
    a(f"v_sub_u32 {v(T0)}, {v(T0)}, {v(T2)}")
    a(f"v_add_u32 {v(T1)}, s3, {v(T1)}")
    a(f"v_mul_u32_u24 {v(T1)}, 1280, {v(T1)}")
    a(f"v_lshl_add_u32 {v(AT2)}, {v(T0)}, 7, {v(T1)}")
    stage_body()

    def issue_kv(off, srd_, base):
        a(f"s_mul_i32 s3, {s(S_LW)}, 9216")
        a(f"s_add_u32 s3, s3, {base}")
        for p in range(9):
            dma(a, off + p, srd_, "0", "s3", 1024 * p)
    a("s_waitcnt vmcnt(9)")
    st.cyc("landed0")
    a("s_barrier")
    a(f"s_mov_b32 {s(S_N)}, 0")
    a.label("L_lloop")
    a(f"s_cmp_eq_u32 {s(S_N)}, {s(S_PK)}")
    a("s_cbranch_scc0 L_nok")
    call("L_sub_k")
    a.label("L_nok")
    stage_body()
    a("s_waitcnt vmcnt(9)")
    a("s_barrier")
    a(f"s_add_u32 {s(S_N)}, {s(S_N)}, 1")
    a(f"s_cmp_lt_u32 {s(S_N)}, 8")
    a("s_cbranch_scc1 L_lloop")
    st.cyc("b8")
    a(f"s_cmp_eq_u32 {s(S_PK)}, 8")
    a("s_cbranch_scc0 L_vonly")
    call("L_sub_k")
    a("s_waitcnt vmcnt(9)")
    a("s_barrier")
    call("L_sub_v")
    a("s_branch L_kvdone")
    a.label("L_sub_k")
    issue_kv(OK_, R_K, A_K)
    a("s_setpc_b64 s[44:45]")
    a.label("L_sub_v")
    issue_kv(OV, R_V, A_V)
    a("s_setpc_b64 s[44:45]")
    a.label("L_sub_wo")
    a(f"s_mul_i32 {s(S_SW)}, {s(S_KK)}, {64 * 1280}")
    a(f"s_add_u32 s3, {s(S_LDS)}, {s(S_MW)}")
    for p in range(5):
        dma(a, OWO + p, R_WO, s(S_SW), "s3", 1024 * p)
    a(f"s_add_u32 {s(S_KK)}, {s(S_KK)}, 1")
    a(f"s_cmp_eq_u32 {s(S_KK)}, 12")
    a(f"s_cselect_b32 {s(S_KK)}, 0, {s(S_KK)}")
    a(f"s_add_u32 {s(S_LDS)}, {s(S_LDS)}, {WOS}")
    a(f"s_cmp_eq_u32 {s(S_LDS)}, {4 * WOS}")
    a(f"s_cselect_b32 {s(S_LDS)}, 0, {s(S_LDS)}")
    a("s_setpc_b64 s[44:45]")
    a.label("L_sub_o")
    a(f"s_mul_i32 {s(S_SX)}, {s(S_PK)}, {OS}")
    a(f"s_add_u32 m0, {s(S_LDO)}, {s(S_MX)}")
    a(f"s_add_u32 {s(S_PK)}, {s(S_PK)}, 1")
    for c in range(3):
        a(f"buffer_load_dwordx4 {v(OO)}, {s(R_OI, 4)}, {s(S_SX)} offen offset:{1024 * c} {['sc1', '', 'nt'][cfg.unsafe]} lds")
    a(f"s_cmp_eq_u32 {s(S_PK)}, 12")
    a(f"s_cselect_b32 {s(S_PK)}, 0, {s(S_PK)}")
    a(f"s_add_u32 {s(S_LDO)}, {s(S_LDO)}, {OS}")
    a(f"s_cmp_eq_u32 {s(S_LDO)}, {6 * OS}")
    a(f"s_cselect_b32 {s(S_LDO)}, 0, {s(S_LDO)}")
    a("s_setpc_b64 s[44:45]")
    a.label("L_vonly")
    call("L_sub_v")
    a("s_waitcnt vmcnt(9)")
    a("s_barrier")
    a.label("L_kvdone")
    a("s_waitcnt vmcnt(9)")
    st.cyc("Kland")
    a("s_barrier")
    touch = (f"buffer_load_dword {v(JK)}, {v(AT)}, {s(R_WO, 4)}, 0 offen\n"
             f"buffer_load_dword {v(JK + 2)}, {v(AT2)}, {s(R_WO, 4)}, 0 offen")
    if cfg.tpos == 10:
        a(touch)
    a(f"s_lshl_b32 s3, {s(S_B)}, 3")
    a(f"s_add_u32 s3, s3, {s(S_G8)}")
    a(f"s_mul_i32 s3, s3, {4 * 36864}")
    srd(a, R_OI, S_WS, "s3", 4 * 36864)
    a(f"s_lshl_b32 s3, {s(S_B)}, 2")
    a(f"s_add_u32 s3, s3, {s(S_HH)}")
    a(f"s_mul_i32 s3, s3, {8 * PSZ}")
    a(f"s_add_u32 s3, s3, {OFF_P}")
    srd(a, R_PI, S_WS, "s3", 8 * PSZ)
    a(f"s_mul_i32 {s(S_MW)}, {s(S_LW)}, 5120")
    a(f"s_add_u32 {s(S_MW)}, {s(S_MW)}, {WO0}")
    a(f"s_mul_i32 {s(S_MX)}, {s(S_LW)}, 3072")
    a(f"s_mul_i32 {s(S_KK)}, {s(S_HH)}, 3")
    a(f"s_add_u32 {s(S_PK)}, {s(S_KK)}, 3")
    a(f"s_cmp_eq_u32 {s(S_PK)}, 12")
    a(f"s_cselect_b32 {s(S_PK)}, 0, {s(S_PK)}")
    a(f"s_mov_b32 {s(S_LDS)}, {WOS}")
    a(f"s_mov_b32 {s(S_LDO)}, {3 * OS}")
    a("s_barrier")
    if cfg.tpos == 11:
        a(touch)
    a(f"s_lshl_b32 s3, {s(S_LW)}, 4")
    for c in range(5):
        a(f"v_add_u32 {v(T0)}, {64 * c}, v0")
        a(f"v_mul_u32_u24 {v(T1)}, 3277, {v(T0)}")
        a(f"v_lshrrev_b32 {v(T1)}, 16, {v(T1)}")
        a(f"v_mul_u32_u24 {v(T2)}, 20, {v(T1)}")
        a(f"v_sub_u32 {v(T0)}, {v(T0)}, {v(T2)}")
        a(f"v_lshrrev_b32 {v(T2)}, 1, {v(T1)}")
        a(f"v_and_b32 {v(T2)}, 2, {v(T2)}")
        a(f"v_xor_b32 {v(T0)}, {v(T0)}, {v(T2)}")
        a(f"v_add_u32 {v(T1)}, s3, {v(T1)}")
        a(f"v_mul_u32_u24 {v(T1)}, 1280, {v(T1)}")
        a(f"v_lshl_add_u32 {v(OWO + c)}, {v(T0)}, 4, {v(T1)}")
    a(f"v_lshl_add_u32 {v(OO)}, v0, 4, {s(S_MX)}")
    a(f"s_lshl_b32 s3, {s(S_B)}, 3")
    a(f"s_add_u32 s3, s3, {s(S_G8)}")
    a("s_lshl_b32 s3, s3, 7")
    a(f"v_and_b32 {v(T0)}, 15, v0")
    a(f"v_lshl_add_u32 {v(AF1)}, {v(T0)}, 3, s3")
    a("s_waitcnt lgkmcnt(0)")
    a(f"s_add_u32 {s(S_TAG)}, {s(S_TAG)}, {TAGC[0]:#x}")
    a(f"s_addc_u32 {s(S_TAG + 1)}, {s(S_TAG + 1)}, {TAGC[1]:#x}")
    a(f"v_mov_b32 {v(TG)}, {s(S_TAG)}")
    a(f"v_mov_b32 {v(TG + 1)}, {s(S_TAG + 1)}")
    a(f"v_mov_b32 {v(T0)}, {A_TAG}")
    a(f"ds_write_b64 {v(T0)}, {v(TG, 2)}")
    a(f"s_waitcnt vmcnt(2) lgkmcnt(0)")
    st.cyc("Vland")
    a("s_barrier")
    a(f"s_mul_i32 s3, {s(S_B)}, 122880")
    a(f"s_mul_i32 s4, {s(S_HH)}, 320")
    a("s_add_u32 s3, s3, s4")
    a("s_sub_u32 s4, 983040, s3")
    srd(a, R_OUT, S_OUT, "s3", "s4")
    a("s_barrier")

    def poll(name, vaddr):
        a(f"s_mov_b32 s3, {SPIN_MAX}")
        a.label(name)
        a(f"buffer_load_dwordx2 {v(PT, 2)}, {v(vaddr)}, {s(R_F, 4)}, 0 offen sc1")
        a("s_sub_u32 s3, s3, 1")
        a("s_cmp_eq_u32 s3, 0")
        a(f"s_cbranch_scc1 {name}_out")
        a("s_waitcnt vmcnt(0)")
        a(f"v_cmp_ne_u64 vcc, {v(PT, 2)}, {v(TG, 2)}")
        a("s_nop 1")
        a(f"s_cbranch_vccnz {name}")
        a.label(name + "_out")
        a("s_waitcnt vmcnt(0)")

    BARS = ["B0", "B1", "B2", "BX"] + [f"B{n}" for n in range(3, 12)]
    own_mask = "s[4:5]"

    def run(path, tokens, state, alts):
        q, nwo, no, bi = state
        q = list(q)
        for k, ch in enumerate(tokens):
            free = -1 if bi < 2 else (bi - 2 if bi <= 4 else bi - 3)
            if ch == "w":
                assert nwo <= max(3, free + 4), (path, k, nwo, free)
                call("L_sub_wo")
                q.append((nwo, 5))
                nwo += 1
            elif ch == "o":
                assert no <= max(5, free + 6), (path, k, no, free)
                call("L_sub_o")
                q.append((no, 3))
                no += 1
            elif ch == "p":
                a(f"buffer_load_dwordx2 {v(PT, 2)}, {v(AF1)}, {s(R_F, 4)}, 0 offen sc1")
                q.append((99, 1))
            elif ch in "ab":
                last = max(i for i, (kk, _) in enumerate(q) if kk == 99)
                a(f"s_waitcnt vmcnt({sum(c for _, c in q[last + 1:])})")
                q = q[last + 1:]
                a(f"v_cmp_ne_u64 vcc, {v(PT, 2)}, {v(TG, 2)}")
                a("s_nop 1")
                a(f"s_and_b64 s[4:5], vcc, {s(S_OM, 2)}")
                a(f"s_cbranch_scc0 L_path_{ch}")
                alts[ch] = (q, nwo, no, bi)
            elif ch == "s":
                poll("L_poll1", AF1)
                q = []
            elif ch == "|":
                name = BARS[bi]
                need = {"BX": -1}.get(name, int(name[1:]) if name != "BX" else -1)
                if need >= 0:
                    assert nwo > need and (need < 3 or no > need), (path, name)
                    last = max([i for i, (kk, _) in enumerate(q) if kk <= need] + [-1])
                    cnt = sum(c for _, c in q[last + 1:])
                    if last >= 0:
                        a(f"s_waitcnt vmcnt({cnt})")
                    q = q[last + 1:]
                a("s_barrier")
                bi += 1
        assert bi == len(BARS) and nwo == 12 and no == 12, (path, bi, nwo, no)
    S_OM = 4 * 0 + 40
    a(f"s_lshl_b32 s3, {s(S_HH)}, 2")
    a("s_lshl_b32 s3, 0x000f000f, s3")
    a(f"s_not_b32 {s(S_OM)}, s3")
    a(f"s_mov_b32 {s(S_OM + 1)}, {s(S_OM)}")
    a("s_barrier")
    tabs = {
        1: dict(N="wp a|ww|wp|b|ww s ooo|wo|wo|wo|wo|wo|wo|||",
                a="|ww|w ooo||w|wo|wo|wo|wo|wo|wo|w||",
                b="ooo|w|wo|wo|wo|wo|wo|wo|w||"),
        2: dict(N="wp a|ww|wp|b|ww s ooo|wo|wo|wo|wo|wo|wo|||",
                a="|ww|w ooo||w|wwo|wo|wo|wo|wo|wo|||",
                b="ooo|w|wwo|wo|wo|wo|wo|wo|||"),
        3: dict(N="wp a|ww|wp|b|www s ooo|ooo|w|w|w|oo|w|wo||",
                a="|ww|w ooo||ww|wo|wo|wo|wo|wo|wo|||",
                b="ooo|ww|wo|wo|wo|wo|wo|wo|||"),
        4: dict(N="w|ww|wp|b|ww s ooo|wo|wo|wo|wo|wo|wo|||",
                b="ooo|w|wo|wo|wo|wo|wo|wo|w||"),
        5: dict(N="wp a|ww|wp|b|ww s ooo|wo|wo|wo|wo|wo|wo|||",
                a="|ww|w oo||wo|wo|wo|wo|wo|wo|wo|w||",
                b="oo|wo|wo|wo|wo|wo|wo|wo|w||"),
        6: dict(N="wp a|ww|wp|b|ww s ooo|wo|wo|wo|wo|wo|wo|||",
                a="|www ooo|||w|wwo|wo|wo|wo|wo|wo|||",
                b="ooo|w|wwo|wo|wo|wo|wo|wo|||"),
    }[cfg.tab]
    alts = {}
    run("N", tabs["N"].replace(" ", ""), ([], 0, 3, 0), alts)
    a("s_branch L_final")
    for key in sorted(alts):
        a.label(f"L_path_{key}")
        run(key, tabs[key].replace(" ", ""), alts[key], {})
        if key != sorted(alts)[-1]:
            a("s_branch L_final")
    a.label("L_final")
    a(f"s_lshl_b32 s3, {s(S_B)}, 2")
    a(f"s_add_u32 s3, s3, {s(S_HH)}")
    a("s_lshl_b32 s3, s3, 2")
    a(f"s_lshr_b32 s4, {s(S_G8)}, 1")
    a("s_add_u32 s3, s3, s4")
    a("s_lshl_b32 s3, s3, 7")
    a(f"s_add_u32 s3, s3, {F2}")
    a(f"v_and_b32 {v(T0)}, 7, v0")
    a(f"v_lshl_add_u32 {v(AF2)}, {v(T0)}, 3, s3")
    a(f"s_lshl_b32 s4, {s(S_LW)}, 6")
    a("v_add_u32 v7, s4, v0")
    a("v_min_u32 v7, 239, v7")
    OFFS = reduce_addr(a, 7, RT, A0, A1, s(S_G8))
    D0, AC = 80, 148

    def load_part(g):
        a(f"s_mov_b32 s3, {PSZ * g}")
        a(f"buffer_load_dwordx4 {v(D0 + 4 * g, 4)}, {v(OFFS)}, {s(R_PI, 4)}, s3 offen {['sc1', '', 'nt', 'sc0 sc1', 'sc1 nt'][cfg.pld]}")
    if not cfg.dynred:
        poll("L_poll2", AF2)
        st.cyc("seen2")
        for g in range(8):
            load_part(g)
    else:
        a(f"s_mov_b32 s7, {SPIN_MAX}")
        a("s_mov_b32 s6, 0")
        a.label("L_poll2")
        a(f"buffer_load_dwordx2 {v(PT, 2)}, {v(AF2)}, {s(R_F, 4)}, 0 offen sc1")
        a("s_sub_u32 s7, s7, 1")
        a("s_cmp_eq_u32 s7, 0")
        a("s_cbranch_scc1 L_poll2_out")
        a("s_waitcnt vmcnt(0)")
        a(f"v_cmp_eq_u64 vcc, {v(PT, 2)}, {v(TG, 2)}")
        a("s_nop 1")
        a("s_and_b32 s5, vcc_lo, 0xff")
        a("s_andn2_b32 s4, s5, s6")
        a("s_cbranch_scc0 L_poll2")
        a("s_or_b32 s6, s6, s5")
        for g in range(8):
            a(f"s_bitcmp1_b32 s4, {g}")
            a(f"s_cbranch_scc0 L_r{g}")
            load_part(g)
            a.label(f"L_r{g}")
        a("s_cmp_eq_u32 s6, 0xff")
        a("s_cbranch_scc0 L_poll2")
        a.label("L_poll2_out")
        st.cyc("seen2")
        a("s_waitcnt vmcnt(0)")
    for g in range(8):
        if not cfg.dynred:
            a(f"s_waitcnt vmcnt({7 - g})")
        for r in range(4):
            src = D0 + 4 * g + r
            if g == 0:
                a(f"v_lshlrev_b32 {v(AC + 2 * r)}, 16, {v(src)}")
                a(f"v_and_b32 {v(AC + 2 * r + 1)}, 0xffff0000, {v(src)}")
            else:
                t = 4 + 2 * (r % 2)
                a(f"v_lshlrev_b32 {v(t)}, 16, {v(src)}")
                a(f"v_and_b32 {v(t + 1)}, 0xffff0000, {v(src)}")
                a(f"v_pk_add_f32 {v(AC + 2 * r, 2)}, {v(AC + 2 * r, 2)}, {v(t, 2)}")
    for r in range(4):
        a(cvt(D0 + r, AC + 2 * r))
    fl = ['', 'sc1', 'nt', 'sc0 sc1'][cfg.outfl]
    a(f"buffer_store_dwordx2 {v(D0, 2)}, {v(A0)}, {s(R_OUT, 4)}, 0 offen {fl}")
    a(f"buffer_store_dwordx2 {v(D0 + 2, 2)}, {v(A1)}, {s(R_OUT, 4)}, 0 offen {fl}")
    a(f"s_or_b32 s3, {s(S_H)}, {s(S_LW)}")
    a("s_cmp_eq_u32 s3, 0")
    a("s_cbranch_scc0 L_noep")
    a(f"s_lshl_b32 s3, {s(S_B)}, 7")
    a(f"s_add_u32 s3, s3, {FX}")
    a("v_mov_b32 v4, 0")
    a("s_mov_b64 exec, 1")
    a(f"buffer_store_dwordx2 {v(TG, 2)}, v4, {s(R_F, 4)}, s3 offen")
    a.label("L_noep")
    if cfg.diag:
        a("s_waitcnt vmcnt(0)")
    st.cyc("end")
    st.real("real1")
    st.flush("L")


def generate(cfg):
    a = Asm()
    a.lines.append("; @launch grid=(256,1,1) block=(512,1,1) lds=163840")
    a('.amdgcn_target "amdgcn-amd-amdhsa--gfx950"')
    a(".text")
    a(kernel_header(KN))
    a("s_cmp_ge_u32 s2, 256")
    a("s_cbranch_scc1 L_end")
    a("s_load_dwordx16 s[32:47], s[0:1], 0")
    if cfg.diag:
        a(f"s_memrealtime {s(S_T, 2)}")
        a(f"s_memtime {s(S_T + 2, 2)}")
    a("v_lshrrev_b32 v1, 6, v0")
    a("v_and_b32 v0, 63, v0")
    a(f"v_readfirstlane_b32 {s(S_WAVE)}, v1")
    a(f"s_and_b32 {s(S_G8)}, s2, 7")
    a("s_lshr_b32 s4, s2, 3")
    a(f"s_lshr_b32 {s(S_B)}, s4, 2")
    a(f"s_and_b32 {s(S_HH)}, s4, 3")
    a(f"s_lshl_b32 s3, {s(S_G8)}, 2")
    a(f"s_add_u32 {s(S_H)}, s3, {s(S_HH)}")
    a(f"s_cmp_ge_u32 {s(S_WAVE)}, 4")
    a("s_cbranch_scc1 L_loader")
    if cfg.ipf:
        a("s_getpc_b64 s[62:63]")
        a.label("L_pc")
        a(f"s_sub_u32 s62, s62, L_pc-{KN}")
        a("s_subb_u32 s63, s63, 0")
        a(f"s_mul_i32 s3, {s(S_WAVE)}, 40")
        a("v_min_u32 v7, 39, v0")
        a("v_add_u32 v7, s3, v7")
        a("v_lshlrev_b32 v7, 7, v7")
        a(f"v_min_u32 v7, L_last-{KN}, v7")
        if cfg.ipf & 1:
            a("global_load_dword v14, v7, s[62:63]")
    a("s_branch L_compute")
    a.label("L_loader")
    gen_loader(a, cfg)
    a.label("L_end")
    a("s_endpgm")
    a.label("L_compute")
    gen_compute(a, cfg)
    a('.section .rodata,"a"')
    a(".p2align 6")
    a(kernel_desc(KN))
    return a.text()


if __name__ == "__main__":
    cfg = Cfg()
    out = sys.argv[1]
    for opt in sys.argv[2:]:
        k, val = opt.split("=")
        assert hasattr(cfg, k), k
        setattr(cfg, k, val if k == "only" else int(val))
    t = generate(cfg)
    pr = hazard.check(t) + hazard.check_counters(t)
    for p in pr:
        print(f"HAZARD line {p[0]} -> {p[1]}: need {p[2]} have {p[3]}\n    {p[4]}\n    {p[5]}")
    open(out, "w").write(t)
    print(out, "hazards:", len(pr), "lines:", t.count("\n"))
```

```python
import struct
import sys

from asmlib import Asm, v, s, kernel_header, kernel_desc
import hazard

KN = "standalone__gqa_block_cached__near_ridge_kernel"
OFF_O = 0
OFF_P = 16 << 20
OFF_F = 32 << 20
F1, F2, FX = 0, 65536, 131072
OFF_T = 64 << 20
SLOT = 36864
A_K = 3 * SLOT
A_V = 1 * SLOT
A_Q = 2 * SLOT
A_P = 2 * SLOT
A_M = 163840 - 768
A_TAG = A_M - 8
WO0, WOS = 81920, 20480
OS = 12288
PSZ = 30720
CEXP = 0.07216878364870322 * 1.4426950408889634
TAGC = (0x9E3779B9, 0x7F4A7C15)
SPIN_MAX = 1 << 21


def f32bits(x):
    return struct.unpack("<I", struct.pack("<f", x))[0]


class Cfg:
    diag = 0
    only = ""
    rot = 10
    kpos = 9
    dynred = 1
    outfl = 0
    ipf = 3
    tab = 4
    unsafe = 0
    lprio = 1
    sent = 0
    smx = 2
    vbp = 2
    fin = 2
    qv = 6
    sv = 1
    wper = 5
    odef = 1
    fw = 2
    dot2 = 0
    tpos = 10
    pst = 0
    pld = 0


S_X, S_K, S_V, S_WQ, S_WO, S_OUT, S_DBG, S_WS = 32, 34, 36, 38, 40, 42, 44, 46
S_B, S_H, S_WAVE, S_G8, S_HH = 28, 29, 30, 31, 48
S_TAG = 60
R_F = 24
S_T = 64


class Stamps:
    def __init__(self, a, cfg):
        self.a, self.on, self.n = a, cfg.diag, 2
        self.fine = cfg.diag > 1
        self.names = ["real0", "cyc0"]
        self.k = 0
        self.only = cfg.only.split(",") if cfg.only else None

    def real(self, name):
        if self.on:
            self.a(f"s_memrealtime {s(S_T + 2 * self.n, 2)}")
            self.names.append(name)
            self.n += 1

    def cyc(self, name, fine=False):
        if self.only and name not in self.only:
            return
        if not self.only and len(name) <= 3 and name[0] in "afB" and name[1:].isdigit() and name != "B0":
            return
        if self.on and (not fine or self.fine or self.only):
            self.a(f"{'s_memrealtime' if self.on > 2 else 's_memtime'} {s(S_T + 2 * self.n, 2)}")
            self.names.append(name)
            self.n += 1

    def alt(self, name, path, fine=False):
        if path == "N":
            return self.cyc(name, fine)
        if not self.on or (self.only and name not in self.only) or (fine and not self.only):
            return
        self.a(f"{'s_memrealtime' if self.on > 2 else 's_memtime'} {s(S_T + 2 * (self.n + self.k), 2)}")
        self.k += 1

    def flush(self, role, vt=4):
        if not self.on:
            return
        a = self.a
        assert self.n <= 19, self.n
        a("s_waitcnt lgkmcnt(0) vmcnt(0)")
        a(f"; STAMPS {role} " + " ".join(self.names))
        a("s_lshl_b32 s3, s2, 3")
        a(f"s_add_u32 s3, s3, {s(S_WAVE)}")
        a("s_lshl_b32 s3, s3, 8")
        a(f"s_add_u32 s3, s3, {OFF_T}")
        a(f"s_add_u32 s4, {s(S_WS)}, s3")
        a(f"s_addc_u32 s5, {s(S_WS + 1)}, 0")
        a("s_mov_b64 exec, 1")
        a(f"v_mov_b32 {v(vt + 2)}, 0")
        for i in range(self.n):
            a(f"v_mov_b32 {v(vt)}, {s(S_T + 2 * i)}")
            a(f"v_mov_b32 {v(vt + 1)}, {s(S_T + 2 * i + 1)}")
            a(f"global_store_dwordx2 {v(vt + 2)}, {v(vt, 2)}, s[4:5] offset:{8 * i}")
            a("s_nop 1")
        a("s_waitcnt vmcnt(0)")


def srd(a, d, base, off_sgpr, size):
    a(f"s_add_u32 {s(d)}, {s(base)}, {off_sgpr}")
    a(f"s_addc_u32 {s(d + 1)}, {s(base + 1)}, 0")
    a(f"s_mov_b32 {s(d + 2)}, {size}")
    a(f"s_mov_b32 {s(d + 3)}, 0x20000")


def dma(a, voff, srd_, soff, base, imm, fl=""):
    a(f"s_add_u32 m0, {base}, {imm}")
    a("s_nop 0")
    a(f"buffer_load_dwordx4 {v(voff)}, {s(srd_, 4)}, {soff} offen {fl} lds")


def mfma(d, a_, b_, c=None):
    cs = v(d, 4) if c is None else str(c)
    return f"v_mfma_f32_16x16x32_bf16 {v(d, 4)}, {v(a_, 4)}, {v(b_, 4)}, {cs}"


def trread(d, addr, off):
    assert 0 <= off < 65536
    return f"ds_read_b64_tr_b16 {v(d, 2)}, {v(addr)} offset:{off}"


def rd128(d, addr, off):
    assert 0 <= off < 65536
    return f"ds_read_b128 {v(d, 4)}, {v(addr)} offset:{off}"


def rd64(d, addr, off):
    assert 0 <= off < 65536
    return f"ds_read_b64 {v(d, 2)}, {v(addr)} offset:{off}"


def cvt(d, t):
    return f"v_cvt_pk_bf16_f32 {v(d)}, {v(t)}, {v(t + 1)}"


def emit(a, lst):
    for x in lst:
        a(x)


def place(main, slots):
    out = list(slots.get(-1, []))
    for i, m in enumerate(main):
        out.append(m)
        out.extend(slots.get(i, []))
    for k in sorted(slots):
        if k >= len(main):
            out.extend(slots[k])
    return out


def spread(fill, start, per=1, step=1, into=None):
    d = into if into is not None else {}
    i, k = start, 0
    while k < len(fill):
        d.setdefault(i, []).extend(fill[k:k + per])
        k += per
        i += step
    return d


def at(d, i, *x):
    d.setdefault(i, []).extend(x)


def lg(n):
    return f"s_waitcnt lgkmcnt({n})"


def mod_small(a, reg, m, times):
    for _ in range(times):
        a(f"s_sub_u32 s4, {reg}, {m}")
        a(f"s_cmp_ge_u32 {reg}, {m}")
        a(f"s_cselect_b32 {reg}, s4, {reg}")


def tile_addrs(a, dst, first, f, lanepart, tmp, extra=None):
    for c in range(4):
        a(f"s_add_u32 s4, {first}, {c}")
        a("s_and_b32 s5, s4, 3")
        a("s_lshr_b32 s4, s4, 2")
        a("s_lshl_b32 s4, s4, 7")
        a(f"v_xor_b32 {v(tmp)}, s5, {v(f)}")
        a(f"v_lshl_add_u32 {v(tmp)}, {v(tmp)}, 5, {v(lanepart)}")
        a(f"v_add_u32 {v(dst + c)}, s4, {v(tmp)}")


def gen_compute(a, cfg):
    st = Stamps(a, cfg)
    R_O, R_P = 8, 12
    ACC, FR, QP, LS, ONES = 16, 88, 160, 196, 208
    AX, AY, AZ, AVo, AVp = 212, 216, 218, 230, 234
    AQW, AQR, AMW, AMR, APW, APR, APW2, APR2, AO, AOW = range(238, 248)
    AW, AB, AP, AP2, TG, ZERO = 248, 250, 251, 252, 254, 15
    VM, VG, VF, T0, T1, T2 = 1, 2, 3, 4, 5, 6
    MX = 8
    S_I, S_J, S_C, S_D, S_CNT, S_SL, S_D2, S_SL2 = 50, 51, 52, 54, 55, 56, 57, 18
    S_K0, S_K1, S_F1, S_F2 = 58, 59, 16, 17

    a(f"s_lshr_b32 {s(S_I)}, {s(S_WAVE)}, 1")
    a(f"s_and_b32 {s(S_J)}, {s(S_WAVE)}, 1")
    a(f"s_mov_b32 {s(S_C)}, {f32bits(CEXP):#x}")
    a(f"s_mov_b32 {s(S_C + 1)}, {f32bits(CEXP):#x}")
    a(f"v_and_b32 {v(VM)}, 15, v0")
    a(f"v_lshrrev_b32 {v(VG)}, 4, v0")
    a(f"v_lshrrev_b32 {v(T0)}, 2, {v(VM)}")
    a(f"v_lshl_add_u32 {v(T1)}, {v(VG)}, 3, {v(T0)}")
    a(f"v_mul_u32_u24 {v(T1)}, 384, {v(T1)}")
    a(f"v_and_b32 {v(T2)}, 3, {v(VM)}")
    a(f"v_lshlrev_b32 v11, 3, {v(T2)}")
    a(f"v_add_u32 {v(T1)}, v11, {v(T1)}")
    a(f"v_and_b32 {v(T2)}, 1, {v(VG)}")
    a(f"v_lshrrev_b32 {v(VF)}, 3, {v(VM)}")
    a(f"v_lshl_or_b32 {v(VF)}, {v(T2)}, 1, {v(VF)}")
    a(f"s_mul_i32 s3, {s(S_I)}, 6")
    tile_addrs(a, AX, "s3", VF, T1, T2)
    a(f"s_mul_i32 s4, {s(S_J)}, 48")
    a(f"v_add_u32 {v(T1)}, s4, {v(VM)}")
    a(f"v_lshlrev_b32 {v(T1)}, 7, {v(T1)}")
    a(f"v_add_u32 {v(T1)}, 24576, {v(T1)}")
    a(f"v_lshrrev_b32 {v(VF)}, 1, {v(VM)}")
    for ks in range(2):
        a(f"v_add_u32 {v(T2)}, {4 * ks}, {v(VG)}")
        a(f"v_xor_b32 {v(T2)}, {v(T2)}, {v(VF)}")
        a(f"v_lshl_add_u32 {v(AY + ks)}, {v(T2)}, 4, {v(T1)}")
    for i in range(72):
        a(f"v_mov_b32 {v(ACC + i)}, 0")
    a(f"s_mul_i32 s4, {s(S_I)}, 48")
    a(f"v_add_u32 {v(T1)}, s4, {v(VM)}")
    a(f"v_mul_u32_u24 {v(T1)}, 384, {v(T1)}")
    a(f"v_and_b32 {v(T2)}, 1, {v(VG)}")
    a(f"v_lshl_add_u32 {v(T1)}, {v(T2)}, 3, {v(T1)}")
    a(f"v_add_u32 {v(T1)}, {A_K}, {v(T1)}")
    a(f"v_lshrrev_b32 {v(T0)}, 1, {v(VG)}")
    a(f"v_xor_b32 {v(T0)}, {v(T0)}, {v(VF)}")
    a(f"v_lshl_add_u32 {v(T1)}, {v(T0)}, 4, {v(T1)}")
    a(f"s_mul_i32 s7, {s(S_I)}, 3")
    for ls in range(6):
        a(f"s_add_u32 s6, s7, {ls}")
        mod_small(a, "s6", 6, 1)
        a("s_and_b32 s5, s6, 1")
        a("s_lshl_b32 s5, s5, 6")
        a("s_lshr_b32 s6, s6, 1")
        a("s_lshl_b32 s6, s6, 7")
        a(f"v_add_u32 {v(T2)}, s6, {v(T1)}")
        a(f"v_xor_b32 {v(AZ + 2 * ls)}, s5, {v(T2)}")
        a(f"v_xor_b32 {v(AZ + 2 * ls + 1)}, 32, {v(AZ + 2 * ls)}")
    a(f"v_lshrrev_b32 {v(T0)}, 2, {v(VM)}")
    a(f"v_lshl_add_u32 {v(T0)}, {v(VG)}, 2, {v(T0)}")
    a(f"v_bfe_u32 {v(VF)}, {v(T0)}, 1, 2")
    a(f"v_mul_u32_u24 {v(T1)}, 384, {v(T0)}")
    a(f"v_add_u32 {v(T1)}, v11, {v(T1)}")
    a(f"s_mul_i32 s6, {s(S_I)}, 18432")
    a(f"s_add_u32 s7, s6, {A_V}")
    a(f"v_add_u32 {v(T1)}, s7, {v(T1)}")
    a(f"s_mul_i32 s3, {s(S_I)}, 6")
    tile_addrs(a, AVo, "s3", VF, T1, T2)
    a("s_lshl_b32 s6, s6, 1")
    a("s_sub_u32 s6, 18432, s6")
    for c in range(4):
        a(f"v_add_u32 {v(AVp + c)}, s6, {v(AVo + c)}")
    a(f"v_mul_u32_u24 {v(T1)}, 320, {v(T0)}")
    a(f"v_add_u32 {v(T1)}, v11, {v(T1)}")
    a(f"v_add_u32 {v(T1)}, {WO0 + WOS}, {v(T1)}")
    a(f"v_and_b32 {v(T0)}, 1, {v(VG)}")
    a(f"s_mul_i32 s3, {s(S_I)}, 5")
    for par in range(2):
        a(f"s_add_u32 s4, s3, {par}")
        a(f"v_xor_b32 {v(T2)}, s4, {v(T0)}")
        a(f"v_lshl_add_u32 {v(AW + par)}, {v(T2)}, 5, {v(T1)}")
    a(f"s_xor_b32 s5, {s(S_WAVE)}, 2")
    a(f"v_lshlrev_b32 {v(T1)}, 4, v0")
    a(f"v_lshlrev_b32 {v(T0)}, 3, v0")
    a(f"v_lshlrev_b32 {v(T2)}, 2, {v(VM)}")
    for wv, (q_, p_, p2, m_) in ((s(S_WAVE), (AQW, APW, APW2, AMW)), ("s5", (AQR, APR, APR2, AMR))):
        a(f"s_mul_i32 s3, {wv}, 9216")
        a(f"s_add_u32 s3, s3, {A_Q}")
        a(f"v_add_u32 {v(q_)}, s3, {v(T1)}")
        a(f"s_mul_i32 s3, {wv}, 4608")
        a(f"s_add_u32 s3, s3, {A_P}")
        a(f"v_add_u32 {v(p_)}, s3, {v(T1)}")
        a(f"v_add_u32 {v(p2)}, s3, {v(T0)}")
        a(f"s_mul_i32 s3, {wv}, 192")
        a(f"s_add_u32 s3, s3, {A_M}")
        a(f"v_add_u32 {v(m_)}, s3, {v(T2)}")
    a(f"s_mul_i32 s3, {s(S_I)}, 18")
    a(f"s_mul_i32 s4, {s(S_J)}, 3")
    a("s_add_u32 s3, s3, s4")
    a("s_lshl_b32 s3, s3, 10")
    a(f"v_add_u32 {v(AO)}, s3, {v(T1)}")
    a(f"s_mul_i32 s3, {s(S_J)}, 3072")
    a(f"v_add_u32 {v(AB)}, s3, {v(T1)}")
    a(f"s_mul_i32 s3, {s(S_WAVE)}, 7680")
    a(f"v_add_u32 {v(AP)}, s3, {v(T1)}")
    a("s_add_u32 s3, s3, 7168")
    a(f"v_add_u32 {v(AP2)}, s3, {v(T0)}")
    a(f"v_mov_b32 {v(AOW)}, {A_TAG}")
    a(f"v_mov_b32 {v(ZERO)}, 0")
    for i in range(4):
        a(f"v_mov_b32 {v(ONES + i)}, 0x3f803f80")
    a(f"s_lshl_b32 s3, {s(S_B)}, 5")
    a(f"s_add_u32 s3, s3, {s(S_H)}")
    a("s_lshl_b32 s4, s3, 2")
    a(f"s_add_u32 s4, s4, {s(S_WAVE)}")
    a(f"s_lshl_b32 {s(S_F1)}, s4, 3")
    a(f"s_lshl_b32 s4, {s(S_B)}, 2")
    a(f"s_add_u32 s4, s4, {s(S_HH)}")
    a("s_lshl_b32 s6, s4, 2")
    a(f"s_add_u32 s6, s6, {s(S_WAVE)}")
    a("s_lshl_b32 s6, s6, 4")
    a(f"s_add_u32 s6, s6, {s(S_G8)}")
    a("s_lshl_b32 s6, s6, 3")
    a(f"s_add_u32 {s(S_F2)}, s6, {F2}")
    a("s_lshl_b32 s4, s4, 3")
    a(f"s_add_u32 s4, s4, {s(S_G8)}")
    a(f"s_mul_i32 s4, s4, {PSZ}")
    a(f"s_add_u32 s4, s4, {OFF_P}")
    a("s_mul_i32 s3, s3, 36864")
    a("s_waitcnt lgkmcnt(0)")
    srd(a, R_O, S_WS, "s3", 36864)
    srd(a, R_P, S_WS, "s4", PSZ)
    srd(a, R_F, S_WS, f"{OFF_F}", 262144)

    def fa(n, dt):
        return FR + 36 * n + 4 * dt

    def fb(n, qt):
        return FR + 36 * n + 24 + 4 * qt

    def p1_reads(n, ks):
        def A(dt):
            return [trread(fa(n, dt) + 2 * hh, AX + dt % 4, 384 * (32 * ks + 4 * hh) + 128 * (dt // 4)) for hh in range(2)]

        def B(qt):
            return [rd128(fb(n, qt), AY + ks, 2048 * qt)]
        r = B(0) + A(0) + B(1) + B(2)
        for dt in range(1, 6):
            r += A(dt)
        return r

    def qtile(dt, qt):
        return ACC + 4 * (3 * dt + qt)

    def p1_mfmas(n):
        return [mfma(qtile(dt, qt), fa(n, dt), fb(n, qt)) for dt in range(6) for qt in range(3)]

    adv = [f"v_add_u32 {v(AX + c)}, {s(S_D)}, {v(AX + c)}" for c in range(4)] + \
          [f"v_add_u32 {v(AY + c)}, {s(S_D)}, {v(AY + c)}" for c in range(2)]
    a(f"s_mov_b32 {s(S_SL)}, 0")
    a(f"s_mov_b32 {s(S_CNT)}, 0")
    a(f"s_mov_b32 {s(S_K0)}, {(-2 * SLOT) & 0xffffffff:#x}")
    a(f"s_mov_b32 {s(S_K1)}, {SLOT}")
    st.cyc("setup")
    a("s_barrier")
    st.cyc("b0")
    emit(a, p1_reads(0, 0))
    a(lg(0))
    a.label("L_p1")
    sl = spread(p1_reads(1, 1), 0, 1)
    at(sl, 0, f"s_add_u32 {s(S_SL)}, {s(S_SL)}, 1")
    at(sl, 1, f"s_cmp_eq_u32 {s(S_SL)}, 3")
    at(sl, 2, f"s_cselect_b32 {s(S_D)}, {s(S_K0)}, {s(S_K1)}")
    at(sl, 3, f"s_cselect_b32 {s(S_SL)}, 0, {s(S_SL)}")
    spread(adv, 15, 2, into=sl)
    emit(a, place(p1_mfmas(0), sl))
    a(lg(0))
    a("s_barrier")
    sl = spread(p1_reads(0, 0), 0, 1)
    at(sl, 15, f"s_add_u32 {s(S_CNT)}, {s(S_CNT)}, 1")
    at(sl, 16, f"s_cmp_lt_u32 {s(S_CNT)}, 9")
    emit(a, place(p1_mfmas(1), sl))
    a(lg(0))
    a("s_cbranch_scc1 L_p1")
    emit(a, place(p1_mfmas(0), spread(p1_reads(1, 1), 0, 1)))
    if cfg.ipf & 2:
        a("global_load_dword v14, v7, s[62:63]")
    a(lg(0))
    a("s_barrier")
    st.cyc("b10")
    a.c("SEG q")

    def kf(buf, a_):
        return FR + 12 * buf + 4 * a_

    def k_reads(ls, buf):
        return [rd64(kf(buf, a_) + 2 * hh, AZ + 2 * ls + hh, 6144 * a_) for a_ in range(3) for hh in range(2)]

    def qpack(ls):
        r = []
        for qt in range(3):
            for dt in (2 * ls, 2 * ls + 1):
                d = QP + 4 * (3 * ls + qt) + 2 * (dt % 2)
                r += [cvt(d, qtile(dt, qt)), cvt(d + 1, qtile(dt, qt) + 2)]
        return r

    def qwrite(f):
        return f"ds_write_b128 {v(AQW)}, {v(QP + 4 * f, 4)} offset:{1024 * f}"

    def stile(a_, qt):
        return ACC + 4 * (3 * a_ + qt)

    def s_mfmas(qbase, ls3, buf, first=False, qmajor=False):
        idx = [(a_, qt) for qt in range(3) for a_ in range(3)] if qmajor else [(a_, qt) for a_ in range(3) for qt in range(3)]
        return [mfma(stile(a_, qt), kf(buf, a_), qbase + 4 * (3 * ls3 + qt), 0 if first else None) for a_, qt in idx]

    q0, q1, q2 = qpack(0), qpack(1), qpack(2)
    if cfg.qv == 0:
        sl = spread(k_reads(0, 0) + k_reads(1, 1) + k_reads(2, 2), 0, 2, into={})
        spread(q0, 9, 2, into=sl)
        at(sl, 11, qwrite(0))
        at(sl, 14, qwrite(1))
        spread(q1[:4], 15, 2, into=sl)
        at(sl, 17, qwrite(2))
        emit(a, place(p1_mfmas(1), sl))
        emit(a, q1[4:8] + [qwrite(3)] + q1[8:])
        a(lg(4))
        sl = {}
        at(sl, 0, qwrite(4))
        spread(q2, 1, 2, into=sl)
        at(sl, 3, qwrite(5))
        at(sl, 7, qwrite(6))
        at(sl, 10, qwrite(7))
        at(sl, 13, qwrite(8))
        spread(k_reads(3, 0), 14, 2, into=sl)
        emit(a, place(s_mfmas(QP, 0, 0, True) + s_mfmas(QP, 1, 1), sl))
    else:
        order = [(dt, qt) for ls in range(3) for qt in range(3) for dt in (2 * ls, 2 * ls + 1)]
        mm = [mfma(qtile(dt, qt), fa(1, dt), fb(1, qt)) for dt, qt in order]
        mm += s_mfmas(QP, 0, 0, True) + s_mfmas(QP, 1, 1)
        packs = q0 + q1 + q2
        sl = {}
        if cfg.qv == 1:
            spread(k_reads(0, 0)[:5], 0, 1, into=sl)
            for f in range(9):
                g0 = 5 + 2 * f + (f >= 6) * 2
                spread(packs[4 * f:4 * f + 4], g0, 2, into=sl)
            wr = [7, 10, 13, 16, 19, 22, 25, 28, 31]
            for f in range(9):
                at(sl, wr[f], qwrite(f))
            at(sl, 8, k_reads(0, 0)[5])
            for k, g_ in enumerate([9, 11, 12, 14, 15, 17]):
                at(sl, g_, k_reads(1, 1)[k])
            at(sl, 17, lg(7))
            at(sl, 26, lg(3))
            spread(k_reads(2, 2), 27, 1, into=sl)
            spread(k_reads(3, 0), 29, 1, into=sl)
        elif cfg.qv == 2:
            spread(k_reads(0, 0) + k_reads(1, 1)[:4], 0, 2, into=sl)
            for f in range(9):
                g0 = 5 + 2 * f + (f >= 6) * 2
                spread(packs[4 * f:4 * f + 4], g0, 2, into=sl)
            wr = [7, 10, 13, 16, 19, 22, 25, 28, 31]
            for f in range(9):
                at(sl, wr[f], qwrite(f))
            at(sl, 8, k_reads(1, 1)[4])
            at(sl, 9, k_reads(1, 1)[5])
            at(sl, 17, lg(3))
            spread(k_reads(2, 2), 26, 1, into=sl)
            spread(k_reads(3, 0), 29, 1, into=sl)
        elif cfg.qv in (3, 4):
            kr = k_reads(0, 0) + k_reads(1, 1) + k_reads(2, 2)
            spread(kr[:5], 0, 1, into=sl)
            rest = kr[5:]
            for f in range(9):
                g0 = 5 + 3 * f
                c4 = packs[4 * f:4 * f + 4]
                if cfg.qv == 3:
                    at(sl, g0, rest.pop(0), c4[0], c4[1])
                    at(sl, g0 + 1, c4[2], c4[3])
                else:
                    at(sl, g0, rest.pop(0), c4[0])
                    at(sl, g0 + 1, c4[1], c4[2], c4[3])
                at(sl, g0 + 2, qwrite(f))
            spread(rest, 32, 1, into=sl)
            sl[17].append(lg(8))
            sl[26].append(lg(2))
        elif cfg.qv in (5, 6, 7):
            kr = k_reads(0, 0) + k_reads(1, 1) + k_reads(2, 2)
            spread(kr[:4], 0, 1, into=sl)
            rest = kr[4:]
            start = 4 if cfg.qv == 7 else 5
            for f in range(9):
                g0 = start + 3 * f
                c4 = packs[4 * f:4 * f + 4]
                at(sl, g0, *(rest[:1]), c4[0], c4[1])
                at(sl, g0 + 1, *(rest[1:2]), c4[2], c4[3])
                rest = rest[2:]
                if cfg.qv == 6:
                    d = QP + 4 * f
                    at(sl, g0 + 2, f"ds_write_b64 {v(AQW)}, {v(d, 2)} offset:{1024 * f}",
                       f"ds_write_b64 {v(AQW)}, {v(d + 2, 2)} offset:{1024 * f + 8}")
                else:
                    at(sl, g0 + 2, qwrite(f))
            sl[17].append(lg(4))
            sl[26].append(lg(2))
        emit(a, place(mm, sl))
    st.cyc("a3", True)
    a(lg(0))
    a("s_barrier")
    st.cyc("b11")
    a.c("SEG s")
    QR = FR + 36
    rds = [rd128(QR + 4 * f, AQR, 1024 * f) for f in range(9)]
    if cfg.sv == 0:
        sl = spread(rds[:6], -1, 1)
        spread(k_reads(4, 1), 5, 2, into=sl)
        at(sl, 8, lg(9))
        emit(a, place(s_mfmas(QP, 2, 2), sl))
        st.cyc("a4", True)
        sl = spread(rds[6:], 0, 1)
        spread(k_reads(5, 2), 3, 1, into=sl)
        at(sl, 8, lg(9))
        emit(a, place(s_mfmas(QR, 0, 0), sl))
        emit(a, s_mfmas(QR, 1, 1))
        a(lg(0))
    else:
        sl = spread(rds[:3], -1, 1)
        spread(k_reads(3, 0), 2, 2, into=sl)
        spread(rds[3:6], 5, 1, into=sl)
        at(sl, 8, lg(3))
        spread(k_reads(4, 1), 8, 2, into=sl)
        spread(rds[6:], 11, 1, into=sl)
        spread(k_reads(5, 2), 14, 2, into=sl)
        at(sl, 17, lg(9))
        emit(a, place(s_mfmas(QP, 2, 2) + s_mfmas(QR, 0, 0), sl))

    def xs(qt):
        return [stile(a_, qt) + r for a_ in range(3) for r in range(4)]

    def maxchain(qt):
        x = xs(qt)
        r = [f"v_max3_f32 {v(MX + qt)}, {v(x[0])}, {v(x[1])}, {v(x[2])}"]
        for k in range(3, 11, 2):
            r.append(f"v_max3_f32 {v(MX + qt)}, {v(MX + qt)}, {v(x[k])}, {v(x[k + 1])}")
        r.append(f"v_max_f32 {v(MX + qt)}, {v(MX + qt)}, {v(x[11])}")
        return r
    m0, m1, m2 = maxchain(0), maxchain(1), maxchain(2)
    if cfg.sv == 0:
        emit(a, s_mfmas(QR, 2, 2, qmajor=True))
        st.cyc("sdone", True)
        a("s_nop 0")
        emit(a, m0 + m1 + m2)
    else:
        s4, s5 = s_mfmas(QR, 1, 1, qmajor=True), s_mfmas(QR, 2, 2, qmajor=True)
        mm = sum([s4[3 * qt:3 * qt + 3] + s5[3 * qt:3 * qt + 3] for qt in range(3)], [])
        sl = {}
        at(sl, 2, lg(0))
        spread(m0, 11, 2, into=sl)
        spread(m1[:2], 17, 2, into=sl)
        emit(a, place(mm, sl))
        st.cyc("sdone", True)
        emit(a, m1[2:] + ["s_nop 1"] + m2)
    for op in ("v_permlane16_swap_b32", "v_permlane32_swap_b32"):
        for qt in range(3):
            a(f"v_mov_b32 {v(MX + 3 + qt)}, {v(MX + qt)}")
        for qt in range(3):
            a(f"{op} {v(MX + 3 + qt)}, {v(MX + qt)}")
        for qt in range(3):
            a(f"v_max_f32 {v(MX + qt)}, {v(MX + qt)}, {v(MX + 3 + qt)}")
    for qt in range(3):
        a(f"ds_write_b32 {v(AMW)}, {v(MX + qt)} offset:{64 * qt}")
    st.cyc("a6", True)
    a(lg(0))
    a("s_barrier")
    st.cyc("b12")
    a.c("SEG sm")

    PP, PC = FR, FR + 24
    VQ = [[QP + 4 * dt for dt in range(6)], [FR + 36 + 4 * dt for dt in range(6)], [148, 152, 156, 184, 188, 192]]

    def v_reads(step):
        r = []
        for dt in range(6):
            for hh in range(2):
                if step == 0:
                    ad, tile = AVo, hh
                elif step == 1:
                    ad, tile = (AVo, 2) if hh == 0 else (AVp, 2)
                else:
                    ad, tile = AVp, hh
                r.append(trread(VQ[step][dt] + 2 * hh, ad + dt % 4, 6144 * tile + 128 * (dt // 4)))
        return r
    NM = 2
    for qt in range(3):
        a(f"ds_read_b32 {v(MX + 3 + qt)}, {v(AMR)} offset:{64 * qt}")
    emit(a, v_reads(0))
    if cfg.vbp == 2:
        emit(a, v_reads(1))
    a((lg(15) if cfg.vbp == 2 else lg(12)) if not st.on else lg(0))
    a(f"ds_read_b64 {v(TG, 2)}, {v(AOW)}")
    for qt in range(3):
        a(f"v_max_f32 {v(MX + qt)}, {v(MX + qt)}, {v(MX + 3 + qt)}")
    for qt in range(3):
        a(f"v_mul_f32 {v(NM + 2 * qt)}, {s(S_C)}, {v(MX + qt)}")
    for qt in range(3):
        a(f"v_mov_b32 {v(NM + 2 * qt + 1)}, {v(NM + 2 * qt)}")

    def softmax(qt):
        x = xs(qt)
        e = [f"v_exp_f32 {v(y)}, {v(y)}" for y in x]
        c = [cvt(PP + 8 * qt + k, x[2 * k]) for k in range(6)]
        if cfg.smx == 0 or (cfg.smx == 2 and qt == 0):
            f = [[f"v_pk_fma_f32 {v(x[2 * k], 2)}, {v(x[2 * k], 2)}, {s(S_C, 2)}, {v(NM + 2 * qt, 2)} neg_lo:[0,0,1] neg_hi:[0,0,1]"] for k in range(6)]
        else:
            f = [[f"v_fma_f32 {v(y)}, {v(y)}, {s(S_C)}, -{v(NM + 2 * qt)}" for y in x[2 * k:2 * k + 2]] for k in range(6)]
        r = f[0] + f[1]
        for k in range(6):
            nx = f[k + 2] if k + 2 < 6 else []
            r += [e[2 * k]] + nx[:1] + [e[2 * k + 1]] + nx[1:]
            if k >= 1:
                r.append(c[k - 1])
        r += ["s_nop 0", c[5]]
        return r

    def pwrite(qt):
        return [f"ds_write_b128 {v(APW)}, {v(PP + 8 * qt, 4)} offset:{1536 * qt}",
                f"ds_write_b64 {v(APW2)}, {v(PP + 8 * qt + 4, 2)} offset:{1536 * qt + 1024}"]
    OT = {}
    free = [ACC + 36 + 4 * k for k in range(9)]
    for qt in range(3):
        regs = free[3 * qt:3 * qt + 3] + [stile(a_, qt) for a_ in range(3)]
        for dt in range(6):
            OT[(dt, qt)] = regs[dt]
    pf = [lambda qt: PP + 8 * qt, lambda qt: PP + 8 * qt + 4, lambda qt: PC + 4 * qt]

    def pv(step, qt):
        first = step == 0
        r = [mfma(OT[(dt, qt)], VQ[step][dt], pf[step](qt), 0 if first else None) for dt in range(6)]
        sm = [mfma(LS + 4 * qt, ONES, pf[step](qt), 0 if first else None)]
        return sm + r if step == 2 else r + sm

    def weave(vals, mm, first=3, per=3):
        out, k = [], 0
        for i, m in enumerate(mm):
            n = first if i == 0 else per
            out += vals[k:k + n]
            k += n
            out.append(m)
        return out + vals[k:]
    st.cyc("a7", True)
    vb = v_reads(1) if cfg.vbp == 0 else []
    s0 = softmax(0)
    out = []
    for k, x in enumerate(s0):
        out.append(x)
        if k % 2 == 1 and vb:
            out.append(vb.pop(0))
    emit(a, out + vb)
    emit(a, pwrite(0))
    a(lg(14) if cfg.vbp == 0 else lg(2))
    st.cyc("a8", True)
    emit(a, weave(softmax(1), pv(0, 0), per=cfg.wper))
    emit(a, pwrite(1))
    st.cyc("a9", True)
    emit(a, weave(softmax(2), pv(0, 1), per=cfg.wper))
    emit(a, pwrite(2))
    st.cyc("a10", True)
    a(lg(0))
    a("s_barrier")
    st.cyc("b13")
    a.c("SEG pv")
    prd = [rd64(PP + 8 * qt + 6, APR2, 1536 * qt + 1024) for qt in range(3)]
    prc = [rd128(PC + 4 * qt, APR, 1536 * qt) for qt in range(3)]
    vc = v_reads(2)
    if cfg.vbp in (0, 2):
        sl = spread(prd + prc + vc[:2], -1, 1)
        at(sl, 6, lg(5))
        emit(a, place(pv(0, 2), sl))
        sl = spread(vc[2:], 0, 1)
        at(sl, 13, lg(0))
        emit(a, place(pv(1, 0) + pv(1, 1), sl))
    else:
        emit(a, place(pv(0, 2), spread(prd + v_reads(1), -1, 2)))
        a(lg(0))
        sl = spread(prc + vc[:11], 0, 1)
        at(sl, 13, vc[11], lg(0))
        emit(a, place(pv(1, 0) + pv(1, 1), sl))
    st.cyc("pvB", True)
    OPQ = [160, 164, 168, 172, 176, 180, 212, 216, 220]

    def finish(qt):
        r = [f"v_rcp_f32 {v(MX + 2 * qt)}, {v(LS + 4 * qt)}", "s_nop 0",
             f"v_mov_b32 {v(MX + 2 * qt + 1)}, {v(MX + 2 * qt)}"]
        for ls in range(3):
            d = OPQ[3 * ls + qt]
            for half in range(2):
                t = OT[(2 * ls + half, qt)]
                if cfg.fin == 0 or (cfg.fin == 2 and qt == 2):
                    r.append(f"v_pk_mul_f32 {v(t, 2)}, {v(t, 2)}, {v(MX + 2 * qt, 2)}")
                    r.append(f"v_pk_mul_f32 {v(t + 2, 2)}, {v(t + 2, 2)}, {v(MX + 2 * qt, 2)}")
                else:
                    r += [f"v_mul_f32 {v(t + k)}, {v(MX + 2 * qt)}, {v(t + k)}" for k in range(4)]
            for half in range(2):
                t = OT[(2 * ls + half, qt)]
                r += [cvt(d + 2 * half, t), cvt(d + 2 * half + 1, t + 2)]
            off = (ls * 6 + qt) * 1024
            r.append(f"s_mov_b32 s3, {off}")
            r.append(f"buffer_store_dwordx4 {v(d, 4)}, {v(AO)}, {s(R_O, 4)}, s3 offen {'' if cfg.unsafe else 'sc1'}")
            if not cfg.odef:
                r.append(f"ds_write_b128 {v(AO)}, {v(d, 4)} offset:{off}")
        return r

    def gaps(f, per):
        out, cur = [], []
        for x in f:
            if x.startswith("s_mov"):
                if cur:
                    out.append(cur)
                cur = [x]
            elif x.startswith(("buffer_", "ds_")):
                out.append(cur + [x])
                cur = []
            else:
                cur.append(x)
                if len(cur) == per:
                    out.append(cur)
                    cur = []
        return out + ([cur] if cur else [])

    def weave2(mm, f, skip, per):
        g = gaps(f, per)
        out = []
        for i, m in enumerate(mm):
            out.append(m)
            if i >= skip and g:
                out += g.pop(0)
        return out + sum(g, [])
    emit(a, pv(2, 0))
    f0, f1, f2 = finish(0), finish(1), finish(2)
    mm = pv(1, 2) + pv(2, 1)
    if cfg.fw == 0:
        emit(a, [mm[0]] + weave(["s_nop 0"] + f0, mm[1:], first=1, per=2))
    else:
        emit(a, weave2(mm, f0, 1, cfg.fw))
    st.cyc("f0", True)
    mm = pv(2, 2)
    if cfg.fw == 0:
        emit(a, [mm[0], mm[1]] + weave(f1, mm[2:], first=0, per=2))
    else:
        emit(a, weave2(mm, f1, 0, cfg.fw))
    st.cyc("f1", True)
    emit(a, f2)
    a.c("SEG end")
    st.cyc("ostore")
    a(lg(0))
    a("s_barrier")

    A4 = ACC
    if cfg.odef:
        for qt in range(3):
            for ls in range(3):
                a(f"ds_write_b128 {v(AO)}, {v(OPQ[3 * ls + qt], 4)} offset:{(ls * 6 + qt) * 1024}")
    for i in range(60):
        a(f"v_mov_b32 {v(A4 + i)}, 0")
    a(f"s_mov_b32 {s(S_K0)}, {(-3 * WOS) & 0xffffffff:#x}")
    a(f"s_mov_b32 {s(S_K1)}, {WOS}")
    a(f"s_mov_b32 s6, {(-5 * OS) & 0xffffffff:#x}")
    a(f"s_mov_b32 s7, {OS}")
    a(f"s_mov_b32 {s(S_SL)}, 1")
    a(f"s_mov_b32 {s(S_SL2)}, 0")
    a(f"s_mov_b32 {s(S_CNT)}, 0")
    a("s_waitcnt vmcnt(0)")
    a("s_mov_b64 exec, 1")
    a(f"buffer_store_dwordx2 {v(TG, 2)}, {v(ZERO)}, {s(R_F, 4)}, {s(S_F1)} offen {'' if cfg.unsafe else 'sc1'}")
    a("s_mov_b64 exec, -1")
    st.cyc("flag1")

    def ga(n, tt):
        return FR + 32 * n + 4 * tt

    def gb(n, qt):
        return FR + 32 * n + 20 + 4 * qt

    def p4_reads(n, ks):
        def A(tt):
            return [trread(ga(n, tt) + 2 * hh, AW + tt % 2, 320 * (32 * ks + 16 * hh) + 64 * (tt // 2)) for hh in range(2)]

        def B(qt):
            return [rd128(gb(n, qt), AB, 6144 * ks + 1024 * qt)]
        r = B(0) + A(0) + B(1) + B(2)
        for tt in range(1, 5):
            r += A(tt)
        return r

    def p4_mfmas(n):
        return [mfma(A4 + 4 * (3 * tt + qt), ga(n, tt), gb(n, qt)) for tt in range(5) for qt in range(3)]
    adv4 = [f"v_add_u32 {v(AW + c)}, {s(S_D)}, {v(AW + c)}" for c in range(2)] + [f"v_add_u32 {v(AB)}, {s(S_D2)}, {v(AB)}"]
    a(lg(0))
    a("s_barrier")
    st.cyc("B0")
    emit(a, p4_reads(0, 0))
    a(lg(0))
    a.label("L_p4")
    sl = spread(p4_reads(1, 1), 0, 1)
    sc = [f"s_add_u32 {s(S_SL)}, {s(S_SL)}, 1", f"s_cmp_eq_u32 {s(S_SL)}, 4",
          f"s_cselect_b32 {s(S_D)}, {s(S_K0)}, {s(S_K1)}", f"s_cselect_b32 {s(S_SL)}, 0, {s(S_SL)}",
          f"s_add_u32 {s(S_SL2)}, {s(S_SL2)}, 1", f"s_cmp_eq_u32 {s(S_SL2)}, 6",
          f"s_cselect_b32 {s(S_D2)}, s6, s7", f"s_cselect_b32 {s(S_SL2)}, 0, {s(S_SL2)}"]
    spread(sc, 0, 1, into=sl)
    spread(adv4, 13, 2, into=sl)
    at(sl, 12, f"s_cmp_eq_u32 {s(S_CNT)}, 2")
    emit(a, place(p4_mfmas(0), sl))
    a(lg(0))
    a("s_cbranch_scc0 L_p4bar")
    st.cyc("own")
    a("s_barrier")
    a.label("L_p4bar")
    a("s_barrier")
    sl = spread(p4_reads(0, 0), 0, 1)
    at(sl, 12, f"s_add_u32 {s(S_CNT)}, {s(S_CNT)}, 1")
    at(sl, 13, f"s_cmp_lt_u32 {s(S_CNT)}, 11")
    emit(a, place(p4_mfmas(1), sl))
    a(lg(0))
    a("s_cbranch_scc1 L_p4")
    st.cyc("p4loop")
    emit(a, place(p4_mfmas(0), spread(p4_reads(1, 1), 0, 1)))
    a(lg(0))
    PK = QP

    def tile(tt, qt):
        return A4 + 4 * (3 * tt + qt)
    order = [(2 * qt, (0, qt), (1, qt)) for qt in range(3)] + [(2 * qt + 1, (2, qt), (3, qt)) for qt in range(3)] + [(6, (4, 0), (4, 1))]
    ep = []
    for n, (bi, t0, t1) in enumerate(order):
        d = PK + 4 * n
        ep.append([cvt(d, tile(*t0)), cvt(d + 1, tile(*t0) + 2), cvt(d + 2, tile(*t1)), cvt(d + 3, tile(*t1) + 2),
                   f"s_mov_b32 s3, {1024 * bi}",
                   f"buffer_store_dwordx4 {v(d, 4)}, {v(AP)}, {s(R_P, 4)}, s3 offen sc1"])
    ep.append([cvt(PK + 28, tile(4, 2)), cvt(PK + 29, tile(4, 2) + 2),
               f"buffer_store_dwordx2 {v(PK + 28, 2)}, {v(AP2)}, {s(R_P, 4)}, 0 offen sc1"])
    flat = sum(ep, [])
    emit(a, place(p4_mfmas(1), spread(flat[:12], 9, 2)))
    emit(a, flat[12:])
    st.cyc("pstore")
    if not cfg.sent:
        a("s_waitcnt vmcnt(0)")
    elif cfg.sent > 1:
        a(f"s_waitcnt vmcnt({cfg.sent})")
    a("s_mov_b64 exec, 1")
    a(f"buffer_store_dwordx2 {v(TG, 2)}, {v(ZERO)}, {s(R_F, 4)}, {s(S_F2)} offen sc1")
    st.cyc("flag2")
    st.real("real1")
    st.flush("C")
    a.label("L_last")
    a("s_endpgm")


def reduce_addr(a, tid, vtmp, A0, A1, s_g8):
    SG, W, C, X, Y, OFFS = vtmp, vtmp + 1, vtmp + 2, vtmp + 3, vtmp + 4, vtmp + 5
    a(f"s_mul_i32 s3, {s_g8}, 240")
    a(f"v_add_u32 {v(SG)}, s3, {v(tid)}")
    a(f"v_lshlrev_b32 {v(OFFS)}, 4, {v(SG)}")
    a(f"v_mul_u32_u24 {v(W)}, 2185, {v(SG)}")
    a(f"v_lshrrev_b32 {v(W)}, 20, {v(W)}")
    a(f"v_mul_u32_u24 {v(X)}, 480, {v(W)}")
    a(f"v_sub_u32 {v(C)}, {v(SG)}, {v(X)}")
    a(f"v_and_b32 {v(X)}, 1, {v(W)}")
    a(f"v_mul_u32_u24 {v(X)}, {48 * 1280}, {v(X)}")
    a(f"v_lshrrev_b32 {v(W)}, 1, {v(W)}")
    a(f"v_mul_u32_u24 {v(W)}, 160, {v(W)}")
    a(f"v_add_u32 {v(W)}, {v(W)}, {v(X)}")
    a(f"v_lshrrev_b32 {v(SG)}, 6, {v(C)}")
    a(f"v_and_b32 {v(C)}, 63, {v(C)}")
    a(f"v_cmp_eq_u32 vcc, 7, {v(SG)}")
    a(f"v_lshlrev_b32 {v(X)}, 1, {v(C)}")
    a("s_nop 0")
    a(f"v_cndmask_b32 {v(C)}, {v(C)}, {v(X)}, vcc")
    a(f"v_and_b32 {v(X)}, 15, {v(C)}")
    a(f"v_mul_u32_u24 {v(X)}, 1280, {v(X)}")
    a(f"v_lshrrev_b32 {v(C)}, 4, {v(C)}")
    a(f"v_lshl_add_u32 {v(X)}, {v(C)}, 3, {v(X)}")
    a(f"v_add_u32 {v(W)}, {v(W)}, {v(X)}")
    a(f"v_lshrrev_b32 {v(X)}, 1, {v(SG)}")
    a(f"v_mul_u32_u24 {v(X)}, {16 * 1280}, {v(X)}")
    a(f"v_and_b32 {v(Y)}, 1, {v(SG)}")
    a(f"v_lshl_add_u32 {v(X)}, {v(Y)}, 6, {v(X)}")
    a(f"v_mov_b32 {v(Y)}, 32")
    a(f"v_cmp_eq_u32 vcc, 6, {v(SG)}")
    a(f"v_mov_b32 {v(C)}, 128")
    a(f"v_mov_b32 {v(A1)}, {16 * 1280}")
    a(f"v_cndmask_b32 {v(X)}, {v(X)}, {v(C)}, vcc")
    a(f"v_cndmask_b32 {v(Y)}, {v(Y)}, {v(A1)}, vcc")
    a(f"v_cmp_eq_u32 vcc, 7, {v(SG)}")
    a(f"v_mov_b32 {v(C)}, {32 * 1280 + 128}")
    a(f"v_mov_b32 {v(A1)}, 1280")
    a(f"v_cndmask_b32 {v(X)}, {v(X)}, {v(C)}, vcc")
    a(f"v_cndmask_b32 {v(Y)}, {v(Y)}, {v(A1)}, vcc")
    a(f"v_add_u32 {v(A0)}, {v(W)}, {v(X)}")
    a(f"v_add_u32 {v(A1)}, {v(A0)}, {v(Y)}")
    return OFFS


def gen_loader(a, cfg):
    st = Stamps(a, cfg)
    R_X, R_WQ, R_K, R_V, R_WO = 8, 12, 16, 20, 56
    R_OI, R_PI, R_OUT = 12, 16, 20
    S_LW, S_SW, S_SX, S_LDS, S_N, S_KK, S_PK = 50, 51, 52, 53, 54, 55, 49
    S_MW, S_MX, S_LDO = 62, 63, 7
    OW, OX, OK_, OV, OWO, OO = 16, 22, 25, 34, 43, 48
    RRc, UUc = 52, 55
    AT, AF1, AF2, TG, PT = 58, 59, 60, 62, 64
    A0, A1, RT, JK, AT2 = 66, 67, 68, 74, 75
    T0, T1, T2 = 4, 5, 6

    if cfg.lprio:
        a("s_setprio 3")
    if cfg.only and "k0" in st.only:
        a("s_waitcnt lgkmcnt(0)")
        st.cyc("k0")
    a(f"s_sub_u32 {s(S_LW)}, {s(S_WAVE)}, 4")
    for c in range(3):
        a(f"v_add_u32 {v(T0)}, {64 * c}, v0")
        a(f"v_mul_u32_u24 {v(T1)}, 2731, {v(T0)}")
        a(f"v_lshrrev_b32 {v(RRc + c)}, 16, {v(T1)}")
        a(f"v_mul_u32_u24 {v(T1)}, 24, {v(RRc + c)}")
        a(f"v_sub_u32 {v(UUc + c)}, {v(T0)}, {v(T1)}")
    a(f"s_mul_i32 s3, {s(S_LW)}, 3")
    a(f"v_lshrrev_b32 {v(T2)}, 4, v0")
    a("v_and_b32 v7, 7, v0")
    a("v_lshrrev_b32 v8, 3, v0")
    for c in range(3):
        a(f"s_add_u32 s4, s3, {c}")
        a("s_lshl_b32 s6, s4, 3")
        a("s_and_b32 s4, s4, 1")
        a("s_lshl_b32 s4, s4, 2")
        a(f"v_or_b32 {v(T0)}, s4, {v(T2)}")
        a(f"v_xor_b32 {v(T0)}, {v(T0)}, v7")
        a(f"v_add_u32 {v(T1)}, s6, v8")
        a(f"v_mul_u32_u24 {v(T1)}, 1280, {v(T1)}")
        a(f"v_lshl_add_u32 {v(OX + c)}, {v(T0)}, 4, {v(T1)}")
    a(f"s_lshl_b32 s3, {s(S_LW)}, 4")
    for c in range(3):
        a(f"v_bfe_u32 {v(T0)}, {v(RRc + c)}, 1, 1")
        a(f"v_lshlrev_b32 {v(T0)}, 1, {v(T0)}")
        a(f"v_xor_b32 {v(T0)}, {v(T0)}, {v(UUc + c)}")
        a(f"v_add_u32 {v(T1)}, s3, {v(RRc + c)}")
        a(f"v_mul_u32_u24 {v(T1)}, 12288, {v(T1)}")
        a(f"v_lshl_add_u32 {v(OW + c)}, {v(T0)}, 4, {v(T1)}")
        a(f"v_xor_b32 {v(T0)}, 64, {v(OW + c)}")
        a(f"v_add_u32 {v(OW + 3 + c)}, {8 * 12288}, {v(T0)}")
    a(f"s_mul_i32 {s(S_MW)}, {s(S_LW)}, 6144")
    a(f"s_mul_i32 {s(S_MX)}, {s(S_LW)}, 3072")
    a(f"s_add_u32 {s(S_MX)}, {s(S_MX)}, 24576")
    fb = {8: [0, 2, 4, 6, 8, 0, 2, 4], 9: [0, 5, 0, 5, 0, 5, 0, 5], 10: [0, 3, 5, 8, 0, 3, 5, 8],
          11: [0, 3, 7, 0, 3, 7, 0, 3]}[cfg.rot]
    word = sum(x << (4 * i) for i, x in enumerate(fb))
    a(f"s_lshl_b32 s3, {s(S_B)}, 2")
    a(f"s_lshr_b32 s3, {word:#x}, s3")
    a("s_and_b32 s3, s3, 15")
    a(f"s_lshl_b32 s4, {s(S_HH)}, 2")
    a("s_lshr_b32 s4, 0x8530, s4")
    a("s_and_b32 s4, s4, 15")
    a("s_add_u32 s3, s3, s4")
    a(f"s_add_u32 {s(S_KK)}, s3, {s(S_G8)}")
    mod_small(a, s(S_KK), 10, 2)
    a(f"s_mov_b32 {s(S_LDS)}, 0")
    a(f"s_mul_i32 s3, {s(S_B)}, 122880")
    a(f"s_mul_i32 s5, {s(S_H)}, 384")
    a("s_sub_u32 s4, 7864320, s5")
    st.cyc("pre", True) if cfg.only else None
    a("s_waitcnt lgkmcnt(0)")
    st.cyc("karg", True)
    srd(a, R_X, S_X, "s3", 122880)
    srd(a, R_WQ, S_WQ, "s5", "s4")

    def stage_body():
        a(f"s_mul_i32 {s(S_SW)}, {s(S_KK)}, {64 * 12288}")
        a(f"s_lshl_b32 {s(S_SX)}, {s(S_KK)}, 7")
        a(f"s_add_u32 s3, {s(S_LDS)}, {s(S_MW)}")
        a(f"s_add_u32 s4, {s(S_LDS)}, {s(S_MX)}")
        for c in range(3):
            dma(a, OX + c, R_X, s(S_SX), "s4", 1024 * c)
        for p in range(6):
            dma(a, OW + p, R_WQ, s(S_SW), "s3", 1024 * p)
        a(f"s_add_u32 {s(S_KK)}, {s(S_KK)}, 1")
        a(f"s_cmp_eq_u32 {s(S_KK)}, 10")
        a(f"s_cselect_b32 {s(S_KK)}, 0, {s(S_KK)}")
        a(f"s_add_u32 {s(S_LDS)}, {s(S_LDS)}, {SLOT}")
        a(f"s_cmp_eq_u32 {s(S_LDS)}, {3 * SLOT}")
        a(f"s_cselect_b32 {s(S_LDS)}, 0, {s(S_LDS)}")

    def call(lbl):
        a(f"s_call_b64 s[44:45], {lbl}")
    stage_body()
    if cfg.lprio:
        a("s_setprio 0")
    st.cyc("issued")
    a(f"s_lshl_b32 s3, {s(S_B)}, 7")
    a(f"s_add_u32 s3, s3, {OFF_F + FX}")
    a(f"s_add_u32 s4, {s(S_WS)}, s3")
    a(f"s_addc_u32 s5, {s(S_WS + 1)}, 0")
    a(f"s_load_dwordx2 {s(S_TAG, 2)}, s[4:5], 0")
    if cfg.kpos >= 9:
        table = {9: [1, 2, 3, 4, 5, 6, 7, 8], 11: [8, 8, 7, 7, 6, 6, 5, 5], 12: [8, 7, 6, 5, 8, 4, 3, 2],
                 13: [1, 8, 1, 8, 1, 8, 1, 8], 14: [1, 1, 8, 1, 1, 8, 1, 8],
                 20: [1, 8, 1, 1, 8, 1, 1, 8], 21: [1, 8, 8, 1, 8, 8, 1, 8], 22: [1, 8, 4, 1, 8, 4, 1, 8],
                 23: [1, 2, 1, 1, 2, 1, 1, 2], 24: [1, 8, 5, 3, 8, 6, 1, 8], 25: [0, 8, 1, 0, 8, 1, 0, 8],
                 26: [1, 8, 1, 8, 1, 8, 1, 8], 27: [0, 8, 0, 8, 0, 8, 0, 8]}[cfg.kpos]
        word = sum(x << (4 * i) for i, x in enumerate(table))
        if cfg.kpos < 20:
            a(f"s_add_u32 s3, {s(S_B)}, {s(S_G8)}")
            a("s_and_b32 s3, s3, 7")
            a("s_lshl_b32 s3, s3, 2")
        else:
            a(f"s_lshl_b32 s3, {s(S_B)}, 2")
        a(f"s_lshr_b32 s3, {word:#x}, s3")
        a(f"s_and_b32 {s(S_PK)}, s3, 15")
    else:
        a(f"s_mov_b32 {s(S_PK)}, {cfg.kpos}")
    a(f"s_lshl_b32 s3, {s(S_B)}, 5")
    a(f"s_add_u32 s3, s3, {s(S_H)}")
    a("s_mul_i32 s3, s3, 36864")
    srd(a, R_K, S_K, "s3", 36864)
    srd(a, R_V, S_V, "s3", 36864)
    srd(a, R_F, S_WS, f"{OFF_F}", 262144)
    a(f"s_mul_i32 s3, {s(S_LW)}, 24")
    a(f"s_and_b32 s4, {s(S_LW)}, 1")
    a("s_lshl_b32 s4, s4, 6")
    for c in range(3):
        a(f"v_lshrrev_b32 {v(T0)}, 1, {v(RRc + c)}")
        a(f"v_add_u32 {v(T1)}, s3, {v(RRc + c)}")
        a(f"v_mul_u32_u24 {v(T1)}, 384, {v(T1)}")
        a(f"v_xor_b32 {v(T2)}, {v(T0)}, {v(UUc + c)}")
        a(f"v_lshl_add_u32 {v(T2)}, {v(T2)}, 4, {v(T1)}")
        a(f"v_xor_b32 {v(OK_ + c)}, s4, {v(T2)}")
        a(f"v_xor_b32 {v(T2)}, 64, {v(OK_ + c)}")
        a(f"v_add_u32 {v(OK_ + 3 + c)}, 3072, {v(T2)}")
        a(f"v_add_u32 {v(OK_ + 6 + c)}, 6144, {v(OK_ + c)}")
        a(f"v_lshlrev_b32 {v(T2)}, 1, {v(T0)}")
        a(f"v_xor_b32 {v(T2)}, {v(T2)}, {v(UUc + c)}")
        a(f"v_lshl_add_u32 {v(OV + c)}, {v(T2)}, 4, {v(T1)}")
        a(f"v_add_u32 {v(OV + 3 + c)}, 3072, {v(OV + c)}")
        a(f"v_add_u32 {v(OV + 6 + c)}, 6144, {v(OV + c)}")
    a(f"s_mul_i32 s3, {s(S_G8)}, 983040")
    a(f"s_mul_i32 s4, {s(S_HH)}, 320")
    a("s_add_u32 s3, s3, s4")
    a("s_sub_u32 s4, 7864320, s3")
    srd(a, R_WO, S_WO, "s3", "s4")
    a(f"s_lshl_b32 s3, {s(S_B)}, 2")
    a(f"s_add_u32 s3, s3, {s(S_LW)}")
    a("s_mul_i32 s3, s3, 24")
    a(f"v_mul_u32_u24 {v(T1)}, 21846, v0")
    a(f"v_lshrrev_b32 {v(T1)}, 16, {v(T1)}")
    a(f"v_mul_u32_u24 {v(T2)}, 3, {v(T1)}")
    a(f"v_sub_u32 {v(T0)}, v0, {v(T2)}")
    a(f"v_add_u32 {v(T1)}, s3, {v(T1)}")
    a(f"v_mul_u32_u24 {v(T1)}, 1280, {v(T1)}")
    a(f"v_lshl_add_u32 {v(AT)}, {v(T0)}, 7, {v(T1)}")
    a(f"v_min_u32 {v(T0)}, 7, v0")
    a(f"v_add_u32 {v(T0)}, 64, {v(T0)}")
    a(f"v_mul_u32_u24 {v(T1)}, 21846, {v(T0)}")
    a(f"v_lshrrev_b32 {v(T1)}, 16, {v(T1)}")
    a(f"v_mul_u32_u24 {v(T2)}, 3, {v(T1)}")
    a(f"v_sub_u32 {v(T0)}, {v(T0)}, {v(T2)}")
    a(f"v_add_u32 {v(T1)}, s3, {v(T1)}")
    a(f"v_mul_u32_u24 {v(T1)}, 1280, {v(T1)}")
    a(f"v_lshl_add_u32 {v(AT2)}, {v(T0)}, 7, {v(T1)}")
    if cfg.lprio == 2:
        a("s_setprio 3")
    stage_body()

    def issue_kv(off, srd_, base):
        a(f"s_mul_i32 s3, {s(S_LW)}, 9216")
        a(f"s_add_u32 s3, s3, {base}")
        for p in range(9):
            dma(a, off + p, srd_, "0", "s3", 1024 * p)
    a("s_waitcnt vmcnt(9)")
    st.cyc("landed0")
    a("s_barrier")
    a(f"s_mov_b32 {s(S_N)}, 0")
    a.label("L_lloop")
    a(f"s_cmp_eq_u32 {s(S_N)}, {s(S_PK)}")
    a("s_cbranch_scc0 L_nok")
    call("L_sub_k")
    a.label("L_nok")
    stage_body()
    a("s_waitcnt vmcnt(9)")
    a("s_barrier")
    a(f"s_add_u32 {s(S_N)}, {s(S_N)}, 1")
    a(f"s_cmp_lt_u32 {s(S_N)}, 8")
    a("s_cbranch_scc1 L_lloop")
    st.cyc("b8")
    a(f"s_cmp_eq_u32 {s(S_PK)}, 8")
    a("s_cbranch_scc0 L_vonly")
    call("L_sub_k")
    a("s_waitcnt vmcnt(9)")
    a("s_barrier")
    call("L_sub_v")
    a("s_branch L_kvdone")
    a.label("L_sub_k")
    issue_kv(OK_, R_K, A_K)
    a("s_setpc_b64 s[44:45]")
    a.label("L_sub_v")
    issue_kv(OV, R_V, A_V)
    a("s_setpc_b64 s[44:45]")
    a.label("L_sub_wo")
    a(f"s_mul_i32 {s(S_SW)}, {s(S_KK)}, {64 * 1280}")
    a(f"s_add_u32 s3, {s(S_LDS)}, {s(S_MW)}")
    for p in range(5):
        dma(a, OWO + p, R_WO, s(S_SW), "s3", 1024 * p)
    a(f"s_add_u32 {s(S_KK)}, {s(S_KK)}, 1")
    a(f"s_cmp_eq_u32 {s(S_KK)}, 12")
    a(f"s_cselect_b32 {s(S_KK)}, 0, {s(S_KK)}")
    a(f"s_add_u32 {s(S_LDS)}, {s(S_LDS)}, {WOS}")
    a(f"s_cmp_eq_u32 {s(S_LDS)}, {4 * WOS}")
    a(f"s_cselect_b32 {s(S_LDS)}, 0, {s(S_LDS)}")
    a("s_setpc_b64 s[44:45]")
    a.label("L_sub_o")
    a(f"s_mul_i32 {s(S_SX)}, {s(S_PK)}, {OS}")
    a(f"s_add_u32 m0, {s(S_LDO)}, {s(S_MX)}")
    a(f"s_add_u32 {s(S_PK)}, {s(S_PK)}, 1")
    for c in range(3):
        a(f"buffer_load_dwordx4 {v(OO)}, {s(R_OI, 4)}, {s(S_SX)} offen offset:{1024 * c} {['sc1', '', 'nt'][cfg.unsafe]} lds")
    a(f"s_cmp_eq_u32 {s(S_PK)}, 12")
    a(f"s_cselect_b32 {s(S_PK)}, 0, {s(S_PK)}")
    a(f"s_add_u32 {s(S_LDO)}, {s(S_LDO)}, {OS}")
    a(f"s_cmp_eq_u32 {s(S_LDO)}, {6 * OS}")
    a(f"s_cselect_b32 {s(S_LDO)}, 0, {s(S_LDO)}")
    a("s_setpc_b64 s[44:45]")
    a.label("L_vonly")
    call("L_sub_v")
    a("s_waitcnt vmcnt(9)")
    a("s_barrier")
    a.label("L_kvdone")
    a("s_waitcnt vmcnt(9)")
    st.cyc("Kland")
    a("s_barrier")
    touch = (f"buffer_load_dword {v(JK)}, {v(AT)}, {s(R_WO, 4)}, 0 offen\n"
             f"buffer_load_dword {v(JK + 2)}, {v(AT2)}, {s(R_WO, 4)}, 0 offen")
    if cfg.tpos == 10:
        a(touch)
    a(f"s_lshl_b32 s3, {s(S_B)}, 3")
    a(f"s_add_u32 s3, s3, {s(S_G8)}")
    a(f"s_mul_i32 s3, s3, {4 * 36864}")
    srd(a, R_OI, S_WS, "s3", 4 * 36864)
    a(f"s_lshl_b32 s3, {s(S_B)}, 2")
    a(f"s_add_u32 s3, s3, {s(S_HH)}")
    a(f"s_mul_i32 s3, s3, {8 * PSZ}")
    a(f"s_add_u32 s3, s3, {OFF_P}")
    srd(a, R_PI, S_WS, "s3", 8 * PSZ)
    a(f"s_mul_i32 {s(S_MW)}, {s(S_LW)}, 5120")
    a(f"s_add_u32 {s(S_MW)}, {s(S_MW)}, {WO0}")
    a(f"s_mul_i32 {s(S_MX)}, {s(S_LW)}, 3072")
    a(f"s_mul_i32 {s(S_KK)}, {s(S_HH)}, 3")
    a(f"s_add_u32 {s(S_PK)}, {s(S_KK)}, 3")
    a(f"s_cmp_eq_u32 {s(S_PK)}, 12")
    a(f"s_cselect_b32 {s(S_PK)}, 0, {s(S_PK)}")
    a(f"s_mov_b32 {s(S_LDS)}, {WOS}")
    a(f"s_mov_b32 {s(S_LDO)}, {3 * OS}")
    a("s_barrier")
    if cfg.lprio == 2:
        a("s_setprio 0")
    if cfg.tpos == 11:
        a(touch)
    a(f"s_lshl_b32 s3, {s(S_LW)}, 4")
    for c in range(5):
        a(f"v_add_u32 {v(T0)}, {64 * c}, v0")
        a(f"v_mul_u32_u24 {v(T1)}, 3277, {v(T0)}")
        a(f"v_lshrrev_b32 {v(T1)}, 16, {v(T1)}")
        a(f"v_mul_u32_u24 {v(T2)}, 20, {v(T1)}")
        a(f"v_sub_u32 {v(T0)}, {v(T0)}, {v(T2)}")
        a(f"v_lshrrev_b32 {v(T2)}, 1, {v(T1)}")
        a(f"v_and_b32 {v(T2)}, 2, {v(T2)}")
        a(f"v_xor_b32 {v(T0)}, {v(T0)}, {v(T2)}")
        a(f"v_add_u32 {v(T1)}, s3, {v(T1)}")
        a(f"v_mul_u32_u24 {v(T1)}, 1280, {v(T1)}")
        a(f"v_lshl_add_u32 {v(OWO + c)}, {v(T0)}, 4, {v(T1)}")
    a(f"v_lshl_add_u32 {v(OO)}, v0, 4, {s(S_MX)}")
    a(f"s_lshl_b32 s3, {s(S_B)}, 3")
    a(f"s_add_u32 s3, s3, {s(S_G8)}")
    a("s_lshl_b32 s3, s3, 7")
    a(f"v_and_b32 {v(T0)}, 15, v0")
    a(f"v_lshl_add_u32 {v(AF1)}, {v(T0)}, 3, s3")
    a("s_waitcnt lgkmcnt(0)")
    a(f"s_add_u32 {s(S_TAG)}, {s(S_TAG)}, {TAGC[0]:#x}")
    a(f"s_addc_u32 {s(S_TAG + 1)}, {s(S_TAG + 1)}, {TAGC[1]:#x}")
    a(f"v_mov_b32 {v(TG)}, {s(S_TAG)}")
    a(f"v_mov_b32 {v(TG + 1)}, {s(S_TAG + 1)}")
    a(f"v_mov_b32 {v(T0)}, {A_TAG}")
    a(f"ds_write_b64 {v(T0)}, {v(TG, 2)}")
    a(f"s_waitcnt vmcnt(2) lgkmcnt(0)")
    st.cyc("Vland")
    if cfg.lprio == 2:
        a("s_setprio 3")
    a("s_barrier")
    a(f"s_mul_i32 s3, {s(S_B)}, 122880")
    a(f"s_mul_i32 s4, {s(S_HH)}, 320")
    a("s_add_u32 s3, s3, s4")
    a("s_sub_u32 s4, 983040, s3")
    srd(a, R_OUT, S_OUT, "s3", "s4")
    a("s_barrier")

    def poll(name, vaddr):
        a(f"s_mov_b32 s3, {SPIN_MAX}")
        a.label(name)
        a(f"buffer_load_dwordx2 {v(PT, 2)}, {v(vaddr)}, {s(R_F, 4)}, 0 offen sc1")
        a("s_sub_u32 s3, s3, 1")
        a("s_cmp_eq_u32 s3, 0")
        a(f"s_cbranch_scc1 {name}_out")
        a("s_waitcnt vmcnt(0)")
        a(f"v_cmp_ne_u64 vcc, {v(PT, 2)}, {v(TG, 2)}")
        a("s_nop 1")
        a(f"s_cbranch_vccnz {name}")
        a.label(name + "_out")
        a("s_waitcnt vmcnt(0)")

    BARS = ["B0", "B1", "B2", "BX"] + [f"B{n}" for n in range(3, 12)]
    own_mask = "s[4:5]"

    def run(path, tokens, state, alts):
        q, nwo, no, bi = state
        q = list(q)
        for k, ch in enumerate(tokens):
            free = -1 if bi < 2 else (bi - 2 if bi <= 4 else bi - 3)
            if ch == "w":
                assert nwo <= max(3, free + 4), (path, k, nwo, free)
                call("L_sub_wo")
                q.append((nwo, 5))
                nwo += 1
            elif ch == "o":
                assert no <= max(5, free + 6), (path, k, no, free)
                call("L_sub_o")
                q.append((no, 3))
                no += 1
            elif ch == "c":
                if cfg.sent:
                    a("s_mov_b32 s3, 4096")
                    for kk in range(8):
                        a(f"buffer_store_dwordx4 {v(CL, 4)}, {v(ACL)}, {s(R_PO, 4)}, {'s3' if kk >= 4 else '0'} offen offset:{1024 * (kk % 4)} sc1")
                    q.append((11, 8))
            elif ch == "p":
                a(f"buffer_load_dwordx2 {v(PT, 2)}, {v(AF1)}, {s(R_F, 4)}, 0 offen sc1")
                q.append((99, 1))
            elif ch in "ab":
                last = max(i for i, (kk, _) in enumerate(q) if kk == 99)
                a(f"s_waitcnt vmcnt({sum(c for _, c in q[last + 1:])})")
                q = q[last + 1:]
                a(f"v_cmp_ne_u64 vcc, {v(PT, 2)}, {v(TG, 2)}")
                a("s_nop 1")
                a(f"s_and_b64 s[4:5], vcc, {s(S_OM, 2)}")
                a(f"s_cbranch_scc0 L_path_{ch}")
                alts[ch] = (q, nwo, no, bi)
            elif ch == "s":
                poll("L_poll1", AF1)
                q = []
            elif ch == "|":
                name = BARS[bi]
                need = {"BX": -1}.get(name, int(name[1:]) if name != "BX" else -1)
                if need >= 0:
                    assert nwo > need and (need < 3 or no > need), (path, name)
                    last = max([i for i, (kk, _) in enumerate(q) if kk <= need] + [-1])
                    cnt = sum(c for _, c in q[last + 1:])
                    if last >= 0:
                        a(f"s_waitcnt vmcnt({cnt})")
                    q = q[last + 1:]
                a("s_barrier")
                bi += 1
        assert bi == len(BARS) and nwo == 12 and no == 12, (path, bi, nwo, no)
    CL, ACL, R_PO = 112, 116, 8
    if cfg.sent:
        a(f"s_lshl_b32 s3, {s(S_B)}, 2")
        a(f"s_add_u32 s3, s3, {s(S_HH)}")
        a("s_lshl_b32 s3, s3, 3")
        a(f"s_add_u32 s3, s3, {s(S_G8)}")
        a(f"s_mul_i32 s3, s3, {PSZ}")
        a(f"s_add_u32 s3, s3, {OFF_P}")
        srd(a, R_PO, S_WS, "s3", PSZ)
        a(f"s_mul_i32 s3, {s(S_LW)}, 7680")
        a(f"v_lshl_add_u32 {v(ACL)}, v0, 4, s3")
        for kk in range(4):
            a(f"v_mov_b32 {v(CL + kk)}, -1")
    S_OM = 4 * 0 + 40
    a(f"s_lshl_b32 s3, {s(S_HH)}, 2")
    a("s_lshl_b32 s3, 0x000f000f, s3")
    a(f"s_not_b32 {s(S_OM)}, s3")
    a(f"s_mov_b32 {s(S_OM + 1)}, {s(S_OM)}")
    a("s_barrier")
    tabs = {
        1: dict(N="wp a|ww|wp|b|ww s ooo|wo|wo|wo|wo|wo|wo|||",
                a="|ww|w ooo||w|wo|wo|wo|wo|wo|wo|w||",
                b="ooo|w|wo|wo|wo|wo|wo|wo|w||"),
        2: dict(N="wp a|ww|wp|b|ww s ooo|wo|wo|wo|wo|wo|wo|||",
                a="|ww|w ooo||w|wwo|wo|wo|wo|wo|wo|||",
                b="ooo|w|wwo|wo|wo|wo|wo|wo|||"),
        3: dict(N="wp a|ww|wp|b|www s ooo|ooo|w|w|w|oo|w|wo||",
                a="|ww|w ooo||ww|wo|wo|wo|wo|wo|wo|||",
                b="ooo|ww|wo|wo|wo|wo|wo|wo|||"),
        4: dict(N="w|ww|wp|b|ww s ooo|wo|wo|wo|wo|wo|woc|||",
                b="ooo|w|wo|wo|wo|wo|wo|wo|wc||"),
        7: dict(N="w|ww|wp|b|ww s ooo|wo|wo|wo|wo|wo|wo|c||",
                b="ooo|w|wwo|wo|wo|wo|wo|woc|||"),
        5: dict(N="wp a|ww|wp|b|ww s ooo|wo|wo|wo|wo|wo|wo|||",
                a="|ww|w oo||wo|wo|wo|wo|wo|wo|wo|w||",
                b="oo|wo|wo|wo|wo|wo|wo|wo|w||"),
        6: dict(N="wp a|ww|wp|b|ww s ooo|wo|wo|wo|wo|wo|wo|||",
                a="|www ooo|||w|wwo|wo|wo|wo|wo|wo|||",
                b="ooo|w|wwo|wo|wo|wo|wo|wo|||"),
    }[cfg.tab]
    alts = {}
    run("N", tabs["N"].replace(" ", ""), ([], 0, 3, 0), alts)
    a("s_branch L_final")
    for key in sorted(alts):
        a.label(f"L_path_{key}")
        run(key, tabs[key].replace(" ", ""), alts[key], {})
        if key != sorted(alts)[-1]:
            a("s_branch L_final")
    a.label("L_final")
    a(f"s_lshl_b32 s3, {s(S_B)}, 2")
    a(f"s_add_u32 s3, s3, {s(S_HH)}")
    a("s_lshl_b32 s3, s3, 2")
    a(f"s_lshr_b32 s4, {s(S_G8)}, 1")
    a("s_add_u32 s3, s3, s4")
    a("s_lshl_b32 s3, s3, 7")
    a(f"s_add_u32 s3, s3, {F2}")
    a(f"v_and_b32 {v(T0)}, 7, v0")
    a(f"v_lshl_add_u32 {v(AF2)}, {v(T0)}, 3, s3")
    a(f"s_lshl_b32 s4, {s(S_LW)}, 6")
    a("v_add_u32 v7, s4, v0")
    a("v_min_u32 v7, 239, v7")
    OFFS = reduce_addr(a, 7, RT, A0, A1, s(S_G8))
    D0, AC = 80, 148

    def load_part(g):
        a(f"s_mov_b32 s3, {PSZ * g}")
        a(f"buffer_load_dwordx4 {v(D0 + 4 * g, 4)}, {v(OFFS)}, {s(R_PI, 4)}, s3 offen {['sc1', '', 'nt', 'sc0 sc1', 'sc1 nt'][cfg.pld]}")
    if not cfg.dynred:
        poll("L_poll2", AF2)
        st.cyc("seen2")
        for g in range(8):
            load_part(g)
    else:
        a(f"s_mov_b32 s7, {SPIN_MAX}")
        a("s_mov_b32 s6, 0")
        a.label("L_poll2")
        a(f"buffer_load_dwordx2 {v(PT, 2)}, {v(AF2)}, {s(R_F, 4)}, 0 offen sc1")
        a("s_sub_u32 s7, s7, 1")
        a("s_cmp_eq_u32 s7, 0")
        a("s_cbranch_scc1 L_poll2_out")
        a("s_waitcnt vmcnt(0)")
        a(f"v_cmp_eq_u64 vcc, {v(PT, 2)}, {v(TG, 2)}")
        a("s_nop 1")
        a("s_and_b32 s5, vcc_lo, 0xff")
        a("s_andn2_b32 s4, s5, s6")
        a("s_cbranch_scc0 L_poll2")
        a("s_or_b32 s6, s6, s5")
        for g in range(8):
            a(f"s_bitcmp1_b32 s4, {g}")
            a(f"s_cbranch_scc0 L_r{g}")
            load_part(g)
            a.label(f"L_r{g}")
        a("s_cmp_eq_u32 s6, 0xff")
        a("s_cbranch_scc0 L_poll2")
        a.label("L_poll2_out")
        st.cyc("seen2")
        a("s_waitcnt vmcnt(0)")
    if cfg.sent:
        assert cfg.dynred
        a("s_mov_b32 s7, 4096")
        a.label("L_chk")
        a(f"v_max3_u32 v4, {v(D0)}, {v(D0 + 1)}, {v(D0 + 2)}")
        a(f"v_max3_u32 v5, {v(D0 + 3)}, {v(D0 + 4)}, {v(D0 + 5)}")
        for kk in range(6, 30, 4):
            a(f"v_max3_u32 v4, v4, {v(D0 + kk)}, {v(D0 + kk + 1)}")
            a(f"v_max3_u32 v5, v5, {v(D0 + kk + 2)}, {v(D0 + kk + 3)}")
        a(f"v_max3_u32 v4, v4, {v(D0 + 30)}, {v(D0 + 31)}")
        a("v_max_u32 v4, v4, v5")
        a("v_cmp_eq_u32 vcc, -1, v4")
        a("s_sub_u32 s7, s7, 1")
        a("s_cselect_b32 s6, 0, 1")
        a("s_and_b32 s4, vcc_lo, -1")
        a("s_or_b32 s4, s4, vcc_hi")
        a("s_cselect_b32 s6, s6, 0")
        a("s_cmp_eq_u32 s6, 0")
        a("s_cbranch_scc1 L_chk_ok")
        for g in range(8):
            load_part(g)
        a("s_waitcnt vmcnt(0)")
        a("s_branch L_chk")
        a.label("L_chk_ok")
        st.cyc("chk")
    for g in range(8):
        if not cfg.dynred:
            a(f"s_waitcnt vmcnt({7 - g})")
        for r in range(4):
            src = D0 + 4 * g + r
            if g == 0:
                a(f"v_lshlrev_b32 {v(AC + 2 * r)}, 16, {v(src)}")
                a(f"v_and_b32 {v(AC + 2 * r + 1)}, 0xffff0000, {v(src)}")
            else:
                t = 4 + 2 * (r % 2)
                a(f"v_lshlrev_b32 {v(t)}, 16, {v(src)}")
                a(f"v_and_b32 {v(t + 1)}, 0xffff0000, {v(src)}")
                a(f"v_pk_add_f32 {v(AC + 2 * r, 2)}, {v(AC + 2 * r, 2)}, {v(t, 2)}")
    for r in range(4):
        a(cvt(D0 + r, AC + 2 * r))
    fl = ['', 'sc1', 'nt', 'sc0 sc1'][cfg.outfl]
    a(f"buffer_store_dwordx2 {v(D0, 2)}, {v(A0)}, {s(R_OUT, 4)}, 0 offen {fl}")
    a(f"buffer_store_dwordx2 {v(D0 + 2, 2)}, {v(A1)}, {s(R_OUT, 4)}, 0 offen {fl}")
    a(f"s_or_b32 s3, {s(S_H)}, {s(S_LW)}")
    a("s_cmp_eq_u32 s3, 0")
    a("s_cbranch_scc0 L_noep")
    a(f"s_lshl_b32 s3, {s(S_B)}, 7")
    a(f"s_add_u32 s3, s3, {FX}")
    a("v_mov_b32 v4, 0")
    a("s_mov_b64 exec, 1")
    a(f"buffer_store_dwordx2 {v(TG, 2)}, v4, {s(R_F, 4)}, s3 offen")
    a.label("L_noep")
    if cfg.diag:
        a("s_waitcnt vmcnt(0)")
    st.cyc("end")
    st.real("real1")
    st.flush("L")


def generate(cfg):
    a = Asm()
    a.lines.append("; @launch grid=(256,1,1) block=(512,1,1) lds=163840")
    a('.amdgcn_target "amdgcn-amd-amdhsa--gfx950"')
    a(".text")
    a(kernel_header(KN))
    a("s_cmp_ge_u32 s2, 256")
    a("s_cbranch_scc1 L_end")
    a("s_load_dwordx16 s[32:47], s[0:1], 0")
    if cfg.diag:
        a(f"s_memrealtime {s(S_T, 2)}")
        a(f"s_memtime {s(S_T + 2, 2)}")
    a("v_lshrrev_b32 v1, 6, v0")
    a("v_and_b32 v0, 63, v0")
    a(f"v_readfirstlane_b32 {s(S_WAVE)}, v1")
    a(f"s_and_b32 {s(S_G8)}, s2, 7")
    a("s_lshr_b32 s4, s2, 3")
    a(f"s_lshr_b32 {s(S_B)}, s4, 2")
    a(f"s_and_b32 {s(S_HH)}, s4, 3")
    a(f"s_lshl_b32 s3, {s(S_G8)}, 2")
    a(f"s_add_u32 {s(S_H)}, s3, {s(S_HH)}")
    a(f"s_cmp_ge_u32 {s(S_WAVE)}, 4")
    a("s_cbranch_scc1 L_loader")
    if cfg.ipf:
        a("s_getpc_b64 s[62:63]")
        a.label("L_pc")
        a(f"s_sub_u32 s62, s62, L_pc-{KN}")
        a("s_subb_u32 s63, s63, 0")
        a(f"s_mul_i32 s3, {s(S_WAVE)}, 40")
        a("v_min_u32 v7, 39, v0")
        a("v_add_u32 v7, s3, v7")
        a("v_lshlrev_b32 v7, 7, v7")
        a(f"v_min_u32 v7, L_last-{KN}, v7")
        if cfg.ipf & 1:
            a("global_load_dword v14, v7, s[62:63]")
    a("s_branch L_compute")
    a.label("L_loader")
    gen_loader(a, cfg)
    a.label("L_end")
    a("s_endpgm")
    a.label("L_compute")
    gen_compute(a, cfg)
    a('.section .rodata,"a"')
    a(".p2align 6")
    a(kernel_desc(KN))
    return a.text()


if __name__ == "__main__":
    cfg = Cfg()
    out = sys.argv[1]
    for opt in sys.argv[2:]:
        k, val = opt.split("=")
        assert hasattr(cfg, k), k
        setattr(cfg, k, val if k == "only" else int(val))
    t = generate(cfg)
    pr = hazard.check(t) + hazard.check_counters(t)
    for p in pr:
        print(f"HAZARD line {p[0]} -> {p[1]}: need {p[2]} have {p[3]}\n    {p[4]}\n    {p[5]}")
    open(out, "w").write(t)
    print(out, "hazards:", len(pr), "lines:", t.count("\n"))
```

```python
import struct
import sys

from asmlib import Asm, v, s, kernel_header, kernel_desc
import hazard

KN = "standalone__gqa_block_cached__near_ridge_kernel"
OFF_O = 0
OFF_P = 16 << 20
OFF_F = 32 << 20
F1, F2, FX = 0, 65536, 131072
OFF_T = 64 << 20
SLOT = 36864
A_K = 3 * SLOT
A_V = 1 * SLOT
A_Q = 2 * SLOT
A_P = 2 * SLOT
A_M = 163840 - 768
A_TAG = A_M - 8
WO0, WOS = 81920, 20480
OS = 12288
PSZ = 30720
CEXP = 0.07216878364870322 * 1.4426950408889634
TAGC = (0x9E3779B9, 0x7F4A7C15)
SPIN_MAX = 1 << 21


def f32bits(x):
    return struct.unpack("<I", struct.pack("<f", x))[0]


class Cfg:
    diag = 0
    only = ""
    rot = 10
    kpos = 9
    dynred = 1
    outfl = 0
    ipf = 3
    tab = 4
    unsafe = 0
    ntkv = 0
    lprio = 1
    sent = 0
    smx = 2
    vbp = 2
    fin = 2
    qv = 6
    sv = 1
    wper = 5
    odef = 1
    fw = 2
    dot2 = 0
    tpos = 10
    pst = 0
    pld = 0


S_X, S_K, S_V, S_WQ, S_WO, S_OUT, S_DBG, S_WS = 32, 34, 36, 38, 40, 42, 44, 46
S_B, S_H, S_WAVE, S_G8, S_HH = 28, 29, 30, 31, 48
S_TAG = 60
R_F = 24
S_T = 64


class Stamps:
    def __init__(self, a, cfg):
        self.a, self.on, self.n = a, cfg.diag, 2
        self.fine = cfg.diag > 1
        self.names = ["real0", "cyc0"]
        self.k = 0
        self.only = cfg.only.split(",") if cfg.only else None

    def real(self, name):
        if self.on:
            self.a(f"s_memrealtime {s(S_T + 2 * self.n, 2)}")
            self.names.append(name)
            self.n += 1

    def cyc(self, name, fine=False):
        if self.only and name not in self.only:
            return
        if not self.only and len(name) <= 3 and name[0] in "afB" and name[1:].isdigit() and name != "B0":
            return
        if self.on and (not fine or self.fine or self.only):
            self.a(f"{'s_memrealtime' if self.on > 2 else 's_memtime'} {s(S_T + 2 * self.n, 2)}")
            self.names.append(name)
            self.n += 1

    def alt(self, name, path, fine=False):
        if path == "N":
            return self.cyc(name, fine)
        if not self.on or (self.only and name not in self.only) or (fine and not self.only):
            return
        self.a(f"{'s_memrealtime' if self.on > 2 else 's_memtime'} {s(S_T + 2 * (self.n + self.k), 2)}")
        self.k += 1

    def flush(self, role, vt=4):
        if not self.on:
            return
        a = self.a
        assert self.n <= 19, self.n
        a("s_waitcnt lgkmcnt(0) vmcnt(0)")
        a(f"; STAMPS {role} " + " ".join(self.names))
        a("s_lshl_b32 s3, s2, 3")
        a(f"s_add_u32 s3, s3, {s(S_WAVE)}")
        a("s_lshl_b32 s3, s3, 8")
        a(f"s_add_u32 s3, s3, {OFF_T}")
        a(f"s_add_u32 s4, {s(S_WS)}, s3")
        a(f"s_addc_u32 s5, {s(S_WS + 1)}, 0")
        a("s_mov_b64 exec, 1")
        a(f"v_mov_b32 {v(vt + 2)}, 0")
        for i in range(self.n):
            a(f"v_mov_b32 {v(vt)}, {s(S_T + 2 * i)}")
            a(f"v_mov_b32 {v(vt + 1)}, {s(S_T + 2 * i + 1)}")
            a(f"global_store_dwordx2 {v(vt + 2)}, {v(vt, 2)}, s[4:5] offset:{8 * i}")
            a("s_nop 1")
        a("s_waitcnt vmcnt(0)")


def srd(a, d, base, off_sgpr, size):
    a(f"s_add_u32 {s(d)}, {s(base)}, {off_sgpr}")
    a(f"s_addc_u32 {s(d + 1)}, {s(base + 1)}, 0")
    a(f"s_mov_b32 {s(d + 2)}, {size}")
    a(f"s_mov_b32 {s(d + 3)}, 0x20000")


def dma(a, voff, srd_, soff, base, imm, fl=""):
    a(f"s_add_u32 m0, {base}, {imm}")
    a("s_nop 0")
    a(f"buffer_load_dwordx4 {v(voff)}, {s(srd_, 4)}, {soff} offen {fl} lds")


def mfma(d, a_, b_, c=None):
    cs = v(d, 4) if c is None else str(c)
    return f"v_mfma_f32_16x16x32_bf16 {v(d, 4)}, {v(a_, 4)}, {v(b_, 4)}, {cs}"


def trread(d, addr, off):
    assert 0 <= off < 65536
    return f"ds_read_b64_tr_b16 {v(d, 2)}, {v(addr)} offset:{off}"


def rd128(d, addr, off):
    assert 0 <= off < 65536
    return f"ds_read_b128 {v(d, 4)}, {v(addr)} offset:{off}"


def rd64(d, addr, off):
    assert 0 <= off < 65536
    return f"ds_read_b64 {v(d, 2)}, {v(addr)} offset:{off}"


def cvt(d, t):
    return f"v_cvt_pk_bf16_f32 {v(d)}, {v(t)}, {v(t + 1)}"


def emit(a, lst):
    for x in lst:
        a(x)


def place(main, slots):
    out = list(slots.get(-1, []))
    for i, m in enumerate(main):
        out.append(m)
        out.extend(slots.get(i, []))
    for k in sorted(slots):
        if k >= len(main):
            out.extend(slots[k])
    return out


def spread(fill, start, per=1, step=1, into=None):
    d = into if into is not None else {}
    i, k = start, 0
    while k < len(fill):
        d.setdefault(i, []).extend(fill[k:k + per])
        k += per
        i += step
    return d


def at(d, i, *x):
    d.setdefault(i, []).extend(x)


def lg(n):
    return f"s_waitcnt lgkmcnt({n})"


def mod_small(a, reg, m, times):
    for _ in range(times):
        a(f"s_sub_u32 s4, {reg}, {m}")
        a(f"s_cmp_ge_u32 {reg}, {m}")
        a(f"s_cselect_b32 {reg}, s4, {reg}")


def tile_addrs(a, dst, first, f, lanepart, tmp, extra=None):
    for c in range(4):
        a(f"s_add_u32 s4, {first}, {c}")
        a("s_and_b32 s5, s4, 3")
        a("s_lshr_b32 s4, s4, 2")
        a("s_lshl_b32 s4, s4, 7")
        a(f"v_xor_b32 {v(tmp)}, s5, {v(f)}")
        a(f"v_lshl_add_u32 {v(tmp)}, {v(tmp)}, 5, {v(lanepart)}")
        a(f"v_add_u32 {v(dst + c)}, s4, {v(tmp)}")


def gen_compute(a, cfg):
    st = Stamps(a, cfg)
    R_O, R_P = 8, 12
    ACC, FR, QP, LS, ONES = 16, 88, 160, 196, 208
    AX, AY, AZ, AVo, AVp = 212, 216, 218, 230, 234
    AQW, AQR, AMW, AMR, APW, APR, APW2, APR2, AO, AOW = range(238, 248)
    AW, AB, AP, AP2, TG, ZERO = 248, 250, 251, 252, 254, 15
    VM, VG, VF, T0, T1, T2 = 1, 2, 3, 4, 5, 6
    MX = 8
    S_I, S_J, S_C, S_D, S_CNT, S_SL, S_D2, S_SL2 = 50, 51, 52, 54, 55, 56, 57, 18
    S_K0, S_K1, S_F1, S_F2 = 58, 59, 16, 17

    a(f"s_lshr_b32 {s(S_I)}, {s(S_WAVE)}, 1")
    a(f"s_and_b32 {s(S_J)}, {s(S_WAVE)}, 1")
    a(f"s_mov_b32 {s(S_C)}, {f32bits(CEXP):#x}")
    a(f"s_mov_b32 {s(S_C + 1)}, {f32bits(CEXP):#x}")
    a(f"v_and_b32 {v(VM)}, 15, v0")
    a(f"v_lshrrev_b32 {v(VG)}, 4, v0")
    a(f"v_lshrrev_b32 {v(T0)}, 2, {v(VM)}")
    a(f"v_lshl_add_u32 {v(T1)}, {v(VG)}, 3, {v(T0)}")
    a(f"v_mul_u32_u24 {v(T1)}, 384, {v(T1)}")
    a(f"v_and_b32 {v(T2)}, 3, {v(VM)}")
    a(f"v_lshlrev_b32 v11, 3, {v(T2)}")
    a(f"v_add_u32 {v(T1)}, v11, {v(T1)}")
    a(f"v_and_b32 {v(T2)}, 1, {v(VG)}")
    a(f"v_lshrrev_b32 {v(VF)}, 3, {v(VM)}")
    a(f"v_lshl_or_b32 {v(VF)}, {v(T2)}, 1, {v(VF)}")
    a(f"s_mul_i32 s3, {s(S_I)}, 6")
    tile_addrs(a, AX, "s3", VF, T1, T2)
    a(f"s_mul_i32 s4, {s(S_J)}, 48")
    a(f"v_add_u32 {v(T1)}, s4, {v(VM)}")
    a(f"v_lshlrev_b32 {v(T1)}, 7, {v(T1)}")
    a(f"v_add_u32 {v(T1)}, 24576, {v(T1)}")
    a(f"v_lshrrev_b32 {v(VF)}, 1, {v(VM)}")
    for ks in range(2):
        a(f"v_add_u32 {v(T2)}, {4 * ks}, {v(VG)}")
        a(f"v_xor_b32 {v(T2)}, {v(T2)}, {v(VF)}")
        a(f"v_lshl_add_u32 {v(AY + ks)}, {v(T2)}, 4, {v(T1)}")
    for i in range(72):
        a(f"v_mov_b32 {v(ACC + i)}, 0")
    a(f"s_mul_i32 s4, {s(S_I)}, 48")
    a(f"v_add_u32 {v(T1)}, s4, {v(VM)}")
    a(f"v_mul_u32_u24 {v(T1)}, 384, {v(T1)}")
    a(f"v_and_b32 {v(T2)}, 1, {v(VG)}")
    a(f"v_lshl_add_u32 {v(T1)}, {v(T2)}, 3, {v(T1)}")
    a(f"v_add_u32 {v(T1)}, {A_K}, {v(T1)}")
    a(f"v_lshrrev_b32 {v(T0)}, 1, {v(VG)}")
    a(f"v_xor_b32 {v(T0)}, {v(T0)}, {v(VF)}")
    a(f"v_lshl_add_u32 {v(T1)}, {v(T0)}, 4, {v(T1)}")
    a(f"s_mul_i32 s7, {s(S_I)}, 3")
    for ls in range(6):
        a(f"s_add_u32 s6, s7, {ls}")
        mod_small(a, "s6", 6, 1)
        a("s_and_b32 s5, s6, 1")
        a("s_lshl_b32 s5, s5, 6")
        a("s_lshr_b32 s6, s6, 1")
        a("s_lshl_b32 s6, s6, 7")
        a(f"v_add_u32 {v(T2)}, s6, {v(T1)}")
        a(f"v_xor_b32 {v(AZ + 2 * ls)}, s5, {v(T2)}")
        a(f"v_xor_b32 {v(AZ + 2 * ls + 1)}, 32, {v(AZ + 2 * ls)}")
    a(f"v_lshrrev_b32 {v(T0)}, 2, {v(VM)}")
    a(f"v_lshl_add_u32 {v(T0)}, {v(VG)}, 2, {v(T0)}")
    a(f"v_bfe_u32 {v(VF)}, {v(T0)}, 1, 2")
    a(f"v_mul_u32_u24 {v(T1)}, 384, {v(T0)}")
    a(f"v_add_u32 {v(T1)}, v11, {v(T1)}")
    a(f"s_mul_i32 s6, {s(S_I)}, 18432")
    a(f"s_add_u32 s7, s6, {A_V}")
    a(f"v_add_u32 {v(T1)}, s7, {v(T1)}")
    a(f"s_mul_i32 s3, {s(S_I)}, 6")
    tile_addrs(a, AVo, "s3", VF, T1, T2)
    a("s_lshl_b32 s6, s6, 1")
    a("s_sub_u32 s6, 18432, s6")
    for c in range(4):
        a(f"v_add_u32 {v(AVp + c)}, s6, {v(AVo + c)}")
    a(f"v_mul_u32_u24 {v(T1)}, 320, {v(T0)}")
    a(f"v_add_u32 {v(T1)}, v11, {v(T1)}")
    a(f"v_add_u32 {v(T1)}, {WO0 + WOS}, {v(T1)}")
    a(f"v_and_b32 {v(T0)}, 1, {v(VG)}")
    a(f"s_mul_i32 s3, {s(S_I)}, 5")
    for par in range(2):
        a(f"s_add_u32 s4, s3, {par}")
        a(f"v_xor_b32 {v(T2)}, s4, {v(T0)}")
        a(f"v_lshl_add_u32 {v(AW + par)}, {v(T2)}, 5, {v(T1)}")
    a(f"s_xor_b32 s5, {s(S_WAVE)}, 2")
    a(f"v_lshlrev_b32 {v(T1)}, 4, v0")
    a(f"v_lshlrev_b32 {v(T0)}, 3, v0")
    a(f"v_lshlrev_b32 {v(T2)}, 2, {v(VM)}")
    for wv, (q_, p_, p2, m_) in ((s(S_WAVE), (AQW, APW, APW2, AMW)), ("s5", (AQR, APR, APR2, AMR))):
        a(f"s_mul_i32 s3, {wv}, 9216")
        a(f"s_add_u32 s3, s3, {A_Q}")
        a(f"v_add_u32 {v(q_)}, s3, {v(T1)}")
        a(f"s_mul_i32 s3, {wv}, 4608")
        a(f"s_add_u32 s3, s3, {A_P}")
        a(f"v_add_u32 {v(p_)}, s3, {v(T1)}")
        a(f"v_add_u32 {v(p2)}, s3, {v(T0)}")
        a(f"s_mul_i32 s3, {wv}, 192")
        a(f"s_add_u32 s3, s3, {A_M}")
        a(f"v_add_u32 {v(m_)}, s3, {v(T2)}")
    a(f"s_mul_i32 s3, {s(S_I)}, 18")
    a(f"s_mul_i32 s4, {s(S_J)}, 3")
    a("s_add_u32 s3, s3, s4")
    a("s_lshl_b32 s3, s3, 10")
    a(f"v_add_u32 {v(AO)}, s3, {v(T1)}")
    a(f"s_mul_i32 s3, {s(S_J)}, 3072")
    a(f"v_add_u32 {v(AB)}, s3, {v(T1)}")
    a(f"s_mul_i32 s3, {s(S_WAVE)}, 7680")
    a(f"v_add_u32 {v(AP)}, s3, {v(T1)}")
    a("s_add_u32 s3, s3, 7168")
    a(f"v_add_u32 {v(AP2)}, s3, {v(T0)}")
    a(f"v_mov_b32 {v(AOW)}, {A_TAG}")
    a(f"v_mov_b32 {v(ZERO)}, 0")
    for i in range(4):
        a(f"v_mov_b32 {v(ONES + i)}, 0x3f803f80")
    a(f"s_lshl_b32 s3, {s(S_B)}, 5")
    a(f"s_add_u32 s3, s3, {s(S_H)}")
    a("s_lshl_b32 s4, s3, 2")
    a(f"s_add_u32 s4, s4, {s(S_WAVE)}")
    a(f"s_lshl_b32 {s(S_F1)}, s4, 3")
    a(f"s_lshl_b32 s4, {s(S_B)}, 2")
    a(f"s_add_u32 s4, s4, {s(S_HH)}")
    a("s_lshl_b32 s6, s4, 2")
    a(f"s_add_u32 s6, s6, {s(S_WAVE)}")
    a("s_lshl_b32 s6, s6, 4")
    a(f"s_add_u32 s6, s6, {s(S_G8)}")
    a("s_lshl_b32 s6, s6, 3")
    a(f"s_add_u32 {s(S_F2)}, s6, {F2}")
    a("s_lshl_b32 s4, s4, 3")
    a(f"s_add_u32 s4, s4, {s(S_G8)}")
    a(f"s_mul_i32 s4, s4, {PSZ}")
    a(f"s_add_u32 s4, s4, {OFF_P}")
    a("s_mul_i32 s3, s3, 36864")
    a("s_waitcnt lgkmcnt(0)")
    srd(a, R_O, S_WS, "s3", 36864)
    srd(a, R_P, S_WS, "s4", PSZ)
    srd(a, R_F, S_WS, f"{OFF_F}", 262144)

    def fa(n, dt):
        return FR + 36 * n + 4 * dt

    def fb(n, qt):
        return FR + 36 * n + 24 + 4 * qt

    def p1_reads(n, ks):
        def A(dt):
            return [trread(fa(n, dt) + 2 * hh, AX + dt % 4, 384 * (32 * ks + 4 * hh) + 128 * (dt // 4)) for hh in range(2)]

        def B(qt):
            return [rd128(fb(n, qt), AY + ks, 2048 * qt)]
        r = B(0) + A(0) + B(1) + B(2)
        for dt in range(1, 6):
            r += A(dt)
        return r

    def qtile(dt, qt):
        return ACC + 4 * (3 * dt + qt)

    def p1_mfmas(n):
        return [mfma(qtile(dt, qt), fa(n, dt), fb(n, qt)) for dt in range(6) for qt in range(3)]

    adv = [f"v_add_u32 {v(AX + c)}, {s(S_D)}, {v(AX + c)}" for c in range(4)] + \
          [f"v_add_u32 {v(AY + c)}, {s(S_D)}, {v(AY + c)}" for c in range(2)]
    a(f"s_mov_b32 {s(S_SL)}, 0")
    a(f"s_mov_b32 {s(S_CNT)}, 0")
    a(f"s_mov_b32 {s(S_K0)}, {(-2 * SLOT) & 0xffffffff:#x}")
    a(f"s_mov_b32 {s(S_K1)}, {SLOT}")
    st.cyc("setup")
    a("s_barrier")
    st.cyc("b0")
    emit(a, p1_reads(0, 0))
    a(lg(0))
    a.label("L_p1")
    sl = spread(p1_reads(1, 1), 0, 1)
    at(sl, 0, f"s_add_u32 {s(S_SL)}, {s(S_SL)}, 1")
    at(sl, 1, f"s_cmp_eq_u32 {s(S_SL)}, 3")
    at(sl, 2, f"s_cselect_b32 {s(S_D)}, {s(S_K0)}, {s(S_K1)}")
    at(sl, 3, f"s_cselect_b32 {s(S_SL)}, 0, {s(S_SL)}")
    spread(adv, 15, 2, into=sl)
    emit(a, place(p1_mfmas(0), sl))
    a(lg(0))
    a("s_barrier")
    sl = spread(p1_reads(0, 0), 0, 1)
    at(sl, 15, f"s_add_u32 {s(S_CNT)}, {s(S_CNT)}, 1")
    at(sl, 16, f"s_cmp_lt_u32 {s(S_CNT)}, 9")
    emit(a, place(p1_mfmas(1), sl))
    a(lg(0))
    a("s_cbranch_scc1 L_p1")
    emit(a, place(p1_mfmas(0), spread(p1_reads(1, 1), 0, 1)))
    if cfg.ipf & 2:
        a("global_load_dword v14, v7, s[62:63]")
    a(lg(0))
    a("s_barrier")
    st.cyc("b10")
    a.c("SEG q")

    def kf(buf, a_):
        return FR + 12 * buf + 4 * a_

    def k_reads(ls, buf):
        return [rd64(kf(buf, a_) + 2 * hh, AZ + 2 * ls + hh, 6144 * a_) for a_ in range(3) for hh in range(2)]

    def qpack(ls):
        r = []
        for qt in range(3):
            for dt in (2 * ls, 2 * ls + 1):
                d = QP + 4 * (3 * ls + qt) + 2 * (dt % 2)
                r += [cvt(d, qtile(dt, qt)), cvt(d + 1, qtile(dt, qt) + 2)]
        return r

    def qwrite(f):
        return f"ds_write_b128 {v(AQW)}, {v(QP + 4 * f, 4)} offset:{1024 * f}"

    def stile(a_, qt):
        return ACC + 4 * (3 * a_ + qt)

    def s_mfmas(qbase, ls3, buf, first=False, qmajor=False):
        idx = [(a_, qt) for qt in range(3) for a_ in range(3)] if qmajor else [(a_, qt) for a_ in range(3) for qt in range(3)]
        return [mfma(stile(a_, qt), kf(buf, a_), qbase + 4 * (3 * ls3 + qt), 0 if first else None) for a_, qt in idx]

    q0, q1, q2 = qpack(0), qpack(1), qpack(2)
    if cfg.qv == 0:
        sl = spread(k_reads(0, 0) + k_reads(1, 1) + k_reads(2, 2), 0, 2, into={})
        spread(q0, 9, 2, into=sl)
        at(sl, 11, qwrite(0))
        at(sl, 14, qwrite(1))
        spread(q1[:4], 15, 2, into=sl)
        at(sl, 17, qwrite(2))
        emit(a, place(p1_mfmas(1), sl))
        emit(a, q1[4:8] + [qwrite(3)] + q1[8:])
        a(lg(4))
        sl = {}
        at(sl, 0, qwrite(4))
        spread(q2, 1, 2, into=sl)
        at(sl, 3, qwrite(5))
        at(sl, 7, qwrite(6))
        at(sl, 10, qwrite(7))
        at(sl, 13, qwrite(8))
        spread(k_reads(3, 0), 14, 2, into=sl)
        emit(a, place(s_mfmas(QP, 0, 0, True) + s_mfmas(QP, 1, 1), sl))
    else:
        order = [(dt, qt) for ls in range(3) for qt in range(3) for dt in (2 * ls, 2 * ls + 1)]
        mm = [mfma(qtile(dt, qt), fa(1, dt), fb(1, qt)) for dt, qt in order]
        mm += s_mfmas(QP, 0, 0, True) + s_mfmas(QP, 1, 1)
        packs = q0 + q1 + q2
        sl = {}
        if cfg.qv == 1:
            spread(k_reads(0, 0)[:5], 0, 1, into=sl)
            for f in range(9):
                g0 = 5 + 2 * f + (f >= 6) * 2
                spread(packs[4 * f:4 * f + 4], g0, 2, into=sl)
            wr = [7, 10, 13, 16, 19, 22, 25, 28, 31]
            for f in range(9):
                at(sl, wr[f], qwrite(f))
            at(sl, 8, k_reads(0, 0)[5])
            for k, g_ in enumerate([9, 11, 12, 14, 15, 17]):
                at(sl, g_, k_reads(1, 1)[k])
            at(sl, 17, lg(7))
            at(sl, 26, lg(3))
            spread(k_reads(2, 2), 27, 1, into=sl)
            spread(k_reads(3, 0), 29, 1, into=sl)
        elif cfg.qv == 2:
            spread(k_reads(0, 0) + k_reads(1, 1)[:4], 0, 2, into=sl)
            for f in range(9):
                g0 = 5 + 2 * f + (f >= 6) * 2
                spread(packs[4 * f:4 * f + 4], g0, 2, into=sl)
            wr = [7, 10, 13, 16, 19, 22, 25, 28, 31]
            for f in range(9):
                at(sl, wr[f], qwrite(f))
            at(sl, 8, k_reads(1, 1)[4])
            at(sl, 9, k_reads(1, 1)[5])
            at(sl, 17, lg(3))
            spread(k_reads(2, 2), 26, 1, into=sl)
            spread(k_reads(3, 0), 29, 1, into=sl)
        elif cfg.qv in (3, 4):
            kr = k_reads(0, 0) + k_reads(1, 1) + k_reads(2, 2)
            spread(kr[:5], 0, 1, into=sl)
            rest = kr[5:]
            for f in range(9):
                g0 = 5 + 3 * f
                c4 = packs[4 * f:4 * f + 4]
                if cfg.qv == 3:
                    at(sl, g0, rest.pop(0), c4[0], c4[1])
                    at(sl, g0 + 1, c4[2], c4[3])
                else:
                    at(sl, g0, rest.pop(0), c4[0])
                    at(sl, g0 + 1, c4[1], c4[2], c4[3])
                at(sl, g0 + 2, qwrite(f))
            spread(rest, 32, 1, into=sl)
            sl[17].append(lg(8))
            sl[26].append(lg(2))
        elif cfg.qv in (5, 6, 7):
            kr = k_reads(0, 0) + k_reads(1, 1) + k_reads(2, 2)
            spread(kr[:4], 0, 1, into=sl)
            rest = kr[4:]
            start = 4 if cfg.qv == 7 else 5
            for f in range(9):
                g0 = start + 3 * f
                c4 = packs[4 * f:4 * f + 4]
                at(sl, g0, *(rest[:1]), c4[0], c4[1])
                at(sl, g0 + 1, *(rest[1:2]), c4[2], c4[3])
                rest = rest[2:]
                if cfg.qv == 6:
                    d = QP + 4 * f
                    at(sl, g0 + 2, f"ds_write_b64 {v(AQW)}, {v(d, 2)} offset:{1024 * f}",
                       f"ds_write_b64 {v(AQW)}, {v(d + 2, 2)} offset:{1024 * f + 8}")
                else:
                    at(sl, g0 + 2, qwrite(f))
            sl[17].append(lg(4))
            sl[26].append(lg(2))
        emit(a, place(mm, sl))
    st.cyc("a3", True)
    a(lg(0))
    a("s_barrier")
    st.cyc("b11")
    a.c("SEG s")
    QR = FR + 36
    rds = [rd128(QR + 4 * f, AQR, 1024 * f) for f in range(9)]
    if cfg.sv == 0:
        sl = spread(rds[:6], -1, 1)
        spread(k_reads(4, 1), 5, 2, into=sl)
        at(sl, 8, lg(9))
        emit(a, place(s_mfmas(QP, 2, 2), sl))
        st.cyc("a4", True)
        sl = spread(rds[6:], 0, 1)
        spread(k_reads(5, 2), 3, 1, into=sl)
        at(sl, 8, lg(9))
        emit(a, place(s_mfmas(QR, 0, 0), sl))
        emit(a, s_mfmas(QR, 1, 1))
        a(lg(0))
    else:
        sl = spread(rds[:3], -1, 1)
        spread(k_reads(3, 0), 2, 2, into=sl)
        spread(rds[3:6], 5, 1, into=sl)
        at(sl, 8, lg(3))
        spread(k_reads(4, 1), 8, 2, into=sl)
        spread(rds[6:], 11, 1, into=sl)
        spread(k_reads(5, 2), 14, 2, into=sl)
        at(sl, 17, lg(9))
        emit(a, place(s_mfmas(QP, 2, 2) + s_mfmas(QR, 0, 0), sl))

    def xs(qt):
        return [stile(a_, qt) + r for a_ in range(3) for r in range(4)]

    def maxchain(qt):
        x = xs(qt)
        r = [f"v_max3_f32 {v(MX + qt)}, {v(x[0])}, {v(x[1])}, {v(x[2])}"]
        for k in range(3, 11, 2):
            r.append(f"v_max3_f32 {v(MX + qt)}, {v(MX + qt)}, {v(x[k])}, {v(x[k + 1])}")
        r.append(f"v_max_f32 {v(MX + qt)}, {v(MX + qt)}, {v(x[11])}")
        return r
    m0, m1, m2 = maxchain(0), maxchain(1), maxchain(2)
    if cfg.sv == 0:
        emit(a, s_mfmas(QR, 2, 2, qmajor=True))
        st.cyc("sdone", True)
        a("s_nop 0")
        emit(a, m0 + m1 + m2)
    else:
        s4, s5 = s_mfmas(QR, 1, 1, qmajor=True), s_mfmas(QR, 2, 2, qmajor=True)
        mm = sum([s4[3 * qt:3 * qt + 3] + s5[3 * qt:3 * qt + 3] for qt in range(3)], [])
        sl = {}
        at(sl, 2, lg(0))
        spread(m0, 11, 2, into=sl)
        spread(m1[:2], 17, 2, into=sl)
        emit(a, place(mm, sl))
        st.cyc("sdone", True)
        emit(a, m1[2:] + ["s_nop 1"] + m2)
    for op in ("v_permlane16_swap_b32", "v_permlane32_swap_b32"):
        for qt in range(3):
            a(f"v_mov_b32 {v(MX + 3 + qt)}, {v(MX + qt)}")
        for qt in range(3):
            a(f"{op} {v(MX + 3 + qt)}, {v(MX + qt)}")
        for qt in range(3):
            a(f"v_max_f32 {v(MX + qt)}, {v(MX + qt)}, {v(MX + 3 + qt)}")
    for qt in range(3):
        a(f"ds_write_b32 {v(AMW)}, {v(MX + qt)} offset:{64 * qt}")
    st.cyc("a6", True)
    a(lg(0))
    a("s_barrier")
    st.cyc("b12")
    a.c("SEG sm")

    PP, PC = FR, FR + 24
    VQ = [[QP + 4 * dt for dt in range(6)], [FR + 36 + 4 * dt for dt in range(6)], [148, 152, 156, 184, 188, 192]]

    def v_reads(step):
        r = []
        for dt in range(6):
            for hh in range(2):
                if step == 0:
                    ad, tile = AVo, hh
                elif step == 1:
                    ad, tile = (AVo, 2) if hh == 0 else (AVp, 2)
                else:
                    ad, tile = AVp, hh
                r.append(trread(VQ[step][dt] + 2 * hh, ad + dt % 4, 6144 * tile + 128 * (dt // 4)))
        return r
    NM = 2
    for qt in range(3):
        a(f"ds_read_b32 {v(MX + 3 + qt)}, {v(AMR)} offset:{64 * qt}")
    emit(a, v_reads(0))
    if cfg.vbp == 2:
        emit(a, v_reads(1))
    a((lg(15) if cfg.vbp == 2 else lg(12)) if not st.on else lg(0))
    a(f"ds_read_b64 {v(TG, 2)}, {v(AOW)}")
    for qt in range(3):
        a(f"v_max_f32 {v(MX + qt)}, {v(MX + qt)}, {v(MX + 3 + qt)}")
    for qt in range(3):
        a(f"v_mul_f32 {v(NM + 2 * qt)}, {s(S_C)}, {v(MX + qt)}")
    for qt in range(3):
        a(f"v_mov_b32 {v(NM + 2 * qt + 1)}, {v(NM + 2 * qt)}")

    def softmax(qt):
        x = xs(qt)
        e = [f"v_exp_f32 {v(y)}, {v(y)}" for y in x]
        c = [cvt(PP + 8 * qt + k, x[2 * k]) for k in range(6)]
        if cfg.smx == 0 or (cfg.smx == 2 and qt == 0):
            f = [[f"v_pk_fma_f32 {v(x[2 * k], 2)}, {v(x[2 * k], 2)}, {s(S_C, 2)}, {v(NM + 2 * qt, 2)} neg_lo:[0,0,1] neg_hi:[0,0,1]"] for k in range(6)]
        else:
            f = [[f"v_fma_f32 {v(y)}, {v(y)}, {s(S_C)}, -{v(NM + 2 * qt)}" for y in x[2 * k:2 * k + 2]] for k in range(6)]
        r = f[0] + f[1]
        for k in range(6):
            nx = f[k + 2] if k + 2 < 6 else []
            r += [e[2 * k]] + nx[:1] + [e[2 * k + 1]] + nx[1:]
            if k >= 1:
                r.append(c[k - 1])
        r += ["s_nop 0", c[5]]
        return r

    def pwrite(qt):
        return [f"ds_write_b128 {v(APW)}, {v(PP + 8 * qt, 4)} offset:{1536 * qt}",
                f"ds_write_b64 {v(APW2)}, {v(PP + 8 * qt + 4, 2)} offset:{1536 * qt + 1024}"]
    OT = {}
    free = [ACC + 36 + 4 * k for k in range(9)]
    for qt in range(3):
        regs = free[3 * qt:3 * qt + 3] + [stile(a_, qt) for a_ in range(3)]
        for dt in range(6):
            OT[(dt, qt)] = regs[dt]
    pf = [lambda qt: PP + 8 * qt, lambda qt: PP + 8 * qt + 4, lambda qt: PC + 4 * qt]

    def pv(step, qt):
        first = step == 0
        r = [mfma(OT[(dt, qt)], VQ[step][dt], pf[step](qt), 0 if first else None) for dt in range(6)]
        sm = [mfma(LS + 4 * qt, ONES, pf[step](qt), 0 if first else None)]
        return sm + r if step == 2 else r + sm

    def weave(vals, mm, first=3, per=3):
        out, k = [], 0
        for i, m in enumerate(mm):
            n = first if i == 0 else per
            out += vals[k:k + n]
            k += n
            out.append(m)
        return out + vals[k:]
    st.cyc("a7", True)
    vb = v_reads(1) if cfg.vbp == 0 else []
    s0 = softmax(0)
    out = []
    for k, x in enumerate(s0):
        out.append(x)
        if k % 2 == 1 and vb:
            out.append(vb.pop(0))
    emit(a, out + vb)
    emit(a, pwrite(0))
    a(lg(14) if cfg.vbp == 0 else lg(2))
    st.cyc("a8", True)
    emit(a, weave(softmax(1), pv(0, 0), per=cfg.wper))
    emit(a, pwrite(1))
    st.cyc("a9", True)
    emit(a, weave(softmax(2), pv(0, 1), per=cfg.wper))
    emit(a, pwrite(2))
    st.cyc("a10", True)
    a(lg(0))
    a("s_barrier")
    st.cyc("b13")
    a.c("SEG pv")
    prd = [rd64(PP + 8 * qt + 6, APR2, 1536 * qt + 1024) for qt in range(3)]
    prc = [rd128(PC + 4 * qt, APR, 1536 * qt) for qt in range(3)]
    vc = v_reads(2)
    if cfg.vbp in (0, 2):
        sl = spread(prd + prc + vc[:2], -1, 1)
        at(sl, 6, lg(5))
        emit(a, place(pv(0, 2), sl))
        sl = spread(vc[2:], 0, 1)
        at(sl, 13, lg(0))
        emit(a, place(pv(1, 0) + pv(1, 1), sl))
    else:
        emit(a, place(pv(0, 2), spread(prd + v_reads(1), -1, 2)))
        a(lg(0))
        sl = spread(prc + vc[:11], 0, 1)
        at(sl, 13, vc[11], lg(0))
        emit(a, place(pv(1, 0) + pv(1, 1), sl))
    st.cyc("pvB", True)
    OPQ = [160, 164, 168, 172, 176, 180, 212, 216, 220]

    def finish(qt):
        r = [f"v_rcp_f32 {v(MX + 2 * qt)}, {v(LS + 4 * qt)}", "s_nop 0",
             f"v_mov_b32 {v(MX + 2 * qt + 1)}, {v(MX + 2 * qt)}"]
        for ls in range(3):
            d = OPQ[3 * ls + qt]
            for half in range(2):
                t = OT[(2 * ls + half, qt)]
                if cfg.fin == 0 or (cfg.fin == 2 and qt == 2):
                    r.append(f"v_pk_mul_f32 {v(t, 2)}, {v(t, 2)}, {v(MX + 2 * qt, 2)}")
                    r.append(f"v_pk_mul_f32 {v(t + 2, 2)}, {v(t + 2, 2)}, {v(MX + 2 * qt, 2)}")
                else:
                    r += [f"v_mul_f32 {v(t + k)}, {v(MX + 2 * qt)}, {v(t + k)}" for k in range(4)]
            for half in range(2):
                t = OT[(2 * ls + half, qt)]
                r += [cvt(d + 2 * half, t), cvt(d + 2 * half + 1, t + 2)]
            off = (ls * 6 + qt) * 1024
            r.append(f"s_mov_b32 s3, {off}")
            r.append(f"buffer_store_dwordx4 {v(d, 4)}, {v(AO)}, {s(R_O, 4)}, s3 offen {'' if cfg.unsafe else 'sc1'}")
            if not cfg.odef:
                r.append(f"ds_write_b128 {v(AO)}, {v(d, 4)} offset:{off}")
        return r

    def gaps(f, per):
        out, cur = [], []
        for x in f:
            if x.startswith("s_mov"):
                if cur:
                    out.append(cur)
                cur = [x]
            elif x.startswith(("buffer_", "ds_")):
                out.append(cur + [x])
                cur = []
            else:
                cur.append(x)
                if len(cur) == per:
                    out.append(cur)
                    cur = []
        return out + ([cur] if cur else [])

    def weave2(mm, f, skip, per):
        g = gaps(f, per)
        out = []
        for i, m in enumerate(mm):
            out.append(m)
            if i >= skip and g:
                out += g.pop(0)
        return out + sum(g, [])
    emit(a, pv(2, 0))
    f0, f1, f2 = finish(0), finish(1), finish(2)
    mm = pv(1, 2) + pv(2, 1)
    if cfg.fw == 0:
        emit(a, [mm[0]] + weave(["s_nop 0"] + f0, mm[1:], first=1, per=2))
    else:
        emit(a, weave2(mm, f0, 1, cfg.fw))
    st.cyc("f0", True)
    mm = pv(2, 2)
    if cfg.fw == 0:
        emit(a, [mm[0], mm[1]] + weave(f1, mm[2:], first=0, per=2))
    else:
        emit(a, weave2(mm, f1, 0, cfg.fw))
    st.cyc("f1", True)
    emit(a, f2)
    a.c("SEG end")
    st.cyc("ostore")
    a(lg(0))
    a("s_barrier")

    A4 = ACC
    if cfg.odef:
        for qt in range(3):
            for ls in range(3):
                a(f"ds_write_b128 {v(AO)}, {v(OPQ[3 * ls + qt], 4)} offset:{(ls * 6 + qt) * 1024}")
    for i in range(60):
        a(f"v_mov_b32 {v(A4 + i)}, 0")
    a(f"s_mov_b32 {s(S_K0)}, {(-3 * WOS) & 0xffffffff:#x}")
    a(f"s_mov_b32 {s(S_K1)}, {WOS}")
    a(f"s_mov_b32 s6, {(-5 * OS) & 0xffffffff:#x}")
    a(f"s_mov_b32 s7, {OS}")
    a(f"s_mov_b32 {s(S_SL)}, 1")
    a(f"s_mov_b32 {s(S_SL2)}, 0")
    a(f"s_mov_b32 {s(S_CNT)}, 0")
    a("s_waitcnt vmcnt(0)")
    a("s_mov_b64 exec, 1")
    a(f"buffer_store_dwordx2 {v(TG, 2)}, {v(ZERO)}, {s(R_F, 4)}, {s(S_F1)} offen {'' if cfg.unsafe else 'sc1'}")
    a("s_mov_b64 exec, -1")
    st.cyc("flag1")

    def ga(n, tt):
        return FR + 32 * n + 4 * tt

    def gb(n, qt):
        return FR + 32 * n + 20 + 4 * qt

    def p4_reads(n, ks):
        def A(tt):
            return [trread(ga(n, tt) + 2 * hh, AW + tt % 2, 320 * (32 * ks + 16 * hh) + 64 * (tt // 2)) for hh in range(2)]

        def B(qt):
            return [rd128(gb(n, qt), AB, 6144 * ks + 1024 * qt)]
        r = B(0) + A(0) + B(1) + B(2)
        for tt in range(1, 5):
            r += A(tt)
        return r

    def p4_mfmas(n):
        return [mfma(A4 + 4 * (3 * tt + qt), ga(n, tt), gb(n, qt)) for tt in range(5) for qt in range(3)]
    adv4 = [f"v_add_u32 {v(AW + c)}, {s(S_D)}, {v(AW + c)}" for c in range(2)] + [f"v_add_u32 {v(AB)}, {s(S_D2)}, {v(AB)}"]
    a(lg(0))
    a("s_barrier")
    st.cyc("B0")
    emit(a, p4_reads(0, 0))
    a(lg(0))
    a.label("L_p4")
    sl = spread(p4_reads(1, 1), 0, 1)
    sc = [f"s_add_u32 {s(S_SL)}, {s(S_SL)}, 1", f"s_cmp_eq_u32 {s(S_SL)}, 4",
          f"s_cselect_b32 {s(S_D)}, {s(S_K0)}, {s(S_K1)}", f"s_cselect_b32 {s(S_SL)}, 0, {s(S_SL)}",
          f"s_add_u32 {s(S_SL2)}, {s(S_SL2)}, 1", f"s_cmp_eq_u32 {s(S_SL2)}, 6",
          f"s_cselect_b32 {s(S_D2)}, s6, s7", f"s_cselect_b32 {s(S_SL2)}, 0, {s(S_SL2)}"]
    spread(sc, 0, 1, into=sl)
    spread(adv4, 13, 2, into=sl)
    at(sl, 12, f"s_cmp_eq_u32 {s(S_CNT)}, 2")
    emit(a, place(p4_mfmas(0), sl))
    a(lg(0))
    a("s_cbranch_scc0 L_p4bar")
    st.cyc("own")
    a("s_barrier")
    a.label("L_p4bar")
    a("s_barrier")
    sl = spread(p4_reads(0, 0), 0, 1)
    at(sl, 12, f"s_add_u32 {s(S_CNT)}, {s(S_CNT)}, 1")
    at(sl, 13, f"s_cmp_lt_u32 {s(S_CNT)}, 11")
    emit(a, place(p4_mfmas(1), sl))
    a(lg(0))
    a("s_cbranch_scc1 L_p4")
    st.cyc("p4loop")
    emit(a, place(p4_mfmas(0), spread(p4_reads(1, 1), 0, 1)))
    a(lg(0))
    PK = QP

    def tile(tt, qt):
        return A4 + 4 * (3 * tt + qt)
    order = [(2 * qt, (0, qt), (1, qt)) for qt in range(3)] + [(2 * qt + 1, (2, qt), (3, qt)) for qt in range(3)] + [(6, (4, 0), (4, 1))]
    ep = []
    for n, (bi, t0, t1) in enumerate(order):
        d = PK + 4 * n
        ep.append([cvt(d, tile(*t0)), cvt(d + 1, tile(*t0) + 2), cvt(d + 2, tile(*t1)), cvt(d + 3, tile(*t1) + 2),
                   f"s_mov_b32 s3, {1024 * bi}",
                   f"buffer_store_dwordx4 {v(d, 4)}, {v(AP)}, {s(R_P, 4)}, s3 offen sc1"])
    ep.append([cvt(PK + 28, tile(4, 2)), cvt(PK + 29, tile(4, 2) + 2),
               f"buffer_store_dwordx2 {v(PK + 28, 2)}, {v(AP2)}, {s(R_P, 4)}, 0 offen sc1"])
    flat = sum(ep, [])
    emit(a, place(p4_mfmas(1), spread(flat[:12], 9, 2)))
    emit(a, flat[12:])
    st.cyc("pstore")
    if not cfg.sent:
        a("s_waitcnt vmcnt(0)")
    elif cfg.sent > 1:
        a(f"s_waitcnt vmcnt({cfg.sent})")
    a("s_mov_b64 exec, 1")
    a(f"buffer_store_dwordx2 {v(TG, 2)}, {v(ZERO)}, {s(R_F, 4)}, {s(S_F2)} offen sc1")
    st.cyc("flag2")
    st.real("real1")
    st.flush("C")
    a.label("L_last")
    a("s_endpgm")


def reduce_addr(a, tid, vtmp, A0, A1, s_g8):
    SG, W, C, X, Y, OFFS = vtmp, vtmp + 1, vtmp + 2, vtmp + 3, vtmp + 4, vtmp + 5
    a(f"s_mul_i32 s3, {s_g8}, 240")
    a(f"v_add_u32 {v(SG)}, s3, {v(tid)}")
    a(f"v_lshlrev_b32 {v(OFFS)}, 4, {v(SG)}")
    a(f"v_mul_u32_u24 {v(W)}, 2185, {v(SG)}")
    a(f"v_lshrrev_b32 {v(W)}, 20, {v(W)}")
    a(f"v_mul_u32_u24 {v(X)}, 480, {v(W)}")
    a(f"v_sub_u32 {v(C)}, {v(SG)}, {v(X)}")
    a(f"v_and_b32 {v(X)}, 1, {v(W)}")
    a(f"v_mul_u32_u24 {v(X)}, {48 * 1280}, {v(X)}")
    a(f"v_lshrrev_b32 {v(W)}, 1, {v(W)}")
    a(f"v_mul_u32_u24 {v(W)}, 160, {v(W)}")
    a(f"v_add_u32 {v(W)}, {v(W)}, {v(X)}")
    a(f"v_lshrrev_b32 {v(SG)}, 6, {v(C)}")
    a(f"v_and_b32 {v(C)}, 63, {v(C)}")
    a(f"v_cmp_eq_u32 vcc, 7, {v(SG)}")
    a(f"v_lshlrev_b32 {v(X)}, 1, {v(C)}")
    a("s_nop 0")
    a(f"v_cndmask_b32 {v(C)}, {v(C)}, {v(X)}, vcc")
    a(f"v_and_b32 {v(X)}, 15, {v(C)}")
    a(f"v_mul_u32_u24 {v(X)}, 1280, {v(X)}")
    a(f"v_lshrrev_b32 {v(C)}, 4, {v(C)}")
    a(f"v_lshl_add_u32 {v(X)}, {v(C)}, 3, {v(X)}")
    a(f"v_add_u32 {v(W)}, {v(W)}, {v(X)}")
    a(f"v_lshrrev_b32 {v(X)}, 1, {v(SG)}")
    a(f"v_mul_u32_u24 {v(X)}, {16 * 1280}, {v(X)}")
    a(f"v_and_b32 {v(Y)}, 1, {v(SG)}")
    a(f"v_lshl_add_u32 {v(X)}, {v(Y)}, 6, {v(X)}")
    a(f"v_mov_b32 {v(Y)}, 32")
    a(f"v_cmp_eq_u32 vcc, 6, {v(SG)}")
    a(f"v_mov_b32 {v(C)}, 128")
    a(f"v_mov_b32 {v(A1)}, {16 * 1280}")
    a(f"v_cndmask_b32 {v(X)}, {v(X)}, {v(C)}, vcc")
    a(f"v_cndmask_b32 {v(Y)}, {v(Y)}, {v(A1)}, vcc")
    a(f"v_cmp_eq_u32 vcc, 7, {v(SG)}")
    a(f"v_mov_b32 {v(C)}, {32 * 1280 + 128}")
    a(f"v_mov_b32 {v(A1)}, 1280")
    a(f"v_cndmask_b32 {v(X)}, {v(X)}, {v(C)}, vcc")
    a(f"v_cndmask_b32 {v(Y)}, {v(Y)}, {v(A1)}, vcc")
    a(f"v_add_u32 {v(A0)}, {v(W)}, {v(X)}")
    a(f"v_add_u32 {v(A1)}, {v(A0)}, {v(Y)}")
    return OFFS


def gen_loader(a, cfg):
    st = Stamps(a, cfg)
    R_X, R_WQ, R_K, R_V, R_WO = 8, 12, 16, 20, 56
    R_OI, R_PI, R_OUT = 12, 16, 20
    S_LW, S_SW, S_SX, S_LDS, S_N, S_KK, S_PK = 50, 51, 52, 53, 54, 55, 49
    S_MW, S_MX, S_LDO = 62, 63, 7
    OW, OX, OK_, OV, OWO, OO = 16, 22, 25, 34, 43, 48
    RRc, UUc = 52, 55
    AT, AF1, AF2, TG, PT = 58, 59, 60, 62, 64
    A0, A1, RT, JK, AT2 = 66, 67, 68, 74, 75
    T0, T1, T2 = 4, 5, 6

    if cfg.lprio:
        a("s_setprio 3")
    if cfg.only and "k0" in st.only:
        a("s_waitcnt lgkmcnt(0)")
        st.cyc("k0")
    a(f"s_sub_u32 {s(S_LW)}, {s(S_WAVE)}, 4")
    for c in range(3):
        a(f"v_add_u32 {v(T0)}, {64 * c}, v0")
        a(f"v_mul_u32_u24 {v(T1)}, 2731, {v(T0)}")
        a(f"v_lshrrev_b32 {v(RRc + c)}, 16, {v(T1)}")
        a(f"v_mul_u32_u24 {v(T1)}, 24, {v(RRc + c)}")
        a(f"v_sub_u32 {v(UUc + c)}, {v(T0)}, {v(T1)}")
    a(f"s_mul_i32 s3, {s(S_LW)}, 3")
    a(f"v_lshrrev_b32 {v(T2)}, 4, v0")
    a("v_and_b32 v7, 7, v0")
    a("v_lshrrev_b32 v8, 3, v0")
    for c in range(3):
        a(f"s_add_u32 s4, s3, {c}")
        a("s_lshl_b32 s6, s4, 3")
        a("s_and_b32 s4, s4, 1")
        a("s_lshl_b32 s4, s4, 2")
        a(f"v_or_b32 {v(T0)}, s4, {v(T2)}")
        a(f"v_xor_b32 {v(T0)}, {v(T0)}, v7")
        a(f"v_add_u32 {v(T1)}, s6, v8")
        a(f"v_mul_u32_u24 {v(T1)}, 1280, {v(T1)}")
        a(f"v_lshl_add_u32 {v(OX + c)}, {v(T0)}, 4, {v(T1)}")
    a(f"s_lshl_b32 s3, {s(S_LW)}, 4")
    for c in range(3):
        a(f"v_bfe_u32 {v(T0)}, {v(RRc + c)}, 1, 1")
        a(f"v_lshlrev_b32 {v(T0)}, 1, {v(T0)}")
        a(f"v_xor_b32 {v(T0)}, {v(T0)}, {v(UUc + c)}")
        a(f"v_add_u32 {v(T1)}, s3, {v(RRc + c)}")
        a(f"v_mul_u32_u24 {v(T1)}, 12288, {v(T1)}")
        a(f"v_lshl_add_u32 {v(OW + c)}, {v(T0)}, 4, {v(T1)}")
        a(f"v_xor_b32 {v(T0)}, 64, {v(OW + c)}")
        a(f"v_add_u32 {v(OW + 3 + c)}, {8 * 12288}, {v(T0)}")
    a(f"s_mul_i32 {s(S_MW)}, {s(S_LW)}, 6144")
    a(f"s_mul_i32 {s(S_MX)}, {s(S_LW)}, 3072")
    a(f"s_add_u32 {s(S_MX)}, {s(S_MX)}, 24576")
    fb = {8: [0, 2, 4, 6, 8, 0, 2, 4], 9: [0, 5, 0, 5, 0, 5, 0, 5], 10: [0, 3, 5, 8, 0, 3, 5, 8],
          11: [0, 3, 7, 0, 3, 7, 0, 3]}[cfg.rot]
    word = sum(x << (4 * i) for i, x in enumerate(fb))
    a(f"s_lshl_b32 s3, {s(S_B)}, 2")
    a(f"s_lshr_b32 s3, {word:#x}, s3")
    a("s_and_b32 s3, s3, 15")
    a(f"s_lshl_b32 s4, {s(S_HH)}, 2")
    a("s_lshr_b32 s4, 0x8530, s4")
    a("s_and_b32 s4, s4, 15")
    a("s_add_u32 s3, s3, s4")
    a(f"s_add_u32 {s(S_KK)}, s3, {s(S_G8)}")
    mod_small(a, s(S_KK), 10, 2)
    a(f"s_mov_b32 {s(S_LDS)}, 0")
    a(f"s_mul_i32 s3, {s(S_B)}, 122880")
    a(f"s_mul_i32 s5, {s(S_H)}, 384")
    a("s_sub_u32 s4, 7864320, s5")
    st.cyc("pre", True) if cfg.only else None
    a("s_waitcnt lgkmcnt(0)")
    st.cyc("karg", True)
    srd(a, R_X, S_X, "s3", 122880)
    srd(a, R_WQ, S_WQ, "s5", "s4")

    def stage_body():
        a(f"s_mul_i32 {s(S_SW)}, {s(S_KK)}, {64 * 12288}")
        a(f"s_lshl_b32 {s(S_SX)}, {s(S_KK)}, 7")
        a(f"s_add_u32 s3, {s(S_LDS)}, {s(S_MW)}")
        a(f"s_add_u32 s4, {s(S_LDS)}, {s(S_MX)}")
        for c in range(3):
            dma(a, OX + c, R_X, s(S_SX), "s4", 1024 * c)
        for p in range(6):
            dma(a, OW + p, R_WQ, s(S_SW), "s3", 1024 * p, "nt" if cfg.ntkv & 8 else "")
        a(f"s_add_u32 {s(S_KK)}, {s(S_KK)}, 1")
        a(f"s_cmp_eq_u32 {s(S_KK)}, 10")
        a(f"s_cselect_b32 {s(S_KK)}, 0, {s(S_KK)}")
        a(f"s_add_u32 {s(S_LDS)}, {s(S_LDS)}, {SLOT}")
        a(f"s_cmp_eq_u32 {s(S_LDS)}, {3 * SLOT}")
        a(f"s_cselect_b32 {s(S_LDS)}, 0, {s(S_LDS)}")

    def call(lbl):
        a(f"s_call_b64 s[44:45], {lbl}")
    stage_body()
    if cfg.lprio:
        a("s_setprio 0")
    st.cyc("issued")
    a(f"s_lshl_b32 s3, {s(S_B)}, 7")
    a(f"s_add_u32 s3, s3, {OFF_F + FX}")
    a(f"s_add_u32 s4, {s(S_WS)}, s3")
    a(f"s_addc_u32 s5, {s(S_WS + 1)}, 0")
    a(f"s_load_dwordx2 {s(S_TAG, 2)}, s[4:5], 0")
    if cfg.kpos >= 9:
        table = {9: [1, 2, 3, 4, 5, 6, 7, 8], 11: [8, 8, 7, 7, 6, 6, 5, 5], 12: [8, 7, 6, 5, 8, 4, 3, 2],
                 13: [1, 8, 1, 8, 1, 8, 1, 8], 14: [1, 1, 8, 1, 1, 8, 1, 8],
                 20: [1, 8, 1, 1, 8, 1, 1, 8], 21: [1, 8, 8, 1, 8, 8, 1, 8], 22: [1, 8, 4, 1, 8, 4, 1, 8],
                 23: [1, 2, 1, 1, 2, 1, 1, 2], 24: [1, 8, 5, 3, 8, 6, 1, 8], 25: [0, 8, 1, 0, 8, 1, 0, 8],
                 26: [1, 8, 1, 8, 1, 8, 1, 8], 27: [0, 8, 0, 8, 0, 8, 0, 8]}[cfg.kpos]
        word = sum(x << (4 * i) for i, x in enumerate(table))
        if cfg.kpos < 20:
            a(f"s_add_u32 s3, {s(S_B)}, {s(S_G8)}")
            a("s_and_b32 s3, s3, 7")
            a("s_lshl_b32 s3, s3, 2")
        else:
            a(f"s_lshl_b32 s3, {s(S_B)}, 2")
        a(f"s_lshr_b32 s3, {word:#x}, s3")
        a(f"s_and_b32 {s(S_PK)}, s3, 15")
    else:
        a(f"s_mov_b32 {s(S_PK)}, {cfg.kpos}")
    a(f"s_lshl_b32 s3, {s(S_B)}, 5")
    a(f"s_add_u32 s3, s3, {s(S_H)}")
    a("s_mul_i32 s3, s3, 36864")
    srd(a, R_K, S_K, "s3", 36864)
    srd(a, R_V, S_V, "s3", 36864)
    srd(a, R_F, S_WS, f"{OFF_F}", 262144)
    a(f"s_mul_i32 s3, {s(S_LW)}, 24")
    a(f"s_and_b32 s4, {s(S_LW)}, 1")
    a("s_lshl_b32 s4, s4, 6")
    for c in range(3):
        a(f"v_lshrrev_b32 {v(T0)}, 1, {v(RRc + c)}")
        a(f"v_add_u32 {v(T1)}, s3, {v(RRc + c)}")
        a(f"v_mul_u32_u24 {v(T1)}, 384, {v(T1)}")
        a(f"v_xor_b32 {v(T2)}, {v(T0)}, {v(UUc + c)}")
        a(f"v_lshl_add_u32 {v(T2)}, {v(T2)}, 4, {v(T1)}")
        a(f"v_xor_b32 {v(OK_ + c)}, s4, {v(T2)}")
        a(f"v_xor_b32 {v(T2)}, 64, {v(OK_ + c)}")
        a(f"v_add_u32 {v(OK_ + 3 + c)}, 3072, {v(T2)}")
        a(f"v_add_u32 {v(OK_ + 6 + c)}, 6144, {v(OK_ + c)}")
        a(f"v_lshlrev_b32 {v(T2)}, 1, {v(T0)}")
        a(f"v_xor_b32 {v(T2)}, {v(T2)}, {v(UUc + c)}")
        a(f"v_lshl_add_u32 {v(OV + c)}, {v(T2)}, 4, {v(T1)}")
        a(f"v_add_u32 {v(OV + 3 + c)}, 3072, {v(OV + c)}")
        a(f"v_add_u32 {v(OV + 6 + c)}, 6144, {v(OV + c)}")
    a(f"s_mul_i32 s3, {s(S_G8)}, 983040")
    a(f"s_mul_i32 s4, {s(S_HH)}, 320")
    a("s_add_u32 s3, s3, s4")
    a("s_sub_u32 s4, 7864320, s3")
    srd(a, R_WO, S_WO, "s3", "s4")
    a(f"s_lshl_b32 s3, {s(S_B)}, 2")
    a(f"s_add_u32 s3, s3, {s(S_LW)}")
    a("s_mul_i32 s3, s3, 24")
    a(f"v_mul_u32_u24 {v(T1)}, 21846, v0")
    a(f"v_lshrrev_b32 {v(T1)}, 16, {v(T1)}")
    a(f"v_mul_u32_u24 {v(T2)}, 3, {v(T1)}")
    a(f"v_sub_u32 {v(T0)}, v0, {v(T2)}")
    a(f"v_add_u32 {v(T1)}, s3, {v(T1)}")
    a(f"v_mul_u32_u24 {v(T1)}, 1280, {v(T1)}")
    a(f"v_lshl_add_u32 {v(AT)}, {v(T0)}, 7, {v(T1)}")
    a(f"v_min_u32 {v(T0)}, 7, v0")
    a(f"v_add_u32 {v(T0)}, 64, {v(T0)}")
    a(f"v_mul_u32_u24 {v(T1)}, 21846, {v(T0)}")
    a(f"v_lshrrev_b32 {v(T1)}, 16, {v(T1)}")
    a(f"v_mul_u32_u24 {v(T2)}, 3, {v(T1)}")
    a(f"v_sub_u32 {v(T0)}, {v(T0)}, {v(T2)}")
    a(f"v_add_u32 {v(T1)}, s3, {v(T1)}")
    a(f"v_mul_u32_u24 {v(T1)}, 1280, {v(T1)}")
    a(f"v_lshl_add_u32 {v(AT2)}, {v(T0)}, 7, {v(T1)}")
    if cfg.lprio == 2:
        a("s_setprio 3")
    stage_body()

    def issue_kv(off, srd_, base):
        a(f"s_mul_i32 s3, {s(S_LW)}, 9216")
        a(f"s_add_u32 s3, s3, {base}")
        for p in range(9):
            dma(a, off + p, srd_, "0", "s3", 1024 * p, "nt" if cfg.ntkv & (1 if srd_ == R_K else 2) else "")
    a("s_waitcnt vmcnt(9)")
    st.cyc("landed0")
    a("s_barrier")
    a(f"s_mov_b32 {s(S_N)}, 0")
    a.label("L_lloop")
    a(f"s_cmp_eq_u32 {s(S_N)}, {s(S_PK)}")
    a("s_cbranch_scc0 L_nok")
    call("L_sub_k")
    a.label("L_nok")
    stage_body()
    a("s_waitcnt vmcnt(9)")
    a("s_barrier")
    a(f"s_add_u32 {s(S_N)}, {s(S_N)}, 1")
    a(f"s_cmp_lt_u32 {s(S_N)}, 8")
    a("s_cbranch_scc1 L_lloop")
    st.cyc("b8")
    a(f"s_cmp_eq_u32 {s(S_PK)}, 8")
    a("s_cbranch_scc0 L_vonly")
    call("L_sub_k")
    a("s_waitcnt vmcnt(9)")
    a("s_barrier")
    call("L_sub_v")
    a("s_branch L_kvdone")
    a.label("L_sub_k")
    issue_kv(OK_, R_K, A_K)
    a("s_setpc_b64 s[44:45]")
    a.label("L_sub_v")
    issue_kv(OV, R_V, A_V)
    a("s_setpc_b64 s[44:45]")
    a.label("L_sub_wo")
    a(f"s_mul_i32 {s(S_SW)}, {s(S_KK)}, {64 * 1280}")
    a(f"s_add_u32 s3, {s(S_LDS)}, {s(S_MW)}")
    for p in range(5):
        dma(a, OWO + p, R_WO, s(S_SW), "s3", 1024 * p)
    a(f"s_add_u32 {s(S_KK)}, {s(S_KK)}, 1")
    a(f"s_cmp_eq_u32 {s(S_KK)}, 12")
    a(f"s_cselect_b32 {s(S_KK)}, 0, {s(S_KK)}")
    a(f"s_add_u32 {s(S_LDS)}, {s(S_LDS)}, {WOS}")
    a(f"s_cmp_eq_u32 {s(S_LDS)}, {4 * WOS}")
    a(f"s_cselect_b32 {s(S_LDS)}, 0, {s(S_LDS)}")
    a("s_setpc_b64 s[44:45]")
    a.label("L_sub_o")
    a(f"s_mul_i32 {s(S_SX)}, {s(S_PK)}, {OS}")
    a(f"s_add_u32 m0, {s(S_LDO)}, {s(S_MX)}")
    a(f"s_add_u32 {s(S_PK)}, {s(S_PK)}, 1")
    for c in range(3):
        a(f"buffer_load_dwordx4 {v(OO)}, {s(R_OI, 4)}, {s(S_SX)} offen offset:{1024 * c} {['sc1', '', 'nt'][cfg.unsafe]} lds")
    a(f"s_cmp_eq_u32 {s(S_PK)}, 12")
    a(f"s_cselect_b32 {s(S_PK)}, 0, {s(S_PK)}")
    a(f"s_add_u32 {s(S_LDO)}, {s(S_LDO)}, {OS}")
    a(f"s_cmp_eq_u32 {s(S_LDO)}, {6 * OS}")
    a(f"s_cselect_b32 {s(S_LDO)}, 0, {s(S_LDO)}")
    a("s_setpc_b64 s[44:45]")
    a.label("L_vonly")
    call("L_sub_v")
    a("s_waitcnt vmcnt(9)")
    a("s_barrier")
    a.label("L_kvdone")
    a("s_waitcnt vmcnt(9)")
    st.cyc("Kland")
    a("s_barrier")
    touch = (f"buffer_load_dword {v(JK)}, {v(AT)}, {s(R_WO, 4)}, 0 offen\n"
             f"buffer_load_dword {v(JK + 2)}, {v(AT2)}, {s(R_WO, 4)}, 0 offen")
    if cfg.tpos == 10:
        a(touch)
    a(f"s_lshl_b32 s3, {s(S_B)}, 3")
    a(f"s_add_u32 s3, s3, {s(S_G8)}")
    a(f"s_mul_i32 s3, s3, {4 * 36864}")
    srd(a, R_OI, S_WS, "s3", 4 * 36864)
    a(f"s_lshl_b32 s3, {s(S_B)}, 2")
    a(f"s_add_u32 s3, s3, {s(S_HH)}")
    a(f"s_mul_i32 s3, s3, {8 * PSZ}")
    a(f"s_add_u32 s3, s3, {OFF_P}")
    srd(a, R_PI, S_WS, "s3", 8 * PSZ)
    a(f"s_mul_i32 {s(S_MW)}, {s(S_LW)}, 5120")
    a(f"s_add_u32 {s(S_MW)}, {s(S_MW)}, {WO0}")
    a(f"s_mul_i32 {s(S_MX)}, {s(S_LW)}, 3072")
    a(f"s_mul_i32 {s(S_KK)}, {s(S_HH)}, 3")
    a(f"s_add_u32 {s(S_PK)}, {s(S_KK)}, 3")
    a(f"s_cmp_eq_u32 {s(S_PK)}, 12")
    a(f"s_cselect_b32 {s(S_PK)}, 0, {s(S_PK)}")
    a(f"s_mov_b32 {s(S_LDS)}, {WOS}")
    a(f"s_mov_b32 {s(S_LDO)}, {3 * OS}")
    a("s_barrier")
    if cfg.lprio == 2:
        a("s_setprio 0")
    if cfg.tpos == 11:
        a(touch)
    a(f"s_lshl_b32 s3, {s(S_LW)}, 4")
    for c in range(5):
        a(f"v_add_u32 {v(T0)}, {64 * c}, v0")
        a(f"v_mul_u32_u24 {v(T1)}, 3277, {v(T0)}")
        a(f"v_lshrrev_b32 {v(T1)}, 16, {v(T1)}")
        a(f"v_mul_u32_u24 {v(T2)}, 20, {v(T1)}")
        a(f"v_sub_u32 {v(T0)}, {v(T0)}, {v(T2)}")
        a(f"v_lshrrev_b32 {v(T2)}, 1, {v(T1)}")
        a(f"v_and_b32 {v(T2)}, 2, {v(T2)}")
        a(f"v_xor_b32 {v(T0)}, {v(T0)}, {v(T2)}")
        a(f"v_add_u32 {v(T1)}, s3, {v(T1)}")
        a(f"v_mul_u32_u24 {v(T1)}, 1280, {v(T1)}")
        a(f"v_lshl_add_u32 {v(OWO + c)}, {v(T0)}, 4, {v(T1)}")
    a(f"v_lshl_add_u32 {v(OO)}, v0, 4, {s(S_MX)}")
    a(f"s_lshl_b32 s3, {s(S_B)}, 3")
    a(f"s_add_u32 s3, s3, {s(S_G8)}")
    a("s_lshl_b32 s3, s3, 7")
    a(f"v_and_b32 {v(T0)}, 15, v0")
    a(f"v_lshl_add_u32 {v(AF1)}, {v(T0)}, 3, s3")
    a("s_waitcnt lgkmcnt(0)")
    a(f"s_add_u32 {s(S_TAG)}, {s(S_TAG)}, {TAGC[0]:#x}")
    a(f"s_addc_u32 {s(S_TAG + 1)}, {s(S_TAG + 1)}, {TAGC[1]:#x}")
    a(f"v_mov_b32 {v(TG)}, {s(S_TAG)}")
    a(f"v_mov_b32 {v(TG + 1)}, {s(S_TAG + 1)}")
    a(f"v_mov_b32 {v(T0)}, {A_TAG}")
    a(f"ds_write_b64 {v(T0)}, {v(TG, 2)}")
    a(f"s_waitcnt vmcnt(2) lgkmcnt(0)")
    st.cyc("Vland")
    if cfg.lprio == 2:
        a("s_setprio 3")
    a("s_barrier")
    a(f"s_mul_i32 s3, {s(S_B)}, 122880")
    a(f"s_mul_i32 s4, {s(S_HH)}, 320")
    a("s_add_u32 s3, s3, s4")
    a("s_sub_u32 s4, 983040, s3")
    srd(a, R_OUT, S_OUT, "s3", "s4")
    a("s_barrier")

    def poll(name, vaddr):
        a(f"s_mov_b32 s3, {SPIN_MAX}")
        a.label(name)
        a(f"buffer_load_dwordx2 {v(PT, 2)}, {v(vaddr)}, {s(R_F, 4)}, 0 offen sc1")
        a("s_sub_u32 s3, s3, 1")
        a("s_cmp_eq_u32 s3, 0")
        a(f"s_cbranch_scc1 {name}_out")
        a("s_waitcnt vmcnt(0)")
        a(f"v_cmp_ne_u64 vcc, {v(PT, 2)}, {v(TG, 2)}")
        a("s_nop 1")
        a(f"s_cbranch_vccnz {name}")
        a.label(name + "_out")
        a("s_waitcnt vmcnt(0)")

    BARS = ["B0", "B1", "B2", "BX"] + [f"B{n}" for n in range(3, 12)]
    own_mask = "s[4:5]"

    def run(path, tokens, state, alts):
        q, nwo, no, bi = state
        q = list(q)
        for k, ch in enumerate(tokens):
            free = -1 if bi < 2 else (bi - 2 if bi <= 4 else bi - 3)
            if ch == "w":
                assert nwo <= max(3, free + 4), (path, k, nwo, free)
                call("L_sub_wo")
                q.append((nwo, 5))
                nwo += 1
            elif ch == "o":
                assert no <= max(5, free + 6), (path, k, no, free)
                call("L_sub_o")
                q.append((no, 3))
                no += 1
            elif ch == "c":
                if cfg.sent:
                    a("s_mov_b32 s3, 4096")
                    for kk in range(8):
                        a(f"buffer_store_dwordx4 {v(CL, 4)}, {v(ACL)}, {s(R_PO, 4)}, {'s3' if kk >= 4 else '0'} offen offset:{1024 * (kk % 4)} sc1")
                    q.append((11, 8))
            elif ch == "p":
                a(f"buffer_load_dwordx2 {v(PT, 2)}, {v(AF1)}, {s(R_F, 4)}, 0 offen sc1")
                q.append((99, 1))
            elif ch in "ab":
                last = max(i for i, (kk, _) in enumerate(q) if kk == 99)
                a(f"s_waitcnt vmcnt({sum(c for _, c in q[last + 1:])})")
                q = q[last + 1:]
                a(f"v_cmp_ne_u64 vcc, {v(PT, 2)}, {v(TG, 2)}")
                a("s_nop 1")
                a(f"s_and_b64 s[4:5], vcc, {s(S_OM, 2)}")
                a(f"s_cbranch_scc0 L_path_{ch}")
                alts[ch] = (q, nwo, no, bi)
            elif ch == "s":
                poll("L_poll1", AF1)
                q = []
            elif ch == "|":
                name = BARS[bi]
                need = {"BX": -1}.get(name, int(name[1:]) if name != "BX" else -1)
                if need >= 0:
                    assert nwo > need and (need < 3 or no > need), (path, name)
                    last = max([i for i, (kk, _) in enumerate(q) if kk <= need] + [-1])
                    cnt = sum(c for _, c in q[last + 1:])
                    if last >= 0:
                        a(f"s_waitcnt vmcnt({cnt})")
                    q = q[last + 1:]
                a("s_barrier")
                bi += 1
        assert bi == len(BARS) and nwo == 12 and no == 12, (path, bi, nwo, no)
    CL, ACL, R_PO = 112, 116, 8
    if cfg.sent:
        a(f"s_lshl_b32 s3, {s(S_B)}, 2")
        a(f"s_add_u32 s3, s3, {s(S_HH)}")
        a("s_lshl_b32 s3, s3, 3")
        a(f"s_add_u32 s3, s3, {s(S_G8)}")
        a(f"s_mul_i32 s3, s3, {PSZ}")
        a(f"s_add_u32 s3, s3, {OFF_P}")
        srd(a, R_PO, S_WS, "s3", PSZ)
        a(f"s_mul_i32 s3, {s(S_LW)}, 7680")
        a(f"v_lshl_add_u32 {v(ACL)}, v0, 4, s3")
        for kk in range(4):
            a(f"v_mov_b32 {v(CL + kk)}, -1")
    S_OM = 4 * 0 + 40
    a(f"s_lshl_b32 s3, {s(S_HH)}, 2")
    a("s_lshl_b32 s3, 0x000f000f, s3")
    a(f"s_not_b32 {s(S_OM)}, s3")
    a(f"s_mov_b32 {s(S_OM + 1)}, {s(S_OM)}")
    a("s_barrier")
    tabs = {
        1: dict(N="wp a|ww|wp|b|ww s ooo|wo|wo|wo|wo|wo|wo|||",
                a="|ww|w ooo||w|wo|wo|wo|wo|wo|wo|w||",
                b="ooo|w|wo|wo|wo|wo|wo|wo|w||"),
        2: dict(N="wp a|ww|wp|b|ww s ooo|wo|wo|wo|wo|wo|wo|||",
                a="|ww|w ooo||w|wwo|wo|wo|wo|wo|wo|||",
                b="ooo|w|wwo|wo|wo|wo|wo|wo|||"),
        3: dict(N="wp a|ww|wp|b|www s ooo|ooo|w|w|w|oo|w|wo||",
                a="|ww|w ooo||ww|wo|wo|wo|wo|wo|wo|||",
                b="ooo|ww|wo|wo|wo|wo|wo|wo|||"),
        4: dict(N="w|ww|wp|b|ww s ooo|wo|wo|wo|wo|wo|woc|||",
                b="ooo|w|wo|wo|wo|wo|wo|wo|wc||"),
        8: dict(N="wp|ww a|wp|b|ww s ooo|wo|wo|wo|wo|wo|wo|||",
                a="ooo|w||w|wo|wo|wo|wo|wo|wo|w||",
                b="ooo|w|wo|wo|wo|wo|wo|wo|w||"),
        9: dict(N="w|wpw a|wp|b|ww s ooo|wo|wo|wo|wo|wo|wo|||",
                a="ooo|w||w|wo|wo|wo|wo|wo|wo|w||",
                b="ooo|w|wo|wo|wo|wo|wo|wo|w||"),
        10: dict(N="w|wwp|a wp|b|ww s ooo|wo|wo|wo|wo|wo|wo|||",
                 a="w ooo||w|wo|wo|wo|wo|wo|wo|w||",
                 b="ooo|w|wo|wo|wo|wo|wo|wo|w||"),
        11: dict(N="w|wwp|a wp|b|ww s ooo|wo|wo|wo|wo|wo|wo|||",
                 a="w oo||wo|wo|wo|wo|wo|wo|wo|w||",
                 b="oo|wo|wo|wo|wo|wo|wo|wo|w||"),
        7: dict(N="w|ww|wp|b|ww s ooo|wo|wo|wo|wo|wo|wo|c||",
                b="ooo|w|wwo|wo|wo|wo|wo|woc|||"),
        5: dict(N="wp a|ww|wp|b|ww s ooo|wo|wo|wo|wo|wo|wo|||",
                a="|ww|w oo||wo|wo|wo|wo|wo|wo|wo|w||",
                b="oo|wo|wo|wo|wo|wo|wo|wo|w||"),
        6: dict(N="wp a|ww|wp|b|ww s ooo|wo|wo|wo|wo|wo|wo|||",
                a="|www ooo|||w|wwo|wo|wo|wo|wo|wo|||",
                b="ooo|w|wwo|wo|wo|wo|wo|wo|||"),
    }[cfg.tab]
    alts = {}
    run("N", tabs["N"].replace(" ", ""), ([], 0, 3, 0), alts)
    a("s_branch L_final")
    for key in sorted(alts):
        a.label(f"L_path_{key}")
        run(key, tabs[key].replace(" ", ""), alts[key], {})
        if key != sorted(alts)[-1]:
            a("s_branch L_final")
    a.label("L_final")
    a(f"s_lshl_b32 s3, {s(S_B)}, 2")
    a(f"s_add_u32 s3, s3, {s(S_HH)}")
    a("s_lshl_b32 s3, s3, 2")
    a(f"s_lshr_b32 s4, {s(S_G8)}, 1")
    a("s_add_u32 s3, s3, s4")
    a("s_lshl_b32 s3, s3, 7")
    a(f"s_add_u32 s3, s3, {F2}")
    a(f"v_and_b32 {v(T0)}, 7, v0")
    a(f"v_lshl_add_u32 {v(AF2)}, {v(T0)}, 3, s3")
    a(f"s_lshl_b32 s4, {s(S_LW)}, 6")
    a("v_add_u32 v7, s4, v0")
    a("v_min_u32 v7, 239, v7")
    OFFS = reduce_addr(a, 7, RT, A0, A1, s(S_G8))
    D0, AC = 80, 148

    def load_part(g):
        a(f"s_mov_b32 s3, {PSZ * g}")
        a(f"buffer_load_dwordx4 {v(D0 + 4 * g, 4)}, {v(OFFS)}, {s(R_PI, 4)}, s3 offen {['sc1', '', 'nt', 'sc0 sc1', 'sc1 nt'][cfg.pld]}")
    if not cfg.dynred:
        poll("L_poll2", AF2)
        st.cyc("seen2")
        for g in range(8):
            load_part(g)
    else:
        a(f"s_mov_b32 s7, {SPIN_MAX}")
        a("s_mov_b32 s6, 0")
        a.label("L_poll2")
        a(f"buffer_load_dwordx2 {v(PT, 2)}, {v(AF2)}, {s(R_F, 4)}, 0 offen sc1")
        a("s_sub_u32 s7, s7, 1")
        a("s_cmp_eq_u32 s7, 0")
        a("s_cbranch_scc1 L_poll2_out")
        a("s_waitcnt vmcnt(0)")
        a(f"v_cmp_eq_u64 vcc, {v(PT, 2)}, {v(TG, 2)}")
        a("s_nop 1")
        a("s_and_b32 s5, vcc_lo, 0xff")
        a("s_andn2_b32 s4, s5, s6")
        a("s_cbranch_scc0 L_poll2")
        a("s_or_b32 s6, s6, s5")
        for g in range(8):
            a(f"s_bitcmp1_b32 s4, {g}")
            a(f"s_cbranch_scc0 L_r{g}")
            load_part(g)
            a.label(f"L_r{g}")
        a("s_cmp_eq_u32 s6, 0xff")
        a("s_cbranch_scc0 L_poll2")
        a.label("L_poll2_out")
        st.cyc("seen2")
        a("s_waitcnt vmcnt(0)")
    if cfg.sent:
        assert cfg.dynred
        a("s_mov_b32 s7, 4096")
        a.label("L_chk")
        a(f"v_max3_u32 v4, {v(D0)}, {v(D0 + 1)}, {v(D0 + 2)}")
        a(f"v_max3_u32 v5, {v(D0 + 3)}, {v(D0 + 4)}, {v(D0 + 5)}")
        for kk in range(6, 30, 4):
            a(f"v_max3_u32 v4, v4, {v(D0 + kk)}, {v(D0 + kk + 1)}")
            a(f"v_max3_u32 v5, v5, {v(D0 + kk + 2)}, {v(D0 + kk + 3)}")
        a(f"v_max3_u32 v4, v4, {v(D0 + 30)}, {v(D0 + 31)}")
        a("v_max_u32 v4, v4, v5")
        a("v_cmp_eq_u32 vcc, -1, v4")
        a("s_sub_u32 s7, s7, 1")
        a("s_cselect_b32 s6, 0, 1")
        a("s_and_b32 s4, vcc_lo, -1")
        a("s_or_b32 s4, s4, vcc_hi")
        a("s_cselect_b32 s6, s6, 0")
        a("s_cmp_eq_u32 s6, 0")
        a("s_cbranch_scc1 L_chk_ok")
        for g in range(8):
            load_part(g)
        a("s_waitcnt vmcnt(0)")
        a("s_branch L_chk")
        a.label("L_chk_ok")
        st.cyc("chk")
    for g in range(8):
        if not cfg.dynred:
            a(f"s_waitcnt vmcnt({7 - g})")
        for r in range(4):
            src = D0 + 4 * g + r
            if g == 0:
                a(f"v_lshlrev_b32 {v(AC + 2 * r)}, 16, {v(src)}")
                a(f"v_and_b32 {v(AC + 2 * r + 1)}, 0xffff0000, {v(src)}")
            else:
                t = 4 + 2 * (r % 2)
                a(f"v_lshlrev_b32 {v(t)}, 16, {v(src)}")
                a(f"v_and_b32 {v(t + 1)}, 0xffff0000, {v(src)}")
                a(f"v_pk_add_f32 {v(AC + 2 * r, 2)}, {v(AC + 2 * r, 2)}, {v(t, 2)}")
    for r in range(4):
        a(cvt(D0 + r, AC + 2 * r))
    fl = ['', 'sc1', 'nt', 'sc0 sc1'][cfg.outfl]
    a(f"buffer_store_dwordx2 {v(D0, 2)}, {v(A0)}, {s(R_OUT, 4)}, 0 offen {fl}")
    a(f"buffer_store_dwordx2 {v(D0 + 2, 2)}, {v(A1)}, {s(R_OUT, 4)}, 0 offen {fl}")
    a(f"s_or_b32 s3, {s(S_H)}, {s(S_LW)}")
    a("s_cmp_eq_u32 s3, 0")
    a("s_cbranch_scc0 L_noep")
    a(f"s_lshl_b32 s3, {s(S_B)}, 7")
    a(f"s_add_u32 s3, s3, {FX}")
    a("v_mov_b32 v4, 0")
    a("s_mov_b64 exec, 1")
    a(f"buffer_store_dwordx2 {v(TG, 2)}, v4, {s(R_F, 4)}, s3 offen")
    a.label("L_noep")
    if cfg.diag:
        a("s_waitcnt vmcnt(0)")
    st.cyc("end")
    st.real("real1")
    st.flush("L")


def generate(cfg):
    a = Asm()
    a.lines.append("; @launch grid=(256,1,1) block=(512,1,1) lds=163840")
    a('.amdgcn_target "amdgcn-amd-amdhsa--gfx950"')
    a(".text")
    a(kernel_header(KN))
    a("s_cmp_ge_u32 s2, 256")
    a("s_cbranch_scc1 L_end")
    a("s_load_dwordx16 s[32:47], s[0:1], 0")
    if cfg.diag:
        a(f"s_memrealtime {s(S_T, 2)}")
        a(f"s_memtime {s(S_T + 2, 2)}")
    a("v_lshrrev_b32 v1, 6, v0")
    a("v_and_b32 v0, 63, v0")
    a(f"v_readfirstlane_b32 {s(S_WAVE)}, v1")
    a(f"s_and_b32 {s(S_G8)}, s2, 7")
    a("s_lshr_b32 s4, s2, 3")
    a(f"s_lshr_b32 {s(S_B)}, s4, 2")
    a(f"s_and_b32 {s(S_HH)}, s4, 3")
    a(f"s_lshl_b32 s3, {s(S_G8)}, 2")
    a(f"s_add_u32 {s(S_H)}, s3, {s(S_HH)}")
    a(f"s_cmp_ge_u32 {s(S_WAVE)}, 4")
    a("s_cbranch_scc1 L_loader")
    if cfg.ipf:
        a("s_getpc_b64 s[62:63]")
        a.label("L_pc")
        a(f"s_sub_u32 s62, s62, L_pc-{KN}")
        a("s_subb_u32 s63, s63, 0")
        a(f"s_mul_i32 s3, {s(S_WAVE)}, 40")
        a("v_min_u32 v7, 39, v0")
        a("v_add_u32 v7, s3, v7")
        a("v_lshlrev_b32 v7, 7, v7")
        a(f"v_min_u32 v7, L_last-{KN}, v7")
        if cfg.ipf & 1:
            a("global_load_dword v14, v7, s[62:63]")
    a("s_branch L_compute")
    a.label("L_loader")
    gen_loader(a, cfg)
    a.label("L_end")
    a("s_endpgm")
    a.label("L_compute")
    gen_compute(a, cfg)
    a('.section .rodata,"a"')
    a(".p2align 6")
    a(kernel_desc(KN))
    return a.text()


if __name__ == "__main__":
    cfg = Cfg()
    out = sys.argv[1]
    for opt in sys.argv[2:]:
        k, val = opt.split("=")
        assert hasattr(cfg, k), k
        setattr(cfg, k, val if k == "only" else int(val))
    t = generate(cfg)
    pr = hazard.check(t) + hazard.check_counters(t)
    for p in pr:
        print(f"HAZARD line {p[0]} -> {p[1]}: need {p[2]} have {p[3]}\n    {p[4]}\n    {p[5]}")
    open(out, "w").write(t)
    print(out, "hazards:", len(pr), "lines:", t.count("\n"))
```

```python
import struct
import sys

from asmlib import Asm, v, s, kernel_header, kernel_desc
import hazard

KN = "standalone__gqa_block_cached__near_ridge_kernel"
OFF_O = 0
OFF_P = 16 << 20
OFF_F = 32 << 20
F1, F2, FX = 0, 65536, 131072
OFF_T = 64 << 20
SLOT = 36864
A_K = 3 * SLOT
A_V = 1 * SLOT
A_Q = 2 * SLOT
A_P = 2 * SLOT
A_M = 163840 - 768
A_TAG = A_M - 8
WO0, WOS = 81920, 20480
OS = 12288
PSZ = 30720
CEXP = 0.07216878364870322 * 1.4426950408889634
TAGC = (0x9E3779B9, 0x7F4A7C15)
SPIN_MAX = 1 << 21


def f32bits(x):
    return struct.unpack("<I", struct.pack("<f", x))[0]


class Cfg:
    diag = 0
    only = ""
    rot = 10
    kpos = 9
    dynred = 1
    outfl = 0
    ipf = 3
    tab = 4
    unsafe = 0
    otr = 1
    ntkv = 3
    lprio = 1
    sent = 0
    smx = 2
    vbp = 2
    fin = 2
    qv = 6
    sv = 1
    wper = 5
    odef = 1
    fw = 2
    dot2 = 0
    tpos = 10
    pst = 0
    pld = 0


S_X, S_K, S_V, S_WQ, S_WO, S_OUT, S_DBG, S_WS = 32, 34, 36, 38, 40, 42, 44, 46
S_B, S_H, S_WAVE, S_G8, S_HH = 28, 29, 30, 31, 48
S_TAG = 60
R_F = 24
S_T = 64


class Stamps:
    def __init__(self, a, cfg):
        self.a, self.on, self.n = a, cfg.diag, 2
        self.fine = cfg.diag > 1
        self.names = ["real0", "cyc0"]
        self.k = 0
        self.only = cfg.only.split(",") if cfg.only else None

    def real(self, name):
        if self.on:
            self.a(f"s_memrealtime {s(S_T + 2 * self.n, 2)}")
            self.names.append(name)
            self.n += 1

    def cyc(self, name, fine=False):
        if self.only and name not in self.only:
            return
        if not self.only and len(name) <= 3 and name[0] in "afB" and name[1:].isdigit() and name != "B0":
            return
        if self.on and (not fine or self.fine or self.only):
            self.a(f"{'s_memrealtime' if self.on > 2 else 's_memtime'} {s(S_T + 2 * self.n, 2)}")
            self.names.append(name)
            self.n += 1

    def alt(self, name, path, fine=False):
        if path == "N":
            return self.cyc(name, fine)
        if not self.on or (self.only and name not in self.only) or (fine and not self.only):
            return
        self.a(f"{'s_memrealtime' if self.on > 2 else 's_memtime'} {s(S_T + 2 * (self.n + self.k), 2)}")
        self.k += 1

    def flush(self, role, vt=4):
        if not self.on:
            return
        a = self.a
        assert self.n <= 19, self.n
        a("s_waitcnt lgkmcnt(0) vmcnt(0)")
        a(f"; STAMPS {role} " + " ".join(self.names))
        a("s_lshl_b32 s3, s2, 3")
        a(f"s_add_u32 s3, s3, {s(S_WAVE)}")
        a("s_lshl_b32 s3, s3, 8")
        a(f"s_add_u32 s3, s3, {OFF_T}")
        a(f"s_add_u32 s4, {s(S_WS)}, s3")
        a(f"s_addc_u32 s5, {s(S_WS + 1)}, 0")
        a("s_mov_b64 exec, 1")
        a(f"v_mov_b32 {v(vt + 2)}, 0")
        for i in range(self.n):
            a(f"v_mov_b32 {v(vt)}, {s(S_T + 2 * i)}")
            a(f"v_mov_b32 {v(vt + 1)}, {s(S_T + 2 * i + 1)}")
            a(f"global_store_dwordx2 {v(vt + 2)}, {v(vt, 2)}, s[4:5] offset:{8 * i}")
            a("s_nop 1")
        a("s_waitcnt vmcnt(0)")


def srd(a, d, base, off_sgpr, size):
    a(f"s_add_u32 {s(d)}, {s(base)}, {off_sgpr}")
    a(f"s_addc_u32 {s(d + 1)}, {s(base + 1)}, 0")
    a(f"s_mov_b32 {s(d + 2)}, {size}")
    a(f"s_mov_b32 {s(d + 3)}, 0x20000")


def dma(a, voff, srd_, soff, base, imm, fl=""):
    a(f"s_add_u32 m0, {base}, {imm}")
    a("s_nop 0")
    a(f"buffer_load_dwordx4 {v(voff)}, {s(srd_, 4)}, {soff} offen {fl} lds")


def mfma(d, a_, b_, c=None):
    cs = v(d, 4) if c is None else str(c)
    return f"v_mfma_f32_16x16x32_bf16 {v(d, 4)}, {v(a_, 4)}, {v(b_, 4)}, {cs}"


def trread(d, addr, off):
    assert 0 <= off < 65536
    return f"ds_read_b64_tr_b16 {v(d, 2)}, {v(addr)} offset:{off}"


def rd128(d, addr, off):
    assert 0 <= off < 65536
    return f"ds_read_b128 {v(d, 4)}, {v(addr)} offset:{off}"


def rd64(d, addr, off):
    assert 0 <= off < 65536
    return f"ds_read_b64 {v(d, 2)}, {v(addr)} offset:{off}"


def cvt(d, t):
    return f"v_cvt_pk_bf16_f32 {v(d)}, {v(t)}, {v(t + 1)}"


def emit(a, lst):
    for x in lst:
        a(x)


def place(main, slots):
    out = list(slots.get(-1, []))
    for i, m in enumerate(main):
        out.append(m)
        out.extend(slots.get(i, []))
    for k in sorted(slots):
        if k >= len(main):
            out.extend(slots[k])
    return out


def spread(fill, start, per=1, step=1, into=None):
    d = into if into is not None else {}
    i, k = start, 0
    while k < len(fill):
        d.setdefault(i, []).extend(fill[k:k + per])
        k += per
        i += step
    return d


def at(d, i, *x):
    d.setdefault(i, []).extend(x)


def lg(n):
    return f"s_waitcnt lgkmcnt({n})"


def mod_small(a, reg, m, times):
    for _ in range(times):
        a(f"s_sub_u32 s4, {reg}, {m}")
        a(f"s_cmp_ge_u32 {reg}, {m}")
        a(f"s_cselect_b32 {reg}, s4, {reg}")


def tile_addrs(a, dst, first, f, lanepart, tmp, extra=None):
    for c in range(4):
        a(f"s_add_u32 s4, {first}, {c}")
        a("s_and_b32 s5, s4, 3")
        a("s_lshr_b32 s4, s4, 2")
        a("s_lshl_b32 s4, s4, 7")
        a(f"v_xor_b32 {v(tmp)}, s5, {v(f)}")
        a(f"v_lshl_add_u32 {v(tmp)}, {v(tmp)}, 5, {v(lanepart)}")
        a(f"v_add_u32 {v(dst + c)}, s4, {v(tmp)}")


def gen_compute(a, cfg):
    st = Stamps(a, cfg)
    R_O, R_P = 8, 12
    ACC, FR, QP, LS, ONES = 16, 88, 160, 196, 208
    AX, AY, AZ, AVo, AVp = 212, 216, 218, 230, 234
    AQW, AQR, AMW, AMR, APW, APR, APW2, APR2, AO, AOW = range(238, 248)
    AW, AB, AP, AP2, TG, ZERO = 248, 250, 251, 252, 254, 15
    VM, VG, VF, T0, T1, T2 = 1, 2, 3, 4, 5, 6
    MX = 8
    S_I, S_J, S_C, S_D, S_CNT, S_SL, S_D2, S_SL2 = 50, 51, 52, 54, 55, 56, 57, 18
    S_K0, S_K1, S_F1, S_F2 = 58, 59, 16, 17

    a(f"s_lshr_b32 {s(S_I)}, {s(S_WAVE)}, 1")
    a(f"s_and_b32 {s(S_J)}, {s(S_WAVE)}, 1")
    a(f"s_mov_b32 {s(S_C)}, {f32bits(CEXP):#x}")
    a(f"s_mov_b32 {s(S_C + 1)}, {f32bits(CEXP):#x}")
    a(f"v_and_b32 {v(VM)}, 15, v0")
    a(f"v_lshrrev_b32 {v(VG)}, 4, v0")
    a(f"v_lshrrev_b32 {v(T0)}, 2, {v(VM)}")
    a(f"v_lshl_add_u32 {v(T1)}, {v(VG)}, 3, {v(T0)}")
    a(f"v_mul_u32_u24 {v(T1)}, 384, {v(T1)}")
    a(f"v_and_b32 {v(T2)}, 3, {v(VM)}")
    a(f"v_lshlrev_b32 v11, 3, {v(T2)}")
    a(f"v_add_u32 {v(T1)}, v11, {v(T1)}")
    a(f"v_and_b32 {v(T2)}, 1, {v(VG)}")
    a(f"v_lshrrev_b32 {v(VF)}, 3, {v(VM)}")
    a(f"v_lshl_or_b32 {v(VF)}, {v(T2)}, 1, {v(VF)}")
    a(f"s_mul_i32 s3, {s(S_I)}, 6")
    tile_addrs(a, AX, "s3", VF, T1, T2)
    a(f"s_mul_i32 s4, {s(S_J)}, 48")
    a(f"v_add_u32 {v(T1)}, s4, {v(VM)}")
    a(f"v_lshlrev_b32 {v(T1)}, 7, {v(T1)}")
    a(f"v_add_u32 {v(T1)}, 24576, {v(T1)}")
    a(f"v_lshrrev_b32 {v(VF)}, 1, {v(VM)}")
    for ks in range(2):
        a(f"v_add_u32 {v(T2)}, {4 * ks}, {v(VG)}")
        a(f"v_xor_b32 {v(T2)}, {v(T2)}, {v(VF)}")
        a(f"v_lshl_add_u32 {v(AY + ks)}, {v(T2)}, 4, {v(T1)}")
    for i in range(72):
        a(f"v_mov_b32 {v(ACC + i)}, 0")
    a(f"s_mul_i32 s4, {s(S_I)}, 48")
    a(f"v_add_u32 {v(T1)}, s4, {v(VM)}")
    a(f"v_mul_u32_u24 {v(T1)}, 384, {v(T1)}")
    a(f"v_and_b32 {v(T2)}, 1, {v(VG)}")
    a(f"v_lshl_add_u32 {v(T1)}, {v(T2)}, 3, {v(T1)}")
    a(f"v_add_u32 {v(T1)}, {A_K}, {v(T1)}")
    a(f"v_lshrrev_b32 {v(T0)}, 1, {v(VG)}")
    a(f"v_xor_b32 {v(T0)}, {v(T0)}, {v(VF)}")
    a(f"v_lshl_add_u32 {v(T1)}, {v(T0)}, 4, {v(T1)}")
    a(f"s_mul_i32 s7, {s(S_I)}, 3")
    for ls in range(6):
        a(f"s_add_u32 s6, s7, {ls}")
        mod_small(a, "s6", 6, 1)
        a("s_and_b32 s5, s6, 1")
        a("s_lshl_b32 s5, s5, 6")
        a("s_lshr_b32 s6, s6, 1")
        a("s_lshl_b32 s6, s6, 7")
        a(f"v_add_u32 {v(T2)}, s6, {v(T1)}")
        a(f"v_xor_b32 {v(AZ + 2 * ls)}, s5, {v(T2)}")
        a(f"v_xor_b32 {v(AZ + 2 * ls + 1)}, 32, {v(AZ + 2 * ls)}")
    a(f"v_lshrrev_b32 {v(T0)}, 2, {v(VM)}")
    a(f"v_lshl_add_u32 {v(T0)}, {v(VG)}, 2, {v(T0)}")
    a(f"v_bfe_u32 {v(VF)}, {v(T0)}, 1, 2")
    a(f"v_mul_u32_u24 {v(T1)}, 384, {v(T0)}")
    a(f"v_add_u32 {v(T1)}, v11, {v(T1)}")
    a(f"s_mul_i32 s6, {s(S_I)}, 18432")
    a(f"s_add_u32 s7, s6, {A_V}")
    a(f"v_add_u32 {v(T1)}, s7, {v(T1)}")
    a(f"s_mul_i32 s3, {s(S_I)}, 6")
    tile_addrs(a, AVo, "s3", VF, T1, T2)
    a("s_lshl_b32 s6, s6, 1")
    a("s_sub_u32 s6, 18432, s6")
    for c in range(4):
        a(f"v_add_u32 {v(AVp + c)}, s6, {v(AVo + c)}")
    a(f"v_mul_u32_u24 {v(T1)}, 320, {v(T0)}")
    a(f"v_add_u32 {v(T1)}, v11, {v(T1)}")
    a(f"v_add_u32 {v(T1)}, {WO0 + WOS}, {v(T1)}")
    a(f"v_and_b32 {v(T0)}, 1, {v(VG)}")
    a(f"s_mul_i32 s3, {s(S_I)}, 5")
    for par in range(2):
        a(f"s_add_u32 s4, s3, {par}")
        a(f"v_xor_b32 {v(T2)}, s4, {v(T0)}")
        a(f"v_lshl_add_u32 {v(AW + par)}, {v(T2)}, 5, {v(T1)}")
    a(f"s_xor_b32 s5, {s(S_WAVE)}, 2")
    a(f"v_lshlrev_b32 {v(T1)}, 4, v0")
    a(f"v_lshlrev_b32 {v(T0)}, 3, v0")
    a(f"v_lshlrev_b32 {v(T2)}, 2, {v(VM)}")
    for wv, (q_, p_, p2, m_) in ((s(S_WAVE), (AQW, APW, APW2, AMW)), ("s5", (AQR, APR, APR2, AMR))):
        a(f"s_mul_i32 s3, {wv}, 9216")
        a(f"s_add_u32 s3, s3, {A_Q}")
        a(f"v_add_u32 {v(q_)}, s3, {v(T1)}")
        a(f"s_mul_i32 s3, {wv}, 4608")
        a(f"s_add_u32 s3, s3, {A_P}")
        a(f"v_add_u32 {v(p_)}, s3, {v(T1)}")
        a(f"v_add_u32 {v(p2)}, s3, {v(T0)}")
        a(f"s_mul_i32 s3, {wv}, 192")
        a(f"s_add_u32 s3, s3, {A_M}")
        a(f"v_add_u32 {v(m_)}, s3, {v(T2)}")
    a(f"s_mul_i32 s3, {s(S_I)}, 18")
    a(f"s_mul_i32 s4, {s(S_J)}, 3")
    a("s_add_u32 s3, s3, s4")
    a("s_lshl_b32 s3, s3, 10")
    a(f"v_add_u32 {v(AO)}, s3, {v(T1)}")
    a(f"s_mul_i32 s3, {s(S_J)}, 3072")
    a(f"v_add_u32 {v(AB)}, s3, {v(T1)}")
    a(f"v_lshrrev_b32 v12, 2, {v(VM)}")
    a(f"v_lshl_add_u32 v12, v12, 2, {v(VG)}")
    a(f"v_and_b32 v13, 3, {v(VM)}")
    a("v_lshl_add_u32 v12, v12, 2, v13")
    a(f"s_mul_i32 s3, {s(S_WAVE)}, 7680")
    a(f"v_lshl_add_u32 {v(AP)}, v12, 4, s3")
    a("s_add_u32 s3, s3, 2048")
    a(f"v_lshl_add_u32 {v(AP2)}, v12, 3, s3")
    a(f"v_mov_b32 {v(AOW)}, {A_TAG}")
    a(f"v_mov_b32 {v(ZERO)}, 0")
    for i in range(4):
        a(f"v_mov_b32 {v(ONES + i)}, 0x3f803f80")
    a(f"s_lshl_b32 s3, {s(S_B)}, 5")
    a(f"s_add_u32 s3, s3, {s(S_H)}")
    a("s_lshl_b32 s4, s3, 2")
    a(f"s_add_u32 s4, s4, {s(S_WAVE)}")
    a(f"s_lshl_b32 {s(S_F1)}, s4, 3")
    a(f"s_lshl_b32 s4, {s(S_B)}, 2")
    a(f"s_add_u32 s4, s4, {s(S_HH)}")
    a("s_lshl_b32 s6, s4, 1")
    a(f"s_add_u32 s6, s6, {s(S_J)}")
    a("s_lshl_b32 s6, s6, 1")
    a(f"s_add_u32 s6, s6, {s(S_I)}")
    a("s_lshl_b32 s6, s6, 3")
    a(f"s_add_u32 s6, s6, {s(S_G8)}")
    a("s_lshl_b32 s6, s6, 3")
    a(f"s_add_u32 {s(S_F2)}, s6, {F2}")
    a("s_lshl_b32 s4, s4, 3")
    a(f"s_add_u32 s4, s4, {s(S_G8)}")
    a(f"s_mul_i32 s4, s4, {PSZ}")
    a(f"s_add_u32 s4, s4, {OFF_P}")
    a("s_mul_i32 s3, s3, 36864")
    a("s_waitcnt lgkmcnt(0)")
    srd(a, R_O, S_WS, "s3", 36864)
    srd(a, R_P, S_WS, "s4", PSZ)
    srd(a, R_F, S_WS, f"{OFF_F}", 262144)

    def fa(n, dt):
        return FR + 36 * n + 4 * dt

    def fb(n, qt):
        return FR + 36 * n + 24 + 4 * qt

    def p1_reads(n, ks):
        def A(dt):
            return [trread(fa(n, dt) + 2 * hh, AX + dt % 4, 384 * (32 * ks + 4 * hh) + 128 * (dt // 4)) for hh in range(2)]

        def B(qt):
            return [rd128(fb(n, qt), AY + ks, 2048 * qt)]
        r = B(0) + A(0) + B(1) + B(2)
        for dt in range(1, 6):
            r += A(dt)
        return r

    def qtile(dt, qt):
        return ACC + 4 * (3 * dt + qt)

    def p1_mfmas(n):
        return [mfma(qtile(dt, qt), fa(n, dt), fb(n, qt)) for dt in range(6) for qt in range(3)]

    adv = [f"v_add_u32 {v(AX + c)}, {s(S_D)}, {v(AX + c)}" for c in range(4)] + \
          [f"v_add_u32 {v(AY + c)}, {s(S_D)}, {v(AY + c)}" for c in range(2)]
    a(f"s_mov_b32 {s(S_SL)}, 0")
    a(f"s_mov_b32 {s(S_CNT)}, 0")
    a(f"s_mov_b32 {s(S_K0)}, {(-2 * SLOT) & 0xffffffff:#x}")
    a(f"s_mov_b32 {s(S_K1)}, {SLOT}")
    st.cyc("setup")
    a("s_barrier")
    st.cyc("b0")
    emit(a, p1_reads(0, 0))
    a(lg(0))
    a.label("L_p1")
    sl = spread(p1_reads(1, 1), 0, 1)
    at(sl, 0, f"s_add_u32 {s(S_SL)}, {s(S_SL)}, 1")
    at(sl, 1, f"s_cmp_eq_u32 {s(S_SL)}, 3")
    at(sl, 2, f"s_cselect_b32 {s(S_D)}, {s(S_K0)}, {s(S_K1)}")
    at(sl, 3, f"s_cselect_b32 {s(S_SL)}, 0, {s(S_SL)}")
    spread(adv, 15, 2, into=sl)
    emit(a, place(p1_mfmas(0), sl))
    a(lg(0))
    a("s_barrier")
    sl = spread(p1_reads(0, 0), 0, 1)
    at(sl, 15, f"s_add_u32 {s(S_CNT)}, {s(S_CNT)}, 1")
    at(sl, 16, f"s_cmp_lt_u32 {s(S_CNT)}, 9")
    emit(a, place(p1_mfmas(1), sl))
    a(lg(0))
    a("s_cbranch_scc1 L_p1")
    emit(a, place(p1_mfmas(0), spread(p1_reads(1, 1), 0, 1)))
    if cfg.ipf & 2:
        a("global_load_dword v14, v7, s[62:63]")
    a(lg(0))
    a("s_barrier")
    st.cyc("b10")
    a.c("SEG q")

    def kf(buf, a_):
        return FR + 12 * buf + 4 * a_

    def k_reads(ls, buf):
        return [rd64(kf(buf, a_) + 2 * hh, AZ + 2 * ls + hh, 6144 * a_) for a_ in range(3) for hh in range(2)]

    def qpack(ls):
        r = []
        for qt in range(3):
            for dt in (2 * ls, 2 * ls + 1):
                d = QP + 4 * (3 * ls + qt) + 2 * (dt % 2)
                r += [cvt(d, qtile(dt, qt)), cvt(d + 1, qtile(dt, qt) + 2)]
        return r

    def qwrite(f):
        return f"ds_write_b128 {v(AQW)}, {v(QP + 4 * f, 4)} offset:{1024 * f}"

    def stile(a_, qt):
        return ACC + 4 * (3 * a_ + qt)

    def s_mfmas(qbase, ls3, buf, first=False, qmajor=False):
        idx = [(a_, qt) for qt in range(3) for a_ in range(3)] if qmajor else [(a_, qt) for a_ in range(3) for qt in range(3)]
        return [mfma(stile(a_, qt), kf(buf, a_), qbase + 4 * (3 * ls3 + qt), 0 if first else None) for a_, qt in idx]

    q0, q1, q2 = qpack(0), qpack(1), qpack(2)
    if cfg.qv == 0:
        sl = spread(k_reads(0, 0) + k_reads(1, 1) + k_reads(2, 2), 0, 2, into={})
        spread(q0, 9, 2, into=sl)
        at(sl, 11, qwrite(0))
        at(sl, 14, qwrite(1))
        spread(q1[:4], 15, 2, into=sl)
        at(sl, 17, qwrite(2))
        emit(a, place(p1_mfmas(1), sl))
        emit(a, q1[4:8] + [qwrite(3)] + q1[8:])
        a(lg(4))
        sl = {}
        at(sl, 0, qwrite(4))
        spread(q2, 1, 2, into=sl)
        at(sl, 3, qwrite(5))
        at(sl, 7, qwrite(6))
        at(sl, 10, qwrite(7))
        at(sl, 13, qwrite(8))
        spread(k_reads(3, 0), 14, 2, into=sl)
        emit(a, place(s_mfmas(QP, 0, 0, True) + s_mfmas(QP, 1, 1), sl))
    else:
        order = [(dt, qt) for ls in range(3) for qt in range(3) for dt in (2 * ls, 2 * ls + 1)]
        mm = [mfma(qtile(dt, qt), fa(1, dt), fb(1, qt)) for dt, qt in order]
        mm += s_mfmas(QP, 0, 0, True) + s_mfmas(QP, 1, 1)
        packs = q0 + q1 + q2
        sl = {}
        if cfg.qv == 1:
            spread(k_reads(0, 0)[:5], 0, 1, into=sl)
            for f in range(9):
                g0 = 5 + 2 * f + (f >= 6) * 2
                spread(packs[4 * f:4 * f + 4], g0, 2, into=sl)
            wr = [7, 10, 13, 16, 19, 22, 25, 28, 31]
            for f in range(9):
                at(sl, wr[f], qwrite(f))
            at(sl, 8, k_reads(0, 0)[5])
            for k, g_ in enumerate([9, 11, 12, 14, 15, 17]):
                at(sl, g_, k_reads(1, 1)[k])
            at(sl, 17, lg(7))
            at(sl, 26, lg(3))
            spread(k_reads(2, 2), 27, 1, into=sl)
            spread(k_reads(3, 0), 29, 1, into=sl)
        elif cfg.qv == 2:
            spread(k_reads(0, 0) + k_reads(1, 1)[:4], 0, 2, into=sl)
            for f in range(9):
                g0 = 5 + 2 * f + (f >= 6) * 2
                spread(packs[4 * f:4 * f + 4], g0, 2, into=sl)
            wr = [7, 10, 13, 16, 19, 22, 25, 28, 31]
            for f in range(9):
                at(sl, wr[f], qwrite(f))
            at(sl, 8, k_reads(1, 1)[4])
            at(sl, 9, k_reads(1, 1)[5])
            at(sl, 17, lg(3))
            spread(k_reads(2, 2), 26, 1, into=sl)
            spread(k_reads(3, 0), 29, 1, into=sl)
        elif cfg.qv in (3, 4):
            kr = k_reads(0, 0) + k_reads(1, 1) + k_reads(2, 2)
            spread(kr[:5], 0, 1, into=sl)
            rest = kr[5:]
            for f in range(9):
                g0 = 5 + 3 * f
                c4 = packs[4 * f:4 * f + 4]
                if cfg.qv == 3:
                    at(sl, g0, rest.pop(0), c4[0], c4[1])
                    at(sl, g0 + 1, c4[2], c4[3])
                else:
                    at(sl, g0, rest.pop(0), c4[0])
                    at(sl, g0 + 1, c4[1], c4[2], c4[3])
                at(sl, g0 + 2, qwrite(f))
            spread(rest, 32, 1, into=sl)
            sl[17].append(lg(8))
            sl[26].append(lg(2))
        elif cfg.qv in (5, 6, 7):
            kr = k_reads(0, 0) + k_reads(1, 1) + k_reads(2, 2)
            spread(kr[:4], 0, 1, into=sl)
            rest = kr[4:]
            start = 4 if cfg.qv == 7 else 5
            for f in range(9):
                g0 = start + 3 * f
                c4 = packs[4 * f:4 * f + 4]
                at(sl, g0, *(rest[:1]), c4[0], c4[1])
                at(sl, g0 + 1, *(rest[1:2]), c4[2], c4[3])
                rest = rest[2:]
                if cfg.qv == 6:
                    d = QP + 4 * f
                    at(sl, g0 + 2, f"ds_write_b64 {v(AQW)}, {v(d, 2)} offset:{1024 * f}",
                       f"ds_write_b64 {v(AQW)}, {v(d + 2, 2)} offset:{1024 * f + 8}")
                else:
                    at(sl, g0 + 2, qwrite(f))
            sl[17].append(lg(4))
            sl[26].append(lg(2))
        emit(a, place(mm, sl))
    st.cyc("a3", True)
    a(lg(0))
    a("s_barrier")
    st.cyc("b11")
    a.c("SEG s")
    QR = FR + 36
    rds = [rd128(QR + 4 * f, AQR, 1024 * f) for f in range(9)]
    if cfg.sv == 0:
        sl = spread(rds[:6], -1, 1)
        spread(k_reads(4, 1), 5, 2, into=sl)
        at(sl, 8, lg(9))
        emit(a, place(s_mfmas(QP, 2, 2), sl))
        st.cyc("a4", True)
        sl = spread(rds[6:], 0, 1)
        spread(k_reads(5, 2), 3, 1, into=sl)
        at(sl, 8, lg(9))
        emit(a, place(s_mfmas(QR, 0, 0), sl))
        emit(a, s_mfmas(QR, 1, 1))
        a(lg(0))
    else:
        sl = spread(rds[:3], -1, 1)
        spread(k_reads(3, 0), 2, 2, into=sl)
        spread(rds[3:6], 5, 1, into=sl)
        at(sl, 8, lg(3))
        spread(k_reads(4, 1), 8, 2, into=sl)
        spread(rds[6:], 11, 1, into=sl)
        spread(k_reads(5, 2), 14, 2, into=sl)
        at(sl, 17, lg(9))
        emit(a, place(s_mfmas(QP, 2, 2) + s_mfmas(QR, 0, 0), sl))

    def xs(qt):
        return [stile(a_, qt) + r for a_ in range(3) for r in range(4)]

    def maxchain(qt):
        x = xs(qt)
        r = [f"v_max3_f32 {v(MX + qt)}, {v(x[0])}, {v(x[1])}, {v(x[2])}"]
        for k in range(3, 11, 2):
            r.append(f"v_max3_f32 {v(MX + qt)}, {v(MX + qt)}, {v(x[k])}, {v(x[k + 1])}")
        r.append(f"v_max_f32 {v(MX + qt)}, {v(MX + qt)}, {v(x[11])}")
        return r
    m0, m1, m2 = maxchain(0), maxchain(1), maxchain(2)
    if cfg.sv == 0:
        emit(a, s_mfmas(QR, 2, 2, qmajor=True))
        st.cyc("sdone", True)
        a("s_nop 0")
        emit(a, m0 + m1 + m2)
    else:
        s4, s5 = s_mfmas(QR, 1, 1, qmajor=True), s_mfmas(QR, 2, 2, qmajor=True)
        mm = sum([s4[3 * qt:3 * qt + 3] + s5[3 * qt:3 * qt + 3] for qt in range(3)], [])
        sl = {}
        at(sl, 2, lg(0))
        spread(m0, 11, 2, into=sl)
        spread(m1[:2], 17, 2, into=sl)
        emit(a, place(mm, sl))
        st.cyc("sdone", True)
        emit(a, m1[2:] + ["s_nop 1"] + m2)
    for op in ("v_permlane16_swap_b32", "v_permlane32_swap_b32"):
        for qt in range(3):
            a(f"v_mov_b32 {v(MX + 3 + qt)}, {v(MX + qt)}")
        for qt in range(3):
            a(f"{op} {v(MX + 3 + qt)}, {v(MX + qt)}")
        for qt in range(3):
            a(f"v_max_f32 {v(MX + qt)}, {v(MX + qt)}, {v(MX + 3 + qt)}")
    for qt in range(3):
        a(f"ds_write_b32 {v(AMW)}, {v(MX + qt)} offset:{64 * qt}")
    st.cyc("a6", True)
    a(lg(0))
    a("s_barrier")
    st.cyc("b12")
    a.c("SEG sm")

    PP, PC = FR, FR + 24
    VQ = [[QP + 4 * dt for dt in range(6)], [FR + 36 + 4 * dt for dt in range(6)], [148, 152, 156, 184, 188, 192]]

    def v_reads(step):
        r = []
        for dt in range(6):
            for hh in range(2):
                if step == 0:
                    ad, tile = AVo, hh
                elif step == 1:
                    ad, tile = (AVo, 2) if hh == 0 else (AVp, 2)
                else:
                    ad, tile = AVp, hh
                r.append(trread(VQ[step][dt] + 2 * hh, ad + dt % 4, 6144 * tile + 128 * (dt // 4)))
        return r
    NM = 2
    for qt in range(3):
        a(f"ds_read_b32 {v(MX + 3 + qt)}, {v(AMR)} offset:{64 * qt}")
    emit(a, v_reads(0))
    if cfg.vbp == 2:
        emit(a, v_reads(1))
    a((lg(15) if cfg.vbp == 2 else lg(12)) if not st.on else lg(0))
    a(f"ds_read_b64 {v(TG, 2)}, {v(AOW)}")
    for qt in range(3):
        a(f"v_max_f32 {v(MX + qt)}, {v(MX + qt)}, {v(MX + 3 + qt)}")
    for qt in range(3):
        a(f"v_mul_f32 {v(NM + 2 * qt)}, {s(S_C)}, {v(MX + qt)}")
    for qt in range(3):
        a(f"v_mov_b32 {v(NM + 2 * qt + 1)}, {v(NM + 2 * qt)}")

    def softmax(qt):
        x = xs(qt)
        e = [f"v_exp_f32 {v(y)}, {v(y)}" for y in x]
        c = [cvt(PP + 8 * qt + k, x[2 * k]) for k in range(6)]
        if cfg.smx == 0 or (cfg.smx == 2 and qt == 0):
            f = [[f"v_pk_fma_f32 {v(x[2 * k], 2)}, {v(x[2 * k], 2)}, {s(S_C, 2)}, {v(NM + 2 * qt, 2)} neg_lo:[0,0,1] neg_hi:[0,0,1]"] for k in range(6)]
        else:
            f = [[f"v_fma_f32 {v(y)}, {v(y)}, {s(S_C)}, -{v(NM + 2 * qt)}" for y in x[2 * k:2 * k + 2]] for k in range(6)]
        r = f[0] + f[1]
        for k in range(6):
            nx = f[k + 2] if k + 2 < 6 else []
            r += [e[2 * k]] + nx[:1] + [e[2 * k + 1]] + nx[1:]
            if k >= 1:
                r.append(c[k - 1])
        r += ["s_nop 0", c[5]]
        return r

    def pwrite(qt):
        return [f"ds_write_b128 {v(APW)}, {v(PP + 8 * qt, 4)} offset:{1536 * qt}",
                f"ds_write_b64 {v(APW2)}, {v(PP + 8 * qt + 4, 2)} offset:{1536 * qt + 1024}"]
    OT = {}
    free = [ACC + 36 + 4 * k for k in range(9)]
    for qt in range(3):
        regs = free[3 * qt:3 * qt + 3] + [stile(a_, qt) for a_ in range(3)]
        for dt in range(6):
            OT[(dt, qt)] = regs[dt]
    pf = [lambda qt: PP + 8 * qt, lambda qt: PP + 8 * qt + 4, lambda qt: PC + 4 * qt]

    def pv(step, qt):
        first = step == 0
        r = [mfma(OT[(dt, qt)], VQ[step][dt], pf[step](qt), 0 if first else None) for dt in range(6)]
        sm = [mfma(LS + 4 * qt, ONES, pf[step](qt), 0 if first else None)]
        return sm + r if step == 2 else r + sm

    def weave(vals, mm, first=3, per=3):
        out, k = [], 0
        for i, m in enumerate(mm):
            n = first if i == 0 else per
            out += vals[k:k + n]
            k += n
            out.append(m)
        return out + vals[k:]
    st.cyc("a7", True)
    vb = v_reads(1) if cfg.vbp == 0 else []
    s0 = softmax(0)
    out = []
    for k, x in enumerate(s0):
        out.append(x)
        if k % 2 == 1 and vb:
            out.append(vb.pop(0))
    emit(a, out + vb)
    emit(a, pwrite(0))
    a(lg(14) if cfg.vbp == 0 else lg(2))
    st.cyc("a8", True)
    emit(a, weave(softmax(1), pv(0, 0), per=cfg.wper))
    emit(a, pwrite(1))
    st.cyc("a9", True)
    emit(a, weave(softmax(2), pv(0, 1), per=cfg.wper))
    emit(a, pwrite(2))
    st.cyc("a10", True)
    a(lg(0))
    a("s_barrier")
    st.cyc("b13")
    a.c("SEG pv")
    prd = [rd64(PP + 8 * qt + 6, APR2, 1536 * qt + 1024) for qt in range(3)]
    prc = [rd128(PC + 4 * qt, APR, 1536 * qt) for qt in range(3)]
    vc = v_reads(2)
    if cfg.vbp in (0, 2):
        sl = spread(prd + prc + vc[:2], -1, 1)
        at(sl, 6, lg(5))
        emit(a, place(pv(0, 2), sl))
        sl = spread(vc[2:], 0, 1)
        at(sl, 13, lg(0))
        emit(a, place(pv(1, 0) + pv(1, 1), sl))
    else:
        emit(a, place(pv(0, 2), spread(prd + v_reads(1), -1, 2)))
        a(lg(0))
        sl = spread(prc + vc[:11], 0, 1)
        at(sl, 13, vc[11], lg(0))
        emit(a, place(pv(1, 0) + pv(1, 1), sl))
    st.cyc("pvB", True)
    OPQ = [160, 164, 168, 172, 176, 180, 212, 216, 220]

    def finish(qt):
        r = [f"v_rcp_f32 {v(MX + 2 * qt)}, {v(LS + 4 * qt)}", "s_nop 0",
             f"v_mov_b32 {v(MX + 2 * qt + 1)}, {v(MX + 2 * qt)}"]
        for ls in range(3):
            d = OPQ[3 * ls + qt]
            for half in range(2):
                t = OT[(2 * ls + half, qt)]
                if cfg.fin == 0 or (cfg.fin == 2 and qt == 2):
                    r.append(f"v_pk_mul_f32 {v(t, 2)}, {v(t, 2)}, {v(MX + 2 * qt, 2)}")
                    r.append(f"v_pk_mul_f32 {v(t + 2, 2)}, {v(t + 2, 2)}, {v(MX + 2 * qt, 2)}")
                else:
                    r += [f"v_mul_f32 {v(t + k)}, {v(MX + 2 * qt)}, {v(t + k)}" for k in range(4)]
            for half in range(2):
                t = OT[(2 * ls + half, qt)]
                r += [cvt(d + 2 * half, t), cvt(d + 2 * half + 1, t + 2)]
            off = (ls * 6 + qt) * 1024
            r.append(f"s_mov_b32 s3, {off}")
            r.append(f"buffer_store_dwordx4 {v(d, 4)}, {v(AO)}, {s(R_O, 4)}, s3 offen {'' if cfg.unsafe in (1, 2) else 'sc1'}")
            if not cfg.odef:
                r.append(f"ds_write_b128 {v(AO)}, {v(d, 4)} offset:{off}")
        return r

    def gaps(f, per):
        out, cur = [], []
        for x in f:
            if x.startswith("s_mov"):
                if cur:
                    out.append(cur)
                cur = [x]
            elif x.startswith(("buffer_", "ds_")):
                out.append(cur + [x])
                cur = []
            else:
                cur.append(x)
                if len(cur) == per:
                    out.append(cur)
                    cur = []
        return out + ([cur] if cur else [])

    def weave2(mm, f, skip, per):
        g = gaps(f, per)
        out = []
        for i, m in enumerate(mm):
            out.append(m)
            if i >= skip and g:
                out += g.pop(0)
        return out + sum(g, [])
    emit(a, pv(2, 0))
    f0, f1, f2 = finish(0), finish(1), finish(2)
    mm = pv(1, 2) + pv(2, 1)
    if cfg.fw == 0:
        emit(a, [mm[0]] + weave(["s_nop 0"] + f0, mm[1:], first=1, per=2))
    else:
        emit(a, weave2(mm, f0, 1, cfg.fw))
    st.cyc("f0", True)
    mm = pv(2, 2)
    if cfg.fw == 0:
        emit(a, [mm[0], mm[1]] + weave(f1, mm[2:], first=0, per=2))
    else:
        emit(a, weave2(mm, f1, 0, cfg.fw))
    st.cyc("f1", True)
    emit(a, f2)
    a.c("SEG end")
    st.cyc("ostore")
    a(lg(0))
    a("s_barrier")

    A4 = ACC
    if cfg.odef:
        for qt in range(3):
            for ls in range(3):
                a(f"ds_write_b128 {v(AO)}, {v(OPQ[3 * ls + qt], 4)} offset:{(ls * 6 + qt) * 1024}")
    for i in range(60):
        a(f"v_mov_b32 {v(A4 + i)}, 0")
    a(f"s_mov_b32 {s(S_K0)}, {(-3 * WOS) & 0xffffffff:#x}")
    a(f"s_mov_b32 {s(S_K1)}, {WOS}")
    a(f"s_mov_b32 s6, {(-5 * OS) & 0xffffffff:#x}")
    a(f"s_mov_b32 s7, {OS}")
    a(f"s_mov_b32 {s(S_SL)}, 1")
    a(f"s_mov_b32 {s(S_SL2)}, 0")
    a(f"s_mov_b32 {s(S_CNT)}, 0")
    a("s_waitcnt vmcnt(0)")
    a("s_mov_b64 exec, 1")
    a(f"buffer_store_dwordx2 {v(TG, 2)}, {v(ZERO)}, {s(R_F, 4)}, {s(S_F1)} offen {'' if cfg.unsafe in (1, 2) else 'sc1'}")
    a("s_mov_b64 exec, -1")
    st.cyc("flag1")

    def ga(n, tt):
        return FR + 32 * n + 4 * tt

    def gb(n, qt):
        return FR + 32 * n + 20 + 4 * qt

    def p4_reads(n, ks):
        def A(tt):
            return [trread(ga(n, tt) + 2 * hh, AW + tt % 2, 320 * (32 * ks + 16 * hh) + 64 * (tt // 2)) for hh in range(2)]

        def B(qt):
            return [rd128(gb(n, qt), AB, 6144 * ks + 1024 * qt)]
        r = B(0) + A(0) + B(1) + B(2)
        for tt in range(1, 5):
            r += A(tt)
        return r

    def p4_mfmas(n):
        return [mfma(A4 + 4 * (3 * tt + qt), ga(n, tt), gb(n, qt)) for tt in range(5) for qt in range(3)]
    adv4 = [f"v_add_u32 {v(AW + c)}, {s(S_D)}, {v(AW + c)}" for c in range(2)] + [f"v_add_u32 {v(AB)}, {s(S_D2)}, {v(AB)}"]
    a(lg(0))
    a("s_barrier")
    st.cyc("B0")
    emit(a, p4_reads(0, 0))
    a(lg(0))
    a.label("L_p4")
    sl = spread(p4_reads(1, 1), 0, 1)
    sc = [f"s_add_u32 {s(S_SL)}, {s(S_SL)}, 1", f"s_cmp_eq_u32 {s(S_SL)}, 4",
          f"s_cselect_b32 {s(S_D)}, {s(S_K0)}, {s(S_K1)}", f"s_cselect_b32 {s(S_SL)}, 0, {s(S_SL)}",
          f"s_add_u32 {s(S_SL2)}, {s(S_SL2)}, 1", f"s_cmp_eq_u32 {s(S_SL2)}, 6",
          f"s_cselect_b32 {s(S_D2)}, s6, s7", f"s_cselect_b32 {s(S_SL2)}, 0, {s(S_SL2)}"]
    spread(sc, 0, 1, into=sl)
    spread(adv4, 13, 2, into=sl)
    at(sl, 12, f"s_cmp_eq_u32 {s(S_CNT)}, 2")
    emit(a, place(p4_mfmas(0), sl))
    a(lg(0))
    a("s_cbranch_scc0 L_p4bar")
    st.cyc("own")
    a("s_barrier")
    a.label("L_p4bar")
    a("s_barrier")
    sl = spread(p4_reads(0, 0), 0, 1)
    at(sl, 12, f"s_add_u32 {s(S_CNT)}, {s(S_CNT)}, 1")
    at(sl, 13, f"s_cmp_lt_u32 {s(S_CNT)}, 11")
    emit(a, place(p4_mfmas(1), sl))
    a(lg(0))
    a("s_cbranch_scc1 L_p4")
    st.cyc("p4loop")
    emit(a, place(p4_mfmas(0), spread(p4_reads(1, 1), 0, 1)))
    a(lg(0))
    PK = QP

    def tile(tt, qt):
        return A4 + 4 * (3 * tt + qt)
    ep = []
    for pb in range(2):
        for qt in range(3):
            d = PK + 4 * (3 * pb + qt)
            t0, t1 = tile(2 * pb, qt), tile(2 * pb + 1, qt)
            ep.append([cvt(d, t0), cvt(d + 1, t0 + 2), cvt(d + 2, t1), cvt(d + 3, t1 + 2),
                       f"s_mov_b32 s3, {2560 * qt + 1024 * pb}",
                       f"buffer_store_dwordx4 {v(d, 4)}, {v(AP)}, {s(R_P, 4)}, s3 offen sc1"])
    for qt in range(3):
        d = PK + 24 + 2 * qt
        ep.append([cvt(d, tile(4, qt)), cvt(d + 1, tile(4, qt) + 2), f"s_mov_b32 s3, {2560 * qt}",
                   f"buffer_store_dwordx2 {v(d, 2)}, {v(AP2)}, {s(R_P, 4)}, s3 offen sc1"])
    flat = sum(ep, [])
    emit(a, place(p4_mfmas(1), spread(flat[:12], 9, 2)))
    emit(a, flat[12:])
    st.cyc("pstore")
    if not cfg.sent:
        a("s_waitcnt vmcnt(0)")
    elif cfg.sent > 1:
        a(f"s_waitcnt vmcnt({cfg.sent})")
    a("s_mov_b64 exec, 1")
    a(f"buffer_store_dwordx2 {v(TG, 2)}, {v(ZERO)}, {s(R_F, 4)}, {s(S_F2)} offen sc1")
    st.cyc("flag2")
    st.real("real1")
    st.flush("C")
    a.label("L_last")
    a("s_endpgm")


def gen_loader(a, cfg):
    st = Stamps(a, cfg)
    R_X, R_WQ, R_K, R_V, R_WO = 8, 12, 16, 20, 56
    R_OI, R_PI, R_OUT = 12, 16, 20
    S_LW, S_SW, S_SX, S_LDS, S_N, S_KK, S_PK = 50, 51, 52, 53, 54, 55, 49
    S_MW, S_MX, S_LDO = 62, 63, 7
    OW, OX, OK_, OV, OWO, OO = 16, 22, 25, 34, 43, 48
    RRc, UUc = 52, 55
    AT, AF1, AF2, TG, PT = 58, 59, 60, 62, 64
    A0, A1, RT, JK, AT2 = 66, 67, 68, 74, 75
    T0, T1, T2 = 4, 5, 6

    if cfg.lprio:
        a("s_setprio 3")
    if cfg.only and "k0" in st.only:
        a("s_waitcnt lgkmcnt(0)")
        st.cyc("k0")
    a(f"s_sub_u32 {s(S_LW)}, {s(S_WAVE)}, 4")
    for c in range(3):
        a(f"v_add_u32 {v(T0)}, {64 * c}, v0")
        a(f"v_mul_u32_u24 {v(T1)}, 2731, {v(T0)}")
        a(f"v_lshrrev_b32 {v(RRc + c)}, 16, {v(T1)}")
        a(f"v_mul_u32_u24 {v(T1)}, 24, {v(RRc + c)}")
        a(f"v_sub_u32 {v(UUc + c)}, {v(T0)}, {v(T1)}")
    a(f"s_mul_i32 s3, {s(S_LW)}, 3")
    a(f"v_lshrrev_b32 {v(T2)}, 4, v0")
    a("v_and_b32 v7, 7, v0")
    a("v_lshrrev_b32 v8, 3, v0")
    for c in range(3):
        a(f"s_add_u32 s4, s3, {c}")
        a("s_lshl_b32 s6, s4, 3")
        a("s_and_b32 s4, s4, 1")
        a("s_lshl_b32 s4, s4, 2")
        a(f"v_or_b32 {v(T0)}, s4, {v(T2)}")
        a(f"v_xor_b32 {v(T0)}, {v(T0)}, v7")
        a(f"v_add_u32 {v(T1)}, s6, v8")
        a(f"v_mul_u32_u24 {v(T1)}, 1280, {v(T1)}")
        a(f"v_lshl_add_u32 {v(OX + c)}, {v(T0)}, 4, {v(T1)}")
    a(f"s_lshl_b32 s3, {s(S_LW)}, 4")
    for c in range(3):
        a(f"v_bfe_u32 {v(T0)}, {v(RRc + c)}, 1, 1")
        a(f"v_lshlrev_b32 {v(T0)}, 1, {v(T0)}")
        a(f"v_xor_b32 {v(T0)}, {v(T0)}, {v(UUc + c)}")
        a(f"v_add_u32 {v(T1)}, s3, {v(RRc + c)}")
        a(f"v_mul_u32_u24 {v(T1)}, 12288, {v(T1)}")
        a(f"v_lshl_add_u32 {v(OW + c)}, {v(T0)}, 4, {v(T1)}")
        a(f"v_xor_b32 {v(T0)}, 64, {v(OW + c)}")
        a(f"v_add_u32 {v(OW + 3 + c)}, {8 * 12288}, {v(T0)}")
    a(f"s_mul_i32 {s(S_MW)}, {s(S_LW)}, 6144")
    a(f"s_mul_i32 {s(S_MX)}, {s(S_LW)}, 3072")
    a(f"s_add_u32 {s(S_MX)}, {s(S_MX)}, 24576")
    fb = {8: [0, 2, 4, 6, 8, 0, 2, 4], 9: [0, 5, 0, 5, 0, 5, 0, 5], 10: [0, 3, 5, 8, 0, 3, 5, 8],
          11: [0, 3, 7, 0, 3, 7, 0, 3]}[cfg.rot]
    word = sum(x << (4 * i) for i, x in enumerate(fb))
    a(f"s_lshl_b32 s3, {s(S_B)}, 2")
    a(f"s_lshr_b32 s3, {word:#x}, s3")
    a("s_and_b32 s3, s3, 15")
    a(f"s_lshl_b32 s4, {s(S_HH)}, 2")
    a("s_lshr_b32 s4, 0x8530, s4")
    a("s_and_b32 s4, s4, 15")
    a("s_add_u32 s3, s3, s4")
    a(f"s_add_u32 {s(S_KK)}, s3, {s(S_G8)}")
    mod_small(a, s(S_KK), 10, 2)
    a(f"s_mov_b32 {s(S_LDS)}, 0")
    a(f"s_mul_i32 s3, {s(S_B)}, 122880")
    a(f"s_mul_i32 s5, {s(S_H)}, 384")
    a("s_sub_u32 s4, 7864320, s5")
    st.cyc("pre", True) if cfg.only else None
    a("s_waitcnt lgkmcnt(0)")
    st.cyc("karg", True)
    srd(a, R_X, S_X, "s3", 122880)
    srd(a, R_WQ, S_WQ, "s5", "s4")

    def stage_body():
        a(f"s_mul_i32 {s(S_SW)}, {s(S_KK)}, {64 * 12288}")
        a(f"s_lshl_b32 {s(S_SX)}, {s(S_KK)}, 7")
        a(f"s_add_u32 s3, {s(S_LDS)}, {s(S_MW)}")
        a(f"s_add_u32 s4, {s(S_LDS)}, {s(S_MX)}")
        for c in range(3):
            dma(a, OX + c, R_X, s(S_SX), "s4", 1024 * c)
        for p in range(6):
            dma(a, OW + p, R_WQ, s(S_SW), "s3", 1024 * p, "nt" if cfg.ntkv & 8 else "")
        a(f"s_add_u32 {s(S_KK)}, {s(S_KK)}, 1")
        a(f"s_cmp_eq_u32 {s(S_KK)}, 10")
        a(f"s_cselect_b32 {s(S_KK)}, 0, {s(S_KK)}")
        a(f"s_add_u32 {s(S_LDS)}, {s(S_LDS)}, {SLOT}")
        a(f"s_cmp_eq_u32 {s(S_LDS)}, {3 * SLOT}")
        a(f"s_cselect_b32 {s(S_LDS)}, 0, {s(S_LDS)}")

    def call(lbl):
        a(f"s_call_b64 s[44:45], {lbl}")
    stage_body()
    if cfg.lprio:
        a("s_setprio 0")
    st.cyc("issued")
    a(f"s_lshl_b32 s3, {s(S_B)}, 7")
    a(f"s_add_u32 s3, s3, {OFF_F + FX}")
    a(f"s_add_u32 s4, {s(S_WS)}, s3")
    a(f"s_addc_u32 s5, {s(S_WS + 1)}, 0")
    a(f"s_load_dwordx2 {s(S_TAG, 2)}, s[4:5], 0")
    if cfg.kpos >= 9:
        table = {9: [1, 2, 3, 4, 5, 6, 7, 8], 11: [8, 8, 7, 7, 6, 6, 5, 5], 12: [8, 7, 6, 5, 8, 4, 3, 2],
                 13: [1, 8, 1, 8, 1, 8, 1, 8], 14: [1, 1, 8, 1, 1, 8, 1, 8],
                 20: [1, 8, 1, 1, 8, 1, 1, 8], 21: [1, 8, 8, 1, 8, 8, 1, 8], 22: [1, 8, 4, 1, 8, 4, 1, 8],
                 23: [1, 2, 1, 1, 2, 1, 1, 2], 24: [1, 8, 5, 3, 8, 6, 1, 8], 25: [0, 8, 1, 0, 8, 1, 0, 8],
                 26: [1, 8, 1, 8, 1, 8, 1, 8], 27: [0, 8, 0, 8, 0, 8, 0, 8]}[cfg.kpos]
        word = sum(x << (4 * i) for i, x in enumerate(table))
        if cfg.kpos < 20:
            a(f"s_add_u32 s3, {s(S_B)}, {s(S_G8)}")
            a("s_and_b32 s3, s3, 7")
            a("s_lshl_b32 s3, s3, 2")
        else:
            a(f"s_lshl_b32 s3, {s(S_B)}, 2")
        a(f"s_lshr_b32 s3, {word:#x}, s3")
        a(f"s_and_b32 {s(S_PK)}, s3, 15")
    else:
        a(f"s_mov_b32 {s(S_PK)}, {cfg.kpos}")
    a(f"s_lshl_b32 s3, {s(S_B)}, 5")
    a(f"s_add_u32 s3, s3, {s(S_H)}")
    a("s_mul_i32 s3, s3, 36864")
    srd(a, R_K, S_K, "s3", 36864)
    srd(a, R_V, S_V, "s3", 36864)
    srd(a, R_F, S_WS, f"{OFF_F}", 262144)
    a(f"s_mul_i32 s3, {s(S_LW)}, 24")
    a(f"s_and_b32 s4, {s(S_LW)}, 1")
    a("s_lshl_b32 s4, s4, 6")
    for c in range(3):
        a(f"v_lshrrev_b32 {v(T0)}, 1, {v(RRc + c)}")
        a(f"v_add_u32 {v(T1)}, s3, {v(RRc + c)}")
        a(f"v_mul_u32_u24 {v(T1)}, 384, {v(T1)}")
        a(f"v_xor_b32 {v(T2)}, {v(T0)}, {v(UUc + c)}")
        a(f"v_lshl_add_u32 {v(T2)}, {v(T2)}, 4, {v(T1)}")
        a(f"v_xor_b32 {v(OK_ + c)}, s4, {v(T2)}")
        a(f"v_xor_b32 {v(T2)}, 64, {v(OK_ + c)}")
        a(f"v_add_u32 {v(OK_ + 3 + c)}, 3072, {v(T2)}")
        a(f"v_add_u32 {v(OK_ + 6 + c)}, 6144, {v(OK_ + c)}")
        a(f"v_lshlrev_b32 {v(T2)}, 1, {v(T0)}")
        a(f"v_xor_b32 {v(T2)}, {v(T2)}, {v(UUc + c)}")
        a(f"v_lshl_add_u32 {v(OV + c)}, {v(T2)}, 4, {v(T1)}")
        a(f"v_add_u32 {v(OV + 3 + c)}, 3072, {v(OV + c)}")
        a(f"v_add_u32 {v(OV + 6 + c)}, 6144, {v(OV + c)}")
    a(f"s_mul_i32 s3, {s(S_G8)}, 983040")
    a(f"s_mul_i32 s4, {s(S_HH)}, 320")
    a("s_add_u32 s3, s3, s4")
    a("s_sub_u32 s4, 7864320, s3")
    srd(a, R_WO, S_WO, "s3", "s4")
    a(f"s_lshl_b32 s3, {s(S_B)}, 2")
    a(f"s_add_u32 s3, s3, {s(S_LW)}")
    a("s_mul_i32 s3, s3, 24")
    a(f"v_mul_u32_u24 {v(T1)}, 21846, v0")
    a(f"v_lshrrev_b32 {v(T1)}, 16, {v(T1)}")
    a(f"v_mul_u32_u24 {v(T2)}, 3, {v(T1)}")
    a(f"v_sub_u32 {v(T0)}, v0, {v(T2)}")
    a(f"v_add_u32 {v(T1)}, s3, {v(T1)}")
    a(f"v_mul_u32_u24 {v(T1)}, 1280, {v(T1)}")
    a(f"v_lshl_add_u32 {v(AT)}, {v(T0)}, 7, {v(T1)}")
    a(f"v_min_u32 {v(T0)}, 7, v0")
    a(f"v_add_u32 {v(T0)}, 64, {v(T0)}")
    a(f"v_mul_u32_u24 {v(T1)}, 21846, {v(T0)}")
    a(f"v_lshrrev_b32 {v(T1)}, 16, {v(T1)}")
    a(f"v_mul_u32_u24 {v(T2)}, 3, {v(T1)}")
    a(f"v_sub_u32 {v(T0)}, {v(T0)}, {v(T2)}")
    a(f"v_add_u32 {v(T1)}, s3, {v(T1)}")
    a(f"v_mul_u32_u24 {v(T1)}, 1280, {v(T1)}")
    a(f"v_lshl_add_u32 {v(AT2)}, {v(T0)}, 7, {v(T1)}")
    if cfg.lprio == 2:
        a("s_setprio 3")
    stage_body()

    def issue_kv(off, srd_, base):
        a(f"s_mul_i32 s3, {s(S_LW)}, 9216")
        a(f"s_add_u32 s3, s3, {base}")
        for p in range(9):
            dma(a, off + p, srd_, "0", "s3", 1024 * p, "nt" if cfg.ntkv & (1 if srd_ == R_K else 2) else "")
    a("s_waitcnt vmcnt(9)")
    st.cyc("landed0")
    a("s_barrier")
    a(f"s_mov_b32 {s(S_N)}, 0")
    a.label("L_lloop")
    a(f"s_cmp_eq_u32 {s(S_N)}, {s(S_PK)}")
    a("s_cbranch_scc0 L_nok")
    call("L_sub_k")
    a.label("L_nok")
    stage_body()
    a("s_waitcnt vmcnt(9)")
    a("s_barrier")
    a(f"s_add_u32 {s(S_N)}, {s(S_N)}, 1")
    a(f"s_cmp_lt_u32 {s(S_N)}, 8")
    a("s_cbranch_scc1 L_lloop")
    st.cyc("b8")
    a(f"s_cmp_eq_u32 {s(S_PK)}, 8")
    a("s_cbranch_scc0 L_vonly")
    call("L_sub_k")
    a("s_waitcnt vmcnt(9)")
    a("s_barrier")
    call("L_sub_v")
    a("s_branch L_kvdone")
    a.label("L_sub_k")
    issue_kv(OK_, R_K, A_K)
    a("s_setpc_b64 s[44:45]")
    a.label("L_sub_v")
    issue_kv(OV, R_V, A_V)
    a("s_setpc_b64 s[44:45]")
    a.label("L_sub_wo")
    a(f"s_mul_i32 {s(S_SW)}, {s(S_KK)}, {64 * 1280}")
    a(f"s_add_u32 s3, {s(S_LDS)}, {s(S_MW)}")
    for p in range(5):
        dma(a, OWO + p, R_WO, s(S_SW), "s3", 1024 * p)
    a(f"s_add_u32 {s(S_KK)}, {s(S_KK)}, 1")
    a(f"s_cmp_eq_u32 {s(S_KK)}, 12")
    a(f"s_cselect_b32 {s(S_KK)}, 0, {s(S_KK)}")
    a(f"s_add_u32 {s(S_LDS)}, {s(S_LDS)}, {WOS}")
    a(f"s_cmp_eq_u32 {s(S_LDS)}, {4 * WOS}")
    a(f"s_cselect_b32 {s(S_LDS)}, 0, {s(S_LDS)}")
    a("s_setpc_b64 s[44:45]")
    a.label("L_sub_o")
    a(f"s_mul_i32 {s(S_SX)}, {s(S_PK)}, {OS}")
    a(f"s_add_u32 m0, {s(S_LDO)}, {s(S_MX)}")
    a(f"s_add_u32 {s(S_PK)}, {s(S_PK)}, 1")
    for c in range(3):
        a(f"buffer_load_dwordx4 {v(OO)}, {s(R_OI, 4)}, {s(S_SX)} offen offset:{1024 * c} {['sc1', '', 'nt'][cfg.unsafe % 9]} lds")
    a(f"s_cmp_eq_u32 {s(S_PK)}, 12")
    a(f"s_cselect_b32 {s(S_PK)}, 0, {s(S_PK)}")
    a(f"s_add_u32 {s(S_LDO)}, {s(S_LDO)}, {OS}")
    a(f"s_cmp_eq_u32 {s(S_LDO)}, {6 * OS}")
    a(f"s_cselect_b32 {s(S_LDO)}, 0, {s(S_LDO)}")
    a("s_setpc_b64 s[44:45]")
    a.label("L_vonly")
    call("L_sub_v")
    a("s_waitcnt vmcnt(9)")
    a("s_barrier")
    a.label("L_kvdone")
    a("s_waitcnt vmcnt(9)")
    st.cyc("Kland")
    a("s_barrier")
    touch = (f"buffer_load_dword {v(JK)}, {v(AT)}, {s(R_WO, 4)}, 0 offen\n"
             f"buffer_load_dword {v(JK + 2)}, {v(AT2)}, {s(R_WO, 4)}, 0 offen")
    if cfg.tpos == 10:
        a(touch)
    a(f"s_lshl_b32 s3, {s(S_B)}, 3")
    a(f"s_add_u32 s3, s3, {s(S_G8)}")
    a(f"s_mul_i32 s3, s3, {4 * 36864}")
    srd(a, R_OI, S_WS, "s3", 4 * 36864)
    a(f"s_lshl_b32 s3, {s(S_B)}, 2")
    a(f"s_add_u32 s3, s3, {s(S_HH)}")
    a(f"s_mul_i32 s3, s3, {8 * PSZ}")
    a(f"s_add_u32 s3, s3, {OFF_P}")
    srd(a, R_PI, S_WS, "s3", 8 * PSZ)
    a(f"s_mul_i32 {s(S_MW)}, {s(S_LW)}, 5120")
    a(f"s_add_u32 {s(S_MW)}, {s(S_MW)}, {WO0}")
    a(f"s_mul_i32 {s(S_MX)}, {s(S_LW)}, 3072")
    a(f"s_mul_i32 {s(S_KK)}, {s(S_HH)}, 3")
    a(f"s_add_u32 {s(S_PK)}, {s(S_KK)}, 3")
    a(f"s_cmp_eq_u32 {s(S_PK)}, 12")
    a(f"s_cselect_b32 {s(S_PK)}, 0, {s(S_PK)}")
    a(f"s_mov_b32 {s(S_LDS)}, {WOS}")
    a(f"s_mov_b32 {s(S_LDO)}, {3 * OS}")
    a("s_barrier")
    if cfg.lprio == 2:
        a("s_setprio 0")
    if cfg.tpos == 11:
        a(touch)
    a(f"s_lshl_b32 s3, {s(S_LW)}, 4")
    for c in range(5):
        a(f"v_add_u32 {v(T0)}, {64 * c}, v0")
        a(f"v_mul_u32_u24 {v(T1)}, 3277, {v(T0)}")
        a(f"v_lshrrev_b32 {v(T1)}, 16, {v(T1)}")
        a(f"v_mul_u32_u24 {v(T2)}, 20, {v(T1)}")
        a(f"v_sub_u32 {v(T0)}, {v(T0)}, {v(T2)}")
        a(f"v_lshrrev_b32 {v(T2)}, 1, {v(T1)}")
        a(f"v_and_b32 {v(T2)}, 2, {v(T2)}")
        a(f"v_xor_b32 {v(T0)}, {v(T0)}, {v(T2)}")
        a(f"v_add_u32 {v(T1)}, s3, {v(T1)}")
        a(f"v_mul_u32_u24 {v(T1)}, 1280, {v(T1)}")
        a(f"v_lshl_add_u32 {v(OWO + c)}, {v(T0)}, 4, {v(T1)}")
    a(f"v_lshl_add_u32 {v(OO)}, v0, 4, {s(S_MX)}")
    a(f"s_lshl_b32 s3, {s(S_B)}, 3")
    a(f"s_add_u32 s3, s3, {s(S_G8)}")
    a("s_lshl_b32 s3, s3, 7")
    a(f"v_and_b32 {v(T0)}, 15, v0")
    a(f"v_lshl_add_u32 {v(AF1)}, {v(T0)}, 3, s3")
    a("s_waitcnt lgkmcnt(0)")
    a(f"s_add_u32 {s(S_TAG)}, {s(S_TAG)}, {TAGC[0]:#x}")
    a(f"s_addc_u32 {s(S_TAG + 1)}, {s(S_TAG + 1)}, {TAGC[1]:#x}")
    a(f"v_mov_b32 {v(TG)}, {s(S_TAG)}")
    a(f"v_mov_b32 {v(TG + 1)}, {s(S_TAG + 1)}")
    a(f"v_mov_b32 {v(T0)}, {A_TAG}")
    a(f"ds_write_b64 {v(T0)}, {v(TG, 2)}")
    a(f"s_waitcnt vmcnt(2) lgkmcnt(0)")
    st.cyc("Vland")
    if cfg.lprio == 2:
        a("s_setprio 3")
    a("s_barrier")
    a(f"s_mul_i32 s3, {s(S_B)}, 122880")
    a(f"s_mul_i32 s4, {s(S_HH)}, 320")
    a("s_add_u32 s3, s3, s4")
    a("s_sub_u32 s4, 983040, s3")
    srd(a, R_OUT, S_OUT, "s3", "s4")
    a("s_barrier")

    def poll(name, vaddr):
        a(f"s_mov_b32 s3, {SPIN_MAX}")
        a.label(name)
        a(f"buffer_load_dwordx2 {v(PT, 2)}, {v(vaddr)}, {s(R_F, 4)}, 0 offen sc1")
        a("s_sub_u32 s3, s3, 1")
        a("s_cmp_eq_u32 s3, 0")
        a(f"s_cbranch_scc1 {name}_out")
        a("s_waitcnt vmcnt(0)")
        a(f"v_cmp_ne_u64 vcc, {v(PT, 2)}, {v(TG, 2)}")
        a("s_nop 1")
        a(f"s_cbranch_vccnz {name}")
        a.label(name + "_out")
        a("s_waitcnt vmcnt(0)")

    BARS = ["B0", "B1", "B2", "BX"] + [f"B{n}" for n in range(3, 12)]
    own_mask = "s[4:5]"

    def run(path, tokens, state, alts):
        q, nwo, no, bi = state
        q = list(q)
        for k, ch in enumerate(tokens):
            free = -1 if bi < 2 else (bi - 2 if bi <= 4 else bi - 3)
            if ch == "w":
                assert nwo <= max(3, free + 4), (path, k, nwo, free)
                call("L_sub_wo")
                q.append((nwo, 5))
                nwo += 1
            elif ch == "o":
                assert no <= max(5, free + 6), (path, k, no, free)
                call("L_sub_o")
                q.append((no, 3))
                no += 1
            elif ch == "c":
                if cfg.sent:
                    a("s_mov_b32 s3, 4096")
                    for kk in range(8):
                        a(f"buffer_store_dwordx4 {v(CL, 4)}, {v(ACL)}, {s(R_PO, 4)}, {'s3' if kk >= 4 else '0'} offen offset:{1024 * (kk % 4)} sc1")
                    q.append((11, 8))
            elif ch == "p":
                a(f"buffer_load_dwordx2 {v(PT, 2)}, {v(AF1)}, {s(R_F, 4)}, 0 offen sc1")
                q.append((99, 1))
            elif ch in "ab":
                last = max(i for i, (kk, _) in enumerate(q) if kk == 99)
                a(f"s_waitcnt vmcnt({sum(c for _, c in q[last + 1:])})")
                q = q[last + 1:]
                a(f"v_cmp_ne_u64 vcc, {v(PT, 2)}, {v(TG, 2)}")
                a("s_nop 1")
                a(f"s_and_b64 s[4:5], vcc, {s(S_OM, 2)}")
                a(f"s_cbranch_scc0 L_path_{ch}")
                alts[ch] = (q, nwo, no, bi)
            elif ch == "s":
                poll("L_poll1", AF1)
                q = []
            elif ch == "|":
                name = BARS[bi]
                need = {"BX": -1}.get(name, int(name[1:]) if name != "BX" else -1)
                if need >= 0:
                    assert nwo > need and (need < 3 or no > need), (path, name)
                    last = max([i for i, (kk, _) in enumerate(q) if kk <= need] + [-1])
                    cnt = sum(c for _, c in q[last + 1:])
                    if last >= 0:
                        a(f"s_waitcnt vmcnt({cnt})")
                    q = q[last + 1:]
                a("s_barrier")
                bi += 1
        assert bi == len(BARS) and nwo == 12 and no == 12, (path, bi, nwo, no)
    CL, ACL, R_PO = 112, 116, 8
    if cfg.sent:
        a(f"s_lshl_b32 s3, {s(S_B)}, 2")
        a(f"s_add_u32 s3, s3, {s(S_HH)}")
        a("s_lshl_b32 s3, s3, 3")
        a(f"s_add_u32 s3, s3, {s(S_G8)}")
        a(f"s_mul_i32 s3, s3, {PSZ}")
        a(f"s_add_u32 s3, s3, {OFF_P}")
        srd(a, R_PO, S_WS, "s3", PSZ)
        a(f"s_mul_i32 s3, {s(S_LW)}, 7680")
        a(f"v_lshl_add_u32 {v(ACL)}, v0, 4, s3")
        for kk in range(4):
            a(f"v_mov_b32 {v(CL + kk)}, -1")
    S_OM = 4 * 0 + 40
    a(f"s_lshl_b32 s3, {s(S_HH)}, 2")
    a("s_lshl_b32 s3, 0x000f000f, s3")
    a(f"s_not_b32 {s(S_OM)}, s3")
    a(f"s_mov_b32 {s(S_OM + 1)}, {s(S_OM)}")
    a("s_barrier")
    tabs = {
        1: dict(N="wp a|ww|wp|b|ww s ooo|wo|wo|wo|wo|wo|wo|||",
                a="|ww|w ooo||w|wo|wo|wo|wo|wo|wo|w||",
                b="ooo|w|wo|wo|wo|wo|wo|wo|w||"),
        2: dict(N="wp a|ww|wp|b|ww s ooo|wo|wo|wo|wo|wo|wo|||",
                a="|ww|w ooo||w|wwo|wo|wo|wo|wo|wo|||",
                b="ooo|w|wwo|wo|wo|wo|wo|wo|||"),
        3: dict(N="wp a|ww|wp|b|www s ooo|ooo|w|w|w|oo|w|wo||",
                a="|ww|w ooo||ww|wo|wo|wo|wo|wo|wo|||",
                b="ooo|ww|wo|wo|wo|wo|wo|wo|||"),
        4: dict(N="w|ww|wp|b|ww s ooo|wo|wo|wo|wo|wo|woc|||",
                b="ooo|w|wo|wo|wo|wo|wo|wo|wc||"),
        8: dict(N="wp|ww a|wp|b|ww s ooo|wo|wo|wo|wo|wo|wo|||",
                a="ooo|w||w|wo|wo|wo|wo|wo|wo|w||",
                b="ooo|w|wo|wo|wo|wo|wo|wo|w||"),
        9: dict(N="w|wpw a|wp|b|ww s ooo|wo|wo|wo|wo|wo|wo|||",
                a="ooo|w||w|wo|wo|wo|wo|wo|wo|w||",
                b="ooo|w|wo|wo|wo|wo|wo|wo|w||"),
        10: dict(N="w|wwp|a wp|b|ww s ooo|wo|wo|wo|wo|wo|wo|||",
                 a="w ooo||w|wo|wo|wo|wo|wo|wo|w||",
                 b="ooo|w|wo|wo|wo|wo|wo|wo|w||"),
        11: dict(N="w|wwp|a wp|b|ww s ooo|wo|wo|wo|wo|wo|wo|||",
                 a="w oo||wo|wo|wo|wo|wo|wo|wo|w||",
                 b="oo|wo|wo|wo|wo|wo|wo|wo|w||"),
        7: dict(N="w|ww|wp|b|ww s ooo|wo|wo|wo|wo|wo|wo|c||",
                b="ooo|w|wwo|wo|wo|wo|wo|woc|||"),
        5: dict(N="wp a|ww|wp|b|ww s ooo|wo|wo|wo|wo|wo|wo|||",
                a="|ww|w oo||wo|wo|wo|wo|wo|wo|wo|w||",
                b="oo|wo|wo|wo|wo|wo|wo|wo|w||"),
        6: dict(N="wp a|ww|wp|b|ww s ooo|wo|wo|wo|wo|wo|wo|||",
                a="|www ooo|||w|wwo|wo|wo|wo|wo|wo|||",
                b="ooo|w|wwo|wo|wo|wo|wo|wo|||"),
    }[cfg.tab]
    alts = {}
    run("N", tabs["N"].replace(" ", ""), ([], 0, 3, 0), alts)
    a("s_branch L_final")
    for key in sorted(alts):
        a.label(f"L_path_{key}")
        run(key, tabs[key].replace(" ", ""), alts[key], {})
        if key != sorted(alts)[-1]:
            a("s_branch L_final")
    a.label("L_final")
    OFFS = RT
    a(f"s_lshr_b32 s5, {s(S_G8)}, 2")
    a(f"s_lshl_b32 s3, {s(S_B)}, 2")
    a(f"s_add_u32 s3, s3, {s(S_HH)}")
    a("s_lshl_b32 s3, s3, 1")
    a("s_add_u32 s3, s3, s5")
    a("s_lshl_b32 s3, s3, 7")
    a(f"s_add_u32 s3, s3, {F2}")
    a(f"v_and_b32 {v(T0)}, 15, v0")
    a(f"v_lshl_add_u32 {v(AF2)}, {v(T0)}, 3, s3")
    a(f"s_and_b32 s6, {s(S_G8)}, 3")
    a("s_mul_i32 s6, s6, 3")
    a("s_mul_i32 s5, s5, 7680")
    a(f"s_mul_i32 s4, {s(S_G8)}, {0 if cfg.otr else 12 * 1280}")
    a(f"s_cmp_eq_u32 {s(S_LW)}, 3")
    a("s_cbranch_scc1 L_red3")
    a(f"s_add_u32 s6, s6, {s(S_LW)}")
    a("s_lshr_b32 s3, s6, 2")
    a("s_mul_i32 s3, s3, 2560")
    a("s_add_u32 s5, s5, s3")
    a("s_and_b32 s6, s6, 3")
    a("s_lshl_b32 s6, s6, 8")
    a("s_add_u32 s5, s5, s6")
    a(f"s_mul_i32 s3, {s(S_LW)}, {4 * (320 if cfg.otr else 1280)}")
    a("s_add_u32 s4, s4, s3")
    a("v_lshrrev_b32 v7, 5, v0")
    a("v_bfe_u32 v8, v0, 4, 1")
    a(f"v_mul_u32_u24 v9, 15360, v7")
    a("v_lshl_add_u32 v9, v8, 10, v9")
    a(f"v_lshl_add_u32 v9, {v(T0)}, 4, v9")
    a(f"v_add_u32 {v(OFFS)}, s5, v9")
    a("v_and_b32 v9, 3, v0")
    a(f"v_mul_u32_u24 v9, {320 if cfg.otr else 1280}, v9")
    a("v_mul_u32_u24 v7, 160, v7")
    a("v_lshl_add_u32 v7, v8, 6, v7")
    a("v_bfe_u32 v8, v0, 2, 2")
    a("v_lshl_add_u32 v7, v8, 3, v7")
    a("v_add3_u32 " + f"{v(A0)}, v7, v9, s4")
    a(f"v_add_u32 {v(A1)}, 32, {v(A0)}")
    a("s_branch L_red")
    a.label("L_red3")
    a("v_min_u32 v10, 47, v0")
    a("v_lshrrev_b32 v7, 4, v10")
    a("v_add_u32 v8, s6, v7")
    a("v_lshrrev_b32 v9, 2, v8")
    a("v_mul_u32_u24 v9, 2560, v9")
    a("v_and_b32 v8, 3, v8")
    a("v_lshl_add_u32 v9, v8, 7, v9")
    a("v_bfe_u32 v8, v10, 3, 1")
    a("v_mul_u32_u24 v11, 15360, v8")
    a("v_add_u32 v9, v9, v11")
    a("v_and_b32 v11, 7, v10")
    a("v_lshl_add_u32 v9, v11, 4, v9")
    a("s_add_u32 s5, s5, 2048")
    a(f"v_add_u32 {v(OFFS)}, s5, v9")
    a("v_and_b32 v11, 1, v10")
    a("v_lshl_add_u32 v7, v7, 1, v11")
    a(f"v_mul_u32_u24 v7, {640 if cfg.otr else 2560}, v7")
    a("v_mul_u32_u24 v8, 160, v8")
    a("v_bfe_u32 v11, v10, 1, 2")
    a("v_lshl_add_u32 v8, v11, 3, v8")
    a("s_add_u32 s4, s4, 128")
    a("v_add3_u32 " + f"{v(A0)}, v7, v8, s4")
    a(f"v_add_u32 {v(A1)}, {320 if cfg.otr else 1280}, {v(A0)}")
    a.label("L_red")
    if cfg.otr:
        a(f"s_lshl_b32 s4, {s(S_LW)}, 6")
        a("v_add_u32 v7, s4, v0")
        a("v_min_u32 v7, 239, v7")
        a(f"v_lshlrev_b32 {v(RT + 1)}, 4, v7")
        a("v_mul_u32_u24 v8, 3277, v7")
        a("v_lshrrev_b32 v8, 16, v8")
        a("v_mul_u32_u24 v8, 960, v8")
        a(f"s_mul_i32 s4, {s(S_G8)}, {12 * 1280}")
        a(f"v_add3_u32 {v(RT + 2)}, v8, {v(RT + 1)}, s4")
    D0, AC = 80, 148

    def load_part(g):
        a(f"s_mov_b32 s3, {PSZ * g}")
        a(f"buffer_load_dwordx4 {v(D0 + 4 * g, 4)}, {v(OFFS)}, {s(R_PI, 4)}, s3 offen {['sc1', '', 'nt', 'sc0 sc1', 'sc1 nt'][cfg.pld]}")
    if not cfg.dynred:
        poll("L_poll2", AF2)
        st.cyc("seen2")
        for g in range(8):
            load_part(g)
    elif cfg.dynred == 1:
        a(f"s_mov_b32 s7, {SPIN_MAX}")
        a("s_mov_b32 s6, 0")
        a.label("L_poll2")
        a(f"buffer_load_dwordx2 {v(PT, 2)}, {v(AF2)}, {s(R_F, 4)}, 0 offen sc1")
        a("s_sub_u32 s7, s7, 1")
        a("s_cmp_eq_u32 s7, 0")
        a("s_cbranch_scc1 L_poll2_out")
        a("s_waitcnt vmcnt(0)")
        a(f"v_cmp_eq_u64 vcc, {v(PT, 2)}, {v(TG, 2)}")
        a("s_nop 1")
        a("s_lshr_b32 s5, vcc_lo, 8")
        a("s_and_b32 s5, s5, vcc_lo")
        a("s_and_b32 s5, s5, 0xff")
        a("s_andn2_b32 s4, s5, s6")
        a("s_cbranch_scc0 L_poll2")
        a("s_or_b32 s6, s6, s5")
        for g in range(8):
            a(f"s_bitcmp1_b32 s4, {g}")
            a(f"s_cbranch_scc0 L_r{g}")
            load_part(g)
            a.label(f"L_r{g}")
        a("s_cmp_eq_u32 s6, 0xff")
        a("s_cbranch_scc0 L_poll2")
        a.label("L_poll2_out")
        st.cyc("seen2")
        a("s_waitcnt vmcnt(0)")
    else:
        U0 = 120
        a(f"s_mov_b32 s7, {SPIN_MAX}")
        a("s_mov_b32 s6, 0")
        a("s_mov_b32 s8, 0")
        a("s_mov_b32 s9, 0")
        a("s_branch L_poll2")
        a.label("L_widen")
        for g in range(8):
            a(f"s_bitcmp1_b32 s8, {g}")
            a(f"s_cbranch_scc0 L_u{g}")
            for r in range(4):
                a(f"v_lshlrev_b32 {v(U0 + 8 * g + 2 * r)}, 16, {v(D0 + 4 * g + r)}")
                a(f"v_and_b32 {v(U0 + 8 * g + 2 * r + 1)}, 0xffff0000, {v(D0 + 4 * g + r)}")
            a.label(f"L_u{g}")
        a("s_mov_b32 s8, 0")
        a("s_setpc_b64 s[44:45]")
        a.label("L_poll2")
        a(f"buffer_load_dwordx2 {v(PT, 2)}, {v(AF2)}, {s(R_F, 4)}, 0 offen sc1")
        a("s_cmp_eq_u32 s8, 0")
        a("s_cbranch_scc1 L_nowiden")
        call("L_widen")
        a.label("L_nowiden")
        a("s_sub_u32 s7, s7, 1")
        a("s_cmp_eq_u32 s7, 0")
        a("s_cbranch_scc1 L_poll2_out")
        a("s_waitcnt vmcnt(0)")
        a(f"v_cmp_eq_u64 vcc, {v(PT, 2)}, {v(TG, 2)}")
        a("s_mov_b32 s8, s9")
        a("s_mov_b32 s9, 0")
        a("s_and_b32 s5, vcc_lo, 0xff")
        a("s_andn2_b32 s9, s5, s6")
        a("s_cbranch_scc0 L_poll2")
        a("s_or_b32 s6, s6, s5")
        for g in range(8):
            a(f"s_bitcmp1_b32 s9, {g}")
            a(f"s_cbranch_scc0 L_r{g}")
            load_part(g)
            a.label(f"L_r{g}")
        a("s_cmp_eq_u32 s6, 0xff")
        a("s_cbranch_scc0 L_poll2")
        a.label("L_poll2_out")
        st.cyc("seen2")
        call("L_widen")
        a("s_mov_b32 s8, s9")
        a("s_waitcnt vmcnt(0)")
        call("L_widen")
        for g in range(1, 8):
            for r in range(4):
                a(f"v_pk_add_f32 {v(U0 + 2 * r, 2)}, {v(U0 + 2 * r, 2)}, {v(U0 + 8 * g + 2 * r, 2)}")
        AC = U0
    if cfg.sent:
        assert cfg.dynred
        a("s_mov_b32 s7, 4096")
        a.label("L_chk")
        a(f"v_max3_u32 v4, {v(D0)}, {v(D0 + 1)}, {v(D0 + 2)}")
        a(f"v_max3_u32 v5, {v(D0 + 3)}, {v(D0 + 4)}, {v(D0 + 5)}")
        for kk in range(6, 30, 4):
            a(f"v_max3_u32 v4, v4, {v(D0 + kk)}, {v(D0 + kk + 1)}")
            a(f"v_max3_u32 v5, v5, {v(D0 + kk + 2)}, {v(D0 + kk + 3)}")
        a(f"v_max3_u32 v4, v4, {v(D0 + 30)}, {v(D0 + 31)}")
        a("v_max_u32 v4, v4, v5")
        a("v_cmp_eq_u32 vcc, -1, v4")
        a("s_sub_u32 s7, s7, 1")
        a("s_cselect_b32 s6, 0, 1")
        a("s_and_b32 s4, vcc_lo, -1")
        a("s_or_b32 s4, s4, vcc_hi")
        a("s_cselect_b32 s6, s6, 0")
        a("s_cmp_eq_u32 s6, 0")
        a("s_cbranch_scc1 L_chk_ok")
        for g in range(8):
            load_part(g)
        a("s_waitcnt vmcnt(0)")
        a("s_branch L_chk")
        a.label("L_chk_ok")
        st.cyc("chk")
    for g in range(8 if cfg.dynred < 2 else 0):
        if not cfg.dynred:
            a(f"s_waitcnt vmcnt({7 - g})")
        for r in range(4):
            src = D0 + 4 * g + r
            if g == 0:
                a(f"v_lshlrev_b32 {v(AC + 2 * r)}, 16, {v(src)}")
                a(f"v_and_b32 {v(AC + 2 * r + 1)}, 0xffff0000, {v(src)}")
            else:
                t = 4 + 2 * (r % 2)
                a(f"v_lshlrev_b32 {v(t)}, 16, {v(src)}")
                a(f"v_and_b32 {v(t + 1)}, 0xffff0000, {v(src)}")
                a(f"v_pk_add_f32 {v(AC + 2 * r, 2)}, {v(AC + 2 * r, 2)}, {v(t, 2)}")
    for r in range(4):
        a(cvt(D0 + r, AC + 2 * r))
    fl = ['', 'sc1', 'nt', 'sc0 sc1'][cfg.outfl]
    if cfg.otr:
        a(f"ds_write_b64 {v(A0)}, {v(D0, 2)}")
        a(f"ds_write_b64 {v(A1)}, {v(D0 + 2, 2)}")
        a(lg(0))
        a("s_barrier")
        a(f"ds_read_b128 {v(D0 + 4, 4)}, {v(RT + 1)}")
        a(lg(0))
        a(f"buffer_store_dwordx4 {v(D0 + 4, 4)}, {v(RT + 2)}, {s(R_OUT, 4)}, 0 offen {fl}")
    elif cfg.unsafe == 9:
        a("s_mul_i32 s3, s2, 3840")
        srd(a, 8, S_OUT, "s3", 3840)
        a(f"v_lshlrev_b32 v7, 4, v7")
        a(f"buffer_store_dwordx4 {v(D0, 4)}, v7, s[8:11], 0 offen {fl}")
    else:
        a(f"buffer_store_dwordx2 {v(D0, 2)}, {v(A0)}, {s(R_OUT, 4)}, 0 offen {fl}")
        a(f"buffer_store_dwordx2 {v(D0 + 2, 2)}, {v(A1)}, {s(R_OUT, 4)}, 0 offen {fl}")
    a(f"s_or_b32 s3, {s(S_H)}, {s(S_LW)}")
    a("s_cmp_eq_u32 s3, 0")
    a("s_cbranch_scc0 L_noep")
    a(f"s_lshl_b32 s3, {s(S_B)}, 7")
    a(f"s_add_u32 s3, s3, {FX}")
    a("v_mov_b32 v4, 0")
    a("s_mov_b64 exec, 1")
    a(f"buffer_store_dwordx2 {v(TG, 2)}, v4, {s(R_F, 4)}, s3 offen")
    a.label("L_noep")
    if cfg.diag:
        a("s_waitcnt vmcnt(0)")
    st.cyc("end")
    st.real("real1")
    st.flush("L")


def generate(cfg):
    a = Asm()
    a.lines.append("; @launch grid=(256,1,1) block=(512,1,1) lds=163840")
    a('.amdgcn_target "amdgcn-amd-amdhsa--gfx950"')
    a(".text")
    a(kernel_header(KN))
    a("s_cmp_ge_u32 s2, 256")
    a("s_cbranch_scc1 L_end")
    a("s_load_dwordx16 s[32:47], s[0:1], 0")
    if cfg.diag:
        a(f"s_memrealtime {s(S_T, 2)}")
        a(f"s_memtime {s(S_T + 2, 2)}")
    a("v_lshrrev_b32 v1, 6, v0")
    a("v_and_b32 v0, 63, v0")
    a(f"v_readfirstlane_b32 {s(S_WAVE)}, v1")
    a(f"s_and_b32 {s(S_G8)}, s2, 7")
    a("s_lshr_b32 s4, s2, 3")
    a(f"s_lshr_b32 {s(S_B)}, s4, 2")
    a(f"s_and_b32 {s(S_HH)}, s4, 3")
    a(f"s_lshl_b32 s3, {s(S_G8)}, 2")
    a(f"s_add_u32 {s(S_H)}, s3, {s(S_HH)}")
    a(f"s_cmp_ge_u32 {s(S_WAVE)}, 4")
    a("s_cbranch_scc1 L_loader")
    if cfg.ipf:
        a("s_getpc_b64 s[62:63]")
        a.label("L_pc")
        a(f"s_sub_u32 s62, s62, L_pc-{KN}")
        a("s_subb_u32 s63, s63, 0")
        a(f"s_mul_i32 s3, {s(S_WAVE)}, 40")
        a("v_min_u32 v7, 39, v0")
        a("v_add_u32 v7, s3, v7")
        a("v_lshlrev_b32 v7, 7, v7")
        a(f"v_min_u32 v7, L_last-{KN}, v7")
        if cfg.ipf & 1:
            a("global_load_dword v14, v7, s[62:63]")
    a("s_branch L_compute")
    a.label("L_loader")
    gen_loader(a, cfg)
    a.label("L_end")
    a("s_endpgm")
    a.label("L_compute")
    gen_compute(a, cfg)
    a('.section .rodata,"a"')
    a(".p2align 6")
    a(kernel_desc(KN))
    return a.text()


if __name__ == "__main__":
    cfg = Cfg()
    out = sys.argv[1]
    for opt in sys.argv[2:]:
        k, val = opt.split("=")
        assert hasattr(cfg, k), k
        setattr(cfg, k, val if k == "only" else int(val))
    t = generate(cfg)
    pr = hazard.check(t) + hazard.check_counters(t)
    for p in pr:
        print(f"HAZARD line {p[0]} -> {p[1]}: need {p[2]} have {p[3]}\n    {p[4]}\n    {p[5]}")
    open(out, "w").write(t)
    print(out, "hazards:", len(pr), "lines:", t.count("\n"))
```

```python
import struct
import sys

from asmlib import Asm, v, s, kernel_header, kernel_desc
import hazard

KN = "standalone__gqa_block_cached__near_ridge_kernel"
OFF_O = 0
OFF_P = 16 << 20
OFF_F = 32 << 20
F1, F2, FX = 0, 65536, 131072
OFF_T = 64 << 20
SLOT = 36864
A_K = 3 * SLOT
A_V = 1 * SLOT
A_Q = 2 * SLOT
A_P = 2 * SLOT
A_M = 163840 - 768
A_TAG = A_M - 8
WO0, WOS = 81920, 20480
OS = 12288
PSZ = 30720
CEXP = 0.07216878364870322 * 1.4426950408889634
TAGC = (0x9E3779B9, 0x7F4A7C15)
SPIN_MAX = 1 << 21


def f32bits(x):
    return struct.unpack("<I", struct.pack("<f", x))[0]


class Cfg:
    diag = 0
    only = ""
    rot = 10
    kpos = 9
    dynred = 1
    outfl = 0
    ipf = 3
    tab = 4
    unsafe = 0
    pfl = 2
    otr = 1
    ntkv = 3
    lprio = 1
    sent = 0
    smx = 2
    vbp = 2
    fin = 2
    qv = 6
    sv = 1
    wper = 5
    odef = 1
    fw = 2
    dot2 = 0
    tpos = 10
    pst = 0
    pld = 0


S_X, S_K, S_V, S_WQ, S_WO, S_OUT, S_DBG, S_WS = 32, 34, 36, 38, 40, 42, 44, 46
S_B, S_H, S_WAVE, S_G8, S_HH = 28, 29, 30, 31, 48
S_TAG = 60
R_F = 24
S_T = 64


class Stamps:
    def __init__(self, a, cfg):
        self.a, self.on, self.n = a, cfg.diag, 2
        self.fine = cfg.diag > 1
        self.names = ["real0", "cyc0"]
        self.k = 0
        self.only = cfg.only.split(",") if cfg.only else None

    def real(self, name):
        if self.on:
            self.a(f"s_memrealtime {s(S_T + 2 * self.n, 2)}")
            self.names.append(name)
            self.n += 1

    def cyc(self, name, fine=False):
        if self.only and name not in self.only:
            return
        if not self.only and len(name) <= 3 and name[0] in "afB" and name[1:].isdigit() and name != "B0":
            return
        if self.on and (not fine or self.fine or self.only):
            self.a(f"{'s_memrealtime' if self.on > 2 else 's_memtime'} {s(S_T + 2 * self.n, 2)}")
            self.names.append(name)
            self.n += 1

    def alt(self, name, path, fine=False):
        if path == "N":
            return self.cyc(name, fine)
        if not self.on or (self.only and name not in self.only) or (fine and not self.only):
            return
        self.a(f"{'s_memrealtime' if self.on > 2 else 's_memtime'} {s(S_T + 2 * (self.n + self.k), 2)}")
        self.k += 1

    def flush(self, role, vt=4):
        if not self.on:
            return
        a = self.a
        assert self.n <= 19, self.n
        a("s_waitcnt lgkmcnt(0) vmcnt(0)")
        a(f"; STAMPS {role} " + " ".join(self.names))
        a("s_lshl_b32 s3, s2, 3")
        a(f"s_add_u32 s3, s3, {s(S_WAVE)}")
        a("s_lshl_b32 s3, s3, 8")
        a(f"s_add_u32 s3, s3, {OFF_T}")
        a(f"s_add_u32 s4, {s(S_WS)}, s3")
        a(f"s_addc_u32 s5, {s(S_WS + 1)}, 0")
        a("s_mov_b64 exec, 1")
        a(f"v_mov_b32 {v(vt + 2)}, 0")
        for i in range(self.n):
            a(f"v_mov_b32 {v(vt)}, {s(S_T + 2 * i)}")
            a(f"v_mov_b32 {v(vt + 1)}, {s(S_T + 2 * i + 1)}")
            a(f"global_store_dwordx2 {v(vt + 2)}, {v(vt, 2)}, s[4:5] offset:{8 * i}")
            a("s_nop 1")
        a("s_waitcnt vmcnt(0)")


def srd(a, d, base, off_sgpr, size):
    a(f"s_add_u32 {s(d)}, {s(base)}, {off_sgpr}")
    a(f"s_addc_u32 {s(d + 1)}, {s(base + 1)}, 0")
    a(f"s_mov_b32 {s(d + 2)}, {size}")
    a(f"s_mov_b32 {s(d + 3)}, 0x20000")


def dma(a, voff, srd_, soff, base, imm, fl=""):
    a(f"s_add_u32 m0, {base}, {imm}")
    a("s_nop 0")
    a(f"buffer_load_dwordx4 {v(voff)}, {s(srd_, 4)}, {soff} offen {fl} lds")


def mfma(d, a_, b_, c=None):
    cs = v(d, 4) if c is None else str(c)
    return f"v_mfma_f32_16x16x32_bf16 {v(d, 4)}, {v(a_, 4)}, {v(b_, 4)}, {cs}"


def trread(d, addr, off):
    assert 0 <= off < 65536
    return f"ds_read_b64_tr_b16 {v(d, 2)}, {v(addr)} offset:{off}"


def rd128(d, addr, off):
    assert 0 <= off < 65536
    return f"ds_read_b128 {v(d, 4)}, {v(addr)} offset:{off}"


def rd64(d, addr, off):
    assert 0 <= off < 65536
    return f"ds_read_b64 {v(d, 2)}, {v(addr)} offset:{off}"


def cvt(d, t):
    return f"v_cvt_pk_bf16_f32 {v(d)}, {v(t)}, {v(t + 1)}"


def emit(a, lst):
    for x in lst:
        a(x)


def place(main, slots):
    out = list(slots.get(-1, []))
    for i, m in enumerate(main):
        out.append(m)
        out.extend(slots.get(i, []))
    for k in sorted(slots):
        if k >= len(main):
            out.extend(slots[k])
    return out


def spread(fill, start, per=1, step=1, into=None):
    d = into if into is not None else {}
    i, k = start, 0
    while k < len(fill):
        d.setdefault(i, []).extend(fill[k:k + per])
        k += per
        i += step
    return d


def at(d, i, *x):
    d.setdefault(i, []).extend(x)


def lg(n):
    return f"s_waitcnt lgkmcnt({n})"


def mod_small(a, reg, m, times):
    for _ in range(times):
        a(f"s_sub_u32 s4, {reg}, {m}")
        a(f"s_cmp_ge_u32 {reg}, {m}")
        a(f"s_cselect_b32 {reg}, s4, {reg}")


def tile_addrs(a, dst, first, f, lanepart, tmp, extra=None):
    for c in range(4):
        a(f"s_add_u32 s4, {first}, {c}")
        a("s_and_b32 s5, s4, 3")
        a("s_lshr_b32 s4, s4, 2")
        a("s_lshl_b32 s4, s4, 7")
        a(f"v_xor_b32 {v(tmp)}, s5, {v(f)}")
        a(f"v_lshl_add_u32 {v(tmp)}, {v(tmp)}, 5, {v(lanepart)}")
        a(f"v_add_u32 {v(dst + c)}, s4, {v(tmp)}")


def gen_compute(a, cfg):
    st = Stamps(a, cfg)
    R_O, R_P = 8, 12
    ACC, FR, QP, LS, ONES = 16, 88, 160, 196, 208
    AX, AY, AZ, AVo, AVp = 212, 216, 218, 230, 234
    AQW, AQR, AMW, AMR, APW, APR, APW2, APR2, AO, AOW = range(238, 248)
    AW, AB, AP, AP2, FL2, TG, ZERO = 248, 250, 251, 252, 253, 254, 15
    VM, VG, VF, T0, T1, T2 = 1, 2, 3, 4, 5, 6
    MX = 8
    S_I, S_J, S_C, S_D, S_CNT, S_SL, S_D2, S_SL2 = 50, 51, 52, 54, 55, 56, 57, 18
    S_K0, S_K1, S_F1, S_F2 = 58, 59, 16, 17

    a(f"s_lshr_b32 {s(S_I)}, {s(S_WAVE)}, 1")
    a(f"s_and_b32 {s(S_J)}, {s(S_WAVE)}, 1")
    a(f"s_mov_b32 {s(S_C)}, {f32bits(CEXP):#x}")
    a(f"s_mov_b32 {s(S_C + 1)}, {f32bits(CEXP):#x}")
    a(f"v_and_b32 {v(VM)}, 15, v0")
    a(f"v_lshrrev_b32 {v(VG)}, 4, v0")
    a(f"v_lshrrev_b32 {v(T0)}, 2, {v(VM)}")
    a(f"v_lshl_add_u32 {v(T1)}, {v(VG)}, 3, {v(T0)}")
    a(f"v_mul_u32_u24 {v(T1)}, 384, {v(T1)}")
    a(f"v_and_b32 {v(T2)}, 3, {v(VM)}")
    a(f"v_lshlrev_b32 v11, 3, {v(T2)}")
    a(f"v_add_u32 {v(T1)}, v11, {v(T1)}")
    a(f"v_and_b32 {v(T2)}, 1, {v(VG)}")
    a(f"v_lshrrev_b32 {v(VF)}, 3, {v(VM)}")
    a(f"v_lshl_or_b32 {v(VF)}, {v(T2)}, 1, {v(VF)}")
    a(f"s_mul_i32 s3, {s(S_I)}, 6")
    tile_addrs(a, AX, "s3", VF, T1, T2)
    a(f"s_mul_i32 s4, {s(S_J)}, 48")
    a(f"v_add_u32 {v(T1)}, s4, {v(VM)}")
    a(f"v_lshlrev_b32 {v(T1)}, 7, {v(T1)}")
    a(f"v_add_u32 {v(T1)}, 24576, {v(T1)}")
    a(f"v_lshrrev_b32 {v(VF)}, 1, {v(VM)}")
    for ks in range(2):
        a(f"v_add_u32 {v(T2)}, {4 * ks}, {v(VG)}")
        a(f"v_xor_b32 {v(T2)}, {v(T2)}, {v(VF)}")
        a(f"v_lshl_add_u32 {v(AY + ks)}, {v(T2)}, 4, {v(T1)}")
    for i in range(72):
        a(f"v_mov_b32 {v(ACC + i)}, 0")
    a(f"s_mul_i32 s4, {s(S_I)}, 48")
    a(f"v_add_u32 {v(T1)}, s4, {v(VM)}")
    a(f"v_mul_u32_u24 {v(T1)}, 384, {v(T1)}")
    a(f"v_and_b32 {v(T2)}, 1, {v(VG)}")
    a(f"v_lshl_add_u32 {v(T1)}, {v(T2)}, 3, {v(T1)}")
    a(f"v_add_u32 {v(T1)}, {A_K}, {v(T1)}")
    a(f"v_lshrrev_b32 {v(T0)}, 1, {v(VG)}")
    a(f"v_xor_b32 {v(T0)}, {v(T0)}, {v(VF)}")
    a(f"v_lshl_add_u32 {v(T1)}, {v(T0)}, 4, {v(T1)}")
    a(f"s_mul_i32 s7, {s(S_I)}, 3")
    for ls in range(6):
        a(f"s_add_u32 s6, s7, {ls}")
        mod_small(a, "s6", 6, 1)
        a("s_and_b32 s5, s6, 1")
        a("s_lshl_b32 s5, s5, 6")
        a("s_lshr_b32 s6, s6, 1")
        a("s_lshl_b32 s6, s6, 7")
        a(f"v_add_u32 {v(T2)}, s6, {v(T1)}")
        a(f"v_xor_b32 {v(AZ + 2 * ls)}, s5, {v(T2)}")
        a(f"v_xor_b32 {v(AZ + 2 * ls + 1)}, 32, {v(AZ + 2 * ls)}")
    a(f"v_lshrrev_b32 {v(T0)}, 2, {v(VM)}")
    a(f"v_lshl_add_u32 {v(T0)}, {v(VG)}, 2, {v(T0)}")
    a(f"v_bfe_u32 {v(VF)}, {v(T0)}, 1, 2")
    a(f"v_mul_u32_u24 {v(T1)}, 384, {v(T0)}")
    a(f"v_add_u32 {v(T1)}, v11, {v(T1)}")
    a(f"s_mul_i32 s6, {s(S_I)}, 18432")
    a(f"s_add_u32 s7, s6, {A_V}")
    a(f"v_add_u32 {v(T1)}, s7, {v(T1)}")
    a(f"s_mul_i32 s3, {s(S_I)}, 6")
    tile_addrs(a, AVo, "s3", VF, T1, T2)
    a("s_lshl_b32 s6, s6, 1")
    a("s_sub_u32 s6, 18432, s6")
    for c in range(4):
        a(f"v_add_u32 {v(AVp + c)}, s6, {v(AVo + c)}")
    a(f"v_mul_u32_u24 {v(T1)}, 320, {v(T0)}")
    a(f"v_add_u32 {v(T1)}, v11, {v(T1)}")
    a(f"v_add_u32 {v(T1)}, {WO0 + WOS}, {v(T1)}")
    a(f"v_and_b32 {v(T0)}, 1, {v(VG)}")
    a(f"s_mul_i32 s3, {s(S_I)}, 5")
    for par in range(2):
        a(f"s_add_u32 s4, s3, {par}")
        a(f"v_xor_b32 {v(T2)}, s4, {v(T0)}")
        a(f"v_lshl_add_u32 {v(AW + par)}, {v(T2)}, 5, {v(T1)}")
    a(f"s_xor_b32 s5, {s(S_WAVE)}, 2")
    a(f"v_lshlrev_b32 {v(T1)}, 4, v0")
    a(f"v_lshlrev_b32 {v(T0)}, 3, v0")
    a(f"v_lshlrev_b32 {v(T2)}, 2, {v(VM)}")
    for wv, (q_, p_, p2, m_) in ((s(S_WAVE), (AQW, APW, APW2, AMW)), ("s5", (AQR, APR, APR2, AMR))):
        a(f"s_mul_i32 s3, {wv}, 9216")
        a(f"s_add_u32 s3, s3, {A_Q}")
        a(f"v_add_u32 {v(q_)}, s3, {v(T1)}")
        a(f"s_mul_i32 s3, {wv}, 4608")
        a(f"s_add_u32 s3, s3, {A_P}")
        a(f"v_add_u32 {v(p_)}, s3, {v(T1)}")
        a(f"v_add_u32 {v(p2)}, s3, {v(T0)}")
        a(f"s_mul_i32 s3, {wv}, 192")
        a(f"s_add_u32 s3, s3, {A_M}")
        a(f"v_add_u32 {v(m_)}, s3, {v(T2)}")
    a(f"s_mul_i32 s3, {s(S_I)}, 18")
    a(f"s_mul_i32 s4, {s(S_J)}, 3")
    a("s_add_u32 s3, s3, s4")
    a("s_lshl_b32 s3, s3, 10")
    a(f"v_add_u32 {v(AO)}, s3, {v(T1)}")
    a(f"s_mul_i32 s3, {s(S_J)}, 3072")
    a(f"v_add_u32 {v(AB)}, s3, {v(T1)}")
    a(f"v_lshrrev_b32 v12, 2, {v(VM)}")
    a(f"v_lshl_add_u32 v12, v12, 2, {v(VG)}")
    a(f"v_and_b32 v13, 3, {v(VM)}")
    a("v_lshl_add_u32 v12, v12, 2, v13")
    a(f"s_mul_i32 s3, {s(S_WAVE)}, 7680")
    a(f"v_lshl_add_u32 {v(AP)}, v12, 4, s3")
    a("s_add_u32 s3, s3, 2048")
    a(f"v_lshl_add_u32 {v(AP2)}, v12, 3, s3")
    a(f"v_mov_b32 {v(AOW)}, {A_TAG}")
    for i in range(4):
        a(f"v_mov_b32 {v(ONES + i)}, 0x3f803f80")
    a(f"s_lshl_b32 s3, {s(S_B)}, 5")
    a(f"s_add_u32 s3, s3, {s(S_H)}")
    a(f"s_lshl_b32 s4, {s(S_HH)}, 2")
    a(f"s_add_u32 s4, s4, {s(S_WAVE)}")
    a("s_lshl_b32 s4, s4, 3")
    a("s_andn2_b32 s5, s3, 3")
    a(f"s_lshl_b32 s5, s5, {7 if cfg.pfl & 1 else 5}")
    a(f"s_add_u32 {s(S_F1)}, s4, s5")
    a(f"s_lshl_b32 s6, {s(S_I)}, 3")
    a(f"s_add_u32 s6, s6, {s(S_G8)}")
    a("s_lshl_b32 s6, s6, 3")
    if cfg.pfl & 2:
        a(f"s_lshl_b32 s5, {s(S_B)}, 5")
        a(f"s_lshl_b32 s4, {s(S_J)}, 4")
        a("s_add_u32 s5, s5, s4")
        a(f"s_add_u32 s5, s5, {s(S_HH)}")
    else:
        a(f"s_lshl_b32 s5, {s(S_B)}, 2")
        a(f"s_add_u32 s5, s5, {s(S_HH)}")
        a("s_lshl_b32 s5, s5, 1")
        a(f"s_add_u32 s5, s5, {s(S_J)}")
    a("s_lshl_b32 s5, s5, 7")
    a("s_add_u32 s6, s6, s5")
    a(f"s_add_u32 {s(S_F2)}, s6, {F2}")
    a(f"v_lshlrev_b32 {v(ZERO)}, 7, v0")
    a(f"v_lshlrev_b32 {v(FL2)}, 9, v0")
    a(f"s_lshl_b32 s4, {s(S_B)}, 2")
    a(f"s_add_u32 s4, s4, {s(S_HH)}")
    a("s_lshl_b32 s4, s4, 3")
    a(f"s_add_u32 s4, s4, {s(S_G8)}")
    a(f"s_mul_i32 s4, s4, {PSZ}")
    a(f"s_add_u32 s4, s4, {OFF_P}")
    a("s_mul_i32 s3, s3, 36864")
    a("s_waitcnt lgkmcnt(0)")
    srd(a, R_O, S_WS, "s3", 36864)
    srd(a, R_P, S_WS, "s4", PSZ)
    srd(a, R_F, S_WS, f"{OFF_F}", 262144)

    def fa(n, dt):
        return FR + 36 * n + 4 * dt

    def fb(n, qt):
        return FR + 36 * n + 24 + 4 * qt

    def p1_reads(n, ks):
        def A(dt):
            return [trread(fa(n, dt) + 2 * hh, AX + dt % 4, 384 * (32 * ks + 4 * hh) + 128 * (dt // 4)) for hh in range(2)]

        def B(qt):
            return [rd128(fb(n, qt), AY + ks, 2048 * qt)]
        r = B(0) + A(0) + B(1) + B(2)
        for dt in range(1, 6):
            r += A(dt)
        return r

    def qtile(dt, qt):
        return ACC + 4 * (3 * dt + qt)

    def p1_mfmas(n):
        return [mfma(qtile(dt, qt), fa(n, dt), fb(n, qt)) for dt in range(6) for qt in range(3)]

    adv = [f"v_add_u32 {v(AX + c)}, {s(S_D)}, {v(AX + c)}" for c in range(4)] + \
          [f"v_add_u32 {v(AY + c)}, {s(S_D)}, {v(AY + c)}" for c in range(2)]
    a(f"s_mov_b32 {s(S_SL)}, 0")
    a(f"s_mov_b32 {s(S_CNT)}, 0")
    a(f"s_mov_b32 {s(S_K0)}, {(-2 * SLOT) & 0xffffffff:#x}")
    a(f"s_mov_b32 {s(S_K1)}, {SLOT}")
    st.cyc("setup")
    a("s_barrier")
    st.cyc("b0")
    emit(a, p1_reads(0, 0))
    a(lg(0))
    a.label("L_p1")
    sl = spread(p1_reads(1, 1), 0, 1)
    at(sl, 0, f"s_add_u32 {s(S_SL)}, {s(S_SL)}, 1")
    at(sl, 1, f"s_cmp_eq_u32 {s(S_SL)}, 3")
    at(sl, 2, f"s_cselect_b32 {s(S_D)}, {s(S_K0)}, {s(S_K1)}")
    at(sl, 3, f"s_cselect_b32 {s(S_SL)}, 0, {s(S_SL)}")
    spread(adv, 15, 2, into=sl)
    emit(a, place(p1_mfmas(0), sl))
    a(lg(0))
    a("s_barrier")
    sl = spread(p1_reads(0, 0), 0, 1)
    at(sl, 15, f"s_add_u32 {s(S_CNT)}, {s(S_CNT)}, 1")
    at(sl, 16, f"s_cmp_lt_u32 {s(S_CNT)}, 9")
    emit(a, place(p1_mfmas(1), sl))
    a(lg(0))
    a("s_cbranch_scc1 L_p1")
    emit(a, place(p1_mfmas(0), spread(p1_reads(1, 1), 0, 1)))
    if cfg.ipf & 2:
        a("global_load_dword v14, v7, s[62:63]")
    a(lg(0))
    a("s_barrier")
    st.cyc("b10")
    a.c("SEG q")

    def kf(buf, a_):
        return FR + 12 * buf + 4 * a_

    def k_reads(ls, buf):
        return [rd64(kf(buf, a_) + 2 * hh, AZ + 2 * ls + hh, 6144 * a_) for a_ in range(3) for hh in range(2)]

    def qpack(ls):
        r = []
        for qt in range(3):
            for dt in (2 * ls, 2 * ls + 1):
                d = QP + 4 * (3 * ls + qt) + 2 * (dt % 2)
                r += [cvt(d, qtile(dt, qt)), cvt(d + 1, qtile(dt, qt) + 2)]
        return r

    def qwrite(f):
        return f"ds_write_b128 {v(AQW)}, {v(QP + 4 * f, 4)} offset:{1024 * f}"

    def stile(a_, qt):
        return ACC + 4 * (3 * a_ + qt)

    def s_mfmas(qbase, ls3, buf, first=False, qmajor=False):
        idx = [(a_, qt) for qt in range(3) for a_ in range(3)] if qmajor else [(a_, qt) for a_ in range(3) for qt in range(3)]
        return [mfma(stile(a_, qt), kf(buf, a_), qbase + 4 * (3 * ls3 + qt), 0 if first else None) for a_, qt in idx]

    q0, q1, q2 = qpack(0), qpack(1), qpack(2)
    if cfg.qv == 0:
        sl = spread(k_reads(0, 0) + k_reads(1, 1) + k_reads(2, 2), 0, 2, into={})
        spread(q0, 9, 2, into=sl)
        at(sl, 11, qwrite(0))
        at(sl, 14, qwrite(1))
        spread(q1[:4], 15, 2, into=sl)
        at(sl, 17, qwrite(2))
        emit(a, place(p1_mfmas(1), sl))
        emit(a, q1[4:8] + [qwrite(3)] + q1[8:])
        a(lg(4))
        sl = {}
        at(sl, 0, qwrite(4))
        spread(q2, 1, 2, into=sl)
        at(sl, 3, qwrite(5))
        at(sl, 7, qwrite(6))
        at(sl, 10, qwrite(7))
        at(sl, 13, qwrite(8))
        spread(k_reads(3, 0), 14, 2, into=sl)
        emit(a, place(s_mfmas(QP, 0, 0, True) + s_mfmas(QP, 1, 1), sl))
    else:
        order = [(dt, qt) for ls in range(3) for qt in range(3) for dt in (2 * ls, 2 * ls + 1)]
        mm = [mfma(qtile(dt, qt), fa(1, dt), fb(1, qt)) for dt, qt in order]
        mm += s_mfmas(QP, 0, 0, True) + s_mfmas(QP, 1, 1)
        packs = q0 + q1 + q2
        sl = {}
        if cfg.qv == 1:
            spread(k_reads(0, 0)[:5], 0, 1, into=sl)
            for f in range(9):
                g0 = 5 + 2 * f + (f >= 6) * 2
                spread(packs[4 * f:4 * f + 4], g0, 2, into=sl)
            wr = [7, 10, 13, 16, 19, 22, 25, 28, 31]
            for f in range(9):
                at(sl, wr[f], qwrite(f))
            at(sl, 8, k_reads(0, 0)[5])
            for k, g_ in enumerate([9, 11, 12, 14, 15, 17]):
                at(sl, g_, k_reads(1, 1)[k])
            at(sl, 17, lg(7))
            at(sl, 26, lg(3))
            spread(k_reads(2, 2), 27, 1, into=sl)
            spread(k_reads(3, 0), 29, 1, into=sl)
        elif cfg.qv == 2:
            spread(k_reads(0, 0) + k_reads(1, 1)[:4], 0, 2, into=sl)
            for f in range(9):
                g0 = 5 + 2 * f + (f >= 6) * 2
                spread(packs[4 * f:4 * f + 4], g0, 2, into=sl)
            wr = [7, 10, 13, 16, 19, 22, 25, 28, 31]
            for f in range(9):
                at(sl, wr[f], qwrite(f))
            at(sl, 8, k_reads(1, 1)[4])
            at(sl, 9, k_reads(1, 1)[5])
            at(sl, 17, lg(3))
            spread(k_reads(2, 2), 26, 1, into=sl)
            spread(k_reads(3, 0), 29, 1, into=sl)
        elif cfg.qv in (3, 4):
            kr = k_reads(0, 0) + k_reads(1, 1) + k_reads(2, 2)
            spread(kr[:5], 0, 1, into=sl)
            rest = kr[5:]
            for f in range(9):
                g0 = 5 + 3 * f
                c4 = packs[4 * f:4 * f + 4]
                if cfg.qv == 3:
                    at(sl, g0, rest.pop(0), c4[0], c4[1])
                    at(sl, g0 + 1, c4[2], c4[3])
                else:
                    at(sl, g0, rest.pop(0), c4[0])
                    at(sl, g0 + 1, c4[1], c4[2], c4[3])
                at(sl, g0 + 2, qwrite(f))
            spread(rest, 32, 1, into=sl)
            sl[17].append(lg(8))
            sl[26].append(lg(2))
        elif cfg.qv in (5, 6, 7):
            kr = k_reads(0, 0) + k_reads(1, 1) + k_reads(2, 2)
            spread(kr[:4], 0, 1, into=sl)
            rest = kr[4:]
            start = 4 if cfg.qv == 7 else 5
            for f in range(9):
                g0 = start + 3 * f
                c4 = packs[4 * f:4 * f + 4]
                at(sl, g0, *(rest[:1]), c4[0], c4[1])
                at(sl, g0 + 1, *(rest[1:2]), c4[2], c4[3])
                rest = rest[2:]
                if cfg.qv == 6:
                    d = QP + 4 * f
                    at(sl, g0 + 2, f"ds_write_b64 {v(AQW)}, {v(d, 2)} offset:{1024 * f}",
                       f"ds_write_b64 {v(AQW)}, {v(d + 2, 2)} offset:{1024 * f + 8}")
                else:
                    at(sl, g0 + 2, qwrite(f))
            sl[17].append(lg(4))
            sl[26].append(lg(2))
        emit(a, place(mm, sl))
    st.cyc("a3", True)
    a(lg(0))
    a("s_barrier")
    st.cyc("b11")
    a.c("SEG s")
    QR = FR + 36
    rds = [rd128(QR + 4 * f, AQR, 1024 * f) for f in range(9)]
    if cfg.sv == 0:
        sl = spread(rds[:6], -1, 1)
        spread(k_reads(4, 1), 5, 2, into=sl)
        at(sl, 8, lg(9))
        emit(a, place(s_mfmas(QP, 2, 2), sl))
        st.cyc("a4", True)
        sl = spread(rds[6:], 0, 1)
        spread(k_reads(5, 2), 3, 1, into=sl)
        at(sl, 8, lg(9))
        emit(a, place(s_mfmas(QR, 0, 0), sl))
        emit(a, s_mfmas(QR, 1, 1))
        a(lg(0))
    else:
        sl = spread(rds[:3], -1, 1)
        spread(k_reads(3, 0), 2, 2, into=sl)
        spread(rds[3:6], 5, 1, into=sl)
        at(sl, 8, lg(3))
        spread(k_reads(4, 1), 8, 2, into=sl)
        spread(rds[6:], 11, 1, into=sl)
        spread(k_reads(5, 2), 14, 2, into=sl)
        at(sl, 17, lg(9))
        emit(a, place(s_mfmas(QP, 2, 2) + s_mfmas(QR, 0, 0), sl))

    def xs(qt):
        return [stile(a_, qt) + r for a_ in range(3) for r in range(4)]

    def maxchain(qt):
        x = xs(qt)
        r = [f"v_max3_f32 {v(MX + qt)}, {v(x[0])}, {v(x[1])}, {v(x[2])}"]
        for k in range(3, 11, 2):
            r.append(f"v_max3_f32 {v(MX + qt)}, {v(MX + qt)}, {v(x[k])}, {v(x[k + 1])}")
        r.append(f"v_max_f32 {v(MX + qt)}, {v(MX + qt)}, {v(x[11])}")
        return r
    m0, m1, m2 = maxchain(0), maxchain(1), maxchain(2)
    if cfg.sv == 0:
        emit(a, s_mfmas(QR, 2, 2, qmajor=True))
        st.cyc("sdone", True)
        a("s_nop 0")
        emit(a, m0 + m1 + m2)
    else:
        s4, s5 = s_mfmas(QR, 1, 1, qmajor=True), s_mfmas(QR, 2, 2, qmajor=True)
        mm = sum([s4[3 * qt:3 * qt + 3] + s5[3 * qt:3 * qt + 3] for qt in range(3)], [])
        sl = {}
        at(sl, 2, lg(0))
        spread(m0, 11, 2, into=sl)
        spread(m1[:2], 17, 2, into=sl)
        emit(a, place(mm, sl))
        st.cyc("sdone", True)
        emit(a, m1[2:] + ["s_nop 1"] + m2)
    for op in ("v_permlane16_swap_b32", "v_permlane32_swap_b32"):
        for qt in range(3):
            a(f"v_mov_b32 {v(MX + 3 + qt)}, {v(MX + qt)}")
        for qt in range(3):
            a(f"{op} {v(MX + 3 + qt)}, {v(MX + qt)}")
        for qt in range(3):
            a(f"v_max_f32 {v(MX + qt)}, {v(MX + qt)}, {v(MX + 3 + qt)}")
    for qt in range(3):
        a(f"ds_write_b32 {v(AMW)}, {v(MX + qt)} offset:{64 * qt}")
    st.cyc("a6", True)
    a(lg(0))
    a("s_barrier")
    st.cyc("b12")
    a.c("SEG sm")

    PP, PC = FR, FR + 24
    VQ = [[QP + 4 * dt for dt in range(6)], [FR + 36 + 4 * dt for dt in range(6)], [148, 152, 156, 184, 188, 192]]

    def v_reads(step):
        r = []
        for dt in range(6):
            for hh in range(2):
                if step == 0:
                    ad, tile = AVo, hh
                elif step == 1:
                    ad, tile = (AVo, 2) if hh == 0 else (AVp, 2)
                else:
                    ad, tile = AVp, hh
                r.append(trread(VQ[step][dt] + 2 * hh, ad + dt % 4, 6144 * tile + 128 * (dt // 4)))
        return r
    NM = 2
    for qt in range(3):
        a(f"ds_read_b32 {v(MX + 3 + qt)}, {v(AMR)} offset:{64 * qt}")
    emit(a, v_reads(0))
    if cfg.vbp == 2:
        emit(a, v_reads(1))
    a((lg(15) if cfg.vbp == 2 else lg(12)) if not st.on else lg(0))
    a(f"ds_read_b64 {v(TG, 2)}, {v(AOW)}")
    for qt in range(3):
        a(f"v_max_f32 {v(MX + qt)}, {v(MX + qt)}, {v(MX + 3 + qt)}")
    for qt in range(3):
        a(f"v_mul_f32 {v(NM + 2 * qt)}, {s(S_C)}, {v(MX + qt)}")
    for qt in range(3):
        a(f"v_mov_b32 {v(NM + 2 * qt + 1)}, {v(NM + 2 * qt)}")

    def softmax(qt):
        x = xs(qt)
        e = [f"v_exp_f32 {v(y)}, {v(y)}" for y in x]
        c = [cvt(PP + 8 * qt + k, x[2 * k]) for k in range(6)]
        if cfg.smx == 0 or (cfg.smx == 2 and qt == 0):
            f = [[f"v_pk_fma_f32 {v(x[2 * k], 2)}, {v(x[2 * k], 2)}, {s(S_C, 2)}, {v(NM + 2 * qt, 2)} neg_lo:[0,0,1] neg_hi:[0,0,1]"] for k in range(6)]
        else:
            f = [[f"v_fma_f32 {v(y)}, {v(y)}, {s(S_C)}, -{v(NM + 2 * qt)}" for y in x[2 * k:2 * k + 2]] for k in range(6)]
        r = f[0] + f[1]
        for k in range(6):
            nx = f[k + 2] if k + 2 < 6 else []
            r += [e[2 * k]] + nx[:1] + [e[2 * k + 1]] + nx[1:]
            if k >= 1:
                r.append(c[k - 1])
        r += ["s_nop 0", c[5]]
        return r

    def pwrite(qt):
        return [f"ds_write_b128 {v(APW)}, {v(PP + 8 * qt, 4)} offset:{1536 * qt}",
                f"ds_write_b64 {v(APW2)}, {v(PP + 8 * qt + 4, 2)} offset:{1536 * qt + 1024}"]
    OT = {}
    free = [ACC + 36 + 4 * k for k in range(9)]
    for qt in range(3):
        regs = free[3 * qt:3 * qt + 3] + [stile(a_, qt) for a_ in range(3)]
        for dt in range(6):
            OT[(dt, qt)] = regs[dt]
    pf = [lambda qt: PP + 8 * qt, lambda qt: PP + 8 * qt + 4, lambda qt: PC + 4 * qt]

    def pv(step, qt):
        first = step == 0
        r = [mfma(OT[(dt, qt)], VQ[step][dt], pf[step](qt), 0 if first else None) for dt in range(6)]
        sm = [mfma(LS + 4 * qt, ONES, pf[step](qt), 0 if first else None)]
        return sm + r if step == 2 else r + sm

    def weave(vals, mm, first=3, per=3):
        out, k = [], 0
        for i, m in enumerate(mm):
            n = first if i == 0 else per
            out += vals[k:k + n]
            k += n
            out.append(m)
        return out + vals[k:]
    st.cyc("a7", True)
    vb = v_reads(1) if cfg.vbp == 0 else []
    s0 = softmax(0)
    out = []
    for k, x in enumerate(s0):
        out.append(x)
        if k % 2 == 1 and vb:
            out.append(vb.pop(0))
    emit(a, out + vb)
    emit(a, pwrite(0))
    a(lg(14) if cfg.vbp == 0 else lg(2))
    st.cyc("a8", True)
    emit(a, weave(softmax(1), pv(0, 0), per=cfg.wper))
    emit(a, pwrite(1))
    st.cyc("a9", True)
    emit(a, weave(softmax(2), pv(0, 1), per=cfg.wper))
    emit(a, pwrite(2))
    st.cyc("a10", True)
    a(lg(0))
    a("s_barrier")
    st.cyc("b13")
    a.c("SEG pv")
    prd = [rd64(PP + 8 * qt + 6, APR2, 1536 * qt + 1024) for qt in range(3)]
    prc = [rd128(PC + 4 * qt, APR, 1536 * qt) for qt in range(3)]
    vc = v_reads(2)
    if cfg.vbp in (0, 2):
        sl = spread(prd + prc + vc[:2], -1, 1)
        at(sl, 6, lg(5))
        emit(a, place(pv(0, 2), sl))
        sl = spread(vc[2:], 0, 1)
        at(sl, 13, lg(0))
        emit(a, place(pv(1, 0) + pv(1, 1), sl))
    else:
        emit(a, place(pv(0, 2), spread(prd + v_reads(1), -1, 2)))
        a(lg(0))
        sl = spread(prc + vc[:11], 0, 1)
        at(sl, 13, vc[11], lg(0))
        emit(a, place(pv(1, 0) + pv(1, 1), sl))
    st.cyc("pvB", True)
    OPQ = [160, 164, 168, 172, 176, 180, 212, 216, 220]

    def finish(qt):
        r = [f"v_rcp_f32 {v(MX + 2 * qt)}, {v(LS + 4 * qt)}", "s_nop 0",
             f"v_mov_b32 {v(MX + 2 * qt + 1)}, {v(MX + 2 * qt)}"]
        for ls in range(3):
            d = OPQ[3 * ls + qt]
            for half in range(2):
                t = OT[(2 * ls + half, qt)]
                if cfg.fin == 0 or (cfg.fin == 2 and qt == 2):
                    r.append(f"v_pk_mul_f32 {v(t, 2)}, {v(t, 2)}, {v(MX + 2 * qt, 2)}")
                    r.append(f"v_pk_mul_f32 {v(t + 2, 2)}, {v(t + 2, 2)}, {v(MX + 2 * qt, 2)}")
                else:
                    r += [f"v_mul_f32 {v(t + k)}, {v(MX + 2 * qt)}, {v(t + k)}" for k in range(4)]
            for half in range(2):
                t = OT[(2 * ls + half, qt)]
                r += [cvt(d + 2 * half, t), cvt(d + 2 * half + 1, t + 2)]
            off = (ls * 6 + qt) * 1024
            r.append(f"s_mov_b32 s3, {off}")
            r.append(f"buffer_store_dwordx4 {v(d, 4)}, {v(AO)}, {s(R_O, 4)}, s3 offen {'' if cfg.unsafe in (1, 2) else 'sc1'}")
            if not cfg.odef:
                r.append(f"ds_write_b128 {v(AO)}, {v(d, 4)} offset:{off}")
        return r

    def gaps(f, per):
        out, cur = [], []
        for x in f:
            if x.startswith("s_mov"):
                if cur:
                    out.append(cur)
                cur = [x]
            elif x.startswith(("buffer_", "ds_")):
                out.append(cur + [x])
                cur = []
            else:
                cur.append(x)
                if len(cur) == per:
                    out.append(cur)
                    cur = []
        return out + ([cur] if cur else [])

    def weave2(mm, f, skip, per):
        g = gaps(f, per)
        out = []
        for i, m in enumerate(mm):
            out.append(m)
            if i >= skip and g:
                out += g.pop(0)
        return out + sum(g, [])
    emit(a, pv(2, 0))
    f0, f1, f2 = finish(0), finish(1), finish(2)
    mm = pv(1, 2) + pv(2, 1)
    if cfg.fw == 0:
        emit(a, [mm[0]] + weave(["s_nop 0"] + f0, mm[1:], first=1, per=2))
    else:
        emit(a, weave2(mm, f0, 1, cfg.fw))
    st.cyc("f0", True)
    mm = pv(2, 2)
    if cfg.fw == 0:
        emit(a, [mm[0], mm[1]] + weave(f1, mm[2:], first=0, per=2))
    else:
        emit(a, weave2(mm, f1, 0, cfg.fw))
    st.cyc("f1", True)
    emit(a, f2)
    a.c("SEG end")
    st.cyc("ostore")
    a(lg(0))
    a("s_barrier")

    A4 = ACC
    if cfg.odef:
        for qt in range(3):
            for ls in range(3):
                a(f"ds_write_b128 {v(AO)}, {v(OPQ[3 * ls + qt], 4)} offset:{(ls * 6 + qt) * 1024}")
    for i in range(60):
        a(f"v_mov_b32 {v(A4 + i)}, 0")
    a(f"s_mov_b32 {s(S_K0)}, {(-3 * WOS) & 0xffffffff:#x}")
    a(f"s_mov_b32 {s(S_K1)}, {WOS}")
    a(f"s_mov_b32 s6, {(-5 * OS) & 0xffffffff:#x}")
    a(f"s_mov_b32 s7, {OS}")
    a(f"s_mov_b32 {s(S_SL)}, 1")
    a(f"s_mov_b32 {s(S_SL2)}, 0")
    a(f"s_mov_b32 {s(S_CNT)}, 0")
    a("s_waitcnt vmcnt(0)")
    a(f"s_mov_b64 exec, {15 if cfg.pfl & 1 else 1}")
    a(f"buffer_store_dwordx2 {v(TG, 2)}, {v(ZERO)}, {s(R_F, 4)}, {s(S_F1)} offen {'' if cfg.unsafe in (1, 2) else 'sc1'}")
    a("s_mov_b64 exec, -1")
    st.cyc("flag1")

    def ga(n, tt):
        return FR + 32 * n + 4 * tt

    def gb(n, qt):
        return FR + 32 * n + 20 + 4 * qt

    def p4_reads(n, ks):
        def A(tt):
            return [trread(ga(n, tt) + 2 * hh, AW + tt % 2, 320 * (32 * ks + 16 * hh) + 64 * (tt // 2)) for hh in range(2)]

        def B(qt):
            return [rd128(gb(n, qt), AB, 6144 * ks + 1024 * qt)]
        r = B(0) + A(0) + B(1) + B(2)
        for tt in range(1, 5):
            r += A(tt)
        return r

    def p4_mfmas(n):
        return [mfma(A4 + 4 * (3 * tt + qt), ga(n, tt), gb(n, qt)) for tt in range(5) for qt in range(3)]
    adv4 = [f"v_add_u32 {v(AW + c)}, {s(S_D)}, {v(AW + c)}" for c in range(2)] + [f"v_add_u32 {v(AB)}, {s(S_D2)}, {v(AB)}"]
    a(lg(0))
    a("s_barrier")
    st.cyc("B0")
    emit(a, p4_reads(0, 0))
    a(lg(0))
    a.label("L_p4")
    sl = spread(p4_reads(1, 1), 0, 1)
    sc = [f"s_add_u32 {s(S_SL)}, {s(S_SL)}, 1", f"s_cmp_eq_u32 {s(S_SL)}, 4",
          f"s_cselect_b32 {s(S_D)}, {s(S_K0)}, {s(S_K1)}", f"s_cselect_b32 {s(S_SL)}, 0, {s(S_SL)}",
          f"s_add_u32 {s(S_SL2)}, {s(S_SL2)}, 1", f"s_cmp_eq_u32 {s(S_SL2)}, 6",
          f"s_cselect_b32 {s(S_D2)}, s6, s7", f"s_cselect_b32 {s(S_SL2)}, 0, {s(S_SL2)}"]
    spread(sc, 0, 1, into=sl)
    spread(adv4, 13, 2, into=sl)
    at(sl, 12, f"s_cmp_eq_u32 {s(S_CNT)}, 2")
    emit(a, place(p4_mfmas(0), sl))
    a(lg(0))
    a("s_cbranch_scc0 L_p4bar")
    st.cyc("own")
    a("s_barrier")
    a.label("L_p4bar")
    a("s_barrier")
    sl = spread(p4_reads(0, 0), 0, 1)
    at(sl, 12, f"s_add_u32 {s(S_CNT)}, {s(S_CNT)}, 1")
    at(sl, 13, f"s_cmp_lt_u32 {s(S_CNT)}, 11")
    emit(a, place(p4_mfmas(1), sl))
    a(lg(0))
    a("s_cbranch_scc1 L_p4")
    st.cyc("p4loop")
    emit(a, place(p4_mfmas(0), spread(p4_reads(1, 1), 0, 1)))
    a(lg(0))
    PK = QP

    def tile(tt, qt):
        return A4 + 4 * (3 * tt + qt)
    ep = []
    for pb in range(2):
        for qt in range(3):
            d = PK + 4 * (3 * pb + qt)
            t0, t1 = tile(2 * pb, qt), tile(2 * pb + 1, qt)
            ep.append([cvt(d, t0), cvt(d + 1, t0 + 2), cvt(d + 2, t1), cvt(d + 3, t1 + 2),
                       f"s_mov_b32 s3, {2560 * qt + 1024 * pb}",
                       f"buffer_store_dwordx4 {v(d, 4)}, {v(AP)}, {s(R_P, 4)}, s3 offen sc1"])
    for qt in range(3):
        d = PK + 24 + 2 * qt
        ep.append([cvt(d, tile(4, qt)), cvt(d + 1, tile(4, qt) + 2), f"s_mov_b32 s3, {2560 * qt}",
                   f"buffer_store_dwordx2 {v(d, 2)}, {v(AP2)}, {s(R_P, 4)}, s3 offen sc1"])
    flat = sum(ep, [])
    emit(a, place(p4_mfmas(1), spread(flat[:12], 9, 2)))
    emit(a, flat[12:])
    st.cyc("pstore")
    if not cfg.sent:
        a("s_waitcnt vmcnt(0)")
    elif cfg.sent > 1:
        a(f"s_waitcnt vmcnt({cfg.sent})")
    a(f"s_mov_b64 exec, {15 if cfg.pfl & 2 else 1}")
    a(f"buffer_store_dwordx2 {v(TG, 2)}, {v(FL2)}, {s(R_F, 4)}, {s(S_F2)} offen sc1")
    st.cyc("flag2")
    st.real("real1")
    st.flush("C")
    a.label("L_last")
    a("s_endpgm")


def gen_loader(a, cfg):
    st = Stamps(a, cfg)
    R_X, R_WQ, R_K, R_V, R_WO = 8, 12, 16, 20, 56
    R_OI, R_PI, R_OUT = 12, 16, 20
    S_LW, S_SW, S_SX, S_LDS, S_N, S_KK, S_PK = 50, 51, 52, 53, 54, 55, 49
    S_MW, S_MX, S_LDO = 62, 63, 7
    OW, OX, OK_, OV, OWO, OO = 16, 22, 25, 34, 43, 48
    RRc, UUc = 52, 55
    AT, AF1, AF2, TG, PT = 58, 59, 60, 62, 64
    A0, A1, RT, JK, AT2 = 66, 67, 68, 74, 75
    T0, T1, T2 = 4, 5, 6

    if cfg.lprio:
        a("s_setprio 3")
    if cfg.only and "k0" in st.only:
        a("s_waitcnt lgkmcnt(0)")
        st.cyc("k0")
    a(f"s_sub_u32 {s(S_LW)}, {s(S_WAVE)}, 4")
    for c in range(3):
        a(f"v_add_u32 {v(T0)}, {64 * c}, v0")
        a(f"v_mul_u32_u24 {v(T1)}, 2731, {v(T0)}")
        a(f"v_lshrrev_b32 {v(RRc + c)}, 16, {v(T1)}")
        a(f"v_mul_u32_u24 {v(T1)}, 24, {v(RRc + c)}")
        a(f"v_sub_u32 {v(UUc + c)}, {v(T0)}, {v(T1)}")
    a(f"s_mul_i32 s3, {s(S_LW)}, 3")
    a(f"v_lshrrev_b32 {v(T2)}, 4, v0")
    a("v_and_b32 v7, 7, v0")
    a("v_lshrrev_b32 v8, 3, v0")
    for c in range(3):
        a(f"s_add_u32 s4, s3, {c}")
        a("s_lshl_b32 s6, s4, 3")
        a("s_and_b32 s4, s4, 1")
        a("s_lshl_b32 s4, s4, 2")
        a(f"v_or_b32 {v(T0)}, s4, {v(T2)}")
        a(f"v_xor_b32 {v(T0)}, {v(T0)}, v7")
        a(f"v_add_u32 {v(T1)}, s6, v8")
        a(f"v_mul_u32_u24 {v(T1)}, 1280, {v(T1)}")
        a(f"v_lshl_add_u32 {v(OX + c)}, {v(T0)}, 4, {v(T1)}")
    a(f"s_lshl_b32 s3, {s(S_LW)}, 4")
    for c in range(3):
        a(f"v_bfe_u32 {v(T0)}, {v(RRc + c)}, 1, 1")
        a(f"v_lshlrev_b32 {v(T0)}, 1, {v(T0)}")
        a(f"v_xor_b32 {v(T0)}, {v(T0)}, {v(UUc + c)}")
        a(f"v_add_u32 {v(T1)}, s3, {v(RRc + c)}")
        a(f"v_mul_u32_u24 {v(T1)}, 12288, {v(T1)}")
        a(f"v_lshl_add_u32 {v(OW + c)}, {v(T0)}, 4, {v(T1)}")
        a(f"v_xor_b32 {v(T0)}, 64, {v(OW + c)}")
        a(f"v_add_u32 {v(OW + 3 + c)}, {8 * 12288}, {v(T0)}")
    a(f"s_mul_i32 {s(S_MW)}, {s(S_LW)}, 6144")
    a(f"s_mul_i32 {s(S_MX)}, {s(S_LW)}, 3072")
    a(f"s_add_u32 {s(S_MX)}, {s(S_MX)}, 24576")
    fb = {8: [0, 2, 4, 6, 8, 0, 2, 4], 9: [0, 5, 0, 5, 0, 5, 0, 5], 10: [0, 3, 5, 8, 0, 3, 5, 8],
          11: [0, 3, 7, 0, 3, 7, 0, 3]}[cfg.rot]
    word = sum(x << (4 * i) for i, x in enumerate(fb))
    a(f"s_lshl_b32 s3, {s(S_B)}, 2")
    a(f"s_lshr_b32 s3, {word:#x}, s3")
    a("s_and_b32 s3, s3, 15")
    a(f"s_lshl_b32 s4, {s(S_HH)}, 2")
    a("s_lshr_b32 s4, 0x8530, s4")
    a("s_and_b32 s4, s4, 15")
    a("s_add_u32 s3, s3, s4")
    a(f"s_add_u32 {s(S_KK)}, s3, {s(S_G8)}")
    mod_small(a, s(S_KK), 10, 2)
    a(f"s_mov_b32 {s(S_LDS)}, 0")
    a(f"s_mul_i32 s3, {s(S_B)}, 122880")
    a(f"s_mul_i32 s5, {s(S_H)}, 384")
    a("s_sub_u32 s4, 7864320, s5")
    st.cyc("pre", True) if cfg.only else None
    a("s_waitcnt lgkmcnt(0)")
    st.cyc("karg", True)
    srd(a, R_X, S_X, "s3", 122880)
    srd(a, R_WQ, S_WQ, "s5", "s4")

    def stage_body():
        a(f"s_mul_i32 {s(S_SW)}, {s(S_KK)}, {64 * 12288}")
        a(f"s_lshl_b32 {s(S_SX)}, {s(S_KK)}, 7")
        a(f"s_add_u32 s3, {s(S_LDS)}, {s(S_MW)}")
        a(f"s_add_u32 s4, {s(S_LDS)}, {s(S_MX)}")
        for c in range(3):
            dma(a, OX + c, R_X, s(S_SX), "s4", 1024 * c)
        for p in range(6):
            dma(a, OW + p, R_WQ, s(S_SW), "s3", 1024 * p, "nt" if cfg.ntkv & 8 else "")
        a(f"s_add_u32 {s(S_KK)}, {s(S_KK)}, 1")
        a(f"s_cmp_eq_u32 {s(S_KK)}, 10")
        a(f"s_cselect_b32 {s(S_KK)}, 0, {s(S_KK)}")
        a(f"s_add_u32 {s(S_LDS)}, {s(S_LDS)}, {SLOT}")
        a(f"s_cmp_eq_u32 {s(S_LDS)}, {3 * SLOT}")
        a(f"s_cselect_b32 {s(S_LDS)}, 0, {s(S_LDS)}")

    def call(lbl):
        a(f"s_call_b64 s[44:45], {lbl}")
    stage_body()
    if cfg.lprio:
        a("s_setprio 0")
    st.cyc("issued")
    a(f"s_lshl_b32 s3, {s(S_B)}, 7")
    a(f"s_add_u32 s3, s3, {OFF_F + FX}")
    a(f"s_add_u32 s4, {s(S_WS)}, s3")
    a(f"s_addc_u32 s5, {s(S_WS + 1)}, 0")
    a(f"s_load_dwordx2 {s(S_TAG, 2)}, s[4:5], 0")
    if cfg.kpos >= 9:
        table = {9: [1, 2, 3, 4, 5, 6, 7, 8], 11: [8, 8, 7, 7, 6, 6, 5, 5], 12: [8, 7, 6, 5, 8, 4, 3, 2],
                 13: [1, 8, 1, 8, 1, 8, 1, 8], 14: [1, 1, 8, 1, 1, 8, 1, 8],
                 20: [1, 8, 1, 1, 8, 1, 1, 8], 21: [1, 8, 8, 1, 8, 8, 1, 8], 22: [1, 8, 4, 1, 8, 4, 1, 8],
                 23: [1, 2, 1, 1, 2, 1, 1, 2], 24: [1, 8, 5, 3, 8, 6, 1, 8], 25: [0, 8, 1, 0, 8, 1, 0, 8],
                 26: [1, 8, 1, 8, 1, 8, 1, 8], 27: [0, 8, 0, 8, 0, 8, 0, 8]}[cfg.kpos]
        word = sum(x << (4 * i) for i, x in enumerate(table))
        if cfg.kpos < 20:
            a(f"s_add_u32 s3, {s(S_B)}, {s(S_G8)}")
            a("s_and_b32 s3, s3, 7")
            a("s_lshl_b32 s3, s3, 2")
        else:
            a(f"s_lshl_b32 s3, {s(S_B)}, 2")
        a(f"s_lshr_b32 s3, {word:#x}, s3")
        a(f"s_and_b32 {s(S_PK)}, s3, 15")
    else:
        a(f"s_mov_b32 {s(S_PK)}, {cfg.kpos}")
    a(f"s_lshl_b32 s3, {s(S_B)}, 5")
    a(f"s_add_u32 s3, s3, {s(S_H)}")
    a("s_mul_i32 s3, s3, 36864")
    srd(a, R_K, S_K, "s3", 36864)
    srd(a, R_V, S_V, "s3", 36864)
    srd(a, R_F, S_WS, f"{OFF_F}", 262144)
    a(f"s_mul_i32 s3, {s(S_LW)}, 24")
    a(f"s_and_b32 s4, {s(S_LW)}, 1")
    a("s_lshl_b32 s4, s4, 6")
    for c in range(3):
        a(f"v_lshrrev_b32 {v(T0)}, 1, {v(RRc + c)}")
        a(f"v_add_u32 {v(T1)}, s3, {v(RRc + c)}")
        a(f"v_mul_u32_u24 {v(T1)}, 384, {v(T1)}")
        a(f"v_xor_b32 {v(T2)}, {v(T0)}, {v(UUc + c)}")
        a(f"v_lshl_add_u32 {v(T2)}, {v(T2)}, 4, {v(T1)}")
        a(f"v_xor_b32 {v(OK_ + c)}, s4, {v(T2)}")
        a(f"v_xor_b32 {v(T2)}, 64, {v(OK_ + c)}")
        a(f"v_add_u32 {v(OK_ + 3 + c)}, 3072, {v(T2)}")
        a(f"v_add_u32 {v(OK_ + 6 + c)}, 6144, {v(OK_ + c)}")
        a(f"v_lshlrev_b32 {v(T2)}, 1, {v(T0)}")
        a(f"v_xor_b32 {v(T2)}, {v(T2)}, {v(UUc + c)}")
        a(f"v_lshl_add_u32 {v(OV + c)}, {v(T2)}, 4, {v(T1)}")
        a(f"v_add_u32 {v(OV + 3 + c)}, 3072, {v(OV + c)}")
        a(f"v_add_u32 {v(OV + 6 + c)}, 6144, {v(OV + c)}")
    a(f"s_mul_i32 s3, {s(S_G8)}, 983040")
    a(f"s_mul_i32 s4, {s(S_HH)}, 320")
    a("s_add_u32 s3, s3, s4")
    a("s_sub_u32 s4, 7864320, s3")
    srd(a, R_WO, S_WO, "s3", "s4")
    a(f"s_lshl_b32 s3, {s(S_B)}, 2")
    a(f"s_add_u32 s3, s3, {s(S_LW)}")
    a("s_mul_i32 s3, s3, 24")
    a(f"v_mul_u32_u24 {v(T1)}, 21846, v0")
    a(f"v_lshrrev_b32 {v(T1)}, 16, {v(T1)}")
    a(f"v_mul_u32_u24 {v(T2)}, 3, {v(T1)}")
    a(f"v_sub_u32 {v(T0)}, v0, {v(T2)}")
    a(f"v_add_u32 {v(T1)}, s3, {v(T1)}")
    a(f"v_mul_u32_u24 {v(T1)}, 1280, {v(T1)}")
    a(f"v_lshl_add_u32 {v(AT)}, {v(T0)}, 7, {v(T1)}")
    a(f"v_min_u32 {v(T0)}, 7, v0")
    a(f"v_add_u32 {v(T0)}, 64, {v(T0)}")
    a(f"v_mul_u32_u24 {v(T1)}, 21846, {v(T0)}")
    a(f"v_lshrrev_b32 {v(T1)}, 16, {v(T1)}")
    a(f"v_mul_u32_u24 {v(T2)}, 3, {v(T1)}")
    a(f"v_sub_u32 {v(T0)}, {v(T0)}, {v(T2)}")
    a(f"v_add_u32 {v(T1)}, s3, {v(T1)}")
    a(f"v_mul_u32_u24 {v(T1)}, 1280, {v(T1)}")
    a(f"v_lshl_add_u32 {v(AT2)}, {v(T0)}, 7, {v(T1)}")
    if cfg.lprio == 2:
        a("s_setprio 3")
    stage_body()

    def issue_kv(off, srd_, base):
        a(f"s_mul_i32 s3, {s(S_LW)}, 9216")
        a(f"s_add_u32 s3, s3, {base}")
        for p in range(9):
            dma(a, off + p, srd_, "0", "s3", 1024 * p, "nt" if cfg.ntkv & (1 if srd_ == R_K else 2) else "")
    a("s_waitcnt vmcnt(9)")
    st.cyc("landed0")
    a("s_barrier")
    a(f"s_mov_b32 {s(S_N)}, 0")
    a.label("L_lloop")
    a(f"s_cmp_eq_u32 {s(S_N)}, {s(S_PK)}")
    a("s_cbranch_scc0 L_nok")
    call("L_sub_k")
    a.label("L_nok")
    stage_body()
    a("s_waitcnt vmcnt(9)")
    a("s_barrier")
    a(f"s_add_u32 {s(S_N)}, {s(S_N)}, 1")
    a(f"s_cmp_lt_u32 {s(S_N)}, 8")
    a("s_cbranch_scc1 L_lloop")
    st.cyc("b8")
    a(f"s_cmp_eq_u32 {s(S_PK)}, 8")
    a("s_cbranch_scc0 L_vonly")
    call("L_sub_k")
    a("s_waitcnt vmcnt(9)")
    a("s_barrier")
    call("L_sub_v")
    a("s_branch L_kvdone")
    a.label("L_sub_k")
    issue_kv(OK_, R_K, A_K)
    a("s_setpc_b64 s[44:45]")
    a.label("L_sub_v")
    issue_kv(OV, R_V, A_V)
    a("s_setpc_b64 s[44:45]")
    a.label("L_sub_wo")
    a(f"s_mul_i32 {s(S_SW)}, {s(S_KK)}, {64 * 1280}")
    a(f"s_add_u32 s3, {s(S_LDS)}, {s(S_MW)}")
    for p in range(5):
        dma(a, OWO + p, R_WO, s(S_SW), "s3", 1024 * p)
    a(f"s_add_u32 {s(S_KK)}, {s(S_KK)}, 1")
    a(f"s_cmp_eq_u32 {s(S_KK)}, 12")
    a(f"s_cselect_b32 {s(S_KK)}, 0, {s(S_KK)}")
    a(f"s_add_u32 {s(S_LDS)}, {s(S_LDS)}, {WOS}")
    a(f"s_cmp_eq_u32 {s(S_LDS)}, {4 * WOS}")
    a(f"s_cselect_b32 {s(S_LDS)}, 0, {s(S_LDS)}")
    a("s_setpc_b64 s[44:45]")
    a.label("L_sub_o")
    a(f"s_mul_i32 {s(S_SX)}, {s(S_PK)}, {OS}")
    a(f"s_add_u32 m0, {s(S_LDO)}, {s(S_MX)}")
    a(f"s_add_u32 {s(S_PK)}, {s(S_PK)}, 1")
    for c in range(3):
        a(f"buffer_load_dwordx4 {v(OO)}, {s(R_OI, 4)}, {s(S_SX)} offen offset:{1024 * c} {['sc1', '', 'nt'][cfg.unsafe % 9]} lds")
    a(f"s_cmp_eq_u32 {s(S_PK)}, 12")
    a(f"s_cselect_b32 {s(S_PK)}, 0, {s(S_PK)}")
    a(f"s_add_u32 {s(S_LDO)}, {s(S_LDO)}, {OS}")
    a(f"s_cmp_eq_u32 {s(S_LDO)}, {6 * OS}")
    a(f"s_cselect_b32 {s(S_LDO)}, 0, {s(S_LDO)}")
    a("s_setpc_b64 s[44:45]")
    a.label("L_vonly")
    call("L_sub_v")
    a("s_waitcnt vmcnt(9)")
    a("s_barrier")
    a.label("L_kvdone")
    a("s_waitcnt vmcnt(9)")
    st.cyc("Kland")
    a("s_barrier")
    touch = (f"buffer_load_dword {v(JK)}, {v(AT)}, {s(R_WO, 4)}, 0 offen\n"
             f"buffer_load_dword {v(JK + 2)}, {v(AT2)}, {s(R_WO, 4)}, 0 offen")
    if cfg.tpos == 10:
        a(touch)
    a(f"s_lshl_b32 s3, {s(S_B)}, 3")
    a(f"s_add_u32 s3, s3, {s(S_G8)}")
    a(f"s_mul_i32 s3, s3, {4 * 36864}")
    srd(a, R_OI, S_WS, "s3", 4 * 36864)
    a(f"s_lshl_b32 s3, {s(S_B)}, 2")
    a(f"s_add_u32 s3, s3, {s(S_HH)}")
    a(f"s_mul_i32 s3, s3, {8 * PSZ}")
    a(f"s_add_u32 s3, s3, {OFF_P}")
    srd(a, R_PI, S_WS, "s3", 8 * PSZ)
    a(f"s_mul_i32 {s(S_MW)}, {s(S_LW)}, 5120")
    a(f"s_add_u32 {s(S_MW)}, {s(S_MW)}, {WO0}")
    a(f"s_mul_i32 {s(S_MX)}, {s(S_LW)}, 3072")
    a(f"s_mul_i32 {s(S_KK)}, {s(S_HH)}, 3")
    a(f"s_add_u32 {s(S_PK)}, {s(S_KK)}, 3")
    a(f"s_cmp_eq_u32 {s(S_PK)}, 12")
    a(f"s_cselect_b32 {s(S_PK)}, 0, {s(S_PK)}")
    a(f"s_mov_b32 {s(S_LDS)}, {WOS}")
    a(f"s_mov_b32 {s(S_LDO)}, {3 * OS}")
    a("s_barrier")
    if cfg.lprio == 2:
        a("s_setprio 0")
    if cfg.tpos == 11:
        a(touch)
    a(f"s_lshl_b32 s3, {s(S_LW)}, 4")
    for c in range(5):
        a(f"v_add_u32 {v(T0)}, {64 * c}, v0")
        a(f"v_mul_u32_u24 {v(T1)}, 3277, {v(T0)}")
        a(f"v_lshrrev_b32 {v(T1)}, 16, {v(T1)}")
        a(f"v_mul_u32_u24 {v(T2)}, 20, {v(T1)}")
        a(f"v_sub_u32 {v(T0)}, {v(T0)}, {v(T2)}")
        a(f"v_lshrrev_b32 {v(T2)}, 1, {v(T1)}")
        a(f"v_and_b32 {v(T2)}, 2, {v(T2)}")
        a(f"v_xor_b32 {v(T0)}, {v(T0)}, {v(T2)}")
        a(f"v_add_u32 {v(T1)}, s3, {v(T1)}")
        a(f"v_mul_u32_u24 {v(T1)}, 1280, {v(T1)}")
        a(f"v_lshl_add_u32 {v(OWO + c)}, {v(T0)}, 4, {v(T1)}")
    a(f"v_lshl_add_u32 {v(OO)}, v0, 4, {s(S_MX)}")
    a(f"s_lshl_b32 s3, {s(S_B)}, 5")
    a(f"s_add_u32 s3, s3, {s(S_H)}")
    if not cfg.pfl & 1:
        a("s_lshr_b32 s3, s3, 2")
    a("s_lshl_b32 s3, s3, 7")
    a(f"v_and_b32 {v(T0)}, 15, v0")
    a(f"v_lshl_add_u32 {v(AF1)}, {v(T0)}, 3, s3")
    a("s_waitcnt lgkmcnt(0)")
    a(f"s_add_u32 {s(S_TAG)}, {s(S_TAG)}, {TAGC[0]:#x}")
    a(f"s_addc_u32 {s(S_TAG + 1)}, {s(S_TAG + 1)}, {TAGC[1]:#x}")
    a(f"v_mov_b32 {v(TG)}, {s(S_TAG)}")
    a(f"v_mov_b32 {v(TG + 1)}, {s(S_TAG + 1)}")
    a(f"v_mov_b32 {v(T0)}, {A_TAG}")
    a(f"ds_write_b64 {v(T0)}, {v(TG, 2)}")
    a(f"s_waitcnt vmcnt(2) lgkmcnt(0)")
    st.cyc("Vland")
    if cfg.lprio == 2:
        a("s_setprio 3")
    a("s_barrier")
    a(f"s_mul_i32 s3, {s(S_B)}, 122880")
    a(f"s_mul_i32 s4, {s(S_HH)}, 320")
    a("s_add_u32 s3, s3, s4")
    a("s_sub_u32 s4, 983040, s3")
    srd(a, R_OUT, S_OUT, "s3", "s4")
    a("s_barrier")

    def poll(name, vaddr):
        a(f"s_mov_b32 s3, {SPIN_MAX}")
        a.label(name)
        a(f"buffer_load_dwordx2 {v(PT, 2)}, {v(vaddr)}, {s(R_F, 4)}, 0 offen sc1")
        a("s_sub_u32 s3, s3, 1")
        a("s_cmp_eq_u32 s3, 0")
        a(f"s_cbranch_scc1 {name}_out")
        a("s_waitcnt vmcnt(0)")
        a(f"v_cmp_ne_u64 vcc, {v(PT, 2)}, {v(TG, 2)}")
        a("s_nop 1")
        a(f"s_cbranch_vccnz {name}")
        a.label(name + "_out")
        a("s_waitcnt vmcnt(0)")

    BARS = ["B0", "B1", "B2", "BX"] + [f"B{n}" for n in range(3, 12)]
    own_mask = "s[4:5]"

    def run(path, tokens, state, alts):
        q, nwo, no, bi = state
        q = list(q)
        for k, ch in enumerate(tokens):
            free = -1 if bi < 2 else (bi - 2 if bi <= 4 else bi - 3)
            if ch == "w":
                assert nwo <= max(3, free + 4), (path, k, nwo, free)
                call("L_sub_wo")
                q.append((nwo, 5))
                nwo += 1
            elif ch == "o":
                assert no <= max(5, free + 6), (path, k, no, free)
                call("L_sub_o")
                q.append((no, 3))
                no += 1
            elif ch == "c":
                if cfg.sent:
                    a("s_mov_b32 s3, 4096")
                    for kk in range(8):
                        a(f"buffer_store_dwordx4 {v(CL, 4)}, {v(ACL)}, {s(R_PO, 4)}, {'s3' if kk >= 4 else '0'} offen offset:{1024 * (kk % 4)} sc1")
                    q.append((11, 8))
            elif ch == "p":
                a(f"buffer_load_dwordx2 {v(PT, 2)}, {v(AF1)}, {s(R_F, 4)}, 0 offen sc1")
                q.append((99, 1))
            elif ch in "ab":
                last = max(i for i, (kk, _) in enumerate(q) if kk == 99)
                a(f"s_waitcnt vmcnt({sum(c for _, c in q[last + 1:])})")
                q = q[last + 1:]
                a(f"v_cmp_ne_u64 vcc, {v(PT, 2)}, {v(TG, 2)}")
                a("s_nop 1")
                a(f"s_and_b64 s[4:5], vcc, {s(S_OM, 2)}")
                a(f"s_cbranch_scc0 L_path_{ch}")
                alts[ch] = (q, nwo, no, bi)
            elif ch == "s":
                poll("L_poll1", AF1)
                q = []
            elif ch == "|":
                name = BARS[bi]
                need = {"BX": -1}.get(name, int(name[1:]) if name != "BX" else -1)
                if need >= 0:
                    assert nwo > need and (need < 3 or no > need), (path, name)
                    last = max([i for i, (kk, _) in enumerate(q) if kk <= need] + [-1])
                    cnt = sum(c for _, c in q[last + 1:])
                    if last >= 0:
                        a(f"s_waitcnt vmcnt({cnt})")
                    q = q[last + 1:]
                a("s_barrier")
                bi += 1
        assert bi == len(BARS) and nwo == 12 and no == 12, (path, bi, nwo, no)
    CL, ACL, R_PO = 112, 116, 8
    if cfg.sent:
        a(f"s_lshl_b32 s3, {s(S_B)}, 2")
        a(f"s_add_u32 s3, s3, {s(S_HH)}")
        a("s_lshl_b32 s3, s3, 3")
        a(f"s_add_u32 s3, s3, {s(S_G8)}")
        a(f"s_mul_i32 s3, s3, {PSZ}")
        a(f"s_add_u32 s3, s3, {OFF_P}")
        srd(a, R_PO, S_WS, "s3", PSZ)
        a(f"s_mul_i32 s3, {s(S_LW)}, 7680")
        a(f"v_lshl_add_u32 {v(ACL)}, v0, 4, s3")
        for kk in range(4):
            a(f"v_mov_b32 {v(CL + kk)}, -1")
    S_OM = 4 * 0 + 40
    a(f"s_lshl_b32 s3, {s(S_HH)}, 2")
    a("s_lshl_b32 s3, 0x000f000f, s3")
    a(f"s_not_b32 {s(S_OM)}, s3")
    a(f"s_mov_b32 {s(S_OM + 1)}, {s(S_OM)}")
    a("s_barrier")
    tabs = {
        1: dict(N="wp a|ww|wp|b|ww s ooo|wo|wo|wo|wo|wo|wo|||",
                a="|ww|w ooo||w|wo|wo|wo|wo|wo|wo|w||",
                b="ooo|w|wo|wo|wo|wo|wo|wo|w||"),
        2: dict(N="wp a|ww|wp|b|ww s ooo|wo|wo|wo|wo|wo|wo|||",
                a="|ww|w ooo||w|wwo|wo|wo|wo|wo|wo|||",
                b="ooo|w|wwo|wo|wo|wo|wo|wo|||"),
        3: dict(N="wp a|ww|wp|b|www s ooo|ooo|w|w|w|oo|w|wo||",
                a="|ww|w ooo||ww|wo|wo|wo|wo|wo|wo|||",
                b="ooo|ww|wo|wo|wo|wo|wo|wo|||"),
        4: dict(N="w|ww|wp|b|ww s ooo|wo|wo|wo|wo|wo|woc|||",
                b="ooo|w|wo|wo|wo|wo|wo|wo|wc||"),
        8: dict(N="wp|ww a|wp|b|ww s ooo|wo|wo|wo|wo|wo|wo|||",
                a="ooo|w||w|wo|wo|wo|wo|wo|wo|w||",
                b="ooo|w|wo|wo|wo|wo|wo|wo|w||"),
        9: dict(N="w|wpw a|wp|b|ww s ooo|wo|wo|wo|wo|wo|wo|||",
                a="ooo|w||w|wo|wo|wo|wo|wo|wo|w||",
                b="ooo|w|wo|wo|wo|wo|wo|wo|w||"),
        10: dict(N="w|wwp|a wp|b|ww s ooo|wo|wo|wo|wo|wo|wo|||",
                 a="w ooo||w|wo|wo|wo|wo|wo|wo|w||",
                 b="ooo|w|wo|wo|wo|wo|wo|wo|w||"),
        11: dict(N="w|wwp|a wp|b|ww s ooo|wo|wo|wo|wo|wo|wo|||",
                 a="w oo||wo|wo|wo|wo|wo|wo|wo|w||",
                 b="oo|wo|wo|wo|wo|wo|wo|wo|w||"),
        7: dict(N="w|ww|wp|b|ww s ooo|wo|wo|wo|wo|wo|wo|c||",
                b="ooo|w|wwo|wo|wo|wo|wo|woc|||"),
        5: dict(N="wp a|ww|wp|b|ww s ooo|wo|wo|wo|wo|wo|wo|||",
                a="|ww|w oo||wo|wo|wo|wo|wo|wo|wo|w||",
                b="oo|wo|wo|wo|wo|wo|wo|wo|w||"),
        6: dict(N="wp a|ww|wp|b|ww s ooo|wo|wo|wo|wo|wo|wo|||",
                a="|www ooo|||w|wwo|wo|wo|wo|wo|wo|||",
                b="ooo|w|wwo|wo|wo|wo|wo|wo|||"),
    }[cfg.tab]
    alts = {}
    run("N", tabs["N"].replace(" ", ""), ([], 0, 3, 0), alts)
    a("s_branch L_final")
    for key in sorted(alts):
        a.label(f"L_path_{key}")
        run(key, tabs[key].replace(" ", ""), alts[key], {})
        if key != sorted(alts)[-1]:
            a("s_branch L_final")
    a.label("L_final")
    OFFS = RT
    a(f"s_lshr_b32 s5, {s(S_G8)}, 2")
    if cfg.pfl & 2:
        a(f"s_lshl_b32 s3, {s(S_B)}, 5")
        a(f"s_add_u32 s3, s3, {s(S_H)}")
    else:
        a(f"s_lshl_b32 s3, {s(S_B)}, 2")
        a(f"s_add_u32 s3, s3, {s(S_HH)}")
        a("s_lshl_b32 s3, s3, 1")
        a("s_add_u32 s3, s3, s5")
    a("s_lshl_b32 s3, s3, 7")
    a(f"s_add_u32 s3, s3, {F2}")
    a(f"v_and_b32 {v(T0)}, 15, v0")
    a(f"v_lshl_add_u32 {v(AF2)}, {v(T0)}, 3, s3")
    a(f"s_and_b32 s6, {s(S_G8)}, 3")
    a("s_mul_i32 s6, s6, 3")
    a("s_mul_i32 s5, s5, 7680")
    a(f"s_mul_i32 s4, {s(S_G8)}, {0 if cfg.otr else 12 * 1280}")
    a(f"s_cmp_eq_u32 {s(S_LW)}, 3")
    a("s_cbranch_scc1 L_red3")
    a(f"s_add_u32 s6, s6, {s(S_LW)}")
    a("s_lshr_b32 s3, s6, 2")
    a("s_mul_i32 s3, s3, 2560")
    a("s_add_u32 s5, s5, s3")
    a("s_and_b32 s6, s6, 3")
    a("s_lshl_b32 s6, s6, 8")
    a("s_add_u32 s5, s5, s6")
    a(f"s_mul_i32 s3, {s(S_LW)}, {4 * (320 if cfg.otr else 1280)}")
    a("s_add_u32 s4, s4, s3")
    a("v_lshrrev_b32 v7, 5, v0")
    a("v_bfe_u32 v8, v0, 4, 1")
    a(f"v_mul_u32_u24 v9, 15360, v7")
    a("v_lshl_add_u32 v9, v8, 10, v9")
    a(f"v_lshl_add_u32 v9, {v(T0)}, 4, v9")
    a(f"v_add_u32 {v(OFFS)}, s5, v9")
    a("v_and_b32 v9, 3, v0")
    a(f"v_mul_u32_u24 v9, {320 if cfg.otr else 1280}, v9")
    a("v_mul_u32_u24 v7, 160, v7")
    a("v_lshl_add_u32 v7, v8, 6, v7")
    a("v_bfe_u32 v8, v0, 2, 2")
    a("v_lshl_add_u32 v7, v8, 3, v7")
    a("v_add3_u32 " + f"{v(A0)}, v7, v9, s4")
    a(f"v_add_u32 {v(A1)}, 32, {v(A0)}")
    a("s_branch L_red")
    a.label("L_red3")
    a("v_min_u32 v10, 47, v0")
    a("v_lshrrev_b32 v7, 4, v10")
    a("v_add_u32 v8, s6, v7")
    a("v_lshrrev_b32 v9, 2, v8")
    a("v_mul_u32_u24 v9, 2560, v9")
    a("v_and_b32 v8, 3, v8")
    a("v_lshl_add_u32 v9, v8, 7, v9")
    a("v_bfe_u32 v8, v10, 3, 1")
    a("v_mul_u32_u24 v11, 15360, v8")
    a("v_add_u32 v9, v9, v11")
    a("v_and_b32 v11, 7, v10")
    a("v_lshl_add_u32 v9, v11, 4, v9")
    a("s_add_u32 s5, s5, 2048")
    a(f"v_add_u32 {v(OFFS)}, s5, v9")
    a("v_and_b32 v11, 1, v10")
    a("v_lshl_add_u32 v7, v7, 1, v11")
    a(f"v_mul_u32_u24 v7, {640 if cfg.otr else 2560}, v7")
    a("v_mul_u32_u24 v8, 160, v8")
    a("v_bfe_u32 v11, v10, 1, 2")
    a("v_lshl_add_u32 v8, v11, 3, v8")
    a("s_add_u32 s4, s4, 128")
    a("v_add3_u32 " + f"{v(A0)}, v7, v8, s4")
    a(f"v_add_u32 {v(A1)}, {320 if cfg.otr else 1280}, {v(A0)}")
    a.label("L_red")
    if cfg.otr:
        a(f"s_lshl_b32 s4, {s(S_LW)}, 6")
        a("v_add_u32 v7, s4, v0")
        a("v_min_u32 v7, 239, v7")
        a(f"v_lshlrev_b32 {v(RT + 1)}, 4, v7")
        a("v_mul_u32_u24 v8, 3277, v7")
        a("v_lshrrev_b32 v8, 16, v8")
        a("v_mul_u32_u24 v8, 960, v8")
        a(f"s_mul_i32 s4, {s(S_G8)}, {12 * 1280}")
        a(f"v_add3_u32 {v(RT + 2)}, v8, {v(RT + 1)}, s4")
    D0, AC = 80, 148

    def load_part(g):
        a(f"s_mov_b32 s3, {PSZ * g}")
        a(f"buffer_load_dwordx4 {v(D0 + 4 * g, 4)}, {v(OFFS)}, {s(R_PI, 4)}, s3 offen {['sc1', '', 'nt', 'sc0 sc1', 'sc1 nt'][cfg.pld]}")
    if not cfg.dynred:
        poll("L_poll2", AF2)
        st.cyc("seen2")
        for g in range(8):
            load_part(g)
    elif cfg.dynred == 1:
        a(f"s_mov_b32 s7, {SPIN_MAX}")
        a("s_mov_b32 s6, 0")
        a.label("L_poll2")
        a(f"buffer_load_dwordx2 {v(PT, 2)}, {v(AF2)}, {s(R_F, 4)}, 0 offen sc1")
        a("s_sub_u32 s7, s7, 1")
        a("s_cmp_eq_u32 s7, 0")
        a("s_cbranch_scc1 L_poll2_out")
        a("s_waitcnt vmcnt(0)")
        a(f"v_cmp_eq_u64 vcc, {v(PT, 2)}, {v(TG, 2)}")
        a("s_nop 1")
        a("s_lshr_b32 s5, vcc_lo, 8")
        a("s_and_b32 s5, s5, vcc_lo")
        a("s_and_b32 s5, s5, 0xff")
        a("s_andn2_b32 s4, s5, s6")
        a("s_cbranch_scc0 L_poll2")
        a("s_or_b32 s6, s6, s5")
        for g in range(8):
            a(f"s_bitcmp1_b32 s4, {g}")
            a(f"s_cbranch_scc0 L_r{g}")
            load_part(g)
            a.label(f"L_r{g}")
        a("s_cmp_eq_u32 s6, 0xff")
        a("s_cbranch_scc0 L_poll2")
        a.label("L_poll2_out")
        st.cyc("seen2")
        a("s_waitcnt vmcnt(0)")
    else:
        U0 = 120
        a(f"s_mov_b32 s7, {SPIN_MAX}")
        a("s_mov_b32 s6, 0")
        a("s_mov_b32 s8, 0")
        a("s_mov_b32 s9, 0")
        a("s_branch L_poll2")
        a.label("L_widen")
        for g in range(8):
            a(f"s_bitcmp1_b32 s8, {g}")
            a(f"s_cbranch_scc0 L_u{g}")
            for r in range(4):
                a(f"v_lshlrev_b32 {v(U0 + 8 * g + 2 * r)}, 16, {v(D0 + 4 * g + r)}")
                a(f"v_and_b32 {v(U0 + 8 * g + 2 * r + 1)}, 0xffff0000, {v(D0 + 4 * g + r)}")
            a.label(f"L_u{g}")
        a("s_mov_b32 s8, 0")
        a("s_setpc_b64 s[44:45]")
        a.label("L_poll2")
        a(f"buffer_load_dwordx2 {v(PT, 2)}, {v(AF2)}, {s(R_F, 4)}, 0 offen sc1")
        a("s_cmp_eq_u32 s8, 0")
        a("s_cbranch_scc1 L_nowiden")
        call("L_widen")
        a.label("L_nowiden")
        a("s_sub_u32 s7, s7, 1")
        a("s_cmp_eq_u32 s7, 0")
        a("s_cbranch_scc1 L_poll2_out")
        a("s_waitcnt vmcnt(0)")
        a(f"v_cmp_eq_u64 vcc, {v(PT, 2)}, {v(TG, 2)}")
        a("s_mov_b32 s8, s9")
        a("s_mov_b32 s9, 0")
        a("s_and_b32 s5, vcc_lo, 0xff")
        a("s_andn2_b32 s9, s5, s6")
        a("s_cbranch_scc0 L_poll2")
        a("s_or_b32 s6, s6, s5")
        for g in range(8):
            a(f"s_bitcmp1_b32 s9, {g}")
            a(f"s_cbranch_scc0 L_r{g}")
            load_part(g)
            a.label(f"L_r{g}")
        a("s_cmp_eq_u32 s6, 0xff")
        a("s_cbranch_scc0 L_poll2")
        a.label("L_poll2_out")
        st.cyc("seen2")
        call("L_widen")
        a("s_mov_b32 s8, s9")
        a("s_waitcnt vmcnt(0)")
        call("L_widen")
        for g in range(1, 8):
            for r in range(4):
                a(f"v_pk_add_f32 {v(U0 + 2 * r, 2)}, {v(U0 + 2 * r, 2)}, {v(U0 + 8 * g + 2 * r, 2)}")
        AC = U0
    if cfg.sent:
        assert cfg.dynred
        a("s_mov_b32 s7, 4096")
        a.label("L_chk")
        a(f"v_max3_u32 v4, {v(D0)}, {v(D0 + 1)}, {v(D0 + 2)}")
        a(f"v_max3_u32 v5, {v(D0 + 3)}, {v(D0 + 4)}, {v(D0 + 5)}")
        for kk in range(6, 30, 4):
            a(f"v_max3_u32 v4, v4, {v(D0 + kk)}, {v(D0 + kk + 1)}")
            a(f"v_max3_u32 v5, v5, {v(D0 + kk + 2)}, {v(D0 + kk + 3)}")
        a(f"v_max3_u32 v4, v4, {v(D0 + 30)}, {v(D0 + 31)}")
        a("v_max_u32 v4, v4, v5")
        a("v_cmp_eq_u32 vcc, -1, v4")
        a("s_sub_u32 s7, s7, 1")
        a("s_cselect_b32 s6, 0, 1")
        a("s_and_b32 s4, vcc_lo, -1")
        a("s_or_b32 s4, s4, vcc_hi")
        a("s_cselect_b32 s6, s6, 0")
        a("s_cmp_eq_u32 s6, 0")
        a("s_cbranch_scc1 L_chk_ok")
        for g in range(8):
            load_part(g)
        a("s_waitcnt vmcnt(0)")
        a("s_branch L_chk")
        a.label("L_chk_ok")
        st.cyc("chk")
    for g in range(8 if cfg.dynred < 2 else 0):
        if not cfg.dynred:
            a(f"s_waitcnt vmcnt({7 - g})")
        for r in range(4):
            src = D0 + 4 * g + r
            if g == 0:
                a(f"v_lshlrev_b32 {v(AC + 2 * r)}, 16, {v(src)}")
                a(f"v_and_b32 {v(AC + 2 * r + 1)}, 0xffff0000, {v(src)}")
            else:
                t = 4 + 2 * (r % 2)
                a(f"v_lshlrev_b32 {v(t)}, 16, {v(src)}")
                a(f"v_and_b32 {v(t + 1)}, 0xffff0000, {v(src)}")
                a(f"v_pk_add_f32 {v(AC + 2 * r, 2)}, {v(AC + 2 * r, 2)}, {v(t, 2)}")
    for r in range(4):
        a(cvt(D0 + r, AC + 2 * r))
    fl = ['', 'sc1', 'nt', 'sc0 sc1'][cfg.outfl]
    if cfg.otr:
        a(f"ds_write_b64 {v(A0)}, {v(D0, 2)}")
        a(f"ds_write_b64 {v(A1)}, {v(D0 + 2, 2)}")
        a(lg(0))
        a("s_barrier")
        a(f"ds_read_b128 {v(D0 + 4, 4)}, {v(RT + 1)}")
        a(lg(0))
        a(f"buffer_store_dwordx4 {v(D0 + 4, 4)}, {v(RT + 2)}, {s(R_OUT, 4)}, 0 offen {fl}")
    elif cfg.unsafe == 9:
        a("s_mul_i32 s3, s2, 3840")
        srd(a, 8, S_OUT, "s3", 3840)
        a(f"v_lshlrev_b32 v7, 4, v7")
        a(f"buffer_store_dwordx4 {v(D0, 4)}, v7, s[8:11], 0 offen {fl}")
    else:
        a(f"buffer_store_dwordx2 {v(D0, 2)}, {v(A0)}, {s(R_OUT, 4)}, 0 offen {fl}")
        a(f"buffer_store_dwordx2 {v(D0 + 2, 2)}, {v(A1)}, {s(R_OUT, 4)}, 0 offen {fl}")
    a(f"s_or_b32 s3, {s(S_H)}, {s(S_LW)}")
    a("s_cmp_eq_u32 s3, 0")
    a("s_cbranch_scc0 L_noep")
    a(f"s_lshl_b32 s3, {s(S_B)}, 7")
    a(f"s_add_u32 s3, s3, {FX}")
    a("v_mov_b32 v4, 0")
    a("s_mov_b64 exec, 1")
    a(f"buffer_store_dwordx2 {v(TG, 2)}, v4, {s(R_F, 4)}, s3 offen")
    a.label("L_noep")
    if cfg.diag:
        a("s_waitcnt vmcnt(0)")
    st.cyc("end")
    st.real("real1")
    st.flush("L")


def generate(cfg):
    a = Asm()
    a.lines.append("; @launch grid=(256,1,1) block=(512,1,1) lds=163840")
    a('.amdgcn_target "amdgcn-amd-amdhsa--gfx950"')
    a(".text")
    a(kernel_header(KN))
    a("s_cmp_ge_u32 s2, 256")
    a("s_cbranch_scc1 L_end")
    a("s_load_dwordx16 s[32:47], s[0:1], 0")
    if cfg.diag:
        a(f"s_memrealtime {s(S_T, 2)}")
        a(f"s_memtime {s(S_T + 2, 2)}")
    a("v_lshrrev_b32 v1, 6, v0")
    a("v_and_b32 v0, 63, v0")
    a(f"v_readfirstlane_b32 {s(S_WAVE)}, v1")
    a(f"s_and_b32 {s(S_G8)}, s2, 7")
    a("s_lshr_b32 s4, s2, 3")
    a(f"s_lshr_b32 {s(S_B)}, s4, 2")
    a(f"s_and_b32 {s(S_HH)}, s4, 3")
    a(f"s_lshl_b32 s3, {s(S_G8)}, 2")
    a(f"s_add_u32 {s(S_H)}, s3, {s(S_HH)}")
    a(f"s_cmp_ge_u32 {s(S_WAVE)}, 4")
    a("s_cbranch_scc1 L_loader")
    if cfg.ipf:
        a("s_getpc_b64 s[62:63]")
        a.label("L_pc")
        a(f"s_sub_u32 s62, s62, L_pc-{KN}")
        a("s_subb_u32 s63, s63, 0")
        a(f"s_mul_i32 s3, {s(S_WAVE)}, 40")
        a("v_min_u32 v7, 39, v0")
        a("v_add_u32 v7, s3, v7")
        a("v_lshlrev_b32 v7, 7, v7")
        a(f"v_min_u32 v7, L_last-{KN}, v7")
        if cfg.ipf & 1:
            a("global_load_dword v14, v7, s[62:63]")
    a("s_branch L_compute")
    a.label("L_loader")
    gen_loader(a, cfg)
    a.label("L_end")
    a("s_endpgm")
    a.label("L_compute")
    gen_compute(a, cfg)
    a('.section .rodata,"a"')
    a(".p2align 6")
    a(kernel_desc(KN))
    return a.text()


if __name__ == "__main__":
    cfg = Cfg()
    out = sys.argv[1]
    for opt in sys.argv[2:]:
        k, val = opt.split("=")
        assert hasattr(cfg, k), k
        setattr(cfg, k, val if k == "only" else int(val))
    t = generate(cfg)
    pr = hazard.check(t) + hazard.check_counters(t)
    for p in pr:
        print(f"HAZARD line {p[0]} -> {p[1]}: need {p[2]} have {p[3]}\n    {p[4]}\n    {p[5]}")
    open(out, "w").write(t)
    print(out, "hazards:", len(pr), "lines:", t.count("\n"))
```

```python
import struct
import sys

from asmlib import Asm, v, s, kernel_header, kernel_desc
import hazard

KN = "standalone__gqa_block_cached__near_ridge_kernel"
OFF_O = 0
OFF_P = 16 << 20
OFF_F = 32 << 20
F1, F2, FX = 0, 65536, 131072
OFF_T = 64 << 20
SLOT = 36864
A_K = 3 * SLOT
A_V = 1 * SLOT
A_Q = 2 * SLOT
A_P = 2 * SLOT
A_M = 163840 - 768
A_TAG = A_M - 8
WO0, WOS = 81920, 20480
OS = 12288
PSZ = 30720
CEXP = 0.07216878364870322 * 1.4426950408889634
TAGC = (0x9E3779B9, 0x7F4A7C15)
SPIN_MAX = 1 << 21


def f32bits(x):
    return struct.unpack("<I", struct.pack("<f", x))[0]


class Cfg:
    diag = 0
    only = ""
    rot = 10
    kpos = 9
    dynred = 1
    outfl = 0
    ipf = 1
    tx = 1
    tab = 4
    unsafe = 0
    jit = 0
    pfl = 2
    otr = 1
    ntkv = 3
    lprio = 1
    sent = 0
    smx = 2
    vbp = 2
    fin = 2
    qv = 6
    sv = 1
    wper = 5
    odef = 1
    fw = 2
    dot2 = 0
    tpos = 10
    w12 = 0
    w13 = 0
    pst = 0
    pld = 0


S_X, S_K, S_V, S_WQ, S_WO, S_OUT, S_DBG, S_WS = 32, 34, 36, 38, 40, 42, 44, 46
S_B, S_H, S_WAVE, S_G8, S_HH = 28, 29, 30, 31, 48
S_TAG = 60
R_F = 24
S_T = 64


class Stamps:
    def __init__(self, a, cfg):
        self.a, self.on, self.n = a, cfg.diag, 2
        self.fine = cfg.diag > 1
        self.names = ["real0", "cyc0"]
        self.k = 0
        self.only = cfg.only.split(",") if cfg.only else None

    def real(self, name):
        if self.on:
            self.a(f"s_memrealtime {s(S_T + 2 * self.n, 2)}")
            self.names.append(name)
            self.n += 1

    def cyc(self, name, fine=False):
        if self.only and name not in self.only:
            return
        if not self.only and len(name) <= 3 and name[0] in "afB" and name[1:].isdigit() and name != "B0":
            return
        if self.on and (not fine or self.fine or self.only):
            self.a(f"{'s_memrealtime' if self.on > 2 else 's_memtime'} {s(S_T + 2 * self.n, 2)}")
            self.names.append(name)
            self.n += 1

    def alt(self, name, path, fine=False):
        if path == "N":
            return self.cyc(name, fine)
        if not self.on or (self.only and name not in self.only) or (fine and not self.only):
            return
        self.a(f"{'s_memrealtime' if self.on > 2 else 's_memtime'} {s(S_T + 2 * (self.n + self.k), 2)}")
        self.k += 1

    def flush(self, role, vt=4):
        if not self.on:
            return
        a = self.a
        assert self.n <= 19, self.n
        a("s_waitcnt lgkmcnt(0) vmcnt(0)")
        a(f"; STAMPS {role} " + " ".join(self.names))
        a("s_lshl_b32 s3, s2, 3")
        a(f"s_add_u32 s3, s3, {s(S_WAVE)}")
        a("s_lshl_b32 s3, s3, 8")
        a(f"s_add_u32 s3, s3, {OFF_T}")
        a(f"s_add_u32 s4, {s(S_WS)}, s3")
        a(f"s_addc_u32 s5, {s(S_WS + 1)}, 0")
        a("s_mov_b64 exec, 1")
        a(f"v_mov_b32 {v(vt + 2)}, 0")
        for i in range(self.n):
            a(f"v_mov_b32 {v(vt)}, {s(S_T + 2 * i)}")
            a(f"v_mov_b32 {v(vt + 1)}, {s(S_T + 2 * i + 1)}")
            a(f"global_store_dwordx2 {v(vt + 2)}, {v(vt, 2)}, s[4:5] offset:{8 * i}")
            a("s_nop 1")
        a("s_waitcnt vmcnt(0)")


def srd(a, d, base, off_sgpr, size):
    a(f"s_add_u32 {s(d)}, {s(base)}, {off_sgpr}")
    a(f"s_addc_u32 {s(d + 1)}, {s(base + 1)}, 0")
    a(f"s_mov_b32 {s(d + 2)}, {size}")
    a(f"s_mov_b32 {s(d + 3)}, 0x20000")


def dma(a, voff, srd_, soff, base, imm, fl=""):
    a(f"s_add_u32 m0, {base}, {imm}")
    a("s_nop 0")
    a(f"buffer_load_dwordx4 {v(voff)}, {s(srd_, 4)}, {soff} offen {fl} lds")


def mfma(d, a_, b_, c=None):
    cs = v(d, 4) if c is None else str(c)
    return f"v_mfma_f32_16x16x32_bf16 {v(d, 4)}, {v(a_, 4)}, {v(b_, 4)}, {cs}"


def trread(d, addr, off):
    assert 0 <= off < 65536
    return f"ds_read_b64_tr_b16 {v(d, 2)}, {v(addr)} offset:{off}"


def rd128(d, addr, off):
    assert 0 <= off < 65536
    return f"ds_read_b128 {v(d, 4)}, {v(addr)} offset:{off}"


def rd64(d, addr, off):
    assert 0 <= off < 65536
    return f"ds_read_b64 {v(d, 2)}, {v(addr)} offset:{off}"


def cvt(d, t):
    return f"v_cvt_pk_bf16_f32 {v(d)}, {v(t)}, {v(t + 1)}"


def emit(a, lst):
    for x in lst:
        a(x)


def place(main, slots):
    out = list(slots.get(-1, []))
    for i, m in enumerate(main):
        out.append(m)
        out.extend(slots.get(i, []))
    for k in sorted(slots):
        if k >= len(main):
            out.extend(slots[k])
    return out


def spread(fill, start, per=1, step=1, into=None):
    d = into if into is not None else {}
    i, k = start, 0
    while k < len(fill):
        d.setdefault(i, []).extend(fill[k:k + per])
        k += per
        i += step
    return d


def at(d, i, *x):
    d.setdefault(i, []).extend(x)


def lg(n):
    return f"s_waitcnt lgkmcnt({n})"


def jitter(a, cfg, k):
    if not cfg.jit:
        return
    lbl = a.uid("L_jit")
    a(f"s_lshl_b32 s100, s2, 3")
    a(f"s_add_u32 s100, s100, {s(S_WAVE)}") if cfg.jit & 1 else None
    a(f"s_mul_i32 s100, s100, {0x9E3779B1 & 0x7fffffff | 1}")
    a(f"s_add_u32 s100, s100, {(k * 0x632BE5AB + cfg.jit * 0x1234567) & 0x7fffffff}")
    a("s_mul_i32 s100, s100, 0x2545F491")
    a("s_lshr_b32 s101, s100, 29")
    a("s_cmp_lg_u32 s101, 0")
    a(f"s_cbranch_scc1 {lbl}")
    a("s_lshr_b32 s100, s100, 8")
    a("s_and_b32 s100, s100, 31")
    a.label(lbl + "b")
    a("s_sleep 8")
    a("s_sub_u32 s100, s100, 1")
    a("s_cmp_gt_i32 s100, 0")
    a(f"s_cbranch_scc1 {lbl}b")
    a.label(lbl)


def mod_small(a, reg, m, times):
    for _ in range(times):
        a(f"s_sub_u32 s4, {reg}, {m}")
        a(f"s_cmp_ge_u32 {reg}, {m}")
        a(f"s_cselect_b32 {reg}, s4, {reg}")


def tile_addrs(a, dst, first, f, lanepart, tmp, extra=None):
    for c in range(4):
        a(f"s_add_u32 s4, {first}, {c}")
        a("s_and_b32 s5, s4, 3")
        a("s_lshr_b32 s4, s4, 2")
        a("s_lshl_b32 s4, s4, 7")
        a(f"v_xor_b32 {v(tmp)}, s5, {v(f)}")
        a(f"v_lshl_add_u32 {v(tmp)}, {v(tmp)}, 5, {v(lanepart)}")
        a(f"v_add_u32 {v(dst + c)}, s4, {v(tmp)}")


def gen_compute(a, cfg):
    st = Stamps(a, cfg)
    R_O, R_P = 8, 12
    ACC, FR, QP, LS, ONES = 16, 88, 160, 196, 208
    AX, AY, AZ, AVo, AVp = 212, 216, 218, 230, 234
    AQW, AQR, AMW, AMR, APW, APR, APW2, APR2, AO, AOW = range(238, 248)
    AW, AB, AP, AP2, FL2, TG, ZERO = 248, 250, 251, 252, 253, 254, 15
    VM, VG, VF, T0, T1, T2 = 1, 2, 3, 4, 5, 6
    MX = 8
    S_I, S_J, S_C, S_D, S_CNT, S_SL, S_D2, S_SL2 = 50, 51, 52, 54, 55, 56, 57, 18
    S_K0, S_K1, S_F1, S_F2 = 58, 59, 16, 17

    a(f"s_lshr_b32 {s(S_I)}, {s(S_WAVE)}, 1")
    a(f"s_and_b32 {s(S_J)}, {s(S_WAVE)}, 1")
    a(f"s_mov_b32 {s(S_C)}, {f32bits(CEXP):#x}")
    a(f"s_mov_b32 {s(S_C + 1)}, {f32bits(CEXP):#x}")
    a(f"v_and_b32 {v(VM)}, 15, v0")
    a(f"v_lshrrev_b32 {v(VG)}, 4, v0")
    a(f"v_lshrrev_b32 {v(T0)}, 2, {v(VM)}")
    a(f"v_lshl_add_u32 {v(T1)}, {v(VG)}, 3, {v(T0)}")
    a(f"v_mul_u32_u24 {v(T1)}, 384, {v(T1)}")
    a(f"v_and_b32 {v(T2)}, 3, {v(VM)}")
    a(f"v_lshlrev_b32 v11, 3, {v(T2)}")
    a(f"v_add_u32 {v(T1)}, v11, {v(T1)}")
    a(f"v_and_b32 {v(T2)}, 1, {v(VG)}")
    a(f"v_lshrrev_b32 {v(VF)}, 3, {v(VM)}")
    a(f"v_lshl_or_b32 {v(VF)}, {v(T2)}, 1, {v(VF)}")
    a(f"s_mul_i32 s3, {s(S_I)}, 6")
    tile_addrs(a, AX, "s3", VF, T1, T2)
    a(f"s_mul_i32 s4, {s(S_J)}, 48")
    a(f"v_add_u32 {v(T1)}, s4, {v(VM)}")
    a(f"v_lshlrev_b32 {v(T1)}, 7, {v(T1)}")
    a(f"v_add_u32 {v(T1)}, 24576, {v(T1)}")
    a(f"v_lshrrev_b32 {v(VF)}, 1, {v(VM)}")
    for ks in range(2):
        a(f"v_add_u32 {v(T2)}, {4 * ks}, {v(VG)}")
        a(f"v_xor_b32 {v(T2)}, {v(T2)}, {v(VF)}")
        a(f"v_lshl_add_u32 {v(AY + ks)}, {v(T2)}, 4, {v(T1)}")
    for i in range(72):
        a(f"v_mov_b32 {v(ACC + i)}, 0")
    a(f"s_mul_i32 s4, {s(S_I)}, 48")
    a(f"v_add_u32 {v(T1)}, s4, {v(VM)}")
    a(f"v_mul_u32_u24 {v(T1)}, 384, {v(T1)}")
    a(f"v_and_b32 {v(T2)}, 1, {v(VG)}")
    a(f"v_lshl_add_u32 {v(T1)}, {v(T2)}, 3, {v(T1)}")
    a(f"v_add_u32 {v(T1)}, {A_K}, {v(T1)}")
    a(f"v_lshrrev_b32 {v(T0)}, 1, {v(VG)}")
    a(f"v_xor_b32 {v(T0)}, {v(T0)}, {v(VF)}")
    a(f"v_lshl_add_u32 {v(T1)}, {v(T0)}, 4, {v(T1)}")
    a(f"s_mul_i32 s7, {s(S_I)}, 3")
    for ls in range(6):
        a(f"s_add_u32 s6, s7, {ls}")
        mod_small(a, "s6", 6, 1)
        a("s_and_b32 s5, s6, 1")
        a("s_lshl_b32 s5, s5, 6")
        a("s_lshr_b32 s6, s6, 1")
        a("s_lshl_b32 s6, s6, 7")
        a(f"v_add_u32 {v(T2)}, s6, {v(T1)}")
        a(f"v_xor_b32 {v(AZ + 2 * ls)}, s5, {v(T2)}")
        a(f"v_xor_b32 {v(AZ + 2 * ls + 1)}, 32, {v(AZ + 2 * ls)}")
    a(f"v_lshrrev_b32 {v(T0)}, 2, {v(VM)}")
    a(f"v_lshl_add_u32 {v(T0)}, {v(VG)}, 2, {v(T0)}")
    a(f"v_bfe_u32 {v(VF)}, {v(T0)}, 1, 2")
    a(f"v_mul_u32_u24 {v(T1)}, 384, {v(T0)}")
    a(f"v_add_u32 {v(T1)}, v11, {v(T1)}")
    a(f"s_mul_i32 s6, {s(S_I)}, 18432")
    a(f"s_add_u32 s7, s6, {A_V}")
    a(f"v_add_u32 {v(T1)}, s7, {v(T1)}")
    a(f"s_mul_i32 s3, {s(S_I)}, 6")
    tile_addrs(a, AVo, "s3", VF, T1, T2)
    a("s_lshl_b32 s6, s6, 1")
    a("s_sub_u32 s6, 18432, s6")
    for c in range(4):
        a(f"v_add_u32 {v(AVp + c)}, s6, {v(AVo + c)}")
    a(f"v_mul_u32_u24 {v(T1)}, 320, {v(T0)}")
    a(f"v_add_u32 {v(T1)}, v11, {v(T1)}")
    a(f"v_add_u32 {v(T1)}, {WO0 + WOS}, {v(T1)}")
    a(f"v_and_b32 {v(T0)}, 1, {v(VG)}")
    a(f"s_mul_i32 s3, {s(S_I)}, 5")
    for par in range(2):
        a(f"s_add_u32 s4, s3, {par}")
        a(f"v_xor_b32 {v(T2)}, s4, {v(T0)}")
        a(f"v_lshl_add_u32 {v(AW + par)}, {v(T2)}, 5, {v(T1)}")
    a(f"s_xor_b32 s5, {s(S_WAVE)}, 2")
    a(f"v_lshlrev_b32 {v(T1)}, 4, v0")
    a(f"v_lshlrev_b32 {v(T0)}, 3, v0")
    a(f"v_lshlrev_b32 {v(T2)}, 2, {v(VM)}")
    for wv, (q_, p_, p2, m_) in ((s(S_WAVE), (AQW, APW, APW2, AMW)), ("s5", (AQR, APR, APR2, AMR))):
        a(f"s_mul_i32 s3, {wv}, 9216")
        a(f"s_add_u32 s3, s3, {A_Q}")
        a(f"v_add_u32 {v(q_)}, s3, {v(T1)}")
        a(f"s_mul_i32 s3, {wv}, 4608")
        a(f"s_add_u32 s3, s3, {A_P}")
        a(f"v_add_u32 {v(p_)}, s3, {v(T1)}")
        a(f"v_add_u32 {v(p2)}, s3, {v(T0)}")
        a(f"s_mul_i32 s3, {wv}, 192")
        a(f"s_add_u32 s3, s3, {A_M}")
        a(f"v_add_u32 {v(m_)}, s3, {v(T2)}")
    a(f"s_mul_i32 s3, {s(S_I)}, 18")
    a(f"s_mul_i32 s4, {s(S_J)}, 3")
    a("s_add_u32 s3, s3, s4")
    a("s_lshl_b32 s3, s3, 10")
    a(f"v_add_u32 {v(AO)}, s3, {v(T1)}")
    a(f"s_mul_i32 s3, {s(S_J)}, 3072")
    a(f"v_add_u32 {v(AB)}, s3, {v(T1)}")
    a(f"v_lshrrev_b32 v12, 2, {v(VM)}")
    a(f"v_lshl_add_u32 v12, v12, 2, {v(VG)}")
    a(f"v_and_b32 v13, 3, {v(VM)}")
    a("v_lshl_add_u32 v12, v12, 2, v13")
    a(f"s_mul_i32 s3, {s(S_WAVE)}, 7680")
    a(f"v_lshl_add_u32 {v(AP)}, v12, 4, s3")
    a("s_add_u32 s3, s3, 2048")
    a(f"v_lshl_add_u32 {v(AP2)}, v12, 3, s3")
    a(f"v_mov_b32 {v(AOW)}, {A_TAG}")
    for i in range(4):
        a(f"v_mov_b32 {v(ONES + i)}, 0x3f803f80")
    a(f"s_lshl_b32 s3, {s(S_B)}, 5")
    a(f"s_add_u32 s3, s3, {s(S_H)}")
    a(f"s_lshl_b32 s4, {s(S_HH)}, 2")
    a(f"s_add_u32 s4, s4, {s(S_WAVE)}")
    a("s_lshl_b32 s4, s4, 3")
    a("s_andn2_b32 s5, s3, 3")
    a(f"s_lshl_b32 s5, s5, {7 if cfg.pfl & 1 else 5}")
    a(f"s_add_u32 {s(S_F1)}, s4, s5")
    a(f"s_lshl_b32 s6, {s(S_I)}, 3")
    a(f"s_add_u32 s6, s6, {s(S_G8)}")
    a("s_lshl_b32 s6, s6, 3")
    if cfg.pfl & 2:
        a(f"s_lshl_b32 s5, {s(S_B)}, 5")
        a(f"s_lshl_b32 s4, {s(S_J)}, 4")
        a("s_add_u32 s5, s5, s4")
        a(f"s_add_u32 s5, s5, {s(S_HH)}")
    else:
        a(f"s_lshl_b32 s5, {s(S_B)}, 2")
        a(f"s_add_u32 s5, s5, {s(S_HH)}")
        a("s_lshl_b32 s5, s5, 1")
        a(f"s_add_u32 s5, s5, {s(S_J)}")
    a("s_lshl_b32 s5, s5, 7")
    a("s_add_u32 s6, s6, s5")
    a(f"s_add_u32 {s(S_F2)}, s6, {F2}")
    a(f"v_lshlrev_b32 {v(ZERO)}, 7, v0")
    a(f"v_lshlrev_b32 {v(FL2)}, 9, v0")
    a(f"s_lshl_b32 s4, {s(S_B)}, 2")
    a(f"s_add_u32 s4, s4, {s(S_HH)}")
    a("s_lshl_b32 s4, s4, 3")
    a(f"s_add_u32 s4, s4, {s(S_G8)}")
    a(f"s_mul_i32 s4, s4, {PSZ}")
    a(f"s_add_u32 s4, s4, {OFF_P}")
    a("s_mul_i32 s3, s3, 36864")
    a("s_waitcnt lgkmcnt(0)")
    srd(a, R_O, S_WS, "s3", 36864)
    srd(a, R_P, S_WS, "s4", PSZ)
    srd(a, R_F, S_WS, f"{OFF_F}", 262144)

    def fa(n, dt):
        return FR + 36 * n + 4 * dt

    def fb(n, qt):
        return FR + 36 * n + 24 + 4 * qt

    def p1_reads(n, ks):
        def A(dt):
            return [trread(fa(n, dt) + 2 * hh, AX + dt % 4, 384 * (32 * ks + 4 * hh) + 128 * (dt // 4)) for hh in range(2)]

        def B(qt):
            return [rd128(fb(n, qt), AY + ks, 2048 * qt)]
        r = B(0) + A(0) + B(1) + B(2)
        for dt in range(1, 6):
            r += A(dt)
        return r

    def qtile(dt, qt):
        return ACC + 4 * (3 * dt + qt)

    def p1_mfmas(n):
        return [mfma(qtile(dt, qt), fa(n, dt), fb(n, qt)) for dt in range(6) for qt in range(3)]

    adv = [f"v_add_u32 {v(AX + c)}, {s(S_D)}, {v(AX + c)}" for c in range(4)] + \
          [f"v_add_u32 {v(AY + c)}, {s(S_D)}, {v(AY + c)}" for c in range(2)]
    a(f"s_mov_b32 {s(S_SL)}, 0")
    a(f"s_mov_b32 {s(S_CNT)}, 0")
    a(f"s_mov_b32 {s(S_K0)}, {(-2 * SLOT) & 0xffffffff:#x}")
    a(f"s_mov_b32 {s(S_K1)}, {SLOT}")
    st.cyc("setup")
    a("s_barrier")
    st.cyc("b0")
    emit(a, p1_reads(0, 0))
    a(lg(0))
    a.label("L_p1")
    sl = spread(p1_reads(1, 1), 0, 1)
    at(sl, 0, f"s_add_u32 {s(S_SL)}, {s(S_SL)}, 1")
    at(sl, 1, f"s_cmp_eq_u32 {s(S_SL)}, 3")
    at(sl, 2, f"s_cselect_b32 {s(S_D)}, {s(S_K0)}, {s(S_K1)}")
    at(sl, 3, f"s_cselect_b32 {s(S_SL)}, 0, {s(S_SL)}")
    spread(adv, 15, 2, into=sl)
    emit(a, place(p1_mfmas(0), sl))
    a(lg(0))
    a("s_barrier")
    sl = spread(p1_reads(0, 0), 0, 1)
    at(sl, 15, f"s_add_u32 {s(S_CNT)}, {s(S_CNT)}, 1")
    at(sl, 16, f"s_cmp_lt_u32 {s(S_CNT)}, 9")
    emit(a, place(p1_mfmas(1), sl))
    a(lg(0))
    a("s_cbranch_scc1 L_p1")
    emit(a, place(p1_mfmas(0), spread(p1_reads(1, 1), 0, 1)))
    if cfg.ipf & 2:
        a("global_load_dword v14, v7, s[62:63]")
    a(lg(0))
    a("s_barrier")
    jitter(a, cfg, 1)
    st.cyc("b10")
    a.c("SEG q")

    def kf(buf, a_):
        return FR + 12 * buf + 4 * a_

    def k_reads(ls, buf):
        return [rd64(kf(buf, a_) + 2 * hh, AZ + 2 * ls + hh, 6144 * a_) for a_ in range(3) for hh in range(2)]

    def qpack(ls):
        r = []
        for qt in range(3):
            for dt in (2 * ls, 2 * ls + 1):
                d = QP + 4 * (3 * ls + qt) + 2 * (dt % 2)
                r += [cvt(d, qtile(dt, qt)), cvt(d + 1, qtile(dt, qt) + 2)]
        return r

    def qwrite(f):
        return f"ds_write_b128 {v(AQW)}, {v(QP + 4 * f, 4)} offset:{1024 * f}"

    def stile(a_, qt):
        return ACC + 4 * (3 * a_ + qt)

    def s_mfmas(qbase, ls3, buf, first=False, qmajor=False):
        idx = [(a_, qt) for qt in range(3) for a_ in range(3)] if qmajor else [(a_, qt) for a_ in range(3) for qt in range(3)]
        return [mfma(stile(a_, qt), kf(buf, a_), qbase + 4 * (3 * ls3 + qt), 0 if first else None) for a_, qt in idx]

    q0, q1, q2 = qpack(0), qpack(1), qpack(2)
    if cfg.qv == 0:
        sl = spread(k_reads(0, 0) + k_reads(1, 1) + k_reads(2, 2), 0, 2, into={})
        spread(q0, 9, 2, into=sl)
        at(sl, 11, qwrite(0))
        at(sl, 14, qwrite(1))
        spread(q1[:4], 15, 2, into=sl)
        at(sl, 17, qwrite(2))
        emit(a, place(p1_mfmas(1), sl))
        emit(a, q1[4:8] + [qwrite(3)] + q1[8:])
        a(lg(4))
        sl = {}
        at(sl, 0, qwrite(4))
        spread(q2, 1, 2, into=sl)
        at(sl, 3, qwrite(5))
        at(sl, 7, qwrite(6))
        at(sl, 10, qwrite(7))
        at(sl, 13, qwrite(8))
        spread(k_reads(3, 0), 14, 2, into=sl)
        emit(a, place(s_mfmas(QP, 0, 0, True) + s_mfmas(QP, 1, 1), sl))
    else:
        order = [(dt, qt) for ls in range(3) for qt in range(3) for dt in (2 * ls, 2 * ls + 1)]
        mm = [mfma(qtile(dt, qt), fa(1, dt), fb(1, qt)) for dt, qt in order]
        mm += s_mfmas(QP, 0, 0, True) + s_mfmas(QP, 1, 1)
        packs = q0 + q1 + q2
        sl = {}
        if cfg.qv == 1:
            spread(k_reads(0, 0)[:5], 0, 1, into=sl)
            for f in range(9):
                g0 = 5 + 2 * f + (f >= 6) * 2
                spread(packs[4 * f:4 * f + 4], g0, 2, into=sl)
            wr = [7, 10, 13, 16, 19, 22, 25, 28, 31]
            for f in range(9):
                at(sl, wr[f], qwrite(f))
            at(sl, 8, k_reads(0, 0)[5])
            for k, g_ in enumerate([9, 11, 12, 14, 15, 17]):
                at(sl, g_, k_reads(1, 1)[k])
            at(sl, 17, lg(7))
            at(sl, 26, lg(3))
            spread(k_reads(2, 2), 27, 1, into=sl)
            spread(k_reads(3, 0), 29, 1, into=sl)
        elif cfg.qv == 2:
            spread(k_reads(0, 0) + k_reads(1, 1)[:4], 0, 2, into=sl)
            for f in range(9):
                g0 = 5 + 2 * f + (f >= 6) * 2
                spread(packs[4 * f:4 * f + 4], g0, 2, into=sl)
            wr = [7, 10, 13, 16, 19, 22, 25, 28, 31]
            for f in range(9):
                at(sl, wr[f], qwrite(f))
            at(sl, 8, k_reads(1, 1)[4])
            at(sl, 9, k_reads(1, 1)[5])
            at(sl, 17, lg(3))
            spread(k_reads(2, 2), 26, 1, into=sl)
            spread(k_reads(3, 0), 29, 1, into=sl)
        elif cfg.qv in (3, 4):
            kr = k_reads(0, 0) + k_reads(1, 1) + k_reads(2, 2)
            spread(kr[:5], 0, 1, into=sl)
            rest = kr[5:]
            for f in range(9):
                g0 = 5 + 3 * f
                c4 = packs[4 * f:4 * f + 4]
                if cfg.qv == 3:
                    at(sl, g0, rest.pop(0), c4[0], c4[1])
                    at(sl, g0 + 1, c4[2], c4[3])
                else:
                    at(sl, g0, rest.pop(0), c4[0])
                    at(sl, g0 + 1, c4[1], c4[2], c4[3])
                at(sl, g0 + 2, qwrite(f))
            spread(rest, 32, 1, into=sl)
            sl[17].append(lg(8))
            sl[26].append(lg(2))
        elif cfg.qv in (5, 6, 7):
            kr = k_reads(0, 0) + k_reads(1, 1) + k_reads(2, 2)
            spread(kr[:4], 0, 1, into=sl)
            rest = kr[4:]
            start = 4 if cfg.qv == 7 else 5
            for f in range(9):
                g0 = start + 3 * f
                c4 = packs[4 * f:4 * f + 4]
                at(sl, g0, *(rest[:1]), c4[0], c4[1])
                at(sl, g0 + 1, *(rest[1:2]), c4[2], c4[3])
                rest = rest[2:]
                if cfg.qv == 6:
                    d = QP + 4 * f
                    at(sl, g0 + 2, f"ds_write_b64 {v(AQW)}, {v(d, 2)} offset:{1024 * f}",
                       f"ds_write_b64 {v(AQW)}, {v(d + 2, 2)} offset:{1024 * f + 8}")
                else:
                    at(sl, g0 + 2, qwrite(f))
            sl[17].append(lg(4))
            sl[26].append(lg(2))
        emit(a, place(mm, sl))
    st.cyc("a3", True)
    a(lg(0))
    a("s_barrier")
    st.cyc("b11")
    a.c("SEG s")
    QR = FR + 36
    rds = [rd128(QR + 4 * f, AQR, 1024 * f) for f in range(9)]
    if cfg.sv == 0:
        sl = spread(rds[:6], -1, 1)
        spread(k_reads(4, 1), 5, 2, into=sl)
        at(sl, 8, lg(9))
        emit(a, place(s_mfmas(QP, 2, 2), sl))
        st.cyc("a4", True)
        sl = spread(rds[6:], 0, 1)
        spread(k_reads(5, 2), 3, 1, into=sl)
        at(sl, 8, lg(9))
        emit(a, place(s_mfmas(QR, 0, 0), sl))
        emit(a, s_mfmas(QR, 1, 1))
        a(lg(0))
    else:
        sl = spread(rds[:3], -1, 1)
        spread(k_reads(3, 0), 2, 2, into=sl)
        spread(rds[3:6], 5, 1, into=sl)
        at(sl, 8, lg(3))
        spread(k_reads(4, 1), 8, 2, into=sl)
        spread(rds[6:], 11, 1, into=sl)
        spread(k_reads(5, 2), 14, 2, into=sl)
        at(sl, 17, lg(9))
        emit(a, place(s_mfmas(QP, 2, 2) + s_mfmas(QR, 0, 0), sl))

    def xs(qt):
        return [stile(a_, qt) + r for a_ in range(3) for r in range(4)]

    def maxchain(qt):
        x = xs(qt)
        r = [f"v_max3_f32 {v(MX + qt)}, {v(x[0])}, {v(x[1])}, {v(x[2])}"]
        for k in range(3, 11, 2):
            r.append(f"v_max3_f32 {v(MX + qt)}, {v(MX + qt)}, {v(x[k])}, {v(x[k + 1])}")
        r.append(f"v_max_f32 {v(MX + qt)}, {v(MX + qt)}, {v(x[11])}")
        return r
    m0, m1, m2 = maxchain(0), maxchain(1), maxchain(2)
    if cfg.sv == 0:
        emit(a, s_mfmas(QR, 2, 2, qmajor=True))
        st.cyc("sdone", True)
        a("s_nop 0")
        emit(a, m0 + m1 + m2)
    else:
        s4, s5 = s_mfmas(QR, 1, 1, qmajor=True), s_mfmas(QR, 2, 2, qmajor=True)
        mm = sum([s4[3 * qt:3 * qt + 3] + s5[3 * qt:3 * qt + 3] for qt in range(3)], [])
        sl = {}
        at(sl, 2, lg(0))
        spread(m0, 11, 2, into=sl)
        spread(m1[:2], 17, 2, into=sl)
        emit(a, place(mm, sl))
        st.cyc("sdone", True)
        emit(a, m1[2:] + ["s_nop 1"] + m2)
    for op in ("v_permlane16_swap_b32", "v_permlane32_swap_b32"):
        for qt in range(3):
            a(f"v_mov_b32 {v(MX + 3 + qt)}, {v(MX + qt)}")
        for qt in range(3):
            a(f"{op} {v(MX + 3 + qt)}, {v(MX + qt)}")
        for qt in range(3):
            a(f"v_max_f32 {v(MX + qt)}, {v(MX + qt)}, {v(MX + 3 + qt)}")
    for qt in range(3):
        a(f"ds_write_b32 {v(AMW)}, {v(MX + qt)} offset:{64 * qt}")
    st.cyc("a6", True)
    a(lg(0))
    a("s_barrier")
    st.cyc("b12")
    a.c("SEG sm")

    PP, PC = FR, FR + 24
    VQ = [[QP + 4 * dt for dt in range(6)], [FR + 36 + 4 * dt for dt in range(6)], [148, 152, 156, 184, 188, 192]]

    def v_reads(step):
        r = []
        for dt in range(6):
            for hh in range(2):
                if step == 0:
                    ad, tile = AVo, hh
                elif step == 1:
                    ad, tile = (AVo, 2) if hh == 0 else (AVp, 2)
                else:
                    ad, tile = AVp, hh
                r.append(trread(VQ[step][dt] + 2 * hh, ad + dt % 4, 6144 * tile + 128 * (dt // 4)))
        return r
    NM = 2
    for qt in range(3):
        a(f"ds_read_b32 {v(MX + 3 + qt)}, {v(AMR)} offset:{64 * qt}")
    emit(a, v_reads(0))
    if cfg.vbp == 2:
        emit(a, v_reads(1))
    a((lg(15) if cfg.vbp == 2 else lg(12)) if not st.on else lg(0))
    a(f"ds_read_b64 {v(TG, 2)}, {v(AOW)}")
    for qt in range(3):
        a(f"v_max_f32 {v(MX + qt)}, {v(MX + qt)}, {v(MX + 3 + qt)}")
    for qt in range(3):
        a(f"v_mul_f32 {v(NM + 2 * qt)}, {s(S_C)}, {v(MX + qt)}")
    for qt in range(3):
        a(f"v_mov_b32 {v(NM + 2 * qt + 1)}, {v(NM + 2 * qt)}")

    def softmax(qt):
        x = xs(qt)
        e = [f"v_exp_f32 {v(y)}, {v(y)}" for y in x]
        c = [cvt(PP + 8 * qt + k, x[2 * k]) for k in range(6)]
        if cfg.smx == 0 or (cfg.smx == 2 and qt == 0):
            f = [[f"v_pk_fma_f32 {v(x[2 * k], 2)}, {v(x[2 * k], 2)}, {s(S_C, 2)}, {v(NM + 2 * qt, 2)} neg_lo:[0,0,1] neg_hi:[0,0,1]"] for k in range(6)]
        else:
            f = [[f"v_fma_f32 {v(y)}, {v(y)}, {s(S_C)}, -{v(NM + 2 * qt)}" for y in x[2 * k:2 * k + 2]] for k in range(6)]
        r = f[0] + f[1]
        for k in range(6):
            nx = f[k + 2] if k + 2 < 6 else []
            r += [e[2 * k]] + nx[:1] + [e[2 * k + 1]] + nx[1:]
            if k >= 1:
                r.append(c[k - 1])
        r += ["s_nop 0", c[5]]
        return r

    def pwrite(qt):
        return [f"ds_write_b128 {v(APW)}, {v(PP + 8 * qt, 4)} offset:{1536 * qt}",
                f"ds_write_b64 {v(APW2)}, {v(PP + 8 * qt + 4, 2)} offset:{1536 * qt + 1024}"]
    OT = {}
    free = [ACC + 36 + 4 * k for k in range(9)]
    for qt in range(3):
        regs = free[3 * qt:3 * qt + 3] + [stile(a_, qt) for a_ in range(3)]
        for dt in range(6):
            OT[(dt, qt)] = regs[dt]
    pf = [lambda qt: PP + 8 * qt, lambda qt: PP + 8 * qt + 4, lambda qt: PC + 4 * qt]

    def pv(step, qt):
        first = step == 0
        r = [mfma(OT[(dt, qt)], VQ[step][dt], pf[step](qt), 0 if first else None) for dt in range(6)]
        sm = [mfma(LS + 4 * qt, ONES, pf[step](qt), 0 if first else None)]
        return sm + r if step == 2 else r + sm

    def weave(vals, mm, first=3, per=3):
        out, k = [], 0
        for i, m in enumerate(mm):
            n = first if i == 0 else per
            out += vals[k:k + n]
            k += n
            out.append(m)
        return out + vals[k:]
    st.cyc("a7", True)
    vb = v_reads(1) if cfg.vbp == 0 else []
    s0 = softmax(0)
    out = []
    for k, x in enumerate(s0):
        out.append(x)
        if k % 2 == 1 and vb:
            out.append(vb.pop(0))
    emit(a, out + vb)
    emit(a, pwrite(0))
    a(lg(14) if cfg.vbp == 0 else lg(2))
    st.cyc("a8", True)
    emit(a, weave(softmax(1), pv(0, 0), per=cfg.wper))
    emit(a, pwrite(1))
    st.cyc("a9", True)
    emit(a, weave(softmax(2), pv(0, 1), per=cfg.wper))
    emit(a, pwrite(2))
    st.cyc("a10", True)
    a(lg(0))
    a("s_barrier")
    jitter(a, cfg, 2)
    st.cyc("b13")
    a.c("SEG pv")
    prd = [rd64(PP + 8 * qt + 6, APR2, 1536 * qt + 1024) for qt in range(3)]
    prc = [rd128(PC + 4 * qt, APR, 1536 * qt) for qt in range(3)]
    vc = v_reads(2)
    if cfg.vbp in (0, 2):
        sl = spread(prd + prc + vc[:2], -1, 1)
        at(sl, 6, lg(5))
        emit(a, place(pv(0, 2), sl))
        sl = spread(vc[2:], 0, 1)
        at(sl, 13, lg(0))
        emit(a, place(pv(1, 0) + pv(1, 1), sl))
    else:
        emit(a, place(pv(0, 2), spread(prd + v_reads(1), -1, 2)))
        a(lg(0))
        sl = spread(prc + vc[:11], 0, 1)
        at(sl, 13, vc[11], lg(0))
        emit(a, place(pv(1, 0) + pv(1, 1), sl))
    st.cyc("pvB", True)
    OPQ = [160, 164, 168, 172, 176, 180, 212, 216, 220]

    def finish(qt):
        r = [f"v_rcp_f32 {v(MX + 2 * qt)}, {v(LS + 4 * qt)}", "s_nop 0",
             f"v_mov_b32 {v(MX + 2 * qt + 1)}, {v(MX + 2 * qt)}"]
        for ls in range(3):
            d = OPQ[3 * ls + qt]
            for half in range(2):
                t = OT[(2 * ls + half, qt)]
                if cfg.fin == 0 or (cfg.fin == 2 and qt == 2):
                    r.append(f"v_pk_mul_f32 {v(t, 2)}, {v(t, 2)}, {v(MX + 2 * qt, 2)}")
                    r.append(f"v_pk_mul_f32 {v(t + 2, 2)}, {v(t + 2, 2)}, {v(MX + 2 * qt, 2)}")
                else:
                    r += [f"v_mul_f32 {v(t + k)}, {v(MX + 2 * qt)}, {v(t + k)}" for k in range(4)]
            for half in range(2):
                t = OT[(2 * ls + half, qt)]
                r += [cvt(d + 2 * half, t), cvt(d + 2 * half + 1, t + 2)]
            off = (ls * 6 + qt) * 1024
            r.append(f"s_mov_b32 s3, {off}")
            r.append(f"buffer_store_dwordx4 {v(d, 4)}, {v(AO)}, {s(R_O, 4)}, s3 offen {'' if cfg.unsafe in (1, 2) else 'sc1'}")
            if not cfg.odef:
                r.append(f"ds_write_b128 {v(AO)}, {v(d, 4)} offset:{off}")
        return r

    def gaps(f, per):
        out, cur = [], []
        for x in f:
            if x.startswith("s_mov"):
                if cur:
                    out.append(cur)
                cur = [x]
            elif x.startswith(("buffer_", "ds_")):
                out.append(cur + [x])
                cur = []
            else:
                cur.append(x)
                if len(cur) == per:
                    out.append(cur)
                    cur = []
        return out + ([cur] if cur else [])

    def weave2(mm, f, skip, per):
        g = gaps(f, per)
        out = []
        for i, m in enumerate(mm):
            out.append(m)
            if i >= skip and g:
                out += g.pop(0)
        return out + sum(g, [])
    emit(a, pv(2, 0))
    f0, f1, f2 = finish(0), finish(1), finish(2)
    mm = pv(1, 2) + pv(2, 1)
    if cfg.fw == 0:
        emit(a, [mm[0]] + weave(["s_nop 0"] + f0, mm[1:], first=1, per=2))
    else:
        emit(a, weave2(mm, f0, 1, cfg.fw))
    st.cyc("f0", True)
    mm = pv(2, 2)
    if cfg.fw == 0:
        emit(a, [mm[0], mm[1]] + weave(f1, mm[2:], first=0, per=2))
    else:
        emit(a, weave2(mm, f1, 0, cfg.fw))
    st.cyc("f1", True)
    emit(a, f2)
    a.c("SEG end")
    st.cyc("ostore")
    a(lg(0))
    a("s_barrier")

    A4 = ACC
    if cfg.odef:
        for qt in range(3):
            for ls in range(3):
                a(f"ds_write_b128 {v(AO)}, {v(OPQ[3 * ls + qt], 4)} offset:{(ls * 6 + qt) * 1024}")
    for i in range(60):
        a(f"v_mov_b32 {v(A4 + i)}, 0")
    a(f"s_mov_b32 {s(S_K0)}, {(-3 * WOS) & 0xffffffff:#x}")
    a(f"s_mov_b32 {s(S_K1)}, {WOS}")
    a(f"s_mov_b32 s6, {(-5 * OS) & 0xffffffff:#x}")
    a(f"s_mov_b32 s7, {OS}")
    a(f"s_mov_b32 {s(S_SL)}, 1")
    a(f"s_mov_b32 {s(S_SL2)}, 0")
    a(f"s_mov_b32 {s(S_CNT)}, 0")
    a("s_waitcnt vmcnt(0)")
    a(f"s_mov_b64 exec, {15 if cfg.pfl & 1 else 1}")
    a(f"buffer_store_dwordx2 {v(TG, 2)}, {v(ZERO)}, {s(R_F, 4)}, {s(S_F1)} offen {'' if cfg.unsafe in (1, 2) else 'sc1'}")
    a("s_mov_b64 exec, -1")
    jitter(a, cfg, 3)
    st.cyc("flag1")

    def ga(n, tt):
        return FR + 32 * n + 4 * tt

    def gb(n, qt):
        return FR + 32 * n + 20 + 4 * qt

    def p4_reads(n, ks):
        def A(tt):
            return [trread(ga(n, tt) + 2 * hh, AW + tt % 2, 320 * (32 * ks + 16 * hh) + 64 * (tt // 2)) for hh in range(2)]

        def B(qt):
            return [rd128(gb(n, qt), AB, 6144 * ks + 1024 * qt)]
        r = B(0) + A(0) + B(1) + B(2)
        for tt in range(1, 5):
            r += A(tt)
        return r

    def p4_mfmas(n):
        return [mfma(A4 + 4 * (3 * tt + qt), ga(n, tt), gb(n, qt)) for tt in range(5) for qt in range(3)]
    adv4 = [f"v_add_u32 {v(AW + c)}, {s(S_D)}, {v(AW + c)}" for c in range(2)] + [f"v_add_u32 {v(AB)}, {s(S_D2)}, {v(AB)}"]
    a(lg(0))
    a("s_barrier")
    st.cyc("B0")
    emit(a, p4_reads(0, 0))
    a(lg(0))
    a.label("L_p4")
    sl = spread(p4_reads(1, 1), 0, 1)
    sc = [f"s_add_u32 {s(S_SL)}, {s(S_SL)}, 1", f"s_cmp_eq_u32 {s(S_SL)}, 4",
          f"s_cselect_b32 {s(S_D)}, {s(S_K0)}, {s(S_K1)}", f"s_cselect_b32 {s(S_SL)}, 0, {s(S_SL)}",
          f"s_add_u32 {s(S_SL2)}, {s(S_SL2)}, 1", f"s_cmp_eq_u32 {s(S_SL2)}, 6",
          f"s_cselect_b32 {s(S_D2)}, s6, s7", f"s_cselect_b32 {s(S_SL2)}, 0, {s(S_SL2)}"]
    spread(sc, 0, 1, into=sl)
    spread(adv4, 13, 2, into=sl)
    at(sl, 12, f"s_cmp_eq_u32 {s(S_CNT)}, 2")
    emit(a, place(p4_mfmas(0), sl))
    a(lg(0))
    a("s_cbranch_scc0 L_p4bar")
    st.cyc("own")
    a("s_barrier")
    a.label("L_p4bar")
    a("s_barrier")
    sl = spread(p4_reads(0, 0), 0, 1)
    at(sl, 12, f"s_add_u32 {s(S_CNT)}, {s(S_CNT)}, 1")
    at(sl, 13, f"s_cmp_lt_u32 {s(S_CNT)}, 11")
    emit(a, place(p4_mfmas(1), sl))
    a(lg(0))
    a("s_cbranch_scc1 L_p4")
    jitter(a, cfg, 5)
    st.cyc("p4loop")
    emit(a, place(p4_mfmas(0), spread(p4_reads(1, 1), 0, 1)))
    a(lg(0))
    PK = QP

    def tile(tt, qt):
        return A4 + 4 * (3 * tt + qt)
    ep = []
    for pb in range(2):
        for qt in range(3):
            d = PK + 4 * (3 * pb + qt)
            t0, t1 = tile(2 * pb, qt), tile(2 * pb + 1, qt)
            ep.append([cvt(d, t0), cvt(d + 1, t0 + 2), cvt(d + 2, t1), cvt(d + 3, t1 + 2),
                       f"s_mov_b32 s3, {2560 * qt + 1024 * pb}",
                       f"buffer_store_dwordx4 {v(d, 4)}, {v(AP)}, {s(R_P, 4)}, s3 offen sc1"])
    for qt in range(3):
        d = PK + 24 + 2 * qt
        ep.append([cvt(d, tile(4, qt)), cvt(d + 1, tile(4, qt) + 2), f"s_mov_b32 s3, {2560 * qt}",
                   f"buffer_store_dwordx2 {v(d, 2)}, {v(AP2)}, {s(R_P, 4)}, s3 offen sc1"])
    flat = sum(ep, [])
    emit(a, place(p4_mfmas(1), spread(flat[:12], 9, 2)))
    emit(a, flat[12:])
    jitter(a, cfg, 4)
    st.cyc("pstore")
    if not cfg.sent:
        a("s_waitcnt vmcnt(0)")
    elif cfg.sent > 1:
        a(f"s_waitcnt vmcnt({cfg.sent})")
    a(f"s_mov_b64 exec, {15 if cfg.pfl & 2 else 1}")
    a(f"buffer_store_dwordx2 {v(TG, 2)}, {v(FL2)}, {s(R_F, 4)}, {s(S_F2)} offen sc1")
    st.cyc("flag2")
    st.real("real1")
    st.flush("C")
    a.label("L_last")
    a("s_endpgm")


def gen_loader(a, cfg):
    st = Stamps(a, cfg)
    R_X, R_WQ, R_K, R_V, R_WO = 8, 12, 16, 20, 56
    R_OI, R_PI, R_OUT = 12, 16, 20
    S_LW, S_SW, S_SX, S_LDS, S_N, S_KK, S_PK = 50, 51, 52, 53, 54, 55, 49
    S_MW, S_MX, S_LDO = 62, 63, 7
    OW, OX, OK_, OV, OWO, OO = 16, 22, 25, 34, 43, 48
    RRc, UUc = 52, 55
    AT, AF1, AF2, TG, PT = 58, 59, 60, 62, 64
    A0, A1, RT, JK, AT2 = 66, 67, 68, 74, 75
    T0, T1, T2 = 4, 5, 6

    if cfg.lprio:
        a("s_setprio 3")
    if cfg.only and "k0" in st.only:
        a("s_waitcnt lgkmcnt(0)")
        st.cyc("k0")
    a(f"s_sub_u32 {s(S_LW)}, {s(S_WAVE)}, 4")
    for c in range(3):
        a(f"v_add_u32 {v(T0)}, {64 * c}, v0")
        a(f"v_mul_u32_u24 {v(T1)}, 2731, {v(T0)}")
        a(f"v_lshrrev_b32 {v(RRc + c)}, 16, {v(T1)}")
        a(f"v_mul_u32_u24 {v(T1)}, 24, {v(RRc + c)}")
        a(f"v_sub_u32 {v(UUc + c)}, {v(T0)}, {v(T1)}")
    a(f"s_mul_i32 s3, {s(S_LW)}, 3")
    a(f"v_lshrrev_b32 {v(T2)}, 4, v0")
    a("v_and_b32 v7, 7, v0")
    a("v_lshrrev_b32 v8, 3, v0")
    for c in range(3):
        a(f"s_add_u32 s4, s3, {c}")
        a("s_lshl_b32 s6, s4, 3")
        a("s_and_b32 s4, s4, 1")
        a("s_lshl_b32 s4, s4, 2")
        a(f"v_or_b32 {v(T0)}, s4, {v(T2)}")
        a(f"v_xor_b32 {v(T0)}, {v(T0)}, v7")
        a(f"v_add_u32 {v(T1)}, s6, v8")
        a(f"v_mul_u32_u24 {v(T1)}, 1280, {v(T1)}")
        a(f"v_lshl_add_u32 {v(OX + c)}, {v(T0)}, 4, {v(T1)}")
    a(f"s_lshl_b32 s3, {s(S_LW)}, 4")
    for c in range(3):
        a(f"v_bfe_u32 {v(T0)}, {v(RRc + c)}, 1, 1")
        a(f"v_lshlrev_b32 {v(T0)}, 1, {v(T0)}")
        a(f"v_xor_b32 {v(T0)}, {v(T0)}, {v(UUc + c)}")
        a(f"v_add_u32 {v(T1)}, s3, {v(RRc + c)}")
        a(f"v_mul_u32_u24 {v(T1)}, 12288, {v(T1)}")
        a(f"v_lshl_add_u32 {v(OW + c)}, {v(T0)}, 4, {v(T1)}")
        a(f"v_xor_b32 {v(T0)}, 64, {v(OW + c)}")
        a(f"v_add_u32 {v(OW + 3 + c)}, {8 * 12288}, {v(T0)}")
    a(f"s_mul_i32 {s(S_MW)}, {s(S_LW)}, 6144")
    a(f"s_mul_i32 {s(S_MX)}, {s(S_LW)}, 3072")
    a(f"s_add_u32 {s(S_MX)}, {s(S_MX)}, 24576")
    fb = {8: [0, 2, 4, 6, 8, 0, 2, 4], 9: [0, 5, 0, 5, 0, 5, 0, 5], 10: [0, 3, 5, 8, 0, 3, 5, 8],
          11: [0, 3, 7, 0, 3, 7, 0, 3]}[cfg.rot]
    word = sum(x << (4 * i) for i, x in enumerate(fb))
    a(f"s_lshl_b32 s3, {s(S_B)}, 2")
    a(f"s_lshr_b32 s3, {word:#x}, s3")
    a("s_and_b32 s3, s3, 15")
    a(f"s_lshl_b32 s4, {s(S_HH)}, 2")
    a("s_lshr_b32 s4, 0x8530, s4")
    a("s_and_b32 s4, s4, 15")
    a("s_add_u32 s3, s3, s4")
    a(f"s_add_u32 {s(S_KK)}, s3, {s(S_G8)}")
    mod_small(a, s(S_KK), 10, 2)
    a(f"s_mov_b32 {s(S_LDS)}, 0")
    a(f"s_mul_i32 s3, {s(S_B)}, 122880")
    a(f"s_mul_i32 s5, {s(S_H)}, 384")
    a("s_sub_u32 s4, 7864320, s5")
    st.cyc("pre", True) if cfg.only else None
    a("s_waitcnt lgkmcnt(0)")
    st.cyc("karg", True)
    srd(a, R_X, S_X, "s3", 122880)
    srd(a, R_WQ, S_WQ, "s5", "s4")

    def stage_body():
        a(f"s_mul_i32 {s(S_SW)}, {s(S_KK)}, {64 * 12288}")
        a(f"s_lshl_b32 {s(S_SX)}, {s(S_KK)}, 7")
        a(f"s_add_u32 s3, {s(S_LDS)}, {s(S_MW)}")
        a(f"s_add_u32 s4, {s(S_LDS)}, {s(S_MX)}")
        for c in range(3):
            dma(a, OX + c, R_X, s(S_SX), "s4", 1024 * c)
        for p in range(6):
            dma(a, OW + p, R_WQ, s(S_SW), "s3", 1024 * p, "nt" if cfg.ntkv & 8 else "")
        a(f"s_add_u32 {s(S_KK)}, {s(S_KK)}, 1")
        a(f"s_cmp_eq_u32 {s(S_KK)}, 10")
        a(f"s_cselect_b32 {s(S_KK)}, 0, {s(S_KK)}")
        a(f"s_add_u32 {s(S_LDS)}, {s(S_LDS)}, {SLOT}")
        a(f"s_cmp_eq_u32 {s(S_LDS)}, {3 * SLOT}")
        a(f"s_cselect_b32 {s(S_LDS)}, 0, {s(S_LDS)}")

    def call(lbl):
        a(f"s_call_b64 s[44:45], {lbl}")
    stage_body()
    if cfg.lprio:
        a("s_setprio 0")
    st.cyc("issued")
    a(f"s_lshl_b32 s3, {s(S_B)}, 7")
    a(f"s_add_u32 s3, s3, {OFF_F + FX}")
    a(f"s_add_u32 s4, {s(S_WS)}, s3")
    a(f"s_addc_u32 s5, {s(S_WS + 1)}, 0")
    a(f"s_load_dwordx2 {s(S_TAG, 2)}, s[4:5], 0")
    if cfg.kpos >= 9:
        table = {9: [1, 2, 3, 4, 5, 6, 7, 8], 11: [8, 8, 7, 7, 6, 6, 5, 5], 12: [8, 7, 6, 5, 8, 4, 3, 2],
                 13: [1, 8, 1, 8, 1, 8, 1, 8], 14: [1, 1, 8, 1, 1, 8, 1, 8],
                 20: [1, 8, 1, 1, 8, 1, 1, 8], 21: [1, 8, 8, 1, 8, 8, 1, 8], 22: [1, 8, 4, 1, 8, 4, 1, 8],
                 23: [1, 2, 1, 1, 2, 1, 1, 2], 24: [1, 8, 5, 3, 8, 6, 1, 8], 25: [0, 8, 1, 0, 8, 1, 0, 8],
                 26: [1, 8, 1, 8, 1, 8, 1, 8], 27: [0, 8, 0, 8, 0, 8, 0, 8]}[cfg.kpos]
        word = sum(x << (4 * i) for i, x in enumerate(table))
        if cfg.kpos < 20:
            a(f"s_add_u32 s3, {s(S_B)}, {s(S_G8)}")
            a("s_and_b32 s3, s3, 7")
            a("s_lshl_b32 s3, s3, 2")
        else:
            a(f"s_lshl_b32 s3, {s(S_B)}, 2")
        a(f"s_lshr_b32 s3, {word:#x}, s3")
        a(f"s_and_b32 {s(S_PK)}, s3, 15")
    else:
        a(f"s_mov_b32 {s(S_PK)}, {cfg.kpos}")
    a(f"s_lshl_b32 s3, {s(S_B)}, 5")
    a(f"s_add_u32 s3, s3, {s(S_H)}")
    a("s_mul_i32 s3, s3, 36864")
    srd(a, R_K, S_K, "s3", 36864)
    srd(a, R_V, S_V, "s3", 36864)
    srd(a, R_F, S_WS, f"{OFF_F}", 262144)
    a(f"s_mul_i32 s3, {s(S_LW)}, 24")
    a(f"s_and_b32 s4, {s(S_LW)}, 1")
    a("s_lshl_b32 s4, s4, 6")
    for c in range(3):
        a(f"v_lshrrev_b32 {v(T0)}, 1, {v(RRc + c)}")
        a(f"v_add_u32 {v(T1)}, s3, {v(RRc + c)}")
        a(f"v_mul_u32_u24 {v(T1)}, 384, {v(T1)}")
        a(f"v_xor_b32 {v(T2)}, {v(T0)}, {v(UUc + c)}")
        a(f"v_lshl_add_u32 {v(T2)}, {v(T2)}, 4, {v(T1)}")
        a(f"v_xor_b32 {v(OK_ + c)}, s4, {v(T2)}")
        a(f"v_xor_b32 {v(T2)}, 64, {v(OK_ + c)}")
        a(f"v_add_u32 {v(OK_ + 3 + c)}, 3072, {v(T2)}")
        a(f"v_add_u32 {v(OK_ + 6 + c)}, 6144, {v(OK_ + c)}")
        a(f"v_lshlrev_b32 {v(T2)}, 1, {v(T0)}")
        a(f"v_xor_b32 {v(T2)}, {v(T2)}, {v(UUc + c)}")
        a(f"v_lshl_add_u32 {v(OV + c)}, {v(T2)}, 4, {v(T1)}")
        a(f"v_add_u32 {v(OV + 3 + c)}, 3072, {v(OV + c)}")
        a(f"v_add_u32 {v(OV + 6 + c)}, 6144, {v(OV + c)}")
    a(f"s_mul_i32 s3, {s(S_G8)}, 983040")
    a(f"s_mul_i32 s4, {s(S_HH)}, 320")
    a("s_add_u32 s3, s3, s4")
    a("s_sub_u32 s4, 7864320, s3")
    srd(a, R_WO, S_WO, "s3", "s4")
    if cfg.tpos == 1:
        a(f"s_mul_i32 s3, {s(S_G8)}, 983040")
        srd(a, 96, S_WO, "s3", 983040)
    if cfg.tx:
        a("s_lshr_b32 s3, s2, 3")
        a("s_lshl_b32 s3, s3, 2")
        a(f"s_add_u32 s3, s3, {s(S_LW)}")
        a("s_mul_i32 s3, s3, 7680")
        a(f"v_min_u32 {v(T0)}, 59, v0")
        a(f"v_lshl_add_u32 {v(AT)}, {v(T0)}, 7, s3")
    else:
        a(f"s_lshl_b32 s3, {s(S_B)}, 2")
        a(f"s_add_u32 s3, s3, {s(S_LW)}")
        a("s_mul_i32 s3, s3, 24")
        a(f"v_mul_u32_u24 {v(T1)}, 21846, v0")
        a(f"v_lshrrev_b32 {v(T1)}, 16, {v(T1)}")
        a(f"v_mul_u32_u24 {v(T2)}, 3, {v(T1)}")
        a(f"v_sub_u32 {v(T0)}, v0, {v(T2)}")
        a(f"v_add_u32 {v(T1)}, s3, {v(T1)}")
        a(f"v_mul_u32_u24 {v(T1)}, 1280, {v(T1)}")
        a(f"v_lshl_add_u32 {v(AT)}, {v(T0)}, 7, {v(T1)}")
        a(f"v_min_u32 {v(T0)}, 7, v0")
        a(f"v_add_u32 {v(T0)}, 64, {v(T0)}")
        a(f"v_mul_u32_u24 {v(T1)}, 21846, {v(T0)}")
        a(f"v_lshrrev_b32 {v(T1)}, 16, {v(T1)}")
        a(f"v_mul_u32_u24 {v(T2)}, 3, {v(T1)}")
        a(f"v_sub_u32 {v(T0)}, {v(T0)}, {v(T2)}")
        a(f"v_add_u32 {v(T1)}, s3, {v(T1)}")
        a(f"v_mul_u32_u24 {v(T1)}, 1280, {v(T1)}")
        a(f"v_lshl_add_u32 {v(AT2)}, {v(T0)}, 7, {v(T1)}")
    if cfg.lprio == 2:
        a("s_setprio 3")
    stage_body()

    def issue_kv(off, srd_, base):
        a(f"s_mul_i32 s3, {s(S_LW)}, 9216")
        a(f"s_add_u32 s3, s3, {base}")
        for p in range(9):
            dma(a, off + p, srd_, "0", "s3", 1024 * p, "nt" if cfg.ntkv & (1 if srd_ == R_K else 2) else "")
    a("s_waitcnt vmcnt(9)")
    jitter(a, cfg, 6)
    st.cyc("landed0")
    a("s_barrier")
    a(f"s_mov_b32 {s(S_N)}, 0")
    a.label("L_lloop")
    a(f"s_cmp_eq_u32 {s(S_N)}, {s(S_PK)}")
    a("s_cbranch_scc0 L_nok")
    call("L_sub_k")
    a.label("L_nok")
    stage_body()
    a("s_waitcnt vmcnt(9)")
    a("s_barrier")
    a(f"s_add_u32 {s(S_N)}, {s(S_N)}, 1")
    a(f"s_cmp_lt_u32 {s(S_N)}, 8")
    a("s_cbranch_scc1 L_lloop")
    st.cyc("b8")
    if cfg.tpos == 8:
        a(f"s_mul_i32 s3, {s(S_G8)}, 983040")
        srd(a, R_X, S_WO, "s3", 983040)
        a(f"buffer_load_dword {v(JK)}, {v(AT)}, {s(R_X, 4)}, 0 offen")
    a(f"s_cmp_eq_u32 {s(S_PK)}, 8")
    a("s_cbranch_scc0 L_vonly")
    call("L_sub_k")
    a(f"s_waitcnt vmcnt({10 if cfg.tpos == 1 else 9})")
    a("s_barrier")
    call("L_sub_v")
    a("s_branch L_kvdone")
    a.label("L_sub_k")
    issue_kv(OK_, R_K, A_K)
    if cfg.tpos == 1:
        a(f"buffer_load_dword {v(JK)}, {v(AT)}, s[96:99], 0 offen")
    a("s_setpc_b64 s[44:45]")
    a.label("L_sub_v")
    issue_kv(OV, R_V, A_V)
    a("s_setpc_b64 s[44:45]")
    a.label("L_sub_wo")
    a(f"s_mul_i32 {s(S_SW)}, {s(S_KK)}, {64 * 1280}")
    a(f"s_add_u32 s3, {s(S_LDS)}, {s(S_MW)}")
    for p in range(5):
        dma(a, OWO + p, R_WO, s(S_SW), "s3", 1024 * p)
    a(f"s_add_u32 {s(S_KK)}, {s(S_KK)}, 1")
    a(f"s_cmp_eq_u32 {s(S_KK)}, 12")
    a(f"s_cselect_b32 {s(S_KK)}, 0, {s(S_KK)}")
    a(f"s_add_u32 {s(S_LDS)}, {s(S_LDS)}, {WOS}")
    a(f"s_cmp_eq_u32 {s(S_LDS)}, {4 * WOS}")
    a(f"s_cselect_b32 {s(S_LDS)}, 0, {s(S_LDS)}")
    a("s_setpc_b64 s[44:45]")
    a.label("L_sub_o")
    a(f"s_mul_i32 {s(S_SX)}, {s(S_PK)}, {OS}")
    a(f"s_add_u32 m0, {s(S_LDO)}, {s(S_MX)}")
    a(f"s_add_u32 {s(S_PK)}, {s(S_PK)}, 1")
    for c in range(3):
        a(f"buffer_load_dwordx4 {v(OO)}, {s(R_OI, 4)}, {s(S_SX)} offen offset:{1024 * c} {['sc1', '', 'nt'][cfg.unsafe % 9]} lds")
    a(f"s_cmp_eq_u32 {s(S_PK)}, 12")
    a(f"s_cselect_b32 {s(S_PK)}, 0, {s(S_PK)}")
    a(f"s_add_u32 {s(S_LDO)}, {s(S_LDO)}, {OS}")
    a(f"s_cmp_eq_u32 {s(S_LDO)}, {6 * OS}")
    a(f"s_cselect_b32 {s(S_LDO)}, 0, {s(S_LDO)}")
    a("s_setpc_b64 s[44:45]")
    a.label("L_vonly")
    call("L_sub_v")
    a("s_waitcnt vmcnt(9)")
    a("s_barrier")
    a.label("L_kvdone")
    a("s_waitcnt vmcnt(9)")
    jitter(a, cfg, 7)
    st.cyc("Kland")
    a("s_barrier")
    if cfg.tx:
        a(f"s_mul_i32 s3, {s(S_G8)}, 983040")
        srd(a, R_X, S_WO, "s3", 983040)
        touch = f"buffer_load_dword {v(JK)}, {v(AT)}, {s(R_X, 4)}, 0 offen"
    else:
        touch = (f"buffer_load_dword {v(JK)}, {v(AT)}, {s(R_WO, 4)}, 0 offen\n"
                 f"buffer_load_dword {v(JK + 2)}, {v(AT2)}, {s(R_WO, 4)}, 0 offen")
    if cfg.tpos == 10:
        a(touch)
    a(f"s_lshl_b32 s3, {s(S_B)}, 3")
    a(f"s_add_u32 s3, s3, {s(S_G8)}")
    a(f"s_mul_i32 s3, s3, {4 * 36864}")
    srd(a, R_OI, S_WS, "s3", 4 * 36864)
    a(f"s_lshl_b32 s3, {s(S_B)}, 2")
    a(f"s_add_u32 s3, s3, {s(S_HH)}")
    a(f"s_mul_i32 s3, s3, {8 * PSZ}")
    a(f"s_add_u32 s3, s3, {OFF_P}")
    srd(a, R_PI, S_WS, "s3", 8 * PSZ)
    a(f"s_mul_i32 {s(S_MW)}, {s(S_LW)}, 5120")
    a(f"s_add_u32 {s(S_MW)}, {s(S_MW)}, {WO0}")
    a(f"s_mul_i32 {s(S_MX)}, {s(S_LW)}, 3072")
    a(f"s_mul_i32 {s(S_KK)}, {s(S_HH)}, 3")
    a(f"s_add_u32 {s(S_PK)}, {s(S_KK)}, 3")
    a(f"s_cmp_eq_u32 {s(S_PK)}, 12")
    a(f"s_cselect_b32 {s(S_PK)}, 0, {s(S_PK)}")
    a(f"s_mov_b32 {s(S_LDS)}, {WOS}")
    a(f"s_mov_b32 {s(S_LDO)}, {3 * OS}")
    a("s_barrier")
    if cfg.lprio == 2:
        a("s_setprio 0")
    if cfg.tpos == 11:
        a(touch)
    a(f"s_lshl_b32 s3, {s(S_LW)}, 4")
    for c in range(5):
        a(f"v_add_u32 {v(T0)}, {64 * c}, v0")
        a(f"v_mul_u32_u24 {v(T1)}, 3277, {v(T0)}")
        a(f"v_lshrrev_b32 {v(T1)}, 16, {v(T1)}")
        a(f"v_mul_u32_u24 {v(T2)}, 20, {v(T1)}")
        a(f"v_sub_u32 {v(T0)}, {v(T0)}, {v(T2)}")
        a(f"v_lshrrev_b32 {v(T2)}, 1, {v(T1)}")
        a(f"v_and_b32 {v(T2)}, 2, {v(T2)}")
        a(f"v_xor_b32 {v(T0)}, {v(T0)}, {v(T2)}")
        a(f"v_add_u32 {v(T1)}, s3, {v(T1)}")
        a(f"v_mul_u32_u24 {v(T1)}, 1280, {v(T1)}")
        a(f"v_lshl_add_u32 {v(OWO + c)}, {v(T0)}, 4, {v(T1)}")
    a(f"v_lshl_add_u32 {v(OO)}, v0, 4, {s(S_MX)}")
    a(f"s_lshl_b32 s3, {s(S_B)}, 5")
    a(f"s_add_u32 s3, s3, {s(S_H)}")
    if not cfg.pfl & 1:
        a("s_lshr_b32 s3, s3, 2")
    a("s_lshl_b32 s3, s3, 7")
    a(f"v_and_b32 {v(T0)}, 15, v0")
    a(f"v_lshl_add_u32 {v(AF1)}, {v(T0)}, 3, s3")
    a("s_waitcnt lgkmcnt(0)")
    a(f"s_add_u32 {s(S_TAG)}, {s(S_TAG)}, {TAGC[0]:#x}")
    a(f"s_addc_u32 {s(S_TAG + 1)}, {s(S_TAG + 1)}, {TAGC[1]:#x}")
    a(f"v_mov_b32 {v(TG)}, {s(S_TAG)}")
    a(f"v_mov_b32 {v(TG + 1)}, {s(S_TAG + 1)}")
    a(f"v_mov_b32 {v(T0)}, {A_TAG}")
    a(f"ds_write_b64 {v(T0)}, {v(TG, 2)}")
    a(f"s_waitcnt vmcnt({(1 if cfg.tx else 2) if cfg.tpos in (10, 11) else 0}) lgkmcnt(0)")
    jitter(a, cfg, 8)
    st.cyc("Vland")
    if cfg.lprio == 2:
        a("s_setprio 3")
    a("s_barrier")
    if cfg.tpos == 12:
        a(touch)
    a(f"s_mul_i32 s3, {s(S_B)}, 122880")
    a(f"s_mul_i32 s4, {s(S_HH)}, 320")
    a("s_add_u32 s3, s3, s4")
    a("s_sub_u32 s4, 983040, s3")
    srd(a, R_OUT, S_OUT, "s3", "s4")
    assert cfg.w12 <= 2
    for _ in range(cfg.w12):
        call("L_sub_wo")
    a("s_barrier")
    for _ in range(cfg.w13):
        call("L_sub_wo")

    def poll(name, vaddr):
        a(f"s_mov_b32 s3, {SPIN_MAX}")
        a.label(name)
        a(f"buffer_load_dwordx2 {v(PT, 2)}, {v(vaddr)}, {s(R_F, 4)}, 0 offen sc1")
        a("s_sub_u32 s3, s3, 1")
        a("s_cmp_eq_u32 s3, 0")
        a(f"s_cbranch_scc1 {name}_out")
        a("s_waitcnt vmcnt(0)")
        a(f"v_cmp_ne_u64 vcc, {v(PT, 2)}, {v(TG, 2)}")
        a("s_nop 1")
        a(f"s_cbranch_vccnz {name}")
        a.label(name + "_out")
        a("s_waitcnt vmcnt(0)")

    BARS = ["B0", "B1", "B2", "BX"] + [f"B{n}" for n in range(3, 12)]
    own_mask = "s[4:5]"

    def run(path, tokens, state, alts):
        q, nwo, no, bi = state
        q = list(q)
        for k, ch in enumerate(tokens):
            free = -1 if bi < 2 else (bi - 2 if bi <= 4 else bi - 3)
            if ch == "w":
                assert nwo <= max(3, free + 4), (path, k, nwo, free)
                call("L_sub_wo")
                q.append((nwo, 5))
                nwo += 1
            elif ch == "o":
                assert no <= max(5, free + 6), (path, k, no, free)
                call("L_sub_o")
                q.append((no, 3))
                no += 1
            elif ch == "c":
                if cfg.sent:
                    a("s_mov_b32 s3, 4096")
                    for kk in range(8):
                        a(f"buffer_store_dwordx4 {v(CL, 4)}, {v(ACL)}, {s(R_PO, 4)}, {'s3' if kk >= 4 else '0'} offen offset:{1024 * (kk % 4)} sc1")
                    q.append((11, 8))
            elif ch == "p":
                a(f"buffer_load_dwordx2 {v(PT, 2)}, {v(AF1)}, {s(R_F, 4)}, 0 offen sc1")
                q.append((99, 1))
            elif ch in "ab":
                last = max(i for i, (kk, _) in enumerate(q) if kk == 99)
                a(f"s_waitcnt vmcnt({sum(c for _, c in q[last + 1:])})")
                q = q[last + 1:]
                a(f"v_cmp_ne_u64 vcc, {v(PT, 2)}, {v(TG, 2)}")
                a("s_nop 1")
                a(f"s_and_b64 s[4:5], vcc, {s(S_OM, 2)}")
                a(f"s_cbranch_scc0 L_path_{ch}")
                alts[ch] = (q, nwo, no, bi)
            elif ch == "s":
                poll("L_poll1", AF1)
                q = []
            elif ch == "|":
                name = BARS[bi]
                need = {"BX": -1}.get(name, int(name[1:]) if name != "BX" else -1)
                if need >= 0:
                    assert nwo > need and (need < 3 or no > need), (path, name)
                    last = max([i for i, (kk, _) in enumerate(q) if kk <= need] + [-1])
                    cnt = sum(c for _, c in q[last + 1:])
                    if last >= 0:
                        a(f"s_waitcnt vmcnt({cnt})")
                    q = q[last + 1:]
                a("s_barrier")
                bi += 1
        assert bi == len(BARS) and nwo == 12 and no == 12, (path, bi, nwo, no)
    CL, ACL, R_PO = 112, 116, 8
    if cfg.sent:
        a(f"s_lshl_b32 s3, {s(S_B)}, 2")
        a(f"s_add_u32 s3, s3, {s(S_HH)}")
        a("s_lshl_b32 s3, s3, 3")
        a(f"s_add_u32 s3, s3, {s(S_G8)}")
        a(f"s_mul_i32 s3, s3, {PSZ}")
        a(f"s_add_u32 s3, s3, {OFF_P}")
        srd(a, R_PO, S_WS, "s3", PSZ)
        a(f"s_mul_i32 s3, {s(S_LW)}, 7680")
        a(f"v_lshl_add_u32 {v(ACL)}, v0, 4, s3")
        for kk in range(4):
            a(f"v_mov_b32 {v(CL + kk)}, -1")
    S_OM = 4 * 0 + 40
    a(f"s_lshl_b32 s3, {s(S_HH)}, 2")
    a("s_lshl_b32 s3, 0x000f000f, s3")
    a(f"s_not_b32 {s(S_OM)}, s3")
    a(f"s_mov_b32 {s(S_OM + 1)}, {s(S_OM)}")
    a("s_barrier")
    jitter(a, cfg, 10)
    if cfg.tpos == 15:
        a(touch)
    tabs = {
        1: dict(N="wp a|ww|wp|b|ww s ooo|wo|wo|wo|wo|wo|wo|||",
                a="|ww|w ooo||w|wo|wo|wo|wo|wo|wo|w||",
                b="ooo|w|wo|wo|wo|wo|wo|wo|w||"),
        2: dict(N="wp a|ww|wp|b|ww s ooo|wo|wo|wo|wo|wo|wo|||",
                a="|ww|w ooo||w|wwo|wo|wo|wo|wo|wo|||",
                b="ooo|w|wwo|wo|wo|wo|wo|wo|||"),
        3: dict(N="wp a|ww|wp|b|www s ooo|ooo|w|w|w|oo|w|wo||",
                a="|ww|w ooo||ww|wo|wo|wo|wo|wo|wo|||",
                b="ooo|ww|wo|wo|wo|wo|wo|wo|||"),
        4: dict(N="w|ww|wp|b|ww s ooo|wo|wo|wo|wo|wo|woc|||",
                b="ooo|w|wo|wo|wo|wo|wo|wo|wc||"),
        8: dict(N="wp|ww a|wp|b|ww s ooo|wo|wo|wo|wo|wo|wo|||",
                a="ooo|w||w|wo|wo|wo|wo|wo|wo|w||",
                b="ooo|w|wo|wo|wo|wo|wo|wo|w||"),
        9: dict(N="w|wpw a|wp|b|ww s ooo|wo|wo|wo|wo|wo|wo|||",
                a="ooo|w||w|wo|wo|wo|wo|wo|wo|w||",
                b="ooo|w|wo|wo|wo|wo|wo|wo|w||"),
        10: dict(N="w|wwp|a wp|b|ww s ooo|wo|wo|wo|wo|wo|wo|||",
                 a="w ooo||w|wo|wo|wo|wo|wo|wo|w||",
                 b="ooo|w|wo|wo|wo|wo|wo|wo|w||"),
        11: dict(N="w|wwp|a wp|b|ww s ooo|wo|wo|wo|wo|wo|wo|||",
                 a="w oo||wo|wo|wo|wo|wo|wo|wo|w||",
                 b="oo|wo|wo|wo|wo|wo|wo|wo|w||"),
        7: dict(N="w|ww|wp|b|ww s ooo|wo|wo|wo|wo|wo|wo|c||",
                b="ooo|w|wwo|wo|wo|wo|wo|woc|||"),
        5: dict(N="wp a|ww|wp|b|ww s ooo|wo|wo|wo|wo|wo|wo|||",
                a="|ww|w oo||wo|wo|wo|wo|wo|wo|wo|w||",
                b="oo|wo|wo|wo|wo|wo|wo|wo|w||"),
        6: dict(N="wp a|ww|wp|b|ww s ooo|wo|wo|wo|wo|wo|wo|||",
                a="|www ooo|||w|wwo|wo|wo|wo|wo|wo|||",
                b="ooo|w|wwo|wo|wo|wo|wo|wo|||"),
    }[cfg.tab]
    alts = {}
    npre = cfg.w12 + cfg.w13
    if npre == 1:
        tabs = dict(N="w|w|wp|b|ww s ooo|wo|wo|wo|wo|wo|wo|||", b=tabs["b"])
    elif npre == 2:
        tabs = dict(N="w||wp|b|ww s ooo|wo|wo|wo|wo|wo|wo|||", b=tabs["b"])
    elif npre == 3:
        tabs = dict(N="w||p|b|ww s ooo|wo|wo|wo|wo|wo|wo|||", b=tabs["b"])
    run("N", tabs["N"].replace(" ", ""), ([(k, 5) for k in range(npre)], npre, 3, 0), alts)
    a("s_branch L_final")
    for key in sorted(alts):
        a.label(f"L_path_{key}")
        run(key, tabs[key].replace(" ", ""), alts[key], {})
        if key != sorted(alts)[-1]:
            a("s_branch L_final")
    a.label("L_final")
    jitter(a, cfg, 9)
    OFFS = RT
    a(f"s_lshr_b32 s5, {s(S_G8)}, 2")
    if cfg.pfl & 2:
        a(f"s_lshl_b32 s3, {s(S_B)}, 5")
        a(f"s_add_u32 s3, s3, {s(S_H)}")
    else:
        a(f"s_lshl_b32 s3, {s(S_B)}, 2")
        a(f"s_add_u32 s3, s3, {s(S_HH)}")
        a("s_lshl_b32 s3, s3, 1")
        a("s_add_u32 s3, s3, s5")
    a("s_lshl_b32 s3, s3, 7")
    a(f"s_add_u32 s3, s3, {F2}")
    a(f"v_and_b32 {v(T0)}, 15, v0")
    a(f"v_lshl_add_u32 {v(AF2)}, {v(T0)}, 3, s3")
    a(f"s_and_b32 s6, {s(S_G8)}, 3")
    a("s_mul_i32 s6, s6, 3")
    a("s_mul_i32 s5, s5, 7680")
    a(f"s_mul_i32 s4, {s(S_G8)}, {0 if cfg.otr else 12 * 1280}")
    a(f"s_cmp_eq_u32 {s(S_LW)}, 3")
    a("s_cbranch_scc1 L_red3")
    a(f"s_add_u32 s6, s6, {s(S_LW)}")
    a("s_lshr_b32 s3, s6, 2")
    a("s_mul_i32 s3, s3, 2560")
    a("s_add_u32 s5, s5, s3")
    a("s_and_b32 s6, s6, 3")
    a("s_lshl_b32 s6, s6, 8")
    a("s_add_u32 s5, s5, s6")
    a(f"s_mul_i32 s3, {s(S_LW)}, {4 * (320 if cfg.otr else 1280)}")
    a("s_add_u32 s4, s4, s3")
    a("v_lshrrev_b32 v7, 5, v0")
    a("v_bfe_u32 v8, v0, 4, 1")
    a(f"v_mul_u32_u24 v9, 15360, v7")
    a("v_lshl_add_u32 v9, v8, 10, v9")
    a(f"v_lshl_add_u32 v9, {v(T0)}, 4, v9")
    a(f"v_add_u32 {v(OFFS)}, s5, v9")
    a("v_and_b32 v9, 3, v0")
    a(f"v_mul_u32_u24 v9, {320 if cfg.otr else 1280}, v9")
    a("v_mul_u32_u24 v7, 160, v7")
    a("v_lshl_add_u32 v7, v8, 6, v7")
    a("v_bfe_u32 v8, v0, 2, 2")
    a("v_lshl_add_u32 v7, v8, 3, v7")
    a("v_add3_u32 " + f"{v(A0)}, v7, v9, s4")
    a(f"v_add_u32 {v(A1)}, 32, {v(A0)}")
    a("s_branch L_red")
    a.label("L_red3")
    a("v_min_u32 v10, 47, v0")
    a("v_lshrrev_b32 v7, 4, v10")
    a("v_add_u32 v8, s6, v7")
    a("v_lshrrev_b32 v9, 2, v8")
    a("v_mul_u32_u24 v9, 2560, v9")
    a("v_and_b32 v8, 3, v8")
    a("v_lshl_add_u32 v9, v8, 7, v9")
    a("v_bfe_u32 v8, v10, 3, 1")
    a("v_mul_u32_u24 v11, 15360, v8")
    a("v_add_u32 v9, v9, v11")
    a("v_and_b32 v11, 7, v10")
    a("v_lshl_add_u32 v9, v11, 4, v9")
    a("s_add_u32 s5, s5, 2048")
    a(f"v_add_u32 {v(OFFS)}, s5, v9")
    a("v_and_b32 v11, 1, v10")
    a("v_lshl_add_u32 v7, v7, 1, v11")
    a(f"v_mul_u32_u24 v7, {640 if cfg.otr else 2560}, v7")
    a("v_mul_u32_u24 v8, 160, v8")
    a("v_bfe_u32 v11, v10, 1, 2")
    a("v_lshl_add_u32 v8, v11, 3, v8")
    a("s_add_u32 s4, s4, 128")
    a("v_add3_u32 " + f"{v(A0)}, v7, v8, s4")
    a(f"v_add_u32 {v(A1)}, {320 if cfg.otr else 1280}, {v(A0)}")
    a.label("L_red")
    if cfg.otr:
        a(f"s_lshl_b32 s4, {s(S_LW)}, 6")
        a("v_add_u32 v7, s4, v0")
        a("v_min_u32 v7, 239, v7")
        a(f"v_lshlrev_b32 {v(RT + 1)}, 4, v7")
        a("v_mul_u32_u24 v8, 3277, v7")
        a("v_lshrrev_b32 v8, 16, v8")
        a("v_mul_u32_u24 v8, 960, v8")
        a(f"s_mul_i32 s4, {s(S_G8)}, {12 * 1280}")
        a(f"v_add3_u32 {v(RT + 2)}, v8, {v(RT + 1)}, s4")
    D0, AC = 80, 148

    def load_part(g):
        a(f"s_mov_b32 s3, {PSZ * g}")
        a(f"buffer_load_dwordx4 {v(D0 + 4 * g, 4)}, {v(OFFS)}, {s(R_PI, 4)}, s3 offen {['sc1', '', 'nt', 'sc0 sc1', 'sc1 nt'][cfg.pld]}")
    if not cfg.dynred:
        poll("L_poll2", AF2)
        st.cyc("seen2")
        for g in range(8):
            load_part(g)
    elif cfg.dynred == 1:
        a(f"s_mov_b32 s7, {SPIN_MAX}")
        a("s_mov_b32 s6, 0")
        a.label("L_poll2")
        a(f"buffer_load_dwordx2 {v(PT, 2)}, {v(AF2)}, {s(R_F, 4)}, 0 offen sc1")
        a("s_sub_u32 s7, s7, 1")
        a("s_cmp_eq_u32 s7, 0")
        a("s_cbranch_scc1 L_poll2_out")
        a("s_waitcnt vmcnt(0)")
        a(f"v_cmp_eq_u64 vcc, {v(PT, 2)}, {v(TG, 2)}")
        a("s_nop 1")
        a("s_lshr_b32 s5, vcc_lo, 8")
        a("s_and_b32 s5, s5, vcc_lo")
        a("s_and_b32 s5, s5, 0xff")
        a("s_andn2_b32 s4, s5, s6")
        a("s_cbranch_scc0 L_poll2")
        a("s_or_b32 s6, s6, s5")
        for g in range(8):
            a(f"s_bitcmp1_b32 s4, {g}")
            a(f"s_cbranch_scc0 L_r{g}")
            load_part(g)
            a.label(f"L_r{g}")
        a("s_cmp_eq_u32 s6, 0xff")
        a("s_cbranch_scc0 L_poll2")
        a.label("L_poll2_out")
        st.cyc("seen2")
        a("s_waitcnt vmcnt(0)")
    else:
        U0 = 120
        a(f"s_mov_b32 s7, {SPIN_MAX}")
        a("s_mov_b32 s6, 0")
        a("s_mov_b32 s8, 0")
        a("s_mov_b32 s9, 0")
        a("s_branch L_poll2")
        a.label("L_widen")
        for g in range(8):
            a(f"s_bitcmp1_b32 s8, {g}")
            a(f"s_cbranch_scc0 L_u{g}")
            for r in range(4):
                a(f"v_lshlrev_b32 {v(U0 + 8 * g + 2 * r)}, 16, {v(D0 + 4 * g + r)}")
                a(f"v_and_b32 {v(U0 + 8 * g + 2 * r + 1)}, 0xffff0000, {v(D0 + 4 * g + r)}")
            a.label(f"L_u{g}")
        a("s_mov_b32 s8, 0")
        a("s_setpc_b64 s[44:45]")
        a.label("L_poll2")
        a(f"buffer_load_dwordx2 {v(PT, 2)}, {v(AF2)}, {s(R_F, 4)}, 0 offen sc1")
        a("s_cmp_eq_u32 s8, 0")
        a("s_cbranch_scc1 L_nowiden")
        call("L_widen")
        a.label("L_nowiden")
        a("s_sub_u32 s7, s7, 1")
        a("s_cmp_eq_u32 s7, 0")
        a("s_cbranch_scc1 L_poll2_out")
        a("s_waitcnt vmcnt(0)")
        a(f"v_cmp_eq_u64 vcc, {v(PT, 2)}, {v(TG, 2)}")
        a("s_mov_b32 s8, s9")
        a("s_mov_b32 s9, 0")
        a("s_and_b32 s5, vcc_lo, 0xff")
        a("s_andn2_b32 s9, s5, s6")
        a("s_cbranch_scc0 L_poll2")
        a("s_or_b32 s6, s6, s5")
        for g in range(8):
            a(f"s_bitcmp1_b32 s9, {g}")
            a(f"s_cbranch_scc0 L_r{g}")
            load_part(g)
            a.label(f"L_r{g}")
        a("s_cmp_eq_u32 s6, 0xff")
        a("s_cbranch_scc0 L_poll2")
        a.label("L_poll2_out")
        st.cyc("seen2")
        call("L_widen")
        a("s_mov_b32 s8, s9")
        a("s_waitcnt vmcnt(0)")
        call("L_widen")
        for g in range(1, 8):
            for r in range(4):
                a(f"v_pk_add_f32 {v(U0 + 2 * r, 2)}, {v(U0 + 2 * r, 2)}, {v(U0 + 8 * g + 2 * r, 2)}")
        AC = U0
    if cfg.sent:
        assert cfg.dynred
        a("s_mov_b32 s7, 4096")
        a.label("L_chk")
        a(f"v_max3_u32 v4, {v(D0)}, {v(D0 + 1)}, {v(D0 + 2)}")
        a(f"v_max3_u32 v5, {v(D0 + 3)}, {v(D0 + 4)}, {v(D0 + 5)}")
        for kk in range(6, 30, 4):
            a(f"v_max3_u32 v4, v4, {v(D0 + kk)}, {v(D0 + kk + 1)}")
            a(f"v_max3_u32 v5, v5, {v(D0 + kk + 2)}, {v(D0 + kk + 3)}")
        a(f"v_max3_u32 v4, v4, {v(D0 + 30)}, {v(D0 + 31)}")
        a("v_max_u32 v4, v4, v5")
        a("v_cmp_eq_u32 vcc, -1, v4")
        a("s_sub_u32 s7, s7, 1")
        a("s_cselect_b32 s6, 0, 1")
        a("s_and_b32 s4, vcc_lo, -1")
        a("s_or_b32 s4, s4, vcc_hi")
        a("s_cselect_b32 s6, s6, 0")
        a("s_cmp_eq_u32 s6, 0")
        a("s_cbranch_scc1 L_chk_ok")
        for g in range(8):
            load_part(g)
        a("s_waitcnt vmcnt(0)")
        a("s_branch L_chk")
        a.label("L_chk_ok")
        st.cyc("chk")
    for g in range(8 if cfg.dynred < 2 else 0):
        if not cfg.dynred:
            a(f"s_waitcnt vmcnt({7 - g})")
        for r in range(4):
            src = D0 + 4 * g + r
            if g == 0:
                a(f"v_lshlrev_b32 {v(AC + 2 * r)}, 16, {v(src)}")
                a(f"v_and_b32 {v(AC + 2 * r + 1)}, 0xffff0000, {v(src)}")
            else:
                t = 4 + 2 * (r % 2)
                a(f"v_lshlrev_b32 {v(t)}, 16, {v(src)}")
                a(f"v_and_b32 {v(t + 1)}, 0xffff0000, {v(src)}")
                a(f"v_pk_add_f32 {v(AC + 2 * r, 2)}, {v(AC + 2 * r, 2)}, {v(t, 2)}")
    for r in range(4):
        a(cvt(D0 + r, AC + 2 * r))
    fl = ['', 'sc1', 'nt', 'sc0 sc1'][cfg.outfl]
    jitter(a, cfg, 11)
    if cfg.otr:
        a(f"ds_write_b64 {v(A0)}, {v(D0, 2)}")
        a(f"ds_write_b64 {v(A1)}, {v(D0 + 2, 2)}")
        a(lg(0))
        a("s_barrier")
        a(f"ds_read_b128 {v(D0 + 4, 4)}, {v(RT + 1)}")
        a(lg(0))
        a(f"buffer_store_dwordx4 {v(D0 + 4, 4)}, {v(RT + 2)}, {s(R_OUT, 4)}, 0 offen {fl}")
    elif cfg.unsafe == 9:
        a("s_mul_i32 s3, s2, 3840")
        srd(a, 8, S_OUT, "s3", 3840)
        a(f"v_lshlrev_b32 v7, 4, v7")
        a(f"buffer_store_dwordx4 {v(D0, 4)}, v7, s[8:11], 0 offen {fl}")
    else:
        a(f"buffer_store_dwordx2 {v(D0, 2)}, {v(A0)}, {s(R_OUT, 4)}, 0 offen {fl}")
        a(f"buffer_store_dwordx2 {v(D0 + 2, 2)}, {v(A1)}, {s(R_OUT, 4)}, 0 offen {fl}")
    a(f"s_or_b32 s3, {s(S_H)}, {s(S_LW)}")
    a("s_cmp_eq_u32 s3, 0")
    a("s_cbranch_scc0 L_noep")
    a(f"s_lshl_b32 s3, {s(S_B)}, 7")
    a(f"s_add_u32 s3, s3, {FX}")
    a("v_mov_b32 v4, 0")
    a("s_mov_b64 exec, 1")
    a(f"buffer_store_dwordx2 {v(TG, 2)}, v4, {s(R_F, 4)}, s3 offen")
    a.label("L_noep")
    if cfg.diag:
        a("s_waitcnt vmcnt(0)")
    st.cyc("end")
    st.real("real1")
    st.flush("L")


def generate(cfg):
    a = Asm()
    a.lines.append("; @launch grid=(256,1,1) block=(512,1,1) lds=163840")
    a('.amdgcn_target "amdgcn-amd-amdhsa--gfx950"')
    a(".text")
    a(kernel_header(KN))
    a("s_cmp_ge_u32 s2, 256")
    a("s_cbranch_scc1 L_end")
    a("s_load_dwordx16 s[32:47], s[0:1], 0")
    if cfg.diag:
        a(f"s_memrealtime {s(S_T, 2)}")
        a(f"s_memtime {s(S_T + 2, 2)}")
    a("v_lshrrev_b32 v1, 6, v0")
    a("v_and_b32 v0, 63, v0")
    a(f"v_readfirstlane_b32 {s(S_WAVE)}, v1")
    a(f"s_and_b32 {s(S_G8)}, s2, 7")
    a("s_lshr_b32 s4, s2, 3")
    a(f"s_lshr_b32 {s(S_B)}, s4, 2")
    a(f"s_and_b32 {s(S_HH)}, s4, 3")
    a(f"s_lshl_b32 s3, {s(S_G8)}, 2")
    a(f"s_add_u32 {s(S_H)}, s3, {s(S_HH)}")
    a(f"s_cmp_ge_u32 {s(S_WAVE)}, 4")
    a("s_cbranch_scc1 L_loader")
    if cfg.ipf:
        a("s_getpc_b64 s[62:63]")
        a.label("L_pc")
        a(f"s_sub_u32 s62, s62, L_pc-{KN}")
        a("s_subb_u32 s63, s63, 0")
        a(f"s_mul_i32 s3, {s(S_WAVE)}, 28")
        a("v_min_u32 v7, 27, v0")
        a("v_add_u32 v7, s3, v7")
        a("v_lshlrev_b32 v7, 7, v7")
        a(f"v_min_u32 v7, L_last-{KN}, v7")
        if cfg.ipf & 1:
            a("global_load_dword v14, v7, s[62:63]")
    a("s_branch L_compute")
    a.label("L_loader")
    gen_loader(a, cfg)
    a.label("L_end")
    a("s_endpgm")
    a.label("L_compute")
    gen_compute(a, cfg)
    a('.section .rodata,"a"')
    a(".p2align 6")
    a(kernel_desc(KN))
    return a.text()


if __name__ == "__main__":
    cfg = Cfg()
    out = sys.argv[1]
    for opt in sys.argv[2:]:
        k, val = opt.split("=")
        assert hasattr(cfg, k), k
        setattr(cfg, k, val if k == "only" else int(val))
    t = generate(cfg)
    pr = hazard.check(t) + hazard.check_counters(t)
    for p in pr:
        print(f"HAZARD line {p[0]} -> {p[1]}: need {p[2]} have {p[3]}\n    {p[4]}\n    {p[5]}")
    open(out, "w").write(t)
    print(out, "hazards:", len(pr), "lines:", t.count("\n"))
```

```python
import re
import sys

TRANS = ("v_exp_f32", "v_log_f32", "v_rcp_f32", "v_rsq_f32", "v_sqrt_f32", "v_sin_f32", "v_cos_f32")


def regs(tok):
    tok = tok.strip().lstrip("-")
    tok = tok.replace("abs(", "").replace(")", "").strip("|")
    m = re.fullmatch(r"([vsa])(\d+)", tok)
    if m:
        return {(m.group(1), int(m.group(2)))}
    m = re.fullmatch(r"([vsa])\[(\d+):(\d+)\]", tok)
    if m:
        return {(m.group(1), i) for i in range(int(m.group(2)), int(m.group(3)) + 1)}
    if tok == "vcc":
        return {("s", "vcc")}
    if tok == "m0":
        return {("s", "m0")}
    if tok == "exec":
        return {("s", "exec")}
    return set()


class I:
    def __init__(self, line, no):
        self.line, self.no = line.strip(), no
        t = self.line.split(";")[0].strip()
        p = t.split(None, 1)
        self.mn = p[0]
        rest = p[1] if len(p) > 1 else ""
        self.ops = [o.strip() for o in re.split(r",(?![^\[]*\])", rest)] if rest else []
        if self.ops:
            last = self.ops[-1].split()
            self.mods = last[1:]
            self.ops[-1] = last[0] if last else ""
        else:
            self.mods = []
        mn, ops = self.mn, self.ops
        self.kind = "other"
        self.w, self.r = set(), set()
        self.slots = 1
        R = lambda k: set().union(*[regs(o) for o in k]) if k else set()
        if mn == "s_nop":
            self.slots = int(ops[0]) + 1
        if mn.startswith("v_mfma"):
            self.kind = "mfma"
            self.w = regs(ops[0])
            self.ab = R(ops[1:3])
            self.c = regs(ops[3])
            self.r = self.ab | self.c
            self.passes = 8 if "32x32" in mn else 4
        elif mn.startswith("v_permlane"):
            self.kind = "valu"
            self.w = R(ops[:2])
            self.r = R(ops[:2])
        elif mn.startswith("v_cmp"):
            self.kind = "valu"
            self.w = regs(ops[0])
            self.r = R(ops[1:])
        elif mn.startswith("v_"):
            self.kind = "valu"
            self.w = regs(ops[0])
            self.r = R(ops[1:])
            if mn.startswith(("v_fmac", "v_writelane")):
                self.r |= self.w
            if mn.startswith(("v_add_co", "v_addc_co")):
                self.w |= regs(ops[1])
        elif mn.startswith("ds_read"):
            self.kind = "ds"
            self.w = regs(ops[0])
            self.r = regs(ops[1])
        elif mn.startswith("ds_write"):
            self.kind = "ds"
            self.r = R(ops)
        elif mn.startswith("buffer_load"):
            self.kind = "vmem"
            if "lds" in self.mods:
                self.r = R(ops) | {("s", "m0")}
                self.dma = True
            else:
                self.w = regs(ops[0])
                self.r = R(ops[1:])
        elif mn.startswith("buffer_store"):
            self.kind = "vmem"
            self.r = R(ops)
            self.data = regs(ops[0])
        elif mn.startswith("global_load"):
            self.kind = "vmem"
            self.w = regs(ops[0])
            self.r = R(ops[1:])
        elif mn.startswith("global_store"):
            self.kind = "vmem"
            self.r = R(ops)
            self.data = regs(ops[1])
        elif mn.startswith("s_") and ops and not mn.startswith(("s_cmp", "s_cbranch", "s_branch", "s_waitcnt", "s_nop", "s_setprio", "s_sleep", "s_bitcmp")):
            self.kind = "salu"
            self.w = regs(ops[0])
            self.r = R(ops[1:])


def vg(x):
    return {r for r in x if r[0] in "va"}


def sg(x):
    return {r for r in x if r[0] == "s"}


def need(p, c):
    n = 0
    if p.kind == "valu":
        if c.kind == "mfma" and vg(p.w) & c.r:
            n = max(n, 2)
        if re.sub(r"_e(32|64)$", "", p.mn) in TRANS and c.kind == "valu" and re.sub(r"_e(32|64)$", "", c.mn) not in TRANS and vg(p.w) & c.r:
            n = max(n, 1)
        if c.mn.startswith("v_permlane") and vg(p.w) & c.r:
            n = max(n, 2)
        if c.mn.startswith(("v_readfirstlane", "v_readlane")) and vg(p.w) & c.r:
            n = max(n, 1)
        if sg(p.w) and c.kind == "valu" and sg(p.w) & c.r:
            n = max(n, 2)
        if sg(p.w) and c.kind == "vmem" and sg(p.w) & c.r:
            n = max(n, 5)
        if ("dpp" in c.line or "row_" in c.line) and vg(p.w) & c.r:
            n = max(n, 2)
    if p.kind == "mfma":
        big = {4: 8, 8: 12}[p.passes]
        if c.kind == "mfma":
            if p.w & c.ab:
                n = max(n, big)
            if p.w & c.c and p.w != c.c:
                n = max(n, {4: 6, 8: 10}[p.passes])
            if p.w & c.w and p.w != c.c:
                n = max(n, {4: 6, 8: 10}[p.passes])
        elif c.kind in ("valu", "ds", "vmem"):
            if p.w & (c.r | c.w):
                n = max(n, big)
            if c.kind == "valu" and p.c & c.w:
                n = max(n, {4: 3, 8: 7}[p.passes])
    if p.kind == "vmem" and hasattr(p, "data") and ("x4" in p.mn or "x3" in p.mn):
        if c.kind == "valu" and p.data & c.w:
            n = max(n, 2)
        elif p.data & c.w:
            n = max(n, 1)
    if p.kind == "salu" and ("s", "m0") in p.w and getattr(c, "dma", False):
        n = max(n, 1)
    return n


def check_seq(seq, problems):
    for j, c in enumerate(seq):
        dist = 0
        for i in range(j - 1, max(-1, j - 24), -1):
            p = seq[i]
            k = need(p, c)
            if k > dist:
                problems.add((p.no, c.no, k, dist, p.line, c.line))
            dist += p.slots
            if dist > 20:
                break


def check(text):
    ins, labels = [], {}
    for no, ln in enumerate(text.split("\n"), 1):
        t = ln.split(";")[0].strip()
        if not t or t.startswith("."):
            continue
        if t.endswith(":"):
            labels[t[:-1]] = len(ins)
            continue
        ins.append(I(t, no))
    problems = set()
    seg = []
    for x in ins:
        seg.append(x)
        if x.mn in ("s_endpgm", "s_branch"):
            check_seq(seg, problems)
            seg = []
    check_seq(seg, problems)
    for j, x in enumerate(ins):
        if x.mn.startswith(("s_cbranch", "s_branch")) and x.ops[0] in labels:
            i = labels[x.ops[0]]
            check_seq(ins[max(0, j - 24):j + 1] + ins[i:i + 24], problems)
    return sorted(problems)


if __name__ == "__main__":
    pr = check(open(sys.argv[1]).read())
    for p in pr:
        print(f"line {p[0]} -> {p[1]}: need {p[2]} have {p[3]}\n    {p[4]}\n    {p[5]}")
    print("hazards:", len(pr))


def _wait_counts(line):
    r = {}
    for m in re.finditer(r"(vmcnt|lgkmcnt)\((\d+)\)", line):
        r[m.group(1)] = int(m.group(2))
    return r


def check_counters_seq(seq, problems, lg=None, vm=None):
    lg = list(lg or [])
    vm = list(vm or [])
    for x in seq:
        if x.mn == "s_waitcnt":
            w = _wait_counts(x.line)
            if "lgkmcnt" in w:
                n = w["lgkmcnt"]
                lg = lg[len(lg) - n:] if n else []
                if n and any(k == "smem" for k, _, _ in lg):
                    pass
            if "vmcnt" in w:
                n = w["vmcnt"]
                vm = vm[len(vm) - n:] if n else []
            continue
        touched = vg(x.r | x.w)
        for k, regs_, no in lg:
            if regs_ & touched and not (x.kind == "ds" and x.mn.startswith("ds_read") and not (regs_ & vg(x.r))):
                problems.add((no, x.no, "lgkm", 0, "ds result not waited", x.line))
            if k == "write" and regs_ & vg(x.w) and x.kind != "ds":
                pass
        for regs_, no in vm:
            if regs_ & touched:
                problems.add((no, x.no, "vm", 0, "load result not waited", x.line))
        if x.mn == "s_barrier" and lg:
            problems.add((lg[-1][2], x.no, "bar", 0, "LDS op outstanding at barrier", x.line))
        if x.kind == "ds":
            lg.append(("read" if x.mn.startswith("ds_read") else "write", vg(x.w), x.no))
            if len(lg) > 15:
                lg = lg[-15:]
        elif x.kind == "vmem":
            vm.append((vg(x.w), x.no))
    return lg, vm


def check_counters(text):
    ins, labels = [], {}
    for no, ln in enumerate(text.split("\n"), 1):
        t = ln.split(";")[0].strip()
        if not t or t.startswith("."):
            continue
        if t.endswith(":"):
            labels[t[:-1]] = len(ins)
            continue
        ins.append(I(t, no))
    problems = set()
    seg, start = [], 0
    for j, x in enumerate(ins):
        if x.mn == "s_call_b64" and x.ops[1] in labels:
            k = labels[x.ops[1]]
            while ins[k].mn != "s_setpc_b64":
                seg.append(ins[k])
                k += 1
            continue
        seg.append(x)
        if x.mn.startswith("s_cbranch") and x.ops[0] in labels and start <= labels[x.ops[0]] <= j:
            seg.extend(ins[labels[x.ops[0]]:j + 1])
        if x.mn in ("s_endpgm", "s_branch", "s_setpc_b64"):
            check_counters_seq(seg, problems)
            seg, start = [], j + 1
    check_counters_seq(seg, problems)
    return sorted(problems)
```

```python
import struct
import sys

from asmlib import Asm, v, s, kernel_header, kernel_desc
import hazard

KN = "standalone__gqa_block_cached__near_ridge_kernel"
OFF_O = 0
OFF_P = 16 << 20
OFF_F = 32 << 20
F1, F2, FX = 0, 65536, 131072
OFF_T = 64 << 20
SLOT = 36864
A_K = 3 * SLOT
A_V = 1 * SLOT
A_Q = 2 * SLOT
A_P = 2 * SLOT
A_M = 163840 - 768
A_TAG = A_M - 8
WO0, WOS = 81920, 20480
OS = 12288
PSZ = 30720
CEXP = 0.07216878364870322 * 1.4426950408889634
TAGC = (0x9E3779B9, 0x7F4A7C15)
SPIN_MAX = 1 << 21


def f32bits(x):
    return struct.unpack("<I", struct.pack("<f", x))[0]


class Cfg:
    diag = 0
    only = ""
    rot = 10
    kpos = 9
    dynred = 1
    outfl = 0
    ipf = 1
    tx = 1
    tab = 12
    unsafe = 0
    tlb = 0
    jit = 0
    pfl = 2
    otr = 1
    ntkv = 3
    lprio = 1
    sent = 0
    smx = 2
    vbp = 2
    fin = 2
    qv = 6
    sv = 1
    wper = 5
    odef = 1
    fw = 2
    dot2 = 0
    tpos = 10
    w12 = 0
    w13 = 0
    pst = 0
    pld = 0


S_X, S_K, S_V, S_WQ, S_WO, S_OUT, S_DBG, S_WS = 32, 34, 36, 38, 40, 42, 44, 46
S_B, S_H, S_WAVE, S_G8, S_HH = 28, 29, 30, 31, 48
S_TAG = 60
R_F = 24
S_T = 64


class Stamps:
    def __init__(self, a, cfg):
        self.a, self.on, self.n = a, cfg.diag, 2
        self.fine = cfg.diag > 1
        self.names = ["real0", "cyc0"]
        self.k = 0
        self.only = cfg.only.split(",") if cfg.only else None

    def real(self, name):
        if self.on:
            self.a(f"s_memrealtime {s(S_T + 2 * self.n, 2)}")
            self.names.append(name)
            self.n += 1

    def cyc(self, name, fine=False):
        if self.only and name not in self.only:
            return
        if not self.only and len(name) <= 3 and name[0] in "afB" and name[1:].isdigit() and name != "B0":
            return
        if self.on and (not fine or self.fine or self.only):
            self.a(f"{'s_memrealtime' if self.on > 2 else 's_memtime'} {s(S_T + 2 * self.n, 2)}")
            self.names.append(name)
            self.n += 1

    def alt(self, name, path, fine=False):
        if path == "N":
            return self.cyc(name, fine)
        if not self.on or (self.only and name not in self.only) or (fine and not self.only):
            return
        self.a(f"{'s_memrealtime' if self.on > 2 else 's_memtime'} {s(S_T + 2 * (self.n + self.k), 2)}")
        self.k += 1

    def flush(self, role, vt=4):
        if not self.on:
            return
        a = self.a
        assert self.n <= 19, self.n
        a("s_waitcnt lgkmcnt(0) vmcnt(0)")
        a(f"; STAMPS {role} " + " ".join(self.names))
        a("s_lshl_b32 s3, s2, 3")
        a(f"s_add_u32 s3, s3, {s(S_WAVE)}")
        a("s_lshl_b32 s3, s3, 8")
        a(f"s_add_u32 s3, s3, {OFF_T}")
        a(f"s_add_u32 s4, {s(S_WS)}, s3")
        a(f"s_addc_u32 s5, {s(S_WS + 1)}, 0")
        a("s_mov_b64 exec, 1")
        a(f"v_mov_b32 {v(vt + 2)}, 0")
        for i in range(self.n):
            a(f"v_mov_b32 {v(vt)}, {s(S_T + 2 * i)}")
            a(f"v_mov_b32 {v(vt + 1)}, {s(S_T + 2 * i + 1)}")
            a(f"global_store_dwordx2 {v(vt + 2)}, {v(vt, 2)}, s[4:5] offset:{8 * i}")
            a("s_nop 1")
        a("s_waitcnt vmcnt(0)")


def srd(a, d, base, off_sgpr, size):
    a(f"s_add_u32 {s(d)}, {s(base)}, {off_sgpr}")
    a(f"s_addc_u32 {s(d + 1)}, {s(base + 1)}, 0")
    a(f"s_mov_b32 {s(d + 2)}, {size}")
    a(f"s_mov_b32 {s(d + 3)}, 0x20000")


def dma(a, voff, srd_, soff, base, imm, fl=""):
    a(f"s_add_u32 m0, {base}, {imm}")
    a("s_nop 0")
    a(f"buffer_load_dwordx4 {v(voff)}, {s(srd_, 4)}, {soff} offen {fl} lds")


def mfma(d, a_, b_, c=None):
    cs = v(d, 4) if c is None else str(c)
    return f"v_mfma_f32_16x16x32_bf16 {v(d, 4)}, {v(a_, 4)}, {v(b_, 4)}, {cs}"


def trread(d, addr, off):
    assert 0 <= off < 65536
    return f"ds_read_b64_tr_b16 {v(d, 2)}, {v(addr)} offset:{off}"


def rd128(d, addr, off):
    assert 0 <= off < 65536
    return f"ds_read_b128 {v(d, 4)}, {v(addr)} offset:{off}"


def rd64(d, addr, off):
    assert 0 <= off < 65536
    return f"ds_read_b64 {v(d, 2)}, {v(addr)} offset:{off}"


def cvt(d, t):
    return f"v_cvt_pk_bf16_f32 {v(d)}, {v(t)}, {v(t + 1)}"


def emit(a, lst):
    for x in lst:
        a(x)


def place(main, slots):
    out = list(slots.get(-1, []))
    for i, m in enumerate(main):
        out.append(m)
        out.extend(slots.get(i, []))
    for k in sorted(slots):
        if k >= len(main):
            out.extend(slots[k])
    return out


def spread(fill, start, per=1, step=1, into=None):
    d = into if into is not None else {}
    i, k = start, 0
    while k < len(fill):
        d.setdefault(i, []).extend(fill[k:k + per])
        k += per
        i += step
    return d


def at(d, i, *x):
    d.setdefault(i, []).extend(x)


def lg(n):
    return f"s_waitcnt lgkmcnt({n})"


def jitter(a, cfg, k):
    if not cfg.jit:
        return
    lbl = a.uid("L_jit")
    a(f"s_lshl_b32 s100, s2, 3")
    a(f"s_add_u32 s100, s100, {s(S_WAVE)}") if cfg.jit & 1 else None
    a(f"s_mul_i32 s100, s100, {0x9E3779B1 & 0x7fffffff | 1}")
    a(f"s_add_u32 s100, s100, {(k * 0x632BE5AB + cfg.jit * 0x1234567) & 0x7fffffff}")
    a("s_mul_i32 s100, s100, 0x2545F491")
    a("s_lshr_b32 s101, s100, 29")
    a("s_cmp_lg_u32 s101, 0")
    a(f"s_cbranch_scc1 {lbl}")
    a("s_lshr_b32 s100, s100, 8")
    a("s_and_b32 s100, s100, 31")
    a.label(lbl + "b")
    a("s_sleep 8")
    a("s_sub_u32 s100, s100, 1")
    a("s_cmp_gt_i32 s100, 0")
    a(f"s_cbranch_scc1 {lbl}b")
    a.label(lbl)


def mod_small(a, reg, m, times):
    for _ in range(times):
        a(f"s_sub_u32 s4, {reg}, {m}")
        a(f"s_cmp_ge_u32 {reg}, {m}")
        a(f"s_cselect_b32 {reg}, s4, {reg}")


def tile_addrs(a, dst, first, f, lanepart, tmp, extra=None):
    for c in range(4):
        a(f"s_add_u32 s4, {first}, {c}")
        a("s_and_b32 s5, s4, 3")
        a("s_lshr_b32 s4, s4, 2")
        a("s_lshl_b32 s4, s4, 7")
        a(f"v_xor_b32 {v(tmp)}, s5, {v(f)}")
        a(f"v_lshl_add_u32 {v(tmp)}, {v(tmp)}, 5, {v(lanepart)}")
        a(f"v_add_u32 {v(dst + c)}, s4, {v(tmp)}")


def gen_compute(a, cfg):
    st = Stamps(a, cfg)
    R_O, R_P = 8, 12
    ACC, FR, QP, LS, ONES = 16, 88, 160, 196, 208
    AX, AY, AZ, AVo, AVp = 212, 216, 218, 230, 234
    AQW, AQR, AMW, AMR, APW, APR, APW2, APR2, AO, AOW = range(238, 248)
    AW, AB, AP, AP2, FL2, TG, ZERO = 248, 250, 251, 252, 253, 254, 15
    VM, VG, VF, T0, T1, T2 = 1, 2, 3, 4, 5, 6
    MX = 8
    S_I, S_J, S_C, S_D, S_CNT, S_SL, S_D2, S_SL2 = 50, 51, 52, 54, 55, 56, 57, 18
    S_K0, S_K1, S_F1, S_F2 = 58, 59, 16, 17

    a(f"s_lshr_b32 {s(S_I)}, {s(S_WAVE)}, 1")
    a(f"s_and_b32 {s(S_J)}, {s(S_WAVE)}, 1")
    a(f"s_mov_b32 {s(S_C)}, {f32bits(CEXP):#x}")
    a(f"s_mov_b32 {s(S_C + 1)}, {f32bits(CEXP):#x}")
    a(f"v_and_b32 {v(VM)}, 15, v0")
    a(f"v_lshrrev_b32 {v(VG)}, 4, v0")
    a(f"v_lshrrev_b32 {v(T0)}, 2, {v(VM)}")
    a(f"v_lshl_add_u32 {v(T1)}, {v(VG)}, 3, {v(T0)}")
    a(f"v_mul_u32_u24 {v(T1)}, 384, {v(T1)}")
    a(f"v_and_b32 {v(T2)}, 3, {v(VM)}")
    a(f"v_lshlrev_b32 v11, 3, {v(T2)}")
    a(f"v_add_u32 {v(T1)}, v11, {v(T1)}")
    a(f"v_and_b32 {v(T2)}, 1, {v(VG)}")
    a(f"v_lshrrev_b32 {v(VF)}, 3, {v(VM)}")
    a(f"v_lshl_or_b32 {v(VF)}, {v(T2)}, 1, {v(VF)}")
    a(f"s_mul_i32 s3, {s(S_I)}, 6")
    tile_addrs(a, AX, "s3", VF, T1, T2)
    a(f"s_mul_i32 s4, {s(S_J)}, 48")
    a(f"v_add_u32 {v(T1)}, s4, {v(VM)}")
    a(f"v_lshlrev_b32 {v(T1)}, 7, {v(T1)}")
    a(f"v_add_u32 {v(T1)}, 24576, {v(T1)}")
    a(f"v_lshrrev_b32 {v(VF)}, 1, {v(VM)}")
    for ks in range(2):
        a(f"v_add_u32 {v(T2)}, {4 * ks}, {v(VG)}")
        a(f"v_xor_b32 {v(T2)}, {v(T2)}, {v(VF)}")
        a(f"v_lshl_add_u32 {v(AY + ks)}, {v(T2)}, 4, {v(T1)}")
    for i in range(72):
        a(f"v_mov_b32 {v(ACC + i)}, 0")
    a(f"s_mul_i32 s4, {s(S_I)}, 48")
    a(f"v_add_u32 {v(T1)}, s4, {v(VM)}")
    a(f"v_mul_u32_u24 {v(T1)}, 384, {v(T1)}")
    a(f"v_and_b32 {v(T2)}, 1, {v(VG)}")
    a(f"v_lshl_add_u32 {v(T1)}, {v(T2)}, 3, {v(T1)}")
    a(f"v_add_u32 {v(T1)}, {A_K}, {v(T1)}")
    a(f"v_lshrrev_b32 {v(T0)}, 1, {v(VG)}")
    a(f"v_xor_b32 {v(T0)}, {v(T0)}, {v(VF)}")
    a(f"v_lshl_add_u32 {v(T1)}, {v(T0)}, 4, {v(T1)}")
    a(f"s_mul_i32 s7, {s(S_I)}, 3")
    for ls in range(6):
        a(f"s_add_u32 s6, s7, {ls}")
        mod_small(a, "s6", 6, 1)
        a("s_and_b32 s5, s6, 1")
        a("s_lshl_b32 s5, s5, 6")
        a("s_lshr_b32 s6, s6, 1")
        a("s_lshl_b32 s6, s6, 7")
        a(f"v_add_u32 {v(T2)}, s6, {v(T1)}")
        a(f"v_xor_b32 {v(AZ + 2 * ls)}, s5, {v(T2)}")
        a(f"v_xor_b32 {v(AZ + 2 * ls + 1)}, 32, {v(AZ + 2 * ls)}")
    a(f"v_lshrrev_b32 {v(T0)}, 2, {v(VM)}")
    a(f"v_lshl_add_u32 {v(T0)}, {v(VG)}, 2, {v(T0)}")
    a(f"v_bfe_u32 {v(VF)}, {v(T0)}, 1, 2")
    a(f"v_mul_u32_u24 {v(T1)}, 384, {v(T0)}")
    a(f"v_add_u32 {v(T1)}, v11, {v(T1)}")
    a(f"s_mul_i32 s6, {s(S_I)}, 18432")
    a(f"s_add_u32 s7, s6, {A_V}")
    a(f"v_add_u32 {v(T1)}, s7, {v(T1)}")
    a(f"s_mul_i32 s3, {s(S_I)}, 6")
    tile_addrs(a, AVo, "s3", VF, T1, T2)
    a("s_lshl_b32 s6, s6, 1")
    a("s_sub_u32 s6, 18432, s6")
    for c in range(4):
        a(f"v_add_u32 {v(AVp + c)}, s6, {v(AVo + c)}")
    a(f"v_mul_u32_u24 {v(T1)}, 320, {v(T0)}")
    a(f"v_add_u32 {v(T1)}, v11, {v(T1)}")
    a(f"v_add_u32 {v(T1)}, {WO0 + WOS}, {v(T1)}")
    a(f"v_and_b32 {v(T0)}, 1, {v(VG)}")
    a(f"s_mul_i32 s3, {s(S_I)}, 5")
    for par in range(2):
        a(f"s_add_u32 s4, s3, {par}")
        a(f"v_xor_b32 {v(T2)}, s4, {v(T0)}")
        a(f"v_lshl_add_u32 {v(AW + par)}, {v(T2)}, 5, {v(T1)}")
    a(f"s_xor_b32 s5, {s(S_WAVE)}, 2")
    a(f"v_lshlrev_b32 {v(T1)}, 4, v0")
    a(f"v_lshlrev_b32 {v(T0)}, 3, v0")
    a(f"v_lshlrev_b32 {v(T2)}, 2, {v(VM)}")
    for wv, (q_, p_, p2, m_) in ((s(S_WAVE), (AQW, APW, APW2, AMW)), ("s5", (AQR, APR, APR2, AMR))):
        a(f"s_mul_i32 s3, {wv}, 9216")
        a(f"s_add_u32 s3, s3, {A_Q}")
        a(f"v_add_u32 {v(q_)}, s3, {v(T1)}")
        a(f"s_mul_i32 s3, {wv}, 4608")
        a(f"s_add_u32 s3, s3, {A_P}")
        a(f"v_add_u32 {v(p_)}, s3, {v(T1)}")
        a(f"v_add_u32 {v(p2)}, s3, {v(T0)}")
        a(f"s_mul_i32 s3, {wv}, 192")
        a(f"s_add_u32 s3, s3, {A_M}")
        a(f"v_add_u32 {v(m_)}, s3, {v(T2)}")
    a(f"s_mul_i32 s3, {s(S_I)}, 18")
    a(f"s_mul_i32 s4, {s(S_J)}, 3")
    a("s_add_u32 s3, s3, s4")
    a("s_lshl_b32 s3, s3, 10")
    a(f"v_add_u32 {v(AO)}, s3, {v(T1)}")
    a(f"s_mul_i32 s3, {s(S_J)}, 3072")
    a(f"v_add_u32 {v(AB)}, s3, {v(T1)}")
    a(f"v_lshrrev_b32 v12, 2, {v(VM)}")
    a(f"v_lshl_add_u32 v12, v12, 2, {v(VG)}")
    a(f"v_and_b32 v13, 3, {v(VM)}")
    a("v_lshl_add_u32 v12, v12, 2, v13")
    a(f"s_mul_i32 s3, {s(S_WAVE)}, 7680")
    a(f"v_lshl_add_u32 {v(AP)}, v12, 4, s3")
    a("s_add_u32 s3, s3, 2048")
    a(f"v_lshl_add_u32 {v(AP2)}, v12, 3, s3")
    a(f"v_mov_b32 {v(AOW)}, {A_TAG}")
    for i in range(4):
        a(f"v_mov_b32 {v(ONES + i)}, 0x3f803f80")
    a(f"s_lshl_b32 s3, {s(S_B)}, 5")
    a(f"s_add_u32 s3, s3, {s(S_H)}")
    a(f"s_lshl_b32 s4, {s(S_HH)}, 2")
    a(f"s_add_u32 s4, s4, {s(S_WAVE)}")
    a("s_lshl_b32 s4, s4, 3")
    a("s_andn2_b32 s5, s3, 3")
    a(f"s_lshl_b32 s5, s5, {7 if cfg.pfl & 1 else 5}")
    a(f"s_add_u32 {s(S_F1)}, s4, s5")
    a(f"s_lshl_b32 s6, {s(S_I)}, 3")
    a(f"s_add_u32 s6, s6, {s(S_G8)}")
    a("s_lshl_b32 s6, s6, 3")
    if cfg.pfl & 2:
        a(f"s_lshl_b32 s5, {s(S_B)}, 5")
        a(f"s_lshl_b32 s4, {s(S_J)}, 4")
        a("s_add_u32 s5, s5, s4")
        a(f"s_add_u32 s5, s5, {s(S_HH)}")
    else:
        a(f"s_lshl_b32 s5, {s(S_B)}, 2")
        a(f"s_add_u32 s5, s5, {s(S_HH)}")
        a("s_lshl_b32 s5, s5, 1")
        a(f"s_add_u32 s5, s5, {s(S_J)}")
    a("s_lshl_b32 s5, s5, 7")
    a("s_add_u32 s6, s6, s5")
    a(f"s_add_u32 {s(S_F2)}, s6, {F2}")
    a(f"v_lshlrev_b32 {v(ZERO)}, 7, v0")
    a(f"v_lshlrev_b32 {v(FL2)}, 9, v0")
    a(f"s_lshl_b32 s4, {s(S_B)}, 2")
    a(f"s_add_u32 s4, s4, {s(S_HH)}")
    a("s_lshl_b32 s4, s4, 3")
    a(f"s_add_u32 s4, s4, {s(S_G8)}")
    a(f"s_mul_i32 s4, s4, {PSZ}")
    a(f"s_add_u32 s4, s4, {OFF_P}")
    a("s_mul_i32 s3, s3, 36864")
    a("s_waitcnt lgkmcnt(0)")
    srd(a, R_O, S_WS, "s3", 36864)
    srd(a, R_P, S_WS, "s4", PSZ)
    srd(a, R_F, S_WS, f"{OFF_F}", 262144)
    if cfg.tlb:
        a("s_mov_b64 exec, 1")
        a(f"buffer_load_dword v14, {v(AO)}, {s(R_O, 4)}, 0 offen sc1")
        a(f"buffer_load_dword v14, {v(AP)}, {s(R_P, 4)}, 0 offen sc1")
        a("s_mov_b32 s3, 200000")
        a(f"buffer_load_dword v14, {v(AP)}, {s(R_F, 4)}, s3 offen sc1")
        if cfg.tlb > 1:
            a(f"s_mul_i32 s3, {s(S_B)}, 122880")
            srd(a, 20, S_OUT, "s3", 122880)
            a(f"buffer_load_dword v14, {v(AP)}, s[20:23], 0 offen sc1")
            a(f"s_lshl_b32 s3, {s(S_B)}, 5")
            a(f"s_add_u32 s3, s3, {s(S_H)}")
            a("s_mul_i32 s3, s3, 36864")
            srd(a, 20, S_V, "s3", 36864)
            a(f"buffer_load_dword v14, {v(AP)}, s[20:23], 0 offen sc1")
            srd(a, 20, S_K, "s3", 36864)
            a(f"buffer_load_dword v14, {v(AP)}, s[20:23], 0 offen sc1")
            a(f"s_mul_i32 s3, {s(S_G8)}, 983040")
            srd(a, 20, S_WO, "s3", 983040)
            a(f"buffer_load_dword v14, {v(AP)}, s[20:23], 0 offen sc1")
        a("s_mov_b64 exec, -1")

    def fa(n, dt):
        return FR + 36 * n + 4 * dt

    def fb(n, qt):
        return FR + 36 * n + 24 + 4 * qt

    def p1_reads(n, ks):
        def A(dt):
            return [trread(fa(n, dt) + 2 * hh, AX + dt % 4, 384 * (32 * ks + 4 * hh) + 128 * (dt // 4)) for hh in range(2)]

        def B(qt):
            return [rd128(fb(n, qt), AY + ks, 2048 * qt)]
        r = B(0) + A(0) + B(1) + B(2)
        for dt in range(1, 6):
            r += A(dt)
        return r

    def qtile(dt, qt):
        return ACC + 4 * (3 * dt + qt)

    def p1_mfmas(n):
        return [mfma(qtile(dt, qt), fa(n, dt), fb(n, qt)) for dt in range(6) for qt in range(3)]

    adv = [f"v_add_u32 {v(AX + c)}, {s(S_D)}, {v(AX + c)}" for c in range(4)] + \
          [f"v_add_u32 {v(AY + c)}, {s(S_D)}, {v(AY + c)}" for c in range(2)]
    a(f"s_mov_b32 {s(S_SL)}, 0")
    a(f"s_mov_b32 {s(S_CNT)}, 0")
    a(f"s_mov_b32 {s(S_K0)}, {(-2 * SLOT) & 0xffffffff:#x}")
    a(f"s_mov_b32 {s(S_K1)}, {SLOT}")
    st.cyc("setup")
    a("s_barrier")
    st.cyc("b0")
    emit(a, p1_reads(0, 0))
    a(lg(0))
    a.label("L_p1")
    sl = spread(p1_reads(1, 1), 0, 1)
    at(sl, 0, f"s_add_u32 {s(S_SL)}, {s(S_SL)}, 1")
    at(sl, 1, f"s_cmp_eq_u32 {s(S_SL)}, 3")
    at(sl, 2, f"s_cselect_b32 {s(S_D)}, {s(S_K0)}, {s(S_K1)}")
    at(sl, 3, f"s_cselect_b32 {s(S_SL)}, 0, {s(S_SL)}")
    spread(adv, 15, 2, into=sl)
    emit(a, place(p1_mfmas(0), sl))
    a(lg(0))
    a("s_barrier")
    sl = spread(p1_reads(0, 0), 0, 1)
    at(sl, 15, f"s_add_u32 {s(S_CNT)}, {s(S_CNT)}, 1")
    at(sl, 16, f"s_cmp_lt_u32 {s(S_CNT)}, 9")
    emit(a, place(p1_mfmas(1), sl))
    a(lg(0))
    a("s_cbranch_scc1 L_p1")
    emit(a, place(p1_mfmas(0), spread(p1_reads(1, 1), 0, 1)))
    if cfg.ipf & 2:
        a("global_load_dword v14, v7, s[62:63]")
    a(lg(0))
    a("s_barrier")
    jitter(a, cfg, 1)
    st.cyc("b10")
    a.c("SEG q")

    def kf(buf, a_):
        return FR + 12 * buf + 4 * a_

    def k_reads(ls, buf):
        return [rd64(kf(buf, a_) + 2 * hh, AZ + 2 * ls + hh, 6144 * a_) for a_ in range(3) for hh in range(2)]

    def qpack(ls):
        r = []
        for qt in range(3):
            for dt in (2 * ls, 2 * ls + 1):
                d = QP + 4 * (3 * ls + qt) + 2 * (dt % 2)
                r += [cvt(d, qtile(dt, qt)), cvt(d + 1, qtile(dt, qt) + 2)]
        return r

    def qwrite(f):
        return f"ds_write_b128 {v(AQW)}, {v(QP + 4 * f, 4)} offset:{1024 * f}"

    def stile(a_, qt):
        return ACC + 4 * (3 * a_ + qt)

    def s_mfmas(qbase, ls3, buf, first=False, qmajor=False):
        idx = [(a_, qt) for qt in range(3) for a_ in range(3)] if qmajor else [(a_, qt) for a_ in range(3) for qt in range(3)]
        return [mfma(stile(a_, qt), kf(buf, a_), qbase + 4 * (3 * ls3 + qt), 0 if first else None) for a_, qt in idx]

    q0, q1, q2 = qpack(0), qpack(1), qpack(2)
    if cfg.qv == 0:
        sl = spread(k_reads(0, 0) + k_reads(1, 1) + k_reads(2, 2), 0, 2, into={})
        spread(q0, 9, 2, into=sl)
        at(sl, 11, qwrite(0))
        at(sl, 14, qwrite(1))
        spread(q1[:4], 15, 2, into=sl)
        at(sl, 17, qwrite(2))
        emit(a, place(p1_mfmas(1), sl))
        emit(a, q1[4:8] + [qwrite(3)] + q1[8:])
        a(lg(4))
        sl = {}
        at(sl, 0, qwrite(4))
        spread(q2, 1, 2, into=sl)
        at(sl, 3, qwrite(5))
        at(sl, 7, qwrite(6))
        at(sl, 10, qwrite(7))
        at(sl, 13, qwrite(8))
        spread(k_reads(3, 0), 14, 2, into=sl)
        emit(a, place(s_mfmas(QP, 0, 0, True) + s_mfmas(QP, 1, 1), sl))
    else:
        order = [(dt, qt) for ls in range(3) for qt in range(3) for dt in (2 * ls, 2 * ls + 1)]
        mm = [mfma(qtile(dt, qt), fa(1, dt), fb(1, qt)) for dt, qt in order]
        mm += s_mfmas(QP, 0, 0, True) + s_mfmas(QP, 1, 1)
        packs = q0 + q1 + q2
        sl = {}
        if cfg.qv == 1:
            spread(k_reads(0, 0)[:5], 0, 1, into=sl)
            for f in range(9):
                g0 = 5 + 2 * f + (f >= 6) * 2
                spread(packs[4 * f:4 * f + 4], g0, 2, into=sl)
            wr = [7, 10, 13, 16, 19, 22, 25, 28, 31]
            for f in range(9):
                at(sl, wr[f], qwrite(f))
            at(sl, 8, k_reads(0, 0)[5])
            for k, g_ in enumerate([9, 11, 12, 14, 15, 17]):
                at(sl, g_, k_reads(1, 1)[k])
            at(sl, 17, lg(7))
            at(sl, 26, lg(3))
            spread(k_reads(2, 2), 27, 1, into=sl)
            spread(k_reads(3, 0), 29, 1, into=sl)
        elif cfg.qv == 2:
            spread(k_reads(0, 0) + k_reads(1, 1)[:4], 0, 2, into=sl)
            for f in range(9):
                g0 = 5 + 2 * f + (f >= 6) * 2
                spread(packs[4 * f:4 * f + 4], g0, 2, into=sl)
            wr = [7, 10, 13, 16, 19, 22, 25, 28, 31]
            for f in range(9):
                at(sl, wr[f], qwrite(f))
            at(sl, 8, k_reads(1, 1)[4])
            at(sl, 9, k_reads(1, 1)[5])
            at(sl, 17, lg(3))
            spread(k_reads(2, 2), 26, 1, into=sl)
            spread(k_reads(3, 0), 29, 1, into=sl)
        elif cfg.qv in (3, 4):
            kr = k_reads(0, 0) + k_reads(1, 1) + k_reads(2, 2)
            spread(kr[:5], 0, 1, into=sl)
            rest = kr[5:]
            for f in range(9):
                g0 = 5 + 3 * f
                c4 = packs[4 * f:4 * f + 4]
                if cfg.qv == 3:
                    at(sl, g0, rest.pop(0), c4[0], c4[1])
                    at(sl, g0 + 1, c4[2], c4[3])
                else:
                    at(sl, g0, rest.pop(0), c4[0])
                    at(sl, g0 + 1, c4[1], c4[2], c4[3])
                at(sl, g0 + 2, qwrite(f))
            spread(rest, 32, 1, into=sl)
            sl[17].append(lg(8))
            sl[26].append(lg(2))
        elif cfg.qv in (5, 6, 7):
            kr = k_reads(0, 0) + k_reads(1, 1) + k_reads(2, 2)
            spread(kr[:4], 0, 1, into=sl)
            rest = kr[4:]
            start = 4 if cfg.qv == 7 else 5
            for f in range(9):
                g0 = start + 3 * f
                c4 = packs[4 * f:4 * f + 4]
                at(sl, g0, *(rest[:1]), c4[0], c4[1])
                at(sl, g0 + 1, *(rest[1:2]), c4[2], c4[3])
                rest = rest[2:]
                if cfg.qv == 6:
                    d = QP + 4 * f
                    at(sl, g0 + 2, f"ds_write_b64 {v(AQW)}, {v(d, 2)} offset:{1024 * f}",
                       f"ds_write_b64 {v(AQW)}, {v(d + 2, 2)} offset:{1024 * f + 8}")
                else:
                    at(sl, g0 + 2, qwrite(f))
            sl[17].append(lg(4))
            sl[26].append(lg(2))
        emit(a, place(mm, sl))
    st.cyc("a3", True)
    a(lg(0))
    a("s_barrier")
    st.cyc("b11")
    a.c("SEG s")
    QR = FR + 36
    rds = [rd128(QR + 4 * f, AQR, 1024 * f) for f in range(9)]
    if cfg.sv == 0:
        sl = spread(rds[:6], -1, 1)
        spread(k_reads(4, 1), 5, 2, into=sl)
        at(sl, 8, lg(9))
        emit(a, place(s_mfmas(QP, 2, 2), sl))
        st.cyc("a4", True)
        sl = spread(rds[6:], 0, 1)
        spread(k_reads(5, 2), 3, 1, into=sl)
        at(sl, 8, lg(9))
        emit(a, place(s_mfmas(QR, 0, 0), sl))
        emit(a, s_mfmas(QR, 1, 1))
        a(lg(0))
    else:
        sl = spread(rds[:3], -1, 1)
        spread(k_reads(3, 0), 2, 2, into=sl)
        spread(rds[3:6], 5, 1, into=sl)
        at(sl, 8, lg(3))
        spread(k_reads(4, 1), 8, 2, into=sl)
        spread(rds[6:], 11, 1, into=sl)
        spread(k_reads(5, 2), 14, 2, into=sl)
        at(sl, 17, lg(9))
        emit(a, place(s_mfmas(QP, 2, 2) + s_mfmas(QR, 0, 0), sl))

    def xs(qt):
        return [stile(a_, qt) + r for a_ in range(3) for r in range(4)]

    def maxchain(qt):
        x = xs(qt)
        r = [f"v_max3_f32 {v(MX + qt)}, {v(x[0])}, {v(x[1])}, {v(x[2])}"]
        for k in range(3, 11, 2):
            r.append(f"v_max3_f32 {v(MX + qt)}, {v(MX + qt)}, {v(x[k])}, {v(x[k + 1])}")
        r.append(f"v_max_f32 {v(MX + qt)}, {v(MX + qt)}, {v(x[11])}")
        return r
    m0, m1, m2 = maxchain(0), maxchain(1), maxchain(2)
    if cfg.sv == 0:
        emit(a, s_mfmas(QR, 2, 2, qmajor=True))
        st.cyc("sdone", True)
        a("s_nop 0")
        emit(a, m0 + m1 + m2)
    else:
        s4, s5 = s_mfmas(QR, 1, 1, qmajor=True), s_mfmas(QR, 2, 2, qmajor=True)
        mm = sum([s4[3 * qt:3 * qt + 3] + s5[3 * qt:3 * qt + 3] for qt in range(3)], [])
        sl = {}
        at(sl, 2, lg(0))
        spread(m0, 11, 2, into=sl)
        spread(m1[:2], 17, 2, into=sl)
        emit(a, place(mm, sl))
        st.cyc("sdone", True)
        emit(a, m1[2:] + ["s_nop 1"] + m2)
    for op in ("v_permlane16_swap_b32", "v_permlane32_swap_b32"):
        for qt in range(3):
            a(f"v_mov_b32 {v(MX + 3 + qt)}, {v(MX + qt)}")
        for qt in range(3):
            a(f"{op} {v(MX + 3 + qt)}, {v(MX + qt)}")
        for qt in range(3):
            a(f"v_max_f32 {v(MX + qt)}, {v(MX + qt)}, {v(MX + 3 + qt)}")
    for qt in range(3):
        a(f"ds_write_b32 {v(AMW)}, {v(MX + qt)} offset:{64 * qt}")
    st.cyc("a6", True)
    a(lg(0))
    a("s_barrier")
    st.cyc("b12")
    a.c("SEG sm")

    PP, PC = FR, FR + 24
    VQ = [[QP + 4 * dt for dt in range(6)], [FR + 36 + 4 * dt for dt in range(6)], [148, 152, 156, 184, 188, 192]]

    def v_reads(step):
        r = []
        for dt in range(6):
            for hh in range(2):
                if step == 0:
                    ad, tile = AVo, hh
                elif step == 1:
                    ad, tile = (AVo, 2) if hh == 0 else (AVp, 2)
                else:
                    ad, tile = AVp, hh
                r.append(trread(VQ[step][dt] + 2 * hh, ad + dt % 4, 6144 * tile + 128 * (dt // 4)))
        return r
    NM = 2
    for qt in range(3):
        a(f"ds_read_b32 {v(MX + 3 + qt)}, {v(AMR)} offset:{64 * qt}")
    emit(a, v_reads(0))
    if cfg.vbp == 2:
        emit(a, v_reads(1))
    a((lg(15) if cfg.vbp == 2 else lg(12)) if not st.on else lg(0))
    a(f"ds_read_b64 {v(TG, 2)}, {v(AOW)}")
    for qt in range(3):
        a(f"v_max_f32 {v(MX + qt)}, {v(MX + qt)}, {v(MX + 3 + qt)}")
    for qt in range(3):
        a(f"v_mul_f32 {v(NM + 2 * qt)}, {s(S_C)}, {v(MX + qt)}")
    for qt in range(3):
        a(f"v_mov_b32 {v(NM + 2 * qt + 1)}, {v(NM + 2 * qt)}")

    def softmax(qt):
        x = xs(qt)
        e = [f"v_exp_f32 {v(y)}, {v(y)}" for y in x]
        c = [cvt(PP + 8 * qt + k, x[2 * k]) for k in range(6)]
        if cfg.smx == 0 or (cfg.smx == 2 and qt == 0):
            f = [[f"v_pk_fma_f32 {v(x[2 * k], 2)}, {v(x[2 * k], 2)}, {s(S_C, 2)}, {v(NM + 2 * qt, 2)} neg_lo:[0,0,1] neg_hi:[0,0,1]"] for k in range(6)]
        else:
            f = [[f"v_fma_f32 {v(y)}, {v(y)}, {s(S_C)}, -{v(NM + 2 * qt)}" for y in x[2 * k:2 * k + 2]] for k in range(6)]
        r = f[0] + f[1]
        for k in range(6):
            nx = f[k + 2] if k + 2 < 6 else []
            r += [e[2 * k]] + nx[:1] + [e[2 * k + 1]] + nx[1:]
            if k >= 1:
                r.append(c[k - 1])
        r += ["s_nop 0", c[5]]
        return r

    def pwrite(qt):
        return [f"ds_write_b128 {v(APW)}, {v(PP + 8 * qt, 4)} offset:{1536 * qt}",
                f"ds_write_b64 {v(APW2)}, {v(PP + 8 * qt + 4, 2)} offset:{1536 * qt + 1024}"]
    OT = {}
    free = [ACC + 36 + 4 * k for k in range(9)]
    for qt in range(3):
        regs = free[3 * qt:3 * qt + 3] + [stile(a_, qt) for a_ in range(3)]
        for dt in range(6):
            OT[(dt, qt)] = regs[dt]
    pf = [lambda qt: PP + 8 * qt, lambda qt: PP + 8 * qt + 4, lambda qt: PC + 4 * qt]

    def pv(step, qt):
        first = step == 0
        r = [mfma(OT[(dt, qt)], VQ[step][dt], pf[step](qt), 0 if first else None) for dt in range(6)]
        sm = [mfma(LS + 4 * qt, ONES, pf[step](qt), 0 if first else None)]
        return sm + r if step == 2 else r + sm

    def weave(vals, mm, first=3, per=3):
        out, k = [], 0
        for i, m in enumerate(mm):
            n = first if i == 0 else per
            out += vals[k:k + n]
            k += n
            out.append(m)
        return out + vals[k:]
    st.cyc("a7", True)
    vb = v_reads(1) if cfg.vbp == 0 else []
    s0 = softmax(0)
    out = []
    for k, x in enumerate(s0):
        out.append(x)
        if k % 2 == 1 and vb:
            out.append(vb.pop(0))
    emit(a, out + vb)
    emit(a, pwrite(0))
    a(lg(14) if cfg.vbp == 0 else lg(2))
    st.cyc("a8", True)
    emit(a, weave(softmax(1), pv(0, 0), per=cfg.wper))
    emit(a, pwrite(1))
    st.cyc("a9", True)
    emit(a, weave(softmax(2), pv(0, 1), per=cfg.wper))
    emit(a, pwrite(2))
    st.cyc("a10", True)
    a(lg(0))
    a("s_barrier")
    jitter(a, cfg, 2)
    st.cyc("b13")
    a.c("SEG pv")
    prd = [rd64(PP + 8 * qt + 6, APR2, 1536 * qt + 1024) for qt in range(3)]
    prc = [rd128(PC + 4 * qt, APR, 1536 * qt) for qt in range(3)]
    vc = v_reads(2)
    if cfg.vbp in (0, 2):
        sl = spread(prd + prc + vc[:2], -1, 1)
        at(sl, 6, lg(5))
        emit(a, place(pv(0, 2), sl))
        sl = spread(vc[2:], 0, 1)
        at(sl, 13, lg(0))
        emit(a, place(pv(1, 0) + pv(1, 1), sl))
    else:
        emit(a, place(pv(0, 2), spread(prd + v_reads(1), -1, 2)))
        a(lg(0))
        sl = spread(prc + vc[:11], 0, 1)
        at(sl, 13, vc[11], lg(0))
        emit(a, place(pv(1, 0) + pv(1, 1), sl))
    st.cyc("pvB", True)
    OPQ = [160, 164, 168, 172, 176, 180, 212, 216, 220]

    def finish(qt):
        r = [f"v_rcp_f32 {v(MX + 2 * qt)}, {v(LS + 4 * qt)}", "s_nop 0",
             f"v_mov_b32 {v(MX + 2 * qt + 1)}, {v(MX + 2 * qt)}"]
        for ls in range(3):
            d = OPQ[3 * ls + qt]
            for half in range(2):
                t = OT[(2 * ls + half, qt)]
                if cfg.fin == 0 or (cfg.fin == 2 and qt == 2):
                    r.append(f"v_pk_mul_f32 {v(t, 2)}, {v(t, 2)}, {v(MX + 2 * qt, 2)}")
                    r.append(f"v_pk_mul_f32 {v(t + 2, 2)}, {v(t + 2, 2)}, {v(MX + 2 * qt, 2)}")
                else:
                    r += [f"v_mul_f32 {v(t + k)}, {v(MX + 2 * qt)}, {v(t + k)}" for k in range(4)]
            for half in range(2):
                t = OT[(2 * ls + half, qt)]
                r += [cvt(d + 2 * half, t), cvt(d + 2 * half + 1, t + 2)]
            off = (ls * 6 + qt) * 1024
            r.append(f"s_mov_b32 s3, {off}")
            r.append(f"buffer_store_dwordx4 {v(d, 4)}, {v(AO)}, {s(R_O, 4)}, s3 offen {'' if cfg.unsafe in (1, 2) else 'sc1'}")
            if not cfg.odef:
                r.append(f"ds_write_b128 {v(AO)}, {v(d, 4)} offset:{off}")
        return r

    def gaps(f, per):
        out, cur = [], []
        for x in f:
            if x.startswith("s_mov"):
                if cur:
                    out.append(cur)
                cur = [x]
            elif x.startswith(("buffer_", "ds_")):
                out.append(cur + [x])
                cur = []
            else:
                cur.append(x)
                if len(cur) == per:
                    out.append(cur)
                    cur = []
        return out + ([cur] if cur else [])

    def weave2(mm, f, skip, per):
        g = gaps(f, per)
        out = []
        for i, m in enumerate(mm):
            out.append(m)
            if i >= skip and g:
                out += g.pop(0)
        return out + sum(g, [])
    emit(a, pv(2, 0))
    f0, f1, f2 = finish(0), finish(1), finish(2)
    mm = pv(1, 2) + pv(2, 1)
    if cfg.fw == 0:
        emit(a, [mm[0]] + weave(["s_nop 0"] + f0, mm[1:], first=1, per=2))
    else:
        emit(a, weave2(mm, f0, 1, cfg.fw))
    st.cyc("f0", True)
    mm = pv(2, 2)
    if cfg.fw == 0:
        emit(a, [mm[0], mm[1]] + weave(f1, mm[2:], first=0, per=2))
    else:
        emit(a, weave2(mm, f1, 0, cfg.fw))
    st.cyc("f1", True)
    emit(a, f2)
    a.c("SEG end")
    st.cyc("ostore")
    a(lg(0))
    a("s_barrier")

    A4 = ACC
    if cfg.odef:
        for qt in range(3):
            for ls in range(3):
                a(f"ds_write_b128 {v(AO)}, {v(OPQ[3 * ls + qt], 4)} offset:{(ls * 6 + qt) * 1024}")
    for i in range(60):
        a(f"v_mov_b32 {v(A4 + i)}, 0")
    a(f"s_mov_b32 {s(S_K0)}, {(-3 * WOS) & 0xffffffff:#x}")
    a(f"s_mov_b32 {s(S_K1)}, {WOS}")
    a(f"s_mov_b32 s6, {(-5 * OS) & 0xffffffff:#x}")
    a(f"s_mov_b32 s7, {OS}")
    a(f"s_mov_b32 {s(S_SL)}, 1")
    a(f"s_mov_b32 {s(S_SL2)}, 0")
    a(f"s_mov_b32 {s(S_CNT)}, 0")
    a("s_waitcnt vmcnt(0)")
    a(f"s_mov_b64 exec, {15 if cfg.pfl & 1 else 1}")
    a(f"buffer_store_dwordx2 {v(TG, 2)}, {v(ZERO)}, {s(R_F, 4)}, {s(S_F1)} offen {'' if cfg.unsafe in (1, 2) else 'sc1'}")
    a("s_mov_b64 exec, -1")
    jitter(a, cfg, 3)
    st.cyc("flag1")

    def ga(n, tt):
        return FR + 32 * n + 4 * tt

    def gb(n, qt):
        return FR + 32 * n + 20 + 4 * qt

    def p4_reads(n, ks):
        def A(tt):
            return [trread(ga(n, tt) + 2 * hh, AW + tt % 2, 320 * (32 * ks + 16 * hh) + 64 * (tt // 2)) for hh in range(2)]

        def B(qt):
            return [rd128(gb(n, qt), AB, 6144 * ks + 1024 * qt)]
        r = B(0) + A(0) + B(1) + B(2)
        for tt in range(1, 5):
            r += A(tt)
        return r

    def p4_mfmas(n):
        return [mfma(A4 + 4 * (3 * tt + qt), ga(n, tt), gb(n, qt)) for tt in range(5) for qt in range(3)]
    adv4 = [f"v_add_u32 {v(AW + c)}, {s(S_D)}, {v(AW + c)}" for c in range(2)] + [f"v_add_u32 {v(AB)}, {s(S_D2)}, {v(AB)}"]
    a(lg(0))
    a("s_barrier")
    st.cyc("B0")
    emit(a, p4_reads(0, 0))
    a(lg(0))
    a.label("L_p4")
    sl = spread(p4_reads(1, 1), 0, 1)
    sc = [f"s_add_u32 {s(S_SL)}, {s(S_SL)}, 1", f"s_cmp_eq_u32 {s(S_SL)}, 4",
          f"s_cselect_b32 {s(S_D)}, {s(S_K0)}, {s(S_K1)}", f"s_cselect_b32 {s(S_SL)}, 0, {s(S_SL)}",
          f"s_add_u32 {s(S_SL2)}, {s(S_SL2)}, 1", f"s_cmp_eq_u32 {s(S_SL2)}, 6",
          f"s_cselect_b32 {s(S_D2)}, s6, s7", f"s_cselect_b32 {s(S_SL2)}, 0, {s(S_SL2)}"]
    spread(sc, 0, 1, into=sl)
    spread(adv4, 13, 2, into=sl)
    at(sl, 12, f"s_cmp_eq_u32 {s(S_CNT)}, 2")
    emit(a, place(p4_mfmas(0), sl))
    a(lg(0))
    a("s_cbranch_scc0 L_p4bar")
    st.cyc("own")
    a("s_barrier")
    a.label("L_p4bar")
    a("s_barrier")
    sl = spread(p4_reads(0, 0), 0, 1)
    at(sl, 12, f"s_add_u32 {s(S_CNT)}, {s(S_CNT)}, 1")
    at(sl, 13, f"s_cmp_lt_u32 {s(S_CNT)}, 11")
    emit(a, place(p4_mfmas(1), sl))
    a(lg(0))
    a("s_cbranch_scc1 L_p4")
    jitter(a, cfg, 5)
    st.cyc("p4loop")
    emit(a, place(p4_mfmas(0), spread(p4_reads(1, 1), 0, 1)))
    a(lg(0))
    PK = QP

    def tile(tt, qt):
        return A4 + 4 * (3 * tt + qt)
    ep = []
    for pb in range(2):
        for qt in range(3):
            d = PK + 4 * (3 * pb + qt)
            t0, t1 = tile(2 * pb, qt), tile(2 * pb + 1, qt)
            ep.append([cvt(d, t0), cvt(d + 1, t0 + 2), cvt(d + 2, t1), cvt(d + 3, t1 + 2),
                       f"s_mov_b32 s3, {2560 * qt + 1024 * pb}",
                       f"buffer_store_dwordx4 {v(d, 4)}, {v(AP)}, {s(R_P, 4)}, s3 offen sc1"])
    for qt in range(3):
        d = PK + 24 + 2 * qt
        ep.append([cvt(d, tile(4, qt)), cvt(d + 1, tile(4, qt) + 2), f"s_mov_b32 s3, {2560 * qt}",
                   f"buffer_store_dwordx2 {v(d, 2)}, {v(AP2)}, {s(R_P, 4)}, s3 offen sc1"])
    flat = sum(ep, [])
    emit(a, place(p4_mfmas(1), spread(flat[:12], 9, 2)))
    emit(a, flat[12:])
    jitter(a, cfg, 4)
    st.cyc("pstore")
    if not cfg.sent:
        a("s_waitcnt vmcnt(0)")
    elif cfg.sent > 1:
        a(f"s_waitcnt vmcnt({cfg.sent})")
    a(f"s_mov_b64 exec, {15 if cfg.pfl & 2 else 1}")
    a(f"buffer_store_dwordx2 {v(TG, 2)}, {v(FL2)}, {s(R_F, 4)}, {s(S_F2)} offen sc1")
    st.cyc("flag2")
    st.real("real1")
    st.flush("C")
    a.label("L_last")
    a("s_endpgm")


def gen_loader(a, cfg):
    st = Stamps(a, cfg)
    R_X, R_WQ, R_K, R_V, R_WO = 8, 12, 16, 20, 56
    R_OI, R_PI, R_OUT = 12, 16, 20
    S_LW, S_SW, S_SX, S_LDS, S_N, S_KK, S_PK = 50, 51, 52, 53, 54, 55, 49
    S_MW, S_MX, S_LDO = 62, 63, 7
    OW, OX, OK_, OV, OWO, OO = 16, 22, 25, 34, 43, 48
    RRc, UUc = 52, 55
    AT, AF1, AF2, TG, PT = 58, 59, 60, 62, 64
    A0, A1, RT, JK, AT2 = 66, 67, 68, 74, 75
    T0, T1, T2 = 4, 5, 6

    if cfg.lprio:
        a("s_setprio 3")
    if cfg.only and "k0" in st.only:
        a("s_waitcnt lgkmcnt(0)")
        st.cyc("k0")
    a(f"s_sub_u32 {s(S_LW)}, {s(S_WAVE)}, 4")
    for c in range(3):
        a(f"v_add_u32 {v(T0)}, {64 * c}, v0")
        a(f"v_mul_u32_u24 {v(T1)}, 2731, {v(T0)}")
        a(f"v_lshrrev_b32 {v(RRc + c)}, 16, {v(T1)}")
        a(f"v_mul_u32_u24 {v(T1)}, 24, {v(RRc + c)}")
        a(f"v_sub_u32 {v(UUc + c)}, {v(T0)}, {v(T1)}")
    a(f"s_mul_i32 s3, {s(S_LW)}, 3")
    a(f"v_lshrrev_b32 {v(T2)}, 4, v0")
    a("v_and_b32 v7, 7, v0")
    a("v_lshrrev_b32 v8, 3, v0")
    for c in range(3):
        a(f"s_add_u32 s4, s3, {c}")
        a("s_lshl_b32 s6, s4, 3")
        a("s_and_b32 s4, s4, 1")
        a("s_lshl_b32 s4, s4, 2")
        a(f"v_or_b32 {v(T0)}, s4, {v(T2)}")
        a(f"v_xor_b32 {v(T0)}, {v(T0)}, v7")
        a(f"v_add_u32 {v(T1)}, s6, v8")
        a(f"v_mul_u32_u24 {v(T1)}, 1280, {v(T1)}")
        a(f"v_lshl_add_u32 {v(OX + c)}, {v(T0)}, 4, {v(T1)}")
    a(f"s_lshl_b32 s3, {s(S_LW)}, 4")
    for c in range(3):
        a(f"v_bfe_u32 {v(T0)}, {v(RRc + c)}, 1, 1")
        a(f"v_lshlrev_b32 {v(T0)}, 1, {v(T0)}")
        a(f"v_xor_b32 {v(T0)}, {v(T0)}, {v(UUc + c)}")
        a(f"v_add_u32 {v(T1)}, s3, {v(RRc + c)}")
        a(f"v_mul_u32_u24 {v(T1)}, 12288, {v(T1)}")
        a(f"v_lshl_add_u32 {v(OW + c)}, {v(T0)}, 4, {v(T1)}")
        a(f"v_xor_b32 {v(T0)}, 64, {v(OW + c)}")
        a(f"v_add_u32 {v(OW + 3 + c)}, {8 * 12288}, {v(T0)}")
    a(f"s_mul_i32 {s(S_MW)}, {s(S_LW)}, 6144")
    a(f"s_mul_i32 {s(S_MX)}, {s(S_LW)}, 3072")
    a(f"s_add_u32 {s(S_MX)}, {s(S_MX)}, 24576")
    fb = {8: [0, 2, 4, 6, 8, 0, 2, 4], 9: [0, 5, 0, 5, 0, 5, 0, 5], 10: [0, 3, 5, 8, 0, 3, 5, 8],
          11: [0, 3, 7, 0, 3, 7, 0, 3]}[cfg.rot]
    word = sum(x << (4 * i) for i, x in enumerate(fb))
    a(f"s_lshl_b32 s3, {s(S_B)}, 2")
    a(f"s_lshr_b32 s3, {word:#x}, s3")
    a("s_and_b32 s3, s3, 15")
    a(f"s_lshl_b32 s4, {s(S_HH)}, 2")
    a("s_lshr_b32 s4, 0x8530, s4")
    a("s_and_b32 s4, s4, 15")
    a("s_add_u32 s3, s3, s4")
    a(f"s_add_u32 {s(S_KK)}, s3, {s(S_G8)}")
    mod_small(a, s(S_KK), 10, 2)
    a(f"s_mov_b32 {s(S_LDS)}, 0")
    a(f"s_mul_i32 s3, {s(S_B)}, 122880")
    a(f"s_mul_i32 s5, {s(S_H)}, 384")
    a("s_sub_u32 s4, 7864320, s5")
    st.cyc("pre", True) if cfg.only else None
    a("s_waitcnt lgkmcnt(0)")
    st.cyc("karg", True)
    srd(a, R_X, S_X, "s3", 122880)
    srd(a, R_WQ, S_WQ, "s5", "s4")

    def stage_body():
        a(f"s_mul_i32 {s(S_SW)}, {s(S_KK)}, {64 * 12288}")
        a(f"s_lshl_b32 {s(S_SX)}, {s(S_KK)}, 7")
        a(f"s_add_u32 s3, {s(S_LDS)}, {s(S_MW)}")
        a(f"s_add_u32 s4, {s(S_LDS)}, {s(S_MX)}")
        for c in range(3):
            dma(a, OX + c, R_X, s(S_SX), "s4", 1024 * c)
        for p in range(6):
            dma(a, OW + p, R_WQ, s(S_SW), "s3", 1024 * p, "nt" if cfg.ntkv & 8 else "")
        a(f"s_add_u32 {s(S_KK)}, {s(S_KK)}, 1")
        a(f"s_cmp_eq_u32 {s(S_KK)}, 10")
        a(f"s_cselect_b32 {s(S_KK)}, 0, {s(S_KK)}")
        a(f"s_add_u32 {s(S_LDS)}, {s(S_LDS)}, {SLOT}")
        a(f"s_cmp_eq_u32 {s(S_LDS)}, {3 * SLOT}")
        a(f"s_cselect_b32 {s(S_LDS)}, 0, {s(S_LDS)}")

    def call(lbl):
        a(f"s_call_b64 s[44:45], {lbl}")
    stage_body()
    if cfg.lprio:
        a("s_setprio 0")
    st.cyc("issued")
    a(f"s_lshl_b32 s3, {s(S_B)}, 7")
    a(f"s_add_u32 s3, s3, {OFF_F + FX}")
    a(f"s_add_u32 s4, {s(S_WS)}, s3")
    a(f"s_addc_u32 s5, {s(S_WS + 1)}, 0")
    a(f"s_load_dwordx2 {s(S_TAG, 2)}, s[4:5], 0")
    if cfg.kpos >= 9:
        table = {9: [1, 2, 3, 4, 5, 6, 7, 8], 11: [8, 8, 7, 7, 6, 6, 5, 5], 12: [8, 7, 6, 5, 8, 4, 3, 2],
                 13: [1, 8, 1, 8, 1, 8, 1, 8], 14: [1, 1, 8, 1, 1, 8, 1, 8],
                 20: [1, 8, 1, 1, 8, 1, 1, 8], 21: [1, 8, 8, 1, 8, 8, 1, 8], 22: [1, 8, 4, 1, 8, 4, 1, 8],
                 23: [1, 2, 1, 1, 2, 1, 1, 2], 24: [1, 8, 5, 3, 8, 6, 1, 8], 25: [0, 8, 1, 0, 8, 1, 0, 8],
                 26: [1, 8, 1, 8, 1, 8, 1, 8], 27: [0, 8, 0, 8, 0, 8, 0, 8]}[cfg.kpos]
        word = sum(x << (4 * i) for i, x in enumerate(table))
        if cfg.kpos < 20:
            a(f"s_add_u32 s3, {s(S_B)}, {s(S_G8)}")
            a("s_and_b32 s3, s3, 7")
            a("s_lshl_b32 s3, s3, 2")
        else:
            a(f"s_lshl_b32 s3, {s(S_B)}, 2")
        a(f"s_lshr_b32 s3, {word:#x}, s3")
        a(f"s_and_b32 {s(S_PK)}, s3, 15")
    else:
        a(f"s_mov_b32 {s(S_PK)}, {cfg.kpos}")
    a(f"s_lshl_b32 s3, {s(S_B)}, 5")
    a(f"s_add_u32 s3, s3, {s(S_H)}")
    a("s_mul_i32 s3, s3, 36864")
    srd(a, R_K, S_K, "s3", 36864)
    srd(a, R_V, S_V, "s3", 36864)
    srd(a, R_F, S_WS, f"{OFF_F}", 262144)
    a(f"s_mul_i32 s3, {s(S_LW)}, 24")
    a(f"s_and_b32 s4, {s(S_LW)}, 1")
    a("s_lshl_b32 s4, s4, 6")
    for c in range(3):
        a(f"v_lshrrev_b32 {v(T0)}, 1, {v(RRc + c)}")
        a(f"v_add_u32 {v(T1)}, s3, {v(RRc + c)}")
        a(f"v_mul_u32_u24 {v(T1)}, 384, {v(T1)}")
        a(f"v_xor_b32 {v(T2)}, {v(T0)}, {v(UUc + c)}")
        a(f"v_lshl_add_u32 {v(T2)}, {v(T2)}, 4, {v(T1)}")
        a(f"v_xor_b32 {v(OK_ + c)}, s4, {v(T2)}")
        a(f"v_xor_b32 {v(T2)}, 64, {v(OK_ + c)}")
        a(f"v_add_u32 {v(OK_ + 3 + c)}, 3072, {v(T2)}")
        a(f"v_add_u32 {v(OK_ + 6 + c)}, 6144, {v(OK_ + c)}")
        a(f"v_lshlrev_b32 {v(T2)}, 1, {v(T0)}")
        a(f"v_xor_b32 {v(T2)}, {v(T2)}, {v(UUc + c)}")
        a(f"v_lshl_add_u32 {v(OV + c)}, {v(T2)}, 4, {v(T1)}")
        a(f"v_add_u32 {v(OV + 3 + c)}, 3072, {v(OV + c)}")
        a(f"v_add_u32 {v(OV + 6 + c)}, 6144, {v(OV + c)}")
    a(f"s_mul_i32 s3, {s(S_G8)}, 983040")
    a(f"s_mul_i32 s4, {s(S_HH)}, 320")
    a("s_add_u32 s3, s3, s4")
    a("s_sub_u32 s4, 7864320, s3")
    srd(a, R_WO, S_WO, "s3", "s4")
    if cfg.tpos == 1:
        a(f"s_mul_i32 s3, {s(S_G8)}, 983040")
        srd(a, 96, S_WO, "s3", 983040)
    if cfg.tx:
        a("s_lshr_b32 s3, s2, 3")
        a("s_lshl_b32 s3, s3, 2")
        a(f"s_add_u32 s3, s3, {s(S_LW)}")
        a("s_mul_i32 s3, s3, 7680")
        a(f"v_min_u32 {v(T0)}, 59, v0")
        a(f"v_lshl_add_u32 {v(AT)}, {v(T0)}, 7, s3")
    else:
        a(f"s_lshl_b32 s3, {s(S_B)}, 2")
        a(f"s_add_u32 s3, s3, {s(S_LW)}")
        a("s_mul_i32 s3, s3, 24")
        a(f"v_mul_u32_u24 {v(T1)}, 21846, v0")
        a(f"v_lshrrev_b32 {v(T1)}, 16, {v(T1)}")
        a(f"v_mul_u32_u24 {v(T2)}, 3, {v(T1)}")
        a(f"v_sub_u32 {v(T0)}, v0, {v(T2)}")
        a(f"v_add_u32 {v(T1)}, s3, {v(T1)}")
        a(f"v_mul_u32_u24 {v(T1)}, 1280, {v(T1)}")
        a(f"v_lshl_add_u32 {v(AT)}, {v(T0)}, 7, {v(T1)}")
        a(f"v_min_u32 {v(T0)}, 7, v0")
        a(f"v_add_u32 {v(T0)}, 64, {v(T0)}")
        a(f"v_mul_u32_u24 {v(T1)}, 21846, {v(T0)}")
        a(f"v_lshrrev_b32 {v(T1)}, 16, {v(T1)}")
        a(f"v_mul_u32_u24 {v(T2)}, 3, {v(T1)}")
        a(f"v_sub_u32 {v(T0)}, {v(T0)}, {v(T2)}")
        a(f"v_add_u32 {v(T1)}, s3, {v(T1)}")
        a(f"v_mul_u32_u24 {v(T1)}, 1280, {v(T1)}")
        a(f"v_lshl_add_u32 {v(AT2)}, {v(T0)}, 7, {v(T1)}")
    if cfg.lprio == 2:
        a("s_setprio 3")
    stage_body()

    def issue_kv(off, srd_, base):
        a(f"s_mul_i32 s3, {s(S_LW)}, 9216")
        a(f"s_add_u32 s3, s3, {base}")
        for p in range(9):
            dma(a, off + p, srd_, "0", "s3", 1024 * p, "nt" if cfg.ntkv & (1 if srd_ == R_K else 2) else "")
    a("s_waitcnt vmcnt(9)")
    jitter(a, cfg, 6)
    st.cyc("landed0")
    a("s_barrier")
    a(f"s_mov_b32 {s(S_N)}, 0")
    a.label("L_lloop")
    a(f"s_cmp_eq_u32 {s(S_N)}, {s(S_PK)}")
    a("s_cbranch_scc0 L_nok")
    call("L_sub_k")
    a.label("L_nok")
    stage_body()
    a("s_waitcnt vmcnt(9)")
    a("s_barrier")
    a(f"s_add_u32 {s(S_N)}, {s(S_N)}, 1")
    a(f"s_cmp_lt_u32 {s(S_N)}, 8")
    a("s_cbranch_scc1 L_lloop")
    st.cyc("b8")
    if cfg.tpos == 8:
        a(f"s_mul_i32 s3, {s(S_G8)}, 983040")
        srd(a, R_X, S_WO, "s3", 983040)
        a(f"buffer_load_dword {v(JK)}, {v(AT)}, {s(R_X, 4)}, 0 offen")
    a(f"s_cmp_eq_u32 {s(S_PK)}, 8")
    a("s_cbranch_scc0 L_vonly")
    call("L_sub_k")
    a(f"s_waitcnt vmcnt({10 if cfg.tpos == 1 else 9})")
    a("s_barrier")
    call("L_sub_v")
    a("s_branch L_kvdone")
    a.label("L_sub_k")
    issue_kv(OK_, R_K, A_K)
    if cfg.tpos == 1:
        a(f"buffer_load_dword {v(JK)}, {v(AT)}, s[96:99], 0 offen")
    a("s_setpc_b64 s[44:45]")
    a.label("L_sub_v")
    issue_kv(OV, R_V, A_V)
    a("s_setpc_b64 s[44:45]")
    a.label("L_sub_wo")
    a(f"s_mul_i32 {s(S_SW)}, {s(S_KK)}, {64 * 1280}")
    a(f"s_add_u32 s3, {s(S_LDS)}, {s(S_MW)}")
    for p in range(5):
        dma(a, OWO + p, R_WO, s(S_SW), "s3", 1024 * p)
    a(f"s_add_u32 {s(S_KK)}, {s(S_KK)}, 1")
    a(f"s_cmp_eq_u32 {s(S_KK)}, 12")
    a(f"s_cselect_b32 {s(S_KK)}, 0, {s(S_KK)}")
    a(f"s_add_u32 {s(S_LDS)}, {s(S_LDS)}, {WOS}")
    a(f"s_cmp_eq_u32 {s(S_LDS)}, {4 * WOS}")
    a(f"s_cselect_b32 {s(S_LDS)}, 0, {s(S_LDS)}")
    a("s_setpc_b64 s[44:45]")
    a.label("L_sub_o")
    a(f"s_mul_i32 {s(S_SX)}, {s(S_PK)}, {OS}")
    a(f"s_add_u32 m0, {s(S_LDO)}, {s(S_MX)}")
    a(f"s_add_u32 {s(S_PK)}, {s(S_PK)}, 1")
    for c in range(3):
        a(f"buffer_load_dwordx4 {v(OO)}, {s(R_OI, 4)}, {s(S_SX)} offen offset:{1024 * c} {['sc1', '', 'nt'][cfg.unsafe % 9]} lds")
    a(f"s_cmp_eq_u32 {s(S_PK)}, 12")
    a(f"s_cselect_b32 {s(S_PK)}, 0, {s(S_PK)}")
    a(f"s_add_u32 {s(S_LDO)}, {s(S_LDO)}, {OS}")
    a(f"s_cmp_eq_u32 {s(S_LDO)}, {6 * OS}")
    a(f"s_cselect_b32 {s(S_LDO)}, 0, {s(S_LDO)}")
    a("s_setpc_b64 s[44:45]")
    a.label("L_vonly")
    call("L_sub_v")
    a("s_waitcnt vmcnt(9)")
    a("s_barrier")
    a.label("L_kvdone")
    a("s_waitcnt vmcnt(9)")
    jitter(a, cfg, 7)
    st.cyc("Kland")
    a("s_barrier")
    if cfg.tx:
        a(f"s_mul_i32 s3, {s(S_G8)}, 983040")
        srd(a, R_X, S_WO, "s3", 983040)
        touch = f"buffer_load_dword {v(JK)}, {v(AT)}, {s(R_X, 4)}, 0 offen"
    else:
        touch = (f"buffer_load_dword {v(JK)}, {v(AT)}, {s(R_WO, 4)}, 0 offen\n"
                 f"buffer_load_dword {v(JK + 2)}, {v(AT2)}, {s(R_WO, 4)}, 0 offen")
    if cfg.tpos == 10:
        a(touch)
    a(f"s_lshl_b32 s3, {s(S_B)}, 3")
    a(f"s_add_u32 s3, s3, {s(S_G8)}")
    a(f"s_mul_i32 s3, s3, {4 * 36864}")
    srd(a, R_OI, S_WS, "s3", 4 * 36864)
    a(f"s_lshl_b32 s3, {s(S_B)}, 2")
    a(f"s_add_u32 s3, s3, {s(S_HH)}")
    a(f"s_mul_i32 s3, s3, {8 * PSZ}")
    a(f"s_add_u32 s3, s3, {OFF_P}")
    srd(a, R_PI, S_WS, "s3", 8 * PSZ)
    a(f"s_mul_i32 {s(S_MW)}, {s(S_LW)}, 5120")
    a(f"s_add_u32 {s(S_MW)}, {s(S_MW)}, {WO0}")
    a(f"s_mul_i32 {s(S_MX)}, {s(S_LW)}, 3072")
    a(f"s_mul_i32 {s(S_KK)}, {s(S_HH)}, 3")
    a(f"s_add_u32 {s(S_PK)}, {s(S_KK)}, 3")
    a(f"s_cmp_eq_u32 {s(S_PK)}, 12")
    a(f"s_cselect_b32 {s(S_PK)}, 0, {s(S_PK)}")
    a(f"s_mov_b32 {s(S_LDS)}, {WOS}")
    a(f"s_mov_b32 {s(S_LDO)}, {3 * OS}")
    a("s_barrier")
    if cfg.lprio == 2:
        a("s_setprio 0")
    if cfg.tpos == 11:
        a(touch)
    a(f"s_lshl_b32 s3, {s(S_LW)}, 4")
    for c in range(5):
        a(f"v_add_u32 {v(T0)}, {64 * c}, v0")
        a(f"v_mul_u32_u24 {v(T1)}, 3277, {v(T0)}")
        a(f"v_lshrrev_b32 {v(T1)}, 16, {v(T1)}")
        a(f"v_mul_u32_u24 {v(T2)}, 20, {v(T1)}")
        a(f"v_sub_u32 {v(T0)}, {v(T0)}, {v(T2)}")
        a(f"v_lshrrev_b32 {v(T2)}, 1, {v(T1)}")
        a(f"v_and_b32 {v(T2)}, 2, {v(T2)}")
        a(f"v_xor_b32 {v(T0)}, {v(T0)}, {v(T2)}")
        a(f"v_add_u32 {v(T1)}, s3, {v(T1)}")
        a(f"v_mul_u32_u24 {v(T1)}, 1280, {v(T1)}")
        a(f"v_lshl_add_u32 {v(OWO + c)}, {v(T0)}, 4, {v(T1)}")
    a(f"v_lshl_add_u32 {v(OO)}, v0, 4, {s(S_MX)}")
    a(f"s_lshl_b32 s3, {s(S_B)}, 5")
    a(f"s_add_u32 s3, s3, {s(S_H)}")
    if not cfg.pfl & 1:
        a("s_lshr_b32 s3, s3, 2")
    a("s_lshl_b32 s3, s3, 7")
    a(f"v_and_b32 {v(T0)}, 15, v0")
    a(f"v_lshl_add_u32 {v(AF1)}, {v(T0)}, 3, s3")
    a("s_waitcnt lgkmcnt(0)")
    a(f"s_add_u32 {s(S_TAG)}, {s(S_TAG)}, {TAGC[0]:#x}")
    a(f"s_addc_u32 {s(S_TAG + 1)}, {s(S_TAG + 1)}, {TAGC[1]:#x}")
    a(f"v_mov_b32 {v(TG)}, {s(S_TAG)}")
    a(f"v_mov_b32 {v(TG + 1)}, {s(S_TAG + 1)}")
    a(f"v_mov_b32 {v(T0)}, {A_TAG}")
    a(f"ds_write_b64 {v(T0)}, {v(TG, 2)}")
    a(f"s_waitcnt vmcnt({(1 if cfg.tx else 2) if cfg.tpos in (10, 11) else 0}) lgkmcnt(0)")
    jitter(a, cfg, 8)
    st.cyc("Vland")
    if cfg.lprio == 2:
        a("s_setprio 3")
    a("s_barrier")
    if cfg.tpos == 12:
        a(touch)
    a(f"s_mul_i32 s3, {s(S_B)}, 122880")
    a(f"s_mul_i32 s4, {s(S_HH)}, 320")
    a("s_add_u32 s3, s3, s4")
    a("s_sub_u32 s4, 983040, s3")
    srd(a, R_OUT, S_OUT, "s3", "s4")
    assert cfg.w12 <= 2
    for _ in range(cfg.w12):
        call("L_sub_wo")
    a("s_barrier")
    for _ in range(cfg.w13):
        call("L_sub_wo")

    def poll(name, vaddr):
        a(f"s_mov_b32 s3, {SPIN_MAX}")
        a.label(name)
        a(f"buffer_load_dwordx2 {v(PT, 2)}, {v(vaddr)}, {s(R_F, 4)}, 0 offen sc1")
        a("s_sub_u32 s3, s3, 1")
        a("s_cmp_eq_u32 s3, 0")
        a(f"s_cbranch_scc1 {name}_out")
        a("s_waitcnt vmcnt(0)")
        a(f"v_cmp_ne_u64 vcc, {v(PT, 2)}, {v(TG, 2)}")
        a("s_nop 1")
        a(f"s_cbranch_vccnz {name}")
        a.label(name + "_out")
        a("s_waitcnt vmcnt(0)")

    BARS = ["B0", "B1", "B2", "BX"] + [f"B{n}" for n in range(3, 12)]
    own_mask = "s[4:5]"

    def run(path, tokens, state, alts):
        q, nwo, no, bi = state
        q = list(q)
        for k, ch in enumerate(tokens):
            free = -1 if bi < 2 else (bi - 2 if bi <= 4 else bi - 3)
            if ch == "w":
                assert nwo <= max(3, free + 4), (path, k, nwo, free)
                call("L_sub_wo")
                q.append((nwo, 5))
                nwo += 1
            elif ch == "o":
                assert no <= max(5, free + 6), (path, k, no, free)
                call("L_sub_o")
                q.append((no, 3))
                no += 1
            elif ch == "c":
                if cfg.sent:
                    a("s_mov_b32 s3, 4096")
                    for kk in range(8):
                        a(f"buffer_store_dwordx4 {v(CL, 4)}, {v(ACL)}, {s(R_PO, 4)}, {'s3' if kk >= 4 else '0'} offen offset:{1024 * (kk % 4)} sc1")
                    q.append((11, 8))
            elif ch == "p":
                a(f"buffer_load_dwordx2 {v(PT, 2)}, {v(AF1)}, {s(R_F, 4)}, 0 offen sc1")
                q.append((99, 1))
            elif ch in "ab":
                last = max(i for i, (kk, _) in enumerate(q) if kk == 99)
                a(f"s_waitcnt vmcnt({sum(c for _, c in q[last + 1:])})")
                q = q[last + 1:]
                a(f"v_cmp_ne_u64 vcc, {v(PT, 2)}, {v(TG, 2)}")
                a("s_nop 1")
                a(f"s_and_b64 s[4:5], vcc, {s(S_OM, 2)}")
                a(f"s_cbranch_scc0 L_path_{ch}")
                alts[ch] = (q, nwo, no, bi)
            elif ch == "s":
                poll("L_poll1", AF1)
                q = []
            elif ch == "|":
                name = BARS[bi]
                need = {"BX": -1}.get(name, int(name[1:]) if name != "BX" else -1)
                if need >= 0:
                    assert nwo > need and (need < 3 or no > need), (path, name)
                    last = max([i for i, (kk, _) in enumerate(q) if kk <= need] + [-1])
                    cnt = sum(c for _, c in q[last + 1:])
                    if last >= 0:
                        a(f"s_waitcnt vmcnt({cnt})")
                    q = q[last + 1:]
                a("s_barrier")
                bi += 1
        assert bi == len(BARS) and nwo == 12 and no == 12, (path, bi, nwo, no)
    CL, ACL, R_PO = 112, 116, 8
    if cfg.sent:
        a(f"s_lshl_b32 s3, {s(S_B)}, 2")
        a(f"s_add_u32 s3, s3, {s(S_HH)}")
        a("s_lshl_b32 s3, s3, 3")
        a(f"s_add_u32 s3, s3, {s(S_G8)}")
        a(f"s_mul_i32 s3, s3, {PSZ}")
        a(f"s_add_u32 s3, s3, {OFF_P}")
        srd(a, R_PO, S_WS, "s3", PSZ)
        a(f"s_mul_i32 s3, {s(S_LW)}, 7680")
        a(f"v_lshl_add_u32 {v(ACL)}, v0, 4, s3")
        for kk in range(4):
            a(f"v_mov_b32 {v(CL + kk)}, -1")
    S_OM = 4 * 0 + 40
    a(f"s_lshl_b32 s3, {s(S_HH)}, 2")
    a("s_lshl_b32 s3, 0x000f000f, s3")
    a(f"s_not_b32 {s(S_OM)}, s3")
    a(f"s_mov_b32 {s(S_OM + 1)}, {s(S_OM)}")
    a("s_barrier")
    jitter(a, cfg, 10)
    if cfg.tpos == 15:
        a(touch)
    tabs = {
        1: dict(N="wp a|ww|wp|b|ww s ooo|wo|wo|wo|wo|wo|wo|||",
                a="|ww|w ooo||w|wo|wo|wo|wo|wo|wo|w||",
                b="ooo|w|wo|wo|wo|wo|wo|wo|w||"),
        2: dict(N="wp a|ww|wp|b|ww s ooo|wo|wo|wo|wo|wo|wo|||",
                a="|ww|w ooo||w|wwo|wo|wo|wo|wo|wo|||",
                b="ooo|w|wwo|wo|wo|wo|wo|wo|||"),
        3: dict(N="wp a|ww|wp|b|www s ooo|ooo|w|w|w|oo|w|wo||",
                a="|ww|w ooo||ww|wo|wo|wo|wo|wo|wo|||",
                b="ooo|ww|wo|wo|wo|wo|wo|wo|||"),
        4: dict(N="w|ww|wp|b|ww s ooo|wo|wo|wo|wo|wo|woc|||",
                b="ooo|w|wo|wo|wo|wo|wo|wo|wc||"),
        8: dict(N="wp|ww a|wp|b|ww s ooo|wo|wo|wo|wo|wo|wo|||",
                a="ooo|w||w|wo|wo|wo|wo|wo|wo|w||",
                b="ooo|w|wo|wo|wo|wo|wo|wo|w||"),
        9: dict(N="w|wpw a|wp|b|ww s ooo|wo|wo|wo|wo|wo|wo|||",
                a="ooo|w||w|wo|wo|wo|wo|wo|wo|w||",
                b="ooo|w|wo|wo|wo|wo|wo|wo|w||"),
        10: dict(N="w|wwp|a wp|b|ww s ooo|wo|wo|wo|wo|wo|wo|||",
                 a="w ooo||w|wo|wo|wo|wo|wo|wo|w||",
                 b="ooo|w|wo|wo|wo|wo|wo|wo|w||"),
        11: dict(N="w|wwp|a wp|b|ww s ooo|wo|wo|wo|wo|wo|wo|||",
                 a="w oo||wo|wo|wo|wo|wo|wo|wo|w||",
                 b="oo|wo|wo|wo|wo|wo|wo|wo|w||"),
        12: dict(N="w|ww|pw|b|ww s ooo|wo|wo|wo|wo|wo|wo|||",
                 b="ooo|w|wo|wo|wo|wo|wo|wo|w||"),
        13: dict(N="w|ww|pw|b|ww s ooo|wo|wo|wo|wo|wo|wo|||",
                 b="ooo|w|wwo|wo|wo|wo|wo|wo|||"),
        14: dict(N="w|ww|pw|b wp|a w s ooo|wo|wo|wo|wo|wo|wo|||" if False else "w|ww|pw|b|wp a w s ooo|wo|wo|wo|wo|wo|wo|||",
                 a="ooo w|wo|wo|wo|wo|wo|wo|||",
                 b="ooo|w|wo|wo|wo|wo|wo|wo|w||"),
        15: dict(N="w|ww|w|p|w b w s ooo|wo|wo|wo|wo|wo|wo|||",
                 b="ooo w|wo|wo|wo|wo|wo|wo|||"),
        16: dict(N="w|www|p|b|ww s ooo|wo|wo|wo|wo|wo|wo|||",
                 b="ooo|w|wo|wo|wo|wo|wo|wo|w||"),
        7: dict(N="w|ww|wp|b|ww s ooo|wo|wo|wo|wo|wo|wo|c||",
                b="ooo|w|wwo|wo|wo|wo|wo|woc|||"),
        5: dict(N="wp a|ww|wp|b|ww s ooo|wo|wo|wo|wo|wo|wo|||",
                a="|ww|w oo||wo|wo|wo|wo|wo|wo|wo|w||",
                b="oo|wo|wo|wo|wo|wo|wo|wo|w||"),
        6: dict(N="wp a|ww|wp|b|ww s ooo|wo|wo|wo|wo|wo|wo|||",
                a="|www ooo|||w|wwo|wo|wo|wo|wo|wo|||",
                b="ooo|w|wwo|wo|wo|wo|wo|wo|||"),
    }[cfg.tab]
    alts = {}
    npre = cfg.w12 + cfg.w13
    if npre == 1:
        tabs = dict(N="w|w|wp|b|ww s ooo|wo|wo|wo|wo|wo|wo|||", b=tabs["b"])
    elif npre == 2:
        tabs = dict(N="w||wp|b|ww s ooo|wo|wo|wo|wo|wo|wo|||", b=tabs["b"])
    elif npre == 3:
        tabs = dict(N="w||p|b|ww s ooo|wo|wo|wo|wo|wo|wo|||", b=tabs["b"])
    run("N", tabs["N"].replace(" ", ""), ([(k, 5) for k in range(npre)], npre, 3, 0), alts)
    a("s_branch L_final")
    for key in sorted(alts):
        a.label(f"L_path_{key}")
        run(key, tabs[key].replace(" ", ""), alts[key], {})
        if key != sorted(alts)[-1]:
            a("s_branch L_final")
    a.label("L_final")
    jitter(a, cfg, 9)
    OFFS = RT
    a(f"s_lshr_b32 s5, {s(S_G8)}, 2")
    if cfg.pfl & 2:
        a(f"s_lshl_b32 s3, {s(S_B)}, 5")
        a(f"s_add_u32 s3, s3, {s(S_H)}")
    else:
        a(f"s_lshl_b32 s3, {s(S_B)}, 2")
        a(f"s_add_u32 s3, s3, {s(S_HH)}")
        a("s_lshl_b32 s3, s3, 1")
        a("s_add_u32 s3, s3, s5")
    a("s_lshl_b32 s3, s3, 7")
    a(f"s_add_u32 s3, s3, {F2}")
    a(f"v_and_b32 {v(T0)}, 15, v0")
    a(f"v_lshl_add_u32 {v(AF2)}, {v(T0)}, 3, s3")
    a(f"s_and_b32 s6, {s(S_G8)}, 3")
    a("s_mul_i32 s6, s6, 3")
    a("s_mul_i32 s5, s5, 7680")
    a(f"s_mul_i32 s4, {s(S_G8)}, {0 if cfg.otr else 12 * 1280}")
    a(f"s_cmp_eq_u32 {s(S_LW)}, 3")
    a("s_cbranch_scc1 L_red3")
    a(f"s_add_u32 s6, s6, {s(S_LW)}")
    a("s_lshr_b32 s3, s6, 2")
    a("s_mul_i32 s3, s3, 2560")
    a("s_add_u32 s5, s5, s3")
    a("s_and_b32 s6, s6, 3")
    a("s_lshl_b32 s6, s6, 8")
    a("s_add_u32 s5, s5, s6")
    a(f"s_mul_i32 s3, {s(S_LW)}, {4 * (320 if cfg.otr else 1280)}")
    a("s_add_u32 s4, s4, s3")
    a("v_lshrrev_b32 v7, 5, v0")
    a("v_bfe_u32 v8, v0, 4, 1")
    a(f"v_mul_u32_u24 v9, 15360, v7")
    a("v_lshl_add_u32 v9, v8, 10, v9")
    a(f"v_lshl_add_u32 v9, {v(T0)}, 4, v9")
    a(f"v_add_u32 {v(OFFS)}, s5, v9")
    a("v_and_b32 v9, 3, v0")
    a(f"v_mul_u32_u24 v9, {320 if cfg.otr else 1280}, v9")
    a("v_mul_u32_u24 v7, 160, v7")
    a("v_lshl_add_u32 v7, v8, 6, v7")
    a("v_bfe_u32 v8, v0, 2, 2")
    a("v_lshl_add_u32 v7, v8, 3, v7")
    a("v_add3_u32 " + f"{v(A0)}, v7, v9, s4")
    a(f"v_add_u32 {v(A1)}, 32, {v(A0)}")
    a("s_branch L_red")
    a.label("L_red3")
    a("v_min_u32 v10, 47, v0")
    a("v_lshrrev_b32 v7, 4, v10")
    a("v_add_u32 v8, s6, v7")
    a("v_lshrrev_b32 v9, 2, v8")
    a("v_mul_u32_u24 v9, 2560, v9")
    a("v_and_b32 v8, 3, v8")
    a("v_lshl_add_u32 v9, v8, 7, v9")
    a("v_bfe_u32 v8, v10, 3, 1")
    a("v_mul_u32_u24 v11, 15360, v8")
    a("v_add_u32 v9, v9, v11")
    a("v_and_b32 v11, 7, v10")
    a("v_lshl_add_u32 v9, v11, 4, v9")
    a("s_add_u32 s5, s5, 2048")
    a(f"v_add_u32 {v(OFFS)}, s5, v9")
    a("v_and_b32 v11, 1, v10")
    a("v_lshl_add_u32 v7, v7, 1, v11")
    a(f"v_mul_u32_u24 v7, {640 if cfg.otr else 2560}, v7")
    a("v_mul_u32_u24 v8, 160, v8")
    a("v_bfe_u32 v11, v10, 1, 2")
    a("v_lshl_add_u32 v8, v11, 3, v8")
    a("s_add_u32 s4, s4, 128")
    a("v_add3_u32 " + f"{v(A0)}, v7, v8, s4")
    a(f"v_add_u32 {v(A1)}, {320 if cfg.otr else 1280}, {v(A0)}")
    a.label("L_red")
    if cfg.otr:
        a(f"s_lshl_b32 s4, {s(S_LW)}, 6")
        a("v_add_u32 v7, s4, v0")
        a("v_min_u32 v7, 239, v7")
        a(f"v_lshlrev_b32 {v(RT + 1)}, 4, v7")
        a("v_mul_u32_u24 v8, 3277, v7")
        a("v_lshrrev_b32 v8, 16, v8")
        a("v_mul_u32_u24 v8, 960, v8")
        a(f"s_mul_i32 s4, {s(S_G8)}, {12 * 1280}")
        a(f"v_add3_u32 {v(RT + 2)}, v8, {v(RT + 1)}, s4")
    D0, AC = 80, 148

    def load_part(g):
        a(f"s_mov_b32 s3, {PSZ * g}")
        a(f"buffer_load_dwordx4 {v(D0 + 4 * g, 4)}, {v(OFFS)}, {s(R_PI, 4)}, s3 offen {['sc1', '', 'nt', 'sc0 sc1', 'sc1 nt'][cfg.pld]}")
    if not cfg.dynred:
        poll("L_poll2", AF2)
        st.cyc("seen2")
        for g in range(8):
            load_part(g)
    elif cfg.dynred == 1:
        a(f"s_mov_b32 s7, {SPIN_MAX}")
        a("s_mov_b32 s6, 0")
        a.label("L_poll2")
        a(f"buffer_load_dwordx2 {v(PT, 2)}, {v(AF2)}, {s(R_F, 4)}, 0 offen sc1")
        a("s_sub_u32 s7, s7, 1")
        a("s_cmp_eq_u32 s7, 0")
        a("s_cbranch_scc1 L_poll2_out")
        a("s_waitcnt vmcnt(0)")
        a(f"v_cmp_eq_u64 vcc, {v(PT, 2)}, {v(TG, 2)}")
        a("s_nop 1")
        a("s_lshr_b32 s5, vcc_lo, 8")
        a("s_and_b32 s5, s5, vcc_lo")
        a("s_and_b32 s5, s5, 0xff")
        a("s_andn2_b32 s4, s5, s6")
        a("s_cbranch_scc0 L_poll2")
        a("s_or_b32 s6, s6, s5")
        for g in range(8):
            a(f"s_bitcmp1_b32 s4, {g}")
            a(f"s_cbranch_scc0 L_r{g}")
            load_part(g)
            a.label(f"L_r{g}")
        a("s_cmp_eq_u32 s6, 0xff")
        a("s_cbranch_scc0 L_poll2")
        a.label("L_poll2_out")
        st.cyc("seen2")
        a("s_waitcnt vmcnt(0)")
    else:
        U0 = 120
        a(f"s_mov_b32 s7, {SPIN_MAX}")
        a("s_mov_b32 s6, 0")
        a("s_mov_b32 s8, 0")
        a("s_mov_b32 s9, 0")
        a("s_branch L_poll2")
        a.label("L_widen")
        for g in range(8):
            a(f"s_bitcmp1_b32 s8, {g}")
            a(f"s_cbranch_scc0 L_u{g}")
            for r in range(4):
                a(f"v_lshlrev_b32 {v(U0 + 8 * g + 2 * r)}, 16, {v(D0 + 4 * g + r)}")
                a(f"v_and_b32 {v(U0 + 8 * g + 2 * r + 1)}, 0xffff0000, {v(D0 + 4 * g + r)}")
            a.label(f"L_u{g}")
        a("s_mov_b32 s8, 0")
        a("s_setpc_b64 s[44:45]")
        a.label("L_poll2")
        a(f"buffer_load_dwordx2 {v(PT, 2)}, {v(AF2)}, {s(R_F, 4)}, 0 offen sc1")
        a("s_cmp_eq_u32 s8, 0")
        a("s_cbranch_scc1 L_nowiden")
        call("L_widen")
        a.label("L_nowiden")
        a("s_sub_u32 s7, s7, 1")
        a("s_cmp_eq_u32 s7, 0")
        a("s_cbranch_scc1 L_poll2_out")
        a("s_waitcnt vmcnt(0)")
        a(f"v_cmp_eq_u64 vcc, {v(PT, 2)}, {v(TG, 2)}")
        a("s_mov_b32 s8, s9")
        a("s_mov_b32 s9, 0")
        a("s_and_b32 s5, vcc_lo, 0xff")
        a("s_andn2_b32 s9, s5, s6")
        a("s_cbranch_scc0 L_poll2")
        a("s_or_b32 s6, s6, s5")
        for g in range(8):
            a(f"s_bitcmp1_b32 s9, {g}")
            a(f"s_cbranch_scc0 L_r{g}")
            load_part(g)
            a.label(f"L_r{g}")
        a("s_cmp_eq_u32 s6, 0xff")
        a("s_cbranch_scc0 L_poll2")
        a.label("L_poll2_out")
        st.cyc("seen2")
        call("L_widen")
        a("s_mov_b32 s8, s9")
        a("s_waitcnt vmcnt(0)")
        call("L_widen")
        for g in range(1, 8):
            for r in range(4):
                a(f"v_pk_add_f32 {v(U0 + 2 * r, 2)}, {v(U0 + 2 * r, 2)}, {v(U0 + 8 * g + 2 * r, 2)}")
        AC = U0
    if cfg.sent:
        assert cfg.dynred
        a("s_mov_b32 s7, 4096")
        a.label("L_chk")
        a(f"v_max3_u32 v4, {v(D0)}, {v(D0 + 1)}, {v(D0 + 2)}")
        a(f"v_max3_u32 v5, {v(D0 + 3)}, {v(D0 + 4)}, {v(D0 + 5)}")
        for kk in range(6, 30, 4):
            a(f"v_max3_u32 v4, v4, {v(D0 + kk)}, {v(D0 + kk + 1)}")
            a(f"v_max3_u32 v5, v5, {v(D0 + kk + 2)}, {v(D0 + kk + 3)}")
        a(f"v_max3_u32 v4, v4, {v(D0 + 30)}, {v(D0 + 31)}")
        a("v_max_u32 v4, v4, v5")
        a("v_cmp_eq_u32 vcc, -1, v4")
        a("s_sub_u32 s7, s7, 1")
        a("s_cselect_b32 s6, 0, 1")
        a("s_and_b32 s4, vcc_lo, -1")
        a("s_or_b32 s4, s4, vcc_hi")
        a("s_cselect_b32 s6, s6, 0")
        a("s_cmp_eq_u32 s6, 0")
        a("s_cbranch_scc1 L_chk_ok")
        for g in range(8):
            load_part(g)
        a("s_waitcnt vmcnt(0)")
        a("s_branch L_chk")
        a.label("L_chk_ok")
        st.cyc("chk")
    for g in range(8 if cfg.dynred < 2 else 0):
        if not cfg.dynred:
            a(f"s_waitcnt vmcnt({7 - g})")
        for r in range(4):
            src = D0 + 4 * g + r
            if g == 0:
                a(f"v_lshlrev_b32 {v(AC + 2 * r)}, 16, {v(src)}")
                a(f"v_and_b32 {v(AC + 2 * r + 1)}, 0xffff0000, {v(src)}")
            else:
                t = 4 + 2 * (r % 2)
                a(f"v_lshlrev_b32 {v(t)}, 16, {v(src)}")
                a(f"v_and_b32 {v(t + 1)}, 0xffff0000, {v(src)}")
                a(f"v_pk_add_f32 {v(AC + 2 * r, 2)}, {v(AC + 2 * r, 2)}, {v(t, 2)}")
    for r in range(4):
        a(cvt(D0 + r, AC + 2 * r))
    fl = ['', 'sc1', 'nt', 'sc0 sc1'][cfg.outfl]
    jitter(a, cfg, 11)
    if cfg.otr:
        a(f"ds_write_b64 {v(A0)}, {v(D0, 2)}")
        a(f"ds_write_b64 {v(A1)}, {v(D0 + 2, 2)}")
        a(lg(0))
        a("s_barrier")
        a(f"ds_read_b128 {v(D0 + 4, 4)}, {v(RT + 1)}")
        a(lg(0))
        a(f"buffer_store_dwordx4 {v(D0 + 4, 4)}, {v(RT + 2)}, {s(R_OUT, 4)}, 0 offen {fl}")
    elif cfg.unsafe == 9:
        a("s_mul_i32 s3, s2, 3840")
        srd(a, 8, S_OUT, "s3", 3840)
        a(f"v_lshlrev_b32 v7, 4, v7")
        a(f"buffer_store_dwordx4 {v(D0, 4)}, v7, s[8:11], 0 offen {fl}")
    else:
        a(f"buffer_store_dwordx2 {v(D0, 2)}, {v(A0)}, {s(R_OUT, 4)}, 0 offen {fl}")
        a(f"buffer_store_dwordx2 {v(D0 + 2, 2)}, {v(A1)}, {s(R_OUT, 4)}, 0 offen {fl}")
    a(f"s_or_b32 s3, {s(S_H)}, {s(S_LW)}")
    a("s_cmp_eq_u32 s3, 0")
    a("s_cbranch_scc0 L_noep")
    a(f"s_lshl_b32 s3, {s(S_B)}, 7")
    a(f"s_add_u32 s3, s3, {FX}")
    a("v_mov_b32 v4, 0")
    a("s_mov_b64 exec, 1")
    a(f"buffer_store_dwordx2 {v(TG, 2)}, v4, {s(R_F, 4)}, s3 offen")
    a.label("L_noep")
    if cfg.diag:
        a("s_waitcnt vmcnt(0)")
    st.cyc("end")
    st.real("real1")
    st.flush("L")


def generate(cfg):
    a = Asm()
    a.lines.append("; @launch grid=(256,1,1) block=(512,1,1) lds=163840")
    a('.amdgcn_target "amdgcn-amd-amdhsa--gfx950"')
    a(".text")
    a(kernel_header(KN))
    a("s_cmp_ge_u32 s2, 256")
    a("s_cbranch_scc1 L_end")
    a("s_load_dwordx16 s[32:47], s[0:1], 0")
    if cfg.diag:
        a(f"s_memrealtime {s(S_T, 2)}")
        a(f"s_memtime {s(S_T + 2, 2)}")
    a("v_lshrrev_b32 v1, 6, v0")
    a("v_and_b32 v0, 63, v0")
    a(f"v_readfirstlane_b32 {s(S_WAVE)}, v1")
    a(f"s_and_b32 {s(S_G8)}, s2, 7")
    a("s_lshr_b32 s4, s2, 3")
    a(f"s_lshr_b32 {s(S_B)}, s4, 2")
    a(f"s_and_b32 {s(S_HH)}, s4, 3")
    a(f"s_lshl_b32 s3, {s(S_G8)}, 2")
    a(f"s_add_u32 {s(S_H)}, s3, {s(S_HH)}")
    a(f"s_cmp_ge_u32 {s(S_WAVE)}, 4")
    a("s_cbranch_scc1 L_loader")
    if cfg.ipf:
        a("s_getpc_b64 s[62:63]")
        a.label("L_pc")
        a(f"s_sub_u32 s62, s62, L_pc-{KN}")
        a("s_subb_u32 s63, s63, 0")
        a(f"s_mul_i32 s3, {s(S_WAVE)}, 28")
        a("v_min_u32 v7, 27, v0")
        a("v_add_u32 v7, s3, v7")
        a("v_lshlrev_b32 v7, 7, v7")
        a(f"v_min_u32 v7, L_last-{KN}, v7")
        if cfg.ipf & 1:
            a("global_load_dword v14, v7, s[62:63]")
    a("s_branch L_compute")
    a.label("L_loader")
    gen_loader(a, cfg)
    a.label("L_end")
    a("s_endpgm")
    a.label("L_compute")
    gen_compute(a, cfg)
    a('.section .rodata,"a"')
    a(".p2align 6")
    a(kernel_desc(KN))
    return a.text()


if __name__ == "__main__":
    cfg = Cfg()
    out = sys.argv[1]
    for opt in sys.argv[2:]:
        k, val = opt.split("=")
        assert hasattr(cfg, k), k
        setattr(cfg, k, val if k == "only" else int(val))
    t = generate(cfg)
    pr = hazard.check(t) + hazard.check_counters(t)
    for p in pr:
        print(f"HAZARD line {p[0]} -> {p[1]}: need {p[2]} have {p[3]}\n    {p[4]}\n    {p[5]}")
    open(out, "w").write(t)
    print(out, "hazards:", len(pr), "lines:", t.count("\n"))
```

```python
import struct
import sys

from asmlib import Asm, v, s, kernel_header, kernel_desc
import hazard

KN = "standalone__gqa_block_cached__near_ridge_kernel"
OFF_O = 0
OFF_P = 16 << 20
OFF_F = 32 << 20
F1, F2, FX = 0, 65536, 131072
OFF_T = 64 << 20
SLOT = 36864
A_K = 3 * SLOT
A_V = 1 * SLOT
A_Q = 2 * SLOT
A_P = 2 * SLOT
A_M = 163840 - 768
A_TAG = A_M - 8
WO0, WOS = 81920, 20480
OS = 12288
PSZ = 30720
CEXP = 0.07216878364870322 * 1.4426950408889634
TAGC = (0x9E3779B9, 0x7F4A7C15)
SPIN_MAX = 1 << 21


def f32bits(x):
    return struct.unpack("<I", struct.pack("<f", x))[0]


class Cfg:
    diag = 0
    only = ""
    rot = 10
    kpos = 9
    dynred = 1
    outfl = 0
    ipf = 1
    tx = 1
    tab = 12
    unsafe = 0
    tlb = 0
    jit = 0
    pfl = 2
    otr = 1
    ntkv = 3
    lprio = 1
    sent = 0
    smx = 2
    vbp = 2
    fin = 2
    qv = 6
    sv = 1
    wper = 5
    odef = 1
    fw = 2
    dot2 = 0
    tpos = 10
    w12 = 0
    w13 = 0
    pst = 0
    pld = 0


S_X, S_K, S_V, S_WQ, S_WO, S_OUT, S_DBG, S_WS = 32, 34, 36, 38, 40, 42, 44, 46
S_B, S_H, S_WAVE, S_G8, S_HH = 28, 29, 30, 31, 48
S_TAG = 60
R_F = 24
S_T = 64


class Stamps:
    def __init__(self, a, cfg):
        self.a, self.on, self.n = a, cfg.diag, 2
        self.fine = cfg.diag > 1
        self.names = ["real0", "cyc0"]
        self.k = 0
        self.only = cfg.only.split(",") if cfg.only else None

    def real(self, name):
        if self.on:
            self.a(f"s_memrealtime {s(S_T + 2 * self.n, 2)}")
            self.names.append(name)
            self.n += 1

    def cyc(self, name, fine=False):
        if self.only and name not in self.only:
            return
        if not self.only and len(name) <= 3 and name[0] in "afB" and name[1:].isdigit() and name != "B0":
            return
        if self.on and (not fine or self.fine or self.only):
            self.a(f"{'s_memrealtime' if self.on > 2 else 's_memtime'} {s(S_T + 2 * self.n, 2)}")
            self.names.append(name)
            self.n += 1

    def alt(self, name, path, fine=False):
        if path == "N":
            return self.cyc(name, fine)
        if not self.on or (self.only and name not in self.only) or (fine and not self.only):
            return
        self.a(f"{'s_memrealtime' if self.on > 2 else 's_memtime'} {s(S_T + 2 * (self.n + self.k), 2)}")
        self.k += 1

    def flush(self, role, vt=4):
        if not self.on:
            return
        a = self.a
        assert self.n <= 19, self.n
        a("s_waitcnt lgkmcnt(0) vmcnt(0)")
        a(f"; STAMPS {role} " + " ".join(self.names))
        a("s_lshl_b32 s3, s2, 3")
        a(f"s_add_u32 s3, s3, {s(S_WAVE)}")
        a("s_lshl_b32 s3, s3, 8")
        a(f"s_add_u32 s3, s3, {OFF_T}")
        a(f"s_add_u32 s4, {s(S_WS)}, s3")
        a(f"s_addc_u32 s5, {s(S_WS + 1)}, 0")
        a("s_mov_b64 exec, 1")
        a(f"v_mov_b32 {v(vt + 2)}, 0")
        for i in range(self.n):
            a(f"v_mov_b32 {v(vt)}, {s(S_T + 2 * i)}")
            a(f"v_mov_b32 {v(vt + 1)}, {s(S_T + 2 * i + 1)}")
            a(f"global_store_dwordx2 {v(vt + 2)}, {v(vt, 2)}, s[4:5] offset:{8 * i}")
            a("s_nop 1")
        a("s_waitcnt vmcnt(0)")


def srd(a, d, base, off_sgpr, size):
    a(f"s_add_u32 {s(d)}, {s(base)}, {off_sgpr}")
    a(f"s_addc_u32 {s(d + 1)}, {s(base + 1)}, 0")
    a(f"s_mov_b32 {s(d + 2)}, {size}")
    a(f"s_mov_b32 {s(d + 3)}, 0x20000")


def dma(a, voff, srd_, soff, base, imm, fl=""):
    a(f"s_add_u32 m0, {base}, {imm}")
    a("s_nop 0")
    a(f"buffer_load_dwordx4 {v(voff)}, {s(srd_, 4)}, {soff} offen {fl} lds")


def mfma(d, a_, b_, c=None):
    cs = v(d, 4) if c is None else str(c)
    return f"v_mfma_f32_16x16x32_bf16 {v(d, 4)}, {v(a_, 4)}, {v(b_, 4)}, {cs}"


def trread(d, addr, off):
    assert 0 <= off < 65536
    return f"ds_read_b64_tr_b16 {v(d, 2)}, {v(addr)} offset:{off}"


def rd128(d, addr, off):
    assert 0 <= off < 65536
    return f"ds_read_b128 {v(d, 4)}, {v(addr)} offset:{off}"


def rd64(d, addr, off):
    assert 0 <= off < 65536
    return f"ds_read_b64 {v(d, 2)}, {v(addr)} offset:{off}"


def cvt(d, t):
    return f"v_cvt_pk_bf16_f32 {v(d)}, {v(t)}, {v(t + 1)}"


def emit(a, lst):
    for x in lst:
        a(x)


def place(main, slots):
    out = list(slots.get(-1, []))
    for i, m in enumerate(main):
        out.append(m)
        out.extend(slots.get(i, []))
    for k in sorted(slots):
        if k >= len(main):
            out.extend(slots[k])
    return out


def spread(fill, start, per=1, step=1, into=None):
    d = into if into is not None else {}
    i, k = start, 0
    while k < len(fill):
        d.setdefault(i, []).extend(fill[k:k + per])
        k += per
        i += step
    return d


def at(d, i, *x):
    d.setdefault(i, []).extend(x)


def lg(n):
    return f"s_waitcnt lgkmcnt({n})"


def jitter(a, cfg, k):
    if not cfg.jit:
        return
    lbl = a.uid("L_jit")
    a(f"s_lshl_b32 s100, s2, 3")
    a(f"s_add_u32 s100, s100, {s(S_WAVE)}") if cfg.jit & 1 else None
    a(f"s_mul_i32 s100, s100, {0x9E3779B1 & 0x7fffffff | 1}")
    a(f"s_add_u32 s100, s100, {(k * 0x632BE5AB + cfg.jit * 0x1234567) & 0x7fffffff}")
    a("s_mul_i32 s100, s100, 0x2545F491")
    a("s_lshr_b32 s101, s100, 29")
    a("s_cmp_lg_u32 s101, 0")
    a(f"s_cbranch_scc1 {lbl}")
    a("s_lshr_b32 s100, s100, 8")
    a("s_and_b32 s100, s100, 31")
    a.label(lbl + "b")
    a("s_sleep 8")
    a("s_sub_u32 s100, s100, 1")
    a("s_cmp_gt_i32 s100, 0")
    a(f"s_cbranch_scc1 {lbl}b")
    a.label(lbl)


def mod_small(a, reg, m, times):
    for _ in range(times):
        a(f"s_sub_u32 s4, {reg}, {m}")
        a(f"s_cmp_ge_u32 {reg}, {m}")
        a(f"s_cselect_b32 {reg}, s4, {reg}")


def tile_addrs(a, dst, first, f, lanepart, tmp, extra=None):
    for c in range(4):
        a(f"s_add_u32 s4, {first}, {c}")
        a("s_and_b32 s5, s4, 3")
        a("s_lshr_b32 s4, s4, 2")
        a("s_lshl_b32 s4, s4, 7")
        a(f"v_xor_b32 {v(tmp)}, s5, {v(f)}")
        a(f"v_lshl_add_u32 {v(tmp)}, {v(tmp)}, 5, {v(lanepart)}")
        a(f"v_add_u32 {v(dst + c)}, s4, {v(tmp)}")


def gen_compute(a, cfg):
    st = Stamps(a, cfg)
    R_O, R_P = 8, 12
    ACC, FR, QP, LS, ONES = 16, 88, 160, 196, 208
    AX, AY, AZ, AVo, AVp = 212, 216, 218, 230, 234
    AQW, AQR, AMW, AMR, APW, APR, APW2, APR2, AO, AOW = range(238, 248)
    AW, AB, AP, AP2, FL2, TG, ZERO = 248, 250, 251, 252, 253, 254, 15
    VM, VG, VF, T0, T1, T2 = 1, 2, 3, 4, 5, 6
    MX = 8
    S_I, S_J, S_C, S_D, S_CNT, S_SL, S_D2, S_SL2 = 50, 51, 52, 54, 55, 56, 57, 18
    S_K0, S_K1, S_F1, S_F2 = 58, 59, 16, 17

    a(f"s_lshr_b32 {s(S_I)}, {s(S_WAVE)}, 1")
    a(f"s_and_b32 {s(S_J)}, {s(S_WAVE)}, 1")
    a(f"s_mov_b32 {s(S_C)}, {f32bits(CEXP):#x}")
    a(f"s_mov_b32 {s(S_C + 1)}, {f32bits(CEXP):#x}")
    a(f"v_and_b32 {v(VM)}, 15, v0")
    a(f"v_lshrrev_b32 {v(VG)}, 4, v0")
    a(f"v_lshrrev_b32 {v(T0)}, 2, {v(VM)}")
    a(f"v_lshl_add_u32 {v(T1)}, {v(VG)}, 3, {v(T0)}")
    a(f"v_mul_u32_u24 {v(T1)}, 384, {v(T1)}")
    a(f"v_and_b32 {v(T2)}, 3, {v(VM)}")
    a(f"v_lshlrev_b32 v11, 3, {v(T2)}")
    a(f"v_add_u32 {v(T1)}, v11, {v(T1)}")
    a(f"v_and_b32 {v(T2)}, 1, {v(VG)}")
    a(f"v_lshrrev_b32 {v(VF)}, 3, {v(VM)}")
    a(f"v_lshl_or_b32 {v(VF)}, {v(T2)}, 1, {v(VF)}")
    a(f"s_mul_i32 s3, {s(S_I)}, 6")
    tile_addrs(a, AX, "s3", VF, T1, T2)
    a(f"s_mul_i32 s4, {s(S_J)}, 48")
    a(f"v_add_u32 {v(T1)}, s4, {v(VM)}")
    a(f"v_lshlrev_b32 {v(T1)}, 7, {v(T1)}")
    a(f"v_add_u32 {v(T1)}, 24576, {v(T1)}")
    a(f"v_lshrrev_b32 {v(VF)}, 1, {v(VM)}")
    for ks in range(2):
        a(f"v_add_u32 {v(T2)}, {4 * ks}, {v(VG)}")
        a(f"v_xor_b32 {v(T2)}, {v(T2)}, {v(VF)}")
        a(f"v_lshl_add_u32 {v(AY + ks)}, {v(T2)}, 4, {v(T1)}")
    for i in range(72):
        a(f"v_mov_b32 {v(ACC + i)}, 0")
    a(f"s_mul_i32 s4, {s(S_I)}, 48")
    a(f"v_add_u32 {v(T1)}, s4, {v(VM)}")
    a(f"v_mul_u32_u24 {v(T1)}, 384, {v(T1)}")
    a(f"v_and_b32 {v(T2)}, 1, {v(VG)}")
    a(f"v_lshl_add_u32 {v(T1)}, {v(T2)}, 3, {v(T1)}")
    a(f"v_add_u32 {v(T1)}, {A_K}, {v(T1)}")
    a(f"v_lshrrev_b32 {v(T0)}, 1, {v(VG)}")
    a(f"v_xor_b32 {v(T0)}, {v(T0)}, {v(VF)}")
    a(f"v_lshl_add_u32 {v(T1)}, {v(T0)}, 4, {v(T1)}")
    a(f"s_mul_i32 s7, {s(S_I)}, 3")
    for ls in range(6):
        a(f"s_add_u32 s6, s7, {ls}")
        mod_small(a, "s6", 6, 1)
        a("s_and_b32 s5, s6, 1")
        a("s_lshl_b32 s5, s5, 6")
        a("s_lshr_b32 s6, s6, 1")
        a("s_lshl_b32 s6, s6, 7")
        a(f"v_add_u32 {v(T2)}, s6, {v(T1)}")
        a(f"v_xor_b32 {v(AZ + 2 * ls)}, s5, {v(T2)}")
        a(f"v_xor_b32 {v(AZ + 2 * ls + 1)}, 32, {v(AZ + 2 * ls)}")
    a(f"v_lshrrev_b32 {v(T0)}, 2, {v(VM)}")
    a(f"v_lshl_add_u32 {v(T0)}, {v(VG)}, 2, {v(T0)}")
    a(f"v_bfe_u32 {v(VF)}, {v(T0)}, 1, 2")
    a(f"v_mul_u32_u24 {v(T1)}, 384, {v(T0)}")
    a(f"v_add_u32 {v(T1)}, v11, {v(T1)}")
    a(f"s_mul_i32 s6, {s(S_I)}, 18432")
    a(f"s_add_u32 s7, s6, {A_V}")
    a(f"v_add_u32 {v(T1)}, s7, {v(T1)}")
    a(f"s_mul_i32 s3, {s(S_I)}, 6")
    tile_addrs(a, AVo, "s3", VF, T1, T2)
    a("s_lshl_b32 s6, s6, 1")
    a("s_sub_u32 s6, 18432, s6")
    for c in range(4):
        a(f"v_add_u32 {v(AVp + c)}, s6, {v(AVo + c)}")
    a(f"v_mul_u32_u24 {v(T1)}, 320, {v(T0)}")
    a(f"v_add_u32 {v(T1)}, v11, {v(T1)}")
    a(f"v_add_u32 {v(T1)}, {WO0 + WOS}, {v(T1)}")
    a(f"v_and_b32 {v(T0)}, 1, {v(VG)}")
    a(f"s_mul_i32 s3, {s(S_I)}, 5")
    for par in range(2):
        a(f"s_add_u32 s4, s3, {par}")
        a(f"v_xor_b32 {v(T2)}, s4, {v(T0)}")
        a(f"v_lshl_add_u32 {v(AW + par)}, {v(T2)}, 5, {v(T1)}")
    a(f"s_xor_b32 s5, {s(S_WAVE)}, 2")
    a(f"v_lshlrev_b32 {v(T1)}, 4, v0")
    a(f"v_lshlrev_b32 {v(T0)}, 3, v0")
    a(f"v_lshlrev_b32 {v(T2)}, 2, {v(VM)}")
    for wv, (q_, p_, p2, m_) in ((s(S_WAVE), (AQW, APW, APW2, AMW)), ("s5", (AQR, APR, APR2, AMR))):
        a(f"s_mul_i32 s3, {wv}, 9216")
        a(f"s_add_u32 s3, s3, {A_Q}")
        a(f"v_add_u32 {v(q_)}, s3, {v(T1)}")
        a(f"s_mul_i32 s3, {wv}, 4608")
        a(f"s_add_u32 s3, s3, {A_P}")
        a(f"v_add_u32 {v(p_)}, s3, {v(T1)}")
        a(f"v_add_u32 {v(p2)}, s3, {v(T0)}")
        a(f"s_mul_i32 s3, {wv}, 192")
        a(f"s_add_u32 s3, s3, {A_M}")
        a(f"v_add_u32 {v(m_)}, s3, {v(T2)}")
    a(f"s_mul_i32 s3, {s(S_I)}, 18")
    a(f"s_mul_i32 s4, {s(S_J)}, 3")
    a("s_add_u32 s3, s3, s4")
    a("s_lshl_b32 s3, s3, 10")
    a(f"v_add_u32 {v(AO)}, s3, {v(T1)}")
    a(f"s_mul_i32 s3, {s(S_J)}, 3072")
    a(f"v_add_u32 {v(AB)}, s3, {v(T1)}")
    a(f"v_lshrrev_b32 v12, 2, {v(VM)}")
    a(f"v_lshl_add_u32 v12, v12, 2, {v(VG)}")
    a(f"v_and_b32 v13, 3, {v(VM)}")
    a("v_lshl_add_u32 v12, v12, 2, v13")
    a(f"s_mul_i32 s3, {s(S_WAVE)}, 7680")
    a(f"v_lshl_add_u32 {v(AP)}, v12, 4, s3")
    a("s_add_u32 s3, s3, 2048")
    a(f"v_lshl_add_u32 {v(AP2)}, v12, 3, s3")
    a(f"v_mov_b32 {v(AOW)}, {A_TAG}")
    for i in range(4):
        a(f"v_mov_b32 {v(ONES + i)}, 0x3f803f80")
    a(f"s_lshl_b32 s3, {s(S_B)}, 5")
    a(f"s_add_u32 s3, s3, {s(S_H)}")
    a(f"s_lshl_b32 s4, {s(S_HH)}, 2")
    a(f"s_add_u32 s4, s4, {s(S_WAVE)}")
    a("s_lshl_b32 s4, s4, 3")
    a("s_andn2_b32 s5, s3, 3")
    a(f"s_lshl_b32 s5, s5, {7 if cfg.pfl & 1 else 5}")
    a(f"s_add_u32 {s(S_F1)}, s4, s5")
    a(f"s_lshl_b32 s6, {s(S_I)}, 3")
    a(f"s_add_u32 s6, s6, {s(S_G8)}")
    a("s_lshl_b32 s6, s6, 3")
    if cfg.pfl & 2:
        a(f"s_lshl_b32 s5, {s(S_B)}, 5")
        a(f"s_lshl_b32 s4, {s(S_J)}, 4")
        a("s_add_u32 s5, s5, s4")
        a(f"s_add_u32 s5, s5, {s(S_HH)}")
    else:
        a(f"s_lshl_b32 s5, {s(S_B)}, 2")
        a(f"s_add_u32 s5, s5, {s(S_HH)}")
        a("s_lshl_b32 s5, s5, 1")
        a(f"s_add_u32 s5, s5, {s(S_J)}")
    a("s_lshl_b32 s5, s5, 7")
    a("s_add_u32 s6, s6, s5")
    a(f"s_add_u32 {s(S_F2)}, s6, {F2}")
    a(f"v_lshlrev_b32 {v(ZERO)}, 7, v0")
    a(f"v_lshlrev_b32 {v(FL2)}, 9, v0")
    a(f"s_lshl_b32 s4, {s(S_B)}, 2")
    a(f"s_add_u32 s4, s4, {s(S_HH)}")
    a("s_lshl_b32 s4, s4, 3")
    a(f"s_add_u32 s4, s4, {s(S_G8)}")
    a(f"s_mul_i32 s4, s4, {PSZ}")
    a(f"s_add_u32 s4, s4, {OFF_P}")
    a("s_mul_i32 s3, s3, 36864")
    a("s_waitcnt lgkmcnt(0)")
    srd(a, R_O, S_WS, "s3", 36864)
    srd(a, R_P, S_WS, "s4", PSZ)
    srd(a, R_F, S_WS, f"{OFF_F}", 262144)
    if cfg.tlb:
        a("s_mov_b64 exec, 1")
        a(f"buffer_load_dword v14, {v(AO)}, {s(R_O, 4)}, 0 offen sc1")
        a(f"buffer_load_dword v14, {v(AP)}, {s(R_P, 4)}, 0 offen sc1")
        a("s_mov_b32 s3, 200000")
        a(f"buffer_load_dword v14, {v(AP)}, {s(R_F, 4)}, s3 offen sc1")
        if cfg.tlb > 1:
            a(f"s_mul_i32 s3, {s(S_B)}, 122880")
            srd(a, 20, S_OUT, "s3", 122880)
            a(f"buffer_load_dword v14, {v(AP)}, s[20:23], 0 offen sc1")
            a(f"s_lshl_b32 s3, {s(S_B)}, 5")
            a(f"s_add_u32 s3, s3, {s(S_H)}")
            a("s_mul_i32 s3, s3, 36864")
            srd(a, 20, S_V, "s3", 36864)
            a(f"buffer_load_dword v14, {v(AP)}, s[20:23], 0 offen sc1")
            srd(a, 20, S_K, "s3", 36864)
            a(f"buffer_load_dword v14, {v(AP)}, s[20:23], 0 offen sc1")
            a(f"s_mul_i32 s3, {s(S_G8)}, 983040")
            srd(a, 20, S_WO, "s3", 983040)
            a(f"buffer_load_dword v14, {v(AP)}, s[20:23], 0 offen sc1")
        a("s_mov_b64 exec, -1")

    def fa(n, dt):
        return FR + 36 * n + 4 * dt

    def fb(n, qt):
        return FR + 36 * n + 24 + 4 * qt

    def p1_reads(n, ks):
        def A(dt):
            return [trread(fa(n, dt) + 2 * hh, AX + dt % 4, 384 * (32 * ks + 4 * hh) + 128 * (dt // 4)) for hh in range(2)]

        def B(qt):
            return [rd128(fb(n, qt), AY + ks, 2048 * qt)]
        r = B(0) + A(0) + B(1) + B(2)
        for dt in range(1, 6):
            r += A(dt)
        return r

    def qtile(dt, qt):
        return ACC + 4 * (3 * dt + qt)

    def p1_mfmas(n):
        return [mfma(qtile(dt, qt), fa(n, dt), fb(n, qt)) for dt in range(6) for qt in range(3)]

    adv = [f"v_add_u32 {v(AX + c)}, {s(S_D)}, {v(AX + c)}" for c in range(4)] + \
          [f"v_add_u32 {v(AY + c)}, {s(S_D)}, {v(AY + c)}" for c in range(2)]
    a(f"s_mov_b32 {s(S_SL)}, 0")
    a(f"s_mov_b32 {s(S_CNT)}, 0")
    a(f"s_mov_b32 {s(S_K0)}, {(-2 * SLOT) & 0xffffffff:#x}")
    a(f"s_mov_b32 {s(S_K1)}, {SLOT}")
    st.cyc("setup")
    a("s_barrier")
    st.cyc("b0")
    emit(a, p1_reads(0, 0))
    a(lg(0))
    a.label("L_p1")
    sl = spread(p1_reads(1, 1), 0, 1)
    at(sl, 0, f"s_add_u32 {s(S_SL)}, {s(S_SL)}, 1")
    at(sl, 1, f"s_cmp_eq_u32 {s(S_SL)}, 3")
    at(sl, 2, f"s_cselect_b32 {s(S_D)}, {s(S_K0)}, {s(S_K1)}")
    at(sl, 3, f"s_cselect_b32 {s(S_SL)}, 0, {s(S_SL)}")
    spread(adv, 15, 2, into=sl)
    emit(a, place(p1_mfmas(0), sl))
    a(lg(0))
    a("s_barrier")
    sl = spread(p1_reads(0, 0), 0, 1)
    at(sl, 15, f"s_add_u32 {s(S_CNT)}, {s(S_CNT)}, 1")
    at(sl, 16, f"s_cmp_lt_u32 {s(S_CNT)}, 9")
    emit(a, place(p1_mfmas(1), sl))
    a(lg(0))
    a("s_cbranch_scc1 L_p1")
    emit(a, place(p1_mfmas(0), spread(p1_reads(1, 1), 0, 1)))
    if cfg.ipf & 2:
        a("global_load_dword v14, v7, s[62:63]")
    a(lg(0))
    a("s_barrier")
    jitter(a, cfg, 1)
    st.cyc("b10")
    a.c("SEG q")

    def kf(buf, a_):
        return FR + 12 * buf + 4 * a_

    def k_reads(ls, buf):
        return [rd64(kf(buf, a_) + 2 * hh, AZ + 2 * ls + hh, 6144 * a_) for a_ in range(3) for hh in range(2)]

    def qpack(ls):
        r = []
        for qt in range(3):
            for dt in (2 * ls, 2 * ls + 1):
                d = QP + 4 * (3 * ls + qt) + 2 * (dt % 2)
                r += [cvt(d, qtile(dt, qt)), cvt(d + 1, qtile(dt, qt) + 2)]
        return r

    def qwrite(f):
        return f"ds_write_b128 {v(AQW)}, {v(QP + 4 * f, 4)} offset:{1024 * f}"

    def stile(a_, qt):
        return ACC + 4 * (3 * a_ + qt)

    def s_mfmas(qbase, ls3, buf, first=False, qmajor=False):
        idx = [(a_, qt) for qt in range(3) for a_ in range(3)] if qmajor else [(a_, qt) for a_ in range(3) for qt in range(3)]
        return [mfma(stile(a_, qt), kf(buf, a_), qbase + 4 * (3 * ls3 + qt), 0 if first else None) for a_, qt in idx]

    q0, q1, q2 = qpack(0), qpack(1), qpack(2)
    if cfg.qv == 0:
        sl = spread(k_reads(0, 0) + k_reads(1, 1) + k_reads(2, 2), 0, 2, into={})
        spread(q0, 9, 2, into=sl)
        at(sl, 11, qwrite(0))
        at(sl, 14, qwrite(1))
        spread(q1[:4], 15, 2, into=sl)
        at(sl, 17, qwrite(2))
        emit(a, place(p1_mfmas(1), sl))
        emit(a, q1[4:8] + [qwrite(3)] + q1[8:])
        a(lg(4))
        sl = {}
        at(sl, 0, qwrite(4))
        spread(q2, 1, 2, into=sl)
        at(sl, 3, qwrite(5))
        at(sl, 7, qwrite(6))
        at(sl, 10, qwrite(7))
        at(sl, 13, qwrite(8))
        spread(k_reads(3, 0), 14, 2, into=sl)
        emit(a, place(s_mfmas(QP, 0, 0, True) + s_mfmas(QP, 1, 1), sl))
    else:
        order = [(dt, qt) for ls in range(3) for qt in range(3) for dt in (2 * ls, 2 * ls + 1)]
        mm = [mfma(qtile(dt, qt), fa(1, dt), fb(1, qt)) for dt, qt in order]
        mm += s_mfmas(QP, 0, 0, True) + s_mfmas(QP, 1, 1)
        packs = q0 + q1 + q2
        sl = {}
        if cfg.qv == 1:
            spread(k_reads(0, 0)[:5], 0, 1, into=sl)
            for f in range(9):
                g0 = 5 + 2 * f + (f >= 6) * 2
                spread(packs[4 * f:4 * f + 4], g0, 2, into=sl)
            wr = [7, 10, 13, 16, 19, 22, 25, 28, 31]
            for f in range(9):
                at(sl, wr[f], qwrite(f))
            at(sl, 8, k_reads(0, 0)[5])
            for k, g_ in enumerate([9, 11, 12, 14, 15, 17]):
                at(sl, g_, k_reads(1, 1)[k])
            at(sl, 17, lg(7))
            at(sl, 26, lg(3))
            spread(k_reads(2, 2), 27, 1, into=sl)
            spread(k_reads(3, 0), 29, 1, into=sl)
        elif cfg.qv == 2:
            spread(k_reads(0, 0) + k_reads(1, 1)[:4], 0, 2, into=sl)
            for f in range(9):
                g0 = 5 + 2 * f + (f >= 6) * 2
                spread(packs[4 * f:4 * f + 4], g0, 2, into=sl)
            wr = [7, 10, 13, 16, 19, 22, 25, 28, 31]
            for f in range(9):
                at(sl, wr[f], qwrite(f))
            at(sl, 8, k_reads(1, 1)[4])
            at(sl, 9, k_reads(1, 1)[5])
            at(sl, 17, lg(3))
            spread(k_reads(2, 2), 26, 1, into=sl)
            spread(k_reads(3, 0), 29, 1, into=sl)
        elif cfg.qv in (3, 4):
            kr = k_reads(0, 0) + k_reads(1, 1) + k_reads(2, 2)
            spread(kr[:5], 0, 1, into=sl)
            rest = kr[5:]
            for f in range(9):
                g0 = 5 + 3 * f
                c4 = packs[4 * f:4 * f + 4]
                if cfg.qv == 3:
                    at(sl, g0, rest.pop(0), c4[0], c4[1])
                    at(sl, g0 + 1, c4[2], c4[3])
                else:
                    at(sl, g0, rest.pop(0), c4[0])
                    at(sl, g0 + 1, c4[1], c4[2], c4[3])
                at(sl, g0 + 2, qwrite(f))
            spread(rest, 32, 1, into=sl)
            sl[17].append(lg(8))
            sl[26].append(lg(2))
        elif cfg.qv in (5, 6, 7):
            kr = k_reads(0, 0) + k_reads(1, 1) + k_reads(2, 2)
            spread(kr[:4], 0, 1, into=sl)
            rest = kr[4:]
            start = 4 if cfg.qv == 7 else 5
            for f in range(9):
                g0 = start + 3 * f
                c4 = packs[4 * f:4 * f + 4]
                at(sl, g0, *(rest[:1]), c4[0], c4[1])
                at(sl, g0 + 1, *(rest[1:2]), c4[2], c4[3])
                rest = rest[2:]
                if cfg.qv == 6:
                    d = QP + 4 * f
                    at(sl, g0 + 2, f"ds_write_b64 {v(AQW)}, {v(d, 2)} offset:{1024 * f}",
                       f"ds_write_b64 {v(AQW)}, {v(d + 2, 2)} offset:{1024 * f + 8}")
                else:
                    at(sl, g0 + 2, qwrite(f))
            sl[17].append(lg(4))
            sl[26].append(lg(2))
        emit(a, place(mm, sl))
    st.cyc("a3", True)
    a(lg(0))
    a("s_barrier")
    st.cyc("b11")
    a.c("SEG s")
    QR = FR + 36
    rds = [rd128(QR + 4 * f, AQR, 1024 * f) for f in range(9)]
    if cfg.sv == 0:
        sl = spread(rds[:6], -1, 1)
        spread(k_reads(4, 1), 5, 2, into=sl)
        at(sl, 8, lg(9))
        emit(a, place(s_mfmas(QP, 2, 2), sl))
        st.cyc("a4", True)
        sl = spread(rds[6:], 0, 1)
        spread(k_reads(5, 2), 3, 1, into=sl)
        at(sl, 8, lg(9))
        emit(a, place(s_mfmas(QR, 0, 0), sl))
        emit(a, s_mfmas(QR, 1, 1))
        a(lg(0))
    else:
        sl = spread(rds[:3], -1, 1)
        spread(k_reads(3, 0), 2, 2, into=sl)
        spread(rds[3:6], 5, 1, into=sl)
        at(sl, 8, lg(3))
        spread(k_reads(4, 1), 8, 2, into=sl)
        spread(rds[6:], 11, 1, into=sl)
        spread(k_reads(5, 2), 14, 2, into=sl)
        at(sl, 17, lg(9))
        emit(a, place(s_mfmas(QP, 2, 2) + s_mfmas(QR, 0, 0), sl))

    def xs(qt):
        return [stile(a_, qt) + r for a_ in range(3) for r in range(4)]

    def maxchain(qt):
        x = xs(qt)
        r = [f"v_max3_f32 {v(MX + qt)}, {v(x[0])}, {v(x[1])}, {v(x[2])}"]
        for k in range(3, 11, 2):
            r.append(f"v_max3_f32 {v(MX + qt)}, {v(MX + qt)}, {v(x[k])}, {v(x[k + 1])}")
        r.append(f"v_max_f32 {v(MX + qt)}, {v(MX + qt)}, {v(x[11])}")
        return r
    m0, m1, m2 = maxchain(0), maxchain(1), maxchain(2)
    if cfg.sv == 0:
        emit(a, s_mfmas(QR, 2, 2, qmajor=True))
        st.cyc("sdone", True)
        a("s_nop 0")
        emit(a, m0 + m1 + m2)
    else:
        s4, s5 = s_mfmas(QR, 1, 1, qmajor=True), s_mfmas(QR, 2, 2, qmajor=True)
        mm = sum([s4[3 * qt:3 * qt + 3] + s5[3 * qt:3 * qt + 3] for qt in range(3)], [])
        sl = {}
        at(sl, 2, lg(0))
        spread(m0, 11, 2, into=sl)
        spread(m1[:2], 17, 2, into=sl)
        emit(a, place(mm, sl))
        st.cyc("sdone", True)
        emit(a, m1[2:] + ["s_nop 1"] + m2)
    for op in ("v_permlane16_swap_b32", "v_permlane32_swap_b32"):
        for qt in range(3):
            a(f"v_mov_b32 {v(MX + 3 + qt)}, {v(MX + qt)}")
        for qt in range(3):
            a(f"{op} {v(MX + 3 + qt)}, {v(MX + qt)}")
        for qt in range(3):
            a(f"v_max_f32 {v(MX + qt)}, {v(MX + qt)}, {v(MX + 3 + qt)}")
    for qt in range(3):
        a(f"ds_write_b32 {v(AMW)}, {v(MX + qt)} offset:{64 * qt}")
    st.cyc("a6", True)
    a(lg(0))
    a("s_barrier")
    st.cyc("b12")
    a.c("SEG sm")

    PP, PC = FR, FR + 24
    VQ = [[QP + 4 * dt for dt in range(6)], [FR + 36 + 4 * dt for dt in range(6)], [148, 152, 156, 184, 188, 192]]

    def v_reads(step):
        r = []
        for dt in range(6):
            for hh in range(2):
                if step == 0:
                    ad, tile = AVo, hh
                elif step == 1:
                    ad, tile = (AVo, 2) if hh == 0 else (AVp, 2)
                else:
                    ad, tile = AVp, hh
                r.append(trread(VQ[step][dt] + 2 * hh, ad + dt % 4, 6144 * tile + 128 * (dt // 4)))
        return r
    NM = 2
    for qt in range(3):
        a(f"ds_read_b32 {v(MX + 3 + qt)}, {v(AMR)} offset:{64 * qt}")
    emit(a, v_reads(0))
    if cfg.vbp == 2:
        emit(a, v_reads(1))
    a((lg(15) if cfg.vbp == 2 else lg(12)) if not st.on else lg(0))
    a(f"ds_read_b64 {v(TG, 2)}, {v(AOW)}")
    for qt in range(3):
        a(f"v_max_f32 {v(MX + qt)}, {v(MX + qt)}, {v(MX + 3 + qt)}")
    for qt in range(3):
        a(f"v_mul_f32 {v(NM + 2 * qt)}, {s(S_C)}, {v(MX + qt)}")
    for qt in range(3):
        a(f"v_mov_b32 {v(NM + 2 * qt + 1)}, {v(NM + 2 * qt)}")

    def softmax(qt):
        x = xs(qt)
        e = [f"v_exp_f32 {v(y)}, {v(y)}" for y in x]
        c = [cvt(PP + 8 * qt + k, x[2 * k]) for k in range(6)]
        if cfg.smx == 0 or (cfg.smx == 2 and qt == 0):
            f = [[f"v_pk_fma_f32 {v(x[2 * k], 2)}, {v(x[2 * k], 2)}, {s(S_C, 2)}, {v(NM + 2 * qt, 2)} neg_lo:[0,0,1] neg_hi:[0,0,1]"] for k in range(6)]
        else:
            f = [[f"v_fma_f32 {v(y)}, {v(y)}, {s(S_C)}, -{v(NM + 2 * qt)}" for y in x[2 * k:2 * k + 2]] for k in range(6)]
        r = f[0] + f[1]
        for k in range(6):
            nx = f[k + 2] if k + 2 < 6 else []
            r += [e[2 * k]] + nx[:1] + [e[2 * k + 1]] + nx[1:]
            if k >= 1:
                r.append(c[k - 1])
        r += ["s_nop 0", c[5]]
        return r

    def pwrite(qt):
        return [f"ds_write_b128 {v(APW)}, {v(PP + 8 * qt, 4)} offset:{1536 * qt}",
                f"ds_write_b64 {v(APW2)}, {v(PP + 8 * qt + 4, 2)} offset:{1536 * qt + 1024}"]
    OT = {}
    free = [ACC + 36 + 4 * k for k in range(9)]
    for qt in range(3):
        regs = free[3 * qt:3 * qt + 3] + [stile(a_, qt) for a_ in range(3)]
        for dt in range(6):
            OT[(dt, qt)] = regs[dt]
    pf = [lambda qt: PP + 8 * qt, lambda qt: PP + 8 * qt + 4, lambda qt: PC + 4 * qt]

    def pv(step, qt):
        first = step == 0
        r = [mfma(OT[(dt, qt)], VQ[step][dt], pf[step](qt), 0 if first else None) for dt in range(6)]
        sm = [mfma(LS + 4 * qt, ONES, pf[step](qt), 0 if first else None)]
        return sm + r if step == 2 else r + sm

    def weave(vals, mm, first=3, per=3):
        out, k = [], 0
        for i, m in enumerate(mm):
            n = first if i == 0 else per
            out += vals[k:k + n]
            k += n
            out.append(m)
        return out + vals[k:]
    st.cyc("a7", True)
    vb = v_reads(1) if cfg.vbp == 0 else []
    s0 = softmax(0)
    out = []
    for k, x in enumerate(s0):
        out.append(x)
        if k % 2 == 1 and vb:
            out.append(vb.pop(0))
    emit(a, out + vb)
    emit(a, pwrite(0))
    a(lg(14) if cfg.vbp == 0 else lg(2))
    st.cyc("a8", True)
    emit(a, weave(softmax(1), pv(0, 0), per=cfg.wper))
    emit(a, pwrite(1))
    st.cyc("a9", True)
    emit(a, weave(softmax(2), pv(0, 1), per=cfg.wper))
    emit(a, pwrite(2))
    st.cyc("a10", True)
    a(lg(0))
    a("s_barrier")
    jitter(a, cfg, 2)
    st.cyc("b13")
    a.c("SEG pv")
    prd = [rd64(PP + 8 * qt + 6, APR2, 1536 * qt + 1024) for qt in range(3)]
    prc = [rd128(PC + 4 * qt, APR, 1536 * qt) for qt in range(3)]
    vc = v_reads(2)
    if cfg.vbp in (0, 2):
        sl = spread(prd + prc + vc[:2], -1, 1)
        at(sl, 6, lg(5))
        emit(a, place(pv(0, 2), sl))
        sl = spread(vc[2:], 0, 1)
        at(sl, 13, lg(0))
        emit(a, place(pv(1, 0) + pv(1, 1), sl))
    else:
        emit(a, place(pv(0, 2), spread(prd + v_reads(1), -1, 2)))
        a(lg(0))
        sl = spread(prc + vc[:11], 0, 1)
        at(sl, 13, vc[11], lg(0))
        emit(a, place(pv(1, 0) + pv(1, 1), sl))
    st.cyc("pvB", True)
    OPQ = [160, 164, 168, 172, 176, 180, 212, 216, 220]

    def finish(qt):
        r = [f"v_rcp_f32 {v(MX + 2 * qt)}, {v(LS + 4 * qt)}", "s_nop 0",
             f"v_mov_b32 {v(MX + 2 * qt + 1)}, {v(MX + 2 * qt)}"]
        for ls in range(3):
            d = OPQ[3 * ls + qt]
            for half in range(2):
                t = OT[(2 * ls + half, qt)]
                if cfg.fin == 0 or (cfg.fin == 2 and qt == 2):
                    r.append(f"v_pk_mul_f32 {v(t, 2)}, {v(t, 2)}, {v(MX + 2 * qt, 2)}")
                    r.append(f"v_pk_mul_f32 {v(t + 2, 2)}, {v(t + 2, 2)}, {v(MX + 2 * qt, 2)}")
                else:
                    r += [f"v_mul_f32 {v(t + k)}, {v(MX + 2 * qt)}, {v(t + k)}" for k in range(4)]
            for half in range(2):
                t = OT[(2 * ls + half, qt)]
                r += [cvt(d + 2 * half, t), cvt(d + 2 * half + 1, t + 2)]
            off = (ls * 6 + qt) * 1024
            r.append(f"s_mov_b32 s3, {off}")
            r.append(f"buffer_store_dwordx4 {v(d, 4)}, {v(AO)}, {s(R_O, 4)}, s3 offen {'' if cfg.unsafe in (1, 2) else 'sc1'}")
            if not cfg.odef:
                r.append(f"ds_write_b128 {v(AO)}, {v(d, 4)} offset:{off}")
        return r

    def gaps(f, per):
        out, cur = [], []
        for x in f:
            if x.startswith("s_mov"):
                if cur:
                    out.append(cur)
                cur = [x]
            elif x.startswith(("buffer_", "ds_")):
                out.append(cur + [x])
                cur = []
            else:
                cur.append(x)
                if len(cur) == per:
                    out.append(cur)
                    cur = []
        return out + ([cur] if cur else [])

    def weave2(mm, f, skip, per):
        g = gaps(f, per)
        out = []
        for i, m in enumerate(mm):
            out.append(m)
            if i >= skip and g:
                out += g.pop(0)
        return out + sum(g, [])
    emit(a, pv(2, 0))
    f0, f1, f2 = finish(0), finish(1), finish(2)
    mm = pv(1, 2) + pv(2, 1)
    if cfg.fw == 0:
        emit(a, [mm[0]] + weave(["s_nop 0"] + f0, mm[1:], first=1, per=2))
    else:
        emit(a, weave2(mm, f0, 1, cfg.fw))
    st.cyc("f0", True)
    mm = pv(2, 2)
    if cfg.fw == 0:
        emit(a, [mm[0], mm[1]] + weave(f1, mm[2:], first=0, per=2))
    else:
        emit(a, weave2(mm, f1, 0, cfg.fw))
    st.cyc("f1", True)
    emit(a, f2)
    a.c("SEG end")
    st.cyc("ostore")
    a(lg(0))
    a("s_barrier")

    A4 = ACC
    if cfg.odef:
        for qt in range(3):
            for ls in range(3):
                a(f"ds_write_b128 {v(AO)}, {v(OPQ[3 * ls + qt], 4)} offset:{(ls * 6 + qt) * 1024}")
    for i in range(60):
        a(f"v_mov_b32 {v(A4 + i)}, 0")
    a(f"s_mov_b32 {s(S_K0)}, {(-3 * WOS) & 0xffffffff:#x}")
    a(f"s_mov_b32 {s(S_K1)}, {WOS}")
    a(f"s_mov_b32 s6, {(-5 * OS) & 0xffffffff:#x}")
    a(f"s_mov_b32 s7, {OS}")
    a(f"s_mov_b32 {s(S_SL)}, 1")
    a(f"s_mov_b32 {s(S_SL2)}, 0")
    a(f"s_mov_b32 {s(S_CNT)}, 0")
    a("s_waitcnt vmcnt(0)")
    a(f"s_mov_b64 exec, {15 if cfg.pfl & 1 else 1}")
    a(f"buffer_store_dwordx2 {v(TG, 2)}, {v(ZERO)}, {s(R_F, 4)}, {s(S_F1)} offen {'' if cfg.unsafe in (1, 2) else 'sc1'}")
    a("s_mov_b64 exec, -1")
    jitter(a, cfg, 3)
    st.cyc("flag1")

    def ga(n, tt):
        return FR + 32 * n + 4 * tt

    def gb(n, qt):
        return FR + 32 * n + 20 + 4 * qt

    def p4_reads(n, ks):
        def A(tt):
            return [trread(ga(n, tt) + 2 * hh, AW + tt % 2, 320 * (32 * ks + 16 * hh) + 64 * (tt // 2)) for hh in range(2)]

        def B(qt):
            return [rd128(gb(n, qt), AB, 6144 * ks + 1024 * qt)]
        r = B(0) + A(0) + B(1) + B(2)
        for tt in range(1, 5):
            r += A(tt)
        return r

    def p4_mfmas(n):
        return [mfma(A4 + 4 * (3 * tt + qt), ga(n, tt), gb(n, qt)) for tt in range(5) for qt in range(3)]
    adv4 = [f"v_add_u32 {v(AW + c)}, {s(S_D)}, {v(AW + c)}" for c in range(2)] + [f"v_add_u32 {v(AB)}, {s(S_D2)}, {v(AB)}"]
    a(lg(0))
    a("s_barrier")
    st.cyc("B0")
    emit(a, p4_reads(0, 0))
    a(lg(0))
    a.label("L_p4")
    sl = spread(p4_reads(1, 1), 0, 1)
    sc = [f"s_add_u32 {s(S_SL)}, {s(S_SL)}, 1", f"s_cmp_eq_u32 {s(S_SL)}, 4",
          f"s_cselect_b32 {s(S_D)}, {s(S_K0)}, {s(S_K1)}", f"s_cselect_b32 {s(S_SL)}, 0, {s(S_SL)}",
          f"s_add_u32 {s(S_SL2)}, {s(S_SL2)}, 1", f"s_cmp_eq_u32 {s(S_SL2)}, 6",
          f"s_cselect_b32 {s(S_D2)}, s6, s7", f"s_cselect_b32 {s(S_SL2)}, 0, {s(S_SL2)}"]
    spread(sc, 0, 1, into=sl)
    spread(adv4, 13, 2, into=sl)
    at(sl, 12, f"s_cmp_eq_u32 {s(S_CNT)}, 2")
    emit(a, place(p4_mfmas(0), sl))
    a(lg(0))
    a("s_cbranch_scc0 L_p4bar")
    st.cyc("own")
    a("s_barrier")
    a.label("L_p4bar")
    a("s_barrier")
    sl = spread(p4_reads(0, 0), 0, 1)
    at(sl, 12, f"s_add_u32 {s(S_CNT)}, {s(S_CNT)}, 1")
    at(sl, 13, f"s_cmp_lt_u32 {s(S_CNT)}, 11")
    emit(a, place(p4_mfmas(1), sl))
    a(lg(0))
    a("s_cbranch_scc1 L_p4")
    jitter(a, cfg, 5)
    st.cyc("p4loop")
    emit(a, place(p4_mfmas(0), spread(p4_reads(1, 1), 0, 1)))
    a(lg(0))
    PK = QP

    def tile(tt, qt):
        return A4 + 4 * (3 * tt + qt)
    ep = []
    for pb in range(2):
        for qt in range(3):
            d = PK + 4 * (3 * pb + qt)
            t0, t1 = tile(2 * pb, qt), tile(2 * pb + 1, qt)
            ep.append([cvt(d, t0), cvt(d + 1, t0 + 2), cvt(d + 2, t1), cvt(d + 3, t1 + 2),
                       f"s_mov_b32 s3, {2560 * qt + 1024 * pb}",
                       f"buffer_store_dwordx4 {v(d, 4)}, {v(AP)}, {s(R_P, 4)}, s3 offen sc1"])
    for qt in range(3):
        d = PK + 24 + 2 * qt
        ep.append([cvt(d, tile(4, qt)), cvt(d + 1, tile(4, qt) + 2), f"s_mov_b32 s3, {2560 * qt}",
                   f"buffer_store_dwordx2 {v(d, 2)}, {v(AP2)}, {s(R_P, 4)}, s3 offen sc1"])
    flat = sum(ep, [])
    emit(a, place(p4_mfmas(1), spread(flat[:12], 9, 2)))
    emit(a, flat[12:])
    jitter(a, cfg, 4)
    st.cyc("pstore")
    if not cfg.sent:
        a("s_waitcnt vmcnt(0)")
    elif cfg.sent > 1:
        a(f"s_waitcnt vmcnt({cfg.sent})")
    a(f"s_mov_b64 exec, {15 if cfg.pfl & 2 else 1}")
    a(f"buffer_store_dwordx2 {v(TG, 2)}, {v(FL2)}, {s(R_F, 4)}, {s(S_F2)} offen sc1")
    st.cyc("flag2")
    st.real("real1")
    st.flush("C")
    a.label("L_last")
    a("s_endpgm")


def gen_loader(a, cfg):
    st = Stamps(a, cfg)
    R_X, R_WQ, R_K, R_V, R_WO = 8, 12, 16, 20, 56
    R_OI, R_PI, R_OUT = 12, 16, 20
    S_LW, S_SW, S_SX, S_LDS, S_N, S_KK, S_PK = 50, 51, 52, 53, 54, 55, 49
    S_MW, S_MX, S_LDO = 62, 63, 7
    OW, OX, OK_, OV, OWO, OO = 16, 22, 25, 34, 43, 48
    RRc, UUc = 52, 55
    AT, AF1, AF2, TG, PT = 58, 59, 60, 62, 64
    A0, A1, RT, JK, AT2 = 66, 67, 68, 74, 75
    T0, T1, T2 = 4, 5, 6

    if cfg.lprio:
        a("s_setprio 3")
    if cfg.only and "k0" in st.only:
        a("s_waitcnt lgkmcnt(0)")
        st.cyc("k0")
    a(f"s_sub_u32 {s(S_LW)}, {s(S_WAVE)}, 4")
    for c in range(3):
        a(f"v_add_u32 {v(T0)}, {64 * c}, v0")
        a(f"v_mul_u32_u24 {v(T1)}, 2731, {v(T0)}")
        a(f"v_lshrrev_b32 {v(RRc + c)}, 16, {v(T1)}")
        a(f"v_mul_u32_u24 {v(T1)}, 24, {v(RRc + c)}")
        a(f"v_sub_u32 {v(UUc + c)}, {v(T0)}, {v(T1)}")
    a(f"s_mul_i32 s3, {s(S_LW)}, 3")
    a(f"v_lshrrev_b32 {v(T2)}, 4, v0")
    a("v_and_b32 v7, 7, v0")
    a("v_lshrrev_b32 v8, 3, v0")
    for c in range(3):
        a(f"s_add_u32 s4, s3, {c}")
        a("s_lshl_b32 s6, s4, 3")
        a("s_and_b32 s4, s4, 1")
        a("s_lshl_b32 s4, s4, 2")
        a(f"v_or_b32 {v(T0)}, s4, {v(T2)}")
        a(f"v_xor_b32 {v(T0)}, {v(T0)}, v7")
        a(f"v_add_u32 {v(T1)}, s6, v8")
        a(f"v_mul_u32_u24 {v(T1)}, 1280, {v(T1)}")
        a(f"v_lshl_add_u32 {v(OX + c)}, {v(T0)}, 4, {v(T1)}")
    a(f"s_lshl_b32 s3, {s(S_LW)}, 4")
    for c in range(3):
        a(f"v_bfe_u32 {v(T0)}, {v(RRc + c)}, 1, 1")
        a(f"v_lshlrev_b32 {v(T0)}, 1, {v(T0)}")
        a(f"v_xor_b32 {v(T0)}, {v(T0)}, {v(UUc + c)}")
        a(f"v_add_u32 {v(T1)}, s3, {v(RRc + c)}")
        a(f"v_mul_u32_u24 {v(T1)}, 12288, {v(T1)}")
        a(f"v_lshl_add_u32 {v(OW + c)}, {v(T0)}, 4, {v(T1)}")
        a(f"v_xor_b32 {v(T0)}, 64, {v(OW + c)}")
        a(f"v_add_u32 {v(OW + 3 + c)}, {8 * 12288}, {v(T0)}")
    a(f"s_mul_i32 {s(S_MW)}, {s(S_LW)}, 6144")
    a(f"s_mul_i32 {s(S_MX)}, {s(S_LW)}, 3072")
    a(f"s_add_u32 {s(S_MX)}, {s(S_MX)}, 24576")
    fb = {8: [0, 2, 4, 6, 8, 0, 2, 4], 9: [0, 5, 0, 5, 0, 5, 0, 5], 10: [0, 3, 5, 8, 0, 3, 5, 8],
          11: [0, 3, 7, 0, 3, 7, 0, 3]}[cfg.rot]
    word = sum(x << (4 * i) for i, x in enumerate(fb))
    a(f"s_lshl_b32 s3, {s(S_B)}, 2")
    a(f"s_lshr_b32 s3, {word:#x}, s3")
    a("s_and_b32 s3, s3, 15")
    a(f"s_lshl_b32 s4, {s(S_HH)}, 2")
    a("s_lshr_b32 s4, 0x8530, s4")
    a("s_and_b32 s4, s4, 15")
    a("s_add_u32 s3, s3, s4")
    a(f"s_add_u32 {s(S_KK)}, s3, {s(S_G8)}")
    mod_small(a, s(S_KK), 10, 2)
    a(f"s_mov_b32 {s(S_LDS)}, 0")
    a(f"s_mul_i32 s3, {s(S_B)}, 122880")
    a(f"s_mul_i32 s5, {s(S_H)}, 384")
    a("s_sub_u32 s4, 7864320, s5")
    st.cyc("pre", True) if cfg.only else None
    a("s_waitcnt lgkmcnt(0)")
    st.cyc("karg", True)
    srd(a, R_X, S_X, "s3", 122880)
    srd(a, R_WQ, S_WQ, "s5", "s4")

    def stage_body():
        a(f"s_mul_i32 {s(S_SW)}, {s(S_KK)}, {64 * 12288}")
        a(f"s_lshl_b32 {s(S_SX)}, {s(S_KK)}, 7")
        a(f"s_add_u32 s3, {s(S_LDS)}, {s(S_MW)}")
        a(f"s_add_u32 s4, {s(S_LDS)}, {s(S_MX)}")
        for c in range(3):
            dma(a, OX + c, R_X, s(S_SX), "s4", 1024 * c)
        for p in range(6):
            dma(a, OW + p, R_WQ, s(S_SW), "s3", 1024 * p, "nt" if cfg.ntkv & 8 else "")
        a(f"s_add_u32 {s(S_KK)}, {s(S_KK)}, 1")
        a(f"s_cmp_eq_u32 {s(S_KK)}, 10")
        a(f"s_cselect_b32 {s(S_KK)}, 0, {s(S_KK)}")
        a(f"s_add_u32 {s(S_LDS)}, {s(S_LDS)}, {SLOT}")
        a(f"s_cmp_eq_u32 {s(S_LDS)}, {3 * SLOT}")
        a(f"s_cselect_b32 {s(S_LDS)}, 0, {s(S_LDS)}")

    def call(lbl):
        a(f"s_call_b64 s[44:45], {lbl}")
    stage_body()
    if cfg.lprio:
        a("s_setprio 0")
    st.cyc("issued")
    a(f"s_lshl_b32 s3, {s(S_B)}, 7")
    a(f"s_add_u32 s3, s3, {OFF_F + FX}")
    a(f"s_add_u32 s4, {s(S_WS)}, s3")
    a(f"s_addc_u32 s5, {s(S_WS + 1)}, 0")
    a(f"s_load_dwordx2 {s(S_TAG, 2)}, s[4:5], 0")
    if cfg.kpos >= 9:
        table = {9: [1, 2, 3, 4, 5, 6, 7, 8], 11: [8, 8, 7, 7, 6, 6, 5, 5], 12: [8, 7, 6, 5, 8, 4, 3, 2],
                 13: [1, 8, 1, 8, 1, 8, 1, 8], 14: [1, 1, 8, 1, 1, 8, 1, 8],
                 20: [1, 8, 1, 1, 8, 1, 1, 8], 21: [1, 8, 8, 1, 8, 8, 1, 8], 22: [1, 8, 4, 1, 8, 4, 1, 8],
                 23: [1, 2, 1, 1, 2, 1, 1, 2], 24: [1, 8, 5, 3, 8, 6, 1, 8], 25: [0, 8, 1, 0, 8, 1, 0, 8],
                 26: [1, 8, 1, 8, 1, 8, 1, 8], 27: [0, 8, 0, 8, 0, 8, 0, 8]}[cfg.kpos]
        word = sum(x << (4 * i) for i, x in enumerate(table))
        if cfg.kpos < 20:
            a(f"s_add_u32 s3, {s(S_B)}, {s(S_G8)}")
            a("s_and_b32 s3, s3, 7")
            a("s_lshl_b32 s3, s3, 2")
        else:
            a(f"s_lshl_b32 s3, {s(S_B)}, 2")
        a(f"s_lshr_b32 s3, {word:#x}, s3")
        a(f"s_and_b32 {s(S_PK)}, s3, 15")
    else:
        a(f"s_mov_b32 {s(S_PK)}, {cfg.kpos}")
    a(f"s_lshl_b32 s3, {s(S_B)}, 5")
    a(f"s_add_u32 s3, s3, {s(S_H)}")
    a("s_mul_i32 s3, s3, 36864")
    srd(a, R_K, S_K, "s3", 36864)
    srd(a, R_V, S_V, "s3", 36864)
    srd(a, R_F, S_WS, f"{OFF_F}", 262144)
    a(f"s_mul_i32 s3, {s(S_LW)}, 24")
    a(f"s_and_b32 s4, {s(S_LW)}, 1")
    a("s_lshl_b32 s4, s4, 6")
    for c in range(3):
        a(f"v_lshrrev_b32 {v(T0)}, 1, {v(RRc + c)}")
        a(f"v_add_u32 {v(T1)}, s3, {v(RRc + c)}")
        a(f"v_mul_u32_u24 {v(T1)}, 384, {v(T1)}")
        a(f"v_xor_b32 {v(T2)}, {v(T0)}, {v(UUc + c)}")
        a(f"v_lshl_add_u32 {v(T2)}, {v(T2)}, 4, {v(T1)}")
        a(f"v_xor_b32 {v(OK_ + c)}, s4, {v(T2)}")
        a(f"v_xor_b32 {v(T2)}, 64, {v(OK_ + c)}")
        a(f"v_add_u32 {v(OK_ + 3 + c)}, 3072, {v(T2)}")
        a(f"v_add_u32 {v(OK_ + 6 + c)}, 6144, {v(OK_ + c)}")
        a(f"v_lshlrev_b32 {v(T2)}, 1, {v(T0)}")
        a(f"v_xor_b32 {v(T2)}, {v(T2)}, {v(UUc + c)}")
        a(f"v_lshl_add_u32 {v(OV + c)}, {v(T2)}, 4, {v(T1)}")
        a(f"v_add_u32 {v(OV + 3 + c)}, 3072, {v(OV + c)}")
        a(f"v_add_u32 {v(OV + 6 + c)}, 6144, {v(OV + c)}")
    a(f"s_mul_i32 s3, {s(S_G8)}, 983040")
    a(f"s_mul_i32 s4, {s(S_HH)}, 320")
    a("s_add_u32 s3, s3, s4")
    a("s_sub_u32 s4, 7864320, s3")
    srd(a, R_WO, S_WO, "s3", "s4")
    if cfg.tpos == 1:
        a(f"s_mul_i32 s3, {s(S_G8)}, 983040")
        srd(a, 96, S_WO, "s3", 983040)
    if cfg.tx:
        a("s_lshr_b32 s3, s2, 3")
        a("s_lshl_b32 s3, s3, 2")
        a(f"s_add_u32 s3, s3, {s(S_LW)}")
        a("s_mul_i32 s3, s3, 7680")
        a(f"v_min_u32 {v(T0)}, 59, v0")
        a(f"v_lshl_add_u32 {v(AT)}, {v(T0)}, 7, s3")
    else:
        a(f"s_lshl_b32 s3, {s(S_B)}, 2")
        a(f"s_add_u32 s3, s3, {s(S_LW)}")
        a("s_mul_i32 s3, s3, 24")
        a(f"v_mul_u32_u24 {v(T1)}, 21846, v0")
        a(f"v_lshrrev_b32 {v(T1)}, 16, {v(T1)}")
        a(f"v_mul_u32_u24 {v(T2)}, 3, {v(T1)}")
        a(f"v_sub_u32 {v(T0)}, v0, {v(T2)}")
        a(f"v_add_u32 {v(T1)}, s3, {v(T1)}")
        a(f"v_mul_u32_u24 {v(T1)}, 1280, {v(T1)}")
        a(f"v_lshl_add_u32 {v(AT)}, {v(T0)}, 7, {v(T1)}")
        a(f"v_min_u32 {v(T0)}, 7, v0")
        a(f"v_add_u32 {v(T0)}, 64, {v(T0)}")
        a(f"v_mul_u32_u24 {v(T1)}, 21846, {v(T0)}")
        a(f"v_lshrrev_b32 {v(T1)}, 16, {v(T1)}")
        a(f"v_mul_u32_u24 {v(T2)}, 3, {v(T1)}")
        a(f"v_sub_u32 {v(T0)}, {v(T0)}, {v(T2)}")
        a(f"v_add_u32 {v(T1)}, s3, {v(T1)}")
        a(f"v_mul_u32_u24 {v(T1)}, 1280, {v(T1)}")
        a(f"v_lshl_add_u32 {v(AT2)}, {v(T0)}, 7, {v(T1)}")
    if cfg.lprio == 2:
        a("s_setprio 3")
    stage_body()

    def issue_kv(off, srd_, base):
        a(f"s_mul_i32 s3, {s(S_LW)}, 9216")
        a(f"s_add_u32 s3, s3, {base}")
        for p in range(9):
            dma(a, off + p, srd_, "0", "s3", 1024 * p, "nt" if cfg.ntkv & (1 if srd_ == R_K else 2) else "")
    a("s_waitcnt vmcnt(9)")
    jitter(a, cfg, 6)
    st.cyc("landed0")
    a("s_barrier")
    a(f"s_mov_b32 {s(S_N)}, 0")
    a.label("L_lloop")
    a(f"s_cmp_eq_u32 {s(S_N)}, {s(S_PK)}")
    a("s_cbranch_scc0 L_nok")
    call("L_sub_k")
    a.label("L_nok")
    stage_body()
    a("s_waitcnt vmcnt(9)")
    a("s_barrier")
    a(f"s_add_u32 {s(S_N)}, {s(S_N)}, 1")
    a(f"s_cmp_lt_u32 {s(S_N)}, 8")
    a("s_cbranch_scc1 L_lloop")
    st.cyc("b8")
    if cfg.tpos == 8:
        a(f"s_mul_i32 s3, {s(S_G8)}, 983040")
        srd(a, R_X, S_WO, "s3", 983040)
        a(f"buffer_load_dword {v(JK)}, {v(AT)}, {s(R_X, 4)}, 0 offen")
    a(f"s_cmp_eq_u32 {s(S_PK)}, 8")
    a("s_cbranch_scc0 L_vonly")
    call("L_sub_k")
    a(f"s_waitcnt vmcnt({10 if cfg.tpos == 1 else 9})")
    a("s_barrier")
    call("L_sub_v")
    a("s_branch L_kvdone")
    a.label("L_sub_k")
    issue_kv(OK_, R_K, A_K)
    if cfg.tpos == 1:
        a(f"buffer_load_dword {v(JK)}, {v(AT)}, s[96:99], 0 offen")
    a("s_setpc_b64 s[44:45]")
    a.label("L_sub_v")
    issue_kv(OV, R_V, A_V)
    a("s_setpc_b64 s[44:45]")
    a.label("L_sub_wo")
    a(f"s_mul_i32 {s(S_SW)}, {s(S_KK)}, {64 * 1280}")
    a(f"s_add_u32 s3, {s(S_LDS)}, {s(S_MW)}")
    for p in range(5):
        dma(a, OWO + p, R_WO, s(S_SW), "s3", 1024 * p)
    a(f"s_add_u32 {s(S_KK)}, {s(S_KK)}, 1")
    a(f"s_cmp_eq_u32 {s(S_KK)}, 12")
    a(f"s_cselect_b32 {s(S_KK)}, 0, {s(S_KK)}")
    a(f"s_add_u32 {s(S_LDS)}, {s(S_LDS)}, {WOS}")
    a(f"s_cmp_eq_u32 {s(S_LDS)}, {4 * WOS}")
    a(f"s_cselect_b32 {s(S_LDS)}, 0, {s(S_LDS)}")
    a("s_setpc_b64 s[44:45]")
    a.label("L_sub_o")
    a(f"s_mul_i32 {s(S_SX)}, {s(S_PK)}, {OS}")
    a(f"s_add_u32 m0, {s(S_LDO)}, {s(S_MX)}")
    a(f"s_add_u32 {s(S_PK)}, {s(S_PK)}, 1")
    for c in range(3):
        a(f"buffer_load_dwordx4 {v(OO)}, {s(R_OI, 4)}, {s(S_SX)} offen offset:{1024 * c} {['sc1', '', 'nt'][cfg.unsafe % 9]} lds")
    a(f"s_cmp_eq_u32 {s(S_PK)}, 12")
    a(f"s_cselect_b32 {s(S_PK)}, 0, {s(S_PK)}")
    a(f"s_add_u32 {s(S_LDO)}, {s(S_LDO)}, {OS}")
    a(f"s_cmp_eq_u32 {s(S_LDO)}, {6 * OS}")
    a(f"s_cselect_b32 {s(S_LDO)}, 0, {s(S_LDO)}")
    a("s_setpc_b64 s[44:45]")
    a.label("L_vonly")
    call("L_sub_v")
    a("s_waitcnt vmcnt(9)")
    a("s_barrier")
    a.label("L_kvdone")
    a("s_waitcnt vmcnt(9)")
    jitter(a, cfg, 7)
    st.cyc("Kland")
    a("s_barrier")
    if cfg.tx:
        a(f"s_mul_i32 s3, {s(S_G8)}, 983040")
        srd(a, R_X, S_WO, "s3", 983040)
        touch = f"buffer_load_dword {v(JK)}, {v(AT)}, {s(R_X, 4)}, 0 offen"
    else:
        touch = (f"buffer_load_dword {v(JK)}, {v(AT)}, {s(R_WO, 4)}, 0 offen\n"
                 f"buffer_load_dword {v(JK + 2)}, {v(AT2)}, {s(R_WO, 4)}, 0 offen")
    if cfg.tpos == 10:
        a(touch)
    a(f"s_lshl_b32 s3, {s(S_B)}, 3")
    a(f"s_add_u32 s3, s3, {s(S_G8)}")
    a(f"s_mul_i32 s3, s3, {4 * 36864}")
    srd(a, R_OI, S_WS, "s3", 4 * 36864)
    a(f"s_lshl_b32 s3, {s(S_B)}, 2")
    a(f"s_add_u32 s3, s3, {s(S_HH)}")
    a(f"s_mul_i32 s3, s3, {8 * PSZ}")
    a(f"s_add_u32 s3, s3, {OFF_P}")
    srd(a, R_PI, S_WS, "s3", 8 * PSZ)
    a(f"s_mul_i32 {s(S_MW)}, {s(S_LW)}, 5120")
    a(f"s_add_u32 {s(S_MW)}, {s(S_MW)}, {WO0}")
    a(f"s_mul_i32 {s(S_MX)}, {s(S_LW)}, 3072")
    a(f"s_mul_i32 {s(S_KK)}, {s(S_HH)}, 3")
    a(f"s_add_u32 {s(S_PK)}, {s(S_KK)}, 3")
    a(f"s_cmp_eq_u32 {s(S_PK)}, 12")
    a(f"s_cselect_b32 {s(S_PK)}, 0, {s(S_PK)}")
    a(f"s_mov_b32 {s(S_LDS)}, {WOS}")
    a(f"s_mov_b32 {s(S_LDO)}, {3 * OS}")
    a("s_barrier")
    if cfg.lprio == 2:
        a("s_setprio 0")
    if cfg.tpos == 11:
        a(touch)
    a(f"s_lshl_b32 s3, {s(S_LW)}, 4")
    for c in range(5):
        a(f"v_add_u32 {v(T0)}, {64 * c}, v0")
        a(f"v_mul_u32_u24 {v(T1)}, 3277, {v(T0)}")
        a(f"v_lshrrev_b32 {v(T1)}, 16, {v(T1)}")
        a(f"v_mul_u32_u24 {v(T2)}, 20, {v(T1)}")
        a(f"v_sub_u32 {v(T0)}, {v(T0)}, {v(T2)}")
        a(f"v_lshrrev_b32 {v(T2)}, 1, {v(T1)}")
        a(f"v_and_b32 {v(T2)}, 2, {v(T2)}")
        a(f"v_xor_b32 {v(T0)}, {v(T0)}, {v(T2)}")
        a(f"v_add_u32 {v(T1)}, s3, {v(T1)}")
        a(f"v_mul_u32_u24 {v(T1)}, 1280, {v(T1)}")
        a(f"v_lshl_add_u32 {v(OWO + c)}, {v(T0)}, 4, {v(T1)}")
    a(f"v_lshl_add_u32 {v(OO)}, v0, 4, {s(S_MX)}")
    a(f"s_lshl_b32 s3, {s(S_B)}, 5")
    a(f"s_add_u32 s3, s3, {s(S_H)}")
    if not cfg.pfl & 1:
        a("s_lshr_b32 s3, s3, 2")
    a("s_lshl_b32 s3, s3, 7")
    a(f"v_and_b32 {v(T0)}, 15, v0")
    a(f"v_lshl_add_u32 {v(AF1)}, {v(T0)}, 3, s3")
    a("s_waitcnt lgkmcnt(0)")
    a(f"s_add_u32 {s(S_TAG)}, {s(S_TAG)}, {TAGC[0]:#x}")
    a(f"s_addc_u32 {s(S_TAG + 1)}, {s(S_TAG + 1)}, {TAGC[1]:#x}")
    a(f"v_mov_b32 {v(TG)}, {s(S_TAG)}")
    a(f"v_mov_b32 {v(TG + 1)}, {s(S_TAG + 1)}")
    a(f"v_mov_b32 {v(T0)}, {A_TAG}")
    a(f"ds_write_b64 {v(T0)}, {v(TG, 2)}")
    a(f"s_waitcnt vmcnt({(1 if cfg.tx else 2) if cfg.tpos in (10, 11) else 0}) lgkmcnt(0)")
    jitter(a, cfg, 8)
    st.cyc("Vland")
    if cfg.lprio == 2:
        a("s_setprio 3")
    a("s_barrier")
    if cfg.tpos == 12:
        a(touch)
    a(f"s_mul_i32 s3, {s(S_B)}, 122880")
    a(f"s_mul_i32 s4, {s(S_HH)}, 320")
    a("s_add_u32 s3, s3, s4")
    a("s_sub_u32 s4, 983040, s3")
    srd(a, R_OUT, S_OUT, "s3", "s4")
    assert cfg.w12 <= 2
    for _ in range(cfg.w12):
        call("L_sub_wo")
    a("s_barrier")
    for _ in range(cfg.w13):
        call("L_sub_wo")

    def poll(name, vaddr):
        a(f"s_mov_b32 s3, {SPIN_MAX}")
        a.label(name)
        a(f"buffer_load_dwordx2 {v(PT, 2)}, {v(vaddr)}, {s(R_F, 4)}, 0 offen sc1")
        a("s_sub_u32 s3, s3, 1")
        a("s_cmp_eq_u32 s3, 0")
        a(f"s_cbranch_scc1 {name}_out")
        a("s_waitcnt vmcnt(0)")
        a(f"v_cmp_ne_u64 vcc, {v(PT, 2)}, {v(TG, 2)}")
        a("s_nop 1")
        a(f"s_cbranch_vccnz {name}")
        a.label(name + "_out")
        a("s_waitcnt vmcnt(0)")

    BARS = ["B0", "B1", "B2", "BX"] + [f"B{n}" for n in range(3, 12)]
    own_mask = "s[4:5]"

    def run(path, tokens, state, alts):
        q, nwo, no, bi = state
        q = list(q)
        for k, ch in enumerate(tokens):
            free = -1 if bi < 2 else (bi - 2 if bi <= 4 else bi - 3)
            if ch == "w":
                assert nwo <= max(3, free + 4), (path, k, nwo, free)
                call("L_sub_wo")
                q.append((nwo, 5))
                nwo += 1
            elif ch == "o":
                assert no <= max(5, free + 6), (path, k, no, free)
                call("L_sub_o")
                q.append((no, 3))
                no += 1
            elif ch == "c":
                if cfg.sent:
                    a("s_mov_b32 s3, 4096")
                    for kk in range(8):
                        a(f"buffer_store_dwordx4 {v(CL, 4)}, {v(ACL)}, {s(R_PO, 4)}, {'s3' if kk >= 4 else '0'} offen offset:{1024 * (kk % 4)} sc1")
                    q.append((11, 8))
            elif ch == "p":
                a(f"buffer_load_dwordx2 {v(PT, 2)}, {v(AF1)}, {s(R_F, 4)}, 0 offen sc1")
                q.append((99, 1))
            elif ch in "ab":
                last = max(i for i, (kk, _) in enumerate(q) if kk == 99)
                a(f"s_waitcnt vmcnt({sum(c for _, c in q[last + 1:])})")
                q = q[last + 1:]
                a(f"v_cmp_ne_u64 vcc, {v(PT, 2)}, {v(TG, 2)}")
                a("s_nop 1")
                a(f"s_and_b64 s[4:5], vcc, {s(S_OM, 2)}")
                a(f"s_cbranch_scc0 L_path_{ch}")
                alts[ch] = (q, nwo, no, bi)
            elif ch == "s":
                poll("L_poll1", AF1)
                q = []
            elif ch == "|":
                name = BARS[bi]
                need = {"BX": -1}.get(name, int(name[1:]) if name != "BX" else -1)
                if need >= 0:
                    assert nwo > need and (need < 3 or no > need), (path, name)
                    last = max([i for i, (kk, _) in enumerate(q) if kk <= need] + [-1])
                    cnt = sum(c for _, c in q[last + 1:])
                    if last >= 0:
                        a(f"s_waitcnt vmcnt({cnt})")
                    q = q[last + 1:]
                a("s_barrier")
                bi += 1
        assert bi == len(BARS) and nwo == 12 and no == 12, (path, bi, nwo, no)
    CL, ACL, R_PO = 112, 116, 8
    if cfg.sent:
        a(f"s_lshl_b32 s3, {s(S_B)}, 2")
        a(f"s_add_u32 s3, s3, {s(S_HH)}")
        a("s_lshl_b32 s3, s3, 3")
        a(f"s_add_u32 s3, s3, {s(S_G8)}")
        a(f"s_mul_i32 s3, s3, {PSZ}")
        a(f"s_add_u32 s3, s3, {OFF_P}")
        srd(a, R_PO, S_WS, "s3", PSZ)
        a(f"s_mul_i32 s3, {s(S_LW)}, 7680")
        a(f"v_lshl_add_u32 {v(ACL)}, v0, 4, s3")
        for kk in range(4):
            a(f"v_mov_b32 {v(CL + kk)}, -1")
    S_OM = 4 * 0 + 40
    a(f"s_lshl_b32 s3, {s(S_HH)}, 2")
    a("s_lshl_b32 s3, 0x000f000f, s3")
    a(f"s_not_b32 {s(S_OM)}, s3")
    a(f"s_mov_b32 {s(S_OM + 1)}, {s(S_OM)}")
    a("s_barrier")
    jitter(a, cfg, 10)
    if cfg.tpos == 15:
        a(touch)
    tabs = {
        1: dict(N="wp a|ww|wp|b|ww s ooo|wo|wo|wo|wo|wo|wo|||",
                a="|ww|w ooo||w|wo|wo|wo|wo|wo|wo|w||",
                b="ooo|w|wo|wo|wo|wo|wo|wo|w||"),
        2: dict(N="wp a|ww|wp|b|ww s ooo|wo|wo|wo|wo|wo|wo|||",
                a="|ww|w ooo||w|wwo|wo|wo|wo|wo|wo|||",
                b="ooo|w|wwo|wo|wo|wo|wo|wo|||"),
        3: dict(N="wp a|ww|wp|b|www s ooo|ooo|w|w|w|oo|w|wo||",
                a="|ww|w ooo||ww|wo|wo|wo|wo|wo|wo|||",
                b="ooo|ww|wo|wo|wo|wo|wo|wo|||"),
        4: dict(N="w|ww|wp|b|ww s ooo|wo|wo|wo|wo|wo|woc|||",
                b="ooo|w|wo|wo|wo|wo|wo|wo|wc||"),
        8: dict(N="wp|ww a|wp|b|ww s ooo|wo|wo|wo|wo|wo|wo|||",
                a="ooo|w||w|wo|wo|wo|wo|wo|wo|w||",
                b="ooo|w|wo|wo|wo|wo|wo|wo|w||"),
        9: dict(N="w|wpw a|wp|b|ww s ooo|wo|wo|wo|wo|wo|wo|||",
                a="ooo|w||w|wo|wo|wo|wo|wo|wo|w||",
                b="ooo|w|wo|wo|wo|wo|wo|wo|w||"),
        10: dict(N="w|wwp|a wp|b|ww s ooo|wo|wo|wo|wo|wo|wo|||",
                 a="w ooo||w|wo|wo|wo|wo|wo|wo|w||",
                 b="ooo|w|wo|wo|wo|wo|wo|wo|w||"),
        11: dict(N="w|wwp|a wp|b|ww s ooo|wo|wo|wo|wo|wo|wo|||",
                 a="w oo||wo|wo|wo|wo|wo|wo|wo|w||",
                 b="oo|wo|wo|wo|wo|wo|wo|wo|w||"),
        12: dict(N="w|ww|pw|b|ww s ooo|wo|wo|wo|wo|wo|wo|||",
                 b="ooo|w|wo|wo|wo|wo|wo|wo|w||"),
        13: dict(N="w|ww|pw|b|ww s ooo|wo|wo|wo|wo|wo|wo|||",
                 b="ooo|w|wwo|wo|wo|wo|wo|wo|||"),
        14: dict(N="w|ww|pw|b wp|a w s ooo|wo|wo|wo|wo|wo|wo|||" if False else "w|ww|pw|b|wp a w s ooo|wo|wo|wo|wo|wo|wo|||",
                 a="ooo w|wo|wo|wo|wo|wo|wo|||",
                 b="ooo|w|wo|wo|wo|wo|wo|wo|w||"),
        15: dict(N="w|ww|w|p|w b w s ooo|wo|wo|wo|wo|wo|wo|||",
                 b="ooo w|wo|wo|wo|wo|wo|wo|||"),
        16: dict(N="w|www|p|b|ww s ooo|wo|wo|wo|wo|wo|wo|||",
                 b="ooo|w|wo|wo|wo|wo|wo|wo|w||"),
        7: dict(N="w|ww|wp|b|ww s ooo|wo|wo|wo|wo|wo|wo|c||",
                b="ooo|w|wwo|wo|wo|wo|wo|woc|||"),
        5: dict(N="wp a|ww|wp|b|ww s ooo|wo|wo|wo|wo|wo|wo|||",
                a="|ww|w oo||wo|wo|wo|wo|wo|wo|wo|w||",
                b="oo|wo|wo|wo|wo|wo|wo|wo|w||"),
        6: dict(N="wp a|ww|wp|b|ww s ooo|wo|wo|wo|wo|wo|wo|||",
                a="|www ooo|||w|wwo|wo|wo|wo|wo|wo|||",
                b="ooo|w|wwo|wo|wo|wo|wo|wo|||"),
    }[cfg.tab]
    alts = {}
    npre = cfg.w12 + cfg.w13
    if npre == 1:
        tabs = dict(N="w|w|wp|b|ww s ooo|wo|wo|wo|wo|wo|wo|||", b=tabs["b"])
    elif npre == 2:
        tabs = dict(N="w||wp|b|ww s ooo|wo|wo|wo|wo|wo|wo|||", b=tabs["b"])
    elif npre == 3:
        tabs = dict(N="w||p|b|ww s ooo|wo|wo|wo|wo|wo|wo|||", b=tabs["b"])
    run("N", tabs["N"].replace(" ", ""), ([(k, 5) for k in range(npre)], npre, 3, 0), alts)
    a("s_branch L_final")
    for key in sorted(alts):
        a.label(f"L_path_{key}")
        run(key, tabs[key].replace(" ", ""), alts[key], {})
        if key != sorted(alts)[-1]:
            a("s_branch L_final")
    a.label("L_final")
    jitter(a, cfg, 9)
    OFFS = RT
    a(f"s_lshr_b32 s5, {s(S_G8)}, 2")
    if cfg.pfl & 2:
        a(f"s_lshl_b32 s3, {s(S_B)}, 5")
        a(f"s_add_u32 s3, s3, {s(S_H)}")
    else:
        a(f"s_lshl_b32 s3, {s(S_B)}, 2")
        a(f"s_add_u32 s3, s3, {s(S_HH)}")
        a("s_lshl_b32 s3, s3, 1")
        a("s_add_u32 s3, s3, s5")
    a("s_lshl_b32 s3, s3, 7")
    a(f"s_add_u32 s3, s3, {F2}")
    a(f"v_and_b32 {v(T0)}, 15, v0")
    a(f"v_lshl_add_u32 {v(AF2)}, {v(T0)}, 3, s3")
    a(f"s_and_b32 s6, {s(S_G8)}, 3")
    a("s_mul_i32 s6, s6, 3")
    a("s_mul_i32 s5, s5, 7680")
    a(f"s_mul_i32 s4, {s(S_G8)}, {0 if cfg.otr else 12 * 1280}")
    a(f"s_cmp_eq_u32 {s(S_LW)}, 3")
    a("s_cbranch_scc1 L_red3")
    a(f"s_add_u32 s6, s6, {s(S_LW)}")
    a("s_lshr_b32 s3, s6, 2")
    a("s_mul_i32 s3, s3, 2560")
    a("s_add_u32 s5, s5, s3")
    a("s_and_b32 s6, s6, 3")
    a("s_lshl_b32 s6, s6, 8")
    a("s_add_u32 s5, s5, s6")
    a(f"s_mul_i32 s3, {s(S_LW)}, {4 * (320 if cfg.otr else 1280)}")
    a("s_add_u32 s4, s4, s3")
    a("v_lshrrev_b32 v7, 5, v0")
    a("v_bfe_u32 v8, v0, 4, 1")
    a(f"v_mul_u32_u24 v9, 15360, v7")
    a("v_lshl_add_u32 v9, v8, 10, v9")
    a(f"v_lshl_add_u32 v9, {v(T0)}, 4, v9")
    a(f"v_add_u32 {v(OFFS)}, s5, v9")
    a("v_and_b32 v9, 3, v0")
    a(f"v_mul_u32_u24 v9, {320 if cfg.otr else 1280}, v9")
    a("v_mul_u32_u24 v7, 160, v7")
    a("v_lshl_add_u32 v7, v8, 6, v7")
    a("v_bfe_u32 v8, v0, 2, 2")
    a("v_lshl_add_u32 v7, v8, 3, v7")
    a("v_add3_u32 " + f"{v(A0)}, v7, v9, s4")
    a(f"v_add_u32 {v(A1)}, 32, {v(A0)}")
    a("s_branch L_red")
    a.label("L_red3")
    a("v_min_u32 v10, 47, v0")
    a("v_lshrrev_b32 v7, 4, v10")
    a("v_add_u32 v8, s6, v7")
    a("v_lshrrev_b32 v9, 2, v8")
    a("v_mul_u32_u24 v9, 2560, v9")
    a("v_and_b32 v8, 3, v8")
    a("v_lshl_add_u32 v9, v8, 7, v9")
    a("v_bfe_u32 v8, v10, 3, 1")
    a("v_mul_u32_u24 v11, 15360, v8")
    a("v_add_u32 v9, v9, v11")
    a("v_and_b32 v11, 7, v10")
    a("v_lshl_add_u32 v9, v11, 4, v9")
    a("s_add_u32 s5, s5, 2048")
    a(f"v_add_u32 {v(OFFS)}, s5, v9")
    a("v_and_b32 v11, 1, v10")
    a("v_lshl_add_u32 v7, v7, 1, v11")
    a(f"v_mul_u32_u24 v7, {640 if cfg.otr else 2560}, v7")
    a("v_mul_u32_u24 v8, 160, v8")
    a("v_bfe_u32 v11, v10, 1, 2")
    a("v_lshl_add_u32 v8, v11, 3, v8")
    a("s_add_u32 s4, s4, 128")
    a("v_add3_u32 " + f"{v(A0)}, v7, v8, s4")
    a(f"v_add_u32 {v(A1)}, {320 if cfg.otr else 1280}, {v(A0)}")
    a.label("L_red")
    if cfg.otr:
        a(f"s_lshl_b32 s4, {s(S_LW)}, 6")
        a("v_add_u32 v7, s4, v0")
        a("v_min_u32 v7, 239, v7")
        a(f"v_lshlrev_b32 {v(RT + 1)}, 4, v7")
        a("v_mul_u32_u24 v8, 3277, v7")
        a("v_lshrrev_b32 v8, 16, v8")
        a("v_mul_u32_u24 v8, 960, v8")
        a(f"s_mul_i32 s4, {s(S_G8)}, {12 * 1280}")
        a(f"v_add3_u32 {v(RT + 2)}, v8, {v(RT + 1)}, s4")
    D0, AC = 80, 148

    def load_part(g):
        a(f"s_mov_b32 s3, {PSZ * g}")
        a(f"buffer_load_dwordx4 {v(D0 + 4 * g, 4)}, {v(OFFS)}, {s(R_PI, 4)}, s3 offen {['sc1', '', 'nt', 'sc0 sc1', 'sc1 nt'][cfg.pld]}")
    if not cfg.dynred:
        poll("L_poll2", AF2)
        st.cyc("seen2")
        for g in range(8):
            load_part(g)
    elif cfg.dynred == 1:
        a(f"s_mov_b32 s7, {SPIN_MAX}")
        a("s_mov_b32 s6, 0")
        a.label("L_poll2")
        a(f"buffer_load_dwordx2 {v(PT, 2)}, {v(AF2)}, {s(R_F, 4)}, 0 offen sc1")
        a("s_sub_u32 s7, s7, 1")
        a("s_cmp_eq_u32 s7, 0")
        a("s_cbranch_scc1 L_poll2_out")
        a("s_waitcnt vmcnt(0)")
        a(f"v_cmp_eq_u64 vcc, {v(PT, 2)}, {v(TG, 2)}")
        a("s_nop 1")
        a("s_lshr_b32 s5, vcc_lo, 8")
        a("s_and_b32 s5, s5, vcc_lo")
        a("s_and_b32 s5, s5, 0xff")
        a("s_andn2_b32 s4, s5, s6")
        a("s_cbranch_scc0 L_poll2")
        a("s_or_b32 s6, s6, s5")
        for g in range(8):
            a(f"s_bitcmp1_b32 s4, {g}")
            a(f"s_cbranch_scc0 L_r{g}")
            load_part(g)
            a.label(f"L_r{g}")
        a("s_cmp_eq_u32 s6, 0xff")
        a("s_cbranch_scc0 L_poll2")
        a.label("L_poll2_out")
        st.cyc("seen2")
        a("s_waitcnt vmcnt(0)")
    else:
        U0 = 120
        a(f"s_mov_b32 s7, {SPIN_MAX}")
        a("s_mov_b32 s6, 0")
        a("s_mov_b32 s8, 0")
        a("s_mov_b32 s9, 0")
        a("s_branch L_poll2")
        a.label("L_widen")
        for g in range(8):
            a(f"s_bitcmp1_b32 s8, {g}")
            a(f"s_cbranch_scc0 L_u{g}")
            for r in range(4):
                a(f"v_lshlrev_b32 {v(U0 + 8 * g + 2 * r)}, 16, {v(D0 + 4 * g + r)}")
                a(f"v_and_b32 {v(U0 + 8 * g + 2 * r + 1)}, 0xffff0000, {v(D0 + 4 * g + r)}")
            a.label(f"L_u{g}")
        a("s_mov_b32 s8, 0")
        a("s_setpc_b64 s[44:45]")
        a.label("L_poll2")
        a(f"buffer_load_dwordx2 {v(PT, 2)}, {v(AF2)}, {s(R_F, 4)}, 0 offen sc1")
        a("s_cmp_eq_u32 s8, 0")
        a("s_cbranch_scc1 L_nowiden")
        call("L_widen")
        a.label("L_nowiden")
        a("s_sub_u32 s7, s7, 1")
        a("s_cmp_eq_u32 s7, 0")
        a("s_cbranch_scc1 L_poll2_out")
        a("s_waitcnt vmcnt(0)")
        a(f"v_cmp_eq_u64 vcc, {v(PT, 2)}, {v(TG, 2)}")
        a("s_mov_b32 s8, s9")
        a("s_mov_b32 s9, 0")
        a("s_and_b32 s5, vcc_lo, 0xff")
        a("s_andn2_b32 s9, s5, s6")
        a("s_cbranch_scc0 L_poll2")
        a("s_or_b32 s6, s6, s5")
        for g in range(8):
            a(f"s_bitcmp1_b32 s9, {g}")
            a(f"s_cbranch_scc0 L_r{g}")
            load_part(g)
            a.label(f"L_r{g}")
        a("s_cmp_eq_u32 s6, 0xff")
        a("s_cbranch_scc0 L_poll2")
        a.label("L_poll2_out")
        st.cyc("seen2")
        call("L_widen")
        a("s_mov_b32 s8, s9")
        a("s_waitcnt vmcnt(0)")
        call("L_widen")
        for g in range(1, 8):
            for r in range(4):
                a(f"v_pk_add_f32 {v(U0 + 2 * r, 2)}, {v(U0 + 2 * r, 2)}, {v(U0 + 8 * g + 2 * r, 2)}")
        AC = U0
    if cfg.sent:
        assert cfg.dynred
        a("s_mov_b32 s7, 4096")
        a.label("L_chk")
        a(f"v_max3_u32 v4, {v(D0)}, {v(D0 + 1)}, {v(D0 + 2)}")
        a(f"v_max3_u32 v5, {v(D0 + 3)}, {v(D0 + 4)}, {v(D0 + 5)}")
        for kk in range(6, 30, 4):
            a(f"v_max3_u32 v4, v4, {v(D0 + kk)}, {v(D0 + kk + 1)}")
            a(f"v_max3_u32 v5, v5, {v(D0 + kk + 2)}, {v(D0 + kk + 3)}")
        a(f"v_max3_u32 v4, v4, {v(D0 + 30)}, {v(D0 + 31)}")
        a("v_max_u32 v4, v4, v5")
        a("v_cmp_eq_u32 vcc, -1, v4")
        a("s_sub_u32 s7, s7, 1")
        a("s_cselect_b32 s6, 0, 1")
        a("s_and_b32 s4, vcc_lo, -1")
        a("s_or_b32 s4, s4, vcc_hi")
        a("s_cselect_b32 s6, s6, 0")
        a("s_cmp_eq_u32 s6, 0")
        a("s_cbranch_scc1 L_chk_ok")
        for g in range(8):
            load_part(g)
        a("s_waitcnt vmcnt(0)")
        a("s_branch L_chk")
        a.label("L_chk_ok")
        st.cyc("chk")
    for g in range(8 if cfg.dynred < 2 else 0):
        if not cfg.dynred:
            a(f"s_waitcnt vmcnt({7 - g})")
        for r in range(4):
            src = D0 + 4 * g + r
            if g == 0:
                a(f"v_lshlrev_b32 {v(AC + 2 * r)}, 16, {v(src)}")
                a(f"v_and_b32 {v(AC + 2 * r + 1)}, 0xffff0000, {v(src)}")
            else:
                t = 4 + 2 * (r % 2)
                a(f"v_lshlrev_b32 {v(t)}, 16, {v(src)}")
                a(f"v_and_b32 {v(t + 1)}, 0xffff0000, {v(src)}")
                a(f"v_pk_add_f32 {v(AC + 2 * r, 2)}, {v(AC + 2 * r, 2)}, {v(t, 2)}")
    for r in range(4):
        a(cvt(D0 + r, AC + 2 * r))
    fl = ['', 'sc1', 'nt', 'sc0 sc1'][cfg.outfl]
    jitter(a, cfg, 11)
    if cfg.otr:
        a(f"ds_write_b64 {v(A0)}, {v(D0, 2)}")
        a(f"ds_write_b64 {v(A1)}, {v(D0 + 2, 2)}")
        a(lg(0))
        a("s_barrier")
        a(f"ds_read_b128 {v(D0 + 4, 4)}, {v(RT + 1)}")
        a(lg(0))
        a(f"buffer_store_dwordx4 {v(D0 + 4, 4)}, {v(RT + 2)}, {s(R_OUT, 4)}, 0 offen {fl}")
    elif cfg.unsafe == 9:
        a("s_mul_i32 s3, s2, 3840")
        srd(a, 8, S_OUT, "s3", 3840)
        a(f"v_lshlrev_b32 v7, 4, v7")
        a(f"buffer_store_dwordx4 {v(D0, 4)}, v7, s[8:11], 0 offen {fl}")
    else:
        a(f"buffer_store_dwordx2 {v(D0, 2)}, {v(A0)}, {s(R_OUT, 4)}, 0 offen {fl}")
        a(f"buffer_store_dwordx2 {v(D0 + 2, 2)}, {v(A1)}, {s(R_OUT, 4)}, 0 offen {fl}")
    a(f"s_or_b32 s3, {s(S_H)}, {s(S_LW)}")
    a("s_cmp_eq_u32 s3, 0")
    a("s_cbranch_scc0 L_noep")
    a(f"s_lshl_b32 s3, {s(S_B)}, 7")
    a(f"s_add_u32 s3, s3, {FX}")
    a("v_mov_b32 v4, 0")
    a("s_mov_b64 exec, 1")
    a(f"buffer_store_dwordx2 {v(TG, 2)}, v4, {s(R_F, 4)}, s3 offen")
    a.label("L_noep")
    if cfg.diag:
        a("s_waitcnt vmcnt(0)")
    st.cyc("end")
    st.real("real1")
    st.flush("L")


HEADER = """
GQA block (B=8, Sq=Sk=96, D=640, H=32, Dh=192), one launch, one workgroup per (batch b, head h).
Kernarg: x +0, k_cache +8, v_cache +16, wq +24, wo +32, out +40, debug +48, workspace +56.
Workgroup id = (b*4 + h%4)*8 + h/4, so the four heads of a head group and all batches of that group share
an XCD under round-robin placement (speed only; every hand-off below is placement independent).

Waves 4..7 stream operands into LDS with LDS-DMA, waves 0..3 (2 x 2 tiles of 16x16x32 bf16 MFMA) compute:
  1. Q^T = wq_h^T x_b^T          ten 64-deep stages through a ring of three LDS slots
  2. S^T = K Q^T, row max over all 96 keys (exchanged between wave pairs), P = exp2(c (S - max))
  3. O^T = V^T P^T / rowsum      (row sums from an extra MFMA with a ones operand)
  4. O goes to the workspace (write-through stores, then a flag); the workgroup takes the O of the other
     three heads of its group and multiplies the 96 x 768 block by a 768 x 160 slice of wo
  5. the 96 x 160 partial product goes to the workspace in bf16 (write-through, then flags); workgroup
     (b, h) sums rows 12*(h/4).. +11 of the eight head groups' partials in f32 and writes the output.

Workspace: +0 O tiles (256 x 36864 B), +16 MiB partial tiles (256 x 30720 B), +32 MiB flags and epoch words.
A flag is valid when it equals this launch's tag = (epoch word of the batch) + constant; the epoch word is
read before any flag of the workgroup is written and is set to the tag once the whole batch has read it,
so flags left by an earlier launch never match.
"""


def generate(cfg):
    a = Asm()
    for ln in HEADER.strip("\n").split("\n"):
        a.lines.append(("; " + ln).rstrip())
    a.lines.append("; @launch grid=(256,1,1) block=(512,1,1) lds=163840")
    a('.amdgcn_target "amdgcn-amd-amdhsa--gfx950"')
    a(".text")
    a(kernel_header(KN))
    a("s_cmp_ge_u32 s2, 256")
    a("s_cbranch_scc1 L_end")
    a("s_load_dwordx16 s[32:47], s[0:1], 0")
    if cfg.diag:
        a(f"s_memrealtime {s(S_T, 2)}")
        a(f"s_memtime {s(S_T + 2, 2)}")
    a("v_lshrrev_b32 v1, 6, v0")
    a("v_and_b32 v0, 63, v0")
    a(f"v_readfirstlane_b32 {s(S_WAVE)}, v1")
    a(f"s_and_b32 {s(S_G8)}, s2, 7")
    a("s_lshr_b32 s4, s2, 3")
    a(f"s_lshr_b32 {s(S_B)}, s4, 2")
    a(f"s_and_b32 {s(S_HH)}, s4, 3")
    a(f"s_lshl_b32 s3, {s(S_G8)}, 2")
    a(f"s_add_u32 {s(S_H)}, s3, {s(S_HH)}")
    a(f"s_cmp_ge_u32 {s(S_WAVE)}, 4")
    a("s_cbranch_scc1 L_loader")
    if cfg.ipf:
        a("s_getpc_b64 s[62:63]")
        a.label("L_pc")
        a(f"s_sub_u32 s62, s62, L_pc-{KN}")
        a("s_subb_u32 s63, s63, 0")
        a(f"s_mul_i32 s3, {s(S_WAVE)}, 28")
        a("v_min_u32 v7, 27, v0")
        a("v_add_u32 v7, s3, v7")
        a("v_lshlrev_b32 v7, 7, v7")
        a(f"v_min_u32 v7, L_last-{KN}, v7")
        if cfg.ipf & 1:
            a("global_load_dword v14, v7, s[62:63]")
    a("s_branch L_compute")
    a.label("L_loader")
    gen_loader(a, cfg)
    a.label("L_end")
    a("s_endpgm")
    a.label("L_compute")
    gen_compute(a, cfg)
    a('.section .rodata,"a"')
    a(".p2align 6")
    a(kernel_desc(KN))
    return a.text()


if __name__ == "__main__":
    cfg = Cfg()
    out = sys.argv[1]
    for opt in sys.argv[2:]:
        k, val = opt.split("=")
        assert hasattr(cfg, k), k
        setattr(cfg, k, val if k == "only" else int(val))
    t = generate(cfg)
    pr = hazard.check(t) + hazard.check_counters(t)
    for p in pr:
        print(f"HAZARD line {p[0]} -> {p[1]}: need {p[2]} have {p[3]}\n    {p[4]}\n    {p[5]}")
    open(out, "w").write(t)
    print(out, "hazards:", len(pr), "lines:", t.count("\n"))
```

```python
import struct
import sys

from asmlib import Asm, v, s, kernel_header, kernel_desc
import hazard

KN = "standalone__gqa_block_cached__near_ridge_kernel"
OFF_O = 0
OFF_P = 16 << 20
OFF_F = 32 << 20
F1, F2, FX = 0, 65536, 131072
OFF_T = 64 << 20
SLOT = 36864
A_K = 3 * SLOT
A_V = 1 * SLOT
A_Q = 2 * SLOT
A_P = 2 * SLOT
A_M = 163840 - 768
A_TAG = A_M - 8
WO0, WOS = 81920, 20480
OS = 12288
PSZ = 30720
CEXP = 0.07216878364870322 * 1.4426950408889634
TAGC = (0x9E3779B9, 0x7F4A7C15)
SPIN_MAX = 1 << 21


def f32bits(x):
    return struct.unpack("<I", struct.pack("<f", x))[0]


class Cfg:
    diag = 0
    only = ""
    rot = 10
    kpos = 9
    dynred = 1
    outfl = 0
    ipf = 1
    tx = 1
    tab = 12
    unsafe = 0
    thr = 0
    b12x = 1
    ksplit = 0
    tlb = 0
    jit = 0
    pfl = 2
    otr = 1
    ntkv = 3
    lprio = 1
    sent = 0
    smx = 2
    vbp = 2
    fin = 2
    qv = 6
    sv = 1
    wper = 5
    odef = 1
    fw = 2
    dot2 = 0
    tpos = 10
    w12 = 0
    w13 = 0
    pst = 0
    pld = 0


S_X, S_K, S_V, S_WQ, S_WO, S_OUT, S_DBG, S_WS = 32, 34, 36, 38, 40, 42, 44, 46
S_B, S_H, S_WAVE, S_G8, S_HH = 28, 29, 30, 31, 48
S_TAG = 60
R_F = 24
S_T = 64


class Stamps:
    def __init__(self, a, cfg):
        self.a, self.on, self.n = a, cfg.diag, 2
        self.fine = cfg.diag > 1
        self.names = ["real0", "cyc0"]
        self.k = 0
        self.only = cfg.only.split(",") if cfg.only else None

    def real(self, name):
        if self.on:
            self.a(f"s_memrealtime {s(S_T + 2 * self.n, 2)}")
            self.names.append(name)
            self.n += 1

    def cyc(self, name, fine=False):
        if self.only and name not in self.only:
            return
        if not self.only and len(name) <= 3 and name[0] in "afB" and name[1:].isdigit() and name != "B0":
            return
        if self.on and (not fine or self.fine or self.only):
            self.a(f"{'s_memrealtime' if self.on > 2 else 's_memtime'} {s(S_T + 2 * self.n, 2)}")
            self.names.append(name)
            self.n += 1

    def alt(self, name, path, fine=False):
        if path == "N":
            return self.cyc(name, fine)
        if not self.on or (self.only and name not in self.only) or (fine and not self.only):
            return
        self.a(f"{'s_memrealtime' if self.on > 2 else 's_memtime'} {s(S_T + 2 * (self.n + self.k), 2)}")
        self.k += 1

    def flush(self, role, vt=4):
        if not self.on:
            return
        a = self.a
        assert self.n <= 19, self.n
        a("s_waitcnt lgkmcnt(0) vmcnt(0)")
        a(f"; STAMPS {role} " + " ".join(self.names))
        a("s_lshl_b32 s3, s2, 3")
        a(f"s_add_u32 s3, s3, {s(S_WAVE)}")
        a("s_lshl_b32 s3, s3, 8")
        a(f"s_add_u32 s3, s3, {OFF_T}")
        a(f"s_add_u32 s4, {s(S_WS)}, s3")
        a(f"s_addc_u32 s5, {s(S_WS + 1)}, 0")
        a("s_mov_b64 exec, 1")
        a(f"v_mov_b32 {v(vt + 2)}, 0")
        for i in range(self.n):
            a(f"v_mov_b32 {v(vt)}, {s(S_T + 2 * i)}")
            a(f"v_mov_b32 {v(vt + 1)}, {s(S_T + 2 * i + 1)}")
            a(f"global_store_dwordx2 {v(vt + 2)}, {v(vt, 2)}, s[4:5] offset:{8 * i}")
            a("s_nop 1")
        a("s_waitcnt vmcnt(0)")


def srd(a, d, base, off_sgpr, size):
    a(f"s_add_u32 {s(d)}, {s(base)}, {off_sgpr}")
    a(f"s_addc_u32 {s(d + 1)}, {s(base + 1)}, 0")
    a(f"s_mov_b32 {s(d + 2)}, {size}")
    a(f"s_mov_b32 {s(d + 3)}, 0x20000")


def dma(a, voff, srd_, soff, base, imm, fl=""):
    a(f"s_add_u32 m0, {base}, {imm}")
    a("s_nop 0")
    a(f"buffer_load_dwordx4 {v(voff)}, {s(srd_, 4)}, {soff} offen {fl} lds")


def mfma(d, a_, b_, c=None):
    cs = v(d, 4) if c is None else str(c)
    return f"v_mfma_f32_16x16x32_bf16 {v(d, 4)}, {v(a_, 4)}, {v(b_, 4)}, {cs}"


def trread(d, addr, off):
    assert 0 <= off < 65536
    return f"ds_read_b64_tr_b16 {v(d, 2)}, {v(addr)} offset:{off}"


def rd128(d, addr, off):
    assert 0 <= off < 65536
    return f"ds_read_b128 {v(d, 4)}, {v(addr)} offset:{off}"


def rd64(d, addr, off):
    assert 0 <= off < 65536
    return f"ds_read_b64 {v(d, 2)}, {v(addr)} offset:{off}"


def cvt(d, t):
    return f"v_cvt_pk_bf16_f32 {v(d)}, {v(t)}, {v(t + 1)}"


def emit(a, lst):
    for x in lst:
        a(x)


def place(main, slots):
    out = list(slots.get(-1, []))
    for i, m in enumerate(main):
        out.append(m)
        out.extend(slots.get(i, []))
    for k in sorted(slots):
        if k >= len(main):
            out.extend(slots[k])
    return out


def spread(fill, start, per=1, step=1, into=None):
    d = into if into is not None else {}
    i, k = start, 0
    while k < len(fill):
        d.setdefault(i, []).extend(fill[k:k + per])
        k += per
        i += step
    return d


def at(d, i, *x):
    d.setdefault(i, []).extend(x)


def lg(n):
    return f"s_waitcnt lgkmcnt({n})"


def jitter(a, cfg, k):
    if not cfg.jit:
        return
    lbl = a.uid("L_jit")
    a(f"s_lshl_b32 s100, s2, 3")
    a(f"s_add_u32 s100, s100, {s(S_WAVE)}") if cfg.jit & 1 else None
    a(f"s_mul_i32 s100, s100, {0x9E3779B1 & 0x7fffffff | 1}")
    a(f"s_add_u32 s100, s100, {(k * 0x632BE5AB + cfg.jit * 0x1234567) & 0x7fffffff}")
    a("s_mul_i32 s100, s100, 0x2545F491")
    a("s_lshr_b32 s101, s100, 29")
    a("s_cmp_lg_u32 s101, 0")
    a(f"s_cbranch_scc1 {lbl}")
    a("s_lshr_b32 s100, s100, 8")
    a("s_and_b32 s100, s100, 31")
    a.label(lbl + "b")
    a("s_sleep 8")
    a("s_sub_u32 s100, s100, 1")
    a("s_cmp_gt_i32 s100, 0")
    a(f"s_cbranch_scc1 {lbl}b")
    a.label(lbl)


def mod_small(a, reg, m, times):
    for _ in range(times):
        a(f"s_sub_u32 s4, {reg}, {m}")
        a(f"s_cmp_ge_u32 {reg}, {m}")
        a(f"s_cselect_b32 {reg}, s4, {reg}")


def tile_addrs(a, dst, first, f, lanepart, tmp, extra=None):
    for c in range(4):
        a(f"s_add_u32 s4, {first}, {c}")
        a("s_and_b32 s5, s4, 3")
        a("s_lshr_b32 s4, s4, 2")
        a("s_lshl_b32 s4, s4, 7")
        a(f"v_xor_b32 {v(tmp)}, s5, {v(f)}")
        a(f"v_lshl_add_u32 {v(tmp)}, {v(tmp)}, 5, {v(lanepart)}")
        a(f"v_add_u32 {v(dst + c)}, s4, {v(tmp)}")


def gen_compute(a, cfg):
    st = Stamps(a, cfg)
    R_O, R_P = 8, 12
    ACC, FR, QP, LS, ONES = 16, 88, 160, 196, 208
    AX, AY, AZ, AVo, AVp = 212, 216, 218, 230, 234
    AQW, AQR, AMW, AMR, APW, APR, APW2, APR2, AO, AOW = range(238, 248)
    AW, AB, AP, AP2, FL2, TG, ZERO = 248, 250, 251, 252, 253, 254, 15
    VM, VG, VF, T0, T1, T2 = 1, 2, 3, 4, 5, 6
    MX = 8
    S_I, S_J, S_C, S_D, S_CNT, S_SL, S_D2, S_SL2 = 50, 51, 52, 54, 55, 56, 57, 18
    S_K0, S_K1, S_F1, S_F2 = 58, 59, 16, 17

    a(f"s_lshr_b32 {s(S_I)}, {s(S_WAVE)}, 1")
    a(f"s_and_b32 {s(S_J)}, {s(S_WAVE)}, 1")
    a(f"s_mov_b32 {s(S_C)}, {f32bits(CEXP):#x}")
    a(f"s_mov_b32 {s(S_C + 1)}, {f32bits(CEXP):#x}")
    a(f"v_and_b32 {v(VM)}, 15, v0")
    a(f"v_lshrrev_b32 {v(VG)}, 4, v0")
    a(f"v_lshrrev_b32 {v(T0)}, 2, {v(VM)}")
    a(f"v_lshl_add_u32 {v(T1)}, {v(VG)}, 3, {v(T0)}")
    a(f"v_mul_u32_u24 {v(T1)}, 384, {v(T1)}")
    a(f"v_and_b32 {v(T2)}, 3, {v(VM)}")
    a(f"v_lshlrev_b32 v11, 3, {v(T2)}")
    a(f"v_add_u32 {v(T1)}, v11, {v(T1)}")
    a(f"v_and_b32 {v(T2)}, 1, {v(VG)}")
    a(f"v_lshrrev_b32 {v(VF)}, 3, {v(VM)}")
    a(f"v_lshl_or_b32 {v(VF)}, {v(T2)}, 1, {v(VF)}")
    a(f"s_mul_i32 s3, {s(S_I)}, 6")
    tile_addrs(a, AX, "s3", VF, T1, T2)
    a(f"s_mul_i32 s4, {s(S_J)}, 48")
    a(f"v_add_u32 {v(T1)}, s4, {v(VM)}")
    a(f"v_lshlrev_b32 {v(T1)}, 7, {v(T1)}")
    a(f"v_add_u32 {v(T1)}, 24576, {v(T1)}")
    a(f"v_lshrrev_b32 {v(VF)}, 1, {v(VM)}")
    for ks in range(2):
        a(f"v_add_u32 {v(T2)}, {4 * ks}, {v(VG)}")
        a(f"v_xor_b32 {v(T2)}, {v(T2)}, {v(VF)}")
        a(f"v_lshl_add_u32 {v(AY + ks)}, {v(T2)}, 4, {v(T1)}")
    for i in range(72):
        a(f"v_mov_b32 {v(ACC + i)}, 0")
    a(f"s_mul_i32 s4, {s(S_I)}, 48")
    a(f"v_add_u32 {v(T1)}, s4, {v(VM)}")
    a(f"v_mul_u32_u24 {v(T1)}, 384, {v(T1)}")
    a(f"v_and_b32 {v(T2)}, 1, {v(VG)}")
    a(f"v_lshl_add_u32 {v(T1)}, {v(T2)}, 3, {v(T1)}")
    a(f"v_add_u32 {v(T1)}, {A_K}, {v(T1)}")
    a(f"v_lshrrev_b32 {v(T0)}, 1, {v(VG)}")
    a(f"v_xor_b32 {v(T0)}, {v(T0)}, {v(VF)}")
    a(f"v_lshl_add_u32 {v(T1)}, {v(T0)}, 4, {v(T1)}")
    a(f"s_mul_i32 s7, {s(S_I)}, 3")
    for ls in range(6):
        a(f"s_add_u32 s6, s7, {ls}")
        mod_small(a, "s6", 6, 1)
        a("s_and_b32 s5, s6, 1")
        a("s_lshl_b32 s5, s5, 6")
        a("s_lshr_b32 s6, s6, 1")
        a("s_lshl_b32 s6, s6, 7")
        a(f"v_add_u32 {v(T2)}, s6, {v(T1)}")
        a(f"v_xor_b32 {v(AZ + 2 * ls)}, s5, {v(T2)}")
        a(f"v_xor_b32 {v(AZ + 2 * ls + 1)}, 32, {v(AZ + 2 * ls)}")
    a(f"v_lshrrev_b32 {v(T0)}, 2, {v(VM)}")
    a(f"v_lshl_add_u32 {v(T0)}, {v(VG)}, 2, {v(T0)}")
    a(f"v_bfe_u32 {v(VF)}, {v(T0)}, 1, 2")
    a(f"v_mul_u32_u24 {v(T1)}, 384, {v(T0)}")
    a(f"v_add_u32 {v(T1)}, v11, {v(T1)}")
    a(f"s_mul_i32 s6, {s(S_I)}, 18432")
    a(f"s_add_u32 s7, s6, {A_V}")
    a(f"v_add_u32 {v(T1)}, s7, {v(T1)}")
    a(f"s_mul_i32 s3, {s(S_I)}, 6")
    tile_addrs(a, AVo, "s3", VF, T1, T2)
    a("s_lshl_b32 s6, s6, 1")
    a("s_sub_u32 s6, 18432, s6")
    for c in range(4):
        a(f"v_add_u32 {v(AVp + c)}, s6, {v(AVo + c)}")
    a(f"v_mul_u32_u24 {v(T1)}, 320, {v(T0)}")
    a(f"v_add_u32 {v(T1)}, v11, {v(T1)}")
    a(f"v_add_u32 {v(T1)}, {WO0 + WOS}, {v(T1)}")
    a(f"v_and_b32 {v(T0)}, 1, {v(VG)}")
    a(f"s_mul_i32 s3, {s(S_I)}, 5")
    for par in range(2):
        a(f"s_add_u32 s4, s3, {par}")
        a(f"v_xor_b32 {v(T2)}, s4, {v(T0)}")
        a(f"v_lshl_add_u32 {v(AW + par)}, {v(T2)}, 5, {v(T1)}")
    a(f"s_xor_b32 s5, {s(S_WAVE)}, 2")
    a(f"v_lshlrev_b32 {v(T1)}, 4, v0")
    a(f"v_lshlrev_b32 {v(T0)}, 3, v0")
    a(f"v_lshlrev_b32 {v(T2)}, 2, {v(VM)}")
    for wv, (q_, p_, p2, m_) in ((s(S_WAVE), (AQW, APW, APW2, AMW)), ("s5", (AQR, APR, APR2, AMR))):
        a(f"s_mul_i32 s3, {wv}, 9216")
        a(f"s_add_u32 s3, s3, {A_Q}")
        a(f"v_add_u32 {v(q_)}, s3, {v(T1)}")
        a(f"s_mul_i32 s3, {wv}, 4608")
        a(f"s_add_u32 s3, s3, {A_P}")
        a(f"v_add_u32 {v(p_)}, s3, {v(T1)}")
        a(f"v_add_u32 {v(p2)}, s3, {v(T0)}")
        a(f"s_mul_i32 s3, {wv}, 192")
        a(f"s_add_u32 s3, s3, {A_M}")
        a(f"v_add_u32 {v(m_)}, s3, {v(T2)}")
    a(f"s_mul_i32 s3, {s(S_I)}, 18")
    a(f"s_mul_i32 s4, {s(S_J)}, 3")
    a("s_add_u32 s3, s3, s4")
    a("s_lshl_b32 s3, s3, 10")
    a(f"v_add_u32 {v(AO)}, s3, {v(T1)}")
    a(f"s_mul_i32 s3, {s(S_J)}, 3072")
    a(f"v_add_u32 {v(AB)}, s3, {v(T1)}")
    a(f"v_lshrrev_b32 v12, 2, {v(VM)}")
    a(f"v_lshl_add_u32 v12, v12, 2, {v(VG)}")
    a(f"v_and_b32 v13, 3, {v(VM)}")
    a("v_lshl_add_u32 v12, v12, 2, v13")
    a(f"s_mul_i32 s3, {s(S_WAVE)}, 7680")
    a(f"v_lshl_add_u32 {v(AP)}, v12, 4, s3")
    a("s_add_u32 s3, s3, 2048")
    a(f"v_lshl_add_u32 {v(AP2)}, v12, 3, s3")
    a(f"v_mov_b32 {v(AOW)}, {A_TAG}")
    for i in range(4):
        a(f"v_mov_b32 {v(ONES + i)}, 0x3f803f80")
    a(f"s_lshl_b32 s3, {s(S_B)}, 5")
    a(f"s_add_u32 s3, s3, {s(S_H)}")
    a(f"s_lshl_b32 s4, {s(S_HH)}, 2")
    a(f"s_add_u32 s4, s4, {s(S_WAVE)}")
    a("s_lshl_b32 s4, s4, 3")
    a("s_andn2_b32 s5, s3, 3")
    a(f"s_lshl_b32 s5, s5, {7 if cfg.pfl & 1 else 5}")
    a(f"s_add_u32 {s(S_F1)}, s4, s5")
    a(f"s_lshl_b32 s6, {s(S_I)}, 3")
    a(f"s_add_u32 s6, s6, {s(S_G8)}")
    a("s_lshl_b32 s6, s6, 3")
    if cfg.pfl & 2:
        a(f"s_lshl_b32 s5, {s(S_B)}, 5")
        a(f"s_lshl_b32 s4, {s(S_J)}, 4")
        a("s_add_u32 s5, s5, s4")
        a(f"s_add_u32 s5, s5, {s(S_HH)}")
    else:
        a(f"s_lshl_b32 s5, {s(S_B)}, 2")
        a(f"s_add_u32 s5, s5, {s(S_HH)}")
        a("s_lshl_b32 s5, s5, 1")
        a(f"s_add_u32 s5, s5, {s(S_J)}")
    a("s_lshl_b32 s5, s5, 7")
    a("s_add_u32 s6, s6, s5")
    a(f"s_add_u32 {s(S_F2)}, s6, {F2}")
    a(f"v_lshlrev_b32 {v(ZERO)}, 7, v0")
    a(f"v_lshlrev_b32 {v(FL2)}, 9, v0")
    a(f"s_lshl_b32 s4, {s(S_B)}, 2")
    a(f"s_add_u32 s4, s4, {s(S_HH)}")
    a("s_lshl_b32 s4, s4, 3")
    a(f"s_add_u32 s4, s4, {s(S_G8)}")
    a(f"s_mul_i32 s4, s4, {PSZ}")
    a(f"s_add_u32 s4, s4, {OFF_P}")
    a("s_mul_i32 s3, s3, 36864")
    a("s_waitcnt lgkmcnt(0)")
    srd(a, R_O, S_WS, "s3", 36864)
    srd(a, R_P, S_WS, "s4", PSZ)
    srd(a, R_F, S_WS, f"{OFF_F}", 262144)
    if cfg.tlb:
        a("s_mov_b64 exec, 1")
        a(f"buffer_load_dword v14, {v(AO)}, {s(R_O, 4)}, 0 offen sc1")
        a(f"buffer_load_dword v14, {v(AP)}, {s(R_P, 4)}, 0 offen sc1")
        a("s_mov_b32 s3, 200000")
        a(f"buffer_load_dword v14, {v(AP)}, {s(R_F, 4)}, s3 offen sc1")
        if cfg.tlb > 1:
            a(f"s_mul_i32 s3, {s(S_B)}, 122880")
            srd(a, 20, S_OUT, "s3", 122880)
            a(f"buffer_load_dword v14, {v(AP)}, s[20:23], 0 offen sc1")
            a(f"s_lshl_b32 s3, {s(S_B)}, 5")
            a(f"s_add_u32 s3, s3, {s(S_H)}")
            a("s_mul_i32 s3, s3, 36864")
            srd(a, 20, S_V, "s3", 36864)
            a(f"buffer_load_dword v14, {v(AP)}, s[20:23], 0 offen sc1")
            srd(a, 20, S_K, "s3", 36864)
            a(f"buffer_load_dword v14, {v(AP)}, s[20:23], 0 offen sc1")
            a(f"s_mul_i32 s3, {s(S_G8)}, 983040")
            srd(a, 20, S_WO, "s3", 983040)
            a(f"buffer_load_dword v14, {v(AP)}, s[20:23], 0 offen sc1")
        a("s_mov_b64 exec, -1")

    def fa(n, dt):
        return FR + 36 * n + 4 * dt

    def fb(n, qt):
        return FR + 36 * n + 24 + 4 * qt

    def p1_reads(n, ks):
        def A(dt):
            return [trread(fa(n, dt) + 2 * hh, AX + dt % 4, 384 * (32 * ks + 4 * hh) + 128 * (dt // 4)) for hh in range(2)]

        def B(qt):
            return [rd128(fb(n, qt), AY + ks, 2048 * qt)]
        r = B(0) + A(0) + B(1) + B(2)
        for dt in range(1, 6):
            r += A(dt)
        return r

    def qtile(dt, qt):
        return ACC + 4 * (3 * dt + qt)

    def p1_mfmas(n):
        return [mfma(qtile(dt, qt), fa(n, dt), fb(n, qt)) for dt in range(6) for qt in range(3)]

    adv = [f"v_add_u32 {v(AX + c)}, {s(S_D)}, {v(AX + c)}" for c in range(4)] + \
          [f"v_add_u32 {v(AY + c)}, {s(S_D)}, {v(AY + c)}" for c in range(2)]
    a(f"s_mov_b32 {s(S_SL)}, 0")
    a(f"s_mov_b32 {s(S_CNT)}, 0")
    a(f"s_mov_b32 {s(S_K0)}, {(-2 * SLOT) & 0xffffffff:#x}")
    a(f"s_mov_b32 {s(S_K1)}, {SLOT}")
    st.cyc("setup")
    a("s_barrier")
    st.cyc("b0")
    emit(a, p1_reads(0, 0))
    a(lg(0))
    a.label("L_p1")
    sl = spread(p1_reads(1, 1), 0, 1)
    at(sl, 0, f"s_add_u32 {s(S_SL)}, {s(S_SL)}, 1")
    at(sl, 1, f"s_cmp_eq_u32 {s(S_SL)}, 3")
    at(sl, 2, f"s_cselect_b32 {s(S_D)}, {s(S_K0)}, {s(S_K1)}")
    at(sl, 3, f"s_cselect_b32 {s(S_SL)}, 0, {s(S_SL)}")
    spread(adv, 15, 2, into=sl)
    emit(a, place(p1_mfmas(0), sl))
    a(lg(0))
    a("s_barrier")
    sl = spread(p1_reads(0, 0), 0, 1)
    at(sl, 15, f"s_add_u32 {s(S_CNT)}, {s(S_CNT)}, 1")
    at(sl, 16, f"s_cmp_lt_u32 {s(S_CNT)}, 9")
    emit(a, place(p1_mfmas(1), sl))
    a(lg(0))
    a("s_cbranch_scc1 L_p1")
    emit(a, place(p1_mfmas(0), spread(p1_reads(1, 1), 0, 1)))
    if cfg.ipf & 2:
        a("global_load_dword v14, v7, s[62:63]")
    a(lg(0))
    a("s_barrier")
    jitter(a, cfg, 1)
    st.cyc("b10")
    a.c("SEG q")

    def kf(buf, a_):
        return FR + 12 * buf + 4 * a_

    def k_reads(ls, buf):
        return [rd64(kf(buf, a_) + 2 * hh, AZ + 2 * ls + hh, 6144 * a_) for a_ in range(3) for hh in range(2)]

    def qpack(ls):
        r = []
        for qt in range(3):
            for dt in (2 * ls, 2 * ls + 1):
                d = QP + 4 * (3 * ls + qt) + 2 * (dt % 2)
                r += [cvt(d, qtile(dt, qt)), cvt(d + 1, qtile(dt, qt) + 2)]
        return r

    def qwrite(f):
        return f"ds_write_b128 {v(AQW)}, {v(QP + 4 * f, 4)} offset:{1024 * f}"

    def stile(a_, qt):
        return ACC + 4 * (3 * a_ + qt)

    def s_mfmas(qbase, ls3, buf, first=False, qmajor=False):
        idx = [(a_, qt) for qt in range(3) for a_ in range(3)] if qmajor else [(a_, qt) for a_ in range(3) for qt in range(3)]
        return [mfma(stile(a_, qt), kf(buf, a_), qbase + 4 * (3 * ls3 + qt), 0 if first else None) for a_, qt in idx]

    q0, q1, q2 = qpack(0), qpack(1), qpack(2)
    if cfg.qv == 0:
        sl = spread(k_reads(0, 0) + k_reads(1, 1) + k_reads(2, 2), 0, 2, into={})
        spread(q0, 9, 2, into=sl)
        at(sl, 11, qwrite(0))
        at(sl, 14, qwrite(1))
        spread(q1[:4], 15, 2, into=sl)
        at(sl, 17, qwrite(2))
        emit(a, place(p1_mfmas(1), sl))
        emit(a, q1[4:8] + [qwrite(3)] + q1[8:])
        a(lg(4))
        sl = {}
        at(sl, 0, qwrite(4))
        spread(q2, 1, 2, into=sl)
        at(sl, 3, qwrite(5))
        at(sl, 7, qwrite(6))
        at(sl, 10, qwrite(7))
        at(sl, 13, qwrite(8))
        spread(k_reads(3, 0), 14, 2, into=sl)
        emit(a, place(s_mfmas(QP, 0, 0, True) + s_mfmas(QP, 1, 1), sl))
    else:
        order = [(dt, qt) for ls in range(3) for qt in range(3) for dt in (2 * ls, 2 * ls + 1)]
        mm = [mfma(qtile(dt, qt), fa(1, dt), fb(1, qt)) for dt, qt in order]
        mm += s_mfmas(QP, 0, 0, True) + s_mfmas(QP, 1, 1)
        packs = q0 + q1 + q2
        sl = {}
        if cfg.qv == 1:
            spread(k_reads(0, 0)[:5], 0, 1, into=sl)
            for f in range(9):
                g0 = 5 + 2 * f + (f >= 6) * 2
                spread(packs[4 * f:4 * f + 4], g0, 2, into=sl)
            wr = [7, 10, 13, 16, 19, 22, 25, 28, 31]
            for f in range(9):
                at(sl, wr[f], qwrite(f))
            at(sl, 8, k_reads(0, 0)[5])
            for k, g_ in enumerate([9, 11, 12, 14, 15, 17]):
                at(sl, g_, k_reads(1, 1)[k])
            at(sl, 17, lg(7))
            at(sl, 26, lg(3))
            spread(k_reads(2, 2), 27, 1, into=sl)
            spread(k_reads(3, 0), 29, 1, into=sl)
        elif cfg.qv == 2:
            spread(k_reads(0, 0) + k_reads(1, 1)[:4], 0, 2, into=sl)
            for f in range(9):
                g0 = 5 + 2 * f + (f >= 6) * 2
                spread(packs[4 * f:4 * f + 4], g0, 2, into=sl)
            wr = [7, 10, 13, 16, 19, 22, 25, 28, 31]
            for f in range(9):
                at(sl, wr[f], qwrite(f))
            at(sl, 8, k_reads(1, 1)[4])
            at(sl, 9, k_reads(1, 1)[5])
            at(sl, 17, lg(3))
            spread(k_reads(2, 2), 26, 1, into=sl)
            spread(k_reads(3, 0), 29, 1, into=sl)
        elif cfg.qv in (3, 4):
            kr = k_reads(0, 0) + k_reads(1, 1) + k_reads(2, 2)
            spread(kr[:5], 0, 1, into=sl)
            rest = kr[5:]
            for f in range(9):
                g0 = 5 + 3 * f
                c4 = packs[4 * f:4 * f + 4]
                if cfg.qv == 3:
                    at(sl, g0, rest.pop(0), c4[0], c4[1])
                    at(sl, g0 + 1, c4[2], c4[3])
                else:
                    at(sl, g0, rest.pop(0), c4[0])
                    at(sl, g0 + 1, c4[1], c4[2], c4[3])
                at(sl, g0 + 2, qwrite(f))
            spread(rest, 32, 1, into=sl)
            sl[17].append(lg(8))
            sl[26].append(lg(2))
        elif cfg.qv in (5, 6, 7):
            kr = k_reads(0, 0) + k_reads(1, 1) + k_reads(2, 2)
            spread(kr[:4], 0, 1, into=sl)
            rest = kr[4:]
            start = 4 if cfg.qv == 7 else 5
            for f in range(9):
                g0 = start + 3 * f
                c4 = packs[4 * f:4 * f + 4]
                at(sl, g0, *(rest[:1]), c4[0], c4[1])
                at(sl, g0 + 1, *(rest[1:2]), c4[2], c4[3])
                rest = rest[2:]
                if cfg.qv == 6:
                    d = QP + 4 * f
                    at(sl, g0 + 2, f"ds_write_b64 {v(AQW)}, {v(d, 2)} offset:{1024 * f}",
                       f"ds_write_b64 {v(AQW)}, {v(d + 2, 2)} offset:{1024 * f + 8}")
                else:
                    at(sl, g0 + 2, qwrite(f))
            sl[17].append(lg(4))
            sl[26].append(lg(2))
        emit(a, place(mm, sl))
    st.cyc("a3", True)
    a(lg(0))
    a("s_barrier")
    st.cyc("b11")
    a.c("SEG s")
    QR = FR + 36
    rds = [rd128(QR + 4 * f, AQR, 1024 * f) for f in range(9)]
    if cfg.sv == 0:
        sl = spread(rds[:6], -1, 1)
        spread(k_reads(4, 1), 5, 2, into=sl)
        at(sl, 8, lg(9))
        emit(a, place(s_mfmas(QP, 2, 2), sl))
        st.cyc("a4", True)
        sl = spread(rds[6:], 0, 1)
        spread(k_reads(5, 2), 3, 1, into=sl)
        at(sl, 8, lg(9))
        emit(a, place(s_mfmas(QR, 0, 0), sl))
        emit(a, s_mfmas(QR, 1, 1))
        a(lg(0))
    else:
        sl = spread(rds[:3], -1, 1)
        spread(k_reads(3, 0), 2, 2, into=sl)
        spread(rds[3:6], 5, 1, into=sl)
        at(sl, 8, lg(3))
        spread(k_reads(4, 1), 8, 2, into=sl)
        spread(rds[6:], 11, 1, into=sl)
        spread(k_reads(5, 2), 14, 2, into=sl)
        at(sl, 17, lg(9))
        emit(a, place(s_mfmas(QP, 2, 2) + s_mfmas(QR, 0, 0), sl))

    def xs(qt):
        return [stile(a_, qt) + r for a_ in range(3) for r in range(4)]

    def maxchain(qt):
        x = xs(qt)
        r = [f"v_max3_f32 {v(MX + qt)}, {v(x[0])}, {v(x[1])}, {v(x[2])}"]
        for k in range(3, 11, 2):
            r.append(f"v_max3_f32 {v(MX + qt)}, {v(MX + qt)}, {v(x[k])}, {v(x[k + 1])}")
        r.append(f"v_max_f32 {v(MX + qt)}, {v(MX + qt)}, {v(x[11])}")
        return r
    m0, m1, m2 = maxchain(0), maxchain(1), maxchain(2)
    if cfg.sv == 0:
        emit(a, s_mfmas(QR, 2, 2, qmajor=True))
        st.cyc("sdone", True)
        a("s_nop 0")
        emit(a, m0 + m1 + m2)
    else:
        s4, s5 = s_mfmas(QR, 1, 1, qmajor=True), s_mfmas(QR, 2, 2, qmajor=True)
        mm = sum([s4[3 * qt:3 * qt + 3] + s5[3 * qt:3 * qt + 3] for qt in range(3)], [])
        sl = {}
        at(sl, 2, lg(0))
        spread(m0, 11, 2, into=sl)
        spread(m1[:2], 17, 2, into=sl)
        emit(a, place(mm, sl))
        st.cyc("sdone", True)
        emit(a, m1[2:] + ["s_nop 1"] + m2)
    for op in ("v_permlane16_swap_b32", "v_permlane32_swap_b32"):
        for qt in range(3):
            a(f"v_mov_b32 {v(MX + 3 + qt)}, {v(MX + qt)}")
        for qt in range(3):
            a(f"{op} {v(MX + 3 + qt)}, {v(MX + qt)}")
        for qt in range(3):
            a(f"v_max_f32 {v(MX + qt)}, {v(MX + qt)}, {v(MX + 3 + qt)}")
    for qt in range(3):
        a(f"ds_write_b32 {v(AMW)}, {v(MX + qt)} offset:{64 * qt}")
    st.cyc("a6", True)
    a(lg(0))
    a("s_barrier")
    st.cyc("b12")
    a.c("SEG sm")

    PP, PC = FR, FR + 24
    VQ = [[QP + 4 * dt for dt in range(6)], [FR + 36 + 4 * dt for dt in range(6)], [148, 152, 156, 184, 188, 192]]

    def v_reads(step):
        r = []
        for dt in range(6):
            for hh in range(2):
                if step == 0:
                    ad, tile = AVo, hh
                elif step == 1:
                    ad, tile = (AVo, 2) if hh == 0 else (AVp, 2)
                else:
                    ad, tile = AVp, hh
                r.append(trread(VQ[step][dt] + 2 * hh, ad + dt % 4, 6144 * tile + 128 * (dt // 4)))
        return r
    NM = 2
    for qt in range(3):
        a(f"ds_read_b32 {v(MX + 3 + qt)}, {v(AMR)} offset:{64 * qt}")
    emit(a, v_reads(0))
    if cfg.vbp == 2:
        emit(a, v_reads(1))
    a((lg(15) if cfg.vbp == 2 else lg(12)) if not st.on else lg(0))
    a(f"ds_read_b64 {v(TG, 2)}, {v(AOW)}")
    for qt in range(3):
        a(f"v_max_f32 {v(MX + qt)}, {v(MX + qt)}, {v(MX + 3 + qt)}")
    for qt in range(3):
        a(f"v_mul_f32 {v(NM + 2 * qt)}, {s(S_C)}, {v(MX + qt)}")
    for qt in range(3):
        a(f"v_mov_b32 {v(NM + 2 * qt + 1)}, {v(NM + 2 * qt)}")

    def softmax(qt):
        x = xs(qt)
        e = [f"v_exp_f32 {v(y)}, {v(y)}" for y in x]
        c = [cvt(PP + 8 * qt + k, x[2 * k]) for k in range(6)]
        if cfg.smx == 0 or (cfg.smx == 2 and qt == 0):
            f = [[f"v_pk_fma_f32 {v(x[2 * k], 2)}, {v(x[2 * k], 2)}, {s(S_C, 2)}, {v(NM + 2 * qt, 2)} neg_lo:[0,0,1] neg_hi:[0,0,1]"] for k in range(6)]
        else:
            f = [[f"v_fma_f32 {v(y)}, {v(y)}, {s(S_C)}, -{v(NM + 2 * qt)}" for y in x[2 * k:2 * k + 2]] for k in range(6)]
        r = f[0] + f[1]
        for k in range(6):
            nx = f[k + 2] if k + 2 < 6 else []
            r += [e[2 * k]] + nx[:1] + [e[2 * k + 1]] + nx[1:]
            if k >= 1:
                r.append(c[k - 1])
        r += ["s_nop 0", c[5]]
        return r

    def pwrite(qt):
        return [f"ds_write_b128 {v(APW)}, {v(PP + 8 * qt, 4)} offset:{1536 * qt}",
                f"ds_write_b64 {v(APW2)}, {v(PP + 8 * qt + 4, 2)} offset:{1536 * qt + 1024}"]
    OT = {}
    free = [ACC + 36 + 4 * k for k in range(9)]
    for qt in range(3):
        regs = free[3 * qt:3 * qt + 3] + [stile(a_, qt) for a_ in range(3)]
        for dt in range(6):
            OT[(dt, qt)] = regs[dt]
    pf = [lambda qt: PP + 8 * qt, lambda qt: PP + 8 * qt + 4, lambda qt: PC + 4 * qt]

    def pv(step, qt):
        first = step == 0
        r = [mfma(OT[(dt, qt)], VQ[step][dt], pf[step](qt), 0 if first else None) for dt in range(6)]
        sm = [mfma(LS + 4 * qt, ONES, pf[step](qt), 0 if first else None)]
        return sm + r if step == 2 else r + sm

    def weave(vals, mm, first=3, per=3):
        out, k = [], 0
        for i, m in enumerate(mm):
            n = first if i == 0 else per
            out += vals[k:k + n]
            k += n
            out.append(m)
        return out + vals[k:]
    st.cyc("a7", True)
    vb = v_reads(1) if cfg.vbp == 0 else []
    s0 = softmax(0)
    out = []
    for k, x in enumerate(s0):
        out.append(x)
        if k % 2 == 1 and vb:
            out.append(vb.pop(0))
    emit(a, out + vb)
    emit(a, pwrite(0))
    a(lg(14) if cfg.vbp == 0 else lg(2))
    st.cyc("a8", True)
    emit(a, weave(softmax(1), pv(0, 0), per=cfg.wper))
    emit(a, pwrite(1))
    st.cyc("a9", True)
    emit(a, weave(softmax(2), pv(0, 1), per=cfg.wper))
    emit(a, pwrite(2))
    st.cyc("a10", True)
    a(lg(0))
    a("s_barrier")
    jitter(a, cfg, 2)
    st.cyc("b13")
    a.c("SEG pv")
    prd = [rd64(PP + 8 * qt + 6, APR2, 1536 * qt + 1024) for qt in range(3)]
    prc = [rd128(PC + 4 * qt, APR, 1536 * qt) for qt in range(3)]
    vc = v_reads(2)
    if cfg.vbp in (0, 2):
        sl = spread(prd + prc + vc[:2], -1, 1)
        at(sl, 6, lg(5))
        emit(a, place(pv(0, 2), sl))
        sl = spread(vc[2:], 0, 1)
        at(sl, 13, lg(0))
        emit(a, place(pv(1, 0) + pv(1, 1), sl))
    else:
        emit(a, place(pv(0, 2), spread(prd + v_reads(1), -1, 2)))
        a(lg(0))
        sl = spread(prc + vc[:11], 0, 1)
        at(sl, 13, vc[11], lg(0))
        emit(a, place(pv(1, 0) + pv(1, 1), sl))
    st.cyc("pvB", True)
    OPQ = [160, 164, 168, 172, 176, 180, 212, 216, 220]

    def finish(qt):
        r = [f"v_rcp_f32 {v(MX + 2 * qt)}, {v(LS + 4 * qt)}", "s_nop 0",
             f"v_mov_b32 {v(MX + 2 * qt + 1)}, {v(MX + 2 * qt)}"]
        for ls in range(3):
            d = OPQ[3 * ls + qt]
            for half in range(2):
                t = OT[(2 * ls + half, qt)]
                if cfg.fin == 0 or (cfg.fin == 2 and qt == 2):
                    r.append(f"v_pk_mul_f32 {v(t, 2)}, {v(t, 2)}, {v(MX + 2 * qt, 2)}")
                    r.append(f"v_pk_mul_f32 {v(t + 2, 2)}, {v(t + 2, 2)}, {v(MX + 2 * qt, 2)}")
                else:
                    r += [f"v_mul_f32 {v(t + k)}, {v(MX + 2 * qt)}, {v(t + k)}" for k in range(4)]
            for half in range(2):
                t = OT[(2 * ls + half, qt)]
                r += [cvt(d + 2 * half, t), cvt(d + 2 * half + 1, t + 2)]
            off = (ls * 6 + qt) * 1024
            r.append(f"s_mov_b32 s3, {off}")
            r.append(f"buffer_store_dwordx4 {v(d, 4)}, {v(AO)}, {s(R_O, 4)}, s3 offen {'' if cfg.unsafe in (1, 2) else 'sc1'}")
            if not cfg.odef:
                r.append(f"ds_write_b128 {v(AO)}, {v(d, 4)} offset:{off}")
        return r

    def gaps(f, per):
        out, cur = [], []
        for x in f:
            if x.startswith("s_mov"):
                if cur:
                    out.append(cur)
                cur = [x]
            elif x.startswith(("buffer_", "ds_")):
                out.append(cur + [x])
                cur = []
            else:
                cur.append(x)
                if len(cur) == per:
                    out.append(cur)
                    cur = []
        return out + ([cur] if cur else [])

    def weave2(mm, f, skip, per):
        g = gaps(f, per)
        out = []
        for i, m in enumerate(mm):
            out.append(m)
            if i >= skip and g:
                out += g.pop(0)
        return out + sum(g, [])
    emit(a, pv(2, 0))
    f0, f1, f2 = finish(0), finish(1), finish(2)
    mm = pv(1, 2) + pv(2, 1)
    if cfg.fw == 0:
        emit(a, [mm[0]] + weave(["s_nop 0"] + f0, mm[1:], first=1, per=2))
    else:
        emit(a, weave2(mm, f0, 1, cfg.fw))
    st.cyc("f0", True)
    mm = pv(2, 2)
    if cfg.fw == 0:
        emit(a, [mm[0], mm[1]] + weave(f1, mm[2:], first=0, per=2))
    else:
        emit(a, weave2(mm, f1, 0, cfg.fw))
    st.cyc("f1", True)
    emit(a, f2)
    a.c("SEG end")
    st.cyc("ostore")
    a(lg(0))
    a("s_barrier")

    A4 = ACC
    if cfg.odef:
        for qt in range(3):
            for ls in range(3):
                a(f"ds_write_b128 {v(AO)}, {v(OPQ[3 * ls + qt], 4)} offset:{(ls * 6 + qt) * 1024}")
    for i in range(60):
        a(f"v_mov_b32 {v(A4 + i)}, 0")
    a(f"s_mov_b32 {s(S_K0)}, {(-3 * WOS) & 0xffffffff:#x}")
    a(f"s_mov_b32 {s(S_K1)}, {WOS}")
    a(f"s_mov_b32 s6, {(-5 * OS) & 0xffffffff:#x}")
    a(f"s_mov_b32 s7, {OS}")
    a(f"s_mov_b32 {s(S_SL)}, 1")
    a(f"s_mov_b32 {s(S_SL2)}, 0")
    a(f"s_mov_b32 {s(S_CNT)}, 0")
    a("s_waitcnt vmcnt(0)")
    a(f"s_mov_b64 exec, {15 if cfg.pfl & 1 else 1}")
    a(f"buffer_store_dwordx2 {v(TG, 2)}, {v(ZERO)}, {s(R_F, 4)}, {s(S_F1)} offen {'' if cfg.unsafe in (1, 2) else 'sc1'}")
    a("s_mov_b64 exec, -1")
    jitter(a, cfg, 3)
    st.cyc("flag1")

    def ga(n, tt):
        return FR + 32 * n + 4 * tt

    def gb(n, qt):
        return FR + 32 * n + 20 + 4 * qt

    def p4_reads(n, ks):
        def A(tt):
            return [trread(ga(n, tt) + 2 * hh, AW + tt % 2, 320 * (32 * ks + 16 * hh) + 64 * (tt // 2)) for hh in range(2)]

        def B(qt):
            return [rd128(gb(n, qt), AB, 6144 * ks + 1024 * qt)]
        r = B(0) + A(0) + B(1) + B(2)
        for tt in range(1, 5):
            r += A(tt)
        return r

    def p4_mfmas(n):
        return [mfma(A4 + 4 * (3 * tt + qt), ga(n, tt), gb(n, qt)) for tt in range(5) for qt in range(3)]
    adv4 = [f"v_add_u32 {v(AW + c)}, {s(S_D)}, {v(AW + c)}" for c in range(2)] + [f"v_add_u32 {v(AB)}, {s(S_D2)}, {v(AB)}"]
    a(lg(0))
    a("s_barrier")
    st.cyc("B0")
    emit(a, p4_reads(0, 0))
    a(lg(0))
    a.label("L_p4")
    sl = spread(p4_reads(1, 1), 0, 1)
    sc = [f"s_add_u32 {s(S_SL)}, {s(S_SL)}, 1", f"s_cmp_eq_u32 {s(S_SL)}, 4",
          f"s_cselect_b32 {s(S_D)}, {s(S_K0)}, {s(S_K1)}", f"s_cselect_b32 {s(S_SL)}, 0, {s(S_SL)}",
          f"s_add_u32 {s(S_SL2)}, {s(S_SL2)}, 1", f"s_cmp_eq_u32 {s(S_SL2)}, 6",
          f"s_cselect_b32 {s(S_D2)}, s6, s7", f"s_cselect_b32 {s(S_SL2)}, 0, {s(S_SL2)}"]
    spread(sc, 0, 1, into=sl)
    spread(adv4, 13, 2, into=sl)
    at(sl, 12, f"s_cmp_eq_u32 {s(S_CNT)}, 2")
    emit(a, place(p4_mfmas(0), sl))
    a(lg(0))
    a("s_cbranch_scc0 L_p4bar")
    st.cyc("own")
    a("s_barrier")
    a.label("L_p4bar")
    a("s_barrier")
    sl = spread(p4_reads(0, 0), 0, 1)
    at(sl, 12, f"s_add_u32 {s(S_CNT)}, {s(S_CNT)}, 1")
    at(sl, 13, f"s_cmp_lt_u32 {s(S_CNT)}, 11")
    emit(a, place(p4_mfmas(1), sl))
    a(lg(0))
    a("s_cbranch_scc1 L_p4")
    jitter(a, cfg, 5)
    st.cyc("p4loop")
    emit(a, place(p4_mfmas(0), spread(p4_reads(1, 1), 0, 1)))
    a(lg(0))
    PK = QP

    def tile(tt, qt):
        return A4 + 4 * (3 * tt + qt)
    ep = []
    for pb in range(2):
        for qt in range(3):
            d = PK + 4 * (3 * pb + qt)
            t0, t1 = tile(2 * pb, qt), tile(2 * pb + 1, qt)
            ep.append([cvt(d, t0), cvt(d + 1, t0 + 2), cvt(d + 2, t1), cvt(d + 3, t1 + 2),
                       f"s_mov_b32 s3, {2560 * qt + 1024 * pb}",
                       f"buffer_store_dwordx4 {v(d, 4)}, {v(AP)}, {s(R_P, 4)}, s3 offen sc1"])
    for qt in range(3):
        d = PK + 24 + 2 * qt
        ep.append([cvt(d, tile(4, qt)), cvt(d + 1, tile(4, qt) + 2), f"s_mov_b32 s3, {2560 * qt}",
                   f"buffer_store_dwordx2 {v(d, 2)}, {v(AP2)}, {s(R_P, 4)}, s3 offen sc1"])
    flat = sum(ep, [])
    emit(a, place(p4_mfmas(1), spread(flat[:12], 9, 2)))
    emit(a, flat[12:])
    jitter(a, cfg, 4)
    st.cyc("pstore")
    if cfg.b12x:
        a("s_barrier")
    if not cfg.sent:
        a("s_waitcnt vmcnt(0)")
    elif cfg.sent > 1:
        a(f"s_waitcnt vmcnt({cfg.sent})")
    a(f"s_mov_b64 exec, {15 if cfg.pfl & 2 else 1}")
    a(f"buffer_store_dwordx2 {v(TG, 2)}, {v(FL2)}, {s(R_F, 4)}, {s(S_F2)} offen sc1")
    st.cyc("flag2")
    st.real("real1")
    st.flush("C")
    a.label("L_last")
    a("s_endpgm")


def gen_loader(a, cfg):
    st = Stamps(a, cfg)
    R_X, R_WQ, R_K, R_V, R_WO = 8, 12, 16, 20, 56
    R_OI, R_PI, R_OUT = 12, 16, 20
    S_LW, S_SW, S_SX, S_LDS, S_N, S_KK, S_PK = 50, 51, 52, 53, 54, 55, 49
    S_MW, S_MX, S_LDO = 62, 63, 7
    OW, OX, OK_, OV, OWO, OO = 16, 22, 25, 34, 43, 48
    RRc, UUc = 52, 55
    AT, AF1, AF2, TG, PT = 58, 59, 60, 62, 64
    A0, A1, RT, JK, AT2 = 66, 67, 68, 74, 75
    T0, T1, T2 = 4, 5, 6

    if cfg.lprio:
        a("s_setprio 3")
    if cfg.only and "k0" in st.only:
        a("s_waitcnt lgkmcnt(0)")
        st.cyc("k0")
    a(f"s_sub_u32 {s(S_LW)}, {s(S_WAVE)}, 4")
    for c in range(3):
        a(f"v_add_u32 {v(T0)}, {64 * c}, v0")
        a(f"v_mul_u32_u24 {v(T1)}, 2731, {v(T0)}")
        a(f"v_lshrrev_b32 {v(RRc + c)}, 16, {v(T1)}")
        a(f"v_mul_u32_u24 {v(T1)}, 24, {v(RRc + c)}")
        a(f"v_sub_u32 {v(UUc + c)}, {v(T0)}, {v(T1)}")
    a(f"s_mul_i32 s3, {s(S_LW)}, 3")
    a(f"v_lshrrev_b32 {v(T2)}, 4, v0")
    a("v_and_b32 v7, 7, v0")
    a("v_lshrrev_b32 v8, 3, v0")
    for c in range(3):
        a(f"s_add_u32 s4, s3, {c}")
        a("s_lshl_b32 s6, s4, 3")
        a("s_and_b32 s4, s4, 1")
        a("s_lshl_b32 s4, s4, 2")
        a(f"v_or_b32 {v(T0)}, s4, {v(T2)}")
        a(f"v_xor_b32 {v(T0)}, {v(T0)}, v7")
        a(f"v_add_u32 {v(T1)}, s6, v8")
        a(f"v_mul_u32_u24 {v(T1)}, 1280, {v(T1)}")
        a(f"v_lshl_add_u32 {v(OX + c)}, {v(T0)}, 4, {v(T1)}")
    a(f"s_lshl_b32 s3, {s(S_LW)}, 4")
    for c in range(3):
        a(f"v_bfe_u32 {v(T0)}, {v(RRc + c)}, 1, 1")
        a(f"v_lshlrev_b32 {v(T0)}, 1, {v(T0)}")
        a(f"v_xor_b32 {v(T0)}, {v(T0)}, {v(UUc + c)}")
        a(f"v_add_u32 {v(T1)}, s3, {v(RRc + c)}")
        a(f"v_mul_u32_u24 {v(T1)}, 12288, {v(T1)}")
        a(f"v_lshl_add_u32 {v(OW + c)}, {v(T0)}, 4, {v(T1)}")
        a(f"v_xor_b32 {v(T0)}, 64, {v(OW + c)}")
        a(f"v_add_u32 {v(OW + 3 + c)}, {8 * 12288}, {v(T0)}")
    a(f"s_mul_i32 {s(S_MW)}, {s(S_LW)}, 6144")
    a(f"s_mul_i32 {s(S_MX)}, {s(S_LW)}, 3072")
    a(f"s_add_u32 {s(S_MX)}, {s(S_MX)}, 24576")
    fb = {8: [0, 2, 4, 6, 8, 0, 2, 4], 9: [0, 5, 0, 5, 0, 5, 0, 5], 10: [0, 3, 5, 8, 0, 3, 5, 8],
          11: [0, 3, 7, 0, 3, 7, 0, 3]}[cfg.rot]
    word = sum(x << (4 * i) for i, x in enumerate(fb))
    a(f"s_lshl_b32 s3, {s(S_B)}, 2")
    a(f"s_lshr_b32 s3, {word:#x}, s3")
    a("s_and_b32 s3, s3, 15")
    a(f"s_lshl_b32 s4, {s(S_HH)}, 2")
    a("s_lshr_b32 s4, 0x8530, s4")
    a("s_and_b32 s4, s4, 15")
    a("s_add_u32 s3, s3, s4")
    a(f"s_add_u32 {s(S_KK)}, s3, {s(S_G8)}")
    mod_small(a, s(S_KK), 10, 2)
    a(f"s_mov_b32 {s(S_LDS)}, 0")
    a(f"s_mul_i32 s3, {s(S_B)}, 122880")
    a(f"s_mul_i32 s5, {s(S_H)}, 384")
    a("s_sub_u32 s4, 7864320, s5")
    st.cyc("pre", True) if cfg.only else None
    a("s_waitcnt lgkmcnt(0)")
    st.cyc("karg", True)
    srd(a, R_X, S_X, "s3", 122880)
    srd(a, R_WQ, S_WQ, "s5", "s4")

    def stage_body():
        a(f"s_mul_i32 {s(S_SW)}, {s(S_KK)}, {64 * 12288}")
        a(f"s_lshl_b32 {s(S_SX)}, {s(S_KK)}, 7")
        a(f"s_add_u32 s3, {s(S_LDS)}, {s(S_MW)}")
        a(f"s_add_u32 s4, {s(S_LDS)}, {s(S_MX)}")
        for c in range(3):
            dma(a, OX + c, R_X, s(S_SX), "s4", 1024 * c)
        for p in range(6):
            dma(a, OW + p, R_WQ, s(S_SW), "s3", 1024 * p, "nt" if cfg.ntkv & 8 else "")
        a(f"s_add_u32 {s(S_KK)}, {s(S_KK)}, 1")
        a(f"s_cmp_eq_u32 {s(S_KK)}, 10")
        a(f"s_cselect_b32 {s(S_KK)}, 0, {s(S_KK)}")
        a(f"s_add_u32 {s(S_LDS)}, {s(S_LDS)}, {SLOT}")
        a(f"s_cmp_eq_u32 {s(S_LDS)}, {3 * SLOT}")
        a(f"s_cselect_b32 {s(S_LDS)}, 0, {s(S_LDS)}")

    def call(lbl):
        a(f"s_call_b64 s[44:45], {lbl}")
    stage_body()
    if cfg.lprio:
        a("s_setprio 0")
    st.cyc("issued")
    a(f"s_lshl_b32 s3, {s(S_B)}, 7")
    a(f"s_add_u32 s3, s3, {OFF_F + FX}")
    a(f"s_add_u32 s4, {s(S_WS)}, s3")
    a(f"s_addc_u32 s5, {s(S_WS + 1)}, 0")
    a(f"s_load_dwordx2 {s(S_TAG, 2)}, s[4:5], 0")
    if cfg.kpos >= 9:
        table = {9: [1, 2, 3, 4, 5, 6, 7, 8], 11: [8, 8, 7, 7, 6, 6, 5, 5], 12: [8, 7, 6, 5, 8, 4, 3, 2],
                 13: [1, 8, 1, 8, 1, 8, 1, 8], 14: [1, 1, 8, 1, 1, 8, 1, 8],
                 20: [1, 8, 1, 1, 8, 1, 1, 8], 21: [1, 8, 8, 1, 8, 8, 1, 8], 22: [1, 8, 4, 1, 8, 4, 1, 8],
                 23: [1, 2, 1, 1, 2, 1, 1, 2], 24: [1, 8, 5, 3, 8, 6, 1, 8], 25: [0, 8, 1, 0, 8, 1, 0, 8],
                 26: [1, 8, 1, 8, 1, 8, 1, 8], 27: [0, 8, 0, 8, 0, 8, 0, 8],
                 15: [1, 2, 3, 4, 5, 6, 7, 1], 16: [1, 1, 2, 2, 3, 3, 4, 4], 17: [1, 1, 1, 1, 2, 2, 2, 2]}[cfg.kpos]
        word = sum(x << (4 * i) for i, x in enumerate(table))
        if cfg.kpos < 20:
            a(f"s_add_u32 s3, {s(S_B)}, {s(S_G8)}")
            a("s_and_b32 s3, s3, 7")
            a("s_lshl_b32 s3, s3, 2")
        else:
            a(f"s_lshl_b32 s3, {s(S_B)}, 2")
        a(f"s_lshr_b32 s3, {word:#x}, s3")
        a(f"s_and_b32 {s(S_PK)}, s3, 15")
    else:
        a(f"s_mov_b32 {s(S_PK)}, {cfg.kpos}")
    a(f"s_lshl_b32 s3, {s(S_B)}, 5")
    a(f"s_add_u32 s3, s3, {s(S_H)}")
    a("s_mul_i32 s3, s3, 36864")
    srd(a, R_K, S_K, "s3", 36864)
    srd(a, R_V, S_V, "s3", 36864)
    srd(a, R_F, S_WS, f"{OFF_F}", 262144)
    a(f"s_mul_i32 s3, {s(S_LW)}, 24")
    a(f"s_and_b32 s4, {s(S_LW)}, 1")
    a("s_lshl_b32 s4, s4, 6")
    for c in range(3):
        a(f"v_lshrrev_b32 {v(T0)}, 1, {v(RRc + c)}")
        a(f"v_add_u32 {v(T1)}, s3, {v(RRc + c)}")
        a(f"v_mul_u32_u24 {v(T1)}, 384, {v(T1)}")
        a(f"v_xor_b32 {v(T2)}, {v(T0)}, {v(UUc + c)}")
        a(f"v_lshl_add_u32 {v(T2)}, {v(T2)}, 4, {v(T1)}")
        a(f"v_xor_b32 {v(OK_ + c)}, s4, {v(T2)}")
        a(f"v_xor_b32 {v(T2)}, 64, {v(OK_ + c)}")
        a(f"v_add_u32 {v(OK_ + 3 + c)}, 3072, {v(T2)}")
        a(f"v_add_u32 {v(OK_ + 6 + c)}, 6144, {v(OK_ + c)}")
        a(f"v_lshlrev_b32 {v(T2)}, 1, {v(T0)}")
        a(f"v_xor_b32 {v(T2)}, {v(T2)}, {v(UUc + c)}")
        a(f"v_lshl_add_u32 {v(OV + c)}, {v(T2)}, 4, {v(T1)}")
        a(f"v_add_u32 {v(OV + 3 + c)}, 3072, {v(OV + c)}")
        a(f"v_add_u32 {v(OV + 6 + c)}, 6144, {v(OV + c)}")
    a(f"s_mul_i32 s3, {s(S_G8)}, 983040")
    a(f"s_mul_i32 s4, {s(S_HH)}, 320")
    a("s_add_u32 s3, s3, s4")
    a("s_sub_u32 s4, 7864320, s3")
    srd(a, R_WO, S_WO, "s3", "s4")
    if cfg.tpos == 1:
        a(f"s_mul_i32 s3, {s(S_G8)}, 983040")
        srd(a, 96, S_WO, "s3", 983040)
    if cfg.tx:
        a("s_lshr_b32 s3, s2, 3")
        a("s_lshl_b32 s3, s3, 2")
        a(f"s_add_u32 s3, s3, {s(S_LW)}")
        a("s_mul_i32 s3, s3, 7680")
        a(f"v_min_u32 {v(T0)}, 59, v0")
        a(f"v_lshl_add_u32 {v(AT)}, {v(T0)}, 7, s3")
    else:
        a(f"s_lshl_b32 s3, {s(S_B)}, 2")
        a(f"s_add_u32 s3, s3, {s(S_LW)}")
        a("s_mul_i32 s3, s3, 24")
        a(f"v_mul_u32_u24 {v(T1)}, 21846, v0")
        a(f"v_lshrrev_b32 {v(T1)}, 16, {v(T1)}")
        a(f"v_mul_u32_u24 {v(T2)}, 3, {v(T1)}")
        a(f"v_sub_u32 {v(T0)}, v0, {v(T2)}")
        a(f"v_add_u32 {v(T1)}, s3, {v(T1)}")
        a(f"v_mul_u32_u24 {v(T1)}, 1280, {v(T1)}")
        a(f"v_lshl_add_u32 {v(AT)}, {v(T0)}, 7, {v(T1)}")
        a(f"v_min_u32 {v(T0)}, 7, v0")
        a(f"v_add_u32 {v(T0)}, 64, {v(T0)}")
        a(f"v_mul_u32_u24 {v(T1)}, 21846, {v(T0)}")
        a(f"v_lshrrev_b32 {v(T1)}, 16, {v(T1)}")
        a(f"v_mul_u32_u24 {v(T2)}, 3, {v(T1)}")
        a(f"v_sub_u32 {v(T0)}, {v(T0)}, {v(T2)}")
        a(f"v_add_u32 {v(T1)}, s3, {v(T1)}")
        a(f"v_mul_u32_u24 {v(T1)}, 1280, {v(T1)}")
        a(f"v_lshl_add_u32 {v(AT2)}, {v(T0)}, 7, {v(T1)}")
    if cfg.lprio == 2:
        a("s_setprio 3")
    stage_body()

    def issue_kv(off, srd_, base, pieces=range(9)):
        a(f"s_mul_i32 s3, {s(S_LW)}, 9216")
        a(f"s_add_u32 s3, s3, {base}")
        for p in pieces:
            dma(a, off + p, srd_, "0", "s3", 1024 * p, "nt" if cfg.ntkv & (1 if srd_ == R_K else 2) else "")
    a("s_waitcnt vmcnt(9)")
    jitter(a, cfg, 6)
    st.cyc("landed0")
    a("s_barrier")
    a(f"s_mov_b32 {s(S_N)}, 0")
    a.label("L_lloop")
    a(f"s_cmp_eq_u32 {s(S_N)}, {s(S_PK)}")
    a("s_cbranch_scc0 L_nok")
    call("L_sub_k")
    a.label("L_nok")
    stage_body()
    a("s_waitcnt vmcnt(9)")
    a("s_barrier")
    a(f"s_add_u32 {s(S_N)}, {s(S_N)}, 1")
    a(f"s_cmp_lt_u32 {s(S_N)}, 8")
    a("s_cbranch_scc1 L_lloop")
    st.cyc("b8")
    if cfg.tpos == 8:
        a(f"s_mul_i32 s3, {s(S_G8)}, 983040")
        srd(a, R_X, S_WO, "s3", 983040)
        a(f"buffer_load_dword {v(JK)}, {v(AT)}, {s(R_X, 4)}, 0 offen")
    if cfg.ksplit:
        issue_kv(OK_, R_K, A_K, range(9 - cfg.ksplit, 9))
        a(f"s_waitcnt vmcnt({cfg.ksplit})")
        a("s_barrier")
        call("L_sub_v")
        a("s_branch L_kvdone")
    a(f"s_cmp_eq_u32 {s(S_PK)}, 8")
    a("s_cbranch_scc0 L_vonly")
    call("L_sub_k")
    a(f"s_waitcnt vmcnt({10 if cfg.tpos == 1 else 9})")
    a("s_barrier")
    call("L_sub_v")
    a("s_branch L_kvdone")
    a.label("L_sub_k")
    issue_kv(OK_, R_K, A_K, range(9 - cfg.ksplit))
    if cfg.tpos == 1:
        a(f"buffer_load_dword {v(JK)}, {v(AT)}, s[96:99], 0 offen")
    a("s_setpc_b64 s[44:45]")
    a.label("L_sub_v")
    issue_kv(OV, R_V, A_V)
    a("s_setpc_b64 s[44:45]")
    a.label("L_sub_wo")
    a(f"s_mul_i32 {s(S_SW)}, {s(S_KK)}, {64 * 1280}")
    a(f"s_add_u32 s3, {s(S_LDS)}, {s(S_MW)}")
    for p in range(5):
        dma(a, OWO + p, R_WO, s(S_SW), "s3", 1024 * p)
    a(f"s_add_u32 {s(S_KK)}, {s(S_KK)}, 1")
    a(f"s_cmp_eq_u32 {s(S_KK)}, 12")
    a(f"s_cselect_b32 {s(S_KK)}, 0, {s(S_KK)}")
    a(f"s_add_u32 {s(S_LDS)}, {s(S_LDS)}, {WOS}")
    a(f"s_cmp_eq_u32 {s(S_LDS)}, {4 * WOS}")
    a(f"s_cselect_b32 {s(S_LDS)}, 0, {s(S_LDS)}")
    a("s_setpc_b64 s[44:45]")
    a.label("L_sub_o")
    a(f"s_mul_i32 {s(S_SX)}, {s(S_PK)}, {OS}")
    a(f"s_add_u32 m0, {s(S_LDO)}, {s(S_MX)}")
    a(f"s_add_u32 {s(S_PK)}, {s(S_PK)}, 1")
    for c in range(3):
        a(f"buffer_load_dwordx4 {v(OO)}, {s(R_OI, 4)}, {s(S_SX)} offen offset:{1024 * c} {['sc1', '', 'nt'][cfg.unsafe % 9]} lds")
    a(f"s_cmp_eq_u32 {s(S_PK)}, 12")
    a(f"s_cselect_b32 {s(S_PK)}, 0, {s(S_PK)}")
    a(f"s_add_u32 {s(S_LDO)}, {s(S_LDO)}, {OS}")
    a(f"s_cmp_eq_u32 {s(S_LDO)}, {6 * OS}")
    a(f"s_cselect_b32 {s(S_LDO)}, 0, {s(S_LDO)}")
    a("s_setpc_b64 s[44:45]")
    a.label("L_vonly")
    call("L_sub_v")
    a("s_waitcnt vmcnt(9)")
    a("s_barrier")
    a.label("L_kvdone")
    a("s_waitcnt vmcnt(9)")
    jitter(a, cfg, 7)
    st.cyc("Kland")
    a("s_barrier")
    if cfg.tx:
        a(f"s_mul_i32 s3, {s(S_G8)}, 983040")
        srd(a, R_X, S_WO, "s3", 983040)
        touch = f"buffer_load_dword {v(JK)}, {v(AT)}, {s(R_X, 4)}, 0 offen"
    else:
        touch = (f"buffer_load_dword {v(JK)}, {v(AT)}, {s(R_WO, 4)}, 0 offen\n"
                 f"buffer_load_dword {v(JK + 2)}, {v(AT2)}, {s(R_WO, 4)}, 0 offen")
    if cfg.tpos == 10:
        a(touch)
    a(f"s_lshl_b32 s3, {s(S_B)}, 3")
    a(f"s_add_u32 s3, s3, {s(S_G8)}")
    a(f"s_mul_i32 s3, s3, {4 * 36864}")
    srd(a, R_OI, S_WS, "s3", 4 * 36864)
    a(f"s_lshl_b32 s3, {s(S_B)}, 2")
    a(f"s_add_u32 s3, s3, {s(S_HH)}")
    a(f"s_mul_i32 s3, s3, {8 * PSZ}")
    a(f"s_add_u32 s3, s3, {OFF_P}")
    srd(a, R_PI, S_WS, "s3", 8 * PSZ)
    a(f"s_mul_i32 {s(S_MW)}, {s(S_LW)}, 5120")
    a(f"s_add_u32 {s(S_MW)}, {s(S_MW)}, {WO0}")
    a(f"s_mul_i32 {s(S_MX)}, {s(S_LW)}, 3072")
    a(f"s_mul_i32 {s(S_KK)}, {s(S_HH)}, 3")
    a(f"s_add_u32 {s(S_PK)}, {s(S_KK)}, 3")
    a(f"s_cmp_eq_u32 {s(S_PK)}, 12")
    a(f"s_cselect_b32 {s(S_PK)}, 0, {s(S_PK)}")
    a(f"s_mov_b32 {s(S_LDS)}, {WOS}")
    a(f"s_mov_b32 {s(S_LDO)}, {3 * OS}")
    a("s_barrier")
    if cfg.lprio == 2:
        a("s_setprio 0")
    if cfg.tpos == 11:
        a(touch)
    a(f"s_lshl_b32 s3, {s(S_LW)}, 4")
    for c in range(5):
        a(f"v_add_u32 {v(T0)}, {64 * c}, v0")
        a(f"v_mul_u32_u24 {v(T1)}, 3277, {v(T0)}")
        a(f"v_lshrrev_b32 {v(T1)}, 16, {v(T1)}")
        a(f"v_mul_u32_u24 {v(T2)}, 20, {v(T1)}")
        a(f"v_sub_u32 {v(T0)}, {v(T0)}, {v(T2)}")
        a(f"v_lshrrev_b32 {v(T2)}, 1, {v(T1)}")
        a(f"v_and_b32 {v(T2)}, 2, {v(T2)}")
        a(f"v_xor_b32 {v(T0)}, {v(T0)}, {v(T2)}")
        a(f"v_add_u32 {v(T1)}, s3, {v(T1)}")
        a(f"v_mul_u32_u24 {v(T1)}, 1280, {v(T1)}")
        a(f"v_lshl_add_u32 {v(OWO + c)}, {v(T0)}, 4, {v(T1)}")
    a(f"v_lshl_add_u32 {v(OO)}, v0, 4, {s(S_MX)}")
    a(f"s_lshl_b32 s3, {s(S_B)}, 5")
    a(f"s_add_u32 s3, s3, {s(S_H)}")
    if not cfg.pfl & 1:
        a("s_lshr_b32 s3, s3, 2")
    a("s_lshl_b32 s3, s3, 7")
    a(f"v_and_b32 {v(T0)}, 15, v0")
    a(f"v_lshl_add_u32 {v(AF1)}, {v(T0)}, 3, s3")
    a("s_waitcnt lgkmcnt(0)")
    a(f"s_add_u32 {s(S_TAG)}, {s(S_TAG)}, {TAGC[0]:#x}")
    a(f"s_addc_u32 {s(S_TAG + 1)}, {s(S_TAG + 1)}, {TAGC[1]:#x}")
    a(f"v_mov_b32 {v(TG)}, {s(S_TAG)}")
    a(f"v_mov_b32 {v(TG + 1)}, {s(S_TAG + 1)}")
    a(f"v_mov_b32 {v(T0)}, {A_TAG}")
    a(f"ds_write_b64 {v(T0)}, {v(TG, 2)}")
    a(f"s_waitcnt vmcnt({(1 if cfg.tx else 2) if cfg.tpos in (10, 11) else 0}) lgkmcnt(0)")
    jitter(a, cfg, 8)
    st.cyc("Vland")
    if cfg.lprio == 2:
        a("s_setprio 3")
    a("s_barrier")
    if cfg.tpos == 12:
        a(touch)
    a(f"s_mul_i32 s3, {s(S_B)}, 122880")
    a(f"s_mul_i32 s4, {s(S_HH)}, 320")
    a("s_add_u32 s3, s3, s4")
    a("s_sub_u32 s4, 983040, s3")
    srd(a, R_OUT, S_OUT, "s3", "s4")
    assert cfg.w12 <= 2
    for _ in range(cfg.w12):
        call("L_sub_wo")
    a("s_barrier")
    for _ in range(cfg.w13):
        call("L_sub_wo")

    def poll(name, vaddr):
        a(f"s_mov_b32 s3, {SPIN_MAX}")
        a.label(name)
        a(f"buffer_load_dwordx2 {v(PT, 2)}, {v(vaddr)}, {s(R_F, 4)}, 0 offen sc1")
        a("s_sub_u32 s3, s3, 1")
        a("s_cmp_eq_u32 s3, 0")
        a(f"s_cbranch_scc1 {name}_out")
        a("s_waitcnt vmcnt(0)")
        a(f"v_cmp_ne_u64 vcc, {v(PT, 2)}, {v(TG, 2)}")
        a("s_nop 1")
        a(f"s_cbranch_vccnz {name}")
        a.label(name + "_out")
        a("s_waitcnt vmcnt(0)")

    BARS = ["B0", "B1", "B2", "BX"] + [f"B{n}" for n in range(3, 12)]
    own_mask = "s[4:5]"

    def run(path, tokens, state, alts):
        q, nwo, no, bi = state
        q = list(q)
        for k, ch in enumerate(tokens):
            free = -1 if bi < 2 else (bi - 2 if bi <= 4 else bi - 3)
            if ch == "w":
                assert nwo <= max(3, free + 4), (path, k, nwo, free)
                call("L_sub_wo")
                q.append((nwo, 5))
                nwo += 1
            elif ch == "o":
                assert no <= max(5, free + 6), (path, k, no, free)
                call("L_sub_o")
                q.append((no, 3))
                no += 1
            elif ch == "c":
                if cfg.sent:
                    a("s_mov_b32 s3, 4096")
                    for kk in range(8):
                        a(f"buffer_store_dwordx4 {v(CL, 4)}, {v(ACL)}, {s(R_PO, 4)}, {'s3' if kk >= 4 else '0'} offen offset:{1024 * (kk % 4)} sc1")
                    q.append((11, 8))
            elif ch == "p":
                a(f"buffer_load_dwordx2 {v(PT, 2)}, {v(AF1)}, {s(R_F, 4)}, 0 offen sc1")
                q.append((99, 1))
            elif ch in "ab":
                last = max(i for i, (kk, _) in enumerate(q) if kk == 99)
                a(f"s_waitcnt vmcnt({sum(c for _, c in q[last + 1:])})")
                q = q[last + 1:]
                a(f"v_cmp_ne_u64 vcc, {v(PT, 2)}, {v(TG, 2)}")
                a("s_nop 1")
                a(f"s_and_b64 s[4:5], vcc, {s(S_OM, 2)}")
                a(f"s_cbranch_scc0 L_path_{ch}")
                alts[ch] = (q, nwo, no, bi)
            elif ch == "s":
                poll("L_poll1", AF1)
                q = []
            elif ch == "|":
                name = BARS[bi]
                need = {"BX": -1}.get(name, int(name[1:]) if name != "BX" else -1)
                if need >= 0:
                    assert nwo > need and (need < 3 or no > need), (path, name)
                    last = max([i for i, (kk, _) in enumerate(q) if kk <= need] + [-1])
                    cnt = sum(c for _, c in q[last + 1:])
                    if last >= 0:
                        a(f"s_waitcnt vmcnt({cnt})")
                    q = q[last + 1:]
                a("s_barrier")
                bi += 1
        assert bi == len(BARS) and nwo == 12 and no == 12, (path, bi, nwo, no)
    CL, ACL, R_PO = 112, 116, 8
    if cfg.sent:
        a(f"s_lshl_b32 s3, {s(S_B)}, 2")
        a(f"s_add_u32 s3, s3, {s(S_HH)}")
        a("s_lshl_b32 s3, s3, 3")
        a(f"s_add_u32 s3, s3, {s(S_G8)}")
        a(f"s_mul_i32 s3, s3, {PSZ}")
        a(f"s_add_u32 s3, s3, {OFF_P}")
        srd(a, R_PO, S_WS, "s3", PSZ)
        a(f"s_mul_i32 s3, {s(S_LW)}, 7680")
        a(f"v_lshl_add_u32 {v(ACL)}, v0, 4, s3")
        for kk in range(4):
            a(f"v_mov_b32 {v(CL + kk)}, -1")
    S_OM = 4 * 0 + 40
    a(f"s_lshl_b32 s3, {s(S_HH)}, 2")
    a("s_lshl_b32 s3, 0x000f000f, s3")
    a(f"s_not_b32 {s(S_OM)}, s3")
    a(f"s_mov_b32 {s(S_OM + 1)}, {s(S_OM)}")
    a("s_barrier")
    jitter(a, cfg, 10)
    if cfg.tpos == 15:
        a(touch)
    tabs = {
        1: dict(N="wp a|ww|wp|b|ww s ooo|wo|wo|wo|wo|wo|wo|||",
                a="|ww|w ooo||w|wo|wo|wo|wo|wo|wo|w||",
                b="ooo|w|wo|wo|wo|wo|wo|wo|w||"),
        2: dict(N="wp a|ww|wp|b|ww s ooo|wo|wo|wo|wo|wo|wo|||",
                a="|ww|w ooo||w|wwo|wo|wo|wo|wo|wo|||",
                b="ooo|w|wwo|wo|wo|wo|wo|wo|||"),
        3: dict(N="wp a|ww|wp|b|www s ooo|ooo|w|w|w|oo|w|wo||",
                a="|ww|w ooo||ww|wo|wo|wo|wo|wo|wo|||",
                b="ooo|ww|wo|wo|wo|wo|wo|wo|||"),
        4: dict(N="w|ww|wp|b|ww s ooo|wo|wo|wo|wo|wo|woc|||",
                b="ooo|w|wo|wo|wo|wo|wo|wo|wc||"),
        8: dict(N="wp|ww a|wp|b|ww s ooo|wo|wo|wo|wo|wo|wo|||",
                a="ooo|w||w|wo|wo|wo|wo|wo|wo|w||",
                b="ooo|w|wo|wo|wo|wo|wo|wo|w||"),
        9: dict(N="w|wpw a|wp|b|ww s ooo|wo|wo|wo|wo|wo|wo|||",
                a="ooo|w||w|wo|wo|wo|wo|wo|wo|w||",
                b="ooo|w|wo|wo|wo|wo|wo|wo|w||"),
        10: dict(N="w|wwp|a wp|b|ww s ooo|wo|wo|wo|wo|wo|wo|||",
                 a="w ooo||w|wo|wo|wo|wo|wo|wo|w||",
                 b="ooo|w|wo|wo|wo|wo|wo|wo|w||"),
        11: dict(N="w|wwp|a wp|b|ww s ooo|wo|wo|wo|wo|wo|wo|||",
                 a="w oo||wo|wo|wo|wo|wo|wo|wo|w||",
                 b="oo|wo|wo|wo|wo|wo|wo|wo|w||"),
        12: dict(N="w|ww|pw|b|ww s ooo|wo|wo|wo|wo|wo|wo|||",
                 b="ooo|w|wo|wo|wo|wo|wo|wo|w||"),
        13: dict(N="w|ww|pw|b|ww s ooo|wo|wo|wo|wo|wo|wo|||",
                 b="ooo|w|wwo|wo|wo|wo|wo|wo|||"),
        14: dict(N="w|ww|pw|b wp|a w s ooo|wo|wo|wo|wo|wo|wo|||" if False else "w|ww|pw|b|wp a w s ooo|wo|wo|wo|wo|wo|wo|||",
                 a="ooo w|wo|wo|wo|wo|wo|wo|||",
                 b="ooo|w|wo|wo|wo|wo|wo|wo|w||"),
        15: dict(N="w|ww|w|p|w b w s ooo|wo|wo|wo|wo|wo|wo|||",
                 b="ooo w|wo|wo|wo|wo|wo|wo|||"),
        16: dict(N="w|www|p|b|ww s ooo|wo|wo|wo|wo|wo|wo|||",
                 b="ooo|w|wo|wo|wo|wo|wo|wo|w||"),
        7: dict(N="w|ww|wp|b|ww s ooo|wo|wo|wo|wo|wo|wo|c||",
                b="ooo|w|wwo|wo|wo|wo|wo|woc|||"),
        5: dict(N="wp a|ww|wp|b|ww s ooo|wo|wo|wo|wo|wo|wo|||",
                a="|ww|w oo||wo|wo|wo|wo|wo|wo|wo|w||",
                b="oo|wo|wo|wo|wo|wo|wo|wo|w||"),
        6: dict(N="wp a|ww|wp|b|ww s ooo|wo|wo|wo|wo|wo|wo|||",
                a="|www ooo|||w|wwo|wo|wo|wo|wo|wo|||",
                b="ooo|w|wwo|wo|wo|wo|wo|wo|||"),
    }[cfg.tab]
    alts = {}
    npre = cfg.w12 + cfg.w13
    if npre == 1:
        tabs = dict(N="w|w|wp|b|ww s ooo|wo|wo|wo|wo|wo|wo|||", b=tabs["b"])
    elif npre == 2:
        tabs = dict(N="w||wp|b|ww s ooo|wo|wo|wo|wo|wo|wo|||", b=tabs["b"])
    elif npre == 3:
        tabs = dict(N="w||p|b|ww s ooo|wo|wo|wo|wo|wo|wo|||", b=tabs["b"])
    run("N", tabs["N"].replace(" ", ""), ([(k, 5) for k in range(npre)], npre, 3, 0), alts)
    a("s_branch L_final")
    for key in sorted(alts):
        a.label(f"L_path_{key}")
        run(key, tabs[key].replace(" ", ""), alts[key], {})
        if key != sorted(alts)[-1]:
            a("s_branch L_final")
    a.label("L_final")
    jitter(a, cfg, 9)
    OFFS = RT
    a(f"s_lshr_b32 s5, {s(S_G8)}, 2")
    if cfg.pfl & 2:
        a(f"s_lshl_b32 s3, {s(S_B)}, 5")
        a(f"s_add_u32 s3, s3, {s(S_H)}")
    else:
        a(f"s_lshl_b32 s3, {s(S_B)}, 2")
        a(f"s_add_u32 s3, s3, {s(S_HH)}")
        a("s_lshl_b32 s3, s3, 1")
        a("s_add_u32 s3, s3, s5")
    a("s_lshl_b32 s3, s3, 7")
    a(f"s_add_u32 s3, s3, {F2}")
    a(f"v_and_b32 {v(T0)}, 15, v0")
    a(f"v_lshl_add_u32 {v(AF2)}, {v(T0)}, 3, s3")
    a(f"s_and_b32 s6, {s(S_G8)}, 3")
    a("s_mul_i32 s6, s6, 3")
    a("s_mul_i32 s5, s5, 7680")
    a(f"s_mul_i32 s4, {s(S_G8)}, {0 if cfg.otr else 12 * 1280}")
    a(f"s_cmp_eq_u32 {s(S_LW)}, 3")
    a("s_cbranch_scc1 L_red3")
    a(f"s_add_u32 s6, s6, {s(S_LW)}")
    a("s_lshr_b32 s3, s6, 2")
    a("s_mul_i32 s3, s3, 2560")
    a("s_add_u32 s5, s5, s3")
    a("s_and_b32 s6, s6, 3")
    a("s_lshl_b32 s6, s6, 8")
    a("s_add_u32 s5, s5, s6")
    a(f"s_mul_i32 s3, {s(S_LW)}, {4 * (320 if cfg.otr else 1280)}")
    a("s_add_u32 s4, s4, s3")
    a("v_lshrrev_b32 v7, 5, v0")
    a("v_bfe_u32 v8, v0, 4, 1")
    a(f"v_mul_u32_u24 v9, 15360, v7")
    a("v_lshl_add_u32 v9, v8, 10, v9")
    a(f"v_lshl_add_u32 v9, {v(T0)}, 4, v9")
    a(f"v_add_u32 {v(OFFS)}, s5, v9")
    a("v_and_b32 v9, 3, v0")
    a(f"v_mul_u32_u24 v9, {320 if cfg.otr else 1280}, v9")
    a("v_mul_u32_u24 v7, 160, v7")
    a("v_lshl_add_u32 v7, v8, 6, v7")
    a("v_bfe_u32 v8, v0, 2, 2")
    a("v_lshl_add_u32 v7, v8, 3, v7")
    a("v_add3_u32 " + f"{v(A0)}, v7, v9, s4")
    a(f"v_add_u32 {v(A1)}, 32, {v(A0)}")
    a("s_branch L_red")
    a.label("L_red3")
    a("v_min_u32 v10, 47, v0")
    a("v_lshrrev_b32 v7, 4, v10")
    a("v_add_u32 v8, s6, v7")
    a("v_lshrrev_b32 v9, 2, v8")
    a("v_mul_u32_u24 v9, 2560, v9")
    a("v_and_b32 v8, 3, v8")
    a("v_lshl_add_u32 v9, v8, 7, v9")
    a("v_bfe_u32 v8, v10, 3, 1")
    a("v_mul_u32_u24 v11, 15360, v8")
    a("v_add_u32 v9, v9, v11")
    a("v_and_b32 v11, 7, v10")
    a("v_lshl_add_u32 v9, v11, 4, v9")
    a("s_add_u32 s5, s5, 2048")
    a(f"v_add_u32 {v(OFFS)}, s5, v9")
    a("v_and_b32 v11, 1, v10")
    a("v_lshl_add_u32 v7, v7, 1, v11")
    a(f"v_mul_u32_u24 v7, {640 if cfg.otr else 2560}, v7")
    a("v_mul_u32_u24 v8, 160, v8")
    a("v_bfe_u32 v11, v10, 1, 2")
    a("v_lshl_add_u32 v8, v11, 3, v8")
    a("s_add_u32 s4, s4, 128")
    a("v_add3_u32 " + f"{v(A0)}, v7, v8, s4")
    a(f"v_add_u32 {v(A1)}, {320 if cfg.otr else 1280}, {v(A0)}")
    a.label("L_red")
    if cfg.otr:
        a(f"s_lshl_b32 s4, {s(S_LW)}, 6")
        a("v_add_u32 v7, s4, v0")
        a("v_min_u32 v7, 239, v7")
        a(f"v_lshlrev_b32 {v(RT + 1)}, 4, v7")
        a("v_mul_u32_u24 v8, 3277, v7")
        a("v_lshrrev_b32 v8, 16, v8")
        a("v_mul_u32_u24 v8, 960, v8")
        a(f"s_mul_i32 s4, {s(S_G8)}, {12 * 1280}")
        a(f"v_add3_u32 {v(RT + 2)}, v8, {v(RT + 1)}, s4")
    D0, AC = 80, 148
    if cfg.b12x:
        a("s_barrier")

    def load_part(g):
        a(f"s_mov_b32 s3, {PSZ * g}")
        a(f"buffer_load_dwordx4 {v(D0 + 4 * g, 4)}, {v(OFFS)}, {s(R_PI, 4)}, s3 offen {['sc1', '', 'nt', 'sc0 sc1', 'sc1 nt'][cfg.pld]}")
    if not cfg.dynred:
        poll("L_poll2", AF2)
        st.cyc("seen2")
        for g in range(8):
            load_part(g)
    elif cfg.dynred == 1:
        a(f"s_mov_b32 s7, {SPIN_MAX}")
        a("s_mov_b32 s6, 0")
        a.label("L_poll2")
        a(f"buffer_load_dwordx2 {v(PT, 2)}, {v(AF2)}, {s(R_F, 4)}, 0 offen sc1")
        a("s_sub_u32 s7, s7, 1")
        a("s_cmp_eq_u32 s7, 0")
        a("s_cbranch_scc1 L_poll2_out")
        a("s_waitcnt vmcnt(0)")
        a(f"v_cmp_eq_u64 vcc, {v(PT, 2)}, {v(TG, 2)}")
        a("s_nop 1")
        a("s_lshr_b32 s5, vcc_lo, 8")
        a("s_and_b32 s5, s5, vcc_lo")
        a("s_and_b32 s5, s5, 0xff")
        a("s_andn2_b32 s4, s5, s6")
        a("s_cbranch_scc0 L_poll2")
        if cfg.thr:
            a("s_bcnt1_i32_b32 s3, s5")
            a("s_cmp_eq_u32 s6, 0")
            a(f"s_cselect_b32 s8, {cfg.thr}, 8")
            a("s_cmp_lt_u32 s3, s8")
            a("s_cbranch_scc1 L_poll2")
        a("s_or_b32 s6, s6, s5")
        for g in range(8):
            a(f"s_bitcmp1_b32 s4, {g}")
            a(f"s_cbranch_scc0 L_r{g}")
            load_part(g)
            a.label(f"L_r{g}")
        a("s_cmp_eq_u32 s6, 0xff")
        a("s_cbranch_scc0 L_poll2")
        a.label("L_poll2_out")
        st.cyc("seen2")
        a("s_waitcnt vmcnt(0)")
    else:
        U0 = 120
        a(f"s_mov_b32 s7, {SPIN_MAX}")
        a("s_mov_b32 s6, 0")
        a("s_mov_b32 s8, 0")
        a("s_mov_b32 s9, 0")
        a("s_branch L_poll2")
        a.label("L_widen")
        for g in range(8):
            a(f"s_bitcmp1_b32 s8, {g}")
            a(f"s_cbranch_scc0 L_u{g}")
            for r in range(4):
                a(f"v_lshlrev_b32 {v(U0 + 8 * g + 2 * r)}, 16, {v(D0 + 4 * g + r)}")
                a(f"v_and_b32 {v(U0 + 8 * g + 2 * r + 1)}, 0xffff0000, {v(D0 + 4 * g + r)}")
            a.label(f"L_u{g}")
        a("s_mov_b32 s8, 0")
        a("s_setpc_b64 s[44:45]")
        a.label("L_poll2")
        a(f"buffer_load_dwordx2 {v(PT, 2)}, {v(AF2)}, {s(R_F, 4)}, 0 offen sc1")
        a("s_cmp_eq_u32 s8, 0")
        a("s_cbranch_scc1 L_nowiden")
        call("L_widen")
        a.label("L_nowiden")
        a("s_sub_u32 s7, s7, 1")
        a("s_cmp_eq_u32 s7, 0")
        a("s_cbranch_scc1 L_poll2_out")
        a("s_waitcnt vmcnt(0)")
        a(f"v_cmp_eq_u64 vcc, {v(PT, 2)}, {v(TG, 2)}")
        a("s_mov_b32 s8, s9")
        a("s_mov_b32 s9, 0")
        a("s_and_b32 s5, vcc_lo, 0xff")
        a("s_andn2_b32 s9, s5, s6")
        a("s_cbranch_scc0 L_poll2")
        a("s_or_b32 s6, s6, s5")
        for g in range(8):
            a(f"s_bitcmp1_b32 s9, {g}")
            a(f"s_cbranch_scc0 L_r{g}")
            load_part(g)
            a.label(f"L_r{g}")
        a("s_cmp_eq_u32 s6, 0xff")
        a("s_cbranch_scc0 L_poll2")
        a.label("L_poll2_out")
        st.cyc("seen2")
        call("L_widen")
        a("s_mov_b32 s8, s9")
        a("s_waitcnt vmcnt(0)")
        call("L_widen")
        for g in range(1, 8):
            for r in range(4):
                a(f"v_pk_add_f32 {v(U0 + 2 * r, 2)}, {v(U0 + 2 * r, 2)}, {v(U0 + 8 * g + 2 * r, 2)}")
        AC = U0
    if cfg.sent:
        assert cfg.dynred
        a("s_mov_b32 s7, 4096")
        a.label("L_chk")
        a(f"v_max3_u32 v4, {v(D0)}, {v(D0 + 1)}, {v(D0 + 2)}")
        a(f"v_max3_u32 v5, {v(D0 + 3)}, {v(D0 + 4)}, {v(D0 + 5)}")
        for kk in range(6, 30, 4):
            a(f"v_max3_u32 v4, v4, {v(D0 + kk)}, {v(D0 + kk + 1)}")
            a(f"v_max3_u32 v5, v5, {v(D0 + kk + 2)}, {v(D0 + kk + 3)}")
        a(f"v_max3_u32 v4, v4, {v(D0 + 30)}, {v(D0 + 31)}")
        a("v_max_u32 v4, v4, v5")
        a("v_cmp_eq_u32 vcc, -1, v4")
        a("s_sub_u32 s7, s7, 1")
        a("s_cselect_b32 s6, 0, 1")
        a("s_and_b32 s4, vcc_lo, -1")
        a("s_or_b32 s4, s4, vcc_hi")
        a("s_cselect_b32 s6, s6, 0")
        a("s_cmp_eq_u32 s6, 0")
        a("s_cbranch_scc1 L_chk_ok")
        for g in range(8):
            load_part(g)
        a("s_waitcnt vmcnt(0)")
        a("s_branch L_chk")
        a.label("L_chk_ok")
        st.cyc("chk")
    for g in range(8 if cfg.dynred < 2 else 0):
        if not cfg.dynred:
            a(f"s_waitcnt vmcnt({7 - g})")
        for r in range(4):
            src = D0 + 4 * g + r
            if g == 0:
                a(f"v_lshlrev_b32 {v(AC + 2 * r)}, 16, {v(src)}")
                a(f"v_and_b32 {v(AC + 2 * r + 1)}, 0xffff0000, {v(src)}")
            else:
                t = 4 + 2 * (r % 2)
                a(f"v_lshlrev_b32 {v(t)}, 16, {v(src)}")
                a(f"v_and_b32 {v(t + 1)}, 0xffff0000, {v(src)}")
                a(f"v_pk_add_f32 {v(AC + 2 * r, 2)}, {v(AC + 2 * r, 2)}, {v(t, 2)}")
    for r in range(4):
        a(cvt(D0 + r, AC + 2 * r))
    fl = ['', 'sc1', 'nt', 'sc0 sc1'][cfg.outfl]
    jitter(a, cfg, 11)
    if cfg.otr:
        a(f"ds_write_b64 {v(A0)}, {v(D0, 2)}")
        a(f"ds_write_b64 {v(A1)}, {v(D0 + 2, 2)}")
        a(lg(0))
        a("s_barrier")
        a(f"ds_read_b128 {v(D0 + 4, 4)}, {v(RT + 1)}")
        a(lg(0))
        a(f"buffer_store_dwordx4 {v(D0 + 4, 4)}, {v(RT + 2)}, {s(R_OUT, 4)}, 0 offen {fl}")
    elif cfg.unsafe == 9:
        a("s_mul_i32 s3, s2, 3840")
        srd(a, 8, S_OUT, "s3", 3840)
        a(f"v_lshlrev_b32 v7, 4, v7")
        a(f"buffer_store_dwordx4 {v(D0, 4)}, v7, s[8:11], 0 offen {fl}")
    else:
        a(f"buffer_store_dwordx2 {v(D0, 2)}, {v(A0)}, {s(R_OUT, 4)}, 0 offen {fl}")
        a(f"buffer_store_dwordx2 {v(D0 + 2, 2)}, {v(A1)}, {s(R_OUT, 4)}, 0 offen {fl}")
    a(f"s_or_b32 s3, {s(S_H)}, {s(S_LW)}")
    a("s_cmp_eq_u32 s3, 0")
    a("s_cbranch_scc0 L_noep")
    a(f"s_lshl_b32 s3, {s(S_B)}, 7")
    a(f"s_add_u32 s3, s3, {FX}")
    a("v_mov_b32 v4, 0")
    a("s_mov_b64 exec, 1")
    a(f"buffer_store_dwordx2 {v(TG, 2)}, v4, {s(R_F, 4)}, s3 offen")
    a.label("L_noep")
    if cfg.diag:
        a("s_waitcnt vmcnt(0)")
    st.cyc("end")
    st.real("real1")
    st.flush("L")


HEADER = """
GQA block (B=8, Sq=Sk=96, D=640, H=32, Dh=192), one launch, one workgroup per (batch b, head h).
Kernarg: x +0, k_cache +8, v_cache +16, wq +24, wo +32, out +40, debug +48, workspace +56.
Workgroup id = (b*4 + h%4)*8 + h/4, so the four heads of a head group and all batches of that group share
an XCD under round-robin placement (speed only; every hand-off below is placement independent).

Waves 4..7 stream operands into LDS with LDS-DMA, waves 0..3 (2 x 2 tiles of 16x16x32 bf16 MFMA) compute:
  1. Q^T = wq_h^T x_b^T          ten 64-deep stages through a ring of three LDS slots
  2. S^T = K Q^T, row max over all 96 keys (exchanged between wave pairs), P = exp2(c (S - max))
  3. O^T = V^T P^T / rowsum      (row sums from an extra MFMA with a ones operand)
  4. O goes to the workspace (write-through stores, then a flag); the workgroup takes the O of the other
     three heads of its group and multiplies the 96 x 768 block by a 768 x 160 slice of wo
  5. the 96 x 160 partial product goes to the workspace in bf16 (write-through, then flags); workgroup
     (b, h) sums rows 12*(h/4).. +11 of the eight head groups' partials in f32 and writes the output.

Workspace: +0 O tiles (256 x 36864 B), +16 MiB partial tiles (256 x 30720 B), +32 MiB flags and epoch words.
A flag is valid when it equals this launch's tag = (epoch word of the batch) + constant; the epoch word is
read before any flag of the workgroup is written and is set to the tag once the whole batch has read it,
so flags left by an earlier launch never match.
"""


def generate(cfg):
    a = Asm()
    for ln in HEADER.strip("\n").split("\n"):
        a.lines.append(("; " + ln).rstrip())
    a.lines.append("; @launch grid=(256,1,1) block=(512,1,1) lds=163840")
    a('.amdgcn_target "amdgcn-amd-amdhsa--gfx950"')
    a(".text")
    a(kernel_header(KN))
    a("s_cmp_ge_u32 s2, 256")
    a("s_cbranch_scc1 L_end")
    a("s_load_dwordx16 s[32:47], s[0:1], 0")
    if cfg.diag:
        a(f"s_memrealtime {s(S_T, 2)}")
        a(f"s_memtime {s(S_T + 2, 2)}")
    a("v_lshrrev_b32 v1, 6, v0")
    a("v_and_b32 v0, 63, v0")
    a(f"v_readfirstlane_b32 {s(S_WAVE)}, v1")
    a(f"s_and_b32 {s(S_G8)}, s2, 7")
    a("s_lshr_b32 s4, s2, 3")
    a(f"s_lshr_b32 {s(S_B)}, s4, 2")
    a(f"s_and_b32 {s(S_HH)}, s4, 3")
    a(f"s_lshl_b32 s3, {s(S_G8)}, 2")
    a(f"s_add_u32 {s(S_H)}, s3, {s(S_HH)}")
    a(f"s_cmp_ge_u32 {s(S_WAVE)}, 4")
    a("s_cbranch_scc1 L_loader")
    if cfg.ipf:
        a("s_getpc_b64 s[62:63]")
        a.label("L_pc")
        a(f"s_sub_u32 s62, s62, L_pc-{KN}")
        a("s_subb_u32 s63, s63, 0")
        a(f"s_mul_i32 s3, {s(S_WAVE)}, 28")
        a("v_min_u32 v7, 27, v0")
        a("v_add_u32 v7, s3, v7")
        a("v_lshlrev_b32 v7, 7, v7")
        a(f"v_min_u32 v7, L_last-{KN}, v7")
        if cfg.ipf & 1:
            a("global_load_dword v14, v7, s[62:63]")
    a("s_branch L_compute")
    a.label("L_loader")
    gen_loader(a, cfg)
    a.label("L_end")
    a("s_endpgm")
    a.label("L_compute")
    gen_compute(a, cfg)
    a('.section .rodata,"a"')
    a(".p2align 6")
    a(kernel_desc(KN))
    return a.text()


if __name__ == "__main__":
    cfg = Cfg()
    out = sys.argv[1]
    for opt in sys.argv[2:]:
        k, val = opt.split("=")
        assert hasattr(cfg, k), k
        setattr(cfg, k, val if k == "only" else int(val))
    t = generate(cfg)
    pr = hazard.check(t) + hazard.check_counters(t)
    for p in pr:
        print(f"HAZARD line {p[0]} -> {p[1]}: need {p[2]} have {p[3]}\n    {p[4]}\n    {p[5]}")
    open(out, "w").write(t)
    print(out, "hazards:", len(pr), "lines:", t.count("\n"))
```

```python
import struct
import sys

from asmlib import Asm, v, s, kernel_header, kernel_desc
import hazard

KN = "standalone__gqa_block_cached__near_ridge_kernel"
OFF_O = 0
OFF_P = 16 << 20
OFF_F = 32 << 20
F1, F2, FX = 0, 65536, 131072
OFF_T = 64 << 20
SLOT = 36864
A_K = 3 * SLOT
A_V = 1 * SLOT
A_Q = 2 * SLOT
A_P = 2 * SLOT
A_M = 163840 - 768
A_TAG = A_M - 8
WO0, WOS = 81920, 20480
OS = 12288
PSZ = 30720
CEXP = 0.07216878364870322 * 1.4426950408889634
TAGC = (0x9E3779B9, 0x7F4A7C15)
SPIN_MAX = 1 << 21


def f32bits(x):
    return struct.unpack("<I", struct.pack("<f", x))[0]


class Cfg:
    diag = 0
    only = ""
    rot = 10
    kpos = 9
    dynred = 0
    outfl = 0
    ipf = 1
    tx = 1
    tab = 12
    unsafe = 0
    ishare = 2
    thr = 0
    b12x = 1
    ksplit = 0
    tlb = 0
    jit = 0
    pfl = 2
    otr = 1
    ntkv = 3
    lprio = 1
    sent = 0
    smx = 2
    vbp = 2
    fin = 2
    qv = 6
    sv = 1
    wper = 5
    odef = 1
    fw = 2
    dot2 = 0
    tpos = 10
    w12 = 0
    w13 = 0
    pst = 0
    pld = 0


S_X, S_K, S_V, S_WQ, S_WO, S_OUT, S_DBG, S_WS = 32, 34, 36, 38, 40, 42, 44, 46
S_B, S_H, S_WAVE, S_G8, S_HH = 28, 29, 30, 31, 48
S_TAG = 60
R_F = 24
S_T = 64


class Stamps:
    def __init__(self, a, cfg):
        self.a, self.on, self.n = a, cfg.diag, 2
        self.fine = cfg.diag > 1
        self.names = ["real0", "cyc0"]
        self.k = 0
        self.only = cfg.only.split(",") if cfg.only else None

    def real(self, name):
        if self.on:
            self.a(f"s_memrealtime {s(S_T + 2 * self.n, 2)}")
            self.names.append(name)
            self.n += 1

    def cyc(self, name, fine=False):
        if self.only and name not in self.only:
            return
        if not self.only and len(name) <= 3 and name[0] in "afB" and name[1:].isdigit() and name != "B0":
            return
        if self.on and (not fine or self.fine or self.only):
            self.a(f"{'s_memrealtime' if self.on > 2 else 's_memtime'} {s(S_T + 2 * self.n, 2)}")
            self.names.append(name)
            self.n += 1

    def alt(self, name, path, fine=False):
        if path == "N":
            return self.cyc(name, fine)
        if not self.on or (self.only and name not in self.only) or (fine and not self.only):
            return
        self.a(f"{'s_memrealtime' if self.on > 2 else 's_memtime'} {s(S_T + 2 * (self.n + self.k), 2)}")
        self.k += 1

    def flush(self, role, vt=4):
        if not self.on:
            return
        a = self.a
        assert self.n <= 19, self.n
        a("s_waitcnt lgkmcnt(0) vmcnt(0)")
        a(f"; STAMPS {role} " + " ".join(self.names))
        a("s_lshl_b32 s3, s2, 3")
        a(f"s_add_u32 s3, s3, {s(S_WAVE)}")
        a("s_lshl_b32 s3, s3, 8")
        a(f"s_add_u32 s3, s3, {OFF_T}")
        a(f"s_add_u32 s4, {s(S_WS)}, s3")
        a(f"s_addc_u32 s5, {s(S_WS + 1)}, 0")
        a("s_mov_b64 exec, 1")
        a(f"v_mov_b32 {v(vt + 2)}, 0")
        for i in range(self.n):
            a(f"v_mov_b32 {v(vt)}, {s(S_T + 2 * i)}")
            a(f"v_mov_b32 {v(vt + 1)}, {s(S_T + 2 * i + 1)}")
            a(f"global_store_dwordx2 {v(vt + 2)}, {v(vt, 2)}, s[4:5] offset:{8 * i}")
            a("s_nop 1")
        a("s_waitcnt vmcnt(0)")


def srd(a, d, base, off_sgpr, size):
    a(f"s_add_u32 {s(d)}, {s(base)}, {off_sgpr}")
    a(f"s_addc_u32 {s(d + 1)}, {s(base + 1)}, 0")
    a(f"s_mov_b32 {s(d + 2)}, {size}")
    a(f"s_mov_b32 {s(d + 3)}, 0x20000")


def dma(a, voff, srd_, soff, base, imm, fl=""):
    a(f"s_add_u32 m0, {base}, {imm}")
    a("s_nop 0")
    a(f"buffer_load_dwordx4 {v(voff)}, {s(srd_, 4)}, {soff} offen {fl} lds")


def mfma(d, a_, b_, c=None):
    cs = v(d, 4) if c is None else str(c)
    return f"v_mfma_f32_16x16x32_bf16 {v(d, 4)}, {v(a_, 4)}, {v(b_, 4)}, {cs}"


def trread(d, addr, off):
    assert 0 <= off < 65536
    return f"ds_read_b64_tr_b16 {v(d, 2)}, {v(addr)} offset:{off}"


def rd128(d, addr, off):
    assert 0 <= off < 65536
    return f"ds_read_b128 {v(d, 4)}, {v(addr)} offset:{off}"


def rd64(d, addr, off):
    assert 0 <= off < 65536
    return f"ds_read_b64 {v(d, 2)}, {v(addr)} offset:{off}"


def cvt(d, t):
    return f"v_cvt_pk_bf16_f32 {v(d)}, {v(t)}, {v(t + 1)}"


def emit(a, lst):
    for x in lst:
        a(x)


def place(main, slots):
    out = list(slots.get(-1, []))
    for i, m in enumerate(main):
        out.append(m)
        out.extend(slots.get(i, []))
    for k in sorted(slots):
        if k >= len(main):
            out.extend(slots[k])
    return out


def spread(fill, start, per=1, step=1, into=None):
    d = into if into is not None else {}
    i, k = start, 0
    while k < len(fill):
        d.setdefault(i, []).extend(fill[k:k + per])
        k += per
        i += step
    return d


def at(d, i, *x):
    d.setdefault(i, []).extend(x)


def lg(n):
    return f"s_waitcnt lgkmcnt({n})"


def jitter(a, cfg, k):
    if not cfg.jit:
        return
    lbl = a.uid("L_jit")
    a(f"s_lshl_b32 s100, s2, 3")
    a(f"s_add_u32 s100, s100, {s(S_WAVE)}") if cfg.jit & 1 else None
    a(f"s_mul_i32 s100, s100, {0x9E3779B1 & 0x7fffffff | 1}")
    a(f"s_add_u32 s100, s100, {(k * 0x632BE5AB + cfg.jit * 0x1234567) & 0x7fffffff}")
    a("s_mul_i32 s100, s100, 0x2545F491")
    a("s_lshr_b32 s101, s100, 29")
    a("s_cmp_lg_u32 s101, 0")
    a(f"s_cbranch_scc1 {lbl}")
    a("s_lshr_b32 s100, s100, 8")
    a("s_and_b32 s100, s100, 31")
    a.label(lbl + "b")
    a("s_sleep 8")
    a("s_sub_u32 s100, s100, 1")
    a("s_cmp_gt_i32 s100, 0")
    a(f"s_cbranch_scc1 {lbl}b")
    a.label(lbl)


def mod_small(a, reg, m, times):
    for _ in range(times):
        a(f"s_sub_u32 s4, {reg}, {m}")
        a(f"s_cmp_ge_u32 {reg}, {m}")
        a(f"s_cselect_b32 {reg}, s4, {reg}")


def tile_addrs(a, dst, first, f, lanepart, tmp, extra=None):
    for c in range(4):
        a(f"s_add_u32 s4, {first}, {c}")
        a("s_and_b32 s5, s4, 3")
        a("s_lshr_b32 s4, s4, 2")
        a("s_lshl_b32 s4, s4, 7")
        a(f"v_xor_b32 {v(tmp)}, s5, {v(f)}")
        a(f"v_lshl_add_u32 {v(tmp)}, {v(tmp)}, 5, {v(lanepart)}")
        a(f"v_add_u32 {v(dst + c)}, s4, {v(tmp)}")


def gen_compute(a, cfg):
    st = Stamps(a, cfg)
    R_O, R_P = 8, 12
    ACC, FR, QP, LS, ONES = 16, 88, 160, 196, 208
    AX, AY, AZ, AVo, AVp = 212, 216, 218, 230, 234
    AQW, AQR, AMW, AMR, APW, APR, APW2, APR2, AO, AOW = range(238, 248)
    AW, AB, AP, AP2, FL2, TG, ZERO = 248, 250, 251, 252, 253, 254, 15
    VM, VG, VF, T0, T1, T2 = 1, 2, 3, 4, 5, 6
    MX = 8
    S_I, S_J, S_C, S_D, S_CNT, S_SL, S_D2, S_SL2 = 50, 51, 52, 54, 55, 56, 57, 18
    S_K0, S_K1, S_F1, S_F2 = 58, 59, 16, 17

    a(f"s_lshr_b32 {s(S_I)}, {s(S_WAVE)}, 1")
    a(f"s_and_b32 {s(S_J)}, {s(S_WAVE)}, 1")
    a(f"s_mov_b32 {s(S_C)}, {f32bits(CEXP):#x}")
    a(f"s_mov_b32 {s(S_C + 1)}, {f32bits(CEXP):#x}")
    a(f"v_and_b32 {v(VM)}, 15, v0")
    a(f"v_lshrrev_b32 {v(VG)}, 4, v0")
    a(f"v_lshrrev_b32 {v(T0)}, 2, {v(VM)}")
    a(f"v_lshl_add_u32 {v(T1)}, {v(VG)}, 3, {v(T0)}")
    a(f"v_mul_u32_u24 {v(T1)}, 384, {v(T1)}")
    a(f"v_and_b32 {v(T2)}, 3, {v(VM)}")
    a(f"v_lshlrev_b32 v11, 3, {v(T2)}")
    a(f"v_add_u32 {v(T1)}, v11, {v(T1)}")
    a(f"v_and_b32 {v(T2)}, 1, {v(VG)}")
    a(f"v_lshrrev_b32 {v(VF)}, 3, {v(VM)}")
    a(f"v_lshl_or_b32 {v(VF)}, {v(T2)}, 1, {v(VF)}")
    a(f"s_mul_i32 s3, {s(S_I)}, 6")
    tile_addrs(a, AX, "s3", VF, T1, T2)
    a(f"s_mul_i32 s4, {s(S_J)}, 48")
    a(f"v_add_u32 {v(T1)}, s4, {v(VM)}")
    a(f"v_lshlrev_b32 {v(T1)}, 7, {v(T1)}")
    a(f"v_add_u32 {v(T1)}, 24576, {v(T1)}")
    a(f"v_lshrrev_b32 {v(VF)}, 1, {v(VM)}")
    for ks in range(2):
        a(f"v_add_u32 {v(T2)}, {4 * ks}, {v(VG)}")
        a(f"v_xor_b32 {v(T2)}, {v(T2)}, {v(VF)}")
        a(f"v_lshl_add_u32 {v(AY + ks)}, {v(T2)}, 4, {v(T1)}")
    for i in range(72):
        a(f"v_mov_b32 {v(ACC + i)}, 0")
    a(f"s_mul_i32 s4, {s(S_I)}, 48")
    a(f"v_add_u32 {v(T1)}, s4, {v(VM)}")
    a(f"v_mul_u32_u24 {v(T1)}, 384, {v(T1)}")
    a(f"v_and_b32 {v(T2)}, 1, {v(VG)}")
    a(f"v_lshl_add_u32 {v(T1)}, {v(T2)}, 3, {v(T1)}")
    a(f"v_add_u32 {v(T1)}, {A_K}, {v(T1)}")
    a(f"v_lshrrev_b32 {v(T0)}, 1, {v(VG)}")
    a(f"v_xor_b32 {v(T0)}, {v(T0)}, {v(VF)}")
    a(f"v_lshl_add_u32 {v(T1)}, {v(T0)}, 4, {v(T1)}")
    a(f"s_mul_i32 s7, {s(S_I)}, 3")
    for ls in range(6):
        a(f"s_add_u32 s6, s7, {ls}")
        mod_small(a, "s6", 6, 1)
        a("s_and_b32 s5, s6, 1")
        a("s_lshl_b32 s5, s5, 6")
        a("s_lshr_b32 s6, s6, 1")
        a("s_lshl_b32 s6, s6, 7")
        a(f"v_add_u32 {v(T2)}, s6, {v(T1)}")
        a(f"v_xor_b32 {v(AZ + 2 * ls)}, s5, {v(T2)}")
        a(f"v_xor_b32 {v(AZ + 2 * ls + 1)}, 32, {v(AZ + 2 * ls)}")
    a(f"v_lshrrev_b32 {v(T0)}, 2, {v(VM)}")
    a(f"v_lshl_add_u32 {v(T0)}, {v(VG)}, 2, {v(T0)}")
    a(f"v_bfe_u32 {v(VF)}, {v(T0)}, 1, 2")
    a(f"v_mul_u32_u24 {v(T1)}, 384, {v(T0)}")
    a(f"v_add_u32 {v(T1)}, v11, {v(T1)}")
    a(f"s_mul_i32 s6, {s(S_I)}, 18432")
    a(f"s_add_u32 s7, s6, {A_V}")
    a(f"v_add_u32 {v(T1)}, s7, {v(T1)}")
    a(f"s_mul_i32 s3, {s(S_I)}, 6")
    tile_addrs(a, AVo, "s3", VF, T1, T2)
    a("s_lshl_b32 s6, s6, 1")
    a("s_sub_u32 s6, 18432, s6")
    for c in range(4):
        a(f"v_add_u32 {v(AVp + c)}, s6, {v(AVo + c)}")
    a(f"v_mul_u32_u24 {v(T1)}, 320, {v(T0)}")
    a(f"v_add_u32 {v(T1)}, v11, {v(T1)}")
    a(f"v_add_u32 {v(T1)}, {WO0 + WOS}, {v(T1)}")
    a(f"v_and_b32 {v(T0)}, 1, {v(VG)}")
    a(f"s_mul_i32 s3, {s(S_I)}, 5")
    for par in range(2):
        a(f"s_add_u32 s4, s3, {par}")
        a(f"v_xor_b32 {v(T2)}, s4, {v(T0)}")
        a(f"v_lshl_add_u32 {v(AW + par)}, {v(T2)}, 5, {v(T1)}")
    a(f"s_xor_b32 s5, {s(S_WAVE)}, 2")
    a(f"v_lshlrev_b32 {v(T1)}, 4, v0")
    a(f"v_lshlrev_b32 {v(T0)}, 3, v0")
    a(f"v_lshlrev_b32 {v(T2)}, 2, {v(VM)}")
    for wv, (q_, p_, p2, m_) in ((s(S_WAVE), (AQW, APW, APW2, AMW)), ("s5", (AQR, APR, APR2, AMR))):
        a(f"s_mul_i32 s3, {wv}, 9216")
        a(f"s_add_u32 s3, s3, {A_Q}")
        a(f"v_add_u32 {v(q_)}, s3, {v(T1)}")
        a(f"s_mul_i32 s3, {wv}, 4608")
        a(f"s_add_u32 s3, s3, {A_P}")
        a(f"v_add_u32 {v(p_)}, s3, {v(T1)}")
        a(f"v_add_u32 {v(p2)}, s3, {v(T0)}")
        a(f"s_mul_i32 s3, {wv}, 192")
        a(f"s_add_u32 s3, s3, {A_M}")
        a(f"v_add_u32 {v(m_)}, s3, {v(T2)}")
    a(f"s_mul_i32 s3, {s(S_I)}, 18")
    a(f"s_mul_i32 s4, {s(S_J)}, 3")
    a("s_add_u32 s3, s3, s4")
    a("s_lshl_b32 s3, s3, 10")
    a(f"v_add_u32 {v(AO)}, s3, {v(T1)}")
    a(f"s_mul_i32 s3, {s(S_J)}, 3072")
    a(f"v_add_u32 {v(AB)}, s3, {v(T1)}")
    a(f"v_lshrrev_b32 v12, 2, {v(VM)}")
    a(f"v_lshl_add_u32 v12, v12, 2, {v(VG)}")
    a(f"v_and_b32 v13, 3, {v(VM)}")
    a("v_lshl_add_u32 v12, v12, 2, v13")
    a(f"s_mul_i32 s3, {s(S_WAVE)}, 7680")
    a(f"v_lshl_add_u32 {v(AP)}, v12, 4, s3")
    a("s_add_u32 s3, s3, 2048")
    a(f"v_lshl_add_u32 {v(AP2)}, v12, 3, s3")
    a(f"v_mov_b32 {v(AOW)}, {A_TAG}")
    for i in range(4):
        a(f"v_mov_b32 {v(ONES + i)}, 0x3f803f80")
    a(f"s_lshl_b32 s3, {s(S_B)}, 5")
    a(f"s_add_u32 s3, s3, {s(S_H)}")
    a(f"s_lshl_b32 s4, {s(S_HH)}, 2")
    a(f"s_add_u32 s4, s4, {s(S_WAVE)}")
    a("s_lshl_b32 s4, s4, 3")
    a("s_andn2_b32 s5, s3, 3")
    a(f"s_lshl_b32 s5, s5, {7 if cfg.pfl & 1 else 5}")
    a(f"s_add_u32 {s(S_F1)}, s4, s5")
    a(f"s_lshl_b32 s6, {s(S_I)}, 3")
    a(f"s_add_u32 s6, s6, {s(S_G8)}")
    a("s_lshl_b32 s6, s6, 3")
    if cfg.pfl & 2:
        a(f"s_lshl_b32 s5, {s(S_B)}, 5")
        a(f"s_lshl_b32 s4, {s(S_J)}, 4")
        a("s_add_u32 s5, s5, s4")
        a(f"s_add_u32 s5, s5, {s(S_HH)}")
    else:
        a(f"s_lshl_b32 s5, {s(S_B)}, 2")
        a(f"s_add_u32 s5, s5, {s(S_HH)}")
        a("s_lshl_b32 s5, s5, 1")
        a(f"s_add_u32 s5, s5, {s(S_J)}")
    a("s_lshl_b32 s5, s5, 7")
    a("s_add_u32 s6, s6, s5")
    a(f"s_add_u32 {s(S_F2)}, s6, {F2}")
    a(f"v_lshlrev_b32 {v(ZERO)}, 7, v0")
    a(f"v_lshlrev_b32 {v(FL2)}, 9, v0")
    a(f"s_lshl_b32 s4, {s(S_B)}, 2")
    a(f"s_add_u32 s4, s4, {s(S_HH)}")
    a("s_lshl_b32 s4, s4, 3")
    a(f"s_add_u32 s4, s4, {s(S_G8)}")
    a(f"s_mul_i32 s4, s4, {PSZ}")
    a(f"s_add_u32 s4, s4, {OFF_P}")
    a("s_mul_i32 s3, s3, 36864")
    a("s_waitcnt lgkmcnt(0)")
    srd(a, R_O, S_WS, "s3", 36864)
    srd(a, R_P, S_WS, "s4", PSZ)
    srd(a, R_F, S_WS, f"{OFF_F}", 262144)
    if cfg.tlb:
        a("s_mov_b64 exec, 1")
        a(f"buffer_load_dword v14, {v(AO)}, {s(R_O, 4)}, 0 offen sc1")
        a(f"buffer_load_dword v14, {v(AP)}, {s(R_P, 4)}, 0 offen sc1")
        a("s_mov_b32 s3, 200000")
        a(f"buffer_load_dword v14, {v(AP)}, {s(R_F, 4)}, s3 offen sc1")
        if cfg.tlb > 1:
            a(f"s_mul_i32 s3, {s(S_B)}, 122880")
            srd(a, 20, S_OUT, "s3", 122880)
            a(f"buffer_load_dword v14, {v(AP)}, s[20:23], 0 offen sc1")
            a(f"s_lshl_b32 s3, {s(S_B)}, 5")
            a(f"s_add_u32 s3, s3, {s(S_H)}")
            a("s_mul_i32 s3, s3, 36864")
            srd(a, 20, S_V, "s3", 36864)
            a(f"buffer_load_dword v14, {v(AP)}, s[20:23], 0 offen sc1")
            srd(a, 20, S_K, "s3", 36864)
            a(f"buffer_load_dword v14, {v(AP)}, s[20:23], 0 offen sc1")
            a(f"s_mul_i32 s3, {s(S_G8)}, 983040")
            srd(a, 20, S_WO, "s3", 983040)
            a(f"buffer_load_dword v14, {v(AP)}, s[20:23], 0 offen sc1")
        a("s_mov_b64 exec, -1")

    def fa(n, dt):
        return FR + 36 * n + 4 * dt

    def fb(n, qt):
        return FR + 36 * n + 24 + 4 * qt

    def p1_reads(n, ks):
        def A(dt):
            return [trread(fa(n, dt) + 2 * hh, AX + dt % 4, 384 * (32 * ks + 4 * hh) + 128 * (dt // 4)) for hh in range(2)]

        def B(qt):
            return [rd128(fb(n, qt), AY + ks, 2048 * qt)]
        r = B(0) + A(0) + B(1) + B(2)
        for dt in range(1, 6):
            r += A(dt)
        return r

    def qtile(dt, qt):
        return ACC + 4 * (3 * dt + qt)

    def p1_mfmas(n):
        return [mfma(qtile(dt, qt), fa(n, dt), fb(n, qt)) for dt in range(6) for qt in range(3)]

    adv = [f"v_add_u32 {v(AX + c)}, {s(S_D)}, {v(AX + c)}" for c in range(4)] + \
          [f"v_add_u32 {v(AY + c)}, {s(S_D)}, {v(AY + c)}" for c in range(2)]
    a(f"s_mov_b32 {s(S_SL)}, 0")
    a(f"s_mov_b32 {s(S_CNT)}, 0")
    a(f"s_mov_b32 {s(S_K0)}, {(-2 * SLOT) & 0xffffffff:#x}")
    a(f"s_mov_b32 {s(S_K1)}, {SLOT}")
    st.cyc("setup")
    a("s_barrier")
    st.cyc("b0")
    emit(a, p1_reads(0, 0))
    a(lg(0))
    a.label("L_p1")
    sl = spread(p1_reads(1, 1), 0, 1)
    at(sl, 0, f"s_add_u32 {s(S_SL)}, {s(S_SL)}, 1")
    at(sl, 1, f"s_cmp_eq_u32 {s(S_SL)}, 3")
    at(sl, 2, f"s_cselect_b32 {s(S_D)}, {s(S_K0)}, {s(S_K1)}")
    at(sl, 3, f"s_cselect_b32 {s(S_SL)}, 0, {s(S_SL)}")
    spread(adv, 15, 2, into=sl)
    emit(a, place(p1_mfmas(0), sl))
    a(lg(0))
    a("s_barrier")
    sl = spread(p1_reads(0, 0), 0, 1)
    at(sl, 15, f"s_add_u32 {s(S_CNT)}, {s(S_CNT)}, 1")
    at(sl, 16, f"s_cmp_lt_u32 {s(S_CNT)}, 9")
    emit(a, place(p1_mfmas(1), sl))
    a(lg(0))
    a("s_cbranch_scc1 L_p1")
    emit(a, place(p1_mfmas(0), spread(p1_reads(1, 1), 0, 1)))
    if cfg.ipf & 2:
        a("global_load_dword v14, v7, s[62:63]")
    a(lg(0))
    a("s_barrier")
    jitter(a, cfg, 1)
    st.cyc("b10")
    a.c("SEG q")

    def kf(buf, a_):
        return FR + 12 * buf + 4 * a_

    def k_reads(ls, buf):
        return [rd64(kf(buf, a_) + 2 * hh, AZ + 2 * ls + hh, 6144 * a_) for a_ in range(3) for hh in range(2)]

    def qpack(ls):
        r = []
        for qt in range(3):
            for dt in (2 * ls, 2 * ls + 1):
                d = QP + 4 * (3 * ls + qt) + 2 * (dt % 2)
                r += [cvt(d, qtile(dt, qt)), cvt(d + 1, qtile(dt, qt) + 2)]
        return r

    def qwrite(f):
        return f"ds_write_b128 {v(AQW)}, {v(QP + 4 * f, 4)} offset:{1024 * f}"

    def stile(a_, qt):
        return ACC + 4 * (3 * a_ + qt)

    def s_mfmas(qbase, ls3, buf, first=False, qmajor=False):
        idx = [(a_, qt) for qt in range(3) for a_ in range(3)] if qmajor else [(a_, qt) for a_ in range(3) for qt in range(3)]
        return [mfma(stile(a_, qt), kf(buf, a_), qbase + 4 * (3 * ls3 + qt), 0 if first else None) for a_, qt in idx]

    q0, q1, q2 = qpack(0), qpack(1), qpack(2)
    if cfg.qv == 0:
        sl = spread(k_reads(0, 0) + k_reads(1, 1) + k_reads(2, 2), 0, 2, into={})
        spread(q0, 9, 2, into=sl)
        at(sl, 11, qwrite(0))
        at(sl, 14, qwrite(1))
        spread(q1[:4], 15, 2, into=sl)
        at(sl, 17, qwrite(2))
        emit(a, place(p1_mfmas(1), sl))
        emit(a, q1[4:8] + [qwrite(3)] + q1[8:])
        a(lg(4))
        sl = {}
        at(sl, 0, qwrite(4))
        spread(q2, 1, 2, into=sl)
        at(sl, 3, qwrite(5))
        at(sl, 7, qwrite(6))
        at(sl, 10, qwrite(7))
        at(sl, 13, qwrite(8))
        spread(k_reads(3, 0), 14, 2, into=sl)
        emit(a, place(s_mfmas(QP, 0, 0, True) + s_mfmas(QP, 1, 1), sl))
    else:
        order = [(dt, qt) for ls in range(3) for qt in range(3) for dt in (2 * ls, 2 * ls + 1)]
        mm = [mfma(qtile(dt, qt), fa(1, dt), fb(1, qt)) for dt, qt in order]
        mm += s_mfmas(QP, 0, 0, True) + s_mfmas(QP, 1, 1)
        packs = q0 + q1 + q2
        sl = {}
        if cfg.qv == 1:
            spread(k_reads(0, 0)[:5], 0, 1, into=sl)
            for f in range(9):
                g0 = 5 + 2 * f + (f >= 6) * 2
                spread(packs[4 * f:4 * f + 4], g0, 2, into=sl)
            wr = [7, 10, 13, 16, 19, 22, 25, 28, 31]
            for f in range(9):
                at(sl, wr[f], qwrite(f))
            at(sl, 8, k_reads(0, 0)[5])
            for k, g_ in enumerate([9, 11, 12, 14, 15, 17]):
                at(sl, g_, k_reads(1, 1)[k])
            at(sl, 17, lg(7))
            at(sl, 26, lg(3))
            spread(k_reads(2, 2), 27, 1, into=sl)
            spread(k_reads(3, 0), 29, 1, into=sl)
        elif cfg.qv == 2:
            spread(k_reads(0, 0) + k_reads(1, 1)[:4], 0, 2, into=sl)
            for f in range(9):
                g0 = 5 + 2 * f + (f >= 6) * 2
                spread(packs[4 * f:4 * f + 4], g0, 2, into=sl)
            wr = [7, 10, 13, 16, 19, 22, 25, 28, 31]
            for f in range(9):
                at(sl, wr[f], qwrite(f))
            at(sl, 8, k_reads(1, 1)[4])
            at(sl, 9, k_reads(1, 1)[5])
            at(sl, 17, lg(3))
            spread(k_reads(2, 2), 26, 1, into=sl)
            spread(k_reads(3, 0), 29, 1, into=sl)
        elif cfg.qv in (3, 4):
            kr = k_reads(0, 0) + k_reads(1, 1) + k_reads(2, 2)
            spread(kr[:5], 0, 1, into=sl)
            rest = kr[5:]
            for f in range(9):
                g0 = 5 + 3 * f
                c4 = packs[4 * f:4 * f + 4]
                if cfg.qv == 3:
                    at(sl, g0, rest.pop(0), c4[0], c4[1])
                    at(sl, g0 + 1, c4[2], c4[3])
                else:
                    at(sl, g0, rest.pop(0), c4[0])
                    at(sl, g0 + 1, c4[1], c4[2], c4[3])
                at(sl, g0 + 2, qwrite(f))
            spread(rest, 32, 1, into=sl)
            sl[17].append(lg(8))
            sl[26].append(lg(2))
        elif cfg.qv in (5, 6, 7):
            kr = k_reads(0, 0) + k_reads(1, 1) + k_reads(2, 2)
            spread(kr[:4], 0, 1, into=sl)
            rest = kr[4:]
            start = 4 if cfg.qv == 7 else 5
            for f in range(9):
                g0 = start + 3 * f
                c4 = packs[4 * f:4 * f + 4]
                at(sl, g0, *(rest[:1]), c4[0], c4[1])
                at(sl, g0 + 1, *(rest[1:2]), c4[2], c4[3])
                rest = rest[2:]
                if cfg.qv == 6:
                    d = QP + 4 * f
                    at(sl, g0 + 2, f"ds_write_b64 {v(AQW)}, {v(d, 2)} offset:{1024 * f}",
                       f"ds_write_b64 {v(AQW)}, {v(d + 2, 2)} offset:{1024 * f + 8}")
                else:
                    at(sl, g0 + 2, qwrite(f))
            sl[17].append(lg(4))
            sl[26].append(lg(2))
        emit(a, place(mm, sl))
    st.cyc("a3", True)
    a(lg(0))
    a("s_barrier")
    st.cyc("b11")
    a.c("SEG s")
    QR = FR + 36
    rds = [rd128(QR + 4 * f, AQR, 1024 * f) for f in range(9)]
    if cfg.sv == 0:
        sl = spread(rds[:6], -1, 1)
        spread(k_reads(4, 1), 5, 2, into=sl)
        at(sl, 8, lg(9))
        emit(a, place(s_mfmas(QP, 2, 2), sl))
        st.cyc("a4", True)
        sl = spread(rds[6:], 0, 1)
        spread(k_reads(5, 2), 3, 1, into=sl)
        at(sl, 8, lg(9))
        emit(a, place(s_mfmas(QR, 0, 0), sl))
        emit(a, s_mfmas(QR, 1, 1))
        a(lg(0))
    else:
        sl = spread(rds[:3], -1, 1)
        spread(k_reads(3, 0), 2, 2, into=sl)
        spread(rds[3:6], 5, 1, into=sl)
        at(sl, 8, lg(3))
        spread(k_reads(4, 1), 8, 2, into=sl)
        spread(rds[6:], 11, 1, into=sl)
        spread(k_reads(5, 2), 14, 2, into=sl)
        at(sl, 17, lg(9))
        emit(a, place(s_mfmas(QP, 2, 2) + s_mfmas(QR, 0, 0), sl))

    def xs(qt):
        return [stile(a_, qt) + r for a_ in range(3) for r in range(4)]

    def maxchain(qt):
        x = xs(qt)
        r = [f"v_max3_f32 {v(MX + qt)}, {v(x[0])}, {v(x[1])}, {v(x[2])}"]
        for k in range(3, 11, 2):
            r.append(f"v_max3_f32 {v(MX + qt)}, {v(MX + qt)}, {v(x[k])}, {v(x[k + 1])}")
        r.append(f"v_max_f32 {v(MX + qt)}, {v(MX + qt)}, {v(x[11])}")
        return r
    m0, m1, m2 = maxchain(0), maxchain(1), maxchain(2)
    if cfg.sv == 0:
        emit(a, s_mfmas(QR, 2, 2, qmajor=True))
        st.cyc("sdone", True)
        a("s_nop 0")
        emit(a, m0 + m1 + m2)
    else:
        s4, s5 = s_mfmas(QR, 1, 1, qmajor=True), s_mfmas(QR, 2, 2, qmajor=True)
        mm = sum([s4[3 * qt:3 * qt + 3] + s5[3 * qt:3 * qt + 3] for qt in range(3)], [])
        sl = {}
        at(sl, 2, lg(0))
        spread(m0, 11, 2, into=sl)
        spread(m1[:2], 17, 2, into=sl)
        emit(a, place(mm, sl))
        st.cyc("sdone", True)
        emit(a, m1[2:] + ["s_nop 1"] + m2)
    for op in ("v_permlane16_swap_b32", "v_permlane32_swap_b32"):
        for qt in range(3):
            a(f"v_mov_b32 {v(MX + 3 + qt)}, {v(MX + qt)}")
        for qt in range(3):
            a(f"{op} {v(MX + 3 + qt)}, {v(MX + qt)}")
        for qt in range(3):
            a(f"v_max_f32 {v(MX + qt)}, {v(MX + qt)}, {v(MX + 3 + qt)}")
    for qt in range(3):
        a(f"ds_write_b32 {v(AMW)}, {v(MX + qt)} offset:{64 * qt}")
    st.cyc("a6", True)
    a(lg(0))
    a("s_barrier")
    st.cyc("b12")
    a.c("SEG sm")

    PP, PC = FR, FR + 24
    VQ = [[QP + 4 * dt for dt in range(6)], [FR + 36 + 4 * dt for dt in range(6)], [148, 152, 156, 184, 188, 192]]

    def v_reads(step):
        r = []
        for dt in range(6):
            for hh in range(2):
                if step == 0:
                    ad, tile = AVo, hh
                elif step == 1:
                    ad, tile = (AVo, 2) if hh == 0 else (AVp, 2)
                else:
                    ad, tile = AVp, hh
                r.append(trread(VQ[step][dt] + 2 * hh, ad + dt % 4, 6144 * tile + 128 * (dt // 4)))
        return r
    NM = 2
    for qt in range(3):
        a(f"ds_read_b32 {v(MX + 3 + qt)}, {v(AMR)} offset:{64 * qt}")
    emit(a, v_reads(0))
    if cfg.vbp == 2:
        emit(a, v_reads(1))
    a((lg(15) if cfg.vbp == 2 else lg(12)) if not st.on else lg(0))
    a(f"ds_read_b64 {v(TG, 2)}, {v(AOW)}")
    for qt in range(3):
        a(f"v_max_f32 {v(MX + qt)}, {v(MX + qt)}, {v(MX + 3 + qt)}")
    for qt in range(3):
        a(f"v_mul_f32 {v(NM + 2 * qt)}, {s(S_C)}, {v(MX + qt)}")
    for qt in range(3):
        a(f"v_mov_b32 {v(NM + 2 * qt + 1)}, {v(NM + 2 * qt)}")

    def softmax(qt):
        x = xs(qt)
        e = [f"v_exp_f32 {v(y)}, {v(y)}" for y in x]
        c = [cvt(PP + 8 * qt + k, x[2 * k]) for k in range(6)]
        if cfg.smx == 0 or (cfg.smx == 2 and qt == 0):
            f = [[f"v_pk_fma_f32 {v(x[2 * k], 2)}, {v(x[2 * k], 2)}, {s(S_C, 2)}, {v(NM + 2 * qt, 2)} neg_lo:[0,0,1] neg_hi:[0,0,1]"] for k in range(6)]
        else:
            f = [[f"v_fma_f32 {v(y)}, {v(y)}, {s(S_C)}, -{v(NM + 2 * qt)}" for y in x[2 * k:2 * k + 2]] for k in range(6)]
        r = f[0] + f[1]
        for k in range(6):
            nx = f[k + 2] if k + 2 < 6 else []
            r += [e[2 * k]] + nx[:1] + [e[2 * k + 1]] + nx[1:]
            if k >= 1:
                r.append(c[k - 1])
        r += ["s_nop 0", c[5]]
        return r

    def pwrite(qt):
        return [f"ds_write_b128 {v(APW)}, {v(PP + 8 * qt, 4)} offset:{1536 * qt}",
                f"ds_write_b64 {v(APW2)}, {v(PP + 8 * qt + 4, 2)} offset:{1536 * qt + 1024}"]
    OT = {}
    free = [ACC + 36 + 4 * k for k in range(9)]
    for qt in range(3):
        regs = free[3 * qt:3 * qt + 3] + [stile(a_, qt) for a_ in range(3)]
        for dt in range(6):
            OT[(dt, qt)] = regs[dt]
    pf = [lambda qt: PP + 8 * qt, lambda qt: PP + 8 * qt + 4, lambda qt: PC + 4 * qt]

    def pv(step, qt):
        first = step == 0
        r = [mfma(OT[(dt, qt)], VQ[step][dt], pf[step](qt), 0 if first else None) for dt in range(6)]
        sm = [mfma(LS + 4 * qt, ONES, pf[step](qt), 0 if first else None)]
        return sm + r if step == 2 else r + sm

    def weave(vals, mm, first=3, per=3):
        out, k = [], 0
        for i, m in enumerate(mm):
            n = first if i == 0 else per
            out += vals[k:k + n]
            k += n
            out.append(m)
        return out + vals[k:]
    st.cyc("a7", True)
    vb = v_reads(1) if cfg.vbp == 0 else []
    s0 = softmax(0)
    out = []
    for k, x in enumerate(s0):
        out.append(x)
        if k % 2 == 1 and vb:
            out.append(vb.pop(0))
    emit(a, out + vb)
    emit(a, pwrite(0))
    a(lg(14) if cfg.vbp == 0 else lg(2))
    st.cyc("a8", True)
    emit(a, weave(softmax(1), pv(0, 0), per=cfg.wper))
    emit(a, pwrite(1))
    st.cyc("a9", True)
    emit(a, weave(softmax(2), pv(0, 1), per=cfg.wper))
    emit(a, pwrite(2))
    st.cyc("a10", True)
    a(lg(0))
    a("s_barrier")
    jitter(a, cfg, 2)
    st.cyc("b13")
    a.c("SEG pv")
    prd = [rd64(PP + 8 * qt + 6, APR2, 1536 * qt + 1024) for qt in range(3)]
    prc = [rd128(PC + 4 * qt, APR, 1536 * qt) for qt in range(3)]
    vc = v_reads(2)
    if cfg.vbp in (0, 2):
        sl = spread(prd + prc + vc[:2], -1, 1)
        at(sl, 6, lg(5))
        emit(a, place(pv(0, 2), sl))
        sl = spread(vc[2:], 0, 1)
        at(sl, 13, lg(0))
        emit(a, place(pv(1, 0) + pv(1, 1), sl))
    else:
        emit(a, place(pv(0, 2), spread(prd + v_reads(1), -1, 2)))
        a(lg(0))
        sl = spread(prc + vc[:11], 0, 1)
        at(sl, 13, vc[11], lg(0))
        emit(a, place(pv(1, 0) + pv(1, 1), sl))
    st.cyc("pvB", True)
    OPQ = [160, 164, 168, 172, 176, 180, 212, 216, 220]

    def finish(qt):
        r = [f"v_rcp_f32 {v(MX + 2 * qt)}, {v(LS + 4 * qt)}", "s_nop 0",
             f"v_mov_b32 {v(MX + 2 * qt + 1)}, {v(MX + 2 * qt)}"]
        for ls in range(3):
            d = OPQ[3 * ls + qt]
            for half in range(2):
                t = OT[(2 * ls + half, qt)]
                if cfg.fin == 0 or (cfg.fin == 2 and qt == 2):
                    r.append(f"v_pk_mul_f32 {v(t, 2)}, {v(t, 2)}, {v(MX + 2 * qt, 2)}")
                    r.append(f"v_pk_mul_f32 {v(t + 2, 2)}, {v(t + 2, 2)}, {v(MX + 2 * qt, 2)}")
                else:
                    r += [f"v_mul_f32 {v(t + k)}, {v(MX + 2 * qt)}, {v(t + k)}" for k in range(4)]
            for half in range(2):
                t = OT[(2 * ls + half, qt)]
                r += [cvt(d + 2 * half, t), cvt(d + 2 * half + 1, t + 2)]
            off = (ls * 6 + qt) * 1024
            r.append(f"s_mov_b32 s3, {off}")
            r.append(f"buffer_store_dwordx4 {v(d, 4)}, {v(AO)}, {s(R_O, 4)}, s3 offen {'' if cfg.unsafe in (1, 2) else 'sc1'}")
            if not cfg.odef:
                r.append(f"ds_write_b128 {v(AO)}, {v(d, 4)} offset:{off}")
        return r

    def gaps(f, per):
        out, cur = [], []
        for x in f:
            if x.startswith("s_mov"):
                if cur:
                    out.append(cur)
                cur = [x]
            elif x.startswith(("buffer_", "ds_")):
                out.append(cur + [x])
                cur = []
            else:
                cur.append(x)
                if len(cur) == per:
                    out.append(cur)
                    cur = []
        return out + ([cur] if cur else [])

    def weave2(mm, f, skip, per):
        g = gaps(f, per)
        out = []
        for i, m in enumerate(mm):
            out.append(m)
            if i >= skip and g:
                out += g.pop(0)
        return out + sum(g, [])
    emit(a, pv(2, 0))
    f0, f1, f2 = finish(0), finish(1), finish(2)
    mm = pv(1, 2) + pv(2, 1)
    if cfg.fw == 0:
        emit(a, [mm[0]] + weave(["s_nop 0"] + f0, mm[1:], first=1, per=2))
    else:
        emit(a, weave2(mm, f0, 1, cfg.fw))
    st.cyc("f0", True)
    mm = pv(2, 2)
    if cfg.fw == 0:
        emit(a, [mm[0], mm[1]] + weave(f1, mm[2:], first=0, per=2))
    else:
        emit(a, weave2(mm, f1, 0, cfg.fw))
    st.cyc("f1", True)
    emit(a, f2)
    a.c("SEG end")
    st.cyc("ostore")
    a(lg(0))
    a("s_barrier")

    A4 = ACC
    if cfg.odef:
        for qt in range(3):
            for ls in range(3):
                a(f"ds_write_b128 {v(AO)}, {v(OPQ[3 * ls + qt], 4)} offset:{(ls * 6 + qt) * 1024}")
    for i in range(60):
        a(f"v_mov_b32 {v(A4 + i)}, 0")
    a(f"s_mov_b32 {s(S_K0)}, {(-3 * WOS) & 0xffffffff:#x}")
    a(f"s_mov_b32 {s(S_K1)}, {WOS}")
    a(f"s_mov_b32 s6, {(-5 * OS) & 0xffffffff:#x}")
    a(f"s_mov_b32 s7, {OS}")
    a(f"s_mov_b32 {s(S_SL)}, 1")
    a(f"s_mov_b32 {s(S_SL2)}, 0")
    a(f"s_mov_b32 {s(S_CNT)}, 0")
    a("s_waitcnt vmcnt(0)")
    a(f"s_mov_b64 exec, {15 if cfg.pfl & 1 else 1}")
    a(f"buffer_store_dwordx2 {v(TG, 2)}, {v(ZERO)}, {s(R_F, 4)}, {s(S_F1)} offen {'' if cfg.unsafe in (1, 2) else 'sc1'}")
    a("s_mov_b64 exec, -1")
    jitter(a, cfg, 3)
    st.cyc("flag1")

    def ga(n, tt):
        return FR + 32 * n + 4 * tt

    def gb(n, qt):
        return FR + 32 * n + 20 + 4 * qt

    def p4_reads(n, ks):
        def A(tt):
            return [trread(ga(n, tt) + 2 * hh, AW + tt % 2, 320 * (32 * ks + 16 * hh) + 64 * (tt // 2)) for hh in range(2)]

        def B(qt):
            return [rd128(gb(n, qt), AB, 6144 * ks + 1024 * qt)]
        r = B(0) + A(0) + B(1) + B(2)
        for tt in range(1, 5):
            r += A(tt)
        return r

    def p4_mfmas(n):
        return [mfma(A4 + 4 * (3 * tt + qt), ga(n, tt), gb(n, qt)) for tt in range(5) for qt in range(3)]
    adv4 = [f"v_add_u32 {v(AW + c)}, {s(S_D)}, {v(AW + c)}" for c in range(2)] + [f"v_add_u32 {v(AB)}, {s(S_D2)}, {v(AB)}"]
    a(lg(0))
    a("s_barrier")
    st.cyc("B0")
    emit(a, p4_reads(0, 0))
    a(lg(0))
    a.label("L_p4")
    sl = spread(p4_reads(1, 1), 0, 1)
    sc = [f"s_add_u32 {s(S_SL)}, {s(S_SL)}, 1", f"s_cmp_eq_u32 {s(S_SL)}, 4",
          f"s_cselect_b32 {s(S_D)}, {s(S_K0)}, {s(S_K1)}", f"s_cselect_b32 {s(S_SL)}, 0, {s(S_SL)}",
          f"s_add_u32 {s(S_SL2)}, {s(S_SL2)}, 1", f"s_cmp_eq_u32 {s(S_SL2)}, 6",
          f"s_cselect_b32 {s(S_D2)}, s6, s7", f"s_cselect_b32 {s(S_SL2)}, 0, {s(S_SL2)}"]
    spread(sc, 0, 1, into=sl)
    spread(adv4, 13, 2, into=sl)
    at(sl, 12, f"s_cmp_eq_u32 {s(S_CNT)}, 2")
    emit(a, place(p4_mfmas(0), sl))
    a(lg(0))
    a("s_cbranch_scc0 L_p4bar")
    st.cyc("own")
    a("s_barrier")
    a.label("L_p4bar")
    a("s_barrier")
    sl = spread(p4_reads(0, 0), 0, 1)
    at(sl, 12, f"s_add_u32 {s(S_CNT)}, {s(S_CNT)}, 1")
    at(sl, 13, f"s_cmp_lt_u32 {s(S_CNT)}, 11")
    emit(a, place(p4_mfmas(1), sl))
    a(lg(0))
    a("s_cbranch_scc1 L_p4")
    jitter(a, cfg, 5)
    st.cyc("p4loop")
    emit(a, place(p4_mfmas(0), spread(p4_reads(1, 1), 0, 1)))
    a(lg(0))
    PK = QP

    def tile(tt, qt):
        return A4 + 4 * (3 * tt + qt)
    ep = []
    for pb in range(2):
        for qt in range(3):
            d = PK + 4 * (3 * pb + qt)
            t0, t1 = tile(2 * pb, qt), tile(2 * pb + 1, qt)
            ep.append([cvt(d, t0), cvt(d + 1, t0 + 2), cvt(d + 2, t1), cvt(d + 3, t1 + 2),
                       f"s_mov_b32 s3, {2560 * qt + 1024 * pb}",
                       f"buffer_store_dwordx4 {v(d, 4)}, {v(AP)}, {s(R_P, 4)}, s3 offen sc1"])
    for qt in range(3):
        d = PK + 24 + 2 * qt
        ep.append([cvt(d, tile(4, qt)), cvt(d + 1, tile(4, qt) + 2), f"s_mov_b32 s3, {2560 * qt}",
                   f"buffer_store_dwordx2 {v(d, 2)}, {v(AP2)}, {s(R_P, 4)}, s3 offen sc1"])
    flat = sum(ep, [])
    emit(a, place(p4_mfmas(1), spread(flat[:12], 9, 2)))
    emit(a, flat[12:])
    jitter(a, cfg, 4)
    st.cyc("pstore")
    if cfg.b12x:
        a("s_barrier")
    if not cfg.sent:
        a("s_waitcnt vmcnt(0)")
    elif cfg.sent > 1:
        a(f"s_waitcnt vmcnt({cfg.sent})")
    a(f"s_mov_b64 exec, {15 if cfg.pfl & 2 else 1}")
    a(f"buffer_store_dwordx2 {v(TG, 2)}, {v(FL2)}, {s(R_F, 4)}, {s(S_F2)} offen sc1")
    st.cyc("flag2")
    st.real("real1")
    st.flush("C")
    a.label("L_last")
    a("s_endpgm")


def gen_loader(a, cfg):
    st = Stamps(a, cfg)
    R_X, R_WQ, R_K, R_V, R_WO = 8, 12, 16, 20, 56
    R_OI, R_PI, R_OUT = 12, 16, 20
    S_LW, S_SW, S_SX, S_LDS, S_N, S_KK, S_PK = 50, 51, 52, 53, 54, 55, 49
    S_MW, S_MX, S_LDO = 62, 63, 7
    OW, OX, OK_, OV, OWO, OO = 16, 22, 25, 34, 43, 48
    RRc, UUc = 52, 55
    AT, AF1, AF2, TG, PT = 58, 59, 60, 62, 64
    A0, A1, RT, JK, AT2 = 66, 67, 68, 74, 75
    T0, T1, T2 = 4, 5, 6

    if cfg.lprio:
        a("s_setprio 3")
    if cfg.only and "k0" in st.only:
        a("s_waitcnt lgkmcnt(0)")
        st.cyc("k0")
    a(f"s_sub_u32 {s(S_LW)}, {s(S_WAVE)}, 4")
    for c in range(3):
        a(f"v_add_u32 {v(T0)}, {64 * c}, v0")
        a(f"v_mul_u32_u24 {v(T1)}, 2731, {v(T0)}")
        a(f"v_lshrrev_b32 {v(RRc + c)}, 16, {v(T1)}")
        a(f"v_mul_u32_u24 {v(T1)}, 24, {v(RRc + c)}")
        a(f"v_sub_u32 {v(UUc + c)}, {v(T0)}, {v(T1)}")
    a(f"v_lshrrev_b32 {v(T0)}, 4, v0")
    a(f"v_xor_b32 {v(T0)}, {v(T0)}, v0")
    a(f"v_and_b32 {v(T0)}, 7, {v(T0)}")
    a(f"v_lshrrev_b32 {v(T1)}, 3, v0")
    a(f"v_mul_u32_u24 {v(T1)}, 1280, {v(T1)}")
    a(f"v_lshl_add_u32 {v(T0)}, {v(T0)}, 4, {v(T1)}")
    a(f"s_and_b32 s3, {s(S_LW)}, 1")
    a("s_lshl_b32 s3, s3, 6")
    a(f"s_mul_i32 s4, {s(S_LW)}, 30720")
    a(f"v_xor_b32 {v(T0)}, s3, {v(T0)}")
    a(f"v_add_u32 {v(OX)}, s4, {v(T0)}")
    a(f"v_xor_b32 {v(T0)}, 64, {v(OX)}")
    a(f"v_add_u32 {v(OX + 1)}, 10240, {v(T0)}")
    a(f"v_add_u32 {v(OX + 2)}, 20480, {v(OX)}")
    a(f"s_lshl_b32 s3, {s(S_LW)}, 4")
    for c in range(3):
        a(f"v_and_b32 {v(T0)}, 2, {v(RRc + c)}")
        a(f"v_xor_b32 {v(T0)}, {v(T0)}, {v(UUc + c)}")
        a(f"v_add_u32 {v(T1)}, s3, {v(RRc + c)}")
        a(f"v_mul_u32_u24 {v(T1)}, 12288, {v(T1)}")
        a(f"v_lshl_add_u32 {v(OW + c)}, {v(T0)}, 4, {v(T1)}")
        a(f"v_xor_b32 {v(T0)}, 64, {v(OW + c)}")
        a(f"v_add_u32 {v(OW + 3 + c)}, {8 * 12288}, {v(T0)}")
    a(f"s_mul_i32 {s(S_MW)}, {s(S_LW)}, 6144")
    a(f"s_mul_i32 {s(S_MX)}, {s(S_LW)}, 3072")
    a(f"s_add_u32 {s(S_MX)}, {s(S_MX)}, 24576")
    fb = {8: [0, 2, 4, 6, 8, 0, 2, 4], 9: [0, 5, 0, 5, 0, 5, 0, 5], 10: [0, 3, 5, 8, 0, 3, 5, 8],
          11: [0, 3, 7, 0, 3, 7, 0, 3]}[cfg.rot]
    word = sum(x << (4 * i) for i, x in enumerate(fb))
    a(f"s_lshl_b32 s3, {s(S_B)}, 2")
    a(f"s_lshr_b32 s3, {word:#x}, s3")
    a("s_and_b32 s3, s3, 15")
    a(f"s_lshl_b32 s4, {s(S_HH)}, 2")
    a("s_lshr_b32 s4, 0x8530, s4")
    a("s_and_b32 s4, s4, 15")
    a("s_add_u32 s3, s3, s4")
    a(f"s_add_u32 {s(S_KK)}, s3, {s(S_G8)}")
    mod_small(a, s(S_KK), 10, 2)
    a(f"s_mov_b32 {s(S_LDS)}, 0")
    a(f"s_mul_i32 s3, {s(S_B)}, 122880")
    a(f"s_mul_i32 s5, {s(S_H)}, 384")
    a("s_sub_u32 s4, 7864320, s5")
    st.cyc("pre", True) if cfg.only else None
    a("s_waitcnt lgkmcnt(0)")
    st.cyc("karg", True)
    srd(a, R_X, S_X, "s3", 122880)
    srd(a, R_WQ, S_WQ, "s5", "s4")

    def stage_body():
        a(f"s_mul_i32 {s(S_SW)}, {s(S_KK)}, {64 * 12288}")
        a(f"s_lshl_b32 {s(S_SX)}, {s(S_KK)}, 7")
        a(f"s_add_u32 s3, {s(S_LDS)}, {s(S_MW)}")
        a(f"s_add_u32 s4, {s(S_LDS)}, {s(S_MX)}")
        for c in range(3):
            dma(a, OX + c, R_X, s(S_SX), "s4", 1024 * c)
        for p in range(6):
            dma(a, OW + p, R_WQ, s(S_SW), "s3", 1024 * p, "nt" if cfg.ntkv & 8 else "")
        a(f"s_add_u32 {s(S_KK)}, {s(S_KK)}, 1")
        a(f"s_cmp_eq_u32 {s(S_KK)}, 10")
        a(f"s_cselect_b32 {s(S_KK)}, 0, {s(S_KK)}")
        a(f"s_add_u32 {s(S_LDS)}, {s(S_LDS)}, {SLOT}")
        a(f"s_cmp_eq_u32 {s(S_LDS)}, {3 * SLOT}")
        a(f"s_cselect_b32 {s(S_LDS)}, 0, {s(S_LDS)}")

    def call(lbl):
        a(f"s_call_b64 s[44:45], {lbl}")
    stage_body()
    if cfg.lprio:
        a("s_setprio 0")
    st.cyc("issued")
    a(f"s_lshl_b32 s3, {s(S_B)}, 7")
    a(f"s_add_u32 s3, s3, {OFF_F + FX}")
    a(f"s_add_u32 s4, {s(S_WS)}, s3")
    a(f"s_addc_u32 s5, {s(S_WS + 1)}, 0")
    a(f"s_load_dwordx2 {s(S_TAG, 2)}, s[4:5], 0")
    if cfg.kpos >= 9:
        table = {9: [1, 2, 3, 4, 5, 6, 7, 8], 11: [8, 8, 7, 7, 6, 6, 5, 5], 12: [8, 7, 6, 5, 8, 4, 3, 2],
                 13: [1, 8, 1, 8, 1, 8, 1, 8], 14: [1, 1, 8, 1, 1, 8, 1, 8],
                 20: [1, 8, 1, 1, 8, 1, 1, 8], 21: [1, 8, 8, 1, 8, 8, 1, 8], 22: [1, 8, 4, 1, 8, 4, 1, 8],
                 23: [1, 2, 1, 1, 2, 1, 1, 2], 24: [1, 8, 5, 3, 8, 6, 1, 8], 25: [0, 8, 1, 0, 8, 1, 0, 8],
                 26: [1, 8, 1, 8, 1, 8, 1, 8], 27: [0, 8, 0, 8, 0, 8, 0, 8],
                 15: [1, 2, 3, 4, 5, 6, 7, 1], 16: [1, 1, 2, 2, 3, 3, 4, 4], 17: [1, 1, 1, 1, 2, 2, 2, 2]}[cfg.kpos]
        word = sum(x << (4 * i) for i, x in enumerate(table))
        if cfg.kpos < 20:
            a(f"s_add_u32 s3, {s(S_B)}, {s(S_G8)}")
            a("s_and_b32 s3, s3, 7")
            a("s_lshl_b32 s3, s3, 2")
        else:
            a(f"s_lshl_b32 s3, {s(S_B)}, 2")
        a(f"s_lshr_b32 s3, {word:#x}, s3")
        a(f"s_and_b32 {s(S_PK)}, s3, 15")
    else:
        a(f"s_mov_b32 {s(S_PK)}, {cfg.kpos}")
    a(f"s_lshl_b32 s3, {s(S_B)}, 5")
    a(f"s_add_u32 s3, s3, {s(S_H)}")
    a("s_mul_i32 s3, s3, 36864")
    srd(a, R_K, S_K, "s3", 36864)
    srd(a, R_V, S_V, "s3", 36864)
    srd(a, R_F, S_WS, f"{OFF_F}", 262144)
    a(f"s_mul_i32 s3, {s(S_LW)}, 24")
    a(f"s_and_b32 s4, {s(S_LW)}, 1")
    a("s_lshl_b32 s4, s4, 6")
    for c in range(3):
        a(f"v_lshrrev_b32 {v(T0)}, 1, {v(RRc + c)}")
        a(f"v_add_u32 {v(T1)}, s3, {v(RRc + c)}")
        a(f"v_mul_u32_u24 {v(T1)}, 384, {v(T1)}")
        a(f"v_xor_b32 {v(T2)}, {v(T0)}, {v(UUc + c)}")
        a(f"v_lshl_add_u32 {v(T2)}, {v(T2)}, 4, {v(T1)}")
        a(f"v_xor_b32 {v(OK_ + c)}, s4, {v(T2)}")
        a(f"v_xor_b32 {v(T2)}, 64, {v(OK_ + c)}")
        a(f"v_add_u32 {v(OK_ + 3 + c)}, 3072, {v(T2)}")
        a(f"v_add_u32 {v(OK_ + 6 + c)}, 6144, {v(OK_ + c)}")
        a(f"v_lshlrev_b32 {v(T2)}, 1, {v(T0)}")
        a(f"v_xor_b32 {v(T2)}, {v(T2)}, {v(UUc + c)}")
        a(f"v_lshl_add_u32 {v(OV + c)}, {v(T2)}, 4, {v(T1)}")
        a(f"v_add_u32 {v(OV + 3 + c)}, 3072, {v(OV + c)}")
        a(f"v_add_u32 {v(OV + 6 + c)}, 6144, {v(OV + c)}")
    a(f"s_mul_i32 s3, {s(S_G8)}, 983040")
    a(f"s_mul_i32 s4, {s(S_HH)}, 320")
    a("s_add_u32 s3, s3, s4")
    a("s_sub_u32 s4, 7864320, s3")
    srd(a, R_WO, S_WO, "s3", "s4")
    if cfg.tpos == 1:
        a(f"s_mul_i32 s3, {s(S_G8)}, 983040")
        srd(a, 96, S_WO, "s3", 983040)
    if cfg.tx:
        a("s_lshr_b32 s3, s2, 3")
        a("s_lshl_b32 s3, s3, 2")
        a(f"s_add_u32 s3, s3, {s(S_LW)}")
        a("s_mul_i32 s3, s3, 7680")
        a(f"v_min_u32 {v(T0)}, 59, v0")
        a(f"v_lshl_add_u32 {v(AT)}, {v(T0)}, 7, s3")
    else:
        a(f"s_lshl_b32 s3, {s(S_B)}, 2")
        a(f"s_add_u32 s3, s3, {s(S_LW)}")
        a("s_mul_i32 s3, s3, 24")
        a(f"v_mul_u32_u24 {v(T1)}, 21846, v0")
        a(f"v_lshrrev_b32 {v(T1)}, 16, {v(T1)}")
        a(f"v_mul_u32_u24 {v(T2)}, 3, {v(T1)}")
        a(f"v_sub_u32 {v(T0)}, v0, {v(T2)}")
        a(f"v_add_u32 {v(T1)}, s3, {v(T1)}")
        a(f"v_mul_u32_u24 {v(T1)}, 1280, {v(T1)}")
        a(f"v_lshl_add_u32 {v(AT)}, {v(T0)}, 7, {v(T1)}")
        a(f"v_min_u32 {v(T0)}, 7, v0")
        a(f"v_add_u32 {v(T0)}, 64, {v(T0)}")
        a(f"v_mul_u32_u24 {v(T1)}, 21846, {v(T0)}")
        a(f"v_lshrrev_b32 {v(T1)}, 16, {v(T1)}")
        a(f"v_mul_u32_u24 {v(T2)}, 3, {v(T1)}")
        a(f"v_sub_u32 {v(T0)}, {v(T0)}, {v(T2)}")
        a(f"v_add_u32 {v(T1)}, s3, {v(T1)}")
        a(f"v_mul_u32_u24 {v(T1)}, 1280, {v(T1)}")
        a(f"v_lshl_add_u32 {v(AT2)}, {v(T0)}, 7, {v(T1)}")
    if cfg.lprio == 2:
        a("s_setprio 3")
    stage_body()

    def issue_kv(off, srd_, base, pieces=range(9)):
        a(f"s_mul_i32 s3, {s(S_LW)}, 9216")
        a(f"s_add_u32 s3, s3, {base}")
        for p in pieces:
            dma(a, off + p, srd_, "0", "s3", 1024 * p, "nt" if cfg.ntkv & (1 if srd_ == R_K else 2) else "")
    a("s_waitcnt vmcnt(9)")
    jitter(a, cfg, 6)
    st.cyc("landed0")
    a("s_barrier")
    a(f"s_mov_b32 {s(S_N)}, 0")
    a.label("L_lloop")
    a(f"s_cmp_eq_u32 {s(S_N)}, {s(S_PK)}")
    a("s_cbranch_scc0 L_nok")
    call("L_sub_k")
    a.label("L_nok")
    stage_body()
    a("s_waitcnt vmcnt(9)")
    a("s_barrier")
    a(f"s_add_u32 {s(S_N)}, {s(S_N)}, 1")
    a(f"s_cmp_lt_u32 {s(S_N)}, 8")
    a("s_cbranch_scc1 L_lloop")
    st.cyc("b8")
    if cfg.tpos == 8:
        a(f"s_mul_i32 s3, {s(S_G8)}, 983040")
        srd(a, R_X, S_WO, "s3", 983040)
        a(f"buffer_load_dword {v(JK)}, {v(AT)}, {s(R_X, 4)}, 0 offen")
    if cfg.ksplit:
        issue_kv(OK_, R_K, A_K, range(9 - cfg.ksplit, 9))
        a(f"s_waitcnt vmcnt({cfg.ksplit})")
        a("s_barrier")
        call("L_sub_v")
        a("s_branch L_kvdone")
    a(f"s_cmp_eq_u32 {s(S_PK)}, 8")
    a("s_cbranch_scc0 L_vonly")
    call("L_sub_k")
    a(f"s_waitcnt vmcnt({10 if cfg.tpos == 1 else 9})")
    a("s_barrier")
    call("L_sub_v")
    a("s_branch L_kvdone")
    a.label("L_sub_k")
    issue_kv(OK_, R_K, A_K, range(9 - cfg.ksplit))
    if cfg.tpos == 1:
        a(f"buffer_load_dword {v(JK)}, {v(AT)}, s[96:99], 0 offen")
    a("s_setpc_b64 s[44:45]")
    a.label("L_sub_v")
    issue_kv(OV, R_V, A_V)
    a("s_setpc_b64 s[44:45]")
    a.label("L_sub_wo")
    a(f"s_mul_i32 {s(S_SW)}, {s(S_KK)}, {64 * 1280}")
    a(f"s_add_u32 s3, {s(S_LDS)}, {s(S_MW)}")
    for p in range(5):
        dma(a, OWO + p, R_WO, s(S_SW), "s3", 1024 * p)
    a(f"s_add_u32 {s(S_KK)}, {s(S_KK)}, 1")
    a(f"s_cmp_eq_u32 {s(S_KK)}, 12")
    a(f"s_cselect_b32 {s(S_KK)}, 0, {s(S_KK)}")
    a(f"s_add_u32 {s(S_LDS)}, {s(S_LDS)}, {WOS}")
    a(f"s_cmp_eq_u32 {s(S_LDS)}, {4 * WOS}")
    a(f"s_cselect_b32 {s(S_LDS)}, 0, {s(S_LDS)}")
    a("s_setpc_b64 s[44:45]")
    a.label("L_sub_o")
    a(f"s_mul_i32 {s(S_SX)}, {s(S_PK)}, {OS}")
    a(f"s_add_u32 m0, {s(S_LDO)}, {s(S_MX)}")
    a(f"s_add_u32 {s(S_PK)}, {s(S_PK)}, 1")
    for c in range(3):
        a(f"buffer_load_dwordx4 {v(OO)}, {s(R_OI, 4)}, {s(S_SX)} offen offset:{1024 * c} {['sc1', '', 'nt'][cfg.unsafe % 9]} lds")
    a(f"s_cmp_eq_u32 {s(S_PK)}, 12")
    a(f"s_cselect_b32 {s(S_PK)}, 0, {s(S_PK)}")
    a(f"s_add_u32 {s(S_LDO)}, {s(S_LDO)}, {OS}")
    a(f"s_cmp_eq_u32 {s(S_LDO)}, {6 * OS}")
    a(f"s_cselect_b32 {s(S_LDO)}, 0, {s(S_LDO)}")
    a("s_setpc_b64 s[44:45]")
    a.label("L_vonly")
    call("L_sub_v")
    a("s_waitcnt vmcnt(9)")
    a("s_barrier")
    a.label("L_kvdone")
    a("s_waitcnt vmcnt(9)")
    jitter(a, cfg, 7)
    st.cyc("Kland")
    a("s_barrier")
    if cfg.tx:
        a(f"s_mul_i32 s3, {s(S_G8)}, 983040")
        srd(a, R_X, S_WO, "s3", 983040)
        touch = f"buffer_load_dword {v(JK)}, {v(AT)}, {s(R_X, 4)}, 0 offen"
    else:
        touch = (f"buffer_load_dword {v(JK)}, {v(AT)}, {s(R_WO, 4)}, 0 offen\n"
                 f"buffer_load_dword {v(JK + 2)}, {v(AT2)}, {s(R_WO, 4)}, 0 offen")
    if cfg.tpos == 10:
        a(touch)
    a(f"s_lshl_b32 s3, {s(S_B)}, 3")
    a(f"s_add_u32 s3, s3, {s(S_G8)}")
    a(f"s_mul_i32 s3, s3, {4 * 36864}")
    srd(a, R_OI, S_WS, "s3", 4 * 36864)
    a(f"s_lshl_b32 s3, {s(S_B)}, 2")
    a(f"s_add_u32 s3, s3, {s(S_HH)}")
    a(f"s_mul_i32 s3, s3, {8 * PSZ}")
    a(f"s_add_u32 s3, s3, {OFF_P}")
    srd(a, R_PI, S_WS, "s3", 8 * PSZ)
    a(f"s_mul_i32 {s(S_MW)}, {s(S_LW)}, 5120")
    a(f"s_add_u32 {s(S_MW)}, {s(S_MW)}, {WO0}")
    a(f"s_mul_i32 {s(S_MX)}, {s(S_LW)}, 3072")
    a(f"s_mul_i32 {s(S_KK)}, {s(S_HH)}, 3")
    a(f"s_add_u32 {s(S_PK)}, {s(S_KK)}, 3")
    a(f"s_cmp_eq_u32 {s(S_PK)}, 12")
    a(f"s_cselect_b32 {s(S_PK)}, 0, {s(S_PK)}")
    a(f"s_mov_b32 {s(S_LDS)}, {WOS}")
    a(f"s_mov_b32 {s(S_LDO)}, {3 * OS}")
    a("s_barrier")
    if cfg.lprio == 2:
        a("s_setprio 0")
    if cfg.tpos == 11:
        a(touch)
    a(f"s_lshl_b32 s3, {s(S_LW)}, 4")
    for c in range(5):
        a(f"v_add_u32 {v(T0)}, {64 * c}, v0")
        a(f"v_mul_u32_u24 {v(T1)}, 3277, {v(T0)}")
        a(f"v_lshrrev_b32 {v(T1)}, 16, {v(T1)}")
        a(f"v_mul_u32_u24 {v(T2)}, 20, {v(T1)}")
        a(f"v_sub_u32 {v(T0)}, {v(T0)}, {v(T2)}")
        a(f"v_lshrrev_b32 {v(T2)}, 1, {v(T1)}")
        a(f"v_and_b32 {v(T2)}, 2, {v(T2)}")
        a(f"v_xor_b32 {v(T0)}, {v(T0)}, {v(T2)}")
        a(f"v_add_u32 {v(T1)}, s3, {v(T1)}")
        a(f"v_mul_u32_u24 {v(T1)}, 1280, {v(T1)}")
        a(f"v_lshl_add_u32 {v(OWO + c)}, {v(T0)}, 4, {v(T1)}")
    a(f"v_lshl_add_u32 {v(OO)}, v0, 4, {s(S_MX)}")
    a(f"s_lshl_b32 s3, {s(S_B)}, 5")
    a(f"s_add_u32 s3, s3, {s(S_H)}")
    if not cfg.pfl & 1:
        a("s_lshr_b32 s3, s3, 2")
    a("s_lshl_b32 s3, s3, 7")
    a(f"v_and_b32 {v(T0)}, 15, v0")
    a(f"v_lshl_add_u32 {v(AF1)}, {v(T0)}, 3, s3")
    a("s_waitcnt lgkmcnt(0)")
    a(f"s_add_u32 {s(S_TAG)}, {s(S_TAG)}, {TAGC[0]:#x}")
    a(f"s_addc_u32 {s(S_TAG + 1)}, {s(S_TAG + 1)}, {TAGC[1]:#x}")
    a(f"v_mov_b32 {v(TG)}, {s(S_TAG)}")
    a(f"v_mov_b32 {v(TG + 1)}, {s(S_TAG + 1)}")
    a(f"v_mov_b32 {v(T0)}, {A_TAG}")
    a(f"ds_write_b64 {v(T0)}, {v(TG, 2)}")
    a(f"s_waitcnt vmcnt({(1 if cfg.tx else 2) if cfg.tpos in (10, 11) else 0}) lgkmcnt(0)")
    jitter(a, cfg, 8)
    st.cyc("Vland")
    if cfg.lprio == 2:
        a("s_setprio 3")
    a("s_barrier")
    if cfg.tpos == 12:
        a(touch)
    a(f"s_mul_i32 s3, {s(S_B)}, 122880")
    a(f"s_mul_i32 s4, {s(S_HH)}, 320")
    a("s_add_u32 s3, s3, s4")
    a("s_sub_u32 s4, 983040, s3")
    srd(a, R_OUT, S_OUT, "s3", "s4")
    assert cfg.w12 <= 2
    for _ in range(cfg.w12):
        call("L_sub_wo")
    a("s_barrier")
    for _ in range(cfg.w13):
        call("L_sub_wo")

    def poll(name, vaddr):
        a(f"s_mov_b32 s3, {SPIN_MAX}")
        a.label(name)
        a(f"buffer_load_dwordx2 {v(PT, 2)}, {v(vaddr)}, {s(R_F, 4)}, 0 offen sc1")
        a("s_sub_u32 s3, s3, 1")
        a("s_cmp_eq_u32 s3, 0")
        a(f"s_cbranch_scc1 {name}_out")
        a("s_waitcnt vmcnt(0)")
        a(f"v_cmp_ne_u64 vcc, {v(PT, 2)}, {v(TG, 2)}")
        a("s_nop 1")
        a(f"s_cbranch_vccnz {name}")
        a.label(name + "_out")
        a("s_waitcnt vmcnt(0)")

    BARS = ["B0", "B1", "B2", "BX"] + [f"B{n}" for n in range(3, 12)]
    own_mask = "s[4:5]"

    def run(path, tokens, state, alts):
        q, nwo, no, bi = state
        q = list(q)
        for k, ch in enumerate(tokens):
            free = -1 if bi < 2 else (bi - 2 if bi <= 4 else bi - 3)
            if ch == "w":
                assert nwo <= max(3, free + 4), (path, k, nwo, free)
                call("L_sub_wo")
                q.append((nwo, 5))
                nwo += 1
            elif ch == "o":
                assert no <= max(5, free + 6), (path, k, no, free)
                call("L_sub_o")
                q.append((no, 3))
                no += 1
            elif ch == "c":
                if cfg.sent:
                    a("s_mov_b32 s3, 4096")
                    for kk in range(8):
                        a(f"buffer_store_dwordx4 {v(CL, 4)}, {v(ACL)}, {s(R_PO, 4)}, {'s3' if kk >= 4 else '0'} offen offset:{1024 * (kk % 4)} sc1")
                    q.append((11, 8))
            elif ch == "p":
                a(f"buffer_load_dwordx2 {v(PT, 2)}, {v(AF1)}, {s(R_F, 4)}, 0 offen sc1")
                q.append((99, 1))
            elif ch in "ab":
                last = max(i for i, (kk, _) in enumerate(q) if kk == 99)
                a(f"s_waitcnt vmcnt({sum(c for _, c in q[last + 1:])})")
                q = q[last + 1:]
                a(f"v_cmp_ne_u64 vcc, {v(PT, 2)}, {v(TG, 2)}")
                a("s_nop 1")
                a(f"s_and_b64 s[4:5], vcc, {s(S_OM, 2)}")
                a(f"s_cbranch_scc0 L_path_{ch}")
                alts[ch] = (q, nwo, no, bi)
            elif ch == "s":
                poll("L_poll1", AF1)
                q = []
            elif ch == "|":
                name = BARS[bi]
                need = {"BX": -1}.get(name, int(name[1:]) if name != "BX" else -1)
                if need >= 0:
                    assert nwo > need and (need < 3 or no > need), (path, name)
                    last = max([i for i, (kk, _) in enumerate(q) if kk <= need] + [-1])
                    cnt = sum(c for _, c in q[last + 1:])
                    if last >= 0:
                        a(f"s_waitcnt vmcnt({cnt})")
                    q = q[last + 1:]
                a("s_barrier")
                bi += 1
        assert bi == len(BARS) and nwo == 12 and no == 12, (path, bi, nwo, no)
    CL, ACL, R_PO = 112, 116, 8
    if cfg.sent:
        a(f"s_lshl_b32 s3, {s(S_B)}, 2")
        a(f"s_add_u32 s3, s3, {s(S_HH)}")
        a("s_lshl_b32 s3, s3, 3")
        a(f"s_add_u32 s3, s3, {s(S_G8)}")
        a(f"s_mul_i32 s3, s3, {PSZ}")
        a(f"s_add_u32 s3, s3, {OFF_P}")
        srd(a, R_PO, S_WS, "s3", PSZ)
        a(f"s_mul_i32 s3, {s(S_LW)}, 7680")
        a(f"v_lshl_add_u32 {v(ACL)}, v0, 4, s3")
        for kk in range(4):
            a(f"v_mov_b32 {v(CL + kk)}, -1")
    S_OM = 4 * 0 + 40
    a(f"s_lshl_b32 s3, {s(S_HH)}, 2")
    a("s_lshl_b32 s3, 0x000f000f, s3")
    a(f"s_not_b32 {s(S_OM)}, s3")
    a(f"s_mov_b32 {s(S_OM + 1)}, {s(S_OM)}")
    a("s_barrier")
    jitter(a, cfg, 10)
    if cfg.tpos == 15:
        a(touch)
    tabs = {
        1: dict(N="wp a|ww|wp|b|ww s ooo|wo|wo|wo|wo|wo|wo|||",
                a="|ww|w ooo||w|wo|wo|wo|wo|wo|wo|w||",
                b="ooo|w|wo|wo|wo|wo|wo|wo|w||"),
        2: dict(N="wp a|ww|wp|b|ww s ooo|wo|wo|wo|wo|wo|wo|||",
                a="|ww|w ooo||w|wwo|wo|wo|wo|wo|wo|||",
                b="ooo|w|wwo|wo|wo|wo|wo|wo|||"),
        3: dict(N="wp a|ww|wp|b|www s ooo|ooo|w|w|w|oo|w|wo||",
                a="|ww|w ooo||ww|wo|wo|wo|wo|wo|wo|||",
                b="ooo|ww|wo|wo|wo|wo|wo|wo|||"),
        4: dict(N="w|ww|wp|b|ww s ooo|wo|wo|wo|wo|wo|woc|||",
                b="ooo|w|wo|wo|wo|wo|wo|wo|wc||"),
        8: dict(N="wp|ww a|wp|b|ww s ooo|wo|wo|wo|wo|wo|wo|||",
                a="ooo|w||w|wo|wo|wo|wo|wo|wo|w||",
                b="ooo|w|wo|wo|wo|wo|wo|wo|w||"),
        9: dict(N="w|wpw a|wp|b|ww s ooo|wo|wo|wo|wo|wo|wo|||",
                a="ooo|w||w|wo|wo|wo|wo|wo|wo|w||",
                b="ooo|w|wo|wo|wo|wo|wo|wo|w||"),
        10: dict(N="w|wwp|a wp|b|ww s ooo|wo|wo|wo|wo|wo|wo|||",
                 a="w ooo||w|wo|wo|wo|wo|wo|wo|w||",
                 b="ooo|w|wo|wo|wo|wo|wo|wo|w||"),
        11: dict(N="w|wwp|a wp|b|ww s ooo|wo|wo|wo|wo|wo|wo|||",
                 a="w oo||wo|wo|wo|wo|wo|wo|wo|w||",
                 b="oo|wo|wo|wo|wo|wo|wo|wo|w||"),
        12: dict(N="w|ww|pw|b|ww s ooo|wo|wo|wo|wo|wo|wo|||",
                 b="ooo|w|wo|wo|wo|wo|wo|wo|w||"),
        13: dict(N="w|ww|pw|b|ww s ooo|wo|wo|wo|wo|wo|wo|||",
                 b="ooo|w|wwo|wo|wo|wo|wo|wo|||"),
        14: dict(N="w|ww|pw|b wp|a w s ooo|wo|wo|wo|wo|wo|wo|||" if False else "w|ww|pw|b|wp a w s ooo|wo|wo|wo|wo|wo|wo|||",
                 a="ooo w|wo|wo|wo|wo|wo|wo|||",
                 b="ooo|w|wo|wo|wo|wo|wo|wo|w||"),
        15: dict(N="w|ww|w|p|w b w s ooo|wo|wo|wo|wo|wo|wo|||",
                 b="ooo w|wo|wo|wo|wo|wo|wo|||"),
        16: dict(N="w|www|p|b|ww s ooo|wo|wo|wo|wo|wo|wo|||",
                 b="ooo|w|wo|wo|wo|wo|wo|wo|w||"),
        7: dict(N="w|ww|wp|b|ww s ooo|wo|wo|wo|wo|wo|wo|c||",
                b="ooo|w|wwo|wo|wo|wo|wo|woc|||"),
        5: dict(N="wp a|ww|wp|b|ww s ooo|wo|wo|wo|wo|wo|wo|||",
                a="|ww|w oo||wo|wo|wo|wo|wo|wo|wo|w||",
                b="oo|wo|wo|wo|wo|wo|wo|wo|w||"),
        6: dict(N="wp a|ww|wp|b|ww s ooo|wo|wo|wo|wo|wo|wo|||",
                a="|www ooo|||w|wwo|wo|wo|wo|wo|wo|||",
                b="ooo|w|wwo|wo|wo|wo|wo|wo|||"),
    }[cfg.tab]
    alts = {}
    npre = cfg.w12 + cfg.w13
    if npre == 1:
        tabs = dict(N="w|w|wp|b|ww s ooo|wo|wo|wo|wo|wo|wo|||", b=tabs["b"])
    elif npre == 2:
        tabs = dict(N="w||wp|b|ww s ooo|wo|wo|wo|wo|wo|wo|||", b=tabs["b"])
    elif npre == 3:
        tabs = dict(N="w||p|b|ww s ooo|wo|wo|wo|wo|wo|wo|||", b=tabs["b"])
    run("N", tabs["N"].replace(" ", ""), ([(k, 5) for k in range(npre)], npre, 3, 0), alts)
    a("s_branch L_final")
    for key in sorted(alts):
        a.label(f"L_path_{key}")
        run(key, tabs[key].replace(" ", ""), alts[key], {})
        if key != sorted(alts)[-1]:
            a("s_branch L_final")
    a.label("L_final")
    jitter(a, cfg, 9)
    OFFS = RT
    a(f"s_lshr_b32 s5, {s(S_G8)}, 2")
    if cfg.pfl & 2:
        a(f"s_lshl_b32 s3, {s(S_B)}, 5")
        a(f"s_add_u32 s3, s3, {s(S_H)}")
    else:
        a(f"s_lshl_b32 s3, {s(S_B)}, 2")
        a(f"s_add_u32 s3, s3, {s(S_HH)}")
        a("s_lshl_b32 s3, s3, 1")
        a("s_add_u32 s3, s3, s5")
    a("s_lshl_b32 s3, s3, 7")
    a(f"s_add_u32 s3, s3, {F2}")
    a(f"v_and_b32 {v(T0)}, 15, v0")
    a(f"v_lshl_add_u32 {v(AF2)}, {v(T0)}, 3, s3")
    a(f"s_and_b32 s6, {s(S_G8)}, 3")
    a("s_mul_i32 s6, s6, 3")
    a("s_mul_i32 s5, s5, 7680")
    a(f"s_mul_i32 s4, {s(S_G8)}, {0 if cfg.otr else 12 * 1280}")
    a(f"s_cmp_eq_u32 {s(S_LW)}, 3")
    a("s_cbranch_scc1 L_red3")
    a(f"s_add_u32 s6, s6, {s(S_LW)}")
    a("s_lshr_b32 s3, s6, 2")
    a("s_mul_i32 s3, s3, 2560")
    a("s_add_u32 s5, s5, s3")
    a("s_and_b32 s6, s6, 3")
    a("s_lshl_b32 s6, s6, 8")
    a("s_add_u32 s5, s5, s6")
    a(f"s_mul_i32 s3, {s(S_LW)}, {4 * (320 if cfg.otr else 1280)}")
    a("s_add_u32 s4, s4, s3")
    a("v_lshrrev_b32 v7, 5, v0")
    a("v_bfe_u32 v8, v0, 4, 1")
    a(f"v_mul_u32_u24 v9, 15360, v7")
    a("v_lshl_add_u32 v9, v8, 10, v9")
    a(f"v_lshl_add_u32 v9, {v(T0)}, 4, v9")
    a(f"v_add_u32 {v(OFFS)}, s5, v9")
    a("v_and_b32 v9, 3, v0")
    a(f"v_mul_u32_u24 v9, {320 if cfg.otr else 1280}, v9")
    a("v_mul_u32_u24 v7, 160, v7")
    a("v_lshl_add_u32 v7, v8, 6, v7")
    a("v_bfe_u32 v8, v0, 2, 2")
    a("v_lshl_add_u32 v7, v8, 3, v7")
    a("v_add3_u32 " + f"{v(A0)}, v7, v9, s4")
    a(f"v_add_u32 {v(A1)}, 32, {v(A0)}")
    a("s_branch L_red")
    a.label("L_red3")
    a("v_min_u32 v10, 47, v0")
    a("v_lshrrev_b32 v7, 4, v10")
    a("v_add_u32 v8, s6, v7")
    a("v_lshrrev_b32 v9, 2, v8")
    a("v_mul_u32_u24 v9, 2560, v9")
    a("v_and_b32 v8, 3, v8")
    a("v_lshl_add_u32 v9, v8, 7, v9")
    a("v_bfe_u32 v8, v10, 3, 1")
    a("v_mul_u32_u24 v11, 15360, v8")
    a("v_add_u32 v9, v9, v11")
    a("v_and_b32 v11, 7, v10")
    a("v_lshl_add_u32 v9, v11, 4, v9")
    a("s_add_u32 s5, s5, 2048")
    a(f"v_add_u32 {v(OFFS)}, s5, v9")
    a("v_and_b32 v11, 1, v10")
    a("v_lshl_add_u32 v7, v7, 1, v11")
    a(f"v_mul_u32_u24 v7, {640 if cfg.otr else 2560}, v7")
    a("v_mul_u32_u24 v8, 160, v8")
    a("v_bfe_u32 v11, v10, 1, 2")
    a("v_lshl_add_u32 v8, v11, 3, v8")
    a("s_add_u32 s4, s4, 128")
    a("v_add3_u32 " + f"{v(A0)}, v7, v8, s4")
    a(f"v_add_u32 {v(A1)}, {320 if cfg.otr else 1280}, {v(A0)}")
    a.label("L_red")
    if cfg.otr:
        a(f"s_lshl_b32 s4, {s(S_LW)}, 6")
        a("v_add_u32 v7, s4, v0")
        a("v_min_u32 v7, 239, v7")
        a(f"v_lshlrev_b32 {v(RT + 1)}, 4, v7")
        a("v_mul_u32_u24 v8, 3277, v7")
        a("v_lshrrev_b32 v8, 16, v8")
        a("v_mul_u32_u24 v8, 960, v8")
        a(f"s_mul_i32 s4, {s(S_G8)}, {12 * 1280}")
        a(f"v_add3_u32 {v(RT + 2)}, v8, {v(RT + 1)}, s4")
    D0, AC = 80, 148
    if cfg.b12x:
        a("s_barrier")

    def load_part(g):
        a(f"s_mov_b32 s3, {PSZ * g}")
        a(f"buffer_load_dwordx4 {v(D0 + 4 * g, 4)}, {v(OFFS)}, {s(R_PI, 4)}, s3 offen {['sc1', '', 'nt', 'sc0 sc1', 'sc1 nt'][cfg.pld]}")
    if not cfg.dynred:
        poll("L_poll2", AF2)
        st.cyc("seen2")
        for g in range(8):
            load_part(g)
    elif cfg.dynred == 1:
        a(f"s_mov_b32 s7, {SPIN_MAX}")
        a("s_mov_b32 s6, 0")
        a.label("L_poll2")
        a(f"buffer_load_dwordx2 {v(PT, 2)}, {v(AF2)}, {s(R_F, 4)}, 0 offen sc1")
        a("s_sub_u32 s7, s7, 1")
        a("s_cmp_eq_u32 s7, 0")
        a("s_cbranch_scc1 L_poll2_out")
        a("s_waitcnt vmcnt(0)")
        a(f"v_cmp_eq_u64 vcc, {v(PT, 2)}, {v(TG, 2)}")
        a("s_nop 1")
        a("s_lshr_b32 s5, vcc_lo, 8")
        a("s_and_b32 s5, s5, vcc_lo")
        a("s_and_b32 s5, s5, 0xff")
        a("s_andn2_b32 s4, s5, s6")
        a("s_cbranch_scc0 L_poll2")
        if cfg.thr:
            a("s_bcnt1_i32_b32 s3, s5")
            a("s_cmp_eq_u32 s6, 0")
            a(f"s_cselect_b32 s8, {cfg.thr}, 8")
            a("s_cmp_lt_u32 s3, s8")
            a("s_cbranch_scc1 L_poll2")
        a("s_or_b32 s6, s6, s5")
        for g in range(8):
            a(f"s_bitcmp1_b32 s4, {g}")
            a(f"s_cbranch_scc0 L_r{g}")
            load_part(g)
            a.label(f"L_r{g}")
        a("s_cmp_eq_u32 s6, 0xff")
        a("s_cbranch_scc0 L_poll2")
        a.label("L_poll2_out")
        st.cyc("seen2")
        a("s_waitcnt vmcnt(0)")
    else:
        U0 = 120
        a(f"s_mov_b32 s7, {SPIN_MAX}")
        a("s_mov_b32 s6, 0")
        a("s_mov_b32 s8, 0")
        a("s_mov_b32 s9, 0")
        a("s_branch L_poll2")
        a.label("L_widen")
        for g in range(8):
            a(f"s_bitcmp1_b32 s8, {g}")
            a(f"s_cbranch_scc0 L_u{g}")
            for r in range(4):
                a(f"v_lshlrev_b32 {v(U0 + 8 * g + 2 * r)}, 16, {v(D0 + 4 * g + r)}")
                a(f"v_and_b32 {v(U0 + 8 * g + 2 * r + 1)}, 0xffff0000, {v(D0 + 4 * g + r)}")
            a.label(f"L_u{g}")
        a("s_mov_b32 s8, 0")
        a("s_setpc_b64 s[44:45]")
        a.label("L_poll2")
        a(f"buffer_load_dwordx2 {v(PT, 2)}, {v(AF2)}, {s(R_F, 4)}, 0 offen sc1")
        a("s_cmp_eq_u32 s8, 0")
        a("s_cbranch_scc1 L_nowiden")
        call("L_widen")
        a.label("L_nowiden")
        a("s_sub_u32 s7, s7, 1")
        a("s_cmp_eq_u32 s7, 0")
        a("s_cbranch_scc1 L_poll2_out")
        a("s_waitcnt vmcnt(0)")
        a(f"v_cmp_eq_u64 vcc, {v(PT, 2)}, {v(TG, 2)}")
        a("s_mov_b32 s8, s9")
        a("s_mov_b32 s9, 0")
        a("s_and_b32 s5, vcc_lo, 0xff")
        a("s_andn2_b32 s9, s5, s6")
        a("s_cbranch_scc0 L_poll2")
        a("s_or_b32 s6, s6, s5")
        for g in range(8):
            a(f"s_bitcmp1_b32 s9, {g}")
            a(f"s_cbranch_scc0 L_r{g}")
            load_part(g)
            a.label(f"L_r{g}")
        a("s_cmp_eq_u32 s6, 0xff")
        a("s_cbranch_scc0 L_poll2")
        a.label("L_poll2_out")
        st.cyc("seen2")
        call("L_widen")
        a("s_mov_b32 s8, s9")
        a("s_waitcnt vmcnt(0)")
        call("L_widen")
        for g in range(1, 8):
            for r in range(4):
                a(f"v_pk_add_f32 {v(U0 + 2 * r, 2)}, {v(U0 + 2 * r, 2)}, {v(U0 + 8 * g + 2 * r, 2)}")
        AC = U0
    if cfg.sent:
        assert cfg.dynred
        a("s_mov_b32 s7, 4096")
        a.label("L_chk")
        a(f"v_max3_u32 v4, {v(D0)}, {v(D0 + 1)}, {v(D0 + 2)}")
        a(f"v_max3_u32 v5, {v(D0 + 3)}, {v(D0 + 4)}, {v(D0 + 5)}")
        for kk in range(6, 30, 4):
            a(f"v_max3_u32 v4, v4, {v(D0 + kk)}, {v(D0 + kk + 1)}")
            a(f"v_max3_u32 v5, v5, {v(D0 + kk + 2)}, {v(D0 + kk + 3)}")
        a(f"v_max3_u32 v4, v4, {v(D0 + 30)}, {v(D0 + 31)}")
        a("v_max_u32 v4, v4, v5")
        a("v_cmp_eq_u32 vcc, -1, v4")
        a("s_sub_u32 s7, s7, 1")
        a("s_cselect_b32 s6, 0, 1")
        a("s_and_b32 s4, vcc_lo, -1")
        a("s_or_b32 s4, s4, vcc_hi")
        a("s_cselect_b32 s6, s6, 0")
        a("s_cmp_eq_u32 s6, 0")
        a("s_cbranch_scc1 L_chk_ok")
        for g in range(8):
            load_part(g)
        a("s_waitcnt vmcnt(0)")
        a("s_branch L_chk")
        a.label("L_chk_ok")
        st.cyc("chk")
    for g in range(8 if cfg.dynred < 2 else 0):
        if not cfg.dynred:
            a(f"s_waitcnt vmcnt({7 - g})")
        for r in range(4):
            src = D0 + 4 * g + r
            if g == 0:
                a(f"v_lshlrev_b32 {v(AC + 2 * r)}, 16, {v(src)}")
                a(f"v_and_b32 {v(AC + 2 * r + 1)}, 0xffff0000, {v(src)}")
            else:
                t = 4 + 2 * (r % 2)
                a(f"v_lshlrev_b32 {v(t)}, 16, {v(src)}")
                a(f"v_and_b32 {v(t + 1)}, 0xffff0000, {v(src)}")
                a(f"v_pk_add_f32 {v(AC + 2 * r, 2)}, {v(AC + 2 * r, 2)}, {v(t, 2)}")
    for r in range(4):
        a(cvt(D0 + r, AC + 2 * r))
    fl = ['', 'sc1', 'nt', 'sc0 sc1'][cfg.outfl]
    jitter(a, cfg, 11)
    if cfg.otr:
        a(f"ds_write_b64 {v(A0)}, {v(D0, 2)}")
        a(f"ds_write_b64 {v(A1)}, {v(D0 + 2, 2)}")
        a(lg(0))
        a("s_barrier")
        a(f"ds_read_b128 {v(D0 + 4, 4)}, {v(RT + 1)}")
        a(lg(0))
        a(f"buffer_store_dwordx4 {v(D0 + 4, 4)}, {v(RT + 2)}, {s(R_OUT, 4)}, 0 offen {fl}")
    elif cfg.unsafe == 9:
        a("s_mul_i32 s3, s2, 3840")
        srd(a, 8, S_OUT, "s3", 3840)
        a(f"v_lshlrev_b32 v7, 4, v7")
        a(f"buffer_store_dwordx4 {v(D0, 4)}, v7, s[8:11], 0 offen {fl}")
    else:
        a(f"buffer_store_dwordx2 {v(D0, 2)}, {v(A0)}, {s(R_OUT, 4)}, 0 offen {fl}")
        a(f"buffer_store_dwordx2 {v(D0 + 2, 2)}, {v(A1)}, {s(R_OUT, 4)}, 0 offen {fl}")
    a(f"s_or_b32 s3, {s(S_H)}, {s(S_LW)}")
    a("s_cmp_eq_u32 s3, 0")
    a("s_cbranch_scc0 L_noep")
    a(f"s_lshl_b32 s3, {s(S_B)}, 7")
    a(f"s_add_u32 s3, s3, {FX}")
    a("v_mov_b32 v4, 0")
    a("s_mov_b64 exec, 1")
    a(f"buffer_store_dwordx2 {v(TG, 2)}, v4, {s(R_F, 4)}, s3 offen")
    a.label("L_noep")
    if cfg.diag:
        a("s_waitcnt vmcnt(0)")
    st.cyc("end")
    st.real("real1")
    st.flush("L")


HEADER = """
GQA block (B=8, Sq=Sk=96, D=640, H=32, Dh=192), one launch, one workgroup per (batch b, head h).
Kernarg: x +0, k_cache +8, v_cache +16, wq +24, wo +32, out +40, debug +48, workspace +56.
Workgroup id = (b*4 + h%4)*8 + h/4, so the four heads of a head group and all batches of that group share
an XCD under round-robin placement (speed only; every hand-off below is placement independent).

Waves 4..7 stream operands into LDS with LDS-DMA, waves 0..3 (2 x 2 tiles of 16x16x32 bf16 MFMA) compute:
  1. Q^T = wq_h^T x_b^T          ten 64-deep stages through a ring of three LDS slots
  2. S^T = K Q^T, row max over all 96 keys (exchanged between wave pairs), P = exp2(c (S - max))
  3. O^T = V^T P^T / rowsum      (row sums from an extra MFMA with a ones operand)
  4. O goes to the workspace (write-through stores, then a flag); the workgroup takes the O of the other
     three heads of its group and multiplies the 96 x 768 block by a 768 x 160 slice of wo
  5. the 96 x 160 partial product goes to the workspace in bf16 (write-through, then flags); workgroup
     (b, h) sums rows 12*(h/4).. +11 of the eight head groups' partials in f32 and writes the output.

Workspace: +0 O tiles (256 x 36864 B), +16 MiB partial tiles (256 x 30720 B), +32 MiB flags and epoch words.
A flag is valid when it equals this launch's tag = (epoch word of the batch) + constant; the epoch word is
read before any flag of the workgroup is written and is set to the tag once the whole batch has read it,
so flags left by an earlier launch never match.
"""


def generate(cfg):
    a = Asm()
    for ln in HEADER.strip("\n").split("\n"):
        a.lines.append(("; " + ln).rstrip())
    a.lines.append("; @launch grid=(256,1,1) block=(512,1,1) lds=163840")
    a('.amdgcn_target "amdgcn-amd-amdhsa--gfx950"')
    a(".text")
    a(kernel_header(KN))
    a("s_cmp_ge_u32 s2, 256")
    a("s_cbranch_scc1 L_end")
    a("s_load_dwordx16 s[32:47], s[0:1], 0")
    if cfg.diag:
        a(f"s_memrealtime {s(S_T, 2)}")
        a(f"s_memtime {s(S_T + 2, 2)}")
    a("v_lshrrev_b32 v1, 6, v0")
    a("v_and_b32 v0, 63, v0")
    a(f"v_readfirstlane_b32 {s(S_WAVE)}, v1")
    a(f"s_and_b32 {s(S_G8)}, s2, 7")
    a("s_lshr_b32 s4, s2, 3")
    a(f"s_lshr_b32 {s(S_B)}, s4, 2")
    a(f"s_and_b32 {s(S_HH)}, s4, 3")
    a(f"s_lshl_b32 s3, {s(S_G8)}, 2")
    a(f"s_add_u32 {s(S_H)}, s3, {s(S_HH)}")
    a(f"s_cmp_ge_u32 {s(S_WAVE)}, 4")
    a("s_cbranch_scc1 L_loader")
    if cfg.ipf:
        a("s_getpc_b64 s[62:63]")
        a.label("L_pc")
        a(f"s_sub_u32 s62, s62, L_pc-{KN}")
        a("s_subb_u32 s63, s63, 0")
        per = -(-28 // (1 << cfg.ishare))
        a("s_lshr_b32 s3, s2, 3")
        a(f"s_and_b32 s3, s3, {(1 << cfg.ishare) - 1}")
        a("s_lshl_b32 s3, s3, 2")
        a(f"s_add_u32 s3, s3, {s(S_WAVE)}")
        a(f"s_mul_i32 s3, s3, {per}")
        a(f"v_min_u32 v7, {per - 1}, v0")
        a("v_add_u32 v7, s3, v7")
        a("v_lshlrev_b32 v7, 7, v7")
        a(f"v_min_u32 v7, L_last-{KN}, v7")
        if cfg.ipf & 1:
            a("global_load_dword v14, v7, s[62:63]")
    a("s_branch L_compute")
    a.label("L_loader")
    gen_loader(a, cfg)
    a.label("L_end")
    a("s_endpgm")
    a.label("L_compute")
    gen_compute(a, cfg)
    a('.section .rodata,"a"')
    a(".p2align 6")
    a(kernel_desc(KN))
    return a.text()


if __name__ == "__main__":
    cfg = Cfg()
    out = sys.argv[1]
    for opt in sys.argv[2:]:
        k, val = opt.split("=")
        assert hasattr(cfg, k), k
        setattr(cfg, k, val if k == "only" else int(val))
    t = generate(cfg)
    pr = hazard.check(t) + hazard.check_counters(t)
    for p in pr:
        print(f"HAZARD line {p[0]} -> {p[1]}: need {p[2]} have {p[3]}\n    {p[4]}\n    {p[5]}")
    open(out, "w").write(t)
    print(out, "hazards:", len(pr), "lines:", t.count("\n"))
```

```python
import struct
import sys

from asmlib import Asm, v, s, kernel_header, kernel_desc
import hazard

KN = "standalone__gqa_block_cached__near_ridge_kernel"
OFF_O = 0
OFF_P = 16 << 20
OFF_F = 32 << 20
F1, F2, FX = 0, 65536, 131072
OFF_T = 64 << 20
SLOT = 36864
A_K = 3 * SLOT
A_V = 1 * SLOT
A_Q = 2 * SLOT
A_P = 2 * SLOT
A_M = 163840 - 768
A_TAG = A_M - 8
WO0, WOS = 81920, 20480
OS = 12288
PSZ = 30720
CEXP = 0.07216878364870322 * 1.4426950408889634
TAGC = (0x9E3779B9, 0x7F4A7C15)
SPIN_MAX = 1 << 21


def f32bits(x):
    return struct.unpack("<I", struct.pack("<f", x))[0]


class Cfg:
    diag = 0
    only = ""
    rot = 10
    kpos = 9
    dynred = 0
    outfl = 0
    ipf = 1
    tx = 1
    tab = 12
    unsafe = 0
    ownl = 1
    ntx = 0
    miss = 0
    newc = 2
    ishare = 2
    thr = 0
    b12x = 1
    ksplit = 0
    tlb = 0
    jit = 0
    pfl = 2
    otr = 1
    ntkv = 3
    lprio = 1
    sent = 0
    smx = 2
    vbp = 2
    fin = 2
    qv = 6
    sv = 1
    wper = 5
    odef = 1
    fw = 2
    dot2 = 0
    tpos = 10
    w12 = 0
    w13 = 0
    pst = 0
    pld = 0


S_X, S_K, S_V, S_WQ, S_WO, S_OUT, S_DBG, S_WS = 32, 34, 36, 38, 40, 42, 44, 46
S_B, S_H, S_WAVE, S_G8, S_HH = 28, 29, 30, 31, 48
S_TAG = 60
R_F = 24
S_T = 64


class Stamps:
    def __init__(self, a, cfg):
        self.a, self.on, self.n = a, cfg.diag, 2
        self.fine = cfg.diag > 1
        self.names = ["real0", "cyc0"]
        self.k = 0
        self.only = cfg.only.split(",") if cfg.only else None

    def real(self, name):
        if self.on:
            self.a(f"s_memrealtime {s(S_T + 2 * self.n, 2)}")
            self.names.append(name)
            self.n += 1

    def cyc(self, name, fine=False):
        if self.only and name not in self.only:
            return
        if not self.only and len(name) <= 3 and name[0] in "afB" and name[1:].isdigit() and name != "B0":
            return
        if self.on and (not fine or self.fine or self.only):
            self.a(f"{'s_memrealtime' if self.on > 2 else 's_memtime'} {s(S_T + 2 * self.n, 2)}")
            self.names.append(name)
            self.n += 1

    def alt(self, name, path, fine=False):
        if path == "N":
            return self.cyc(name, fine)
        if not self.on or (self.only and name not in self.only) or (fine and not self.only):
            return
        self.a(f"{'s_memrealtime' if self.on > 2 else 's_memtime'} {s(S_T + 2 * (self.n + self.k), 2)}")
        self.k += 1

    def flush(self, role, vt=4):
        if not self.on:
            return
        a = self.a
        assert self.n <= 19, self.n
        a("s_waitcnt lgkmcnt(0) vmcnt(0)")
        a(f"; STAMPS {role} " + " ".join(self.names))
        a("s_lshl_b32 s3, s2, 3")
        a(f"s_add_u32 s3, s3, {s(S_WAVE)}")
        a("s_lshl_b32 s3, s3, 8")
        a(f"s_add_u32 s3, s3, {OFF_T}")
        a(f"s_add_u32 s4, {s(S_WS)}, s3")
        a(f"s_addc_u32 s5, {s(S_WS + 1)}, 0")
        a("s_mov_b64 exec, 1")
        a(f"v_mov_b32 {v(vt + 2)}, 0")
        for i in range(self.n):
            a(f"v_mov_b32 {v(vt)}, {s(S_T + 2 * i)}")
            a(f"v_mov_b32 {v(vt + 1)}, {s(S_T + 2 * i + 1)}")
            a(f"global_store_dwordx2 {v(vt + 2)}, {v(vt, 2)}, s[4:5] offset:{8 * i}")
            a("s_nop 1")
        a("s_waitcnt vmcnt(0)")


def srd(a, d, base, off_sgpr, size):
    a(f"s_add_u32 {s(d)}, {s(base)}, {off_sgpr}")
    a(f"s_addc_u32 {s(d + 1)}, {s(base + 1)}, 0")
    a(f"s_mov_b32 {s(d + 2)}, {size}")
    a(f"s_mov_b32 {s(d + 3)}, 0x20000")


def dma(a, voff, srd_, soff, base, imm, fl=""):
    a(f"s_add_u32 m0, {base}, {imm}")
    a("s_nop 0")
    a(f"buffer_load_dwordx4 {v(voff)}, {s(srd_, 4)}, {soff} offen {fl} lds")


def mfma(d, a_, b_, c=None):
    cs = v(d, 4) if c is None else str(c)
    return f"v_mfma_f32_16x16x32_bf16 {v(d, 4)}, {v(a_, 4)}, {v(b_, 4)}, {cs}"


def trread(d, addr, off):
    assert 0 <= off < 65536
    return f"ds_read_b64_tr_b16 {v(d, 2)}, {v(addr)} offset:{off}"


def rd128(d, addr, off):
    assert 0 <= off < 65536
    return f"ds_read_b128 {v(d, 4)}, {v(addr)} offset:{off}"


def rd64(d, addr, off):
    assert 0 <= off < 65536
    return f"ds_read_b64 {v(d, 2)}, {v(addr)} offset:{off}"


def cvt(d, t):
    return f"v_cvt_pk_bf16_f32 {v(d)}, {v(t)}, {v(t + 1)}"


def emit(a, lst):
    for x in lst:
        a(x)


def place(main, slots):
    out = list(slots.get(-1, []))
    for i, m in enumerate(main):
        out.append(m)
        out.extend(slots.get(i, []))
    for k in sorted(slots):
        if k >= len(main):
            out.extend(slots[k])
    return out


def spread(fill, start, per=1, step=1, into=None):
    d = into if into is not None else {}
    i, k = start, 0
    while k < len(fill):
        d.setdefault(i, []).extend(fill[k:k + per])
        k += per
        i += step
    return d


def at(d, i, *x):
    d.setdefault(i, []).extend(x)


def lg(n):
    return f"s_waitcnt lgkmcnt({n})"


def jitter(a, cfg, k):
    if not cfg.jit:
        return
    lbl = a.uid("L_jit")
    a(f"s_lshl_b32 s100, s2, 3")
    a(f"s_add_u32 s100, s100, {s(S_WAVE)}") if cfg.jit & 1 else None
    a(f"s_mul_i32 s100, s100, {0x9E3779B1 & 0x7fffffff | 1}")
    a(f"s_add_u32 s100, s100, {(k * 0x632BE5AB + cfg.jit * 0x1234567) & 0x7fffffff}")
    a("s_mul_i32 s100, s100, 0x2545F491")
    a("s_lshr_b32 s101, s100, 29")
    a("s_cmp_lg_u32 s101, 0")
    a(f"s_cbranch_scc1 {lbl}")
    a("s_lshr_b32 s100, s100, 8")
    a("s_and_b32 s100, s100, 31")
    a.label(lbl + "b")
    a("s_sleep 8")
    a("s_sub_u32 s100, s100, 1")
    a("s_cmp_gt_i32 s100, 0")
    a(f"s_cbranch_scc1 {lbl}b")
    a.label(lbl)


def mod_small(a, reg, m, times):
    for _ in range(times):
        a(f"s_sub_u32 s4, {reg}, {m}")
        a(f"s_cmp_ge_u32 {reg}, {m}")
        a(f"s_cselect_b32 {reg}, s4, {reg}")


def tile_addrs(a, dst, first, f, lanepart, tmp, extra=None):
    for c in range(4):
        a(f"s_add_u32 s4, {first}, {c}")
        a("s_and_b32 s5, s4, 3")
        a("s_lshr_b32 s4, s4, 2")
        a("s_lshl_b32 s4, s4, 7")
        a(f"v_xor_b32 {v(tmp)}, s5, {v(f)}")
        a(f"v_lshl_add_u32 {v(tmp)}, {v(tmp)}, 5, {v(lanepart)}")
        a(f"v_add_u32 {v(dst + c)}, s4, {v(tmp)}")


def gen_compute(a, cfg):
    st = Stamps(a, cfg)
    R_O, R_P = 8, 12
    ACC, FR, QP, LS, ONES = 16, 88, 160, 196, 208
    AX, AY, AZ, AVo, AVp = 212, 216, 218, 230, 234
    AQW, AQR, AMW, AMR, APW, APR, APW2, APR2, AO, AOW = range(238, 248)
    AW, AB, AP, AP2, FL2, TG, ZERO = 248, 250, 251, 252, 253, 254, 15
    VM, VG, VF, T0, T1, T2 = 1, 2, 3, 4, 5, 6
    MX = 8
    S_I, S_J, S_C, S_D, S_CNT, S_SL, S_D2, S_SL2 = 50, 51, 52, 54, 55, 56, 57, 18
    S_K0, S_K1, S_F1, S_F2 = 58, 59, 16, 17

    a(f"s_lshr_b32 {s(S_I)}, {s(S_WAVE)}, 1")
    a(f"s_and_b32 {s(S_J)}, {s(S_WAVE)}, 1")
    a(f"s_mov_b32 {s(S_C)}, {f32bits(CEXP):#x}")
    a(f"s_mov_b32 {s(S_C + 1)}, {f32bits(CEXP):#x}")
    a(f"v_and_b32 {v(VM)}, 15, v0")
    a(f"v_lshrrev_b32 {v(VG)}, 4, v0")
    a(f"v_lshrrev_b32 {v(T0)}, 2, {v(VM)}")
    a(f"v_lshl_add_u32 {v(T1)}, {v(VG)}, 3, {v(T0)}")
    a(f"v_mul_u32_u24 {v(T1)}, 384, {v(T1)}")
    a(f"v_and_b32 {v(T2)}, 3, {v(VM)}")
    a(f"v_lshlrev_b32 v11, 3, {v(T2)}")
    a(f"v_add_u32 {v(T1)}, v11, {v(T1)}")
    a(f"v_and_b32 {v(T2)}, 1, {v(VG)}")
    a(f"v_lshrrev_b32 {v(VF)}, 3, {v(VM)}")
    a(f"v_lshl_or_b32 {v(VF)}, {v(T2)}, 1, {v(VF)}")
    a(f"s_mul_i32 s3, {s(S_I)}, 6")
    tile_addrs(a, AX, "s3", VF, T1, T2)
    a(f"s_mul_i32 s4, {s(S_J)}, 48")
    a(f"v_add_u32 {v(T1)}, s4, {v(VM)}")
    a(f"v_lshlrev_b32 {v(T1)}, 7, {v(T1)}")
    a(f"v_add_u32 {v(T1)}, 24576, {v(T1)}")
    a(f"v_lshrrev_b32 {v(VF)}, 1, {v(VM)}")
    for ks in range(2):
        a(f"v_add_u32 {v(T2)}, {4 * ks}, {v(VG)}")
        a(f"v_xor_b32 {v(T2)}, {v(T2)}, {v(VF)}")
        a(f"v_lshl_add_u32 {v(AY + ks)}, {v(T2)}, 4, {v(T1)}")
    for i in range(72):
        a(f"v_mov_b32 {v(ACC + i)}, 0")
    a(f"s_mul_i32 s4, {s(S_I)}, 48")
    a(f"v_add_u32 {v(T1)}, s4, {v(VM)}")
    a(f"v_mul_u32_u24 {v(T1)}, 384, {v(T1)}")
    a(f"v_and_b32 {v(T2)}, 1, {v(VG)}")
    a(f"v_lshl_add_u32 {v(T1)}, {v(T2)}, 3, {v(T1)}")
    a(f"v_add_u32 {v(T1)}, {A_K}, {v(T1)}")
    a(f"v_lshrrev_b32 {v(T0)}, 1, {v(VG)}")
    a(f"v_xor_b32 {v(T0)}, {v(T0)}, {v(VF)}")
    a(f"v_lshl_add_u32 {v(T1)}, {v(T0)}, 4, {v(T1)}")
    a(f"s_mul_i32 s7, {s(S_I)}, 3")
    for ls in range(6):
        a(f"s_add_u32 s6, s7, {ls}")
        mod_small(a, "s6", 6, 1)
        a("s_and_b32 s5, s6, 1")
        a("s_lshl_b32 s5, s5, 6")
        a("s_lshr_b32 s6, s6, 1")
        a("s_lshl_b32 s6, s6, 7")
        a(f"v_add_u32 {v(T2)}, s6, {v(T1)}")
        a(f"v_xor_b32 {v(AZ + 2 * ls)}, s5, {v(T2)}")
        a(f"v_xor_b32 {v(AZ + 2 * ls + 1)}, 32, {v(AZ + 2 * ls)}")
    a(f"v_lshrrev_b32 {v(T0)}, 2, {v(VM)}")
    a(f"v_lshl_add_u32 {v(T0)}, {v(VG)}, 2, {v(T0)}")
    a(f"v_bfe_u32 {v(VF)}, {v(T0)}, 1, 2")
    a(f"v_mul_u32_u24 {v(T1)}, 384, {v(T0)}")
    a(f"v_add_u32 {v(T1)}, v11, {v(T1)}")
    a(f"s_mul_i32 s6, {s(S_I)}, 18432")
    a(f"s_add_u32 s7, s6, {A_V}")
    a(f"v_add_u32 {v(T1)}, s7, {v(T1)}")
    a(f"s_mul_i32 s3, {s(S_I)}, 6")
    tile_addrs(a, AVo, "s3", VF, T1, T2)
    a("s_lshl_b32 s6, s6, 1")
    a("s_sub_u32 s6, 18432, s6")
    for c in range(4):
        a(f"v_add_u32 {v(AVp + c)}, s6, {v(AVo + c)}")
    a(f"v_mul_u32_u24 {v(T1)}, 320, {v(T0)}")
    a(f"v_add_u32 {v(T1)}, v11, {v(T1)}")
    a(f"v_add_u32 {v(T1)}, {WO0 + WOS}, {v(T1)}")
    a(f"v_and_b32 {v(T0)}, 1, {v(VG)}")
    a(f"s_mul_i32 s3, {s(S_I)}, 5")
    for par in range(2):
        a(f"s_add_u32 s4, s3, {par}")
        a(f"v_xor_b32 {v(T2)}, s4, {v(T0)}")
        a(f"v_lshl_add_u32 {v(AW + par)}, {v(T2)}, 5, {v(T1)}")
    a(f"s_xor_b32 s5, {s(S_WAVE)}, 2")
    a(f"v_lshlrev_b32 {v(T1)}, 4, v0")
    a(f"v_lshlrev_b32 {v(T0)}, 3, v0")
    a(f"v_lshlrev_b32 {v(T2)}, 2, {v(VM)}")
    for wv, (q_, p_, p2, m_) in ((s(S_WAVE), (AQW, APW, APW2, AMW)), ("s5", (AQR, APR, APR2, AMR))):
        a(f"s_mul_i32 s3, {wv}, 9216")
        a(f"s_add_u32 s3, s3, {A_Q}")
        a(f"v_add_u32 {v(q_)}, s3, {v(T1)}")
        a(f"s_mul_i32 s3, {wv}, 4608")
        a(f"s_add_u32 s3, s3, {A_P}")
        a(f"v_add_u32 {v(p_)}, s3, {v(T1)}")
        a(f"v_add_u32 {v(p2)}, s3, {v(T0)}")
        a(f"s_mul_i32 s3, {wv}, 192")
        a(f"s_add_u32 s3, s3, {A_M}")
        a(f"v_add_u32 {v(m_)}, s3, {v(T2)}")
    a(f"s_mul_i32 s3, {s(S_I)}, 18")
    a(f"s_mul_i32 s4, {s(S_J)}, 3")
    a("s_add_u32 s3, s3, s4")
    a("s_lshl_b32 s3, s3, 10")
    a(f"v_add_u32 {v(AO)}, s3, {v(T1)}")
    a(f"s_mul_i32 s3, {s(S_J)}, 3072")
    a(f"v_add_u32 {v(AB)}, s3, {v(T1)}")
    a(f"v_lshrrev_b32 v12, 2, {v(VM)}")
    a(f"v_lshl_add_u32 v12, v12, 2, {v(VG)}")
    a(f"v_and_b32 v13, 3, {v(VM)}")
    a("v_lshl_add_u32 v12, v12, 2, v13")
    a(f"s_mul_i32 s3, {s(S_WAVE)}, 7680")
    a(f"v_lshl_add_u32 {v(AP)}, v12, 4, s3")
    a("s_add_u32 s3, s3, 2048")
    a(f"v_lshl_add_u32 {v(AP2)}, v12, 3, s3")
    a(f"v_mov_b32 {v(AOW)}, {A_TAG}")
    for i in range(4):
        a(f"v_mov_b32 {v(ONES + i)}, 0x3f803f80")
    a(f"s_lshl_b32 s3, {s(S_B)}, 5")
    a(f"s_add_u32 s3, s3, {s(S_H)}")
    a(f"s_lshl_b32 s4, {s(S_HH)}, 2")
    a(f"s_add_u32 s4, s4, {s(S_WAVE)}")
    a("s_lshl_b32 s4, s4, 3")
    a("s_andn2_b32 s5, s3, 3")
    a(f"s_lshl_b32 s5, s5, {7 if cfg.pfl & 1 else 5}")
    a(f"s_add_u32 {s(S_F1)}, s4, s5")
    a(f"s_lshl_b32 s6, {s(S_I)}, 3")
    a(f"s_add_u32 s6, s6, {s(S_G8)}")
    a("s_lshl_b32 s6, s6, 3")
    if cfg.pfl & 2:
        a(f"s_lshl_b32 s5, {s(S_B)}, 5")
        a(f"s_lshl_b32 s4, {s(S_J)}, 4")
        a("s_add_u32 s5, s5, s4")
        a(f"s_add_u32 s5, s5, {s(S_HH)}")
    else:
        a(f"s_lshl_b32 s5, {s(S_B)}, 2")
        a(f"s_add_u32 s5, s5, {s(S_HH)}")
        a("s_lshl_b32 s5, s5, 1")
        a(f"s_add_u32 s5, s5, {s(S_J)}")
    a("s_lshl_b32 s5, s5, 7")
    a("s_add_u32 s6, s6, s5")
    a(f"s_add_u32 {s(S_F2)}, s6, {F2}")
    a(f"v_lshlrev_b32 {v(ZERO)}, 7, v0")
    a(f"v_lshlrev_b32 {v(FL2)}, 9, v0")
    a(f"s_lshl_b32 s4, {s(S_B)}, 2")
    a(f"s_add_u32 s4, s4, {s(S_HH)}")
    a("s_lshl_b32 s4, s4, 3")
    a(f"s_add_u32 s4, s4, {s(S_G8)}")
    a(f"s_mul_i32 s4, s4, {PSZ}")
    a(f"s_add_u32 s4, s4, {OFF_P}")
    a("s_mul_i32 s3, s3, 36864")
    a("s_waitcnt lgkmcnt(0)")
    srd(a, R_O, S_WS, "s3", 36864)
    srd(a, R_P, S_WS, "s4", PSZ)
    srd(a, R_F, S_WS, f"{OFF_F}", 262144)
    if cfg.tlb:
        a("s_mov_b64 exec, 1")
        a(f"buffer_load_dword v14, {v(AO)}, {s(R_O, 4)}, 0 offen sc1")
        a(f"buffer_load_dword v14, {v(AP)}, {s(R_P, 4)}, 0 offen sc1")
        a("s_mov_b32 s3, 200000")
        a(f"buffer_load_dword v14, {v(AP)}, {s(R_F, 4)}, s3 offen sc1")
        if cfg.tlb > 1:
            a(f"s_mul_i32 s3, {s(S_B)}, 122880")
            srd(a, 20, S_OUT, "s3", 122880)
            a(f"buffer_load_dword v14, {v(AP)}, s[20:23], 0 offen sc1")
            a(f"s_lshl_b32 s3, {s(S_B)}, 5")
            a(f"s_add_u32 s3, s3, {s(S_H)}")
            a("s_mul_i32 s3, s3, 36864")
            srd(a, 20, S_V, "s3", 36864)
            a(f"buffer_load_dword v14, {v(AP)}, s[20:23], 0 offen sc1")
            srd(a, 20, S_K, "s3", 36864)
            a(f"buffer_load_dword v14, {v(AP)}, s[20:23], 0 offen sc1")
            a(f"s_mul_i32 s3, {s(S_G8)}, 983040")
            srd(a, 20, S_WO, "s3", 983040)
            a(f"buffer_load_dword v14, {v(AP)}, s[20:23], 0 offen sc1")
        a("s_mov_b64 exec, -1")

    def fa(n, dt):
        return FR + 36 * n + 4 * dt

    def fb(n, qt):
        return FR + 36 * n + 24 + 4 * qt

    def p1_reads(n, ks):
        def A(dt):
            return [trread(fa(n, dt) + 2 * hh, AX + dt % 4, 384 * (32 * ks + 4 * hh) + 128 * (dt // 4)) for hh in range(2)]

        def B(qt):
            return [rd128(fb(n, qt), AY + ks, 2048 * qt)]
        r = B(0) + A(0) + B(1) + B(2)
        for dt in range(1, 6):
            r += A(dt)
        return r

    def qtile(dt, qt):
        return ACC + 4 * (3 * dt + qt)

    def p1_mfmas(n):
        return [mfma(qtile(dt, qt), fa(n, dt), fb(n, qt)) for dt in range(6) for qt in range(3)]

    adv = [f"v_add_u32 {v(AX + c)}, {s(S_D)}, {v(AX + c)}" for c in range(4)] + \
          [f"v_add_u32 {v(AY + c)}, {s(S_D)}, {v(AY + c)}" for c in range(2)]
    a(f"s_mov_b32 {s(S_SL)}, 0")
    a(f"s_mov_b32 {s(S_CNT)}, 0")
    a(f"s_mov_b32 {s(S_K0)}, {(-2 * SLOT) & 0xffffffff:#x}")
    a(f"s_mov_b32 {s(S_K1)}, {SLOT}")
    st.cyc("setup")
    a("s_barrier")
    st.cyc("b0")
    emit(a, p1_reads(0, 0))
    a(lg(0))
    a.label("L_p1")
    sl = spread(p1_reads(1, 1), 0, 1)
    at(sl, 0, f"s_add_u32 {s(S_SL)}, {s(S_SL)}, 1")
    at(sl, 1, f"s_cmp_eq_u32 {s(S_SL)}, 3")
    at(sl, 2, f"s_cselect_b32 {s(S_D)}, {s(S_K0)}, {s(S_K1)}")
    at(sl, 3, f"s_cselect_b32 {s(S_SL)}, 0, {s(S_SL)}")
    spread(adv, 15, 2, into=sl)
    emit(a, place(p1_mfmas(0), sl))
    a(lg(0))
    a("s_barrier")
    sl = spread(p1_reads(0, 0), 0, 1)
    at(sl, 15, f"s_add_u32 {s(S_CNT)}, {s(S_CNT)}, 1")
    at(sl, 16, f"s_cmp_lt_u32 {s(S_CNT)}, 9")
    emit(a, place(p1_mfmas(1), sl))
    a(lg(0))
    a("s_cbranch_scc1 L_p1")
    emit(a, place(p1_mfmas(0), spread(p1_reads(1, 1), 0, 1)))
    if cfg.ipf & 2:
        a("global_load_dword v14, v7, s[62:63]")
    a(lg(0))
    a("s_barrier")
    jitter(a, cfg, 1)
    st.cyc("b10")
    a.c("SEG q")

    def kf(buf, a_):
        return FR + 12 * buf + 4 * a_

    def k_reads(ls, buf):
        return [rd64(kf(buf, a_) + 2 * hh, AZ + 2 * ls + hh, 6144 * a_) for a_ in range(3) for hh in range(2)]

    def qpack(ls):
        r = []
        for qt in range(3):
            for dt in (2 * ls, 2 * ls + 1):
                d = QP + 4 * (3 * ls + qt) + 2 * (dt % 2)
                r += [cvt(d, qtile(dt, qt)), cvt(d + 1, qtile(dt, qt) + 2)]
        return r

    def qwrite(f):
        return f"ds_write_b128 {v(AQW)}, {v(QP + 4 * f, 4)} offset:{1024 * f}"

    def stile(a_, qt):
        return ACC + 4 * (3 * a_ + qt)

    def s_mfmas(qbase, ls3, buf, first=False, qmajor=False):
        idx = [(a_, qt) for qt in range(3) for a_ in range(3)] if qmajor else [(a_, qt) for a_ in range(3) for qt in range(3)]
        return [mfma(stile(a_, qt), kf(buf, a_), qbase + 4 * (3 * ls3 + qt), 0 if first else None) for a_, qt in idx]

    q0, q1, q2 = qpack(0), qpack(1), qpack(2)
    if cfg.qv == 0:
        sl = spread(k_reads(0, 0) + k_reads(1, 1) + k_reads(2, 2), 0, 2, into={})
        spread(q0, 9, 2, into=sl)
        at(sl, 11, qwrite(0))
        at(sl, 14, qwrite(1))
        spread(q1[:4], 15, 2, into=sl)
        at(sl, 17, qwrite(2))
        emit(a, place(p1_mfmas(1), sl))
        emit(a, q1[4:8] + [qwrite(3)] + q1[8:])
        a(lg(4))
        sl = {}
        at(sl, 0, qwrite(4))
        spread(q2, 1, 2, into=sl)
        at(sl, 3, qwrite(5))
        at(sl, 7, qwrite(6))
        at(sl, 10, qwrite(7))
        at(sl, 13, qwrite(8))
        spread(k_reads(3, 0), 14, 2, into=sl)
        emit(a, place(s_mfmas(QP, 0, 0, True) + s_mfmas(QP, 1, 1), sl))
    else:
        order = [(dt, qt) for ls in range(3) for qt in range(3) for dt in (2 * ls, 2 * ls + 1)]
        mm = [mfma(qtile(dt, qt), fa(1, dt), fb(1, qt)) for dt, qt in order]
        mm += s_mfmas(QP, 0, 0, True) + s_mfmas(QP, 1, 1)
        packs = q0 + q1 + q2
        sl = {}
        if cfg.qv == 1:
            spread(k_reads(0, 0)[:5], 0, 1, into=sl)
            for f in range(9):
                g0 = 5 + 2 * f + (f >= 6) * 2
                spread(packs[4 * f:4 * f + 4], g0, 2, into=sl)
            wr = [7, 10, 13, 16, 19, 22, 25, 28, 31]
            for f in range(9):
                at(sl, wr[f], qwrite(f))
            at(sl, 8, k_reads(0, 0)[5])
            for k, g_ in enumerate([9, 11, 12, 14, 15, 17]):
                at(sl, g_, k_reads(1, 1)[k])
            at(sl, 17, lg(7))
            at(sl, 26, lg(3))
            spread(k_reads(2, 2), 27, 1, into=sl)
            spread(k_reads(3, 0), 29, 1, into=sl)
        elif cfg.qv == 2:
            spread(k_reads(0, 0) + k_reads(1, 1)[:4], 0, 2, into=sl)
            for f in range(9):
                g0 = 5 + 2 * f + (f >= 6) * 2
                spread(packs[4 * f:4 * f + 4], g0, 2, into=sl)
            wr = [7, 10, 13, 16, 19, 22, 25, 28, 31]
            for f in range(9):
                at(sl, wr[f], qwrite(f))
            at(sl, 8, k_reads(1, 1)[4])
            at(sl, 9, k_reads(1, 1)[5])
            at(sl, 17, lg(3))
            spread(k_reads(2, 2), 26, 1, into=sl)
            spread(k_reads(3, 0), 29, 1, into=sl)
        elif cfg.qv in (3, 4):
            kr = k_reads(0, 0) + k_reads(1, 1) + k_reads(2, 2)
            spread(kr[:5], 0, 1, into=sl)
            rest = kr[5:]
            for f in range(9):
                g0 = 5 + 3 * f
                c4 = packs[4 * f:4 * f + 4]
                if cfg.qv == 3:
                    at(sl, g0, rest.pop(0), c4[0], c4[1])
                    at(sl, g0 + 1, c4[2], c4[3])
                else:
                    at(sl, g0, rest.pop(0), c4[0])
                    at(sl, g0 + 1, c4[1], c4[2], c4[3])
                at(sl, g0 + 2, qwrite(f))
            spread(rest, 32, 1, into=sl)
            sl[17].append(lg(8))
            sl[26].append(lg(2))
        elif cfg.qv in (5, 6, 7):
            kr = k_reads(0, 0) + k_reads(1, 1) + k_reads(2, 2)
            spread(kr[:4], 0, 1, into=sl)
            rest = kr[4:]
            start = 4 if cfg.qv == 7 else 5
            for f in range(9):
                g0 = start + 3 * f
                c4 = packs[4 * f:4 * f + 4]
                at(sl, g0, *(rest[:1]), c4[0], c4[1])
                at(sl, g0 + 1, *(rest[1:2]), c4[2], c4[3])
                rest = rest[2:]
                if cfg.qv == 6:
                    d = QP + 4 * f
                    at(sl, g0 + 2, f"ds_write_b64 {v(AQW)}, {v(d, 2)} offset:{1024 * f}",
                       f"ds_write_b64 {v(AQW)}, {v(d + 2, 2)} offset:{1024 * f + 8}")
                else:
                    at(sl, g0 + 2, qwrite(f))
            sl[17].append(lg(4))
            sl[26].append(lg(2))
        emit(a, place(mm, sl))
    st.cyc("a3", True)
    a(lg(0))
    a("s_barrier")
    st.cyc("b11")
    a.c("SEG s")
    QR = FR + 36
    rds = [rd128(QR + 4 * f, AQR, 1024 * f) for f in range(9)]
    if cfg.sv == 0:
        sl = spread(rds[:6], -1, 1)
        spread(k_reads(4, 1), 5, 2, into=sl)
        at(sl, 8, lg(9))
        emit(a, place(s_mfmas(QP, 2, 2), sl))
        st.cyc("a4", True)
        sl = spread(rds[6:], 0, 1)
        spread(k_reads(5, 2), 3, 1, into=sl)
        at(sl, 8, lg(9))
        emit(a, place(s_mfmas(QR, 0, 0), sl))
        emit(a, s_mfmas(QR, 1, 1))
        a(lg(0))
    else:
        sl = spread(rds[:3], -1, 1)
        spread(k_reads(3, 0), 2, 2, into=sl)
        spread(rds[3:6], 5, 1, into=sl)
        at(sl, 8, lg(3))
        spread(k_reads(4, 1), 8, 2, into=sl)
        spread(rds[6:], 11, 1, into=sl)
        spread(k_reads(5, 2), 14, 2, into=sl)
        at(sl, 17, lg(9))
        emit(a, place(s_mfmas(QP, 2, 2) + s_mfmas(QR, 0, 0), sl))

    def xs(qt):
        return [stile(a_, qt) + r for a_ in range(3) for r in range(4)]

    def maxchain(qt):
        x = xs(qt)
        r = [f"v_max3_f32 {v(MX + qt)}, {v(x[0])}, {v(x[1])}, {v(x[2])}"]
        for k in range(3, 11, 2):
            r.append(f"v_max3_f32 {v(MX + qt)}, {v(MX + qt)}, {v(x[k])}, {v(x[k + 1])}")
        r.append(f"v_max_f32 {v(MX + qt)}, {v(MX + qt)}, {v(x[11])}")
        return r
    m0, m1, m2 = maxchain(0), maxchain(1), maxchain(2)
    if cfg.sv == 0:
        emit(a, s_mfmas(QR, 2, 2, qmajor=True))
        st.cyc("sdone", True)
        a("s_nop 0")
        emit(a, m0 + m1 + m2)
    else:
        s4, s5 = s_mfmas(QR, 1, 1, qmajor=True), s_mfmas(QR, 2, 2, qmajor=True)
        mm = sum([s4[3 * qt:3 * qt + 3] + s5[3 * qt:3 * qt + 3] for qt in range(3)], [])
        sl = {}
        at(sl, 2, lg(0))
        spread(m0, 11, 2, into=sl)
        spread(m1[:2], 17, 2, into=sl)
        emit(a, place(mm, sl))
        st.cyc("sdone", True)
        emit(a, m1[2:] + ["s_nop 1"] + m2)
    for op in ("v_permlane16_swap_b32", "v_permlane32_swap_b32"):
        for qt in range(3):
            a(f"v_mov_b32 {v(MX + 3 + qt)}, {v(MX + qt)}")
        for qt in range(3):
            a(f"{op} {v(MX + 3 + qt)}, {v(MX + qt)}")
        for qt in range(3):
            a(f"v_max_f32 {v(MX + qt)}, {v(MX + qt)}, {v(MX + 3 + qt)}")
    for qt in range(3):
        a(f"ds_write_b32 {v(AMW)}, {v(MX + qt)} offset:{64 * qt}")
    st.cyc("a6", True)
    a(lg(0))
    a("s_barrier")
    st.cyc("b12")
    a.c("SEG sm")

    PP, PC = FR, FR + 24
    VQ = [[QP + 4 * dt for dt in range(6)], [FR + 36 + 4 * dt for dt in range(6)], [148, 152, 156, 184, 188, 192]]

    def v_reads(step):
        r = []
        for dt in range(6):
            for hh in range(2):
                if step == 0:
                    ad, tile = AVo, hh
                elif step == 1:
                    ad, tile = (AVo, 2) if hh == 0 else (AVp, 2)
                else:
                    ad, tile = AVp, hh
                r.append(trread(VQ[step][dt] + 2 * hh, ad + dt % 4, 6144 * tile + 128 * (dt // 4)))
        return r
    NM = 2
    for qt in range(3):
        a(f"ds_read_b32 {v(MX + 3 + qt)}, {v(AMR)} offset:{64 * qt}")
    emit(a, v_reads(0))
    if cfg.vbp == 2:
        emit(a, v_reads(1))
    a((lg(15) if cfg.vbp == 2 else lg(12)) if not st.on else lg(0))
    a(f"ds_read_b64 {v(TG, 2)}, {v(AOW)}")
    for qt in range(3):
        a(f"v_max_f32 {v(MX + qt)}, {v(MX + qt)}, {v(MX + 3 + qt)}")
    for qt in range(3):
        a(f"v_mul_f32 {v(NM + 2 * qt)}, {s(S_C)}, {v(MX + qt)}")
    for qt in range(3):
        a(f"v_mov_b32 {v(NM + 2 * qt + 1)}, {v(NM + 2 * qt)}")

    def softmax(qt):
        x = xs(qt)
        e = [f"v_exp_f32 {v(y)}, {v(y)}" for y in x]
        c = [cvt(PP + 8 * qt + k, x[2 * k]) for k in range(6)]
        if cfg.smx == 0 or (cfg.smx == 2 and qt == 0):
            f = [[f"v_pk_fma_f32 {v(x[2 * k], 2)}, {v(x[2 * k], 2)}, {s(S_C, 2)}, {v(NM + 2 * qt, 2)} neg_lo:[0,0,1] neg_hi:[0,0,1]"] for k in range(6)]
        else:
            f = [[f"v_fma_f32 {v(y)}, {v(y)}, {s(S_C)}, -{v(NM + 2 * qt)}" for y in x[2 * k:2 * k + 2]] for k in range(6)]
        r = f[0] + f[1]
        for k in range(6):
            nx = f[k + 2] if k + 2 < 6 else []
            r += [e[2 * k]] + nx[:1] + [e[2 * k + 1]] + nx[1:]
            if k >= 1:
                r.append(c[k - 1])
        r += ["s_nop 0", c[5]]
        return r

    def pwrite(qt):
        return [f"ds_write_b128 {v(APW)}, {v(PP + 8 * qt, 4)} offset:{1536 * qt}",
                f"ds_write_b64 {v(APW2)}, {v(PP + 8 * qt + 4, 2)} offset:{1536 * qt + 1024}"]
    OT = {}
    free = [ACC + 36 + 4 * k for k in range(9)]
    for qt in range(3):
        regs = free[3 * qt:3 * qt + 3] + [stile(a_, qt) for a_ in range(3)]
        for dt in range(6):
            OT[(dt, qt)] = regs[dt]
    pf = [lambda qt: PP + 8 * qt, lambda qt: PP + 8 * qt + 4, lambda qt: PC + 4 * qt]

    def pv(step, qt):
        first = step == 0
        r = [mfma(OT[(dt, qt)], VQ[step][dt], pf[step](qt), 0 if first else None) for dt in range(6)]
        sm = [mfma(LS + 4 * qt, ONES, pf[step](qt), 0 if first else None)]
        return sm + r if step == 2 else r + sm

    def weave(vals, mm, first=3, per=3):
        out, k = [], 0
        for i, m in enumerate(mm):
            n = first if i == 0 else per
            out += vals[k:k + n]
            k += n
            out.append(m)
        return out + vals[k:]
    st.cyc("a7", True)
    vb = v_reads(1) if cfg.vbp == 0 else []
    s0 = softmax(0)
    out = []
    for k, x in enumerate(s0):
        out.append(x)
        if k % 2 == 1 and vb:
            out.append(vb.pop(0))
    emit(a, out + vb)
    emit(a, pwrite(0))
    a(lg(14) if cfg.vbp == 0 else lg(2))
    st.cyc("a8", True)
    emit(a, weave(softmax(1), pv(0, 0), per=cfg.wper))
    emit(a, pwrite(1))
    st.cyc("a9", True)
    emit(a, weave(softmax(2), pv(0, 1), per=cfg.wper))
    emit(a, pwrite(2))
    st.cyc("a10", True)
    a(lg(0))
    a("s_barrier")
    jitter(a, cfg, 2)
    st.cyc("b13")
    a.c("SEG pv")
    prd = [rd64(PP + 8 * qt + 6, APR2, 1536 * qt + 1024) for qt in range(3)]
    prc = [rd128(PC + 4 * qt, APR, 1536 * qt) for qt in range(3)]
    vc = v_reads(2)
    if cfg.vbp in (0, 2):
        sl = spread(prd + prc + vc[:2], -1, 1)
        at(sl, 6, lg(5))
        emit(a, place(pv(0, 2), sl))
        sl = spread(vc[2:], 0, 1)
        at(sl, 13, lg(0))
        emit(a, place(pv(1, 0) + pv(1, 1), sl))
    else:
        emit(a, place(pv(0, 2), spread(prd + v_reads(1), -1, 2)))
        a(lg(0))
        sl = spread(prc + vc[:11], 0, 1)
        at(sl, 13, vc[11], lg(0))
        emit(a, place(pv(1, 0) + pv(1, 1), sl))
    st.cyc("pvB", True)
    OPQ = [160, 164, 168, 172, 176, 180, 212, 216, 220]

    def finish(qt):
        r = [f"v_rcp_f32 {v(MX + 2 * qt)}, {v(LS + 4 * qt)}", "s_nop 0",
             f"v_mov_b32 {v(MX + 2 * qt + 1)}, {v(MX + 2 * qt)}"]
        for ls in range(3):
            d = OPQ[3 * ls + qt]
            for half in range(2):
                t = OT[(2 * ls + half, qt)]
                if cfg.fin == 0 or (cfg.fin == 2 and qt == 2):
                    r.append(f"v_pk_mul_f32 {v(t, 2)}, {v(t, 2)}, {v(MX + 2 * qt, 2)}")
                    r.append(f"v_pk_mul_f32 {v(t + 2, 2)}, {v(t + 2, 2)}, {v(MX + 2 * qt, 2)}")
                else:
                    r += [f"v_mul_f32 {v(t + k)}, {v(MX + 2 * qt)}, {v(t + k)}" for k in range(4)]
            for half in range(2):
                t = OT[(2 * ls + half, qt)]
                r += [cvt(d + 2 * half, t), cvt(d + 2 * half + 1, t + 2)]
            off = (ls * 6 + qt) * 1024
            r.append(f"s_mov_b32 s3, {off}")
            r.append(f"buffer_store_dwordx4 {v(d, 4)}, {v(AO)}, {s(R_O, 4)}, s3 offen {'' if cfg.unsafe in (1, 2) else 'sc1'} {'nt' if cfg.ntx & 1 else ''}")
            if not cfg.odef:
                r.append(f"ds_write_b128 {v(AO)}, {v(d, 4)} offset:{off}")
        return r

    def gaps(f, per):
        out, cur = [], []
        for x in f:
            if x.startswith("s_mov"):
                if cur:
                    out.append(cur)
                cur = [x]
            elif x.startswith(("buffer_", "ds_")):
                out.append(cur + [x])
                cur = []
            else:
                cur.append(x)
                if len(cur) == per:
                    out.append(cur)
                    cur = []
        return out + ([cur] if cur else [])

    def weave2(mm, f, skip, per):
        g = gaps(f, per)
        out = []
        for i, m in enumerate(mm):
            out.append(m)
            if i >= skip and g:
                out += g.pop(0)
        return out + sum(g, [])
    emit(a, pv(2, 0))
    f0, f1, f2 = finish(0), finish(1), finish(2)
    mm = pv(1, 2) + pv(2, 1)
    if cfg.fw == 0:
        emit(a, [mm[0]] + weave(["s_nop 0"] + f0, mm[1:], first=1, per=2))
    else:
        emit(a, weave2(mm, f0, 1, cfg.fw))
    st.cyc("f0", True)
    mm = pv(2, 2)
    if cfg.fw == 0:
        emit(a, [mm[0], mm[1]] + weave(f1, mm[2:], first=0, per=2))
    else:
        emit(a, weave2(mm, f1, 0, cfg.fw))
    st.cyc("f1", True)
    emit(a, f2)
    a.c("SEG end")
    st.cyc("ostore")
    a(lg(0))
    a("s_barrier")

    A4 = ACC
    if cfg.odef:
        for qt in range(3):
            for ls in range(3):
                a(f"ds_write_b128 {v(AO)}, {v(OPQ[3 * ls + qt], 4)} offset:{(ls * 6 + qt) * 1024}")
    for i in range(60):
        a(f"v_mov_b32 {v(A4 + i)}, 0")
    a(f"s_mov_b32 {s(S_K0)}, {(-3 * WOS) & 0xffffffff:#x}")
    a(f"s_mov_b32 {s(S_K1)}, {WOS}")
    a(f"s_mov_b32 s6, {(-5 * OS) & 0xffffffff:#x}")
    a(f"s_mov_b32 s7, {OS}")
    a(f"s_mov_b32 {s(S_SL)}, 1")
    a(f"s_mov_b32 {s(S_SL2)}, 0")
    a(f"s_mov_b32 {s(S_CNT)}, 0")
    a("s_waitcnt vmcnt(0)")
    a(f"s_mov_b64 exec, {15 if cfg.pfl & 1 else 1}")
    a(f"buffer_store_dwordx2 {v(TG, 2)}, {v(ZERO)}, {s(R_F, 4)}, {s(S_F1)} offen {'' if cfg.unsafe in (1, 2) else 'sc1'}")
    a("s_mov_b64 exec, -1")
    jitter(a, cfg, 3)
    st.cyc("flag1")

    def ga(n, tt):
        return FR + 32 * n + 4 * tt

    def gb(n, qt):
        return FR + 32 * n + 20 + 4 * qt

    def p4_reads(n, ks):
        def A(tt):
            return [trread(ga(n, tt) + 2 * hh, AW + tt % 2, 320 * (32 * ks + 16 * hh) + 64 * (tt // 2)) for hh in range(2)]

        def B(qt):
            return [rd128(gb(n, qt), AB, 6144 * ks + 1024 * qt)]
        r = B(0) + A(0) + B(1) + B(2)
        for tt in range(1, 5):
            r += A(tt)
        return r

    def p4_mfmas(n):
        return [mfma(A4 + 4 * (3 * tt + qt), ga(n, tt), gb(n, qt)) for tt in range(5) for qt in range(3)]
    adv4 = [f"v_add_u32 {v(AW + c)}, {s(S_D)}, {v(AW + c)}" for c in range(2)] + [f"v_add_u32 {v(AB)}, {s(S_D2)}, {v(AB)}"]
    a(lg(0))
    a("s_barrier")
    st.cyc("B0")
    emit(a, p4_reads(0, 0))
    a(lg(0))
    a.label("L_p4")
    sl = spread(p4_reads(1, 1), 0, 1)
    sc = [f"s_add_u32 {s(S_SL)}, {s(S_SL)}, 1", f"s_cmp_eq_u32 {s(S_SL)}, 4",
          f"s_cselect_b32 {s(S_D)}, {s(S_K0)}, {s(S_K1)}", f"s_cselect_b32 {s(S_SL)}, 0, {s(S_SL)}",
          f"s_add_u32 {s(S_SL2)}, {s(S_SL2)}, 1", f"s_cmp_eq_u32 {s(S_SL2)}, 6",
          f"s_cselect_b32 {s(S_D2)}, s6, s7", f"s_cselect_b32 {s(S_SL2)}, 0, {s(S_SL2)}"]
    spread(sc, 0, 1, into=sl)
    spread(adv4, 13, 2, into=sl)
    at(sl, 12, f"s_cmp_eq_u32 {s(S_CNT)}, 2")
    emit(a, place(p4_mfmas(0), sl))
    a(lg(0))
    a("s_cbranch_scc0 L_p4bar")
    st.cyc("own")
    a("s_barrier")
    a.label("L_p4bar")
    a("s_barrier")
    sl = spread(p4_reads(0, 0), 0, 1)
    at(sl, 12, f"s_add_u32 {s(S_CNT)}, {s(S_CNT)}, 1")
    at(sl, 13, f"s_cmp_lt_u32 {s(S_CNT)}, 11")
    emit(a, place(p4_mfmas(1), sl))
    a(lg(0))
    a("s_cbranch_scc1 L_p4")
    jitter(a, cfg, 5)
    st.cyc("p4loop")
    emit(a, place(p4_mfmas(0), spread(p4_reads(1, 1), 0, 1)))
    a(lg(0))
    PK = QP

    def tile(tt, qt):
        return A4 + 4 * (3 * tt + qt)
    ep = []
    for pb in range(2):
        for qt in range(3):
            d = PK + 4 * (3 * pb + qt)
            t0, t1 = tile(2 * pb, qt), tile(2 * pb + 1, qt)
            ep.append([cvt(d, t0), cvt(d + 1, t0 + 2), cvt(d + 2, t1), cvt(d + 3, t1 + 2),
                       f"s_mov_b32 s3, {2560 * qt + 1024 * pb}",
                       f"buffer_store_dwordx4 {v(d, 4)}, {v(AP)}, {s(R_P, 4)}, s3 offen sc1 {'nt' if cfg.ntx & 2 else ''}"])
    for qt in range(3):
        d = PK + 24 + 2 * qt
        ep.append([cvt(d, tile(4, qt)), cvt(d + 1, tile(4, qt) + 2), f"s_mov_b32 s3, {2560 * qt}",
                   f"buffer_store_dwordx2 {v(d, 2)}, {v(AP2)}, {s(R_P, 4)}, s3 offen sc1 {'nt' if cfg.ntx & 2 else ''}"])
    flat = sum(ep, [])
    emit(a, place(p4_mfmas(1), spread(flat[:12], 9, 2)))
    emit(a, flat[12:])
    jitter(a, cfg, 4)
    st.cyc("pstore")
    if cfg.ownl:
        assert cfg.b12x and not cfg.dynred
        for pb in range(2):
            for qt in range(3):
                a(f"ds_write_b128 {v(AP)}, {v(PK + 4 * (3 * pb + qt), 4)} offset:{4096 + 2560 * qt + 1024 * pb}")
        for qt in range(3):
            a(f"ds_write_b64 {v(AP2)}, {v(PK + 24 + 2 * qt, 2)} offset:{4096 + 2560 * qt}")
        a(lg(0))
    if cfg.b12x:
        a("s_barrier")
    if not cfg.sent:
        a("s_waitcnt vmcnt(0)")
    elif cfg.sent > 1:
        a(f"s_waitcnt vmcnt({cfg.sent})")
    a(f"s_mov_b64 exec, {15 if cfg.pfl & 2 else 1}")
    a(f"buffer_store_dwordx2 {v(TG, 2)}, {v(FL2)}, {s(R_F, 4)}, {s(S_F2)} offen sc1")
    st.cyc("flag2")
    st.real("real1")
    st.flush("C")
    a.label("L_last")
    a("s_endpgm")


def gen_loader(a, cfg):
    st = Stamps(a, cfg)
    R_X, R_WQ, R_K, R_V, R_WO = 8, 12, 16, 20, 56
    R_OI, R_PI, R_OUT = 12, 16, 20
    S_LW, S_SW, S_SX, S_LDS, S_N, S_KK, S_PK = 50, 51, 52, 53, 54, 55, 49
    S_MW, S_MX, S_LDO = 62, 63, 7
    OW, OX, OK_, OV, OWO, OO = 16, 22, 25, 34, 43, 48
    RRc, UUc = 52, 55
    AT, AF1, AF2, TG, PT = 58, 59, 60, 62, 64
    A0, A1, RT, JK, AT2 = 66, 67, 68, 74, 75
    T0, T1, T2 = 4, 5, 6

    if cfg.lprio:
        a("s_setprio 3")
    if cfg.only and "k0" in st.only:
        a("s_waitcnt lgkmcnt(0)")
        st.cyc("k0")
    a(f"s_sub_u32 {s(S_LW)}, {s(S_WAVE)}, 4")
    for c in range(3):
        a(f"v_add_u32 {v(T0)}, {64 * c}, v0")
        a(f"v_mul_u32_u24 {v(T1)}, 2731, {v(T0)}")
        a(f"v_lshrrev_b32 {v(RRc + c)}, 16, {v(T1)}")
        a(f"v_mul_u32_u24 {v(T1)}, 24, {v(RRc + c)}")
        a(f"v_sub_u32 {v(UUc + c)}, {v(T0)}, {v(T1)}")
    a(f"v_lshrrev_b32 {v(T0)}, 4, v0")
    a(f"v_xor_b32 {v(T0)}, {v(T0)}, v0")
    a(f"v_and_b32 {v(T0)}, 7, {v(T0)}")
    a(f"v_lshrrev_b32 {v(T1)}, 3, v0")
    a(f"v_mul_u32_u24 {v(T1)}, 1280, {v(T1)}")
    a(f"v_lshl_add_u32 {v(T0)}, {v(T0)}, 4, {v(T1)}")
    a(f"s_and_b32 s3, {s(S_LW)}, 1")
    a("s_lshl_b32 s3, s3, 6")
    a(f"s_mul_i32 s4, {s(S_LW)}, 30720")
    a(f"v_xor_b32 {v(T0)}, s3, {v(T0)}")
    a(f"v_add_u32 {v(OX)}, s4, {v(T0)}")
    a(f"v_xor_b32 {v(T0)}, 64, {v(OX)}")
    a(f"v_add_u32 {v(OX + 1)}, 10240, {v(T0)}")
    a(f"v_add_u32 {v(OX + 2)}, 20480, {v(OX)}")
    a(f"s_lshl_b32 s3, {s(S_LW)}, 4")
    for c in range(3):
        a(f"v_and_b32 {v(T0)}, 2, {v(RRc + c)}")
        a(f"v_xor_b32 {v(T0)}, {v(T0)}, {v(UUc + c)}")
        a(f"v_add_u32 {v(T1)}, s3, {v(RRc + c)}")
        a(f"v_mul_u32_u24 {v(T1)}, 12288, {v(T1)}")
        a(f"v_lshl_add_u32 {v(OW + c)}, {v(T0)}, 4, {v(T1)}")
        a(f"v_xor_b32 {v(T0)}, 64, {v(OW + c)}")
        a(f"v_add_u32 {v(OW + 3 + c)}, {8 * 12288}, {v(T0)}")
    a(f"s_mul_i32 {s(S_MW)}, {s(S_LW)}, 6144")
    a(f"s_mul_i32 {s(S_MX)}, {s(S_LW)}, 3072")
    a(f"s_add_u32 {s(S_MX)}, {s(S_MX)}, 24576")
    fb = {8: [0, 2, 4, 6, 8, 0, 2, 4], 9: [0, 5, 0, 5, 0, 5, 0, 5], 10: [0, 3, 5, 8, 0, 3, 5, 8],
          11: [0, 3, 7, 0, 3, 7, 0, 3], 12: [0, 3, 5, 8, 1, 4, 6, 9], 13: [0, 5, 3, 8, 0, 5, 3, 8],
          14: [0, 2, 5, 7, 0, 2, 5, 7], 15: [0, 3, 5, 8, 0, 3, 5, 8], 16: [0, 3, 5, 8, 0, 3, 5, 8]}[cfg.rot]
    word = sum(x << (4 * i) for i, x in enumerate(fb))
    a(f"s_lshl_b32 s3, {s(S_B)}, 2")
    a(f"s_lshr_b32 s3, {word:#x}, s3")
    a("s_and_b32 s3, s3, 15")
    a(f"s_lshl_b32 s4, {s(S_HH)}, 2")
    a("s_lshr_b32 s4, 0x8530, s4")
    a("s_and_b32 s4, s4, 15")
    a("s_add_u32 s3, s3, s4")
    if cfg.rot == 15:
        a(f"s_mov_b32 {s(S_KK)}, s3")
    elif cfg.rot == 16:
        a(f"s_mul_i32 s4, {s(S_G8)}, 3")
        a(f"s_add_u32 {s(S_KK)}, s3, s4")
        mod_small(a, s(S_KK), 10, 2)
    else:
        a(f"s_add_u32 {s(S_KK)}, s3, {s(S_G8)}")
    mod_small(a, s(S_KK), 10, 2)
    a(f"s_mov_b32 {s(S_LDS)}, 0")
    a(f"s_mul_i32 s3, {s(S_B)}, 122880")
    a(f"s_mul_i32 s5, {s(S_H)}, 384")
    a("s_sub_u32 s4, 7864320, s5")
    st.cyc("pre", True) if cfg.only else None
    a("s_waitcnt lgkmcnt(0)")
    st.cyc("karg", True)
    srd(a, R_X, S_X, "s3", 122880)
    srd(a, R_WQ, S_WQ, "s5", "s4")

    def stage_body():
        a(f"s_mul_i32 {s(S_SW)}, {s(S_KK)}, {64 * 12288}")
        a(f"s_lshl_b32 {s(S_SX)}, {s(S_KK)}, 7")
        a(f"s_add_u32 s3, {s(S_LDS)}, {s(S_MW)}")
        a(f"s_add_u32 s4, {s(S_LDS)}, {s(S_MX)}")
        for c in range(3):
            dma(a, OX + c, R_X, s(S_SX), "s4", 1024 * c, "nt" if cfg.ntx & 8 else "")
        for p in range(6):
            dma(a, OW + p, R_WQ, s(S_SW), "s3", 1024 * p, "nt" if cfg.ntkv & 8 else "")
        a(f"s_add_u32 {s(S_KK)}, {s(S_KK)}, 1")
        a(f"s_cmp_eq_u32 {s(S_KK)}, 10")
        a(f"s_cselect_b32 {s(S_KK)}, 0, {s(S_KK)}")
        a(f"s_add_u32 {s(S_LDS)}, {s(S_LDS)}, {SLOT}")
        a(f"s_cmp_eq_u32 {s(S_LDS)}, {3 * SLOT}")
        a(f"s_cselect_b32 {s(S_LDS)}, 0, {s(S_LDS)}")

    def call(lbl):
        a(f"s_call_b64 s[44:45], {lbl}")
    stage_body()
    if cfg.lprio:
        a("s_setprio 0")
    st.cyc("issued")
    a(f"s_lshl_b32 s3, {s(S_B)}, 7")
    a(f"s_add_u32 s3, s3, {OFF_F + FX}")
    a(f"s_add_u32 s4, {s(S_WS)}, s3")
    a(f"s_addc_u32 s5, {s(S_WS + 1)}, 0")
    a(f"s_load_dwordx2 {s(S_TAG, 2)}, s[4:5], 0")
    if cfg.kpos >= 9:
        table = {9: [1, 2, 3, 4, 5, 6, 7, 8], 11: [8, 8, 7, 7, 6, 6, 5, 5], 12: [8, 7, 6, 5, 8, 4, 3, 2],
                 13: [1, 8, 1, 8, 1, 8, 1, 8], 14: [1, 1, 8, 1, 1, 8, 1, 8],
                 20: [1, 8, 1, 1, 8, 1, 1, 8], 21: [1, 8, 8, 1, 8, 8, 1, 8], 22: [1, 8, 4, 1, 8, 4, 1, 8],
                 23: [1, 2, 1, 1, 2, 1, 1, 2], 24: [1, 8, 5, 3, 8, 6, 1, 8], 25: [0, 8, 1, 0, 8, 1, 0, 8],
                 26: [1, 8, 1, 8, 1, 8, 1, 8], 27: [0, 8, 0, 8, 0, 8, 0, 8],
                 15: [1, 2, 3, 4, 5, 6, 7, 1], 16: [1, 1, 2, 2, 3, 3, 4, 4], 17: [1, 1, 1, 1, 2, 2, 2, 2]}[cfg.kpos]
        word = sum(x << (4 * i) for i, x in enumerate(table))
        if cfg.kpos < 20:
            a(f"s_add_u32 s3, {s(S_B)}, {s(S_G8)}")
            a("s_and_b32 s3, s3, 7")
            a("s_lshl_b32 s3, s3, 2")
        else:
            a(f"s_lshl_b32 s3, {s(S_B)}, 2")
        a(f"s_lshr_b32 s3, {word:#x}, s3")
        a(f"s_and_b32 {s(S_PK)}, s3, 15")
    else:
        a(f"s_mov_b32 {s(S_PK)}, {cfg.kpos}")
    a(f"s_lshl_b32 s3, {s(S_B)}, 5")
    a(f"s_add_u32 s3, s3, {s(S_H)}")
    a("s_mul_i32 s3, s3, 36864")
    srd(a, R_K, S_K, "s3", 36864)
    srd(a, R_V, S_V, "s3", 36864)
    srd(a, R_F, S_WS, f"{OFF_F}", 262144)
    a(f"s_mul_i32 s3, {s(S_LW)}, 24")
    a(f"s_and_b32 s4, {s(S_LW)}, 1")
    a("s_lshl_b32 s4, s4, 6")
    for c in range(3):
        a(f"v_lshrrev_b32 {v(T0)}, 1, {v(RRc + c)}")
        a(f"v_add_u32 {v(T1)}, s3, {v(RRc + c)}")
        a(f"v_mul_u32_u24 {v(T1)}, 384, {v(T1)}")
        a(f"v_xor_b32 {v(T2)}, {v(T0)}, {v(UUc + c)}")
        a(f"v_lshl_add_u32 {v(T2)}, {v(T2)}, 4, {v(T1)}")
        a(f"v_xor_b32 {v(OK_ + c)}, s4, {v(T2)}")
        a(f"v_xor_b32 {v(T2)}, 64, {v(OK_ + c)}")
        a(f"v_add_u32 {v(OK_ + 3 + c)}, 3072, {v(T2)}")
        a(f"v_add_u32 {v(OK_ + 6 + c)}, 6144, {v(OK_ + c)}")
        a(f"v_lshlrev_b32 {v(T2)}, 1, {v(T0)}")
        a(f"v_xor_b32 {v(T2)}, {v(T2)}, {v(UUc + c)}")
        a(f"v_lshl_add_u32 {v(OV + c)}, {v(T2)}, 4, {v(T1)}")
        a(f"v_add_u32 {v(OV + 3 + c)}, 3072, {v(OV + c)}")
        a(f"v_add_u32 {v(OV + 6 + c)}, 6144, {v(OV + c)}")
    a(f"s_mul_i32 s3, {s(S_G8)}, 983040")
    a(f"s_mul_i32 s4, {s(S_HH)}, 320")
    a("s_add_u32 s3, s3, s4")
    a("s_sub_u32 s4, 7864320, s3")
    srd(a, R_WO, S_WO, "s3", "s4")
    if cfg.tpos == 1:
        a(f"s_mul_i32 s3, {s(S_G8)}, 983040")
        srd(a, 96, S_WO, "s3", 983040)
    if cfg.tx:
        a("s_lshr_b32 s3, s2, 3")
        a("s_lshl_b32 s3, s3, 2")
        a(f"s_add_u32 s3, s3, {s(S_LW)}")
        a("s_mul_i32 s3, s3, 7680")
        a(f"v_min_u32 {v(T0)}, 59, v0")
        a(f"v_lshl_add_u32 {v(AT)}, {v(T0)}, 7, s3")
    else:
        a(f"s_lshl_b32 s3, {s(S_B)}, 2")
        a(f"s_add_u32 s3, s3, {s(S_LW)}")
        a("s_mul_i32 s3, s3, 24")
        a(f"v_mul_u32_u24 {v(T1)}, 21846, v0")
        a(f"v_lshrrev_b32 {v(T1)}, 16, {v(T1)}")
        a(f"v_mul_u32_u24 {v(T2)}, 3, {v(T1)}")
        a(f"v_sub_u32 {v(T0)}, v0, {v(T2)}")
        a(f"v_add_u32 {v(T1)}, s3, {v(T1)}")
        a(f"v_mul_u32_u24 {v(T1)}, 1280, {v(T1)}")
        a(f"v_lshl_add_u32 {v(AT)}, {v(T0)}, 7, {v(T1)}")
        a(f"v_min_u32 {v(T0)}, 7, v0")
        a(f"v_add_u32 {v(T0)}, 64, {v(T0)}")
        a(f"v_mul_u32_u24 {v(T1)}, 21846, {v(T0)}")
        a(f"v_lshrrev_b32 {v(T1)}, 16, {v(T1)}")
        a(f"v_mul_u32_u24 {v(T2)}, 3, {v(T1)}")
        a(f"v_sub_u32 {v(T0)}, {v(T0)}, {v(T2)}")
        a(f"v_add_u32 {v(T1)}, s3, {v(T1)}")
        a(f"v_mul_u32_u24 {v(T1)}, 1280, {v(T1)}")
        a(f"v_lshl_add_u32 {v(AT2)}, {v(T0)}, 7, {v(T1)}")
    if cfg.lprio == 2:
        a("s_setprio 3")
    stage_body()

    def issue_kv(off, srd_, base, pieces=range(9)):
        a(f"s_mul_i32 s3, {s(S_LW)}, 9216")
        a(f"s_add_u32 s3, s3, {base}")
        for p in pieces:
            dma(a, off + p, srd_, "0", "s3", 1024 * p, "nt" if cfg.ntkv & (1 if srd_ == R_K else 2) else "")
    a("s_waitcnt vmcnt(9)")
    jitter(a, cfg, 6)
    st.cyc("landed0")
    a("s_barrier")
    a(f"s_mov_b32 {s(S_N)}, 0")
    a.label("L_lloop")
    a(f"s_cmp_eq_u32 {s(S_N)}, {s(S_PK)}")
    a("s_cbranch_scc0 L_nok")
    call("L_sub_k")
    a.label("L_nok")
    stage_body()
    a("s_waitcnt vmcnt(9)")
    a("s_barrier")
    a(f"s_add_u32 {s(S_N)}, {s(S_N)}, 1")
    a(f"s_cmp_lt_u32 {s(S_N)}, 8")
    a("s_cbranch_scc1 L_lloop")
    st.cyc("b8")
    if cfg.tpos == 8:
        a(f"s_mul_i32 s3, {s(S_G8)}, 983040")
        srd(a, R_X, S_WO, "s3", 983040)
        a(f"buffer_load_dword {v(JK)}, {v(AT)}, {s(R_X, 4)}, 0 offen")
    if cfg.ksplit:
        issue_kv(OK_, R_K, A_K, range(9 - cfg.ksplit, 9))
        a(f"s_waitcnt vmcnt({cfg.ksplit})")
        a("s_barrier")
        call("L_sub_v")
        a("s_branch L_kvdone")
    a(f"s_cmp_eq_u32 {s(S_PK)}, 8")
    a("s_cbranch_scc0 L_vonly")
    call("L_sub_k")
    a(f"s_waitcnt vmcnt({10 if cfg.tpos == 1 else 9})")
    a("s_barrier")
    call("L_sub_v")
    a("s_branch L_kvdone")
    a.label("L_sub_k")
    issue_kv(OK_, R_K, A_K, range(9 - cfg.ksplit))
    if cfg.tpos == 1:
        a(f"buffer_load_dword {v(JK)}, {v(AT)}, s[96:99], 0 offen")
    a("s_setpc_b64 s[44:45]")
    a.label("L_sub_v")
    issue_kv(OV, R_V, A_V)
    a("s_setpc_b64 s[44:45]")
    a.label("L_sub_wo")
    a(f"s_mul_i32 {s(S_SW)}, {s(S_KK)}, {64 * 1280}")
    a(f"s_add_u32 s3, {s(S_LDS)}, {s(S_MW)}")
    for p in range(5):
        dma(a, OWO + p, R_WO, s(S_SW), "s3", 1024 * p, "nt" if cfg.ntx & 64 else "")
    a(f"s_add_u32 {s(S_KK)}, {s(S_KK)}, 1")
    a(f"s_cmp_eq_u32 {s(S_KK)}, 12")
    a(f"s_cselect_b32 {s(S_KK)}, 0, {s(S_KK)}")
    a(f"s_add_u32 {s(S_LDS)}, {s(S_LDS)}, {WOS}")
    a(f"s_cmp_eq_u32 {s(S_LDS)}, {4 * WOS}")
    a(f"s_cselect_b32 {s(S_LDS)}, 0, {s(S_LDS)}")
    a("s_setpc_b64 s[44:45]")
    a.label("L_sub_o")
    a(f"s_mul_i32 {s(S_SX)}, {s(S_PK)}, {OS}")
    a(f"s_add_u32 m0, {s(S_LDO)}, {s(S_MX)}")
    a(f"s_add_u32 {s(S_PK)}, {s(S_PK)}, 1")
    for c in range(3):
        a(f"buffer_load_dwordx4 {v(OO)}, {s(R_OI, 4)}, {s(S_SX)} offen offset:{1024 * c} {['sc1', '', 'nt'][cfg.unsafe % 9]} {'nt' if cfg.ntx & 16 else ''} lds")
    a(f"s_cmp_eq_u32 {s(S_PK)}, 12")
    a(f"s_cselect_b32 {s(S_PK)}, 0, {s(S_PK)}")
    a(f"s_add_u32 {s(S_LDO)}, {s(S_LDO)}, {OS}")
    a(f"s_cmp_eq_u32 {s(S_LDO)}, {6 * OS}")
    a(f"s_cselect_b32 {s(S_LDO)}, 0, {s(S_LDO)}")
    a("s_setpc_b64 s[44:45]")
    a.label("L_vonly")
    call("L_sub_v")
    a("s_waitcnt vmcnt(9)")
    a("s_barrier")
    a.label("L_kvdone")
    a("s_waitcnt vmcnt(9)")
    jitter(a, cfg, 7)
    st.cyc("Kland")
    a("s_barrier")
    if cfg.tx:
        a(f"s_mul_i32 s3, {s(S_G8)}, 983040")
        srd(a, R_X, S_WO, "s3", 983040)
        touch = f"buffer_load_dword {v(JK)}, {v(AT)}, {s(R_X, 4)}, 0 offen {'nt' if cfg.ntx & 4 else ''}"
    else:
        touch = (f"buffer_load_dword {v(JK)}, {v(AT)}, {s(R_WO, 4)}, 0 offen\n"
                 f"buffer_load_dword {v(JK + 2)}, {v(AT2)}, {s(R_WO, 4)}, 0 offen")
    if cfg.tpos == 10:
        a(touch)
    a(f"s_lshl_b32 s3, {s(S_B)}, 3")
    a(f"s_add_u32 s3, s3, {s(S_G8)}")
    a(f"s_mul_i32 s3, s3, {4 * 36864}")
    srd(a, R_OI, S_WS, "s3", 4 * 36864)
    a(f"s_lshl_b32 s3, {s(S_B)}, 2")
    a(f"s_add_u32 s3, s3, {s(S_HH)}")
    a(f"s_mul_i32 s3, s3, {8 * PSZ}")
    a(f"s_add_u32 s3, s3, {OFF_P}")
    srd(a, R_PI, S_WS, "s3", 8 * PSZ)
    a(f"s_mul_i32 {s(S_MW)}, {s(S_LW)}, 5120")
    a(f"s_add_u32 {s(S_MW)}, {s(S_MW)}, {WO0}")
    a(f"s_mul_i32 {s(S_MX)}, {s(S_LW)}, 3072")
    a(f"s_mul_i32 {s(S_KK)}, {s(S_HH)}, 3")
    a(f"s_add_u32 {s(S_PK)}, {s(S_KK)}, 3")
    a(f"s_cmp_eq_u32 {s(S_PK)}, 12")
    a(f"s_cselect_b32 {s(S_PK)}, 0, {s(S_PK)}")
    a(f"s_mov_b32 {s(S_LDS)}, {WOS}")
    a(f"s_mov_b32 {s(S_LDO)}, {3 * OS}")
    a("s_barrier")
    if cfg.lprio == 2:
        a("s_setprio 0")
    if cfg.tpos == 11:
        a(touch)
    a(f"s_lshl_b32 s3, {s(S_LW)}, 4")
    for c in range(5):
        a(f"v_add_u32 {v(T0)}, {64 * c}, v0")
        a(f"v_mul_u32_u24 {v(T1)}, 3277, {v(T0)}")
        a(f"v_lshrrev_b32 {v(T1)}, 16, {v(T1)}")
        a(f"v_mul_u32_u24 {v(T2)}, 20, {v(T1)}")
        a(f"v_sub_u32 {v(T0)}, {v(T0)}, {v(T2)}")
        a(f"v_lshrrev_b32 {v(T2)}, 1, {v(T1)}")
        a(f"v_and_b32 {v(T2)}, 2, {v(T2)}")
        a(f"v_xor_b32 {v(T0)}, {v(T0)}, {v(T2)}")
        a(f"v_add_u32 {v(T1)}, s3, {v(T1)}")
        a(f"v_mul_u32_u24 {v(T1)}, 1280, {v(T1)}")
        a(f"v_lshl_add_u32 {v(OWO + c)}, {v(T0)}, 4, {v(T1)}")
    a(f"v_lshl_add_u32 {v(OO)}, v0, 4, {s(S_MX)}")
    a(f"s_lshl_b32 s3, {s(S_B)}, 5")
    a(f"s_add_u32 s3, s3, {s(S_H)}")
    if not cfg.pfl & 1:
        a("s_lshr_b32 s3, s3, 2")
    a("s_lshl_b32 s3, s3, 7")
    a(f"v_and_b32 {v(T0)}, 15, v0")
    a(f"v_lshl_add_u32 {v(AF1)}, {v(T0)}, 3, s3")
    a("s_waitcnt lgkmcnt(0)")
    a(f"s_add_u32 {s(S_TAG)}, {s(S_TAG)}, {TAGC[0]:#x}")
    a(f"s_addc_u32 {s(S_TAG + 1)}, {s(S_TAG + 1)}, {TAGC[1]:#x}")
    a(f"v_mov_b32 {v(TG)}, {s(S_TAG)}")
    a(f"v_mov_b32 {v(TG + 1)}, {s(S_TAG + 1)}")
    a(f"v_mov_b32 {v(T0)}, {A_TAG}")
    a(f"ds_write_b64 {v(T0)}, {v(TG, 2)}")
    a(f"s_waitcnt vmcnt({(1 if cfg.tx else 2) if cfg.tpos in (10, 11) else 0}) lgkmcnt(0)")
    jitter(a, cfg, 8)
    st.cyc("Vland")
    if cfg.lprio == 2:
        a("s_setprio 3")
    a("s_barrier")
    if cfg.tpos == 12:
        a(touch)
    a(f"s_mul_i32 s3, {s(S_B)}, 122880")
    a(f"s_mul_i32 s4, {s(S_HH)}, 320")
    a("s_add_u32 s3, s3, s4")
    a("s_sub_u32 s4, 983040, s3")
    srd(a, R_OUT, S_OUT, "s3", "s4")
    assert cfg.w12 <= 2
    for _ in range(cfg.w12):
        call("L_sub_wo")
    a("s_barrier")
    for _ in range(cfg.w13):
        call("L_sub_wo")

    def poll(name, vaddr):
        a(f"s_mov_b32 s3, {SPIN_MAX}")
        a.label(name)
        a(f"buffer_load_dwordx2 {v(PT, 2)}, {v(vaddr)}, {s(R_F, 4)}, 0 offen sc1")
        a("s_sub_u32 s3, s3, 1")
        a("s_cmp_eq_u32 s3, 0")
        a(f"s_cbranch_scc1 {name}_out")
        a("s_waitcnt vmcnt(0)")
        a(f"v_cmp_ne_u64 vcc, {v(PT, 2)}, {v(TG, 2)}")
        a("s_nop 1")
        a(f"s_cbranch_vccnz {name}")
        a.label(name + "_out")
        a("s_waitcnt vmcnt(0)")

    BARS = ["B0", "B1", "B2", "BX"] + [f"B{n}" for n in range(3, 12)]
    own_mask = "s[4:5]"

    def run(path, tokens, state, alts):
        q, nwo, no, bi = state
        q = list(q)
        for k, ch in enumerate(tokens):
            free = -1 if bi < 2 else (bi - 2 if bi <= 4 else bi - 3)
            if ch == "w":
                assert nwo <= max(3, free + 4), (path, k, nwo, free)
                call("L_sub_wo")
                q.append((nwo, 5))
                nwo += 1
            elif ch == "o":
                assert no <= max(5, free + 6), (path, k, no, free)
                call("L_sub_o")
                q.append((no, 3))
                no += 1
            elif ch == "c":
                if cfg.sent:
                    a("s_mov_b32 s3, 4096")
                    for kk in range(8):
                        a(f"buffer_store_dwordx4 {v(CL, 4)}, {v(ACL)}, {s(R_PO, 4)}, {'s3' if kk >= 4 else '0'} offen offset:{1024 * (kk % 4)} sc1")
                    q.append((11, 8))
            elif ch == "p":
                a(f"buffer_load_dwordx2 {v(PT, 2)}, {v(AF1)}, {s(R_F, 4)}, 0 offen sc1")
                q.append((99, 1))
            elif ch in "ab":
                last = max([i for i, (kk, _) in enumerate(q) if kk == 99] + [-1])
                if last >= 0:
                    a(f"s_waitcnt vmcnt({sum(c for _, c in q[last + 1:])})")
                q = q[last + 1:]
                a(f"v_cmp_ne_u64 vcc, {v(PT, 2)}, {v(TG, 2)}")
                a("s_nop 1")
                a(f"s_and_b64 s[4:5], vcc, {s(S_OM, 2)}")
                a(f"s_cbranch_scc0 L_path_{ch}")
                alts[ch] = (q, nwo, no, bi)
            elif ch == "s":
                poll("L_poll1", AF1)
                q = []
            elif ch == "|":
                name = BARS[bi]
                need = {"BX": -1}.get(name, int(name[1:]) if name != "BX" else -1)
                if need >= 0:
                    assert nwo > need and (need < 3 or no > need), (path, name)
                    last = max([i for i, (kk, _) in enumerate(q) if kk <= need] + [-1])
                    cnt = sum(c for _, c in q[last + 1:])
                    if last >= 0:
                        a(f"s_waitcnt vmcnt({cnt})")
                    q = q[last + 1:]
                a("s_barrier")
                bi += 1
        assert bi == len(BARS) and nwo == 12 and no == 12, (path, bi, nwo, no)
    CL, ACL, R_PO = 112, 116, 8
    if cfg.sent:
        a(f"s_lshl_b32 s3, {s(S_B)}, 2")
        a(f"s_add_u32 s3, s3, {s(S_HH)}")
        a("s_lshl_b32 s3, s3, 3")
        a(f"s_add_u32 s3, s3, {s(S_G8)}")
        a(f"s_mul_i32 s3, s3, {PSZ}")
        a(f"s_add_u32 s3, s3, {OFF_P}")
        srd(a, R_PO, S_WS, "s3", PSZ)
        a(f"s_mul_i32 s3, {s(S_LW)}, 7680")
        a(f"v_lshl_add_u32 {v(ACL)}, v0, 4, s3")
        for kk in range(4):
            a(f"v_mov_b32 {v(CL + kk)}, -1")
    S_OM = 4 * 0 + 40
    a(f"s_lshl_b32 s3, {s(S_HH)}, 2")
    a("s_lshl_b32 s3, 0x000f000f, s3")
    a(f"s_not_b32 {s(S_OM)}, s3")
    a(f"s_mov_b32 {s(S_OM + 1)}, {s(S_OM)}")
    a("s_barrier")
    jitter(a, cfg, 10)
    if cfg.tpos == 15:
        a(touch)
    tabs = {
        1: dict(N="wp a|ww|wp|b|ww s ooo|wo|wo|wo|wo|wo|wo|||",
                a="|ww|w ooo||w|wo|wo|wo|wo|wo|wo|w||",
                b="ooo|w|wo|wo|wo|wo|wo|wo|w||"),
        2: dict(N="wp a|ww|wp|b|ww s ooo|wo|wo|wo|wo|wo|wo|||",
                a="|ww|w ooo||w|wwo|wo|wo|wo|wo|wo|||",
                b="ooo|w|wwo|wo|wo|wo|wo|wo|||"),
        3: dict(N="wp a|ww|wp|b|www s ooo|ooo|w|w|w|oo|w|wo||",
                a="|ww|w ooo||ww|wo|wo|wo|wo|wo|wo|||",
                b="ooo|ww|wo|wo|wo|wo|wo|wo|||"),
        4: dict(N="w|ww|wp|b|ww s ooo|wo|wo|wo|wo|wo|woc|||",
                b="ooo|w|wo|wo|wo|wo|wo|wo|wc||"),
        8: dict(N="wp|ww a|wp|b|ww s ooo|wo|wo|wo|wo|wo|wo|||",
                a="ooo|w||w|wo|wo|wo|wo|wo|wo|w||",
                b="ooo|w|wo|wo|wo|wo|wo|wo|w||"),
        9: dict(N="w|wpw a|wp|b|ww s ooo|wo|wo|wo|wo|wo|wo|||",
                a="ooo|w||w|wo|wo|wo|wo|wo|wo|w||",
                b="ooo|w|wo|wo|wo|wo|wo|wo|w||"),
        10: dict(N="w|wwp|a wp|b|ww s ooo|wo|wo|wo|wo|wo|wo|||",
                 a="w ooo||w|wo|wo|wo|wo|wo|wo|w||",
                 b="ooo|w|wo|wo|wo|wo|wo|wo|w||"),
        11: dict(N="w|wwp|a wp|b|ww s ooo|wo|wo|wo|wo|wo|wo|||",
                 a="w oo||wo|wo|wo|wo|wo|wo|wo|w||",
                 b="oo|wo|wo|wo|wo|wo|wo|wo|w||"),
        12: dict(N="w|ww|pw|b|ww s ooo|wo|wo|wo|wo|wo|wo|||",
                 b="ooo|w|wo|wo|wo|wo|wo|wo|w||"),
        13: dict(N="w|ww|pw|b|ww s ooo|wo|wo|wo|wo|wo|wo|||",
                 b="ooo|w|wwo|wo|wo|wo|wo|wo|||"),
        14: dict(N="w|ww|pw|b wp|a w s ooo|wo|wo|wo|wo|wo|wo|||" if False else "w|ww|pw|b|wp a w s ooo|wo|wo|wo|wo|wo|wo|||",
                 a="ooo w|wo|wo|wo|wo|wo|wo|||",
                 b="ooo|w|wo|wo|wo|wo|wo|wo|w||"),
        15: dict(N="w|ww|w|p|w b w s ooo|wo|wo|wo|wo|wo|wo|||",
                 b="ooo w|wo|wo|wo|wo|wo|wo|||"),
        16: dict(N="w|www|p|b|ww s ooo|wo|wo|wo|wo|wo|wo|||",
                 b="ooo|w|wo|wo|wo|wo|wo|wo|w||"),
        17: dict(N="ww|w|pw|b|ww s ooo|wo|wo|wo|wo|wo|wo|||",
                 b="ooo|w|wo|wo|wo|wo|wo|wo|w||"),
        18: dict(N="www||pw|b|ww s ooo|wo|wo|wo|wo|wo|wo|||",
                 b="ooo|w|wo|wo|wo|wo|wo|wo|w||"),
        19: dict(N="ww|pw|w|b|ww s ooo|wo|wo|wo|wo|wo|wo|||",
                 b="ooo|w|wo|wo|wo|wo|wo|wo|w||"),
        20: dict(N="ww|ww|p|b|ww s ooo|wo|wo|wo|wo|wo|wo|||",
                 b="ooo|w|wo|wo|wo|wo|wo|wo|w||"),
        21: dict(N="ww|wp|w|b|ww s ooo|wo|wo|wo|wo|wo|wo|||",
                 b="ooo|w|wo|wo|wo|wo|wo|wo|w||"),
        7: dict(N="w|ww|wp|b|ww s ooo|wo|wo|wo|wo|wo|wo|c||",
                b="ooo|w|wwo|wo|wo|wo|wo|woc|||"),
        5: dict(N="wp a|ww|wp|b|ww s ooo|wo|wo|wo|wo|wo|wo|||",
                a="|ww|w oo||wo|wo|wo|wo|wo|wo|wo|w||",
                b="oo|wo|wo|wo|wo|wo|wo|wo|w||"),
        6: dict(N="wp a|ww|wp|b|ww s ooo|wo|wo|wo|wo|wo|wo|||",
                a="|www ooo|||w|wwo|wo|wo|wo|wo|wo|||",
                b="ooo|w|wwo|wo|wo|wo|wo|wo|||"),
    }[cfg.tab]
    alts = {}
    npre = cfg.w12 + cfg.w13
    if npre == 1:
        tabs = dict(N="w|w|wp|b|ww s ooo|wo|wo|wo|wo|wo|wo|||", b=tabs["b"])
    elif npre == 2:
        tabs = dict(N="w||wp|b|ww s ooo|wo|wo|wo|wo|wo|wo|||", b=tabs["b"])
    elif npre == 3:
        tabs = dict(N="w||p|b|ww s ooo|wo|wo|wo|wo|wo|wo|||", b=tabs["b"])
    run("N", tabs["N"].replace(" ", ""), ([(k, 5) for k in range(npre)], npre, 3, 0), alts)
    a("s_branch L_final")
    for key in sorted(alts):
        a.label(f"L_path_{key}")
        run(key, tabs[key].replace(" ", ""), alts[key], {})
        if key != sorted(alts)[-1]:
            a("s_branch L_final")
    a.label("L_final")
    jitter(a, cfg, 9)
    OFFS = RT
    a(f"s_lshr_b32 s5, {s(S_G8)}, 2")
    if cfg.pfl & 2:
        a(f"s_lshl_b32 s3, {s(S_B)}, 5")
        a(f"s_add_u32 s3, s3, {s(S_H)}")
    else:
        a(f"s_lshl_b32 s3, {s(S_B)}, 2")
        a(f"s_add_u32 s3, s3, {s(S_HH)}")
        a("s_lshl_b32 s3, s3, 1")
        a("s_add_u32 s3, s3, s5")
    a("s_lshl_b32 s3, s3, 7")
    a(f"s_add_u32 s3, s3, {F2}")
    a(f"v_and_b32 {v(T0)}, 15, v0")
    a(f"v_lshl_add_u32 {v(AF2)}, {v(T0)}, 3, s3")
    a(f"s_and_b32 s6, {s(S_G8)}, 3")
    a("s_mul_i32 s6, s6, 3")
    a("s_mul_i32 s5, s5, 7680")
    a(f"s_mul_i32 s4, {s(S_G8)}, {0 if cfg.otr else 12 * 1280}")
    a(f"s_cmp_eq_u32 {s(S_LW)}, 3")
    a("s_cbranch_scc1 L_red3")
    a(f"s_add_u32 s6, s6, {s(S_LW)}")
    a("s_lshr_b32 s3, s6, 2")
    a("s_mul_i32 s3, s3, 2560")
    a("s_add_u32 s5, s5, s3")
    a("s_and_b32 s6, s6, 3")
    a("s_lshl_b32 s6, s6, 8")
    a("s_add_u32 s5, s5, s6")
    a(f"s_mul_i32 s3, {s(S_LW)}, {4 * (320 if cfg.otr else 1280)}")
    a("s_add_u32 s4, s4, s3")
    a("v_lshrrev_b32 v7, 5, v0")
    a("v_bfe_u32 v8, v0, 4, 1")
    a(f"v_mul_u32_u24 v9, 15360, v7")
    a("v_lshl_add_u32 v9, v8, 10, v9")
    a(f"v_lshl_add_u32 v9, {v(T0)}, 4, v9")
    a(f"v_add_u32 {v(OFFS)}, s5, v9")
    a("v_and_b32 v9, 3, v0")
    a(f"v_mul_u32_u24 v9, {320 if cfg.otr else 1280}, v9")
    a("v_mul_u32_u24 v7, 160, v7")
    a("v_lshl_add_u32 v7, v8, 6, v7")
    a("v_bfe_u32 v8, v0, 2, 2")
    a("v_lshl_add_u32 v7, v8, 3, v7")
    a("v_add3_u32 " + f"{v(A0)}, v7, v9, s4")
    a(f"v_add_u32 {v(A1)}, 32, {v(A0)}")
    a("s_branch L_red")
    a.label("L_red3")
    a("v_min_u32 v10, 47, v0")
    a("v_lshrrev_b32 v7, 4, v10")
    a("v_add_u32 v8, s6, v7")
    a("v_lshrrev_b32 v9, 2, v8")
    a("v_mul_u32_u24 v9, 2560, v9")
    a("v_and_b32 v8, 3, v8")
    a("v_lshl_add_u32 v9, v8, 7, v9")
    a("v_bfe_u32 v8, v10, 3, 1")
    a("v_mul_u32_u24 v11, 15360, v8")
    a("v_add_u32 v9, v9, v11")
    a("v_and_b32 v11, 7, v10")
    a("v_lshl_add_u32 v9, v11, 4, v9")
    a("s_add_u32 s5, s5, 2048")
    a(f"v_add_u32 {v(OFFS)}, s5, v9")
    a("v_and_b32 v11, 1, v10")
    a("v_lshl_add_u32 v7, v7, 1, v11")
    a(f"v_mul_u32_u24 v7, {640 if cfg.otr else 2560}, v7")
    a("v_mul_u32_u24 v8, 160, v8")
    a("v_bfe_u32 v11, v10, 1, 2")
    a("v_lshl_add_u32 v8, v11, 3, v8")
    a("s_add_u32 s4, s4, 128")
    a("v_add3_u32 " + f"{v(A0)}, v7, v8, s4")
    a(f"v_add_u32 {v(A1)}, {320 if cfg.otr else 1280}, {v(A0)}")
    a.label("L_red")
    if cfg.otr:
        a(f"s_lshl_b32 s4, {s(S_LW)}, 6")
        a("v_add_u32 v7, s4, v0")
        a("v_min_u32 v7, 239, v7")
        a(f"v_lshlrev_b32 {v(RT + 1)}, 4, v7")
        a("v_mul_u32_u24 v8, 3277, v7")
        a("v_lshrrev_b32 v8, 16, v8")
        a("v_mul_u32_u24 v8, 960, v8")
        a(f"s_mul_i32 s4, {s(S_G8)}, {12 * 1280}")
        a(f"v_add3_u32 {v(RT + 2)}, v8, {v(RT + 1)}, s4")
    D0, AC = 80, 148
    if cfg.b12x:
        a("s_barrier")

    def load_part(g):
        a(f"s_mov_b32 s3, {PSZ * g}")
        a(f"buffer_load_dwordx4 {v(D0 + 4 * g, 4)}, {v(OFFS)}, {s(R_PI, 4)}, s3 offen {['sc1', '', 'nt', 'sc0 sc1', 'sc1 nt'][4 if cfg.ntx & 32 else cfg.pld]}")
    if cfg.ownl:
        a(f"ds_read_b128 {v(D0, 4)}, {v(OFFS)} offset:4096")
        poll("L_poll2", AF2)
        st.cyc("seen2")
        a(f"s_mov_b32 s6, {s(S_G8)}")
        for k in range(1, 8):
            a("s_add_u32 s6, s6, 1")
            a("s_and_b32 s6, s6, 7")
            a(f"s_mul_i32 s3, s6, {PSZ}")
            a(f"buffer_load_dwordx4 {v(D0 + 4 * k, 4)}, {v(OFFS)}, {s(R_PI, 4)}, s3 offen sc1")
        a(lg(0))
    elif not cfg.dynred:
        poll("L_poll2", AF2)
        st.cyc("seen2")
        for g in range(8):
            load_part(g)
    elif cfg.dynred == 1:
        a(f"s_mov_b32 s7, {SPIN_MAX}")
        a("s_mov_b32 s6, 0")
        a.label("L_poll2")
        a(f"buffer_load_dwordx2 {v(PT, 2)}, {v(AF2)}, {s(R_F, 4)}, 0 offen sc1")
        a("s_sub_u32 s7, s7, 1")
        a("s_cmp_eq_u32 s7, 0")
        a("s_cbranch_scc1 L_poll2_out")
        a("s_waitcnt vmcnt(0)")
        a(f"v_cmp_eq_u64 vcc, {v(PT, 2)}, {v(TG, 2)}")
        a("s_nop 1")
        a("s_lshr_b32 s5, vcc_lo, 8")
        a("s_and_b32 s5, s5, vcc_lo")
        a("s_and_b32 s5, s5, 0xff")
        a("s_andn2_b32 s4, s5, s6")
        a("s_cbranch_scc0 L_poll2")
        if cfg.miss:
            a("s_cmp_eq_u32 s5, 0xff")
            a("s_cbranch_scc1 L_go2")
            a("s_bcnt1_i32_b32 s3, s5")
            a(f"s_cmp_gt_u32 s3, {8 - cfg.miss}")
            a("s_cbranch_scc1 L_poll2")
            a("s_bcnt1_i32_b32 s3, s4")
            a(f"s_cmp_lt_u32 s3, {cfg.newc}")
            a("s_cbranch_scc1 L_poll2")
            a.label("L_go2")
        if cfg.thr:
            a("s_bcnt1_i32_b32 s3, s5")
            a("s_cmp_eq_u32 s6, 0")
            a(f"s_cselect_b32 s8, {cfg.thr}, 8")
            a("s_cmp_lt_u32 s3, s8")
            a("s_cbranch_scc1 L_poll2")
        a("s_or_b32 s6, s6, s5")
        for g in range(8):
            a(f"s_bitcmp1_b32 s4, {g}")
            a(f"s_cbranch_scc0 L_r{g}")
            load_part(g)
            a.label(f"L_r{g}")
        a("s_cmp_eq_u32 s6, 0xff")
        a("s_cbranch_scc0 L_poll2")
        a.label("L_poll2_out")
        st.cyc("seen2")
        a("s_waitcnt vmcnt(0)")
    else:
        U0 = 120
        a(f"s_mov_b32 s7, {SPIN_MAX}")
        a("s_mov_b32 s6, 0")
        a("s_mov_b32 s8, 0")
        a("s_mov_b32 s9, 0")
        a("s_branch L_poll2")
        a.label("L_widen")
        for g in range(8):
            a(f"s_bitcmp1_b32 s8, {g}")
            a(f"s_cbranch_scc0 L_u{g}")
            for r in range(4):
                a(f"v_lshlrev_b32 {v(U0 + 8 * g + 2 * r)}, 16, {v(D0 + 4 * g + r)}")
                a(f"v_and_b32 {v(U0 + 8 * g + 2 * r + 1)}, 0xffff0000, {v(D0 + 4 * g + r)}")
            a.label(f"L_u{g}")
        a("s_mov_b32 s8, 0")
        a("s_setpc_b64 s[44:45]")
        a.label("L_poll2")
        a(f"buffer_load_dwordx2 {v(PT, 2)}, {v(AF2)}, {s(R_F, 4)}, 0 offen sc1")
        a("s_cmp_eq_u32 s8, 0")
        a("s_cbranch_scc1 L_nowiden")
        call("L_widen")
        a.label("L_nowiden")
        a("s_sub_u32 s7, s7, 1")
        a("s_cmp_eq_u32 s7, 0")
        a("s_cbranch_scc1 L_poll2_out")
        a("s_waitcnt vmcnt(0)")
        a(f"v_cmp_eq_u64 vcc, {v(PT, 2)}, {v(TG, 2)}")
        a("s_mov_b32 s8, s9")
        a("s_mov_b32 s9, 0")
        a("s_and_b32 s5, vcc_lo, 0xff")
        a("s_andn2_b32 s9, s5, s6")
        a("s_cbranch_scc0 L_poll2")
        a("s_or_b32 s6, s6, s5")
        for g in range(8):
            a(f"s_bitcmp1_b32 s9, {g}")
            a(f"s_cbranch_scc0 L_r{g}")
            load_part(g)
            a.label(f"L_r{g}")
        a("s_cmp_eq_u32 s6, 0xff")
        a("s_cbranch_scc0 L_poll2")
        a.label("L_poll2_out")
        st.cyc("seen2")
        call("L_widen")
        a("s_mov_b32 s8, s9")
        a("s_waitcnt vmcnt(0)")
        call("L_widen")
        for g in range(1, 8):
            for r in range(4):
                a(f"v_pk_add_f32 {v(U0 + 2 * r, 2)}, {v(U0 + 2 * r, 2)}, {v(U0 + 8 * g + 2 * r, 2)}")
        AC = U0
    if cfg.sent:
        assert cfg.dynred
        a("s_mov_b32 s7, 4096")
        a.label("L_chk")
        a(f"v_max3_u32 v4, {v(D0)}, {v(D0 + 1)}, {v(D0 + 2)}")
        a(f"v_max3_u32 v5, {v(D0 + 3)}, {v(D0 + 4)}, {v(D0 + 5)}")
        for kk in range(6, 30, 4):
            a(f"v_max3_u32 v4, v4, {v(D0 + kk)}, {v(D0 + kk + 1)}")
            a(f"v_max3_u32 v5, v5, {v(D0 + kk + 2)}, {v(D0 + kk + 3)}")
        a(f"v_max3_u32 v4, v4, {v(D0 + 30)}, {v(D0 + 31)}")
        a("v_max_u32 v4, v4, v5")
        a("v_cmp_eq_u32 vcc, -1, v4")
        a("s_sub_u32 s7, s7, 1")
        a("s_cselect_b32 s6, 0, 1")
        a("s_and_b32 s4, vcc_lo, -1")
        a("s_or_b32 s4, s4, vcc_hi")
        a("s_cselect_b32 s6, s6, 0")
        a("s_cmp_eq_u32 s6, 0")
        a("s_cbranch_scc1 L_chk_ok")
        for g in range(8):
            load_part(g)
        a("s_waitcnt vmcnt(0)")
        a("s_branch L_chk")
        a.label("L_chk_ok")
        st.cyc("chk")
    for g in range(8 if cfg.dynred < 2 else 0):
        if not cfg.dynred and not (cfg.ownl and g == 0):
            a(f"s_waitcnt vmcnt({7 - g})")
        for r in range(4):
            src = D0 + 4 * g + r
            if g == 0:
                a(f"v_lshlrev_b32 {v(AC + 2 * r)}, 16, {v(src)}")
                a(f"v_and_b32 {v(AC + 2 * r + 1)}, 0xffff0000, {v(src)}")
            else:
                t = 4 + 2 * (r % 2)
                a(f"v_lshlrev_b32 {v(t)}, 16, {v(src)}")
                a(f"v_and_b32 {v(t + 1)}, 0xffff0000, {v(src)}")
                a(f"v_pk_add_f32 {v(AC + 2 * r, 2)}, {v(AC + 2 * r, 2)}, {v(t, 2)}")
    for r in range(4):
        a(cvt(D0 + r, AC + 2 * r))
    fl = ['', 'sc1', 'nt', 'sc0 sc1'][cfg.outfl]
    jitter(a, cfg, 11)
    if cfg.otr:
        a(f"ds_write_b64 {v(A0)}, {v(D0, 2)}")
        a(f"ds_write_b64 {v(A1)}, {v(D0 + 2, 2)}")
        a(lg(0))
        a("s_barrier")
        a(f"ds_read_b128 {v(D0 + 4, 4)}, {v(RT + 1)}")
        a(lg(0))
        a(f"buffer_store_dwordx4 {v(D0 + 4, 4)}, {v(RT + 2)}, {s(R_OUT, 4)}, 0 offen {fl}")
    elif cfg.unsafe == 9:
        a("s_mul_i32 s3, s2, 3840")
        srd(a, 8, S_OUT, "s3", 3840)
        a(f"v_lshlrev_b32 v7, 4, v7")
        a(f"buffer_store_dwordx4 {v(D0, 4)}, v7, s[8:11], 0 offen {fl}")
    else:
        a(f"buffer_store_dwordx2 {v(D0, 2)}, {v(A0)}, {s(R_OUT, 4)}, 0 offen {fl}")
        a(f"buffer_store_dwordx2 {v(D0 + 2, 2)}, {v(A1)}, {s(R_OUT, 4)}, 0 offen {fl}")
    a(f"s_or_b32 s3, {s(S_H)}, {s(S_LW)}")
    a("s_cmp_eq_u32 s3, 0")
    a("s_cbranch_scc0 L_noep")
    a(f"s_lshl_b32 s3, {s(S_B)}, 7")
    a(f"s_add_u32 s3, s3, {FX}")
    a("v_mov_b32 v4, 0")
    a("s_mov_b64 exec, 1")
    a(f"buffer_store_dwordx2 {v(TG, 2)}, v4, {s(R_F, 4)}, s3 offen")
    a.label("L_noep")
    if cfg.diag:
        a("s_waitcnt vmcnt(0)")
    st.cyc("end")
    st.real("real1")
    st.flush("L")


HEADER = """
GQA block (B=8, Sq=Sk=96, D=640, H=32, Dh=192), one launch, one workgroup per (batch b, head h).
Kernarg: x +0, k_cache +8, v_cache +16, wq +24, wo +32, out +40, debug +48, workspace +56.
Workgroup id = (b*4 + h%4)*8 + h/4, so the four heads of a head group and all batches of that group share
an XCD under round-robin placement (speed only; every hand-off below is placement independent).

Waves 4..7 stream operands into LDS with LDS-DMA, waves 0..3 (2 x 2 tiles of 16x16x32 bf16 MFMA) compute:
  1. Q^T = wq_h^T x_b^T          ten 64-deep stages through a ring of three LDS slots
  2. S^T = K Q^T, row max over all 96 keys (exchanged between wave pairs), P = exp2(c (S - max))
  3. O^T = V^T P^T / rowsum      (row sums from an extra MFMA with a ones operand)
  4. O goes to the workspace (write-through stores, then a flag); the workgroup takes the O of the other
     three heads of its group and multiplies the 96 x 768 block by a 768 x 160 slice of wo
  5. the 96 x 160 partial product goes to the workspace in bf16 (write-through, then flags); workgroup
     (b, h) sums rows 12*(h/4).. +11 of the eight head groups' partials in f32 and writes the output.

Workspace: +0 O tiles (256 x 36864 B), +16 MiB partial tiles (256 x 30720 B), +32 MiB flags and epoch words.
A flag is valid when it equals this launch's tag = (epoch word of the batch) + constant; the epoch word is
read before any flag of the workgroup is written and is set to the tag once the whole batch has read it,
so flags left by an earlier launch never match.
"""


def generate(cfg):
    a = Asm()
    for ln in HEADER.strip("\n").split("\n"):
        a.lines.append(("; " + ln).rstrip())
    a.lines.append("; @launch grid=(256,1,1) block=(512,1,1) lds=163840")
    a('.amdgcn_target "amdgcn-amd-amdhsa--gfx950"')
    a(".text")
    a(kernel_header(KN))
    a("s_cmp_ge_u32 s2, 256")
    a("s_cbranch_scc1 L_end")
    a("s_load_dwordx16 s[32:47], s[0:1], 0")
    if cfg.diag:
        a(f"s_memrealtime {s(S_T, 2)}")
        a(f"s_memtime {s(S_T + 2, 2)}")
    a("v_lshrrev_b32 v1, 6, v0")
    a("v_and_b32 v0, 63, v0")
    a(f"v_readfirstlane_b32 {s(S_WAVE)}, v1")
    a(f"s_and_b32 {s(S_G8)}, s2, 7")
    a("s_lshr_b32 s4, s2, 3")
    a(f"s_lshr_b32 {s(S_B)}, s4, 2")
    a(f"s_and_b32 {s(S_HH)}, s4, 3")
    a(f"s_lshl_b32 s3, {s(S_G8)}, 2")
    a(f"s_add_u32 {s(S_H)}, s3, {s(S_HH)}")
    a(f"s_cmp_ge_u32 {s(S_WAVE)}, 4")
    a("s_cbranch_scc1 L_loader")
    if cfg.ipf:
        a("s_getpc_b64 s[62:63]")
        a.label("L_pc")
        a(f"s_sub_u32 s62, s62, L_pc-{KN}")
        a("s_subb_u32 s63, s63, 0")
        per = -(-28 // (1 << cfg.ishare))
        a("s_lshr_b32 s3, s2, 3")
        a(f"s_and_b32 s3, s3, {(1 << cfg.ishare) - 1}")
        a("s_lshl_b32 s3, s3, 2")
        a(f"s_add_u32 s3, s3, {s(S_WAVE)}")
        a(f"s_mul_i32 s3, s3, {per}")
        a(f"v_min_u32 v7, {per - 1}, v0")
        a("v_add_u32 v7, s3, v7")
        a("v_lshlrev_b32 v7, 7, v7")
        a(f"v_min_u32 v7, L_last-{KN}, v7")
        if cfg.ipf & 1:
            a("global_load_dword v14, v7, s[62:63]")
    a("s_branch L_compute")
    a.label("L_loader")
    gen_loader(a, cfg)
    a.label("L_end")
    a("s_endpgm")
    a.label("L_compute")
    gen_compute(a, cfg)
    a('.section .rodata,"a"')
    a(".p2align 6")
    a(kernel_desc(KN))
    return a.text()


if __name__ == "__main__":
    cfg = Cfg()
    out = sys.argv[1]
    for opt in sys.argv[2:]:
        k, val = opt.split("=")
        assert hasattr(cfg, k), k
        setattr(cfg, k, val if k == "only" else int(val))
    t = generate(cfg)
    pr = hazard.check(t) + hazard.check_counters(t)
    for p in pr:
        print(f"HAZARD line {p[0]} -> {p[1]}: need {p[2]} have {p[3]}\n    {p[4]}\n    {p[5]}")
    open(out, "w").write(t)
    print(out, "hazards:", len(pr), "lines:", t.count("\n"))
```

```python
import struct
import sys

from asmlib import Asm, v, s, kernel_header, kernel_desc
import hazard

KN = "standalone__gqa_block_cached__near_ridge_kernel"
OFF_O = 0
OFF_P = 16 << 20
OFF_F = 32 << 20
F1, F2, FX = 0, 65536, 131072
OFF_T = 64 << 20
SLOT = 36864
A_K = 3 * SLOT
A_V = 1 * SLOT
A_Q = 2 * SLOT
A_P = 2 * SLOT
A_M = 163840 - 768
A_TAG = A_M - 8
WO0, WOS = 81920, 20480
OS = 12288
PSZ = 30720
CEXP = 0.07216878364870322 * 1.4426950408889634
TAGC = (0x9E3779B9, 0x7F4A7C15)
SPIN_MAX = 1 << 21


def f32bits(x):
    return struct.unpack("<I", struct.pack("<f", x))[0]


class Cfg:
    diag = 0
    only = ""
    rot = 10
    kpos = 9
    dynred = 0
    outfl = 0
    ipf = 1
    tx = 1
    tab = 12
    unsafe = 0
    peel = 3
    ownl = 1
    ntx = 0
    miss = 0
    newc = 2
    ishare = 2
    thr = 0
    b12x = 1
    ksplit = 0
    tlb = 0
    jit = 0
    pfl = 2
    otr = 1
    ntkv = 3
    lprio = 1
    sent = 0
    smx = 2
    vbp = 2
    fin = 2
    qv = 6
    sv = 1
    wper = 5
    odef = 1
    fw = 2
    dot2 = 0
    tpos = 10
    w12 = 0
    w13 = 0
    pst = 0
    pld = 0


S_X, S_K, S_V, S_WQ, S_WO, S_OUT, S_DBG, S_WS = 32, 34, 36, 38, 40, 42, 44, 46
S_B, S_H, S_WAVE, S_G8, S_HH = 28, 29, 30, 31, 48
S_TAG = 60
R_F = 24
S_T = 64


class Stamps:
    def __init__(self, a, cfg):
        self.a, self.on, self.n = a, cfg.diag, 2
        self.fine = cfg.diag > 1
        self.names = ["real0", "cyc0"]
        self.k = 0
        self.only = cfg.only.split(",") if cfg.only else None

    def real(self, name):
        if self.on:
            self.a(f"s_memrealtime {s(S_T + 2 * self.n, 2)}")
            self.names.append(name)
            self.n += 1

    def cyc(self, name, fine=False):
        if self.only and name not in self.only:
            return
        if not self.only and len(name) <= 3 and name[0] in "afB" and name[1:].isdigit() and name != "B0":
            return
        if self.on and (not fine or self.fine or self.only):
            self.a(f"{'s_memrealtime' if self.on > 2 else 's_memtime'} {s(S_T + 2 * self.n, 2)}")
            self.names.append(name)
            self.n += 1

    def alt(self, name, path, fine=False):
        if path == "N":
            return self.cyc(name, fine)
        if not self.on or (self.only and name not in self.only) or (fine and not self.only):
            return
        self.a(f"{'s_memrealtime' if self.on > 2 else 's_memtime'} {s(S_T + 2 * (self.n + self.k), 2)}")
        self.k += 1

    def flush(self, role, vt=4):
        if not self.on:
            return
        a = self.a
        assert self.n <= 19, self.n
        a("s_waitcnt lgkmcnt(0) vmcnt(0)")
        a(f"; STAMPS {role} " + " ".join(self.names))
        a("s_lshl_b32 s3, s2, 3")
        a(f"s_add_u32 s3, s3, {s(S_WAVE)}")
        a("s_lshl_b32 s3, s3, 8")
        a(f"s_add_u32 s3, s3, {OFF_T}")
        a(f"s_add_u32 s4, {s(S_WS)}, s3")
        a(f"s_addc_u32 s5, {s(S_WS + 1)}, 0")
        a("s_mov_b64 exec, 1")
        a(f"v_mov_b32 {v(vt + 2)}, 0")
        for i in range(self.n):
            a(f"v_mov_b32 {v(vt)}, {s(S_T + 2 * i)}")
            a(f"v_mov_b32 {v(vt + 1)}, {s(S_T + 2 * i + 1)}")
            a(f"global_store_dwordx2 {v(vt + 2)}, {v(vt, 2)}, s[4:5] offset:{8 * i}")
            a("s_nop 1")
        a("s_waitcnt vmcnt(0)")


def srd(a, d, base, off_sgpr, size):
    a(f"s_add_u32 {s(d)}, {s(base)}, {off_sgpr}")
    a(f"s_addc_u32 {s(d + 1)}, {s(base + 1)}, 0")
    a(f"s_mov_b32 {s(d + 2)}, {size}")
    a(f"s_mov_b32 {s(d + 3)}, 0x20000")


def dma(a, voff, srd_, soff, base, imm, fl=""):
    a(f"s_add_u32 m0, {base}, {imm}")
    a("s_nop 0")
    a(f"buffer_load_dwordx4 {v(voff)}, {s(srd_, 4)}, {soff} offen {fl} lds")


def mfma(d, a_, b_, c=None):
    cs = v(d, 4) if c is None else str(c)
    return f"v_mfma_f32_16x16x32_bf16 {v(d, 4)}, {v(a_, 4)}, {v(b_, 4)}, {cs}"


def trread(d, addr, off):
    assert 0 <= off < 65536
    return f"ds_read_b64_tr_b16 {v(d, 2)}, {v(addr)} offset:{off}"


def rd128(d, addr, off):
    assert 0 <= off < 65536
    return f"ds_read_b128 {v(d, 4)}, {v(addr)} offset:{off}"


def rd64(d, addr, off):
    assert 0 <= off < 65536
    return f"ds_read_b64 {v(d, 2)}, {v(addr)} offset:{off}"


def cvt(d, t):
    return f"v_cvt_pk_bf16_f32 {v(d)}, {v(t)}, {v(t + 1)}"


def emit(a, lst):
    for x in lst:
        a(x)


def place(main, slots):
    out = list(slots.get(-1, []))
    for i, m in enumerate(main):
        out.append(m)
        out.extend(slots.get(i, []))
    for k in sorted(slots):
        if k >= len(main):
            out.extend(slots[k])
    return out


def spread(fill, start, per=1, step=1, into=None):
    d = into if into is not None else {}
    i, k = start, 0
    while k < len(fill):
        d.setdefault(i, []).extend(fill[k:k + per])
        k += per
        i += step
    return d


def at(d, i, *x):
    d.setdefault(i, []).extend(x)


def lg(n):
    return f"s_waitcnt lgkmcnt({n})"


def jitter(a, cfg, k):
    if not cfg.jit:
        return
    lbl = a.uid("L_jit")
    a(f"s_lshl_b32 s100, s2, 3")
    a(f"s_add_u32 s100, s100, {s(S_WAVE)}") if cfg.jit & 1 else None
    a(f"s_mul_i32 s100, s100, {0x9E3779B1 & 0x7fffffff | 1}")
    a(f"s_add_u32 s100, s100, {(k * 0x632BE5AB + cfg.jit * 0x1234567) & 0x7fffffff}")
    a("s_mul_i32 s100, s100, 0x2545F491")
    a("s_lshr_b32 s101, s100, 29")
    a("s_cmp_lg_u32 s101, 0")
    a(f"s_cbranch_scc1 {lbl}")
    a("s_lshr_b32 s100, s100, 8")
    a("s_and_b32 s100, s100, 31")
    a.label(lbl + "b")
    a("s_sleep 8")
    a("s_sub_u32 s100, s100, 1")
    a("s_cmp_gt_i32 s100, 0")
    a(f"s_cbranch_scc1 {lbl}b")
    a.label(lbl)


def mod_small(a, reg, m, times):
    for _ in range(times):
        a(f"s_sub_u32 s4, {reg}, {m}")
        a(f"s_cmp_ge_u32 {reg}, {m}")
        a(f"s_cselect_b32 {reg}, s4, {reg}")


def tile_addrs(a, dst, first, f, lanepart, tmp, extra=None):
    for c in range(4):
        a(f"s_add_u32 s4, {first}, {c}")
        a("s_and_b32 s5, s4, 3")
        a("s_lshr_b32 s4, s4, 2")
        a("s_lshl_b32 s4, s4, 7")
        a(f"v_xor_b32 {v(tmp)}, s5, {v(f)}")
        a(f"v_lshl_add_u32 {v(tmp)}, {v(tmp)}, 5, {v(lanepart)}")
        a(f"v_add_u32 {v(dst + c)}, s4, {v(tmp)}")


def gen_compute(a, cfg):
    st = Stamps(a, cfg)
    R_O, R_P = 8, 12
    ACC, FR, QP, LS, ONES = 16, 88, 160, 196, 208
    AX, AY, AZ, AVo, AVp = 212, 216, 218, 230, 234
    AQW, AQR, AMW, AMR, APW, APR, APW2, APR2, AO, AOW = range(238, 248)
    AW, AB, AP, AP2, FL2, TG, ZERO = 248, 250, 251, 252, 253, 254, 15
    VM, VG, VF, T0, T1, T2 = 1, 2, 3, 4, 5, 6
    MX = 8
    S_I, S_J, S_C, S_D, S_CNT, S_SL, S_D2, S_SL2 = 50, 51, 52, 54, 55, 56, 57, 18
    S_K0, S_K1, S_F1, S_F2 = 58, 59, 16, 17

    a(f"s_lshr_b32 {s(S_I)}, {s(S_WAVE)}, 1")
    a(f"s_and_b32 {s(S_J)}, {s(S_WAVE)}, 1")
    a(f"s_mov_b32 {s(S_C)}, {f32bits(CEXP):#x}")
    a(f"s_mov_b32 {s(S_C + 1)}, {f32bits(CEXP):#x}")
    a(f"v_and_b32 {v(VM)}, 15, v0")
    a(f"v_lshrrev_b32 {v(VG)}, 4, v0")
    a(f"v_lshrrev_b32 {v(T0)}, 2, {v(VM)}")
    a(f"v_lshl_add_u32 {v(T1)}, {v(VG)}, 3, {v(T0)}")
    a(f"v_mul_u32_u24 {v(T1)}, 384, {v(T1)}")
    a(f"v_and_b32 {v(T2)}, 3, {v(VM)}")
    a(f"v_lshlrev_b32 v11, 3, {v(T2)}")
    a(f"v_add_u32 {v(T1)}, v11, {v(T1)}")
    a(f"v_and_b32 {v(T2)}, 1, {v(VG)}")
    a(f"v_lshrrev_b32 {v(VF)}, 3, {v(VM)}")
    a(f"v_lshl_or_b32 {v(VF)}, {v(T2)}, 1, {v(VF)}")
    a(f"s_mul_i32 s3, {s(S_I)}, 6")
    tile_addrs(a, AX, "s3", VF, T1, T2)
    a(f"s_mul_i32 s4, {s(S_J)}, 48")
    a(f"v_add_u32 {v(T1)}, s4, {v(VM)}")
    a(f"v_lshlrev_b32 {v(T1)}, 7, {v(T1)}")
    a(f"v_add_u32 {v(T1)}, 24576, {v(T1)}")
    a(f"v_lshrrev_b32 {v(VF)}, 1, {v(VM)}")
    for ks in range(2):
        a(f"v_add_u32 {v(T2)}, {4 * ks}, {v(VG)}")
        a(f"v_xor_b32 {v(T2)}, {v(T2)}, {v(VF)}")
        a(f"v_lshl_add_u32 {v(AY + ks)}, {v(T2)}, 4, {v(T1)}")
    for i in range(72):
        a(f"v_mov_b32 {v(ACC + i)}, 0")
    a(f"s_mul_i32 s4, {s(S_I)}, 48")
    a(f"v_add_u32 {v(T1)}, s4, {v(VM)}")
    a(f"v_mul_u32_u24 {v(T1)}, 384, {v(T1)}")
    a(f"v_and_b32 {v(T2)}, 1, {v(VG)}")
    a(f"v_lshl_add_u32 {v(T1)}, {v(T2)}, 3, {v(T1)}")
    a(f"v_add_u32 {v(T1)}, {A_K}, {v(T1)}")
    a(f"v_lshrrev_b32 {v(T0)}, 1, {v(VG)}")
    a(f"v_xor_b32 {v(T0)}, {v(T0)}, {v(VF)}")
    a(f"v_lshl_add_u32 {v(T1)}, {v(T0)}, 4, {v(T1)}")
    a(f"s_mul_i32 s7, {s(S_I)}, 3")
    for ls in range(6):
        a(f"s_add_u32 s6, s7, {ls}")
        mod_small(a, "s6", 6, 1)
        a("s_and_b32 s5, s6, 1")
        a("s_lshl_b32 s5, s5, 6")
        a("s_lshr_b32 s6, s6, 1")
        a("s_lshl_b32 s6, s6, 7")
        a(f"v_add_u32 {v(T2)}, s6, {v(T1)}")
        a(f"v_xor_b32 {v(AZ + 2 * ls)}, s5, {v(T2)}")
        a(f"v_xor_b32 {v(AZ + 2 * ls + 1)}, 32, {v(AZ + 2 * ls)}")
    a(f"v_lshrrev_b32 {v(T0)}, 2, {v(VM)}")
    a(f"v_lshl_add_u32 {v(T0)}, {v(VG)}, 2, {v(T0)}")
    a(f"v_bfe_u32 {v(VF)}, {v(T0)}, 1, 2")
    a(f"v_mul_u32_u24 {v(T1)}, 384, {v(T0)}")
    a(f"v_add_u32 {v(T1)}, v11, {v(T1)}")
    a(f"s_mul_i32 s6, {s(S_I)}, 18432")
    a(f"s_add_u32 s7, s6, {A_V}")
    a(f"v_add_u32 {v(T1)}, s7, {v(T1)}")
    a(f"s_mul_i32 s3, {s(S_I)}, 6")
    tile_addrs(a, AVo, "s3", VF, T1, T2)
    a("s_lshl_b32 s6, s6, 1")
    a("s_sub_u32 s6, 18432, s6")
    for c in range(4):
        a(f"v_add_u32 {v(AVp + c)}, s6, {v(AVo + c)}")
    a(f"v_mul_u32_u24 {v(T1)}, 320, {v(T0)}")
    a(f"v_add_u32 {v(T1)}, v11, {v(T1)}")
    a(f"v_add_u32 {v(T1)}, {WO0 + WOS}, {v(T1)}")
    a(f"v_and_b32 {v(T0)}, 1, {v(VG)}")
    a(f"s_mul_i32 s3, {s(S_I)}, 5")
    for par in range(2):
        a(f"s_add_u32 s4, s3, {par}")
        a(f"v_xor_b32 {v(T2)}, s4, {v(T0)}")
        a(f"v_lshl_add_u32 {v(AW + par)}, {v(T2)}, 5, {v(T1)}")
    a(f"s_xor_b32 s5, {s(S_WAVE)}, 2")
    a(f"v_lshlrev_b32 {v(T1)}, 4, v0")
    a(f"v_lshlrev_b32 {v(T0)}, 3, v0")
    a(f"v_lshlrev_b32 {v(T2)}, 2, {v(VM)}")
    for wv, (q_, p_, p2, m_) in ((s(S_WAVE), (AQW, APW, APW2, AMW)), ("s5", (AQR, APR, APR2, AMR))):
        a(f"s_mul_i32 s3, {wv}, 9216")
        a(f"s_add_u32 s3, s3, {A_Q}")
        a(f"v_add_u32 {v(q_)}, s3, {v(T1)}")
        a(f"s_mul_i32 s3, {wv}, 4608")
        a(f"s_add_u32 s3, s3, {A_P}")
        a(f"v_add_u32 {v(p_)}, s3, {v(T1)}")
        a(f"v_add_u32 {v(p2)}, s3, {v(T0)}")
        a(f"s_mul_i32 s3, {wv}, 192")
        a(f"s_add_u32 s3, s3, {A_M}")
        a(f"v_add_u32 {v(m_)}, s3, {v(T2)}")
    a(f"s_mul_i32 s3, {s(S_I)}, 18")
    a(f"s_mul_i32 s4, {s(S_J)}, 3")
    a("s_add_u32 s3, s3, s4")
    a("s_lshl_b32 s3, s3, 10")
    a(f"v_add_u32 {v(AO)}, s3, {v(T1)}")
    a(f"s_mul_i32 s3, {s(S_J)}, 3072")
    a(f"v_add_u32 {v(AB)}, s3, {v(T1)}")
    a(f"v_lshrrev_b32 v12, 2, {v(VM)}")
    a(f"v_lshl_add_u32 v12, v12, 2, {v(VG)}")
    a(f"v_and_b32 v13, 3, {v(VM)}")
    a("v_lshl_add_u32 v12, v12, 2, v13")
    a(f"s_mul_i32 s3, {s(S_WAVE)}, 7680")
    a(f"v_lshl_add_u32 {v(AP)}, v12, 4, s3")
    a("s_add_u32 s3, s3, 2048")
    a(f"v_lshl_add_u32 {v(AP2)}, v12, 3, s3")
    a(f"v_mov_b32 {v(AOW)}, {A_TAG}")
    for i in range(4):
        a(f"v_mov_b32 {v(ONES + i)}, 0x3f803f80")
    a(f"s_lshl_b32 s3, {s(S_B)}, 5")
    a(f"s_add_u32 s3, s3, {s(S_H)}")
    a(f"s_lshl_b32 s4, {s(S_HH)}, 2")
    a(f"s_add_u32 s4, s4, {s(S_WAVE)}")
    a("s_lshl_b32 s4, s4, 3")
    a("s_andn2_b32 s5, s3, 3")
    a(f"s_lshl_b32 s5, s5, {7 if cfg.pfl & 1 else 5}")
    a(f"s_add_u32 {s(S_F1)}, s4, s5")
    a(f"s_lshl_b32 s6, {s(S_I)}, 3")
    a(f"s_add_u32 s6, s6, {s(S_G8)}")
    a("s_lshl_b32 s6, s6, 3")
    if cfg.pfl & 2:
        a(f"s_lshl_b32 s5, {s(S_B)}, 5")
        a(f"s_lshl_b32 s4, {s(S_J)}, 4")
        a("s_add_u32 s5, s5, s4")
        a(f"s_add_u32 s5, s5, {s(S_HH)}")
    else:
        a(f"s_lshl_b32 s5, {s(S_B)}, 2")
        a(f"s_add_u32 s5, s5, {s(S_HH)}")
        a("s_lshl_b32 s5, s5, 1")
        a(f"s_add_u32 s5, s5, {s(S_J)}")
    a("s_lshl_b32 s5, s5, 7")
    a("s_add_u32 s6, s6, s5")
    a(f"s_add_u32 {s(S_F2)}, s6, {F2}")
    a(f"v_lshlrev_b32 {v(ZERO)}, 7, v0")
    a(f"v_lshlrev_b32 {v(FL2)}, 9, v0")
    a(f"s_lshl_b32 s4, {s(S_B)}, 2")
    a(f"s_add_u32 s4, s4, {s(S_HH)}")
    a("s_lshl_b32 s4, s4, 3")
    a(f"s_add_u32 s4, s4, {s(S_G8)}")
    a(f"s_mul_i32 s4, s4, {PSZ}")
    a(f"s_add_u32 s4, s4, {OFF_P}")
    a("s_mul_i32 s3, s3, 36864")
    a("s_waitcnt lgkmcnt(0)")
    srd(a, R_O, S_WS, "s3", 36864)
    srd(a, R_P, S_WS, "s4", PSZ)
    srd(a, R_F, S_WS, f"{OFF_F}", 262144)
    if cfg.tlb:
        a("s_mov_b64 exec, 1")
        a(f"buffer_load_dword v14, {v(AO)}, {s(R_O, 4)}, 0 offen sc1")
        a(f"buffer_load_dword v14, {v(AP)}, {s(R_P, 4)}, 0 offen sc1")
        a("s_mov_b32 s3, 200000")
        a(f"buffer_load_dword v14, {v(AP)}, {s(R_F, 4)}, s3 offen sc1")
        if cfg.tlb > 1:
            a(f"s_mul_i32 s3, {s(S_B)}, 122880")
            srd(a, 20, S_OUT, "s3", 122880)
            a(f"buffer_load_dword v14, {v(AP)}, s[20:23], 0 offen sc1")
            a(f"s_lshl_b32 s3, {s(S_B)}, 5")
            a(f"s_add_u32 s3, s3, {s(S_H)}")
            a("s_mul_i32 s3, s3, 36864")
            srd(a, 20, S_V, "s3", 36864)
            a(f"buffer_load_dword v14, {v(AP)}, s[20:23], 0 offen sc1")
            srd(a, 20, S_K, "s3", 36864)
            a(f"buffer_load_dword v14, {v(AP)}, s[20:23], 0 offen sc1")
            a(f"s_mul_i32 s3, {s(S_G8)}, 983040")
            srd(a, 20, S_WO, "s3", 983040)
            a(f"buffer_load_dword v14, {v(AP)}, s[20:23], 0 offen sc1")
        a("s_mov_b64 exec, -1")

    def fa(n, dt):
        return FR + 36 * n + 4 * dt

    def fb(n, qt):
        return FR + 36 * n + 24 + 4 * qt

    def p1_reads(n, ks):
        def A(dt):
            return [trread(fa(n, dt) + 2 * hh, AX + dt % 4, 384 * (32 * ks + 4 * hh) + 128 * (dt // 4)) for hh in range(2)]

        def B(qt):
            return [rd128(fb(n, qt), AY + ks, 2048 * qt)]
        r = B(0) + A(0) + B(1) + B(2)
        for dt in range(1, 6):
            r += A(dt)
        return r

    def qtile(dt, qt):
        return ACC + 4 * (3 * dt + qt)

    def p1_mfmas(n):
        return [mfma(qtile(dt, qt), fa(n, dt), fb(n, qt)) for dt in range(6) for qt in range(3)]

    adv = [f"v_add_u32 {v(AX + c)}, {s(S_D)}, {v(AX + c)}" for c in range(4)] + \
          [f"v_add_u32 {v(AY + c)}, {s(S_D)}, {v(AY + c)}" for c in range(2)]
    a(f"s_mov_b32 {s(S_SL)}, 0")
    a(f"s_mov_b32 {s(S_CNT)}, 0")
    a(f"s_mov_b32 {s(S_K0)}, {(-2 * SLOT) & 0xffffffff:#x}")
    a(f"s_mov_b32 {s(S_K1)}, {SLOT}")
    st.cyc("setup")
    a("s_barrier")
    st.cyc("b0")
    emit(a, p1_reads(0, 0))
    a(lg(0))
    a.label("L_p1")
    sl = spread(p1_reads(1, 1), 0, 1)
    at(sl, 0, f"s_add_u32 {s(S_SL)}, {s(S_SL)}, 1")
    at(sl, 1, f"s_cmp_eq_u32 {s(S_SL)}, 3")
    at(sl, 2, f"s_cselect_b32 {s(S_D)}, {s(S_K0)}, {s(S_K1)}")
    at(sl, 3, f"s_cselect_b32 {s(S_SL)}, 0, {s(S_SL)}")
    spread(adv, 15, 2, into=sl)
    emit(a, place(p1_mfmas(0), sl))
    a(lg(0))
    a("s_barrier")
    sl = spread(p1_reads(0, 0), 0, 1)
    at(sl, 15, f"s_add_u32 {s(S_CNT)}, {s(S_CNT)}, 1")
    at(sl, 16, f"s_cmp_lt_u32 {s(S_CNT)}, {8 if cfg.peel & 1 else 9}")
    emit(a, place(p1_mfmas(1), sl))
    a(lg(0))
    a("s_cbranch_scc1 L_p1")
    if cfg.peel & 1:
        sl = spread(p1_reads(1, 1), 0, 1)
        spread([x.replace(s(S_D), s(S_K0)) for x in adv], 15, 2, into=sl)
        emit(a, place(p1_mfmas(0), sl))
        a(lg(0))
        m1_ = p1_mfmas(1)
        emit(a, m1_[:12])
        a("s_barrier")
        emit(a, place(m1_[12:], spread(p1_reads(0, 0), -1, 2)))
        a(lg(0))
    emit(a, place(p1_mfmas(0), spread(p1_reads(1, 1), 0, 1)))
    if cfg.ipf & 2:
        a("global_load_dword v14, v7, s[62:63]")
    a(lg(0))
    a("s_barrier")
    jitter(a, cfg, 1)
    st.cyc("b10")
    a.c("SEG q")

    def kf(buf, a_):
        return FR + 12 * buf + 4 * a_

    def k_reads(ls, buf):
        return [rd64(kf(buf, a_) + 2 * hh, AZ + 2 * ls + hh, 6144 * a_) for a_ in range(3) for hh in range(2)]

    def qpack(ls):
        r = []
        for qt in range(3):
            for dt in (2 * ls, 2 * ls + 1):
                d = QP + 4 * (3 * ls + qt) + 2 * (dt % 2)
                r += [cvt(d, qtile(dt, qt)), cvt(d + 1, qtile(dt, qt) + 2)]
        return r

    def qwrite(f):
        return f"ds_write_b128 {v(AQW)}, {v(QP + 4 * f, 4)} offset:{1024 * f}"

    def stile(a_, qt):
        return ACC + 4 * (3 * a_ + qt)

    def s_mfmas(qbase, ls3, buf, first=False, qmajor=False):
        idx = [(a_, qt) for qt in range(3) for a_ in range(3)] if qmajor else [(a_, qt) for a_ in range(3) for qt in range(3)]
        return [mfma(stile(a_, qt), kf(buf, a_), qbase + 4 * (3 * ls3 + qt), 0 if first else None) for a_, qt in idx]

    q0, q1, q2 = qpack(0), qpack(1), qpack(2)
    if cfg.qv == 0:
        sl = spread(k_reads(0, 0) + k_reads(1, 1) + k_reads(2, 2), 0, 2, into={})
        spread(q0, 9, 2, into=sl)
        at(sl, 11, qwrite(0))
        at(sl, 14, qwrite(1))
        spread(q1[:4], 15, 2, into=sl)
        at(sl, 17, qwrite(2))
        emit(a, place(p1_mfmas(1), sl))
        emit(a, q1[4:8] + [qwrite(3)] + q1[8:])
        a(lg(4))
        sl = {}
        at(sl, 0, qwrite(4))
        spread(q2, 1, 2, into=sl)
        at(sl, 3, qwrite(5))
        at(sl, 7, qwrite(6))
        at(sl, 10, qwrite(7))
        at(sl, 13, qwrite(8))
        spread(k_reads(3, 0), 14, 2, into=sl)
        emit(a, place(s_mfmas(QP, 0, 0, True) + s_mfmas(QP, 1, 1), sl))
    else:
        order = [(dt, qt) for ls in range(3) for qt in range(3) for dt in (2 * ls, 2 * ls + 1)]
        mm = [mfma(qtile(dt, qt), fa(1, dt), fb(1, qt)) for dt, qt in order]
        mm += s_mfmas(QP, 0, 0, True) + s_mfmas(QP, 1, 1)
        packs = q0 + q1 + q2
        sl = {}
        if cfg.qv == 1:
            spread(k_reads(0, 0)[:5], 0, 1, into=sl)
            for f in range(9):
                g0 = 5 + 2 * f + (f >= 6) * 2
                spread(packs[4 * f:4 * f + 4], g0, 2, into=sl)
            wr = [7, 10, 13, 16, 19, 22, 25, 28, 31]
            for f in range(9):
                at(sl, wr[f], qwrite(f))
            at(sl, 8, k_reads(0, 0)[5])
            for k, g_ in enumerate([9, 11, 12, 14, 15, 17]):
                at(sl, g_, k_reads(1, 1)[k])
            at(sl, 17, lg(7))
            at(sl, 26, lg(3))
            spread(k_reads(2, 2), 27, 1, into=sl)
            spread(k_reads(3, 0), 29, 1, into=sl)
        elif cfg.qv == 2:
            spread(k_reads(0, 0) + k_reads(1, 1)[:4], 0, 2, into=sl)
            for f in range(9):
                g0 = 5 + 2 * f + (f >= 6) * 2
                spread(packs[4 * f:4 * f + 4], g0, 2, into=sl)
            wr = [7, 10, 13, 16, 19, 22, 25, 28, 31]
            for f in range(9):
                at(sl, wr[f], qwrite(f))
            at(sl, 8, k_reads(1, 1)[4])
            at(sl, 9, k_reads(1, 1)[5])
            at(sl, 17, lg(3))
            spread(k_reads(2, 2), 26, 1, into=sl)
            spread(k_reads(3, 0), 29, 1, into=sl)
        elif cfg.qv in (3, 4):
            kr = k_reads(0, 0) + k_reads(1, 1) + k_reads(2, 2)
            spread(kr[:5], 0, 1, into=sl)
            rest = kr[5:]
            for f in range(9):
                g0 = 5 + 3 * f
                c4 = packs[4 * f:4 * f + 4]
                if cfg.qv == 3:
                    at(sl, g0, rest.pop(0), c4[0], c4[1])
                    at(sl, g0 + 1, c4[2], c4[3])
                else:
                    at(sl, g0, rest.pop(0), c4[0])
                    at(sl, g0 + 1, c4[1], c4[2], c4[3])
                at(sl, g0 + 2, qwrite(f))
            spread(rest, 32, 1, into=sl)
            sl[17].append(lg(8))
            sl[26].append(lg(2))
        elif cfg.qv in (5, 6, 7):
            kr = k_reads(0, 0) + k_reads(1, 1) + k_reads(2, 2)
            spread(kr[:4], 0, 1, into=sl)
            rest = kr[4:]
            start = 4 if cfg.qv == 7 else 5
            for f in range(9):
                g0 = start + 3 * f
                c4 = packs[4 * f:4 * f + 4]
                at(sl, g0, *(rest[:1]), c4[0], c4[1])
                at(sl, g0 + 1, *(rest[1:2]), c4[2], c4[3])
                rest = rest[2:]
                if cfg.qv == 6:
                    d = QP + 4 * f
                    at(sl, g0 + 2, f"ds_write_b64 {v(AQW)}, {v(d, 2)} offset:{1024 * f}",
                       f"ds_write_b64 {v(AQW)}, {v(d + 2, 2)} offset:{1024 * f + 8}")
                else:
                    at(sl, g0 + 2, qwrite(f))
            sl[17].append(lg(4))
            sl[26].append(lg(2))
        emit(a, place(mm, sl))
    st.cyc("a3", True)
    a(lg(0))
    a("s_barrier")
    st.cyc("b11")
    a.c("SEG s")
    QR = FR + 36
    rds = [rd128(QR + 4 * f, AQR, 1024 * f) for f in range(9)]
    if cfg.sv == 0:
        sl = spread(rds[:6], -1, 1)
        spread(k_reads(4, 1), 5, 2, into=sl)
        at(sl, 8, lg(9))
        emit(a, place(s_mfmas(QP, 2, 2), sl))
        st.cyc("a4", True)
        sl = spread(rds[6:], 0, 1)
        spread(k_reads(5, 2), 3, 1, into=sl)
        at(sl, 8, lg(9))
        emit(a, place(s_mfmas(QR, 0, 0), sl))
        emit(a, s_mfmas(QR, 1, 1))
        a(lg(0))
    else:
        sl = spread(rds[:3], -1, 1)
        spread(k_reads(3, 0), 2, 2, into=sl)
        spread(rds[3:6], 5, 1, into=sl)
        at(sl, 8, lg(3))
        spread(k_reads(4, 1), 8, 2, into=sl)
        spread(rds[6:], 11, 1, into=sl)
        spread(k_reads(5, 2), 14, 2, into=sl)
        at(sl, 17, lg(9))
        emit(a, place(s_mfmas(QP, 2, 2) + s_mfmas(QR, 0, 0), sl))

    def xs(qt):
        return [stile(a_, qt) + r for a_ in range(3) for r in range(4)]

    def maxchain(qt):
        x = xs(qt)
        r = [f"v_max3_f32 {v(MX + qt)}, {v(x[0])}, {v(x[1])}, {v(x[2])}"]
        for k in range(3, 11, 2):
            r.append(f"v_max3_f32 {v(MX + qt)}, {v(MX + qt)}, {v(x[k])}, {v(x[k + 1])}")
        r.append(f"v_max_f32 {v(MX + qt)}, {v(MX + qt)}, {v(x[11])}")
        return r
    m0, m1, m2 = maxchain(0), maxchain(1), maxchain(2)
    if cfg.sv == 0:
        emit(a, s_mfmas(QR, 2, 2, qmajor=True))
        st.cyc("sdone", True)
        a("s_nop 0")
        emit(a, m0 + m1 + m2)
    else:
        s4, s5 = s_mfmas(QR, 1, 1, qmajor=True), s_mfmas(QR, 2, 2, qmajor=True)
        mm = sum([s4[3 * qt:3 * qt + 3] + s5[3 * qt:3 * qt + 3] for qt in range(3)], [])
        sl = {}
        at(sl, 2, lg(0))
        spread(m0, 11, 2, into=sl)
        spread(m1[:2], 17, 2, into=sl)
        emit(a, place(mm, sl))
        st.cyc("sdone", True)
        emit(a, m1[2:] + ["s_nop 1"] + m2)
    for op in ("v_permlane16_swap_b32", "v_permlane32_swap_b32"):
        for qt in range(3):
            a(f"v_mov_b32 {v(MX + 3 + qt)}, {v(MX + qt)}")
        for qt in range(3):
            a(f"{op} {v(MX + 3 + qt)}, {v(MX + qt)}")
        for qt in range(3):
            a(f"v_max_f32 {v(MX + qt)}, {v(MX + qt)}, {v(MX + 3 + qt)}")
    for qt in range(3):
        a(f"ds_write_b32 {v(AMW)}, {v(MX + qt)} offset:{64 * qt}")
    st.cyc("a6", True)
    a(lg(0))
    a("s_barrier")
    st.cyc("b12")
    a.c("SEG sm")

    PP, PC = FR, FR + 24
    VQ = [[QP + 4 * dt for dt in range(6)], [FR + 36 + 4 * dt for dt in range(6)], [148, 152, 156, 184, 188, 192]]

    def v_reads(step):
        r = []
        for dt in range(6):
            for hh in range(2):
                if step == 0:
                    ad, tile = AVo, hh
                elif step == 1:
                    ad, tile = (AVo, 2) if hh == 0 else (AVp, 2)
                else:
                    ad, tile = AVp, hh
                r.append(trread(VQ[step][dt] + 2 * hh, ad + dt % 4, 6144 * tile + 128 * (dt // 4)))
        return r
    NM = 2
    for qt in range(3):
        a(f"ds_read_b32 {v(MX + 3 + qt)}, {v(AMR)} offset:{64 * qt}")
    emit(a, v_reads(0))
    if cfg.vbp == 2:
        emit(a, v_reads(1))
    a((lg(15) if cfg.vbp == 2 else lg(12)) if not st.on else lg(0))
    a(f"ds_read_b64 {v(TG, 2)}, {v(AOW)}")
    for qt in range(3):
        a(f"v_max_f32 {v(MX + qt)}, {v(MX + qt)}, {v(MX + 3 + qt)}")
    for qt in range(3):
        a(f"v_mul_f32 {v(NM + 2 * qt)}, {s(S_C)}, {v(MX + qt)}")
    for qt in range(3):
        a(f"v_mov_b32 {v(NM + 2 * qt + 1)}, {v(NM + 2 * qt)}")

    def softmax(qt):
        x = xs(qt)
        e = [f"v_exp_f32 {v(y)}, {v(y)}" for y in x]
        c = [cvt(PP + 8 * qt + k, x[2 * k]) for k in range(6)]
        if cfg.smx == 0 or (cfg.smx == 2 and qt == 0):
            f = [[f"v_pk_fma_f32 {v(x[2 * k], 2)}, {v(x[2 * k], 2)}, {s(S_C, 2)}, {v(NM + 2 * qt, 2)} neg_lo:[0,0,1] neg_hi:[0,0,1]"] for k in range(6)]
        else:
            f = [[f"v_fma_f32 {v(y)}, {v(y)}, {s(S_C)}, -{v(NM + 2 * qt)}" for y in x[2 * k:2 * k + 2]] for k in range(6)]
        r = f[0] + f[1]
        for k in range(6):
            nx = f[k + 2] if k + 2 < 6 else []
            r += [e[2 * k]] + nx[:1] + [e[2 * k + 1]] + nx[1:]
            if k >= 1:
                r.append(c[k - 1])
        r += ["s_nop 0", c[5]]
        return r

    def pwrite(qt):
        return [f"ds_write_b128 {v(APW)}, {v(PP + 8 * qt, 4)} offset:{1536 * qt}",
                f"ds_write_b64 {v(APW2)}, {v(PP + 8 * qt + 4, 2)} offset:{1536 * qt + 1024}"]
    OT = {}
    free = [ACC + 36 + 4 * k for k in range(9)]
    for qt in range(3):
        regs = free[3 * qt:3 * qt + 3] + [stile(a_, qt) for a_ in range(3)]
        for dt in range(6):
            OT[(dt, qt)] = regs[dt]
    pf = [lambda qt: PP + 8 * qt, lambda qt: PP + 8 * qt + 4, lambda qt: PC + 4 * qt]

    def pv(step, qt):
        first = step == 0
        r = [mfma(OT[(dt, qt)], VQ[step][dt], pf[step](qt), 0 if first else None) for dt in range(6)]
        sm = [mfma(LS + 4 * qt, ONES, pf[step](qt), 0 if first else None)]
        return sm + r if step == 2 else r + sm

    def weave(vals, mm, first=3, per=3):
        out, k = [], 0
        for i, m in enumerate(mm):
            n = first if i == 0 else per
            out += vals[k:k + n]
            k += n
            out.append(m)
        return out + vals[k:]
    st.cyc("a7", True)
    vb = v_reads(1) if cfg.vbp == 0 else []
    s0 = softmax(0)
    out = []
    for k, x in enumerate(s0):
        out.append(x)
        if k % 2 == 1 and vb:
            out.append(vb.pop(0))
    emit(a, out + vb)
    emit(a, pwrite(0))
    a(lg(14) if cfg.vbp == 0 else lg(2))
    st.cyc("a8", True)
    emit(a, weave(softmax(1), pv(0, 0), per=cfg.wper))
    emit(a, pwrite(1))
    st.cyc("a9", True)
    emit(a, weave(softmax(2), pv(0, 1), per=cfg.wper))
    emit(a, pwrite(2))
    st.cyc("a10", True)
    a(lg(0))
    a("s_barrier")
    jitter(a, cfg, 2)
    st.cyc("b13")
    a.c("SEG pv")
    prd = [rd64(PP + 8 * qt + 6, APR2, 1536 * qt + 1024) for qt in range(3)]
    prc = [rd128(PC + 4 * qt, APR, 1536 * qt) for qt in range(3)]
    vc = v_reads(2)
    if cfg.vbp in (0, 2):
        sl = spread(prd + prc + vc[:2], -1, 1)
        at(sl, 6, lg(5))
        emit(a, place(pv(0, 2), sl))
        sl = spread(vc[2:], 0, 1)
        at(sl, 13, lg(0))
        emit(a, place(pv(1, 0) + pv(1, 1), sl))
    else:
        emit(a, place(pv(0, 2), spread(prd + v_reads(1), -1, 2)))
        a(lg(0))
        sl = spread(prc + vc[:11], 0, 1)
        at(sl, 13, vc[11], lg(0))
        emit(a, place(pv(1, 0) + pv(1, 1), sl))
    st.cyc("pvB", True)
    OPQ = [160, 164, 168, 172, 176, 180, 212, 216, 220]

    def finish(qt):
        r = [f"v_rcp_f32 {v(MX + 2 * qt)}, {v(LS + 4 * qt)}", "s_nop 0",
             f"v_mov_b32 {v(MX + 2 * qt + 1)}, {v(MX + 2 * qt)}"]
        for ls in range(3):
            d = OPQ[3 * ls + qt]
            for half in range(2):
                t = OT[(2 * ls + half, qt)]
                if cfg.fin == 0 or (cfg.fin == 2 and qt == 2):
                    r.append(f"v_pk_mul_f32 {v(t, 2)}, {v(t, 2)}, {v(MX + 2 * qt, 2)}")
                    r.append(f"v_pk_mul_f32 {v(t + 2, 2)}, {v(t + 2, 2)}, {v(MX + 2 * qt, 2)}")
                else:
                    r += [f"v_mul_f32 {v(t + k)}, {v(MX + 2 * qt)}, {v(t + k)}" for k in range(4)]
            for half in range(2):
                t = OT[(2 * ls + half, qt)]
                r += [cvt(d + 2 * half, t), cvt(d + 2 * half + 1, t + 2)]
            off = (ls * 6 + qt) * 1024
            r.append(f"s_mov_b32 s3, {off}")
            r.append(f"buffer_store_dwordx4 {v(d, 4)}, {v(AO)}, {s(R_O, 4)}, s3 offen {'' if cfg.unsafe in (1, 2) else 'sc1'} {'nt' if cfg.ntx & 1 else ''}")
            if not cfg.odef:
                r.append(f"ds_write_b128 {v(AO)}, {v(d, 4)} offset:{off}")
        return r

    def gaps(f, per):
        out, cur = [], []
        for x in f:
            if x.startswith("s_mov"):
                if cur:
                    out.append(cur)
                cur = [x]
            elif x.startswith(("buffer_", "ds_")):
                out.append(cur + [x])
                cur = []
            else:
                cur.append(x)
                if len(cur) == per:
                    out.append(cur)
                    cur = []
        return out + ([cur] if cur else [])

    def weave2(mm, f, skip, per):
        g = gaps(f, per)
        out = []
        for i, m in enumerate(mm):
            out.append(m)
            if i >= skip and g:
                out += g.pop(0)
        return out + sum(g, [])
    emit(a, pv(2, 0))
    f0, f1, f2 = finish(0), finish(1), finish(2)
    mm = pv(1, 2) + pv(2, 1)
    if cfg.fw == 0:
        emit(a, [mm[0]] + weave(["s_nop 0"] + f0, mm[1:], first=1, per=2))
    else:
        emit(a, weave2(mm, f0, 1, cfg.fw))
    st.cyc("f0", True)
    mm = pv(2, 2)
    if cfg.fw == 0:
        emit(a, [mm[0], mm[1]] + weave(f1, mm[2:], first=0, per=2))
    else:
        emit(a, weave2(mm, f1, 0, cfg.fw))
    st.cyc("f1", True)
    emit(a, f2)
    a.c("SEG end")
    st.cyc("ostore")
    a(lg(0))
    a("s_barrier")

    A4 = ACC
    if cfg.odef:
        for qt in range(3):
            for ls in range(3):
                a(f"ds_write_b128 {v(AO)}, {v(OPQ[3 * ls + qt], 4)} offset:{(ls * 6 + qt) * 1024}")
    for i in range(60):
        a(f"v_mov_b32 {v(A4 + i)}, 0")
    a(f"s_mov_b32 {s(S_K0)}, {(-3 * WOS) & 0xffffffff:#x}")
    a(f"s_mov_b32 {s(S_K1)}, {WOS}")
    a(f"s_mov_b32 s6, {(-5 * OS) & 0xffffffff:#x}")
    a(f"s_mov_b32 s7, {OS}")
    a(f"s_mov_b32 {s(S_SL)}, 1")
    a(f"s_mov_b32 {s(S_SL2)}, 0")
    a(f"s_mov_b32 {s(S_CNT)}, 0")
    a("s_waitcnt vmcnt(0)")
    a(f"s_mov_b64 exec, {15 if cfg.pfl & 1 else 1}")
    a(f"buffer_store_dwordx2 {v(TG, 2)}, {v(ZERO)}, {s(R_F, 4)}, {s(S_F1)} offen {'' if cfg.unsafe in (1, 2) else 'sc1'}")
    a("s_mov_b64 exec, -1")
    jitter(a, cfg, 3)
    st.cyc("flag1")

    def ga(n, tt):
        return FR + 32 * n + 4 * tt

    def gb(n, qt):
        return FR + 32 * n + 20 + 4 * qt

    def p4_reads(n, ks):
        def A(tt):
            return [trread(ga(n, tt) + 2 * hh, AW + tt % 2, 320 * (32 * ks + 16 * hh) + 64 * (tt // 2)) for hh in range(2)]

        def B(qt):
            return [rd128(gb(n, qt), AB, 6144 * ks + 1024 * qt)]
        r = B(0) + A(0) + B(1) + B(2)
        for tt in range(1, 5):
            r += A(tt)
        return r

    def p4_mfmas(n):
        return [mfma(A4 + 4 * (3 * tt + qt), ga(n, tt), gb(n, qt)) for tt in range(5) for qt in range(3)]
    adv4 = [f"v_add_u32 {v(AW + c)}, {s(S_D)}, {v(AW + c)}" for c in range(2)] + [f"v_add_u32 {v(AB)}, {s(S_D2)}, {v(AB)}"]
    a(lg(0))
    a("s_barrier")
    st.cyc("B0")
    emit(a, p4_reads(0, 0))
    a(lg(0))
    a.label("L_p4")
    sl = spread(p4_reads(1, 1), 0, 1)
    sc = [f"s_add_u32 {s(S_SL)}, {s(S_SL)}, 1", f"s_cmp_eq_u32 {s(S_SL)}, 4",
          f"s_cselect_b32 {s(S_D)}, {s(S_K0)}, {s(S_K1)}", f"s_cselect_b32 {s(S_SL)}, 0, {s(S_SL)}",
          f"s_add_u32 {s(S_SL2)}, {s(S_SL2)}, 1", f"s_cmp_eq_u32 {s(S_SL2)}, 6",
          f"s_cselect_b32 {s(S_D2)}, s6, s7", f"s_cselect_b32 {s(S_SL2)}, 0, {s(S_SL2)}"]
    spread(sc, 0, 1, into=sl)
    spread(adv4, 13, 2, into=sl)
    at(sl, 12, f"s_cmp_eq_u32 {s(S_CNT)}, 2")
    emit(a, place(p4_mfmas(0), sl))
    a(lg(0))
    a("s_cbranch_scc0 L_p4bar")
    st.cyc("own")
    a("s_barrier")
    if cfg.peel & 2:
        m1_ = p4_mfmas(1)
        emit(a, m1_[:10])
        a("s_barrier")
        emit(a, place(m1_[10:], spread(p4_reads(0, 0), -1, 2)))
        a(f"s_add_u32 {s(S_CNT)}, {s(S_CNT)}, 1")
        a(lg(0))
        a("s_branch L_p4")
    a.label("L_p4bar")
    a("s_barrier")
    sl = spread(p4_reads(0, 0), 0, 1)
    at(sl, 12, f"s_add_u32 {s(S_CNT)}, {s(S_CNT)}, 1")
    at(sl, 13, f"s_cmp_lt_u32 {s(S_CNT)}, 11")
    emit(a, place(p4_mfmas(1), sl))
    a(lg(0))
    a("s_cbranch_scc1 L_p4")
    jitter(a, cfg, 5)
    st.cyc("p4loop")
    emit(a, place(p4_mfmas(0), spread(p4_reads(1, 1), 0, 1)))
    a(lg(0))
    PK = QP

    def tile(tt, qt):
        return A4 + 4 * (3 * tt + qt)
    ep = []
    for pb in range(2):
        for qt in range(3):
            d = PK + 4 * (3 * pb + qt)
            t0, t1 = tile(2 * pb, qt), tile(2 * pb + 1, qt)
            ep.append([cvt(d, t0), cvt(d + 1, t0 + 2), cvt(d + 2, t1), cvt(d + 3, t1 + 2),
                       f"s_mov_b32 s3, {2560 * qt + 1024 * pb}",
                       f"buffer_store_dwordx4 {v(d, 4)}, {v(AP)}, {s(R_P, 4)}, s3 offen sc1 {'nt' if cfg.ntx & 2 else ''}"])
    for qt in range(3):
        d = PK + 24 + 2 * qt
        ep.append([cvt(d, tile(4, qt)), cvt(d + 1, tile(4, qt) + 2), f"s_mov_b32 s3, {2560 * qt}",
                   f"buffer_store_dwordx2 {v(d, 2)}, {v(AP2)}, {s(R_P, 4)}, s3 offen sc1 {'nt' if cfg.ntx & 2 else ''}"])
    flat = sum(ep, [])
    emit(a, place(p4_mfmas(1), spread(flat[:12], 9, 2)))
    emit(a, flat[12:])
    jitter(a, cfg, 4)
    st.cyc("pstore")
    if cfg.ownl:
        assert cfg.b12x and not cfg.dynred
        for pb in range(2):
            for qt in range(3):
                a(f"ds_write_b128 {v(AP)}, {v(PK + 4 * (3 * pb + qt), 4)} offset:{4096 + 2560 * qt + 1024 * pb}")
        for qt in range(3):
            a(f"ds_write_b64 {v(AP2)}, {v(PK + 24 + 2 * qt, 2)} offset:{4096 + 2560 * qt}")
        a(lg(0))
    if cfg.b12x:
        a("s_barrier")
    if not cfg.sent:
        a("s_waitcnt vmcnt(0)")
    elif cfg.sent > 1:
        a(f"s_waitcnt vmcnt({cfg.sent})")
    a(f"s_mov_b64 exec, {15 if cfg.pfl & 2 else 1}")
    a(f"buffer_store_dwordx2 {v(TG, 2)}, {v(FL2)}, {s(R_F, 4)}, {s(S_F2)} offen sc1")
    st.cyc("flag2")
    st.real("real1")
    st.flush("C")
    a.label("L_last")
    a("s_endpgm")


def gen_loader(a, cfg):
    st = Stamps(a, cfg)
    R_X, R_WQ, R_K, R_V, R_WO = 8, 12, 16, 20, 56
    R_OI, R_PI, R_OUT = 12, 16, 20
    S_LW, S_SW, S_SX, S_LDS, S_N, S_KK, S_PK = 50, 51, 52, 53, 54, 55, 49
    S_MW, S_MX, S_LDO = 62, 63, 7
    OW, OX, OK_, OV, OWO, OO = 16, 22, 25, 34, 43, 48
    RRc, UUc = 52, 55
    AT, AF1, AF2, TG, PT = 58, 59, 60, 62, 64
    A0, A1, RT, JK, AT2 = 66, 67, 68, 74, 75
    T0, T1, T2 = 4, 5, 6

    if cfg.lprio:
        a("s_setprio 3")
    if cfg.only and "k0" in st.only:
        a("s_waitcnt lgkmcnt(0)")
        st.cyc("k0")
    a(f"s_sub_u32 {s(S_LW)}, {s(S_WAVE)}, 4")
    for c in range(3):
        a(f"v_add_u32 {v(T0)}, {64 * c}, v0")
        a(f"v_mul_u32_u24 {v(T1)}, 2731, {v(T0)}")
        a(f"v_lshrrev_b32 {v(RRc + c)}, 16, {v(T1)}")
        a(f"v_mul_u32_u24 {v(T1)}, 24, {v(RRc + c)}")
        a(f"v_sub_u32 {v(UUc + c)}, {v(T0)}, {v(T1)}")
    a(f"v_lshrrev_b32 {v(T0)}, 4, v0")
    a(f"v_xor_b32 {v(T0)}, {v(T0)}, v0")
    a(f"v_and_b32 {v(T0)}, 7, {v(T0)}")
    a(f"v_lshrrev_b32 {v(T1)}, 3, v0")
    a(f"v_mul_u32_u24 {v(T1)}, 1280, {v(T1)}")
    a(f"v_lshl_add_u32 {v(T0)}, {v(T0)}, 4, {v(T1)}")
    a(f"s_and_b32 s3, {s(S_LW)}, 1")
    a("s_lshl_b32 s3, s3, 6")
    a(f"s_mul_i32 s4, {s(S_LW)}, 30720")
    a(f"v_xor_b32 {v(T0)}, s3, {v(T0)}")
    a(f"v_add_u32 {v(OX)}, s4, {v(T0)}")
    a(f"v_xor_b32 {v(T0)}, 64, {v(OX)}")
    a(f"v_add_u32 {v(OX + 1)}, 10240, {v(T0)}")
    a(f"v_add_u32 {v(OX + 2)}, 20480, {v(OX)}")
    a(f"s_lshl_b32 s3, {s(S_LW)}, 4")
    for c in range(3):
        a(f"v_and_b32 {v(T0)}, 2, {v(RRc + c)}")
        a(f"v_xor_b32 {v(T0)}, {v(T0)}, {v(UUc + c)}")
        a(f"v_add_u32 {v(T1)}, s3, {v(RRc + c)}")
        a(f"v_mul_u32_u24 {v(T1)}, 12288, {v(T1)}")
        a(f"v_lshl_add_u32 {v(OW + c)}, {v(T0)}, 4, {v(T1)}")
        a(f"v_xor_b32 {v(T0)}, 64, {v(OW + c)}")
        a(f"v_add_u32 {v(OW + 3 + c)}, {8 * 12288}, {v(T0)}")
    a(f"s_mul_i32 {s(S_MW)}, {s(S_LW)}, 6144")
    a(f"s_mul_i32 {s(S_MX)}, {s(S_LW)}, 3072")
    a(f"s_add_u32 {s(S_MX)}, {s(S_MX)}, 24576")
    fb = {8: [0, 2, 4, 6, 8, 0, 2, 4], 9: [0, 5, 0, 5, 0, 5, 0, 5], 10: [0, 3, 5, 8, 0, 3, 5, 8],
          11: [0, 3, 7, 0, 3, 7, 0, 3], 12: [0, 3, 5, 8, 1, 4, 6, 9], 13: [0, 5, 3, 8, 0, 5, 3, 8],
          14: [0, 2, 5, 7, 0, 2, 5, 7], 15: [0, 3, 5, 8, 0, 3, 5, 8], 16: [0, 3, 5, 8, 0, 3, 5, 8]}[cfg.rot]
    word = sum(x << (4 * i) for i, x in enumerate(fb))
    a(f"s_lshl_b32 s3, {s(S_B)}, 2")
    a(f"s_lshr_b32 s3, {word:#x}, s3")
    a("s_and_b32 s3, s3, 15")
    a(f"s_lshl_b32 s4, {s(S_HH)}, 2")
    a("s_lshr_b32 s4, 0x8530, s4")
    a("s_and_b32 s4, s4, 15")
    a("s_add_u32 s3, s3, s4")
    if cfg.rot == 15:
        a(f"s_mov_b32 {s(S_KK)}, s3")
    elif cfg.rot == 16:
        a(f"s_mul_i32 s4, {s(S_G8)}, 3")
        a(f"s_add_u32 {s(S_KK)}, s3, s4")
        mod_small(a, s(S_KK), 10, 2)
    else:
        a(f"s_add_u32 {s(S_KK)}, s3, {s(S_G8)}")
    mod_small(a, s(S_KK), 10, 2)
    a(f"s_mov_b32 {s(S_LDS)}, 0")
    a(f"s_mul_i32 s3, {s(S_B)}, 122880")
    a(f"s_mul_i32 s5, {s(S_H)}, 384")
    a("s_sub_u32 s4, 7864320, s5")
    st.cyc("pre", True) if cfg.only else None
    a("s_waitcnt lgkmcnt(0)")
    st.cyc("karg", True)
    srd(a, R_X, S_X, "s3", 122880)
    srd(a, R_WQ, S_WQ, "s5", "s4")

    def stage_body():
        a(f"s_mul_i32 {s(S_SW)}, {s(S_KK)}, {64 * 12288}")
        a(f"s_lshl_b32 {s(S_SX)}, {s(S_KK)}, 7")
        a(f"s_add_u32 s3, {s(S_LDS)}, {s(S_MW)}")
        a(f"s_add_u32 s4, {s(S_LDS)}, {s(S_MX)}")
        for c in range(3):
            dma(a, OX + c, R_X, s(S_SX), "s4", 1024 * c, "nt" if cfg.ntx & 8 else "")
        for p in range(6):
            dma(a, OW + p, R_WQ, s(S_SW), "s3", 1024 * p, "nt" if cfg.ntkv & 8 else "")
        a(f"s_add_u32 {s(S_KK)}, {s(S_KK)}, 1")
        a(f"s_cmp_eq_u32 {s(S_KK)}, 10")
        a(f"s_cselect_b32 {s(S_KK)}, 0, {s(S_KK)}")
        a(f"s_add_u32 {s(S_LDS)}, {s(S_LDS)}, {SLOT}")
        a(f"s_cmp_eq_u32 {s(S_LDS)}, {3 * SLOT}")
        a(f"s_cselect_b32 {s(S_LDS)}, 0, {s(S_LDS)}")

    def call(lbl):
        a(f"s_call_b64 s[44:45], {lbl}")
    stage_body()
    if cfg.lprio:
        a("s_setprio 0")
    st.cyc("issued")
    a(f"s_lshl_b32 s3, {s(S_B)}, 7")
    a(f"s_add_u32 s3, s3, {OFF_F + FX}")
    a(f"s_add_u32 s4, {s(S_WS)}, s3")
    a(f"s_addc_u32 s5, {s(S_WS + 1)}, 0")
    a(f"s_load_dwordx2 {s(S_TAG, 2)}, s[4:5], 0")
    if cfg.kpos >= 9:
        table = {9: [1, 2, 3, 4, 5, 6, 7, 8], 11: [8, 8, 7, 7, 6, 6, 5, 5], 12: [8, 7, 6, 5, 8, 4, 3, 2],
                 13: [1, 8, 1, 8, 1, 8, 1, 8], 14: [1, 1, 8, 1, 1, 8, 1, 8],
                 20: [1, 8, 1, 1, 8, 1, 1, 8], 21: [1, 8, 8, 1, 8, 8, 1, 8], 22: [1, 8, 4, 1, 8, 4, 1, 8],
                 23: [1, 2, 1, 1, 2, 1, 1, 2], 24: [1, 8, 5, 3, 8, 6, 1, 8], 25: [0, 8, 1, 0, 8, 1, 0, 8],
                 26: [1, 8, 1, 8, 1, 8, 1, 8], 27: [0, 8, 0, 8, 0, 8, 0, 8],
                 15: [1, 2, 3, 4, 5, 6, 7, 1], 16: [1, 1, 2, 2, 3, 3, 4, 4], 17: [1, 1, 1, 1, 2, 2, 2, 2]}[cfg.kpos]
        word = sum(x << (4 * i) for i, x in enumerate(table))
        if cfg.kpos < 20:
            a(f"s_add_u32 s3, {s(S_B)}, {s(S_G8)}")
            a("s_and_b32 s3, s3, 7")
            a("s_lshl_b32 s3, s3, 2")
        else:
            a(f"s_lshl_b32 s3, {s(S_B)}, 2")
        a(f"s_lshr_b32 s3, {word:#x}, s3")
        a(f"s_and_b32 {s(S_PK)}, s3, 15")
    else:
        a(f"s_mov_b32 {s(S_PK)}, {cfg.kpos}")
    a(f"s_lshl_b32 s3, {s(S_B)}, 5")
    a(f"s_add_u32 s3, s3, {s(S_H)}")
    a("s_mul_i32 s3, s3, 36864")
    srd(a, R_K, S_K, "s3", 36864)
    srd(a, R_V, S_V, "s3", 36864)
    srd(a, R_F, S_WS, f"{OFF_F}", 262144)
    a(f"s_mul_i32 s3, {s(S_LW)}, 24")
    a(f"s_and_b32 s4, {s(S_LW)}, 1")
    a("s_lshl_b32 s4, s4, 6")
    for c in range(3):
        a(f"v_lshrrev_b32 {v(T0)}, 1, {v(RRc + c)}")
        a(f"v_add_u32 {v(T1)}, s3, {v(RRc + c)}")
        a(f"v_mul_u32_u24 {v(T1)}, 384, {v(T1)}")
        a(f"v_xor_b32 {v(T2)}, {v(T0)}, {v(UUc + c)}")
        a(f"v_lshl_add_u32 {v(T2)}, {v(T2)}, 4, {v(T1)}")
        a(f"v_xor_b32 {v(OK_ + c)}, s4, {v(T2)}")
        a(f"v_xor_b32 {v(T2)}, 64, {v(OK_ + c)}")
        a(f"v_add_u32 {v(OK_ + 3 + c)}, 3072, {v(T2)}")
        a(f"v_add_u32 {v(OK_ + 6 + c)}, 6144, {v(OK_ + c)}")
        a(f"v_lshlrev_b32 {v(T2)}, 1, {v(T0)}")
        a(f"v_xor_b32 {v(T2)}, {v(T2)}, {v(UUc + c)}")
        a(f"v_lshl_add_u32 {v(OV + c)}, {v(T2)}, 4, {v(T1)}")
        a(f"v_add_u32 {v(OV + 3 + c)}, 3072, {v(OV + c)}")
        a(f"v_add_u32 {v(OV + 6 + c)}, 6144, {v(OV + c)}")
    a(f"s_mul_i32 s3, {s(S_G8)}, 983040")
    a(f"s_mul_i32 s4, {s(S_HH)}, 320")
    a("s_add_u32 s3, s3, s4")
    a("s_sub_u32 s4, 7864320, s3")
    srd(a, R_WO, S_WO, "s3", "s4")
    if cfg.tpos == 1:
        a(f"s_mul_i32 s3, {s(S_G8)}, 983040")
        srd(a, 96, S_WO, "s3", 983040)
    if cfg.tx:
        a("s_lshr_b32 s3, s2, 3")
        a("s_lshl_b32 s3, s3, 2")
        a(f"s_add_u32 s3, s3, {s(S_LW)}")
        a("s_mul_i32 s3, s3, 7680")
        a(f"v_min_u32 {v(T0)}, 59, v0")
        a(f"v_lshl_add_u32 {v(AT)}, {v(T0)}, 7, s3")
    else:
        a(f"s_lshl_b32 s3, {s(S_B)}, 2")
        a(f"s_add_u32 s3, s3, {s(S_LW)}")
        a("s_mul_i32 s3, s3, 24")
        a(f"v_mul_u32_u24 {v(T1)}, 21846, v0")
        a(f"v_lshrrev_b32 {v(T1)}, 16, {v(T1)}")
        a(f"v_mul_u32_u24 {v(T2)}, 3, {v(T1)}")
        a(f"v_sub_u32 {v(T0)}, v0, {v(T2)}")
        a(f"v_add_u32 {v(T1)}, s3, {v(T1)}")
        a(f"v_mul_u32_u24 {v(T1)}, 1280, {v(T1)}")
        a(f"v_lshl_add_u32 {v(AT)}, {v(T0)}, 7, {v(T1)}")
        a(f"v_min_u32 {v(T0)}, 7, v0")
        a(f"v_add_u32 {v(T0)}, 64, {v(T0)}")
        a(f"v_mul_u32_u24 {v(T1)}, 21846, {v(T0)}")
        a(f"v_lshrrev_b32 {v(T1)}, 16, {v(T1)}")
        a(f"v_mul_u32_u24 {v(T2)}, 3, {v(T1)}")
        a(f"v_sub_u32 {v(T0)}, {v(T0)}, {v(T2)}")
        a(f"v_add_u32 {v(T1)}, s3, {v(T1)}")
        a(f"v_mul_u32_u24 {v(T1)}, 1280, {v(T1)}")
        a(f"v_lshl_add_u32 {v(AT2)}, {v(T0)}, 7, {v(T1)}")
    if cfg.lprio == 2:
        a("s_setprio 3")
    stage_body()

    def issue_kv(off, srd_, base, pieces=range(9)):
        a(f"s_mul_i32 s3, {s(S_LW)}, 9216")
        a(f"s_add_u32 s3, s3, {base}")
        for p in pieces:
            dma(a, off + p, srd_, "0", "s3", 1024 * p, "nt" if cfg.ntkv & (1 if srd_ == R_K else 2) else "")
    a("s_waitcnt vmcnt(9)")
    jitter(a, cfg, 6)
    st.cyc("landed0")
    a("s_barrier")
    a(f"s_mov_b32 {s(S_N)}, 0")
    a.label("L_lloop")
    a(f"s_cmp_eq_u32 {s(S_N)}, {s(S_PK)}")
    a("s_cbranch_scc0 L_nok")
    call("L_sub_k")
    a.label("L_nok")
    stage_body()
    a("s_waitcnt vmcnt(9)")
    a("s_barrier")
    a(f"s_add_u32 {s(S_N)}, {s(S_N)}, 1")
    a(f"s_cmp_lt_u32 {s(S_N)}, 8")
    a("s_cbranch_scc1 L_lloop")
    st.cyc("b8")
    if cfg.tpos == 8:
        a(f"s_mul_i32 s3, {s(S_G8)}, 983040")
        srd(a, R_X, S_WO, "s3", 983040)
        a(f"buffer_load_dword {v(JK)}, {v(AT)}, {s(R_X, 4)}, 0 offen")
    if cfg.ksplit:
        issue_kv(OK_, R_K, A_K, range(9 - cfg.ksplit, 9))
        a(f"s_waitcnt vmcnt({cfg.ksplit})")
        a("s_barrier")
        call("L_sub_v")
        a("s_branch L_kvdone")
    a(f"s_cmp_eq_u32 {s(S_PK)}, 8")
    a("s_cbranch_scc0 L_vonly")
    call("L_sub_k")
    a(f"s_waitcnt vmcnt({10 if cfg.tpos == 1 else 9})")
    a("s_barrier")
    call("L_sub_v")
    a("s_branch L_kvdone")
    a.label("L_sub_k")
    issue_kv(OK_, R_K, A_K, range(9 - cfg.ksplit))
    if cfg.tpos == 1:
        a(f"buffer_load_dword {v(JK)}, {v(AT)}, s[96:99], 0 offen")
    a("s_setpc_b64 s[44:45]")
    a.label("L_sub_v")
    issue_kv(OV, R_V, A_V)
    a("s_setpc_b64 s[44:45]")
    a.label("L_sub_wo")
    a(f"s_mul_i32 {s(S_SW)}, {s(S_KK)}, {64 * 1280}")
    a(f"s_add_u32 s3, {s(S_LDS)}, {s(S_MW)}")
    for p in range(5):
        dma(a, OWO + p, R_WO, s(S_SW), "s3", 1024 * p, "nt" if cfg.ntx & 64 else "")
    a(f"s_add_u32 {s(S_KK)}, {s(S_KK)}, 1")
    a(f"s_cmp_eq_u32 {s(S_KK)}, 12")
    a(f"s_cselect_b32 {s(S_KK)}, 0, {s(S_KK)}")
    a(f"s_add_u32 {s(S_LDS)}, {s(S_LDS)}, {WOS}")
    a(f"s_cmp_eq_u32 {s(S_LDS)}, {4 * WOS}")
    a(f"s_cselect_b32 {s(S_LDS)}, 0, {s(S_LDS)}")
    a("s_setpc_b64 s[44:45]")
    a.label("L_sub_o")
    a(f"s_mul_i32 {s(S_SX)}, {s(S_PK)}, {OS}")
    a(f"s_add_u32 m0, {s(S_LDO)}, {s(S_MX)}")
    a(f"s_add_u32 {s(S_PK)}, {s(S_PK)}, 1")
    for c in range(3):
        a(f"buffer_load_dwordx4 {v(OO)}, {s(R_OI, 4)}, {s(S_SX)} offen offset:{1024 * c} {['sc1', '', 'nt'][cfg.unsafe % 9]} {'nt' if cfg.ntx & 16 else ''} lds")
    a(f"s_cmp_eq_u32 {s(S_PK)}, 12")
    a(f"s_cselect_b32 {s(S_PK)}, 0, {s(S_PK)}")
    a(f"s_add_u32 {s(S_LDO)}, {s(S_LDO)}, {OS}")
    a(f"s_cmp_eq_u32 {s(S_LDO)}, {6 * OS}")
    a(f"s_cselect_b32 {s(S_LDO)}, 0, {s(S_LDO)}")
    a("s_setpc_b64 s[44:45]")
    a.label("L_vonly")
    call("L_sub_v")
    a("s_waitcnt vmcnt(9)")
    a("s_barrier")
    a.label("L_kvdone")
    a("s_waitcnt vmcnt(9)")
    jitter(a, cfg, 7)
    st.cyc("Kland")
    a("s_barrier")
    if cfg.tx:
        a(f"s_mul_i32 s3, {s(S_G8)}, 983040")
        srd(a, R_X, S_WO, "s3", 983040)
        touch = f"buffer_load_dword {v(JK)}, {v(AT)}, {s(R_X, 4)}, 0 offen {'nt' if cfg.ntx & 4 else ''}"
    else:
        touch = (f"buffer_load_dword {v(JK)}, {v(AT)}, {s(R_WO, 4)}, 0 offen\n"
                 f"buffer_load_dword {v(JK + 2)}, {v(AT2)}, {s(R_WO, 4)}, 0 offen")
    if cfg.tpos == 10:
        a(touch)
    a(f"s_lshl_b32 s3, {s(S_B)}, 3")
    a(f"s_add_u32 s3, s3, {s(S_G8)}")
    a(f"s_mul_i32 s3, s3, {4 * 36864}")
    srd(a, R_OI, S_WS, "s3", 4 * 36864)
    a(f"s_lshl_b32 s3, {s(S_B)}, 2")
    a(f"s_add_u32 s3, s3, {s(S_HH)}")
    a(f"s_mul_i32 s3, s3, {8 * PSZ}")
    a(f"s_add_u32 s3, s3, {OFF_P}")
    srd(a, R_PI, S_WS, "s3", 8 * PSZ)
    a(f"s_mul_i32 {s(S_MW)}, {s(S_LW)}, 5120")
    a(f"s_add_u32 {s(S_MW)}, {s(S_MW)}, {WO0}")
    a(f"s_mul_i32 {s(S_MX)}, {s(S_LW)}, 3072")
    a(f"s_mul_i32 {s(S_KK)}, {s(S_HH)}, 3")
    a(f"s_add_u32 {s(S_PK)}, {s(S_KK)}, 3")
    a(f"s_cmp_eq_u32 {s(S_PK)}, 12")
    a(f"s_cselect_b32 {s(S_PK)}, 0, {s(S_PK)}")
    a(f"s_mov_b32 {s(S_LDS)}, {WOS}")
    a(f"s_mov_b32 {s(S_LDO)}, {3 * OS}")
    a("s_barrier")
    if cfg.lprio == 2:
        a("s_setprio 0")
    if cfg.tpos == 11:
        a(touch)
    a(f"s_lshl_b32 s3, {s(S_LW)}, 4")
    for c in range(5):
        a(f"v_add_u32 {v(T0)}, {64 * c}, v0")
        a(f"v_mul_u32_u24 {v(T1)}, 3277, {v(T0)}")
        a(f"v_lshrrev_b32 {v(T1)}, 16, {v(T1)}")
        a(f"v_mul_u32_u24 {v(T2)}, 20, {v(T1)}")
        a(f"v_sub_u32 {v(T0)}, {v(T0)}, {v(T2)}")
        a(f"v_lshrrev_b32 {v(T2)}, 1, {v(T1)}")
        a(f"v_and_b32 {v(T2)}, 2, {v(T2)}")
        a(f"v_xor_b32 {v(T0)}, {v(T0)}, {v(T2)}")
        a(f"v_add_u32 {v(T1)}, s3, {v(T1)}")
        a(f"v_mul_u32_u24 {v(T1)}, 1280, {v(T1)}")
        a(f"v_lshl_add_u32 {v(OWO + c)}, {v(T0)}, 4, {v(T1)}")
    a(f"v_lshl_add_u32 {v(OO)}, v0, 4, {s(S_MX)}")
    a(f"s_lshl_b32 s3, {s(S_B)}, 5")
    a(f"s_add_u32 s3, s3, {s(S_H)}")
    if not cfg.pfl & 1:
        a("s_lshr_b32 s3, s3, 2")
    a("s_lshl_b32 s3, s3, 7")
    a(f"v_and_b32 {v(T0)}, 15, v0")
    a(f"v_lshl_add_u32 {v(AF1)}, {v(T0)}, 3, s3")
    a("s_waitcnt lgkmcnt(0)")
    a(f"s_add_u32 {s(S_TAG)}, {s(S_TAG)}, {TAGC[0]:#x}")
    a(f"s_addc_u32 {s(S_TAG + 1)}, {s(S_TAG + 1)}, {TAGC[1]:#x}")
    a(f"v_mov_b32 {v(TG)}, {s(S_TAG)}")
    a(f"v_mov_b32 {v(TG + 1)}, {s(S_TAG + 1)}")
    a(f"v_mov_b32 {v(T0)}, {A_TAG}")
    a(f"ds_write_b64 {v(T0)}, {v(TG, 2)}")
    a(f"s_waitcnt vmcnt({(1 if cfg.tx else 2) if cfg.tpos in (10, 11) else 0}) lgkmcnt(0)")
    jitter(a, cfg, 8)
    st.cyc("Vland")
    if cfg.lprio == 2:
        a("s_setprio 3")
    a("s_barrier")
    if cfg.tpos == 12:
        a(touch)
    a(f"s_mul_i32 s3, {s(S_B)}, 122880")
    a(f"s_mul_i32 s4, {s(S_HH)}, 320")
    a("s_add_u32 s3, s3, s4")
    a("s_sub_u32 s4, 983040, s3")
    srd(a, R_OUT, S_OUT, "s3", "s4")
    assert cfg.w12 <= 2
    for _ in range(cfg.w12):
        call("L_sub_wo")
    a("s_barrier")
    for _ in range(cfg.w13):
        call("L_sub_wo")

    def poll(name, vaddr):
        a(f"s_mov_b32 s3, {SPIN_MAX}")
        a.label(name)
        a(f"buffer_load_dwordx2 {v(PT, 2)}, {v(vaddr)}, {s(R_F, 4)}, 0 offen sc1")
        a("s_sub_u32 s3, s3, 1")
        a("s_cmp_eq_u32 s3, 0")
        a(f"s_cbranch_scc1 {name}_out")
        a("s_waitcnt vmcnt(0)")
        a(f"v_cmp_ne_u64 vcc, {v(PT, 2)}, {v(TG, 2)}")
        a("s_nop 1")
        a(f"s_cbranch_vccnz {name}")
        a.label(name + "_out")
        a("s_waitcnt vmcnt(0)")

    BARS = ["B0", "B1", "B2", "BX"] + [f"B{n}" for n in range(3, 12)]
    own_mask = "s[4:5]"

    def run(path, tokens, state, alts):
        q, nwo, no, bi = state
        q = list(q)
        for k, ch in enumerate(tokens):
            free = -1 if bi < 2 else (bi - 2 if bi <= 4 else bi - 3)
            if ch == "w":
                assert nwo <= max(3, free + 4), (path, k, nwo, free)
                call("L_sub_wo")
                q.append((nwo, 5))
                nwo += 1
            elif ch == "o":
                assert no <= max(5, free + 6), (path, k, no, free)
                call("L_sub_o")
                q.append((no, 3))
                no += 1
            elif ch == "c":
                if cfg.sent:
                    a("s_mov_b32 s3, 4096")
                    for kk in range(8):
                        a(f"buffer_store_dwordx4 {v(CL, 4)}, {v(ACL)}, {s(R_PO, 4)}, {'s3' if kk >= 4 else '0'} offen offset:{1024 * (kk % 4)} sc1")
                    q.append((11, 8))
            elif ch == "p":
                a(f"buffer_load_dwordx2 {v(PT, 2)}, {v(AF1)}, {s(R_F, 4)}, 0 offen sc1")
                q.append((99, 1))
            elif ch in "ab":
                last = max([i for i, (kk, _) in enumerate(q) if kk == 99] + [-1])
                if last >= 0:
                    a(f"s_waitcnt vmcnt({sum(c for _, c in q[last + 1:])})")
                q = q[last + 1:]
                a(f"v_cmp_ne_u64 vcc, {v(PT, 2)}, {v(TG, 2)}")
                a("s_nop 1")
                a(f"s_and_b64 s[4:5], vcc, {s(S_OM, 2)}")
                a(f"s_cbranch_scc0 L_path_{ch}")
                alts[ch] = (q, nwo, no, bi)
            elif ch == "s":
                poll("L_poll1", AF1)
                q = []
            elif ch == "|":
                name = BARS[bi]
                need = {"BX": -1}.get(name, int(name[1:]) if name != "BX" else -1)
                if need >= 0:
                    assert nwo > need and (need < 3 or no > need), (path, name)
                    last = max([i for i, (kk, _) in enumerate(q) if kk <= need] + [-1])
                    cnt = sum(c for _, c in q[last + 1:])
                    if last >= 0:
                        a(f"s_waitcnt vmcnt({cnt})")
                    q = q[last + 1:]
                a("s_barrier")
                bi += 1
        assert bi == len(BARS) and nwo == 12 and no == 12, (path, bi, nwo, no)
    CL, ACL, R_PO = 112, 116, 8
    if cfg.sent:
        a(f"s_lshl_b32 s3, {s(S_B)}, 2")
        a(f"s_add_u32 s3, s3, {s(S_HH)}")
        a("s_lshl_b32 s3, s3, 3")
        a(f"s_add_u32 s3, s3, {s(S_G8)}")
        a(f"s_mul_i32 s3, s3, {PSZ}")
        a(f"s_add_u32 s3, s3, {OFF_P}")
        srd(a, R_PO, S_WS, "s3", PSZ)
        a(f"s_mul_i32 s3, {s(S_LW)}, 7680")
        a(f"v_lshl_add_u32 {v(ACL)}, v0, 4, s3")
        for kk in range(4):
            a(f"v_mov_b32 {v(CL + kk)}, -1")
    S_OM = 4 * 0 + 40
    a(f"s_lshl_b32 s3, {s(S_HH)}, 2")
    a("s_lshl_b32 s3, 0x000f000f, s3")
    a(f"s_not_b32 {s(S_OM)}, s3")
    a(f"s_mov_b32 {s(S_OM + 1)}, {s(S_OM)}")
    a("s_barrier")
    jitter(a, cfg, 10)
    if cfg.tpos == 15:
        a(touch)
    tabs = {
        1: dict(N="wp a|ww|wp|b|ww s ooo|wo|wo|wo|wo|wo|wo|||",
                a="|ww|w ooo||w|wo|wo|wo|wo|wo|wo|w||",
                b="ooo|w|wo|wo|wo|wo|wo|wo|w||"),
        2: dict(N="wp a|ww|wp|b|ww s ooo|wo|wo|wo|wo|wo|wo|||",
                a="|ww|w ooo||w|wwo|wo|wo|wo|wo|wo|||",
                b="ooo|w|wwo|wo|wo|wo|wo|wo|||"),
        3: dict(N="wp a|ww|wp|b|www s ooo|ooo|w|w|w|oo|w|wo||",
                a="|ww|w ooo||ww|wo|wo|wo|wo|wo|wo|||",
                b="ooo|ww|wo|wo|wo|wo|wo|wo|||"),
        4: dict(N="w|ww|wp|b|ww s ooo|wo|wo|wo|wo|wo|woc|||",
                b="ooo|w|wo|wo|wo|wo|wo|wo|wc||"),
        8: dict(N="wp|ww a|wp|b|ww s ooo|wo|wo|wo|wo|wo|wo|||",
                a="ooo|w||w|wo|wo|wo|wo|wo|wo|w||",
                b="ooo|w|wo|wo|wo|wo|wo|wo|w||"),
        9: dict(N="w|wpw a|wp|b|ww s ooo|wo|wo|wo|wo|wo|wo|||",
                a="ooo|w||w|wo|wo|wo|wo|wo|wo|w||",
                b="ooo|w|wo|wo|wo|wo|wo|wo|w||"),
        10: dict(N="w|wwp|a wp|b|ww s ooo|wo|wo|wo|wo|wo|wo|||",
                 a="w ooo||w|wo|wo|wo|wo|wo|wo|w||",
                 b="ooo|w|wo|wo|wo|wo|wo|wo|w||"),
        11: dict(N="w|wwp|a wp|b|ww s ooo|wo|wo|wo|wo|wo|wo|||",
                 a="w oo||wo|wo|wo|wo|wo|wo|wo|w||",
                 b="oo|wo|wo|wo|wo|wo|wo|wo|w||"),
        12: dict(N="w|ww|pw|b|ww s ooo|wo|wo|wo|wo|wo|wo|||",
                 b="ooo|w|wo|wo|wo|wo|wo|wo|w||"),
        13: dict(N="w|ww|pw|b|ww s ooo|wo|wo|wo|wo|wo|wo|||",
                 b="ooo|w|wwo|wo|wo|wo|wo|wo|||"),
        14: dict(N="w|ww|pw|b wp|a w s ooo|wo|wo|wo|wo|wo|wo|||" if False else "w|ww|pw|b|wp a w s ooo|wo|wo|wo|wo|wo|wo|||",
                 a="ooo w|wo|wo|wo|wo|wo|wo|||",
                 b="ooo|w|wo|wo|wo|wo|wo|wo|w||"),
        15: dict(N="w|ww|w|p|w b w s ooo|wo|wo|wo|wo|wo|wo|||",
                 b="ooo w|wo|wo|wo|wo|wo|wo|||"),
        16: dict(N="w|www|p|b|ww s ooo|wo|wo|wo|wo|wo|wo|||",
                 b="ooo|w|wo|wo|wo|wo|wo|wo|w||"),
        17: dict(N="ww|w|pw|b|ww s ooo|wo|wo|wo|wo|wo|wo|||",
                 b="ooo|w|wo|wo|wo|wo|wo|wo|w||"),
        18: dict(N="www||pw|b|ww s ooo|wo|wo|wo|wo|wo|wo|||",
                 b="ooo|w|wo|wo|wo|wo|wo|wo|w||"),
        19: dict(N="ww|pw|w|b|ww s ooo|wo|wo|wo|wo|wo|wo|||",
                 b="ooo|w|wo|wo|wo|wo|wo|wo|w||"),
        20: dict(N="ww|ww|p|b|ww s ooo|wo|wo|wo|wo|wo|wo|||",
                 b="ooo|w|wo|wo|wo|wo|wo|wo|w||"),
        21: dict(N="ww|wp|w|b|ww s ooo|wo|wo|wo|wo|wo|wo|||",
                 b="ooo|w|wo|wo|wo|wo|wo|wo|w||"),
        7: dict(N="w|ww|wp|b|ww s ooo|wo|wo|wo|wo|wo|wo|c||",
                b="ooo|w|wwo|wo|wo|wo|wo|woc|||"),
        5: dict(N="wp a|ww|wp|b|ww s ooo|wo|wo|wo|wo|wo|wo|||",
                a="|ww|w oo||wo|wo|wo|wo|wo|wo|wo|w||",
                b="oo|wo|wo|wo|wo|wo|wo|wo|w||"),
        6: dict(N="wp a|ww|wp|b|ww s ooo|wo|wo|wo|wo|wo|wo|||",
                a="|www ooo|||w|wwo|wo|wo|wo|wo|wo|||",
                b="ooo|w|wwo|wo|wo|wo|wo|wo|||"),
    }[cfg.tab]
    alts = {}
    npre = cfg.w12 + cfg.w13
    if npre == 1:
        tabs = dict(N="w|w|wp|b|ww s ooo|wo|wo|wo|wo|wo|wo|||", b=tabs["b"])
    elif npre == 2:
        tabs = dict(N="w||wp|b|ww s ooo|wo|wo|wo|wo|wo|wo|||", b=tabs["b"])
    elif npre == 3:
        tabs = dict(N="w||p|b|ww s ooo|wo|wo|wo|wo|wo|wo|||", b=tabs["b"])
    run("N", tabs["N"].replace(" ", ""), ([(k, 5) for k in range(npre)], npre, 3, 0), alts)
    a("s_branch L_final")
    for key in sorted(alts):
        a.label(f"L_path_{key}")
        run(key, tabs[key].replace(" ", ""), alts[key], {})
        if key != sorted(alts)[-1]:
            a("s_branch L_final")
    a.label("L_final")
    jitter(a, cfg, 9)
    OFFS = RT
    a(f"s_lshr_b32 s5, {s(S_G8)}, 2")
    if cfg.pfl & 2:
        a(f"s_lshl_b32 s3, {s(S_B)}, 5")
        a(f"s_add_u32 s3, s3, {s(S_H)}")
    else:
        a(f"s_lshl_b32 s3, {s(S_B)}, 2")
        a(f"s_add_u32 s3, s3, {s(S_HH)}")
        a("s_lshl_b32 s3, s3, 1")
        a("s_add_u32 s3, s3, s5")
    a("s_lshl_b32 s3, s3, 7")
    a(f"s_add_u32 s3, s3, {F2}")
    a(f"v_and_b32 {v(T0)}, 15, v0")
    a(f"v_lshl_add_u32 {v(AF2)}, {v(T0)}, 3, s3")
    a(f"s_and_b32 s6, {s(S_G8)}, 3")
    a("s_mul_i32 s6, s6, 3")
    a("s_mul_i32 s5, s5, 7680")
    a(f"s_mul_i32 s4, {s(S_G8)}, {0 if cfg.otr else 12 * 1280}")
    a(f"s_cmp_eq_u32 {s(S_LW)}, 3")
    a("s_cbranch_scc1 L_red3")
    a(f"s_add_u32 s6, s6, {s(S_LW)}")
    a("s_lshr_b32 s3, s6, 2")
    a("s_mul_i32 s3, s3, 2560")
    a("s_add_u32 s5, s5, s3")
    a("s_and_b32 s6, s6, 3")
    a("s_lshl_b32 s6, s6, 8")
    a("s_add_u32 s5, s5, s6")
    a(f"s_mul_i32 s3, {s(S_LW)}, {4 * (320 if cfg.otr else 1280)}")
    a("s_add_u32 s4, s4, s3")
    a("v_lshrrev_b32 v7, 5, v0")
    a("v_bfe_u32 v8, v0, 4, 1")
    a(f"v_mul_u32_u24 v9, 15360, v7")
    a("v_lshl_add_u32 v9, v8, 10, v9")
    a(f"v_lshl_add_u32 v9, {v(T0)}, 4, v9")
    a(f"v_add_u32 {v(OFFS)}, s5, v9")
    a("v_and_b32 v9, 3, v0")
    a(f"v_mul_u32_u24 v9, {320 if cfg.otr else 1280}, v9")
    a("v_mul_u32_u24 v7, 160, v7")
    a("v_lshl_add_u32 v7, v8, 6, v7")
    a("v_bfe_u32 v8, v0, 2, 2")
    a("v_lshl_add_u32 v7, v8, 3, v7")
    a("v_add3_u32 " + f"{v(A0)}, v7, v9, s4")
    a(f"v_add_u32 {v(A1)}, 32, {v(A0)}")
    a("s_branch L_red")
    a.label("L_red3")
    a("v_min_u32 v10, 47, v0")
    a("v_lshrrev_b32 v7, 4, v10")
    a("v_add_u32 v8, s6, v7")
    a("v_lshrrev_b32 v9, 2, v8")
    a("v_mul_u32_u24 v9, 2560, v9")
    a("v_and_b32 v8, 3, v8")
    a("v_lshl_add_u32 v9, v8, 7, v9")
    a("v_bfe_u32 v8, v10, 3, 1")
    a("v_mul_u32_u24 v11, 15360, v8")
    a("v_add_u32 v9, v9, v11")
    a("v_and_b32 v11, 7, v10")
    a("v_lshl_add_u32 v9, v11, 4, v9")
    a("s_add_u32 s5, s5, 2048")
    a(f"v_add_u32 {v(OFFS)}, s5, v9")
    a("v_and_b32 v11, 1, v10")
    a("v_lshl_add_u32 v7, v7, 1, v11")
    a(f"v_mul_u32_u24 v7, {640 if cfg.otr else 2560}, v7")
    a("v_mul_u32_u24 v8, 160, v8")
    a("v_bfe_u32 v11, v10, 1, 2")
    a("v_lshl_add_u32 v8, v11, 3, v8")
    a("s_add_u32 s4, s4, 128")
    a("v_add3_u32 " + f"{v(A0)}, v7, v8, s4")
    a(f"v_add_u32 {v(A1)}, {320 if cfg.otr else 1280}, {v(A0)}")
    a.label("L_red")
    if cfg.otr:
        a(f"s_lshl_b32 s4, {s(S_LW)}, 6")
        a("v_add_u32 v7, s4, v0")
        a("v_min_u32 v7, 239, v7")
        a(f"v_lshlrev_b32 {v(RT + 1)}, 4, v7")
        a("v_mul_u32_u24 v8, 3277, v7")
        a("v_lshrrev_b32 v8, 16, v8")
        a("v_mul_u32_u24 v8, 960, v8")
        a(f"s_mul_i32 s4, {s(S_G8)}, {12 * 1280}")
        a(f"v_add3_u32 {v(RT + 2)}, v8, {v(RT + 1)}, s4")
    D0, AC = 80, 148
    if cfg.b12x:
        a("s_barrier")

    def load_part(g):
        a(f"s_mov_b32 s3, {PSZ * g}")
        a(f"buffer_load_dwordx4 {v(D0 + 4 * g, 4)}, {v(OFFS)}, {s(R_PI, 4)}, s3 offen {['sc1', '', 'nt', 'sc0 sc1', 'sc1 nt'][4 if cfg.ntx & 32 else cfg.pld]}")
    if cfg.ownl:
        a(f"ds_read_b128 {v(D0, 4)}, {v(OFFS)} offset:4096")
        poll("L_poll2", AF2)
        st.cyc("seen2")
        a(f"s_mov_b32 s6, {s(S_G8)}")
        for k in range(1, 8):
            a("s_add_u32 s6, s6, 1")
            a("s_and_b32 s6, s6, 7")
            a(f"s_mul_i32 s3, s6, {PSZ}")
            a(f"buffer_load_dwordx4 {v(D0 + 4 * k, 4)}, {v(OFFS)}, {s(R_PI, 4)}, s3 offen sc1")
        a(lg(0))
    elif not cfg.dynred:
        poll("L_poll2", AF2)
        st.cyc("seen2")
        for g in range(8):
            load_part(g)
    elif cfg.dynred == 1:
        a(f"s_mov_b32 s7, {SPIN_MAX}")
        a("s_mov_b32 s6, 0")
        a.label("L_poll2")
        a(f"buffer_load_dwordx2 {v(PT, 2)}, {v(AF2)}, {s(R_F, 4)}, 0 offen sc1")
        a("s_sub_u32 s7, s7, 1")
        a("s_cmp_eq_u32 s7, 0")
        a("s_cbranch_scc1 L_poll2_out")
        a("s_waitcnt vmcnt(0)")
        a(f"v_cmp_eq_u64 vcc, {v(PT, 2)}, {v(TG, 2)}")
        a("s_nop 1")
        a("s_lshr_b32 s5, vcc_lo, 8")
        a("s_and_b32 s5, s5, vcc_lo")
        a("s_and_b32 s5, s5, 0xff")
        a("s_andn2_b32 s4, s5, s6")
        a("s_cbranch_scc0 L_poll2")
        if cfg.miss:
            a("s_cmp_eq_u32 s5, 0xff")
            a("s_cbranch_scc1 L_go2")
            a("s_bcnt1_i32_b32 s3, s5")
            a(f"s_cmp_gt_u32 s3, {8 - cfg.miss}")
            a("s_cbranch_scc1 L_poll2")
            a("s_bcnt1_i32_b32 s3, s4")
            a(f"s_cmp_lt_u32 s3, {cfg.newc}")
            a("s_cbranch_scc1 L_poll2")
            a.label("L_go2")
        if cfg.thr:
            a("s_bcnt1_i32_b32 s3, s5")
            a("s_cmp_eq_u32 s6, 0")
            a(f"s_cselect_b32 s8, {cfg.thr}, 8")
            a("s_cmp_lt_u32 s3, s8")
            a("s_cbranch_scc1 L_poll2")
        a("s_or_b32 s6, s6, s5")
        for g in range(8):
            a(f"s_bitcmp1_b32 s4, {g}")
            a(f"s_cbranch_scc0 L_r{g}")
            load_part(g)
            a.label(f"L_r{g}")
        a("s_cmp_eq_u32 s6, 0xff")
        a("s_cbranch_scc0 L_poll2")
        a.label("L_poll2_out")
        st.cyc("seen2")
        a("s_waitcnt vmcnt(0)")
    else:
        U0 = 120
        a(f"s_mov_b32 s7, {SPIN_MAX}")
        a("s_mov_b32 s6, 0")
        a("s_mov_b32 s8, 0")
        a("s_mov_b32 s9, 0")
        a("s_branch L_poll2")
        a.label("L_widen")
        for g in range(8):
            a(f"s_bitcmp1_b32 s8, {g}")
            a(f"s_cbranch_scc0 L_u{g}")
            for r in range(4):
                a(f"v_lshlrev_b32 {v(U0 + 8 * g + 2 * r)}, 16, {v(D0 + 4 * g + r)}")
                a(f"v_and_b32 {v(U0 + 8 * g + 2 * r + 1)}, 0xffff0000, {v(D0 + 4 * g + r)}")
            a.label(f"L_u{g}")
        a("s_mov_b32 s8, 0")
        a("s_setpc_b64 s[44:45]")
        a.label("L_poll2")
        a(f"buffer_load_dwordx2 {v(PT, 2)}, {v(AF2)}, {s(R_F, 4)}, 0 offen sc1")
        a("s_cmp_eq_u32 s8, 0")
        a("s_cbranch_scc1 L_nowiden")
        call("L_widen")
        a.label("L_nowiden")
        a("s_sub_u32 s7, s7, 1")
        a("s_cmp_eq_u32 s7, 0")
        a("s_cbranch_scc1 L_poll2_out")
        a("s_waitcnt vmcnt(0)")
        a(f"v_cmp_eq_u64 vcc, {v(PT, 2)}, {v(TG, 2)}")
        a("s_mov_b32 s8, s9")
        a("s_mov_b32 s9, 0")
        a("s_and_b32 s5, vcc_lo, 0xff")
        a("s_andn2_b32 s9, s5, s6")
        a("s_cbranch_scc0 L_poll2")
        a("s_or_b32 s6, s6, s5")
        for g in range(8):
            a(f"s_bitcmp1_b32 s9, {g}")
            a(f"s_cbranch_scc0 L_r{g}")
            load_part(g)
            a.label(f"L_r{g}")
        a("s_cmp_eq_u32 s6, 0xff")
        a("s_cbranch_scc0 L_poll2")
        a.label("L_poll2_out")
        st.cyc("seen2")
        call("L_widen")
        a("s_mov_b32 s8, s9")
        a("s_waitcnt vmcnt(0)")
        call("L_widen")
        for g in range(1, 8):
            for r in range(4):
                a(f"v_pk_add_f32 {v(U0 + 2 * r, 2)}, {v(U0 + 2 * r, 2)}, {v(U0 + 8 * g + 2 * r, 2)}")
        AC = U0
    if cfg.sent:
        assert cfg.dynred
        a("s_mov_b32 s7, 4096")
        a.label("L_chk")
        a(f"v_max3_u32 v4, {v(D0)}, {v(D0 + 1)}, {v(D0 + 2)}")
        a(f"v_max3_u32 v5, {v(D0 + 3)}, {v(D0 + 4)}, {v(D0 + 5)}")
        for kk in range(6, 30, 4):
            a(f"v_max3_u32 v4, v4, {v(D0 + kk)}, {v(D0 + kk + 1)}")
            a(f"v_max3_u32 v5, v5, {v(D0 + kk + 2)}, {v(D0 + kk + 3)}")
        a(f"v_max3_u32 v4, v4, {v(D0 + 30)}, {v(D0 + 31)}")
        a("v_max_u32 v4, v4, v5")
        a("v_cmp_eq_u32 vcc, -1, v4")
        a("s_sub_u32 s7, s7, 1")
        a("s_cselect_b32 s6, 0, 1")
        a("s_and_b32 s4, vcc_lo, -1")
        a("s_or_b32 s4, s4, vcc_hi")
        a("s_cselect_b32 s6, s6, 0")
        a("s_cmp_eq_u32 s6, 0")
        a("s_cbranch_scc1 L_chk_ok")
        for g in range(8):
            load_part(g)
        a("s_waitcnt vmcnt(0)")
        a("s_branch L_chk")
        a.label("L_chk_ok")
        st.cyc("chk")
    for g in range(8 if cfg.dynred < 2 else 0):
        if not cfg.dynred and not (cfg.ownl and g == 0):
            a(f"s_waitcnt vmcnt({7 - g})")
        for r in range(4):
            src = D0 + 4 * g + r
            if g == 0:
                a(f"v_lshlrev_b32 {v(AC + 2 * r)}, 16, {v(src)}")
                a(f"v_and_b32 {v(AC + 2 * r + 1)}, 0xffff0000, {v(src)}")
            else:
                t = 4 + 2 * (r % 2)
                a(f"v_lshlrev_b32 {v(t)}, 16, {v(src)}")
                a(f"v_and_b32 {v(t + 1)}, 0xffff0000, {v(src)}")
                a(f"v_pk_add_f32 {v(AC + 2 * r, 2)}, {v(AC + 2 * r, 2)}, {v(t, 2)}")
    for r in range(4):
        a(cvt(D0 + r, AC + 2 * r))
    fl = ['', 'sc1', 'nt', 'sc0 sc1'][cfg.outfl]
    jitter(a, cfg, 11)
    if cfg.otr:
        a(f"ds_write_b64 {v(A0)}, {v(D0, 2)}")
        a(f"ds_write_b64 {v(A1)}, {v(D0 + 2, 2)}")
        a(lg(0))
        a("s_barrier")
        a(f"ds_read_b128 {v(D0 + 4, 4)}, {v(RT + 1)}")
        a(lg(0))
        a(f"buffer_store_dwordx4 {v(D0 + 4, 4)}, {v(RT + 2)}, {s(R_OUT, 4)}, 0 offen {fl}")
    elif cfg.unsafe == 9:
        a("s_mul_i32 s3, s2, 3840")
        srd(a, 8, S_OUT, "s3", 3840)
        a(f"v_lshlrev_b32 v7, 4, v7")
        a(f"buffer_store_dwordx4 {v(D0, 4)}, v7, s[8:11], 0 offen {fl}")
    else:
        a(f"buffer_store_dwordx2 {v(D0, 2)}, {v(A0)}, {s(R_OUT, 4)}, 0 offen {fl}")
        a(f"buffer_store_dwordx2 {v(D0 + 2, 2)}, {v(A1)}, {s(R_OUT, 4)}, 0 offen {fl}")
    a(f"s_or_b32 s3, {s(S_H)}, {s(S_LW)}")
    a("s_cmp_eq_u32 s3, 0")
    a("s_cbranch_scc0 L_noep")
    a(f"s_lshl_b32 s3, {s(S_B)}, 7")
    a(f"s_add_u32 s3, s3, {FX}")
    a("v_mov_b32 v4, 0")
    a("s_mov_b64 exec, 1")
    a(f"buffer_store_dwordx2 {v(TG, 2)}, v4, {s(R_F, 4)}, s3 offen")
    a.label("L_noep")
    if cfg.diag:
        a("s_waitcnt vmcnt(0)")
    st.cyc("end")
    st.real("real1")
    st.flush("L")


HEADER = """
GQA block (B=8, Sq=Sk=96, D=640, H=32, Dh=192), one launch, one workgroup per (batch b, head h).
Kernarg: x +0, k_cache +8, v_cache +16, wq +24, wo +32, out +40, debug +48, workspace +56.
Workgroup id = (b*4 + h%4)*8 + h/4, so the four heads of a head group and all batches of that group share
an XCD under round-robin placement (speed only; every hand-off below is placement independent).

Waves 4..7 stream operands into LDS with LDS-DMA, waves 0..3 (2 x 2 tiles of 16x16x32 bf16 MFMA) compute:
  1. Q^T = wq_h^T x_b^T          ten 64-deep stages through a ring of three LDS slots
  2. S^T = K Q^T, row max over all 96 keys (exchanged between wave pairs), P = exp2(c (S - max))
  3. O^T = V^T P^T / rowsum      (row sums from an extra MFMA with a ones operand)
  4. O goes to the workspace (write-through stores, then a flag); the workgroup takes the O of the other
     three heads of its group and multiplies the 96 x 768 block by a 768 x 160 slice of wo
  5. the 96 x 160 partial product goes to the workspace in bf16 (write-through, then flags); workgroup
     (b, h) sums rows 12*(h/4).. +11 of the eight head groups' partials in f32 and writes the output.

Workspace: +0 O tiles (256 x 36864 B), +16 MiB partial tiles (256 x 30720 B), +32 MiB flags and epoch words.
A flag is valid when it equals this launch's tag = (epoch word of the batch) + constant; the epoch word is
read before any flag of the workgroup is written and is set to the tag once the whole batch has read it,
so flags left by an earlier launch never match.
"""


def generate(cfg):
    a = Asm()
    for ln in HEADER.strip("\n").split("\n"):
        a.lines.append(("; " + ln).rstrip())
    a.lines.append("; @launch grid=(256,1,1) block=(512,1,1) lds=163840")
    a('.amdgcn_target "amdgcn-amd-amdhsa--gfx950"')
    a(".text")
    a(kernel_header(KN))
    a("s_cmp_ge_u32 s2, 256")
    a("s_cbranch_scc1 L_end")
    a("s_load_dwordx16 s[32:47], s[0:1], 0")
    if cfg.diag:
        a(f"s_memrealtime {s(S_T, 2)}")
        a(f"s_memtime {s(S_T + 2, 2)}")
    a("v_lshrrev_b32 v1, 6, v0")
    a("v_and_b32 v0, 63, v0")
    a(f"v_readfirstlane_b32 {s(S_WAVE)}, v1")
    a(f"s_and_b32 {s(S_G8)}, s2, 7")
    a("s_lshr_b32 s4, s2, 3")
    a(f"s_lshr_b32 {s(S_B)}, s4, 2")
    a(f"s_and_b32 {s(S_HH)}, s4, 3")
    a(f"s_lshl_b32 s3, {s(S_G8)}, 2")
    a(f"s_add_u32 {s(S_H)}, s3, {s(S_HH)}")
    a(f"s_cmp_ge_u32 {s(S_WAVE)}, 4")
    a("s_cbranch_scc1 L_loader")
    if cfg.ipf:
        a("s_getpc_b64 s[62:63]")
        a.label("L_pc")
        a(f"s_sub_u32 s62, s62, L_pc-{KN}")
        a("s_subb_u32 s63, s63, 0")
        per = -(-28 // (1 << cfg.ishare))
        a("s_lshr_b32 s3, s2, 3")
        a(f"s_and_b32 s3, s3, {(1 << cfg.ishare) - 1}")
        a("s_lshl_b32 s3, s3, 2")
        a(f"s_add_u32 s3, s3, {s(S_WAVE)}")
        a(f"s_mul_i32 s3, s3, {per}")
        a(f"v_min_u32 v7, {per - 1}, v0")
        a("v_add_u32 v7, s3, v7")
        a("v_lshlrev_b32 v7, 7, v7")
        a(f"v_min_u32 v7, L_last-{KN}, v7")
        if cfg.ipf & 1:
            a("global_load_dword v14, v7, s[62:63]")
    a("s_branch L_compute")
    a.label("L_loader")
    gen_loader(a, cfg)
    a.label("L_end")
    a("s_endpgm")
    a.label("L_compute")
    gen_compute(a, cfg)
    a('.section .rodata,"a"')
    a(".p2align 6")
    a(kernel_desc(KN))
    return a.text()


if __name__ == "__main__":
    cfg = Cfg()
    out = sys.argv[1]
    for opt in sys.argv[2:]:
        k, val = opt.split("=")
        assert hasattr(cfg, k), k
        setattr(cfg, k, val if k == "only" else int(val))
    t = generate(cfg)
    pr = hazard.check(t) + hazard.check_counters(t)
    for p in pr:
        print(f"HAZARD line {p[0]} -> {p[1]}: need {p[2]} have {p[3]}\n    {p[4]}\n    {p[5]}")
    open(out, "w").write(t)
    print(out, "hazards:", len(pr), "lines:", t.count("\n"))
```
